```python
import torch

def _softmax(x, axis=-1):
    return torch.softmax(x, dim=axis)
def _gelu(x):
    return torch.nn.functional.gelu(x, approximate="tanh")
def _silu(x):
    return torch.nn.functional.silu(x)
def _sigmoid(x):
    return torch.sigmoid(x)
def _layernorm(x, axis=-1, eps=1e-5):
    m = x.mean(dim=axis, keepdim=True)
    v = x.var(dim=axis, keepdim=True, unbiased=False)
    return (x - m) / torch.sqrt(v + eps)
def _scatter_add(tgt, idx, src, axis=0):
    return tgt.clone().index_add_(axis, idx, src)
def _segment_sum(src, seg, n):
    out = torch.zeros((n,) + src.shape[1:], dtype=src.dtype)
    return out.index_add_(0, seg, src)
def _pad(x, pw):
    flat = tuple(v for pair in reversed(pw) for v in pair)
    return torch.nn.functional.pad(x, flat)

kernel_name = 'parallel_sum__ssm_conv_s5__dense_activation_mish__prompt'

def setup_inputs():

    _w = (lambda a: (lambda t: t.to(torch.bfloat16) if t.is_floating_point() else t)(torch.as_tensor(a)))
    def _A_setup():
        B, S, D = 1, 2048, 512
        P = D
        Lambda_re = -0.5 * (lambda _x: torch.exp(torch.as_tensor(_x)))((lambda *s: torch.randn(*s, dtype=torch.bfloat16) * 0.2)(P))
        Lambda_im = (lambda *s: torch.randn(*s, dtype=torch.bfloat16) * 0.8)(P) * 1.0
        B_re = (lambda *s: torch.randn(*s, dtype=torch.bfloat16) * 0.2)(P, D) * (D ** -0.5)
        B_im = (lambda *s: torch.randn(*s, dtype=torch.bfloat16) * 0.2)(P, D) * (D ** -0.5)
        C_re = (lambda *s: torch.randn(*s, dtype=torch.bfloat16) * 0.2)(D, P) * (P ** -0.5)
        C_im = (lambda *s: torch.randn(*s, dtype=torch.bfloat16) * 0.2)(D, P) * (P ** -0.5)
        log_dt = (lambda *s: torch.randn(*s, dtype=torch.bfloat16) * 0.2)(P) * 0.3 - 2.0
        Dskip = (lambda *s: torch.randn(*s, dtype=torch.bfloat16) * 0.05)(D)
        return {
            "x": _w((lambda *s: torch.randn(*s, dtype=torch.bfloat16) * 0.05)(B, S, D)),
            "Lambda_re": _w(Lambda_re),
            "Lambda_im": _w(Lambda_im),
            "B_re": _w(B_re),
            "B_im": _w(B_im),
            "C_re": _w(C_re),
            "C_im": _w(C_im),
            "log_dt": _w(log_dt),
            "Dskip": _w(Dskip),
        }
    _A_in = _A_setup()

    def _B_setup():
        B, S, D, F = 1, 2048, 512, 1792
        return {
            "x": _w((lambda *s: torch.randn(*s, dtype=torch.bfloat16) * 0.05)(B, S, D)),
            "w1": _w((lambda *s: torch.randn(*s, dtype=torch.bfloat16) * 0.8)(D, F) * (D ** -0.5)),
            "b1": _w((lambda *s: torch.randn(*s, dtype=torch.bfloat16) * 0.2)(F)),
            "w2": _w((lambda *s: torch.randn(*s, dtype=torch.bfloat16) * 0.2)(F, D) * (F ** -0.5)),
        }
    _B_in = _B_setup()

    return {
        "A_x": _A_in["x"],
        "A_Lambda_re": _A_in["Lambda_re"],
        "A_Lambda_im": _A_in["Lambda_im"],
        "A_B_re": _A_in["B_re"],
        "A_B_im": _A_in["B_im"],
        "A_C_re": _A_in["C_re"],
        "A_C_im": _A_in["C_im"],
        "A_log_dt": _A_in["log_dt"],
        "A_Dskip": _A_in["Dskip"],
        "B_x": _B_in["x"],
        "B_w1": _B_in["w1"],
        "B_b1": _B_in["b1"],
        "B_w2": _B_in["w2"],
    }

def reference(A_x, A_Lambda_re, A_Lambda_im, A_B_re, A_B_im, A_C_re, A_C_im, A_log_dt, A_Dskip, B_x, B_w1, B_b1, B_w2):
    def _A_ref(x, Lambda_re, Lambda_im, B_re, B_im, C_re, C_im, log_dt, Dskip):
        Bsz, L, H = x.shape
        Lam = Lambda_re + 1j * Lambda_im
        Bmat = B_re + 1j * B_im
        Cmat = C_re + 1j * C_im
        dt = torch.exp(log_dt)
        Lam_bar = torch.exp(dt * Lam)
        B_bar = ((Lam_bar - 1.0) / Lam)[:, None] * Bmat
        Bu = torch.einsum("bld,pd->blp", x + 0j, B_bar)
        h = torch.zeros_like(Bu[:, 0, :])
        hs = []
        for t in range(L):
            h = Lam_bar[None, :] * h + Bu[:, t, :]
            hs.append(h)
        hseq = torch.stack(hs, 1)
        y = 2.0 * torch.einsum("blp,dp->bld", hseq, Cmat).real + x * Dskip[None, None, :]
        return y

    def _B_ref(x, w1, b1, w2):
        h = torch.einsum("bsd,df->bsf", x, w1) + b1
        sp = torch.log1p(torch.exp(-torch.abs(h))) + torch.where(h > 0, h, torch.zeros_like(h))
        act = h * torch.tanh(sp)
        return torch.einsum("bsf,fd->bsd", act, w2)

    x = A_x
    xn = _layernorm(x, axis=-1)
    return x + _A_ref(xn, A_Lambda_re, A_Lambda_im, A_B_re, A_B_im, A_C_re, A_C_im, A_log_dt, A_Dskip) + _B_ref(xn, B_w1, B_b1, B_w2)
```

```python
import re

REG = re.compile(r"(?<![\w.])(-?\|?)([vas])(\d+|\[(\d+):(\d+)\])(?![\w])|\b(vcc|exec|m0)\b")
TRANS = ("v_exp_f32", "v_log_f32", "v_rcp_f32", "v_rsq_f32", "v_sqrt_f32", "v_sin_f32", "v_cos_f32")


def regs(op):
    out = set()
    for m in REG.finditer(op):
        if m.group(6):
            out.add(m.group(6))
        elif m.group(4):
            out.update(f"{m.group(2)}{i}" for i in range(int(m.group(4)), int(m.group(5)) + 1))
        else:
            out.add(m.group(2) + m.group(3))
    return out


class I:
    def __init__(self, text):
        self.text = text
        t = text.split(";")[0].strip()
        self.label = t.endswith(":")
        self.mn = t.split()[0] if t and not self.label else ""
        rest = t[len(self.mn):].strip()
        ops = [o.strip() for o in rest.split(",")] if rest else []
        self.ops = ops
        mn = self.mn
        self.mfma = mn.startswith("v_mfma")
        self.valu = mn.startswith("v_") and not self.mfma
        self.salu = mn.startswith("s_")
        self.ds = mn.startswith("ds_")
        self.vmem = mn.startswith(("buffer_", "global_"))
        self.trans = mn.split("_e32")[0].split("_e64")[0] in TRANS
        self.dot = mn.startswith("v_dot")
        self.dpp = "_dpp" in mn or "row_" in t or "quad_perm" in t
        self.perm = mn.startswith("v_permlane")
        self.lane = mn.startswith(("v_readlane", "v_readfirstlane"))
        self.dma = self.vmem and re.search(r"\blds\b", t) is not None
        self.wide_store = self.vmem and "store" in mn and mn.endswith(("x3", "x4"))
        self.w, self.r = set(), set()
        self.v = lambda s: {x for x in s if x[0] in "va" and x != "vcc"}
        R = [regs(o) for o in ops]
        if self.mfma:
            self.w = R[0]; self.A = R[1]; self.B = R[2]; self.C = R[3]; self.r = R[1] | R[2] | R[3]
            self.passes = 8 if "32x32" in mn else 4
        elif self.valu:
            self.w = set(R[0]); self.r = set().union(*R[1:]) if len(R) > 1 else set()
            if mn.startswith(("v_fmac", "v_dot2c", "v_permlane")) or self.dpp:
                self.r |= R[0]
            if self.perm:
                self.w |= R[1]
            if mn.startswith(("v_add_co", "v_addc_co", "v_sub_co")):
                self.w |= R[1]
            if mn.startswith("v_cndmask") and len(ops) == 3:
                self.r.add("vcc")
        elif self.ds:
            if "read" in mn or "permute" in mn or "swizzle" in mn:
                self.w = R[0]; self.r = set().union(*R[1:])
            else:
                self.r = set().union(*R)
        elif self.vmem:
            if "load" in mn and not self.dma:
                self.w = R[0]; self.r = set().union(*R[1:])
            else:
                self.r = set().union(*R) if R else set()
                self.data = (R[0] if mn.startswith("buffer_") else R[1]) if "store" in mn else set()
            if self.dma:
                self.r.add("m0")
        elif self.salu and ops and not mn.startswith(("s_cmp", "s_cbranch", "s_branch", "s_waitcnt", "s_nop", "s_barrier", "s_sleep", "s_setprio", "s_bitcmp")):
            self.w = R[0]; self.r = set().union(*R[1:]) if len(R) > 1 else set()
            if "saveexec" in mn:
                self.w.add("exec")
        elif self.salu:
            self.r = set().union(*R) if R else set()

    def states(self):
        if self.label or not self.mn or self.mn.startswith("."):
            return 0
        if self.mn == "s_nop":
            return int(self.ops[0]) + 1
        return 1


def need(p, c):
    n = 0
    sg = lambda s: {x for x in s if x[0] == "s" or x in ("vcc",)}
    if p.mfma:
        big = 12 if p.passes == 8 else 8
        if c.mfma:
            if p.w & (c.A | c.B):
                n = max(n, big)
            if p.w & c.C and not (p.w == c.C and p.passes == c.passes):
                n = max(n, big - 2)
            if p.w & c.w and p.w != c.C:
                n = max(n, big - 2)
        elif (c.valu or c.ds or c.vmem) and p.w & (c.r | c.w):
            n = max(n, big)
        if c.valu and p.C & c.w:
            n = max(n, 7 if p.passes == 8 else 3)
    if p.valu:
        pv = p.v(p.w)
        if c.mfma and pv & c.r:
            n = max(n, 2)
        if p.trans and c.valu and not c.trans and pv & c.r:
            n = max(n, 1)
        if p.trans and (c.ds or c.vmem) and pv & c.r:
            n = max(n, 1)
        if c.valu and (c.dpp or c.perm) and pv & c.r:
            n = max(n, 2)
        if c.lane and pv & c.r:
            n = max(n, 1)
        if p.dot and (c.valu or c.ds or c.vmem) and pv & (c.r | c.w):
            same_acc = c.dot and c.mn == p.mn and not (pv & set().union(*[regs(o) for o in c.ops[1:3]]))
            if not same_acc:
                n = max(n, 3)
        ps = sg(p.w)
        if ps:
            if c.valu and ps & c.r:
                n = max(n, 4 if c.lane else 2)
            if c.vmem and ps & c.r:
                n = max(n, 5)
            if c.salu and (ps & c.r or ("vcc" in ps and c.mn.startswith("s_cbranch_vcc"))):
                n = max(n, 2)
    if p.salu and "m0" in p.w and c.dma:
        n = max(n, 1)
    if p.wide_store and p.data & c.w:
        n = max(n, 2 if c.valu else 1)
    return n


def pad(lines):
    out = []
    added = 0
    for text in lines:
        c = I(text)
        if c.mn and not c.label and not c.mn.startswith("."):
            dist, lack = 0, 0
            for p in reversed(out):
                if dist >= 20:
                    break
                if p.mn and not p.label:
                    lack = max(lack, need(p, c) - dist)
                dist += p.states()
            while lack > 0:
                k = min(lack, 16)
                out.append(I(f"    s_nop {k-1}"))
                added += k
                lack -= k
        out.append(c)
    return [i.text for i in out], added


class K:
    def __init__(self):
        self.lines = []
        self.vm = []; self.vm_done = 0
        self.lg = []; self.lg_done = 0
        self.uid = 0

    def __call__(self, s, tag=None):
        for l in s.split("\n"):
            l = l.strip()
            if not l:
                continue
            if l.endswith(":") or l.startswith((".", ";")):
                self.lines.append(l)
                continue
            self.lines.append("    " + l)
            mn = l.split()[0]
            if mn.startswith(("buffer_", "global_")) and not mn.startswith(("buffer_wbl2", "buffer_inv")):
                self.vm.append(tag)
            elif mn.startswith("ds_"):
                self.lg.append(tag)

    def label(self, stem):
        self.uid += 1
        return f"L_{stem}_{self.uid}"

    def _n(self, q, done, tag):
        idx = max((i for i, t in enumerate(q) if t == tag), default=None)
        assert idx is not None, f"unknown tag {tag}"
        if idx < done:
            return None, done
        return len(q) - 1 - idx, idx + 1

    def wait(self, vm=None, lg=None):
        parts = []
        if vm is not None:
            n, d = (0, len(self.vm)) if vm == "all" else self._n(self.vm, self.vm_done, vm)
            if n is not None:
                if n > 63:
                    n, d = 63, len(self.vm) - 63
                parts.append(f"vmcnt({n})"); self.vm_done = d
        if lg is not None:
            n, d = (0, len(self.lg)) if lg == "all" else self._n(self.lg, self.lg_done, lg)
            if n is not None:
                if n > 15:
                    n, d = 15, len(self.lg) - 15
                parts.append(f"lgkmcnt({n})"); self.lg_done = d
        if parts:
            self.lines.append("    s_waitcnt " + " ".join(parts))

    def snapshot(self):
        return (list(self.vm), self.vm_done, list(self.lg), self.lg_done)

    def restore(self, s):
        self.vm, self.vm_done, self.lg, self.lg_done = list(s[0]), s[1], list(s[2]), s[3]


class Alloc:
    def __init__(self, kind, start, end):
        self.kind, self.next, self.end, self.names = kind, start, end, {}

    def __call__(self, name, n=1, align=1):
        self.next = (self.next + align - 1) // align * align
        r = self.next
        self.next += n
        assert self.next <= self.end, f"out of {self.kind} registers at {name}"
        self.names[name] = (r, n)
        return r


def rng(kind, r, n):
    return f"{kind}{r}" if n == 1 else f"{kind}[{r}:{r+n-1}]"
```

```python
import sys
from emit import K, Alloc, rng, pad

KNAME = "parallel_sum__ssm_conv_s5__dense_activation_mish__prompt_kernel"
EPOCH, STATS, XID, CS, EG, FLA, FLH, AF = 0, 0x10000, 0x20000, 0x30000, 0x40000, 0x80000, 0xC0000, 0x100000
DIAG = 200 << 20
MT = 176 * 1024
SCR = 65536
SCR_EX, SCR_CX, SCR_HT = SCR + 1024, SCR + 4096, SCR + 8192
RING = (0, 32768, 98304)
LOG2E = 0x3fb8aa3b
SPIN = 1 << 16


def gen(mode="global", mapping="rows", diag=False, rot="cg", fix_after=1, touch=False, code_prefetch=False):
    k = K()
    V = Alloc("v", 1, 256)
    v = lambda r, n=1: rng("v", r, n)
    a = lambda r, n=1: rng("a", r, n)
    s = lambda r, n=1: rng("s", r, n)
    st = "sc1" if mode == "global" else ""

    sC, sG, sW, sROT, sM, sN, sTAG, sLOC = 4, 5, 6, 7, 8, 9, 10, 11
    t0, t1, t2, t3 = 12, 13, 14, 15
    pX, pLR, pLI, pBR, pBI, pCR, pCI, pDT, pDS, pW1, pB1, pW2, pOUT, pWS = 16, 18, 20, 22, 24, 26, 28, 30, 32, 36, 38, 40, 42, 46
    rX, rW1, rBR, rBI, rW2, rCR, rCI, rWS, rOUT, rE = 48, 52, 56, 60, 64, 68, 72, 76, 80, 84
    sXB, sWB, sA0, sA1, sB2, sCNT, sAF = 88, 89, 90, 91, 92, 93, 94
    sSV = 96
    sHI = 98
    sXCC = 100
    sD = 34

    L, LR, HF, L16 = V("l"), V("lr"), V("hf"), V("l16")
    XD, WD, BD = V("xd", 4), V("wd", 4), V("bd")
    XR, WR, BR = V("xr", 4), V("wr", 4), V("br", 8)
    W2D, CD, W2R, CR = V("w2d", 4), V("cd", 4), V("w2r", 4), V("cr", 8)
    ACC, SS, T = V("acc", 64, 4), V("ss", 32, 4), V("t", 32, 4)
    LAR, LAI, NLAI, L16R, L16I, NL16I, PWR, PWI, L2R, L2I, SCRR, SCI, CFR, NCFR, NCFI = [V(x) for x in
        "lar lai nlai l16r l16i nl16i pwr pwi l2r l2i scr sci cfr ncfr ncfi".split()]
    C1, RS, M2RS, MF, DSK = V("c1"), V("rs"), V("m2rs"), V("mf"), V("dsk")
    XA, XB, WE = V("xa", 4, 4), V("xb", 4, 4), V("we", 12, 4)
    BI = V("bias", 2)
    PR, PI = V("pr"), V("pi")
    TAU = V("tau")
    TM = V("tmp", 27, 4)
    DG = V("diag")
    FR = 128

    stamps = []
    def stamp(name):
        if diag:
            stamps.append(name)
            k(f"s_memrealtime s[{sD}:{sD+1}]\ns_waitcnt lgkmcnt(0)")
            k.lg_done = len(k.lg)
            k(f"v_writelane_b32 {v(DG)}, s{sD}, {len(stamps)-1}")

    def srd(d, p, nbytes):
        k(f"s_mov_b32 s{d}, s{p}\ns_mov_b32 s{d+1}, s{p+1}\ns_mov_b32 s{d+2}, {nbytes:#x}\ns_mov_b32 s{d+3}, 0x20000")

    def mfma(d, x, y, c=None):
        k(f"v_mfma_f32_32x32x16_bf16 {v(d,16)}, {x}, {y}, {v(d,16) if c is None else c}")

    def untracked(text):
        n = len(k.vm)
        k(text)
        del k.vm[n:]

    k("s_cmp_ge_u32 s2, 256\ns_cbranch_scc1 L_end")
    k("s_load_dwordx16 s[16:31], s[0:1], 0\ns_load_dwordx16 s[32:47], s[0:1], 64")
    if diag:
        k("s_memrealtime s[12:13]")
    k(f"v_and_b32 {v(L)}, 63, v0\nv_lshrrev_b32 {v(TM)}, 6, v0\nv_and_b32 {v(LR)}, 31, v0")
    k(f"v_readfirstlane_b32 s{sW}, {v(TM)}")
    k(f"v_lshrrev_b32 {v(HF)}, 5, {v(L)}\nv_lshlrev_b32 {v(L16)}, 4, {v(L)}")
    k("s_and_b32 s14, s2, 7\ns_lshr_b32 s15, s2, 3")
    if mapping == "rows":
        k(f"s_and_b32 s3, s15, 1\ns_lshl_b32 s{sC}, s14, 1\ns_or_b32 s{sC}, s{sC}, s3\ns_lshr_b32 s{sG}, s15, 1")
    elif mapping == "x8g4":
        k(f"s_lshr_b32 s3, s14, 2\ns_lshl_b32 s3, s3, 3\ns_and_b32 s{sC}, s15, 7\ns_or_b32 s{sC}, s{sC}, s3")
        k(f"s_and_b32 s3, s14, 3\ns_lshl_b32 s3, s3, 2\ns_lshr_b32 s{sG}, s15, 3\ns_or_b32 s{sG}, s{sG}, s3")
    elif mapping == "x4g8":
        k(f"s_lshr_b32 s3, s14, 1\ns_lshl_b32 s3, s3, 2\ns_and_b32 s{sC}, s15, 3\ns_or_b32 s{sC}, s{sC}, s3")
        k(f"s_and_b32 s3, s14, 1\ns_lshl_b32 s3, s3, 3\ns_lshr_b32 s{sG}, s15, 2\ns_or_b32 s{sG}, s{sG}, s3")
    k({"cg": f"s_add_u32 s{sROT}, s{sC}, s{sG}\ns_and_b32 s{sROT}, s{sROT}, 7", "none": f"s_mov_b32 s{sROT}, 0",
       "c": f"s_and_b32 s{sROT}, s{sC}, 7", "g": f"s_and_b32 s{sROT}, s{sG}, 7"}[rot])
    k(f"s_lshr_b32 s3, s{sG}, 3\ns_lshl_b32 s{sM}, s{sC}, 1\ns_or_b32 s{sM}, s{sM}, s3\ns_and_b32 s{sN}, s{sG}, 7")
    k(f"s_mov_b32 s{sHI}, 0\ns_mov_b32 s{sHI+1}, -1")
    k(f"s_getreg_b32 s{sXCC}, hwreg(HW_REG_XCC_ID)\ns_and_b32 s{sXCC}, s{sXCC}, 15")
    A_, B_, C_, D_ = TM, TM + 1, TM + 2, TM + 3
    k(f"v_lshrrev_b32 {v(A_)}, 3, {v(L)}")
    k(f"v_and_b32 {v(B_)}, 7, {v(L)}\nv_lshrrev_b32 {v(C_)}, 4, {v(L)}")
    k(f"v_xor_b32 {v(B_)}, {v(B_)}, {v(C_)}\nv_lshlrev_b32 {v(B_)}, 4, {v(B_)}")
    k(f"v_and_b32 {v(C_)}, 3, {v(A_)}\nv_lshl_add_u32 {v(C_)}, {v(HF)}, 4, {v(C_)}")
    k(f"v_lshl_add_u32 {v(XD)}, {v(C_)}, 10, {v(B_)}")
    k(f"v_xor_b32 {v(XD+1)}, 64, {v(XD)}\nv_add_u32 {v(XD+2)}, 6144, {v(XD)}")
    k(f"v_add_u32 {v(XD+3)}, 9216, {v(XD+1)}\nv_add_u32 {v(XD+1)}, 3072, {v(XD+1)}")
    k(f"v_lshl_add_u32 {v(CD)}, {v(A_)}, 10, {v(B_)}")
    k(f"v_lshrrev_b32 {v(C_)}, 4, {v(L)}\nv_and_b32 {v(D_)}, 15, {v(L)}\nv_lshlrev_b32 {v(B_)}, 2, {v(C_)}")
    k(f"v_xor_b32 {v(D_)}, {v(D_)}, {v(B_)}\nv_lshlrev_b32 {v(D_)}, 4, {v(D_)}")
    k(f"v_mul_u32_u24 {v(C_)}, 3584, {v(C_)}\nv_add_u32 {v(WD)}, {v(C_)}, {v(D_)}")
    for i in (1, 2, 3):
        k(f"v_add_u32 {v(WD+i)}, {i*13312}, {v(WD)}")
    k(f"v_lshlrev_b32 {v(A_)}, 10, {v(HF)}\nv_lshl_add_u32 {v(A_)}, {v(LR)}, 4, {v(A_)}")
    k(f"s_lshl_b32 s{sXB}, s{sC}, 17\ns_lshl_b32 s3, s{sW}, 15\ns_add_u32 s{sXB}, s{sXB}, s3")
    k(f"s_mul_i32 s{sWB}, s{sW}, {16*3584}\ns_lshl_b32 s3, s{sG}, 8\ns_add_u32 s{sWB}, s{sWB}, s3")
    k(f"s_lshl_b32 s3, s{sC}, 4\ns_add_u32 s3, s3, s{sG}\ns_lshl_b32 s3, s3, 2\ns_add_u32 s3, s3, s{sW}\ns_lshl_b32 s{t2}, s3, 11")
    k(f"s_lshl_b32 s3, s{sG}, 5\nv_add_lshl_u32 {v(B_)}, {v(LR)}, s3, 1")
    k(f"s_lshl_b32 s3, s{sG}, 7\nv_add_lshl_u32 {v(C_)}, {v(L)}, s3, 1\nv_min_u32 {v(C_)}, 3454, {v(C_)}")
    k(f"s_lshl_b32 s3, s{sN}, 1\ns_and_b32 s{t3}, s{sW}, 1\ns_or_b32 s3, s3, s{t3}\ns_lshl_b32 s3, s3, 5\nv_add_lshl_u32 {v(D_)}, {v(LR)}, s3, 1")
    k("s_waitcnt lgkmcnt(0)")
    if diag:
        k(f"v_writelane_b32 {v(DG)}, s12, 0"); stamps.append("start")
    k(f"s_load_dword s{sTAG}, s[{pWS}:{pWS+1}], {EPOCH}")
    srd(rX, pX, 2 << 20)
    SR = TM + 4
    k(f"buffer_load_dwordx4 {v(SR,4)}, {v(A_)}, {s(rX,4)}, s{t2} offen", "srow")
    k(f"buffer_load_dwordx4 {v(SR+4,4)}, {v(A_)}, {s(rX,4)}, s{t2} offen offset:512", "srow")
    PL = TM + 12
    k(f"global_load_ushort {v(PL)}, {v(B_)}, {s(pLR,2)}\nglobal_load_ushort {v(PL+1)}, {v(B_)}, {s(pLI,2)}\nglobal_load_ushort {v(PL+2)}, {v(B_)}, {s(pDT,2)}", "par")
    k(f"global_load_ushort {v(BI)}, {v(C_)}, {s(pB1,2)}\nglobal_load_ushort {v(BI+1)}, {v(C_)}, {s(pB1,2)} offset:128", "par")
    k(f"global_load_ushort {v(DSK)}, {v(D_)}, {s(pDS,2)}", "par")
    srd(rW1, pW1, 512 * 3584)

    def x_dma(stage, base, tag):
        k(f"s_xor_b32 s{t0}, s{sROT}, {stage}\ns_lshl_b32 s{t0}, s{t0}, 7\ns_add_u32 s{t0}, s{t0}, s{sXB}")
        k(f"s_lshl_b32 s3, s{sW}, 12\ns_add_u32 m0, s3, {base}")
        return [(f"buffer_load_dwordx4 {v(XD+i)}, {s(rX,4)}, s{t0} offen offset:{i*1024} lds", tag) for i in range(4)]

    def stage_ops(stage):
        slot = (stage % 5) * 32768
        tag = f"st{stage}"
        ops = [(f"s_xor_b32 s{t0}, s{sROT}, {stage}\ns_mul_i32 s{t1}, s{t0}, {64*3584}\ns_lshl_b32 s{t0}, s{t0}, 7\n"
                f"s_add_u32 s{t0}, s{t0}, s{sXB}\ns_add_u32 s{t1}, s{t1}, s{sWB}\ns_lshl_b32 s3, s{sW}, 12\ns_add_u32 m0, s3, {slot}", None)]
        ops += [(f"buffer_load_dwordx4 {v(XD+i)}, {s(rX,4)}, s{t0} offen offset:{i*1024} lds", tag) for i in range(4)]
        ops += [(f"s_add_u32 m0, m0, 16384", None)]
        ops += [(f"buffer_load_dwordx4 {v(WD+i)}, {s(rW1,4)}, s{t1} offen offset:{i*1024} lds", tag) for i in range(4)]
        return ops

    def bmat_ops(comp):
        tag = f"bm{comp}"
        r = rBI if comp else rBR
        ops = [(f"s_lshl_b32 s{t0}, s{sG}, 15\ns_lshl_b32 s3, s{sW}, 13\ns_add_u32 s{t0}, s{t0}, s3\ns_add_u32 m0, s3, {(3+comp)*32768}", None)]
        for i in range(8):
            if i == 4:
                ops.append((f"s_add_u32 m0, m0, 4096\ns_add_u32 s{t0}, s{t0}, 4096", None))
            tv = TM + 24 + (i & 1)
            ops.append((f"v_xor_b32 {v(tv)}, {i << 4}, {v(BD)}\nbuffer_load_dwordx4 {v(tv)}, {s(r,4)}, s{t0} offen offset:{(i&3)*1024} lds", tag))
        return ops

    def ring_ops(b):
        tag = f"blk{b}"
        if b < 7:
            head = f"s_add_u32 s{t0}, s{sB2}, {b*65536}"
            r, D = rW2, W2D
        else:
            head = f"s_lshl_b32 s{t0}, s{sN}, 16\ns_lshl_b32 s3, s{sW}, 8\ns_add_u32 s{t0}, s{t0}, s3"
            if (b - 7) & 1:
                head += f"\ns_add_u32 s{t0}, s{t0}, 128"
            r, D = (rCI if b >= 9 else rCR), CD
        ops = [(head + f"\ns_lshl_b32 s3, s{sW}, 13\ns_add_u32 m0, s3, {RING[b % 3]}", None)]
        for i in range(8):
            if i == 4:
                ops.append((f"s_add_u32 m0, m0, 4096\ns_add_u32 s{t0}, s{t0}, 32768", None))
            ops.append((f"buffer_load_dwordx4 {v(D+(i&3))}, {s(r,4)}, s{t0} offen offset:{(i&3)*1024} lds", tag))
        return ops

    def run(ops):
        for text, tag in ops:
            k(text, tag)

    k(f"s_cmp_ge_u32 s{sG}, 14\ns_cbranch_scc1 L_light_issue")
    snap0 = k.snapshot()
    for stg in range(5):
        run(stage_ops(stg))
    k("s_branch L_setup")
    snap_full = k.snapshot()
    k("L_light_issue:")
    k.restore(snap0)
    k(f"s_lshl_b32 s{sCNT}, s{sC}, 1\ns_add_u32 s{sCNT}, s{sCNT}, s{sG}\ns_sub_u32 s{sCNT}, s{sCNT}, 14")
    k(f"s_min_u32 s{t0}, s{sCNT}, 27\ns_lshl_b32 s{t0}, s{t0}, 7\ns_mul_i32 s3, s{sW}, {128*3584}\ns_add_u32 s{t0}, s{t0}, s3")
    k(f"v_lshrrev_b32 {v(TM+16)}, 3, {v(L)}\nv_mul_u32_u24 {v(TM+16)}, 3584, {v(TM+16)}\nv_and_b32 {v(TM+17)}, 7, {v(L)}\nv_lshl_add_u32 {v(TM+16)}, {v(TM+17)}, 4, {v(TM+16)}")
    for i in range(16):
        k(f"buffer_load_dwordx4 {v(ACC+4*i,4)}, {v(TM+16)}, {s(rW1,4)}, s{t0} offen", f"lw{i}")
        k(f"s_add_u32 s{t0}, s{t0}, {8*3584}")
    k(f"s_cmp_lt_u32 s{sCNT}, 16\ns_cselect_b32 s{rE}, s{pBR}, s{pBI}\ns_cselect_b32 s{rE+1}, s{pBR+1}, s{pBI+1}\ns_mov_b32 s{rE+2}, 0x80000\ns_mov_b32 s{rE+3}, 0x20000")
    k(f"s_and_b32 s{t0}, s{sCNT}, 15\ns_lshl_b32 s{t0}, s{t0}, 15\ns_lshl_b32 s3, s{sW}, 13\ns_add_u32 s{t0}, s{t0}, s3")
    for i in range(8):
        if i == 4:
            k(f"s_add_u32 s{t0}, s{t0}, 4096")
        k(f"buffer_load_dwordx4 {v(SS+4*i,4)}, {v(L16)}, {s(rE,4)}, s{t0} offen offset:{(i&3)*1024}", "lb")
    for stg in range(4):
        run(x_dma(stg, stg * 16384, f"lx{stg}"))
    snap_light = k.snapshot()
    assert len(snap_light[0]) == len(snap_full[0])
    k("L_setup:")
    k.restore(snap_full)
    srd(rWS, pWS, 1 << 28)
    srd(rBR, pBR, 1 << 19); srd(rBI, pBI, 1 << 19); srd(rW2, pW2, 1792 * 1024)
    srd(rCR, pCR, 1 << 19); srd(rCI, pCI, 1 << 19); srd(rOUT, pOUT, 4 << 20)
    k(f"s_lshl_b32 s{t0}, s{sW}, 12\ns_lshl_b32 s{t1}, s{sW}, 13")
    k(f"v_bfe_u32 {v(A_)}, {v(LR)}, 1, 3\nv_xor_b32 {v(A_)}, {v(A_)}, {v(HF)}\nv_lshlrev_b32 {v(A_)}, 4, {v(A_)}\nv_lshl_add_u32 {v(A_)}, {v(LR)}, 7, {v(A_)}")
    for j in range(4):
        k(f"v_xor_b32 {v(B_)}, {j << 5}, {v(A_)}\nv_add_u32 {v(XR+j)}, s{t0}, {v(B_)}\nv_add_u32 {v(CR+j)}, s{t1}, {v(B_)}")
    k(f"s_and_b32 s3, s{sW}, 1\ns_lshl_b32 s3, s3, 12")
    for j in range(4):
        k(f"v_xor_b32 {v(CR+j)}, s3, {v(CR+j)}\nv_add_u32 {v(CR+4+j)}, {RING[2]}, {v(CR+j)}")
    k(f"v_bfe_u32 {v(A_)}, {v(L)}, 2, 2\nv_and_b32 {v(B_)}, 3, {v(L)}\nv_lshlrev_b32 {v(B_)}, 3, {v(B_)}")
    k(f"v_bfe_u32 {v(C_)}, {v(L)}, 4, 1\nv_lshl_add_u32 {v(B_)}, {v(C_)}, 5, {v(B_)}")
    k(f"v_lshl_add_u32 {v(C_)}, {v(HF)}, 3, {v(A_)}\nv_lshl_add_u32 {v(C_)}, {v(C_)}, 8, {v(B_)}\nv_lshl_add_u32 {v(C_)}, {v(A_)}, 6, {v(C_)}")
    k(f"v_add_u32 {v(WR)}, 16384, {v(C_)}")
    for t in (1, 2, 3):
        k(f"v_xor_b32 {v(WR+t)}, {t << 6}, {v(WR)}")
    k(f"v_lshl_add_u32 {v(C_)}, {v(HF)}, 2, {v(A_)}\nv_lshl_add_u32 {v(C_)}, {v(C_)}, 7, {v(B_)}\nv_lshrrev_b32 {v(A_)}, 1, {v(A_)}")
    k(f"s_and_b32 s3, s{sW}, 1\nv_xor_b32 {v(A_)}, s3, {v(A_)}\nv_lshl_add_u32 {v(C_)}, {v(A_)}, 6, {v(C_)}\nv_add_u32 {v(W2R)}, s{t1}, {v(C_)}")
    k(f"v_xor_b32 {v(W2R+1)}, 64, {v(W2R)}\nv_add_u32 {v(W2R+2)}, {RING[2]}, {v(W2R)}\nv_add_u32 {v(W2R+3)}, {RING[2]}, {v(W2R+1)}")
    k(f"v_and_b32 {v(A_)}, 15, {v(L)}\nv_xor_b32 {v(A_)}, {v(A_)}, {v(HF)}\nv_lshlrev_b32 {v(A_)}, 4, {v(A_)}\nv_lshl_add_u32 {v(A_)}, {v(LR)}, 10, {v(A_)}")
    k(f"v_add_u32 {v(BR)}, 98304, {v(A_)}")
    for i in range(1, 8):
        k(f"v_xor_b32 {v(BR+i)}, {i << 5}, {v(BR)}")
    k(f"s_and_b32 s3, s{sW}, 1\ns_xor_b32 s3, s3, s{sROT}\ns_lshl_b32 s3, s3, 7\nv_xor_b32 {v(BD)}, s3, {v(L16)}")
    k(f"v_lshrrev_b32 {v(A_)}, 3, {v(L)}\nv_and_b32 {v(B_)}, 7, {v(L)}\nv_bfe_u32 {v(C_)}, {v(L)}, 4, 1\nv_lshlrev_b32 {v(C_)}, 2, {v(C_)}")
    k(f"v_xor_b32 {v(B_)}, {v(B_)}, {v(C_)}\nv_lshlrev_b32 {v(B_)}, 4, {v(B_)}\nv_lshl_add_u32 {v(W2D)}, {v(A_)}, 10, {v(B_)}")
    for i in (1, 2, 3):
        k(f"v_add_u32 {v(W2D+i)}, {i*7168}, {v(W2D)}")
    k(f"v_xor_b32 {v(CD+1)}, 64, {v(CD)}\nv_add_u32 {v(CD+2)}, {2*7168}, {v(CD)}\nv_add_u32 {v(CD+3)}, {3*7168}, {v(CD+1)}\nv_add_u32 {v(CD+1)}, 7168, {v(CD+1)}")
    k(f"s_mul_i32 s{sB2}, s{sW}, {448*1024}\ns_lshl_b32 s3, s{sN}, 7\ns_add_u32 s{sB2}, s{sB2}, s3")
    k(f"s_lshl_b32 s3, s{sC}, 2\ns_add_u32 s3, s3, s{sW}\ns_mul_i32 s{sAF}, s3, {MT}\ns_add_u32 s{sAF}, s{sAF}, {AF}")
    k(f"v_bfe_u32 {v(A_)}, {v(LR)}, 2, 1\nv_lshrrev_b32 {v(B_)}, 3, {v(LR)}\nv_and_b32 {v(C_)}, 3, {v(LR)}")
    k(f"v_lshl_add_u32 {v(C_)}, {v(B_)}, 2, {v(C_)}\nv_lshl_add_u32 {v(TAU)}, {v(A_)}, 4, {v(C_)}")
    S1, S2, U1, U2 = TM, TM + 1, TM + 2, TM + 3
    k(f"v_mov_b32 {v(S1)}, 0\nv_mov_b32 {v(S2)}, 0\ns_mov_b32 s{t0}, 0x3f803f80")
    k.wait(vm="srow")
    for i in range(8):
        k(f"v_dot2c_f32_bf16 {v(S1)}, s{t0}, {v(SR+i)}\nv_dot2c_f32_bf16 {v(S2)}, {v(SR+i)}, {v(SR+i)}")
    for r in (8, 4, 2, 1):
        k(f"v_add_f32_dpp {v(S1)}, {v(S1)}, {v(S1)} row_ror:{r} row_mask:0xf bank_mask:0xf")
        k(f"v_add_f32_dpp {v(S2)}, {v(S2)}, {v(S2)} row_ror:{r} row_mask:0xf bank_mask:0xf")
    k(f"v_mov_b32 {v(U1)}, {v(S1)}\nv_mov_b32 {v(U2)}, {v(S2)}")
    k(f"v_permlane16_swap_b32 {v(S1)}, {v(U1)}\nv_permlane16_swap_b32 {v(S2)}, {v(U2)}")
    k(f"v_add_f32 {v(S1)}, {v(S1)}, {v(U1)}\nv_add_f32 {v(S2)}, {v(S2)}, {v(U2)}")
    k(f"v_mul_f32 {v(S1)}, 0x3b000000, {v(S1)}\nv_mul_f32 {v(S2)}, 0x3b000000, {v(S2)}")
    k(f"v_fma_f32 {v(S2)}, -{v(S1)}, {v(S1)}, {v(S2)}\nv_max_f32 {v(S2)}, 0, {v(S2)}")
    k(f"v_cvt_pk_bf16_f32 {v(S2)}, {v(S2)}, {v(S2)}\nv_and_b32 {v(S2)}, 0xffff0000, {v(S2)}\nv_add_f32 {v(S2)}, 0x3727c5ac, {v(S2)}")
    k(f"v_cvt_pk_bf16_f32 {v(S2)}, {v(S2)}, {v(S2)}\nv_and_b32 {v(S2)}, 0xffff0000, {v(S2)}\nv_sqrt_f32 {v(S2)}, {v(S2)}")
    k(f"v_cvt_pk_bf16_f32 {v(SR)}, {v(S1)}, {v(S2)}")
    k("s_waitcnt lgkmcnt(0)")
    k(f"s_mul_i32 s{sTAG}, s{sTAG}, 0x9e3779b1\ns_add_u32 s{sTAG}, s{sTAG}, 0x7f4a7c15")
    k(f"v_mov_b32 {v(SR+1)}, s{sTAG}\nv_mov_b32 {v(SR+2)}, s{sXCC}\nv_mov_b32 {v(SR+3)}, s{sTAG}\nv_lshlrev_b32 {v(U1)}, 3, {v(HF)}\nv_mov_b32 {v(U2)}, 0")
    k(f"s_lshr_b32 s{t0}, s{t2}, 7\ns_add_u32 s{t0}, s{t0}, {STATS}")
    k(f"s_lshl_b32 s{t1}, s{sC}, 4\ns_add_u32 s{t1}, s{t1}, s{sG}\ns_lshl_b32 s{t1}, s{t1}, 3\ns_add_u32 s{t1}, s{t1}, {XID}")
    k("s_mov_b32 exec_lo, 1\ns_mov_b32 exec_hi, 1")
    k(f"buffer_store_dwordx2 {v(SR,2)}, {v(U1)}, {s(rWS,4)}, s{t0} offen sc1", "pub0")
    k(f"buffer_store_dwordx2 {v(SR+2,2)}, {v(U2)}, {s(rWS,4)}, s{t1} offen sc1", "pub0")
    k("s_mov_b64 exec, -1")
    stamp("stats")
    k.wait(vm="par")
    LRE, LIM, DT, A2, BRV = PL, PL + 1, PL + 2, PL + 3, PL + 4
    X0, X1, X2, X3 = TM, TM + 1, TM + 2, TM + 3
    k(f"v_lshlrev_b32 {v(LRE)}, 16, {v(LRE)}\nv_lshlrev_b32 {v(LIM)}, 16, {v(LIM)}\nv_lshlrev_b32 {v(DT)}, 16, {v(DT)}\nv_lshlrev_b32 {v(DSK)}, 16, {v(DSK)}")
    k(f"v_mul_f32 {v(DT)}, {LOG2E:#x}, {v(DT)}\nv_exp_f32 {v(DT)}, {v(DT)}\nv_cvt_pk_bf16_f32 {v(DT)}, {v(DT)}, {v(DT)}\nv_and_b32 {v(DT)}, 0xffff0000, {v(DT)}")
    k(f"v_mul_f32 {v(A2)}, {v(DT)}, {v(LRE)}\nv_mul_f32 {v(BRV)}, {v(DT)}, {v(LIM)}\nv_mul_f32 {v(A2)}, {LOG2E:#x}, {v(A2)}\nv_mul_f32 {v(BRV)}, 0.15915494, {v(BRV)}")

    def cpow(n, dr, di):
        k(f"v_mul_f32 {v(X0)}, {n}, {v(A2)}\nv_mul_f32 {v(X1)}, {n}, {v(BRV)}\nv_exp_f32 {v(X0)}, {v(X0)}\nv_fract_f32 {v(X1)}, {v(X1)}")
        k(f"v_cos_f32 {v(dr)}, {v(X1)}\nv_sin_f32 {v(di)}, {v(X1)}\nv_mul_f32 {v(dr)}, {v(dr)}, {v(X0)}\nv_mul_f32 {v(di)}, {v(di)}, {v(X0)}")

    cpow("1.0", LAR, LAI); cpow("0x41800000", L16R, L16I); cpow("0x43800000", L2R, L2I)
    k(f"s_lshl_b32 s3, s{sW}, 1\nv_add_u32 {v(X2)}, s3, {v(HF)}\nv_lshlrev_b32 {v(X2)}, 4, {v(X2)}\nv_cvt_f32_u32 {v(X2)}, {v(X2)}")
    cpow(v(X2), PWR, PWI)
    k(f"s_lshl_b32 s3, s{sW}, 2\nv_add_u32 {v(X2)}, s3, {v(HF)}\nv_lshlrev_b32 {v(X2)}, 7, {v(X2)}\nv_cvt_f32_u32 {v(X2)}, {v(X2)}")
    cpow(v(X2), SCRR, SCI)
    k(f"v_sub_f32 {v(NLAI)}, 0, {v(LAI)}\nv_sub_f32 {v(NL16I)}, 0, {v(L16I)}")
    k(f"v_mul_f32 {v(X0)}, {v(LRE)}, {v(LRE)}\nv_fmac_f32 {v(X0)}, {v(LIM)}, {v(LIM)}\nv_rcp_f32 {v(X0)}, {v(X0)}\nv_subrev_f32 {v(X1)}, 1.0, {v(LAR)}")
    k(f"v_mul_f32 {v(CFR)}, {v(X1)}, {v(LRE)}\nv_mul_f32 {v(NCFI)}, {v(X1)}, {v(LIM)}\nv_add_f32 {v(X0)}, {v(X0)}, {v(X0)}")
    k(f"v_fmac_f32 {v(CFR)}, {v(LAI)}, {v(LIM)}\nv_fmac_f32 {v(NCFI)}, {v(NLAI)}, {v(LRE)}")
    k(f"v_mul_f32 {v(CFR)}, {v(CFR)}, {v(X0)}\nv_mul_f32 {v(NCFI)}, {v(NCFI)}, {v(X0)}\nv_sub_f32 {v(NCFR)}, 0, {v(CFR)}")
    k(f"v_mul_f32 {v(T)}, {v(CFR)}, {v(LAR)}\nv_mul_f32 {v(T+16)}, {v(CFR)}, {v(LAI)}\nv_fmac_f32 {v(T)}, {v(NCFI)}, {v(LAI)}\nv_fma_f32 {v(T+16)}, -{v(NCFI)}, {v(LAR)}, {v(T+16)}")
    for i in range(1, 16):
        k(f"v_mul_f32 {v(T+i)}, {v(T+i-1)}, {v(LAR)}\nv_mul_f32 {v(T+16+i)}, {v(T+15+i)}, {v(LAR)}")
        k(f"v_fmac_f32 {v(T+i)}, {v(T+15+i)}, {v(NLAI)}\nv_fmac_f32 {v(T+16+i)}, {v(T+i-1)}, {v(LAI)}")
    for e in (XA + 2, XA + 3, XB + 2, XB + 3, WE + 2, WE + 3, WE + 6, WE + 7, WE + 10, WE + 11):
        k(f"v_mov_b32 {v(e)}, 0")
    stamp("setup")

    GS, GX = TM + 16, TM + 18
    GA = TM + 20

    def gran_loads(full):
        ops = [(f"s_lshr_b32 s{t2}, s{sXB}, 7\ns_add_u32 s{t2}, s{t2}, {STATS}\nv_lshlrev_b32 {v(GA)}, 3, {v(TAU)}", None),
               (f"buffer_load_dwordx2 {v(GS,2)}, {v(GA)}, {s(rWS,4)}, s{t2} offen sc1", "gran"),
               (f"s_lshl_b32 s{t2}, s{sC}, 7\ns_add_u32 s{t2}, s{t2}, {XID}\nv_and_b32 {v(GA)}, 15, {v(L)}\nv_lshlrev_b32 {v(GA)}, 3, {v(GA)}", None),
               (f"buffer_load_dwordx2 {v(GX,2)}, {v(GA)}, {s(rWS,4)}, s{t2} offen sc1", "gran"),
               (f"s_lshl_b32 s{t2}, s{sG}, 8\ns_add_u32 s{t2}, s{t2}, {CS + 1792*8}\nv_lshlrev_b32 {v(GA)}, 12, {v(HF)}\nv_lshl_add_u32 {v(GA)}, {v(LR)}, 3, {v(GA)}", None),
               (f"buffer_load_dwordx2 {v(WE+8,2)}, {v(GA)}, {s(rWS,4)}, s{t2} offen sc1", "gran")]
        if full:
            ops += [(f"s_lshl_b32 s{t2}, s{sG}, 10\ns_add_u32 s{t2}, s{t2}, {CS}\nv_lshlrev_b32 {v(GA)}, 3, {v(L)}", None),
                    (f"buffer_load_dwordx2 {v(WE,2)}, {v(GA)}, {s(rWS,4)}, s{t2} offen sc1", "gran"),
                    (f"buffer_load_dwordx2 {v(WE+4,2)}, {v(GA)}, {s(rWS,4)}, s{t2} offen offset:512 sc1", "gran")]
        return ops

    def gran_check(full):
        again, ok = k.label("gran_again"), k.label("gran_ok")
        k.wait(vm="gran")
        k(f"s_mov_b32 s{sCNT}, 0")
        k(again + ":")
        tags = [GS + 1, GX + 1, WE + 9] + ([WE + 1, WE + 5] if full else [])
        k(f"v_xor_b32 {v(GA)}, s{sTAG}, {v(tags[0])}")
        for t in tags[1:]:
            k(f"v_xor_b32 {v(GA+1)}, s{sTAG}, {v(t)}\nv_or_b32 {v(GA)}, {v(GA)}, {v(GA+1)}")
        k(f"v_cmp_ne_u32 vcc, 0, {v(GA)}\ns_add_u32 s{sCNT}, s{sCNT}, 1\ns_nop 1\ns_cbranch_vccz {ok}")
        k(f"s_cmp_gt_u32 s{sCNT}, {SPIN}\ns_cbranch_scc1 {ok}")
        for text, _ in gran_loads(full):
            untracked(text)
        k(f"s_waitcnt vmcnt(0)\ns_branch {again}")
        k(ok + ":")
        k(f"v_cmp_ne_u32 vcc, s{sXCC}, {v(GX)}")
        k(f"v_and_b32 {v(GA)}, 0xffff, {v(GS)}\nv_and_b32 {v(GA+1)}, 0xffff0000, {v(GS)}\nv_lshlrev_b32 {v(MF)}, 16, {v(GS)}")
        k(f"s_cmp_eq_u64 vcc, 0\ns_cselect_b32 s{sLOC}, 1, 0")
        k(f"v_rcp_f32 {v(RS)}, {v(GA+1)}\nv_xor_b32 {v(GA)}, 0x8000, {v(GA)}\nv_lshrrev_b32 {v(GA+1)}, 16, {v(GS)}\nv_lshl_or_b32 {v(GA)}, {v(GA)}, 16, {v(GA)}")
        k(f"v_cndmask_b32 {v(XA)}, {v(GA)}, 0, {s(sHI,2)}\nv_cndmask_b32 {v(XA+1)}, {v(GA+1)}, 0, {s(sHI,2)}")
        k(f"v_cndmask_b32 {v(XB)}, 0, {v(GA)}, {s(sHI,2)}\nv_cndmask_b32 {v(XB+1)}, 0, {v(GA+1)}, {s(sHI,2)}")
        k(f"v_mov_b32 {v(WE+9)}, 0\nv_mul_f32 {v(C1)}, {LOG2E:#x}, {v(RS)}\nv_mul_f32 {v(M2RS)}, -2.0, {v(RS)}")
        if full:
            k(f"v_mov_b32 {v(WE+1)}, {v(BI)}\nv_mov_b32 {v(WE+5)}, {v(BI+1)}")

    def after_b0():
        k(f"s_lshl_b32 s3, s{sW}, 7\ns_add_u32 s3, s3, {SCR}\nv_lshlrev_b32 {v(GA)}, 9, {v(HF)}\nv_lshl_add_u32 {v(GA)}, {v(TAU)}, 2, {v(GA)}\nv_add_u32 {v(GA)}, s3, {v(GA)}")
        k(f"v_cndmask_b32 {v(GA+1)}, {v(RS)}, {v(MF)}, {s(sHI,2)}\nds_write_b32 {v(GA)}, {v(GA+1)}", "stw")

    def xs_ops():
        ops = [(f"s_lshl_b32 s{t2}, s{sM}, 1\ns_lshr_b32 s3, s{sW}, 1\ns_add_u32 s{t2}, s{t2}, s3\ns_lshl_b32 s{t2}, s{t2}, 15\n"
                f"s_lshl_b32 s3, s{sN}, 7\ns_add_u32 s{t2}, s{t2}, s3\ns_and_b32 s3, s{sW}, 1\ns_lshl_b32 s3, s3, 6\ns_add_u32 s{t2}, s{t2}, s3\n"
                f"v_lshlrev_b32 {v(GA+2)}, 14, {v(HF)}\nv_lshl_add_u32 {v(GA+2)}, {v(LR)}, 1, {v(GA+2)}", None)]
        for r in range(16):
            pre = f"s_add_u32 s{t2}, s{t2}, 4096\n" if r and r % 4 == 0 else ""
            ops.append((pre + f"buffer_load_ushort {v(ACC+16+r)}, {v(GA+2)}, {s(rX,4)}, s{t2} offen offset:{(r&3)*1024}", "xs"))
        return ops

    def pass2(fill):
        def rd(si):
            for c in range(2):
                k(f"ds_read_b128 {a(FR+8*(si%4)+4*c,4)}, {v(BR+(si&7))} offset:{(si>>3)*256 + c*32768}", f"b{si}_{c}")
        for si in range(3):
            rd(si)
        per = -(-len(fill) // 60)
        for si in range(32):
            for c in range(2):
                k.wait(lg=f"b{si}_{c}")
                mfma(SS + 16 * c, a(4 * si, 4), a(FR + 8 * (si % 4) + 4 * c, 4), "0" if si == 0 else None)
                if si + 3 < 32:
                    k(f"ds_read_b128 {a(FR+8*((si+3)%4)+4*c,4)}, {v(BR+((si+3)&7))} offset:{((si+3)>>3)*256 + c*32768}", f"b{si+3}_{c}")
                for _ in range(per):
                    if fill:
                        k(*fill.pop(0))
        run(fill)
        mfma(SS, v(XA, 4), v(WE + 8, 4)); mfma(SS + 16, v(XB, 4), v(WE + 8, 4))

    def mish_ops(t):
        ops = []
        TA, TB = TM, TM + 4
        for e in range(2):
            PK = TM + 8 + 4 * e
            for h in range(2):
                R = [ACC + 16 * t + 8 * e + 4 * h + i for i in range(4)]
                for f in (lambda i: f"v_mul_f32 {v(TA+i)}, {v(R[i])}, {v(C1)}",
                          lambda i: f"v_exp_f32 {v(TA+i)}, {v(TA+i)}",
                          lambda i: f"v_add_f32 {v(TB+i)}, 2.0, {v(TA+i)}",
                          lambda i: f"v_fma_f32 {v(TA+i)}, {v(TA+i)}, {v(TB+i)}, 2.0",
                          lambda i: f"v_rcp_f32 {v(TA+i)}, {v(TA+i)}",
                          lambda i: f"v_fma_f32 {v(TA+i)}, {v(TA+i)}, {v(M2RS)}, {v(RS)}",
                          lambda i: f"v_mul_f32 {v(TA+i)}, {v(R[i])}, {v(TA+i)}"):
                    ops += [(f(i), None) for i in range(4)]
                ops += [(f"v_cvt_pk_bf16_f32 {v(PK+2*h+i)}, {v(TA+2*i)}, {v(TA+2*i+1)}", None) for i in range(2)]
            ops.append((f"buffer_store_dwordx4 {v(PK,4)}, {v(L16)}, {s(rWS,4)}, s{sA0} offen offset:{(2*(t&1)+e)*1024} {st}", "act"))
        return ops

    k(f"s_cmp_ge_u32 s{sG}, 14\ns_cbranch_scc1 L_light")
    snap_setup = k.snapshot()
    base_of = lambda stg: ((stg % 5) // 2) * 65536
    def reads(stg, j):
        off = (stg % 5) * 32768 - base_of(stg)
        out = [[(f"ds_read_b128 {a(16*stg+4*j,4)}, {v(XR+j)} offset:{off}", f"x{stg}_{j}")]]
        for t in range(4):
            grp = [(f"ds_read_b64_tr_b16 {a(FR+4*t+2*rd,2)}, {v(WR+t)} offset:{off + j*4096 + rd*1024}", f"w{stg}_{j}_{t}") for rd in range(2)]
            if t == 0:
                out[0] += grp
            else:
                out.append(grp)
        return out

    k.wait(vm="st0")
    k("s_barrier")
    stamp("st0")
    for grp in reads(0, 0):
        run(grp)
    extra = {1: stage_ops(5), 2: stage_ops(6), 3: stage_ops(7), 4: bmat_ops(0), 5: gran_loads(True) + bmat_ops(1), 6: ring_ops(0)}
    pend = []
    for stg in range(8):
        for j in range(4):
            nxt = None
            if j < 3:
                nxt = reads(stg, j + 1)
            elif stg < 7:
                k.wait(vm=f"st{stg+1}")
                k("s_barrier")
                d = base_of(stg + 1) - base_of(stg)
                if d:
                    for r in list(range(XR, XR + 4)) + list(range(WR, WR + 4)):
                        k(f"v_add_u32 {v(r)}, {d & 0xffffffff:#x}, {v(r)}")
                nxt = reads(stg + 1, 0)
                assert not pend
                pend = list(extra.get(stg, []))
            for t in range(4):
                k.wait(lg=f"w{stg}_{j}_{t}")
                mfma(ACC + 16 * t, a(FR + 4 * t, 4), a(16 * stg + 4 * j, 4), "0" if stg == 0 and j == 0 else None)
                if nxt:
                    run(nxt[t])
                n = 0
                while pend and n < 1:
                    text, tag = pend.pop(0)
                    k(text, tag)
                    n += tag is not None
        if stg in (3, 7):
            stamp(f"stage{stg}")
    assert not pend
    gran_check(True)
    stamp("gran")
    for t in range(4):
        mfma(ACC + 16 * t, v(WE + 4 * (t >> 1), 4), v(XB if t & 1 else XA, 4))
    k(f"s_lshl_b32 s3, s{sG}, 13\ns_add_u32 s{sA0}, s{sAF}, s3")
    run(mish_ops(0)); run(mish_ops(1))
    k(f"s_add_u32 s{sA0}, s{sA0}, 4096")
    stamp("mish01")
    k.wait(vm="bm1")
    k("s_barrier")
    stamp("b0")
    after_b0()
    pass2(ring_ops(1) + xs_ops() + mish_ops(2) + mish_ops(3))
    k("s_branch L_join")
    snap_join = k.snapshot()

    k("L_light:")
    sl = (snap_light[0] + snap_setup[0][len(snap_full[0]):], 0, [], 0)
    k.restore(sl)
    CA = TM
    k(f"s_mov_b32 s{t0}, 0x00003f80\ns_mov_b32 s{t1}, 0x3f800000")
    for j in range(8):
        k(f"v_mov_b32 {v(CA+j)}, 0")
    for i in range(16):
        k.wait(vm=f"lw{i}")
        for j in range(4):
            k(f"v_dot2c_f32_bf16 {v(CA+2*j)}, s{t0}, {v(ACC+4*i+j)}\nv_dot2c_f32_bf16 {v(CA+2*j+1)}, s{t1}, {v(ACC+4*i+j)}")
    for j in range(8):
        k(f"v_add_f32_dpp {v(CA+j)}, {v(CA+j)}, {v(CA+j)} row_ror:8 row_mask:0xf bank_mask:0xf")

    def fold8(R):
        for j in range(0, 8, 2):
            k(f"v_permlane32_swap_b32 {v(R+j)}, {v(R+j+1)}")
        for j in range(0, 8, 2):
            k(f"v_add_f32 {v(R+j)}, {v(R+j)}, {v(R+j+1)}")
        k(f"v_permlane16_swap_b32 {v(R)}, {v(R+2)}\nv_permlane16_swap_b32 {v(R+4)}, {v(R+6)}")
        k(f"v_add_f32 {v(R)}, {v(R)}, {v(R+2)}\nv_add_f32 {v(R+4)}, {v(R+4)}, {v(R+6)}")

    def split_publish(R, addr, soff):
        k(f"v_cvt_pk_bf16_f32 {v(R+1)}, {v(R)}, {v(R)}\nv_and_b32 {v(R+1)}, 0xffff0000, {v(R+1)}\nv_sub_f32 {v(R+1)}, {v(R)}, {v(R+1)}")
        k(f"v_cvt_pk_bf16_f32 {v(R)}, {v(R)}, {v(R+1)}\nv_mov_b32 {v(R+1)}, s{sTAG}")
        k(f"buffer_store_dwordx2 {v(R,2)}, {v(addr)}, {s(rWS,4)}, s{soff} offen sc1", "cspub")

    fold8(CA)
    EL = TM + 8
    k(f"v_bfe_u32 {v(EL)}, {v(L)}, 4, 1\nv_lshl_add_u32 {v(EL)}, {v(EL)}, 1, {v(HF)}")
    k(f"v_and_b32 {v(EL+1)}, 7, {v(L)}\nv_lshl_add_u32 {v(EL+1)}, {v(EL+1)}, 3, {v(EL)}\nv_lshlrev_b32 {v(EL+1)}, 2, {v(EL+1)}")
    k(f"s_lshl_b32 s3, s{sW}, 8\ns_add_u32 s3, s3, 98304\nv_add_u32 {v(EL+1)}, s3, {v(EL+1)}")
    k(f"ds_write2_b32 {v(EL+1)}, {v(CA)}, {v(CA+4)} offset0:0 offset1:4", "cw")
    k(f"v_lshlrev_b32 {v(EL+1)}, 2, {v(L)}\nv_add_u32 {v(EL+1)}, 98304, {v(EL+1)}")
    k.wait(lg="all")
    k("s_barrier")
    for j in range(4):
        k(f"ds_read_b32 {v(CA+j)}, {v(EL+1)} offset:{j*256}", "cr")
    k(f"s_min_u32 s{t2}, s{sCNT}, 27\ns_lshl_b32 s{t2}, s{t2}, 9\ns_add_u32 s{t2}, s{t2}, {CS}\nv_lshlrev_b32 {v(EL+2)}, 3, {v(L)}")
    k.wait(lg="all")
    k("s_barrier")
    k(f"v_add_f32 {v(CA)}, {v(CA)}, {v(CA+1)}\nv_add_f32 {v(CA+2)}, {v(CA+2)}, {v(CA+3)}\nv_add_f32 {v(CA)}, {v(CA)}, {v(CA+2)}")
    split_publish(CA, EL + 2, t2)
    for stg in (4, 5):
        run(x_dma(stg, stg * 16384, f"lx{stg}"))
    run(bmat_ops(0)); run(bmat_ops(1))
    k(f"s_mov_b32 s{t0}, 0x3f803f80")
    for j in range(8):
        k(f"v_mov_b32 {v(CA+j)}, 0")
    k.wait(vm="lb")
    for j in range(4):
        for i in range(8):
            k(f"v_dot2c_f32_bf16 {v(CA+i)}, s{t0}, {v(SS+4*i+j)}")
    fold8(CA)
    for r in (8, 4, 2, 1):
        k(f"v_add_f32_dpp {v(CA)}, {v(CA)}, {v(CA)} row_ror:{r} row_mask:0xf bank_mask:0xf")
        k(f"v_add_f32_dpp {v(CA+4)}, {v(CA+4)}, {v(CA+4)} row_ror:{r} row_mask:0xf bank_mask:0xf")
    k(f"v_and_b32 {v(EL+1)}, 1, {v(L)}\nv_cmp_eq_u32 vcc, 1, {v(EL+1)}\nv_lshl_add_u32 {v(EL+1)}, {v(EL+1)}, 2, {v(EL)}\nv_lshlrev_b32 {v(EL+1)}, 3, {v(EL+1)}")
    k(f"v_cndmask_b32 {v(CA)}, {v(CA)}, {v(CA+4)}, vcc")
    k(f"s_lshl_b32 s{t2}, s{sCNT}, 8\ns_lshl_b32 s3, s{sW}, 6\ns_add_u32 s{t2}, s{t2}, s3\ns_add_u32 s{t2}, s{t2}, {CS + 1792*8}")
    split_publish(CA, EL + 1, t2)
    def lreads(stg, base):
        k.wait(vm=f"lx{stg}")
        for j in range(4):
            k(f"ds_read_b128 {a(16*stg+4*j,4)}, {v(XR+j)} offset:{base}", f"lr{stg}")
    lreads(0, 0); lreads(1, 16384)
    k.wait(lg="all")
    for stg in (6, 7):
        run(x_dma(stg, (stg - 6) * 16384, f"lx{stg}"))
    run(gran_loads(False))
    lreads(2, 32768); lreads(3, 49152)
    for j in range(4):
        k(f"v_add_u32 {v(XR+j)}, 0x10000, {v(XR+j)}")
    lreads(4, 0); lreads(5, 16384)
    for j in range(4):
        k(f"v_add_u32 {v(XR+j)}, 0xffff0000, {v(XR+j)}")
    lreads(6, 0); lreads(7, 16384)
    gran_check(False)
    k.wait(vm="all", lg="all")
    k("s_barrier")
    after_b0()
    pass2(ring_ops(0) + ring_ops(1) + xs_ops())
    k.wait(vm="all")

    k("L_join:")
    k.restore(snap_join)
    k(f"s_lshl_b32 s3, s{sW}, 7\ns_add_u32 s3, s3, {SCR}\nv_lshlrev_b32 {v(GA)}, 6, {v(HF)}\nv_add_u32 {v(GA)}, s3, {v(GA)}")
    for q in range(4):
        k(f"ds_read_b128 {v(ACC+4*q,4)}, {v(GA)} offset:{q*16}", "rsv")
    k(f"s_lshl_b32 s3, s{sW}, 9\ns_add_u32 s3, s3, {SCR_EX}\nv_lshlrev_b32 {v(GA+1)}, 3, {v(L)}\nv_add_u32 {v(GA+1)}, s3, {v(GA+1)}")
    k(f"v_lshlrev_b32 {v(GA+2)}, 3, {v(LR)}\nv_add_u32 {v(GA+2)}, {SCR_EX}, {v(GA+2)}")
    k.wait(lg="rsv")
    stamp("pass2")
    for r in range(16):
        k(f"v_mul_f32 {v(SS+r)}, {v(SS+r)}, {v(ACC+r)}\nv_mul_f32 {v(SS+16+r)}, {v(SS+16+r)}, {v(ACC+r)}")
    for r in range(1, 16):
        k(f"v_fmac_f32 {v(SS+r)}, {v(LAR)}, {v(SS+r-1)}\nv_fmac_f32 {v(SS+16+r)}, {v(LAR)}, {v(SS+15+r)}")
        k(f"v_fmac_f32 {v(SS+r)}, {v(NLAI)}, {v(SS+15+r)}\nv_fmac_f32 {v(SS+16+r)}, {v(LAI)}, {v(SS+r-1)}")
    k(f"ds_write2_b32 {v(GA+1)}, {v(SS+15)}, {v(SS+31)} offset0:0 offset1:1", "exw")

    def flag_publish(base, tag):
        k(f"s_lshl_b32 s{t2}, s{sC}, 4\ns_add_u32 s{t2}, s{t2}, s{sG}\ns_lshl_b32 s{t2}, s{t2}, 2\ns_add_u32 s{t2}, s{t2}, s{sW}\ns_lshl_b32 s{t2}, s{t2}, 7\ns_add_u32 s{t2}, s{t2}, {base}")
        k(f"v_mov_b32 {v(TM+26)}, s{sTAG}")
        k.wait(vm=tag)
        k("s_mov_b64 exec, 1")
        text = f"buffer_store_dword {v(TM+26)}, off, {s(rWS,4)}, s{t2}"
        if mode == "global":
            k(text + " sc1", "flag")
        else:
            far, done = k.label("far"), k.label("flagged")
            k(f"s_cmp_eq_u32 s{sLOC}, 0\ns_cbranch_scc1 {far}")
            k(text, "flag")
            k(f"s_branch {done}")
            k(far + ":")
            untracked(f"buffer_wbl2 sc1\ns_waitcnt vmcnt(0)\n{text} sc1")
            k(done + ":")
        k("s_mov_b64 exec, -1")

    PL_A, PL_V = TM + 24, TM + 25
    def poll_addr(base, g0expr):
        k(f"{g0expr}\ns_lshl_b32 s{t3}, s{sC}, 4\ns_add_u32 s3, s3, s{t3}\ns_lshl_b32 s3, s3, 1\ns_lshr_b32 s{t3}, s{sG}, 3\ns_add_u32 s3, s3, s{t3}\ns_lshl_b32 s3, s3, 8\ns_add_u32 s{t3}, s3, {base}")
        k(f"v_bfe_u32 {v(PL_A)}, {v(L)}, 1, 2\nv_and_b32 {v(PL_V)}, 1, {v(L)}\nv_lshl_add_u32 {v(PL_A)}, {v(PL_A)}, 2, {v(PL_V)}\nv_lshlrev_b32 {v(PL_A)}, 7, {v(PL_A)}")
        k(f"buffer_load_dword {v(PL_V)}, {v(PL_A)}, {s(rWS,4)}, s{t3} offen sc1", "poll")

    def poll_check():
        again, ok = k.label("poll_again"), k.label("poll_ok")
        k.wait(vm="poll")
        k(f"s_mov_b32 s{sCNT}, 0")
        k(again + ":")
        k(f"v_cmp_ne_u32 vcc, s{sTAG}, {v(PL_V)}\ns_add_u32 s{sCNT}, s{sCNT}, 1\ns_nop 1\ns_cbranch_vccz {ok}")
        k(f"s_cmp_gt_u32 s{sCNT}, {SPIN}\ns_cbranch_scc1 {ok}")
        untracked(f"buffer_load_dword {v(PL_V)}, {v(PL_A)}, {s(rWS,4)}, s{t3} offen sc1")
        k(f"s_waitcnt vmcnt(0)\ns_branch {again}")
        k(ok + ":")

    flag_publish(FLA, "act")
    k.wait(lg="all")
    k("s_barrier")
    EK = TM
    for q in range(8):
        k(f"ds_read_b64 {v(EK+2*q,2)}, {v(GA+2)} offset:{q*256}", f"ek{q}")
    k(f"s_lshl_b32 s3, s{sG}, 13\ns_add_u32 s{rE}, s{pWS}, s3\ns_addc_u32 s{rE+1}, s{pWS+1}, 0\ns_add_u32 s{rE}, s{rE}, {EG}\ns_addc_u32 s{rE+1}, s{rE+1}, 0")
    k(f"s_mov_b32 s{rE+2}, 8192\ns_mov_b32 s{rE+3}, 0x20000")
    for q in range(1, 8):
        k.wait(lg=f"ek{q}")
        r, i = EK + 2 * q, EK + 2 * q + 1
        k(f"v_fmac_f32 {v(r)}, {v(L16R)}, {v(r-2)}\nv_fmac_f32 {v(i)}, {v(L16R)}, {v(i-2)}")
        k(f"v_fmac_f32 {v(r)}, {v(NL16I)}, {v(i-2)}\nv_fmac_f32 {v(i)}, {v(L16I)}, {v(r-2)}")
    sel = k.label("sel")
    for wv in range(4):
        nx = k.label("selw")
        if wv < 3:
            k(f"s_cmp_lg_u32 s{sW}, {wv}\ns_cbranch_scc1 {nx}")
        lo = ("0", "0") if wv == 0 else (v(EK + 4 * wv - 2), v(EK + 4 * wv - 1))
        k(f"v_cndmask_b32 {v(PR)}, {lo[0]}, {v(EK+4*wv)}, {s(sHI,2)}\nv_cndmask_b32 {v(PI)}, {lo[1]}, {v(EK+4*wv+1)}, {s(sHI,2)}")
        if wv < 3:
            k(f"s_branch {sel}")
            k(nx + ":")
        else:
            k(f"v_mov_b32 {v(EK+16)}, {v(EK+14)}\nv_mov_b32 {v(EK+17)}, s{sTAG}\nv_mov_b32 {v(EK+18)}, {v(EK+15)}\nv_mov_b32 {v(EK+19)}, s{sTAG}")
            k(f"s_lshl_b32 s3, s{sC}, 9\ns_mov_b32 exec_hi, 0")
            untracked(f"buffer_store_dwordx4 {v(EK+16,4)}, {v(L16)}, {s(rE,4)}, s3 offen sc1")
            k("s_mov_b32 exec_hi, -1")
    k(sel + ":")
    stamp("escan")
    poll_addr(FLA, f"s_mul_i32 s3, s{sW}, 7\ns_lshr_b32 s3, s3, 1")
    run(ring_ops(2))
    k(f"s_lshr_b32 s3, s{sG}, 3\ns_lshl_b32 s3, s3, 1\ns_lshr_b32 s{t2}, s{sW}, 1\ns_add_u32 s3, s3, s{t2}\ns_lshl_b32 s3, s3, 7\ns_add_u32 s3, s3, {SCR}")
    k(f"v_lshlrev_b32 {v(GA)}, 6, {v(HF)}\nv_add_u32 {v(GA)}, s3, {v(GA)}")
    for q in range(4):
        k(f"ds_read_b128 {v(ACC+32+4*q,4)}, {v(GA)} offset:{q*16}\nds_read_b128 {v(ACC+48+4*q,4)}, {v(GA)} offset:{512+q*16}", "ast")
    for r in range(16):
        k(f"v_mul_f32 {v(TM)}, {v(SS+r)}, {v(NCFI)}\nv_mul_f32 {v(SS+r)}, {v(SS+r)}, {v(CFR)}")
        k(f"v_fmac_f32 {v(SS+r)}, {v(SS+16+r)}, {v(NCFI)}\nv_fma_f32 {v(SS+16+r)}, {v(SS+16+r)}, {v(NCFR)}, {v(TM)}")
    k.wait(vm="xs", lg="ast")
    for r in range(16):
        k(f"v_lshlrev_b32 {v(ACC+16+r)}, 16, {v(ACC+16+r)}\nv_sub_f32 {v(ACC+r)}, {v(ACC+16+r)}, {v(ACC+48+r)}")
        k(f"v_mul_f32 {v(ACC+r)}, {v(ACC+r)}, {v(ACC+32+r)}\nv_fma_f32 {v(ACC+r)}, {v(ACC+r)}, {v(DSK)}, {v(ACC+16+r)}")
    k(f"s_lshl_b32 s3, s{sM}, 1\ns_lshr_b32 s{t2}, s{sW}, 1\ns_add_u32 s{sA0}, s3, s{t2}\ns_xor_b32 s{sA1}, s{sA0}, 1")
    k(f"s_mul_i32 s{sA0}, s{sA0}, {MT}\ns_mul_i32 s{sA1}, s{sA1}, {MT}\ns_mul_i32 s3, s{sW}, {28*1024}\ns_add_u32 s3, s3, {AF}")
    k(f"s_add_u32 s{sA0}, s{sA0}, s3\ns_add_u32 s{sA1}, s{sA1}, s3")
    poll_check()
    stamp("actpoll")

    def a_ops(b, js):
        ops = []
        for j in js:
            for m in range(2):
                ops.append((f"buffer_load_dwordx4 {a(32*(b%3)+8*j+4*m,4)}, {v(L16)}, {s(rWS,4)}, s{sA1 if m else sA0} offen offset:{j*1024} sc1", f"blk{b}"))
        return ops

    def a_next(b):
        if b == 7:
            return f"s_mul_i32 s3, s{sW}, {-12*1024 & 0xffffffff:#x}\ns_add_u32 s3, s3, {(112-24)*1024}\ns_add_u32 s{sA0}, s{sA0}, s3\ns_add_u32 s{sA1}, s{sA1}, s3"
        return f"s_add_u32 s{sA0}, s{sA0}, 4096\ns_add_u32 s{sA1}, s{sA1}, 4096"

    for b in range(3):
        if b:
            k(a_next(b))
        run(a_ops(b, range(4)))

    EA, EX0, EX1, E0 = TM + 8, TM + 9, TM + 10, TM
    def e_loads():
        return (f"buffer_load_dwordx4 {v(E0,4)}, {v(EA)}, {s(rE,4)}, 0 offen sc1\n"
                f"buffer_load_dwordx4 {v(E0+4,4)}, {v(EA+3)}, {s(rE,4)}, 0 offen sc1")

    def e_issue():
        k(f"s_lshl_b32 s3, s{sW}, 2\ns_sub_u32 s3, s{sC}, s3\ns_sub_u32 s3, s3, 1\nv_sub_u32 {v(EA)}, s3, {v(HF)}\nv_subrev_u32 {v(EA+3)}, 2, {v(EA)}")
        k(f"v_ashrrev_i32 {v(EX0)}, 31, {v(EA)}\nv_ashrrev_i32 {v(EX1)}, 31, {v(EA+3)}\nv_bfi_b32 {v(EX0)}, {v(EX0)}, 0, s{sTAG}\nv_bfi_b32 {v(EX1)}, {v(EX1)}, 0, s{sTAG}")
        k(f"v_lshlrev_b32 {v(EA+4)}, 4, {v(LR)}\nv_lshl_add_u32 {v(EA)}, {v(EA)}, 9, {v(EA+4)}\nv_lshl_add_u32 {v(EA+3)}, {v(EA+3)}, 9, {v(EA+4)}")
        k(e_loads(), "eg")

    def fixup():
        again, ok = k.label("e_again"), k.label("e_ok")
        Y0, Y1 = TM + 12, TM + 13
        k.wait(vm="eg")
        k(f"s_mov_b32 s{sCNT}, 0")
        k(again + ":")
        k(f"v_xor_b32 {v(Y0)}, {v(E0+1)}, {v(EX0)}\nv_xor_b32 {v(Y1)}, {v(E0+3)}, {v(EX0)}\nv_or_b32 {v(Y0)}, {v(Y0)}, {v(Y1)}")
        k(f"v_xor_b32 {v(Y1)}, {v(E0+5)}, {v(EX1)}\nv_or_b32 {v(Y0)}, {v(Y0)}, {v(Y1)}\nv_xor_b32 {v(Y1)}, {v(E0+7)}, {v(EX1)}\nv_or_b32 {v(Y0)}, {v(Y0)}, {v(Y1)}")
        k(f"v_cmp_ne_u32 vcc, 0, {v(Y0)}\ns_add_u32 s{sCNT}, s{sCNT}, 1\ns_nop 1\ns_cbranch_vccz {ok}")
        k(f"s_cmp_gt_u32 s{sCNT}, {SPIN}\ns_cbranch_scc1 {ok}")
        untracked(e_loads())
        k(f"s_waitcnt vmcnt(0)\ns_branch {again}")
        k(ok + ":")
        k(f"v_fmac_f32 {v(E0)}, {v(L2R)}, {v(E0+4)}\nv_fmac_f32 {v(E0+2)}, {v(L2R)}, {v(E0+6)}")
        k(f"v_fma_f32 {v(E0)}, -{v(L2I)}, {v(E0+6)}, {v(E0)}\nv_fmac_f32 {v(E0+2)}, {v(L2I)}, {v(E0+4)}")
        k(f"v_mul_f32 {v(Y0)}, {v(SCRR)}, {v(E0)}\nv_mul_f32 {v(Y1)}, {v(SCRR)}, {v(E0+2)}")
        k(f"v_fma_f32 {v(Y0)}, -{v(SCI)}, {v(E0+2)}, {v(Y0)}\nv_fmac_f32 {v(Y1)}, {v(SCI)}, {v(E0)}")
        k(f"s_lshl_b32 s3, s{sW}, 9\ns_add_u32 s3, s3, {SCR_CX}\nv_lshlrev_b32 {v(GA)}, 3, {v(L)}\nv_add_u32 {v(GA)}, s3, {v(GA)}")
        k(f"ds_write_b64 {v(GA)}, {v(Y0,2)}", "cxw")
        k(f"v_lshlrev_b32 {v(GA)}, 3, {v(LR)}\nv_add_u32 {v(GA)}, {SCR_CX}, {v(GA)}")
        k.wait(lg="all")
        k("s_barrier")
        for q in range(8):
            k(f"ds_read_b64 {v(TM+2*q,2)}, {v(GA)} offset:{q*256}", "cxr")
        k(f"s_lshl_b32 s3, s{sW}, 12\ns_add_u32 s3, s3, {SCR_HT}\nv_lshlrev_b32 {v(GA)}, 5, {v(HF)}\nv_lshl_add_u32 {v(GA)}, {v(LR)}, 6, {v(GA)}\nv_add_u32 {v(GA)}, s3, {v(GA)}")
        k(f"v_bfe_u32 {v(GA+1)}, {v(L)}, 2, 2\nv_lshl_add_u32 {v(GA+1)}, {v(HF)}, 3, {v(GA+1)}\nv_lshlrev_b32 {v(GA+1)}, 6, {v(GA+1)}")
        k(f"v_and_b32 {v(GA+2)}, 1, {v(L)}\nv_lshl_add_u32 {v(GA+1)}, {v(GA+2)}, 5, {v(GA+1)}\nv_bfe_u32 {v(GA+2)}, {v(L)}, 1, 1\nv_lshl_add_u32 {v(GA+1)}, {v(GA+2)}, 3, {v(GA+1)}")
        k(f"v_bfe_u32 {v(GA+2)}, {v(L)}, 4, 1\nv_lshl_add_u32 {v(GA+1)}, {v(GA+2)}, 4, {v(GA+1)}\nv_add_u32 {v(GA+1)}, s3, {v(GA+1)}")
        k.wait(lg="all")
        for step in (8, 4, 2):
            for q in range(0, step, 2):
                k(f"v_add_f32 {v(TM+q)}, {v(TM+q)}, {v(TM+q+step)}\nv_add_f32 {v(TM+q+1)}, {v(TM+q+1)}, {v(TM+q+step+1)}")
        k(f"v_fmac_f32 {v(PR)}, {v(PWR)}, {v(TM)}\nv_fmac_f32 {v(PI)}, {v(PWR)}, {v(TM+1)}")
        k(f"v_fma_f32 {v(PR)}, -{v(PWI)}, {v(TM+1)}, {v(PR)}\nv_fmac_f32 {v(PI)}, {v(PWI)}, {v(TM)}")
        NR, NI = TM + 16, TM + 17
        k(f"v_sub_f32 {v(NR)}, 0, {v(PR)}\nv_sub_f32 {v(NI)}, 0, {v(PI)}")
        for r in range(16):
            k(f"v_fmac_f32 {v(SS+r)}, {v(T+r)}, {v(PR)}\nv_fmac_f32 {v(SS+16+r)}, {v(T+r)}, {v(NI)}")
            k(f"v_fmac_f32 {v(SS+r)}, {v(T+16+r)}, {v(NI)}\nv_fmac_f32 {v(SS+16+r)}, {v(T+16+r)}, {v(NR)}")
        for q in range(16):
            k(f"v_cvt_pk_bf16_f32 {v(TM+q)}, {v(SS+2*q)}, {v(SS+2*q+1)}")
            if q % 4 == 3:
                k(f"ds_write_b128 {v(GA)}, {v(TM+q-3,4)} offset:{(q>>3)*2048 + ((q>>2)&1)*16}", "htw")
        k(f"s_lshr_b32 s3, s{sG}, 2\ns_lshl_b32 s3, s3, 3\ns_and_b32 s{t2}, s{sG}, 3\ns_add_u32 s3, s3, s{t2}\ns_lshl_b32 s3, s3, 11\ns_add_u32 s{t2}, s{sAF}, s3\ns_add_u32 s{t2}, s{t2}, {112*1024}")
        k.wait(lg="all")
        for f in range(4):
            for rd in range(2):
                k(f"ds_read_b64_tr_b16 {v(SS+4*f+2*rd,2)}, {v(GA+1)} offset:{f*1024 + rd*256}", f"htr{f}")
        for f in range(4):
            k.wait(lg=f"htr{f}")
            if f == 2:
                k(f"s_add_u32 s{t2}, s{t2}, 8192")
            k(f"buffer_store_dwordx4 {v(SS+4*f,4)}, {v(L16)}, {s(rWS,4)}, s{t2} offen offset:{(f&1)*1024} {st}", "hst")

    def b_reads(b, j):
        hi = b % 3 == 2
        off = 0 if hi else RING[b % 3]
        if b < 7:
            return [(f"ds_read_b64_tr_b16 {a(FR+8*j+4*n+2*rd,2)}, {v(W2R+2*hi+n)} offset:{off + j*2048 + rd*1024}", f"f{b}_{j}")
                    for n in range(2) for rd in range(2)]
        return [(f"ds_read_b128 {a(FR+8*j+4*n,4)}, {v(CN[n]+4*hi+j)} offset:{off}", f"f{b}_{j}") for n in range(2)]

    CN = (CR, BR)
    for j in range(4):
        k(f"v_xor_b32 {v(BR+j)}, 0x1000, {v(CR+j)}\nv_add_u32 {v(BR+4+j)}, {RING[2]}, {v(BR+j)}")

    hflag_at, hpoll_at = fix_after + 3, 5
    for b in range(11):
        if b == hflag_at:
            flag_publish(FLH, "hst")
        k.wait(vm=f"blk{b}")
        if b in (0, 3, 7):
            stamp(f"blk{b}")
        run(b_reads(b, 0)); run(b_reads(b, 1))
        nb = b + 3
        late = nb == 7
        for j in range(4):
            fill = []
            if j < 2:
                fill = b_reads(b, j + 2)
            elif nb < 11:
                if j == 2 and not late and nb != 8:
                    fill = [(a_next(nb), None)] + a_ops(nb, (0, 1))
                if j == 3:
                    k.wait(lg=f"f{b}_3")
                    fill = ring_ops(nb)
            k.wait(lg=f"f{b}_{j}")
            per = -(-len(fill) // 4)
            for m in range(2):
                for n in range(2):
                    first = b == 0 and j == 0 and (m or n)
                    mfma(ACC + 32 * m + 16 * n, a(32 * (b % 3) + 8 * j + 4 * m, 4), a(FR + 8 * j + 4 * n, 4), "0" if first else None)
                    for _ in range(per):
                        if fill:
                            k(*fill.pop(0))
        if nb < 11 and not late and nb != 8:
            run(a_ops(nb, (2, 3)))
        if b == fix_after - 1:
            e_issue()
        if b == fix_after:
            fixup()
            stamp("fixup")
        if b == hpoll_at - 1:
            poll_addr(FLH, f"s_lshl_b32 s3, s{sW}, 2")
        if b == hpoll_at:
            poll_check()
            stamp("hpoll")
            for nb2 in (7, 8):
                k(a_next(nb2))
                run(a_ops(nb2, range(4)))
    stamp("p2done")
    k(f"s_lshl_b32 s3, s{sW}, 13\nv_add_u32 {v(GA)}, s3, {v(L16)}")
    for u in (1, 2, 3):
        for q in range(4):
            k(f"ds_write_b128 {v(GA)}, {v(ACC+16*u+4*q,4)} offset:{(u>>1)*32768 + (u&1)*4096 + q*1024}", "fw")
    for u in (1, 2, 3):
        k(f"v_xor_b32 {v(GA+u)}, {u << 13}, {v(GA)}")
    k(f"s_lshl_b32 s{t2}, s{sM}, 1\ns_lshr_b32 s3, s{sW}, 1\ns_add_u32 s{t2}, s{t2}, s3\ns_lshl_b32 s{t2}, s{t2}, 16")
    k(f"s_lshl_b32 s3, s{sN}, 8\ns_add_u32 s{t2}, s{t2}, s3\ns_and_b32 s3, s{sW}, 1\ns_lshl_b32 s3, s3, 7\ns_add_u32 s{t2}, s{t2}, s3")
    k(f"v_lshlrev_b32 {v(TM)}, 15, {v(HF)}\nv_lshl_add_u32 {v(TM)}, {v(LR)}, 2, {v(TM)}")
    k.wait(lg="all")
    k("s_barrier")
    for q in range(4):
        for u in (1, 2, 3):
            k(f"ds_read_b128 {v(ACC+16*u+4*q,4)}, {v(GA+u)} offset:{(u>>1)*32768 + (u&1)*4096 + q*1024}", f"fr{q}")
    for q in range(4):
        k.wait(lg=f"fr{q}")
        for i in range(4):
            r = 4 * q + i
            k(f"v_add_f32 {v(ACC+r)}, {v(ACC+r)}, {v(ACC+16+r)}\nv_add_f32 {v(ACC+32+r)}, {v(ACC+32+r)}, {v(ACC+48+r)}")
        for i in range(4):
            r = 4 * q + i
            k(f"v_add_f32 {v(ACC+r)}, {v(ACC+r)}, {v(ACC+32+r)}")
            k(f"buffer_store_dword {v(ACC+r)}, {v(TM)}, {s(rOUT,4)}, s{t2} offen offset:{(r&1)*2048}", "out")
            if r & 1:
                k(f"s_add_u32 s{t2}, s{t2}, 4096")
    k(f"s_cmp_lg_u32 s{sC}, 15\ns_cbranch_scc1 L_fin\ns_or_b32 s3, s{sG}, s{sW}\ns_cmp_lg_u32 s3, 0\ns_cbranch_scc1 L_fin")
    k(f"v_mov_b32 {v(TM+1)}, s{sTAG}\nv_mov_b32 {v(TM+2)}, {EPOCH}\ns_mov_b64 exec, 1")
    k(f"buffer_store_dword {v(TM+1)}, {v(TM+2)}, {s(rWS,4)}, 0 offen sc1\ns_mov_b64 exec, -1")
    k("L_fin:")
    if diag:
        k("s_waitcnt vmcnt(0)")
        stamp("end")
        k(f"s_lshl_b32 s3, s2, 2\ns_add_u32 s3, s3, s{sW}\ns_lshl_b32 s3, s3, 8\ns_add_u32 s3, s3, {DIAG}\nv_lshlrev_b32 {v(TM)}, 2, {v(L)}")
        k(f"buffer_store_dword {v(DG)}, {v(TM)}, {s(rWS,4)}, s3 offen")
    k("L_end:")
    k("s_endpgm")

    body, nops = pad(k.lines)
    hdr = open("parallel_sum__ssm_conv_s5__dense_activation_mish__prompt.s.ref").read().split("; Override")[0]
    text = hdr + "; @launch grid=(256,1,1) block=(256,1,1) lds=163840\n"
    text += f'.amdgcn_target "amdgcn-amd-amdhsa--gfx950"\n.text\n.globl {KNAME}\n.p2align 8\n.type {KNAME},@function\n{KNAME}:\n'
    text += "\n".join(body) + "\n"
    text += f""".section .rodata,"a"
.p2align 6
.amdhsa_kernel {KNAME}
  .amdhsa_next_free_vgpr 512
  .amdhsa_next_free_sgpr 102
  .amdhsa_accum_offset 256
  .amdhsa_group_segment_fixed_size 0
  .amdhsa_kernarg_size 128
  .amdhsa_user_sgpr_count 2
  .amdhsa_user_sgpr_kernarg_segment_ptr 1
  .amdhsa_system_sgpr_workgroup_id_x 1
.end_amdhsa_kernel
"""
    return text, dict(nops=nops, vgprs=V.next, stamps=stamps, lines=len(body))


if __name__ == "__main__":
    import json
    kw = json.loads(sys.argv[2]) if len(sys.argv) > 2 else {}
    text, info = gen(**kw)
    open(sys.argv[1], "w").write(text)
    print(info)
```

```python
import sys
from emit import K, Alloc, rng, pad

KNAME = "parallel_sum__ssm_conv_s5__dense_activation_mish__prompt_kernel"
EPOCH, STATS, XID, CS, EG, FLA, FLH, AF = 0, 0x10000, 0x20000, 0x30000, 0x40000, 0x80000, 0xC0000, 0x100000
DIAG = 200 << 20
MT = 176 * 1024
SCR = 65536
SCR_EX, SCR_CX, SCR_HT = SCR + 1024, SCR + 4096, SCR + 8192
RING = (0, 32768, 98304)
LOG2E = 0x3fb8aa3b
SPIN = 1 << 16


def gen(mode="global", mapping="rows", diag=False, rot="cg", fix_after=1, touch=False, code_prefetch=False, amplify=None, amp_wg=0):
    k = K()
    V = Alloc("v", 1, 256)
    v = lambda r, n=1: rng("v", r, n)
    a = lambda r, n=1: rng("a", r, n)
    s = lambda r, n=1: rng("s", r, n)
    st = "sc1" if mode == "global" else ""

    sC, sG, sW, sROT, sM, sN, sTAG, sLOC = 4, 5, 6, 7, 8, 9, 10, 11
    t0, t1, t2, t3 = 12, 13, 14, 15
    pX, pLR, pLI, pBR, pBI, pCR, pCI, pDT, pDS, pW1, pB1, pW2, pOUT, pWS = 16, 18, 20, 22, 24, 26, 28, 30, 32, 36, 38, 40, 42, 46
    rX, rW1, rBR, rBI, rW2, rCR, rCI, rWS, rOUT, rE = 48, 52, 56, 60, 64, 68, 72, 76, 80, 84
    sXB, sWB, sA0, sA1, sB2, sCNT, sAF = 88, 89, 90, 91, 92, 93, 94
    sSV = 96
    sHI = 98
    sXCC = 100
    sD = 34

    L, LR, HF, L16 = V("l"), V("lr"), V("hf"), V("l16")
    XD, WD, BD = V("xd", 4), V("wd", 4), V("bd")
    XR, WR, BR = V("xr", 4), V("wr", 4), V("br", 8)
    W2D, CD, W2R, CR = V("w2d", 4), V("cd", 4), V("w2r", 4), V("cr", 8)
    ACC, SS, T = V("acc", 64, 4), V("ss", 32, 4), V("t", 32, 4)
    LAR, LAI, NLAI, L16R, L16I, NL16I, PWR, PWI, L2R, L2I, SCRR, SCI, CFR, NCFR, NCFI = [V(x) for x in
        "lar lai nlai l16r l16i nl16i pwr pwi l2r l2i scr sci cfr ncfr ncfi".split()]
    C1, RS, M2RS, MF, DSK = V("c1"), V("rs"), V("m2rs"), V("mf"), V("dsk")
    XA, XB, WE = V("xa", 4, 4), V("xb", 4, 4), V("we", 12, 4)
    BI = V("bias", 2)
    PR, PI = V("pr"), V("pi")
    TAU = V("tau")
    TM = V("tmp", 27, 4)
    DG = V("diag")
    FR = 128

    stamps = []
    def stamp(name):
        if diag:
            stamps.append(name)
            k(f"s_memrealtime s[{sD}:{sD+1}]\ns_waitcnt lgkmcnt(0)")
            k.lg_done = len(k.lg)
            k(f"v_writelane_b32 {v(DG)}, s{sD}, {len(stamps)-1}")

    def srd(d, p, nbytes):
        k(f"s_mov_b32 s{d}, s{p}\ns_mov_b32 s{d+1}, s{p+1}\ns_mov_b32 s{d+2}, {nbytes:#x}\ns_mov_b32 s{d+3}, 0x20000")

    def mfma(d, x, y, c=None):
        k(f"v_mfma_f32_32x32x16_bf16 {v(d,16)}, {x}, {y}, {v(d,16) if c is None else c}")

    def untracked(text):
        n = len(k.vm)
        k(text)
        del k.vm[n:]

    k("s_cmp_ge_u32 s2, 256\ns_cbranch_scc1 L_end")
    k("s_load_dwordx16 s[16:31], s[0:1], 0\ns_load_dwordx16 s[32:47], s[0:1], 64")
    if diag:
        k("s_memrealtime s[12:13]")
    k(f"v_and_b32 {v(L)}, 63, v0\nv_lshrrev_b32 {v(TM)}, 6, v0\nv_and_b32 {v(LR)}, 31, v0")
    k(f"v_readfirstlane_b32 s{sW}, {v(TM)}")
    k(f"v_lshrrev_b32 {v(HF)}, 5, {v(L)}\nv_lshlrev_b32 {v(L16)}, 4, {v(L)}")
    k("s_and_b32 s14, s2, 7\ns_lshr_b32 s15, s2, 3")
    if mapping == "rows":
        k(f"s_and_b32 s3, s15, 1\ns_lshl_b32 s{sC}, s14, 1\ns_or_b32 s{sC}, s{sC}, s3\ns_lshr_b32 s{sG}, s15, 1")
    elif mapping == "x8g4":
        k(f"s_lshr_b32 s3, s14, 2\ns_lshl_b32 s3, s3, 3\ns_and_b32 s{sC}, s15, 7\ns_or_b32 s{sC}, s{sC}, s3")
        k(f"s_and_b32 s3, s14, 3\ns_lshl_b32 s3, s3, 2\ns_lshr_b32 s{sG}, s15, 3\ns_or_b32 s{sG}, s{sG}, s3")
    elif mapping == "x4g8":
        k(f"s_lshr_b32 s3, s14, 1\ns_lshl_b32 s3, s3, 2\ns_and_b32 s{sC}, s15, 3\ns_or_b32 s{sC}, s{sC}, s3")
        k(f"s_and_b32 s3, s14, 1\ns_lshl_b32 s3, s3, 3\ns_lshr_b32 s{sG}, s15, 2\ns_or_b32 s{sG}, s{sG}, s3")
    k({"cg": f"s_add_u32 s{sROT}, s{sC}, s{sG}\ns_and_b32 s{sROT}, s{sROT}, 7", "none": f"s_mov_b32 s{sROT}, 0",
       "c": f"s_and_b32 s{sROT}, s{sC}, 7", "g": f"s_and_b32 s{sROT}, s{sG}, 7"}[rot])
    k(f"s_lshr_b32 s3, s{sG}, 3\ns_lshl_b32 s{sM}, s{sC}, 1\ns_or_b32 s{sM}, s{sM}, s3\ns_and_b32 s{sN}, s{sG}, 7")
    k(f"s_mov_b32 s{sHI}, 0\ns_mov_b32 s{sHI+1}, -1")
    k(f"s_getreg_b32 s{sXCC}, hwreg(HW_REG_XCC_ID)\ns_and_b32 s{sXCC}, s{sXCC}, 15")
    A_, B_, C_, D_ = TM, TM + 1, TM + 2, TM + 3
    k(f"v_lshrrev_b32 {v(A_)}, 3, {v(L)}")
    k(f"v_and_b32 {v(B_)}, 7, {v(L)}\nv_lshrrev_b32 {v(C_)}, 4, {v(L)}")
    k(f"v_xor_b32 {v(B_)}, {v(B_)}, {v(C_)}\nv_lshlrev_b32 {v(B_)}, 4, {v(B_)}")
    k(f"v_and_b32 {v(C_)}, 3, {v(A_)}\nv_lshl_add_u32 {v(C_)}, {v(HF)}, 4, {v(C_)}")
    k(f"v_lshl_add_u32 {v(XD)}, {v(C_)}, 10, {v(B_)}")
    k(f"v_xor_b32 {v(XD+1)}, 64, {v(XD)}\nv_add_u32 {v(XD+2)}, 6144, {v(XD)}")
    k(f"v_add_u32 {v(XD+3)}, 9216, {v(XD+1)}\nv_add_u32 {v(XD+1)}, 3072, {v(XD+1)}")
    k(f"v_lshl_add_u32 {v(CD)}, {v(A_)}, 10, {v(B_)}")
    k(f"v_lshrrev_b32 {v(C_)}, 4, {v(L)}\nv_and_b32 {v(D_)}, 15, {v(L)}\nv_lshlrev_b32 {v(B_)}, 2, {v(C_)}")
    k(f"v_xor_b32 {v(D_)}, {v(D_)}, {v(B_)}\nv_lshlrev_b32 {v(D_)}, 4, {v(D_)}")
    k(f"v_mul_u32_u24 {v(C_)}, 3584, {v(C_)}\nv_add_u32 {v(WD)}, {v(C_)}, {v(D_)}")
    for i in (1, 2, 3):
        k(f"v_add_u32 {v(WD+i)}, {i*13312}, {v(WD)}")
    k(f"v_lshlrev_b32 {v(A_)}, 10, {v(HF)}\nv_lshl_add_u32 {v(A_)}, {v(LR)}, 4, {v(A_)}")
    k(f"s_lshl_b32 s{sXB}, s{sC}, 17\ns_lshl_b32 s3, s{sW}, 15\ns_add_u32 s{sXB}, s{sXB}, s3")
    k(f"s_mul_i32 s{sWB}, s{sW}, {16*3584}\ns_lshl_b32 s3, s{sG}, 8\ns_add_u32 s{sWB}, s{sWB}, s3")
    k(f"s_lshl_b32 s3, s{sC}, 4\ns_add_u32 s3, s3, s{sG}\ns_lshl_b32 s3, s3, 2\ns_add_u32 s3, s3, s{sW}\ns_lshl_b32 s{t2}, s3, 11")
    k(f"s_lshl_b32 s3, s{sG}, 5\nv_add_lshl_u32 {v(B_)}, {v(LR)}, s3, 1")
    k(f"s_lshl_b32 s3, s{sG}, 7\nv_add_lshl_u32 {v(C_)}, {v(L)}, s3, 1\nv_min_u32 {v(C_)}, 3454, {v(C_)}")
    k(f"s_lshl_b32 s3, s{sN}, 1\ns_and_b32 s{t3}, s{sW}, 1\ns_or_b32 s3, s3, s{t3}\ns_lshl_b32 s3, s3, 5\nv_add_lshl_u32 {v(D_)}, {v(LR)}, s3, 1")
    k("s_waitcnt lgkmcnt(0)")
    if diag:
        k(f"v_writelane_b32 {v(DG)}, s12, 0"); stamps.append("start")
    k(f"s_load_dword s{sTAG}, s[{pWS}:{pWS+1}], {EPOCH}")
    srd(rX, pX, 2 << 20)
    SR = TM + 4
    k(f"buffer_load_dwordx4 {v(SR,4)}, {v(A_)}, {s(rX,4)}, s{t2} offen", "srow")
    k(f"buffer_load_dwordx4 {v(SR+4,4)}, {v(A_)}, {s(rX,4)}, s{t2} offen offset:512", "srow")
    PL = TM + 12
    k(f"global_load_ushort {v(PL)}, {v(B_)}, {s(pLR,2)}\nglobal_load_ushort {v(PL+1)}, {v(B_)}, {s(pLI,2)}\nglobal_load_ushort {v(PL+2)}, {v(B_)}, {s(pDT,2)}", "par")
    k(f"global_load_ushort {v(BI)}, {v(C_)}, {s(pB1,2)}\nglobal_load_ushort {v(BI+1)}, {v(C_)}, {s(pB1,2)} offset:128", "par")
    k(f"global_load_ushort {v(DSK)}, {v(D_)}, {s(pDS,2)}", "par")
    srd(rW1, pW1, 512 * 3584)

    def x_dma(stage, base, tag):
        k(f"s_xor_b32 s{t0}, s{sROT}, {stage}\ns_lshl_b32 s{t0}, s{t0}, 7\ns_add_u32 s{t0}, s{t0}, s{sXB}")
        k(f"s_lshl_b32 s3, s{sW}, 12\ns_add_u32 m0, s3, {base}")
        return [(f"buffer_load_dwordx4 {v(XD+i)}, {s(rX,4)}, s{t0} offen offset:{i*1024} lds", tag) for i in range(4)]

    def stage_ops(stage):
        slot = (stage % 5) * 32768
        tag = f"st{stage}"
        ops = [(f"s_xor_b32 s{t0}, s{sROT}, {stage}\ns_mul_i32 s{t1}, s{t0}, {64*3584}\ns_lshl_b32 s{t0}, s{t0}, 7\n"
                f"s_add_u32 s{t0}, s{t0}, s{sXB}\ns_add_u32 s{t1}, s{t1}, s{sWB}\ns_lshl_b32 s3, s{sW}, 12\ns_add_u32 m0, s3, {slot}", None)]
        ops += [(f"buffer_load_dwordx4 {v(XD+i)}, {s(rX,4)}, s{t0} offen offset:{i*1024} lds", tag) for i in range(4)]
        ops += [(f"s_add_u32 m0, m0, 16384", None)]
        ops += [(f"buffer_load_dwordx4 {v(WD+i)}, {s(rW1,4)}, s{t1} offen offset:{i*1024} lds", tag) for i in range(4)]
        return ops

    def bmat_ops(comp):
        tag = f"bm{comp}"
        r = rBI if comp else rBR
        ops = [(f"s_lshl_b32 s{t0}, s{sG}, 15\ns_lshl_b32 s3, s{sW}, 13\ns_add_u32 s{t0}, s{t0}, s3\ns_add_u32 m0, s3, {(3+comp)*32768}", None)]
        for i in range(8):
            if i == 4:
                ops.append((f"s_add_u32 m0, m0, 4096\ns_add_u32 s{t0}, s{t0}, 4096", None))
            tv = TM + 24 + (i & 1)
            ops.append((f"v_xor_b32 {v(tv)}, {i << 4}, {v(BD)}\nbuffer_load_dwordx4 {v(tv)}, {s(r,4)}, s{t0} offen offset:{(i&3)*1024} lds", tag))
        return ops

    def ring_ops(b):
        tag = f"blk{b}"
        if b < 7:
            head = f"s_add_u32 s{t0}, s{sB2}, {b*65536}"
            r, D = rW2, W2D
        else:
            head = f"s_lshl_b32 s{t0}, s{sN}, 16\ns_lshl_b32 s3, s{sW}, 8\ns_add_u32 s{t0}, s{t0}, s3"
            if (b - 7) & 1:
                head += f"\ns_add_u32 s{t0}, s{t0}, 128"
            r, D = (rCI if b >= 9 else rCR), CD
        ops = [(head + f"\ns_lshl_b32 s3, s{sW}, 13\ns_add_u32 m0, s3, {RING[b % 3]}", None)]
        for i in range(8):
            if i == 4:
                ops.append((f"s_add_u32 m0, m0, 4096\ns_add_u32 s{t0}, s{t0}, 32768", None))
            ops.append((f"buffer_load_dwordx4 {v(D+(i&3))}, {s(r,4)}, s{t0} offen offset:{(i&3)*1024} lds", tag))
        return ops

    def run(ops):
        for text, tag in ops:
            k(text, tag)

    k(f"s_cmp_ge_u32 s{sG}, 14\ns_cbranch_scc1 L_light_issue")
    snap0 = k.snapshot()
    for stg in range(5):
        run(stage_ops(stg))
    k("s_branch L_setup")
    snap_full = k.snapshot()
    k("L_light_issue:")
    k.restore(snap0)
    k(f"s_lshl_b32 s{sCNT}, s{sC}, 1\ns_add_u32 s{sCNT}, s{sCNT}, s{sG}\ns_sub_u32 s{sCNT}, s{sCNT}, 14")
    k(f"s_min_u32 s{t0}, s{sCNT}, 27\ns_lshl_b32 s{t0}, s{t0}, 7\ns_mul_i32 s3, s{sW}, {128*3584}\ns_add_u32 s{t0}, s{t0}, s3")
    k(f"v_lshrrev_b32 {v(TM+16)}, 3, {v(L)}\nv_mul_u32_u24 {v(TM+16)}, 3584, {v(TM+16)}\nv_and_b32 {v(TM+17)}, 7, {v(L)}\nv_lshl_add_u32 {v(TM+16)}, {v(TM+17)}, 4, {v(TM+16)}")
    for i in range(16):
        k(f"buffer_load_dwordx4 {v(ACC+4*i,4)}, {v(TM+16)}, {s(rW1,4)}, s{t0} offen", f"lw{i}")
        k(f"s_add_u32 s{t0}, s{t0}, {8*3584}")
    k(f"s_cmp_lt_u32 s{sCNT}, 16\ns_cselect_b32 s{rE}, s{pBR}, s{pBI}\ns_cselect_b32 s{rE+1}, s{pBR+1}, s{pBI+1}\ns_mov_b32 s{rE+2}, 0x80000\ns_mov_b32 s{rE+3}, 0x20000")
    k(f"s_and_b32 s{t0}, s{sCNT}, 15\ns_lshl_b32 s{t0}, s{t0}, 15\ns_lshl_b32 s3, s{sW}, 13\ns_add_u32 s{t0}, s{t0}, s3")
    for i in range(8):
        if i == 4:
            k(f"s_add_u32 s{t0}, s{t0}, 4096")
        k(f"buffer_load_dwordx4 {v(SS+4*i,4)}, {v(L16)}, {s(rE,4)}, s{t0} offen offset:{(i&3)*1024}", "lb")
    for stg in range(4):
        run(x_dma(stg, stg * 16384, f"lx{stg}"))
    snap_light = k.snapshot()
    assert len(snap_light[0]) == len(snap_full[0])
    k("L_setup:")
    k.restore(snap_full)
    srd(rWS, pWS, 1 << 28)
    srd(rBR, pBR, 1 << 19); srd(rBI, pBI, 1 << 19); srd(rW2, pW2, 1792 * 1024)
    srd(rCR, pCR, 1 << 19); srd(rCI, pCI, 1 << 19); srd(rOUT, pOUT, 4 << 20)
    k(f"s_lshl_b32 s{t0}, s{sW}, 12\ns_lshl_b32 s{t1}, s{sW}, 13")
    k(f"v_bfe_u32 {v(A_)}, {v(LR)}, 1, 3\nv_xor_b32 {v(A_)}, {v(A_)}, {v(HF)}\nv_lshlrev_b32 {v(A_)}, 4, {v(A_)}\nv_lshl_add_u32 {v(A_)}, {v(LR)}, 7, {v(A_)}")
    for j in range(4):
        k(f"v_xor_b32 {v(B_)}, {j << 5}, {v(A_)}\nv_add_u32 {v(XR+j)}, s{t0}, {v(B_)}\nv_add_u32 {v(CR+j)}, s{t1}, {v(B_)}")
    k(f"s_and_b32 s3, s{sW}, 1\ns_lshl_b32 s3, s3, 12")
    for j in range(4):
        k(f"v_xor_b32 {v(CR+j)}, s3, {v(CR+j)}\nv_add_u32 {v(CR+4+j)}, {RING[2]}, {v(CR+j)}")
    k(f"v_bfe_u32 {v(A_)}, {v(L)}, 2, 2\nv_and_b32 {v(B_)}, 3, {v(L)}\nv_lshlrev_b32 {v(B_)}, 3, {v(B_)}")
    k(f"v_bfe_u32 {v(C_)}, {v(L)}, 4, 1\nv_lshl_add_u32 {v(B_)}, {v(C_)}, 5, {v(B_)}")
    k(f"v_lshl_add_u32 {v(C_)}, {v(HF)}, 3, {v(A_)}\nv_lshl_add_u32 {v(C_)}, {v(C_)}, 8, {v(B_)}\nv_lshl_add_u32 {v(C_)}, {v(A_)}, 6, {v(C_)}")
    k(f"v_add_u32 {v(WR)}, 16384, {v(C_)}")
    for t in (1, 2, 3):
        k(f"v_xor_b32 {v(WR+t)}, {t << 6}, {v(WR)}")
    k(f"v_lshl_add_u32 {v(C_)}, {v(HF)}, 2, {v(A_)}\nv_lshl_add_u32 {v(C_)}, {v(C_)}, 7, {v(B_)}\nv_lshrrev_b32 {v(A_)}, 1, {v(A_)}")
    k(f"s_and_b32 s3, s{sW}, 1\nv_xor_b32 {v(A_)}, s3, {v(A_)}\nv_lshl_add_u32 {v(C_)}, {v(A_)}, 6, {v(C_)}\nv_add_u32 {v(W2R)}, s{t1}, {v(C_)}")
    k(f"v_xor_b32 {v(W2R+1)}, 64, {v(W2R)}\nv_add_u32 {v(W2R+2)}, {RING[2]}, {v(W2R)}\nv_add_u32 {v(W2R+3)}, {RING[2]}, {v(W2R+1)}")
    k(f"v_and_b32 {v(A_)}, 15, {v(L)}\nv_xor_b32 {v(A_)}, {v(A_)}, {v(HF)}\nv_lshlrev_b32 {v(A_)}, 4, {v(A_)}\nv_lshl_add_u32 {v(A_)}, {v(LR)}, 10, {v(A_)}")
    k(f"v_add_u32 {v(BR)}, 98304, {v(A_)}")
    for i in range(1, 8):
        k(f"v_xor_b32 {v(BR+i)}, {i << 5}, {v(BR)}")
    k(f"s_and_b32 s3, s{sW}, 1\ns_xor_b32 s3, s3, s{sROT}\ns_lshl_b32 s3, s3, 7\nv_xor_b32 {v(BD)}, s3, {v(L16)}")
    k(f"v_lshrrev_b32 {v(A_)}, 3, {v(L)}\nv_and_b32 {v(B_)}, 7, {v(L)}\nv_bfe_u32 {v(C_)}, {v(L)}, 4, 1\nv_lshlrev_b32 {v(C_)}, 2, {v(C_)}")
    k(f"v_xor_b32 {v(B_)}, {v(B_)}, {v(C_)}\nv_lshlrev_b32 {v(B_)}, 4, {v(B_)}\nv_lshl_add_u32 {v(W2D)}, {v(A_)}, 10, {v(B_)}")
    for i in (1, 2, 3):
        k(f"v_add_u32 {v(W2D+i)}, {i*7168}, {v(W2D)}")
    k(f"v_xor_b32 {v(CD+1)}, 64, {v(CD)}\nv_add_u32 {v(CD+2)}, {2*7168}, {v(CD)}\nv_add_u32 {v(CD+3)}, {3*7168}, {v(CD+1)}\nv_add_u32 {v(CD+1)}, 7168, {v(CD+1)}")
    k(f"s_mul_i32 s{sB2}, s{sW}, {448*1024}\ns_lshl_b32 s3, s{sN}, 7\ns_add_u32 s{sB2}, s{sB2}, s3")
    k(f"s_lshl_b32 s3, s{sC}, 2\ns_add_u32 s3, s3, s{sW}\ns_mul_i32 s{sAF}, s3, {MT}\ns_add_u32 s{sAF}, s{sAF}, {AF}")
    k(f"v_bfe_u32 {v(A_)}, {v(LR)}, 2, 1\nv_lshrrev_b32 {v(B_)}, 3, {v(LR)}\nv_and_b32 {v(C_)}, 3, {v(LR)}")
    k(f"v_lshl_add_u32 {v(C_)}, {v(B_)}, 2, {v(C_)}\nv_lshl_add_u32 {v(TAU)}, {v(A_)}, 4, {v(C_)}")
    S1, S2, U1, U2 = TM, TM + 1, TM + 2, TM + 3
    k(f"v_mov_b32 {v(S1)}, 0\nv_mov_b32 {v(S2)}, 0\ns_mov_b32 s{t0}, 0x3f803f80")
    k.wait(vm="srow")
    for i in range(8):
        k(f"v_dot2c_f32_bf16 {v(S1)}, s{t0}, {v(SR+i)}\nv_dot2c_f32_bf16 {v(S2)}, {v(SR+i)}, {v(SR+i)}")
    for r in (8, 4, 2, 1):
        k(f"v_add_f32_dpp {v(S1)}, {v(S1)}, {v(S1)} row_ror:{r} row_mask:0xf bank_mask:0xf")
        k(f"v_add_f32_dpp {v(S2)}, {v(S2)}, {v(S2)} row_ror:{r} row_mask:0xf bank_mask:0xf")
    k(f"v_mov_b32 {v(U1)}, {v(S1)}\nv_mov_b32 {v(U2)}, {v(S2)}")
    k(f"v_permlane16_swap_b32 {v(S1)}, {v(U1)}\nv_permlane16_swap_b32 {v(S2)}, {v(U2)}")
    k(f"v_add_f32 {v(S1)}, {v(S1)}, {v(U1)}\nv_add_f32 {v(S2)}, {v(S2)}, {v(U2)}")
    k(f"v_mul_f32 {v(S1)}, 0x3b000000, {v(S1)}\nv_mul_f32 {v(S2)}, 0x3b000000, {v(S2)}")
    k(f"v_fma_f32 {v(S2)}, -{v(S1)}, {v(S1)}, {v(S2)}\nv_max_f32 {v(S2)}, 0, {v(S2)}")
    k(f"v_cvt_pk_bf16_f32 {v(S2)}, {v(S2)}, {v(S2)}\nv_and_b32 {v(S2)}, 0xffff0000, {v(S2)}\nv_add_f32 {v(S2)}, 0x3727c5ac, {v(S2)}")
    k(f"v_cvt_pk_bf16_f32 {v(S2)}, {v(S2)}, {v(S2)}\nv_and_b32 {v(S2)}, 0xffff0000, {v(S2)}\nv_sqrt_f32 {v(S2)}, {v(S2)}")
    k(f"v_cvt_pk_bf16_f32 {v(SR)}, {v(S1)}, {v(S2)}")
    k("s_waitcnt lgkmcnt(0)")
    k(f"s_mul_i32 s{sTAG}, s{sTAG}, 0x9e3779b1\ns_add_u32 s{sTAG}, s{sTAG}, 0x7f4a7c15")
    k(f"v_mov_b32 {v(SR+1)}, s{sTAG}\nv_mov_b32 {v(SR+2)}, s{sXCC}\nv_mov_b32 {v(SR+3)}, s{sTAG}\nv_lshlrev_b32 {v(U1)}, 3, {v(HF)}\nv_mov_b32 {v(U2)}, 0")
    k(f"s_lshr_b32 s{t0}, s{t2}, 7\ns_add_u32 s{t0}, s{t0}, {STATS}")
    k(f"s_lshl_b32 s{t1}, s{sC}, 4\ns_add_u32 s{t1}, s{t1}, s{sG}\ns_lshl_b32 s{t1}, s{t1}, 3\ns_add_u32 s{t1}, s{t1}, {XID}")
    k("s_mov_b32 exec_lo, 1\ns_mov_b32 exec_hi, 1")
    k(f"buffer_store_dwordx2 {v(SR,2)}, {v(U1)}, {s(rWS,4)}, s{t0} offen sc1", "pub0")
    k(f"buffer_store_dwordx2 {v(SR+2,2)}, {v(U2)}, {s(rWS,4)}, s{t1} offen sc1", "pub0")
    k("s_mov_b64 exec, -1")
    stamp("stats")
    k.wait(vm="par")
    LRE, LIM, DT, A2, BRV = PL, PL + 1, PL + 2, PL + 3, PL + 4
    X0, X1, X2, X3 = TM, TM + 1, TM + 2, TM + 3
    k(f"v_lshlrev_b32 {v(LRE)}, 16, {v(LRE)}\nv_lshlrev_b32 {v(LIM)}, 16, {v(LIM)}\nv_lshlrev_b32 {v(DT)}, 16, {v(DT)}\nv_lshlrev_b32 {v(DSK)}, 16, {v(DSK)}")
    k(f"v_mul_f32 {v(DT)}, {LOG2E:#x}, {v(DT)}\nv_exp_f32 {v(DT)}, {v(DT)}\nv_cvt_pk_bf16_f32 {v(DT)}, {v(DT)}, {v(DT)}\nv_and_b32 {v(DT)}, 0xffff0000, {v(DT)}")
    k(f"v_mul_f32 {v(A2)}, {v(DT)}, {v(LRE)}\nv_mul_f32 {v(BRV)}, {v(DT)}, {v(LIM)}\nv_mul_f32 {v(A2)}, {LOG2E:#x}, {v(A2)}\nv_mul_f32 {v(BRV)}, 0.15915494, {v(BRV)}")

    def cpow(n, dr, di):
        k(f"v_mul_f32 {v(X0)}, {n}, {v(A2)}\nv_mul_f32 {v(X1)}, {n}, {v(BRV)}\nv_exp_f32 {v(X0)}, {v(X0)}\nv_fract_f32 {v(X1)}, {v(X1)}")
        k(f"v_cos_f32 {v(dr)}, {v(X1)}\nv_sin_f32 {v(di)}, {v(X1)}\nv_mul_f32 {v(dr)}, {v(dr)}, {v(X0)}\nv_mul_f32 {v(di)}, {v(di)}, {v(X0)}")

    cpow("1.0", LAR, LAI); cpow("0x41800000", L16R, L16I); cpow("0x43800000", L2R, L2I)
    k(f"s_lshl_b32 s3, s{sW}, 1\nv_add_u32 {v(X2)}, s3, {v(HF)}\nv_lshlrev_b32 {v(X2)}, 4, {v(X2)}\nv_cvt_f32_u32 {v(X2)}, {v(X2)}")
    cpow(v(X2), PWR, PWI)
    k(f"s_lshl_b32 s3, s{sW}, 2\nv_add_u32 {v(X2)}, s3, {v(HF)}\nv_lshlrev_b32 {v(X2)}, 7, {v(X2)}\nv_cvt_f32_u32 {v(X2)}, {v(X2)}")
    cpow(v(X2), SCRR, SCI)
    k(f"v_sub_f32 {v(NLAI)}, 0, {v(LAI)}\nv_sub_f32 {v(NL16I)}, 0, {v(L16I)}")
    k(f"v_mul_f32 {v(X0)}, {v(LRE)}, {v(LRE)}\nv_fmac_f32 {v(X0)}, {v(LIM)}, {v(LIM)}\nv_rcp_f32 {v(X0)}, {v(X0)}\nv_subrev_f32 {v(X1)}, 1.0, {v(LAR)}")
    k(f"v_mul_f32 {v(CFR)}, {v(X1)}, {v(LRE)}\nv_mul_f32 {v(NCFI)}, {v(X1)}, {v(LIM)}\nv_add_f32 {v(X0)}, {v(X0)}, {v(X0)}")
    k(f"v_fmac_f32 {v(CFR)}, {v(LAI)}, {v(LIM)}\nv_fmac_f32 {v(NCFI)}, {v(NLAI)}, {v(LRE)}")
    k(f"v_mul_f32 {v(CFR)}, {v(CFR)}, {v(X0)}\nv_mul_f32 {v(NCFI)}, {v(NCFI)}, {v(X0)}\nv_sub_f32 {v(NCFR)}, 0, {v(CFR)}")
    k(f"v_mul_f32 {v(T)}, {v(CFR)}, {v(LAR)}\nv_mul_f32 {v(T+16)}, {v(CFR)}, {v(LAI)}\nv_fmac_f32 {v(T)}, {v(NCFI)}, {v(LAI)}\nv_fma_f32 {v(T+16)}, -{v(NCFI)}, {v(LAR)}, {v(T+16)}")
    for i in range(1, 16):
        k(f"v_mul_f32 {v(T+i)}, {v(T+i-1)}, {v(LAR)}\nv_mul_f32 {v(T+16+i)}, {v(T+15+i)}, {v(LAR)}")
        k(f"v_fmac_f32 {v(T+i)}, {v(T+15+i)}, {v(NLAI)}\nv_fmac_f32 {v(T+16+i)}, {v(T+i-1)}, {v(LAI)}")
    for e in (XA + 2, XA + 3, XB + 2, XB + 3, WE + 2, WE + 3, WE + 6, WE + 7, WE + 10, WE + 11):
        k(f"v_mov_b32 {v(e)}, 0")
    stamp("setup")

    GS, GX = TM + 16, TM + 18
    GA = TM + 20

    def gran_loads(full):
        ops = [(f"s_lshr_b32 s{t2}, s{sXB}, 7\ns_add_u32 s{t2}, s{t2}, {STATS}\nv_lshlrev_b32 {v(GA)}, 3, {v(TAU)}", None),
               (f"buffer_load_dwordx2 {v(GS,2)}, {v(GA)}, {s(rWS,4)}, s{t2} offen sc1", "gran"),
               (f"s_lshl_b32 s{t2}, s{sC}, 7\ns_add_u32 s{t2}, s{t2}, {XID}\nv_and_b32 {v(GA)}, 15, {v(L)}\nv_lshlrev_b32 {v(GA)}, 3, {v(GA)}", None),
               (f"buffer_load_dwordx2 {v(GX,2)}, {v(GA)}, {s(rWS,4)}, s{t2} offen sc1", "gran"),
               (f"s_lshl_b32 s{t2}, s{sG}, 8\ns_add_u32 s{t2}, s{t2}, {CS + 1792*8}\nv_lshlrev_b32 {v(GA)}, 12, {v(HF)}\nv_lshl_add_u32 {v(GA)}, {v(LR)}, 3, {v(GA)}", None),
               (f"buffer_load_dwordx2 {v(WE+8,2)}, {v(GA)}, {s(rWS,4)}, s{t2} offen sc1", "gran")]
        if full:
            ops += [(f"s_lshl_b32 s{t2}, s{sG}, 10\ns_add_u32 s{t2}, s{t2}, {CS}\nv_lshlrev_b32 {v(GA)}, 3, {v(L)}", None),
                    (f"buffer_load_dwordx2 {v(WE,2)}, {v(GA)}, {s(rWS,4)}, s{t2} offen sc1", "gran"),
                    (f"buffer_load_dwordx2 {v(WE+4,2)}, {v(GA)}, {s(rWS,4)}, s{t2} offen offset:512 sc1", "gran")]
        return ops

    def gran_check(full):
        again, ok = k.label("gran_again"), k.label("gran_ok")
        k.wait(vm="gran")
        k(f"s_mov_b32 s{sCNT}, 0")
        k(again + ":")
        tags = [GS + 1, GX + 1, WE + 9] + ([WE + 1, WE + 5] if full else [])
        k(f"v_xor_b32 {v(GA)}, s{sTAG}, {v(tags[0])}")
        for t in tags[1:]:
            k(f"v_xor_b32 {v(GA+1)}, s{sTAG}, {v(t)}\nv_or_b32 {v(GA)}, {v(GA)}, {v(GA+1)}")
        k(f"v_cmp_ne_u32 vcc, 0, {v(GA)}\ns_add_u32 s{sCNT}, s{sCNT}, 1\ns_nop 1\ns_cbranch_vccz {ok}")
        k(f"s_cmp_gt_u32 s{sCNT}, {SPIN}\ns_cbranch_scc1 {ok}")
        for text, _ in gran_loads(full):
            untracked(text)
        k(f"s_waitcnt vmcnt(0)\ns_branch {again}")
        k(ok + ":")
        k(f"v_cmp_ne_u32 vcc, s{sXCC}, {v(GX)}")
        k(f"v_and_b32 {v(GA)}, 0xffff, {v(GS)}\nv_and_b32 {v(GA+1)}, 0xffff0000, {v(GS)}\nv_lshlrev_b32 {v(MF)}, 16, {v(GS)}")
        k(f"s_cmp_eq_u64 vcc, 0\ns_cselect_b32 s{sLOC}, 1, 0")
        k(f"v_rcp_f32 {v(RS)}, {v(GA+1)}\nv_xor_b32 {v(GA)}, 0x8000, {v(GA)}\nv_lshrrev_b32 {v(GA+1)}, 16, {v(GS)}\nv_lshl_or_b32 {v(GA)}, {v(GA)}, 16, {v(GA)}")
        k(f"v_cndmask_b32 {v(XA)}, {v(GA)}, 0, {s(sHI,2)}\nv_cndmask_b32 {v(XA+1)}, {v(GA+1)}, 0, {s(sHI,2)}")
        k(f"v_cndmask_b32 {v(XB)}, 0, {v(GA)}, {s(sHI,2)}\nv_cndmask_b32 {v(XB+1)}, 0, {v(GA+1)}, {s(sHI,2)}")
        k(f"v_mov_b32 {v(WE+9)}, 0\nv_mul_f32 {v(C1)}, {LOG2E:#x}, {v(RS)}\nv_mul_f32 {v(M2RS)}, -2.0, {v(RS)}")
        if full:
            k(f"v_mov_b32 {v(WE+1)}, {v(BI)}\nv_mov_b32 {v(WE+5)}, {v(BI+1)}")

    def after_b0():
        k(f"s_lshl_b32 s3, s{sW}, 7\ns_add_u32 s3, s3, {SCR}\nv_lshlrev_b32 {v(GA)}, 9, {v(HF)}\nv_lshl_add_u32 {v(GA)}, {v(TAU)}, 2, {v(GA)}\nv_add_u32 {v(GA)}, s3, {v(GA)}")
        k(f"v_cndmask_b32 {v(GA+1)}, {v(RS)}, {v(MF)}, {s(sHI,2)}\nds_write_b32 {v(GA)}, {v(GA+1)}", "stw")

    def xs_ops():
        ops = [(f"s_lshl_b32 s{t2}, s{sM}, 1\ns_lshr_b32 s3, s{sW}, 1\ns_add_u32 s{t2}, s{t2}, s3\ns_lshl_b32 s{t2}, s{t2}, 15\n"
                f"s_lshl_b32 s3, s{sN}, 7\ns_add_u32 s{t2}, s{t2}, s3\ns_and_b32 s3, s{sW}, 1\ns_lshl_b32 s3, s3, 6\ns_add_u32 s{t2}, s{t2}, s3\n"
                f"v_lshlrev_b32 {v(GA+2)}, 14, {v(HF)}\nv_lshl_add_u32 {v(GA+2)}, {v(LR)}, 1, {v(GA+2)}", None)]
        for r in range(16):
            pre = f"s_add_u32 s{t2}, s{t2}, 4096\n" if r and r % 4 == 0 else ""
            ops.append((pre + f"buffer_load_ushort {v(ACC+16+r)}, {v(GA+2)}, {s(rX,4)}, s{t2} offen offset:{(r&3)*1024}", "xs"))
        return ops

    def pass2(fill):
        def rd(si):
            for c in range(2):
                k(f"ds_read_b128 {a(FR+8*(si%4)+4*c,4)}, {v(BR+(si&7))} offset:{(si>>3)*256 + c*32768}", f"b{si}_{c}")
        for si in range(3):
            rd(si)
        per = -(-len(fill) // 60)
        for si in range(32):
            for c in range(2):
                k.wait(lg=f"b{si}_{c}")
                mfma(SS + 16 * c, a(4 * si, 4), a(FR + 8 * (si % 4) + 4 * c, 4), "0" if si == 0 else None)
                if si + 3 < 32:
                    k(f"ds_read_b128 {a(FR+8*((si+3)%4)+4*c,4)}, {v(BR+((si+3)&7))} offset:{((si+3)>>3)*256 + c*32768}", f"b{si+3}_{c}")
                for _ in range(per):
                    if fill:
                        k(*fill.pop(0))
        run(fill)
        mfma(SS, v(XA, 4), v(WE + 8, 4)); mfma(SS + 16, v(XB, 4), v(WE + 8, 4))

    def mish_ops(t):
        ops = []
        TA, TB = TM, TM + 4
        for e in range(2):
            PK = TM + 8 + 4 * e
            for h in range(2):
                R = [ACC + 16 * t + 8 * e + 4 * h + i for i in range(4)]
                for f in (lambda i: f"v_mul_f32 {v(TA+i)}, {v(R[i])}, {v(C1)}",
                          lambda i: f"v_exp_f32 {v(TA+i)}, {v(TA+i)}",
                          lambda i: f"v_add_f32 {v(TB+i)}, 2.0, {v(TA+i)}",
                          lambda i: f"v_fma_f32 {v(TA+i)}, {v(TA+i)}, {v(TB+i)}, 2.0",
                          lambda i: f"v_rcp_f32 {v(TA+i)}, {v(TA+i)}",
                          lambda i: f"v_fma_f32 {v(TA+i)}, {v(TA+i)}, {v(M2RS)}, {v(RS)}",
                          lambda i: f"v_mul_f32 {v(TA+i)}, {v(R[i])}, {v(TA+i)}"):
                    ops += [(f(i), None) for i in range(4)]
                ops += [(f"v_cvt_pk_bf16_f32 {v(PK+2*h+i)}, {v(TA+2*i)}, {v(TA+2*i+1)}", None) for i in range(2)]
            ops.append((f"buffer_store_dwordx4 {v(PK,4)}, {v(L16)}, {s(rWS,4)}, s{sA0} offen offset:{(2*(t&1)+e)*1024} {st}", "act"))
        return ops

    k(f"s_cmp_ge_u32 s{sG}, 14\ns_cbranch_scc1 L_light")
    snap_setup = k.snapshot()
    base_of = lambda stg: ((stg % 5) // 2) * 65536
    def reads(stg, j):
        off = (stg % 5) * 32768 - base_of(stg)
        out = [[(f"ds_read_b128 {a(16*stg+4*j,4)}, {v(XR+j)} offset:{off}", f"x{stg}_{j}")]]
        for t in range(4):
            grp = [(f"ds_read_b64_tr_b16 {a(FR+4*t+2*rd,2)}, {v(WR+t)} offset:{off + j*4096 + rd*1024}", f"w{stg}_{j}_{t}") for rd in range(2)]
            if t == 0:
                out[0] += grp
            else:
                out.append(grp)
        return out

    k.wait(vm="st0")
    k("s_barrier")
    stamp("st0")
    for grp in reads(0, 0):
        run(grp)
    extra = {1: stage_ops(5), 2: stage_ops(6), 3: stage_ops(7), 4: bmat_ops(0), 5: gran_loads(True) + bmat_ops(1), 6: ring_ops(0)}
    pend = []
    for stg in range(8):
        for j in range(4):
            nxt = None
            if j < 3:
                nxt = reads(stg, j + 1)
            elif stg < 7:
                k.wait(vm=f"st{stg+1}")
                k("s_barrier")
                d = base_of(stg + 1) - base_of(stg)
                if d:
                    for r in list(range(XR, XR + 4)) + list(range(WR, WR + 4)):
                        k(f"v_add_u32 {v(r)}, {d & 0xffffffff:#x}, {v(r)}")
                nxt = reads(stg + 1, 0)
                assert not pend
                pend = list(extra.get(stg, []))
            for t in range(4):
                k.wait(lg=f"w{stg}_{j}_{t}")
                mfma(ACC + 16 * t, a(FR + 4 * t, 4), a(16 * stg + 4 * j, 4), "0" if stg == 0 and j == 0 else None)
                if nxt:
                    run(nxt[t])
                n = 0
                while pend and n < 1:
                    text, tag = pend.pop(0)
                    k(text, tag)
                    n += tag is not None
        if stg in (3, 7):
            stamp(f"stage{stg}")
    assert not pend
    gran_check(True)
    stamp("gran")
    for t in range(4):
        mfma(ACC + 16 * t, v(WE + 4 * (t >> 1), 4), v(XB if t & 1 else XA, 4))
    k(f"s_lshl_b32 s3, s{sG}, 13\ns_add_u32 s{sA0}, s{sAF}, s3")
    run(mish_ops(0)); run(mish_ops(1))
    k(f"s_add_u32 s{sA0}, s{sA0}, 4096")
    stamp("mish01")
    k.wait(vm="bm1")
    k("s_barrier")
    stamp("b0")
    after_b0()
    pass2(ring_ops(1) + xs_ops() + mish_ops(2) + mish_ops(3))
    k("s_branch L_join")
    snap_join = k.snapshot()

    k("L_light:")
    sl = (snap_light[0] + snap_setup[0][len(snap_full[0]):], 0, [], 0)
    k.restore(sl)
    CA = TM
    k(f"s_mov_b32 s{t0}, 0x00003f80\ns_mov_b32 s{t1}, 0x3f800000")
    for j in range(8):
        k(f"v_mov_b32 {v(CA+j)}, 0")
    for i in range(16):
        k.wait(vm=f"lw{i}")
        for j in range(4):
            k(f"v_dot2c_f32_bf16 {v(CA+2*j)}, s{t0}, {v(ACC+4*i+j)}\nv_dot2c_f32_bf16 {v(CA+2*j+1)}, s{t1}, {v(ACC+4*i+j)}")
    for j in range(8):
        k(f"v_add_f32_dpp {v(CA+j)}, {v(CA+j)}, {v(CA+j)} row_ror:8 row_mask:0xf bank_mask:0xf")

    def fold8(R):
        for j in range(0, 8, 2):
            k(f"v_permlane32_swap_b32 {v(R+j)}, {v(R+j+1)}")
        for j in range(0, 8, 2):
            k(f"v_add_f32 {v(R+j)}, {v(R+j)}, {v(R+j+1)}")
        k(f"v_permlane16_swap_b32 {v(R)}, {v(R+2)}\nv_permlane16_swap_b32 {v(R+4)}, {v(R+6)}")
        k(f"v_add_f32 {v(R)}, {v(R)}, {v(R+2)}\nv_add_f32 {v(R+4)}, {v(R+4)}, {v(R+6)}")

    def split_publish(R, addr, soff):
        k(f"v_cvt_pk_bf16_f32 {v(R+1)}, {v(R)}, {v(R)}\nv_and_b32 {v(R+1)}, 0xffff0000, {v(R+1)}\nv_sub_f32 {v(R+1)}, {v(R)}, {v(R+1)}")
        k(f"v_cvt_pk_bf16_f32 {v(R)}, {v(R)}, {v(R+1)}\nv_mov_b32 {v(R+1)}, s{sTAG}")
        k(f"buffer_store_dwordx2 {v(R,2)}, {v(addr)}, {s(rWS,4)}, s{soff} offen sc1", "cspub")

    fold8(CA)
    EL = TM + 8
    k(f"v_bfe_u32 {v(EL)}, {v(L)}, 4, 1\nv_lshl_add_u32 {v(EL)}, {v(EL)}, 1, {v(HF)}")
    k(f"v_and_b32 {v(EL+1)}, 7, {v(L)}\nv_lshl_add_u32 {v(EL+1)}, {v(EL+1)}, 3, {v(EL)}\nv_lshlrev_b32 {v(EL+1)}, 2, {v(EL+1)}")
    k(f"s_lshl_b32 s3, s{sW}, 8\ns_add_u32 s3, s3, 98304\nv_add_u32 {v(EL+1)}, s3, {v(EL+1)}")
    k(f"ds_write2_b32 {v(EL+1)}, {v(CA)}, {v(CA+4)} offset0:0 offset1:4", "cw")
    k(f"v_lshlrev_b32 {v(EL+1)}, 2, {v(L)}\nv_add_u32 {v(EL+1)}, 98304, {v(EL+1)}")
    k.wait(lg="all")
    k("s_barrier")
    for j in range(4):
        k(f"ds_read_b32 {v(CA+j)}, {v(EL+1)} offset:{j*256}", "cr")
    k(f"s_min_u32 s{t2}, s{sCNT}, 27\ns_lshl_b32 s{t2}, s{t2}, 9\ns_add_u32 s{t2}, s{t2}, {CS}\nv_lshlrev_b32 {v(EL+2)}, 3, {v(L)}")
    k.wait(lg="all")
    k("s_barrier")
    k(f"v_add_f32 {v(CA)}, {v(CA)}, {v(CA+1)}\nv_add_f32 {v(CA+2)}, {v(CA+2)}, {v(CA+3)}\nv_add_f32 {v(CA)}, {v(CA)}, {v(CA+2)}")
    split_publish(CA, EL + 2, t2)
    for stg in (4, 5):
        run(x_dma(stg, stg * 16384, f"lx{stg}"))
    run(bmat_ops(0)); run(bmat_ops(1))
    k(f"s_mov_b32 s{t0}, 0x3f803f80")
    for j in range(8):
        k(f"v_mov_b32 {v(CA+j)}, 0")
    k.wait(vm="lb")
    for j in range(4):
        for i in range(8):
            k(f"v_dot2c_f32_bf16 {v(CA+i)}, s{t0}, {v(SS+4*i+j)}")
    fold8(CA)
    for r in (8, 4, 2, 1):
        k(f"v_add_f32_dpp {v(CA)}, {v(CA)}, {v(CA)} row_ror:{r} row_mask:0xf bank_mask:0xf")
        k(f"v_add_f32_dpp {v(CA+4)}, {v(CA+4)}, {v(CA+4)} row_ror:{r} row_mask:0xf bank_mask:0xf")
    k(f"v_and_b32 {v(EL+1)}, 1, {v(L)}\nv_cmp_eq_u32 vcc, 1, {v(EL+1)}\nv_lshl_add_u32 {v(EL+1)}, {v(EL+1)}, 2, {v(EL)}\nv_lshlrev_b32 {v(EL+1)}, 3, {v(EL+1)}")
    k(f"v_cndmask_b32 {v(CA)}, {v(CA)}, {v(CA+4)}, vcc")
    k(f"s_lshl_b32 s{t2}, s{sCNT}, 8\ns_lshl_b32 s3, s{sW}, 6\ns_add_u32 s{t2}, s{t2}, s3\ns_add_u32 s{t2}, s{t2}, {CS + 1792*8}")
    split_publish(CA, EL + 1, t2)
    def lreads(stg, base):
        k.wait(vm=f"lx{stg}")
        for j in range(4):
            k(f"ds_read_b128 {a(16*stg+4*j,4)}, {v(XR+j)} offset:{base}", f"lr{stg}")
    lreads(0, 0); lreads(1, 16384)
    k.wait(lg="all")
    for stg in (6, 7):
        run(x_dma(stg, (stg - 6) * 16384, f"lx{stg}"))
    run(gran_loads(False))
    lreads(2, 32768); lreads(3, 49152)
    for j in range(4):
        k(f"v_add_u32 {v(XR+j)}, 0x10000, {v(XR+j)}")
    lreads(4, 0); lreads(5, 16384)
    for j in range(4):
        k(f"v_add_u32 {v(XR+j)}, 0xffff0000, {v(XR+j)}")
    lreads(6, 0); lreads(7, 16384)
    gran_check(False)
    k.wait(vm="all", lg="all")
    k("s_barrier")
    after_b0()
    pass2(ring_ops(0) + ring_ops(1) + xs_ops())
    k.wait(vm="all")

    k("L_join:")
    k.restore(snap_join)
    k(f"s_lshl_b32 s3, s{sW}, 7\ns_add_u32 s3, s3, {SCR}\nv_lshlrev_b32 {v(GA)}, 6, {v(HF)}\nv_add_u32 {v(GA)}, s3, {v(GA)}")
    for q in range(4):
        k(f"ds_read_b128 {v(ACC+4*q,4)}, {v(GA)} offset:{q*16}", "rsv")
    k(f"s_lshl_b32 s3, s{sW}, 9\ns_add_u32 s3, s3, {SCR_EX}\nv_lshlrev_b32 {v(GA+1)}, 3, {v(L)}\nv_add_u32 {v(GA+1)}, s3, {v(GA+1)}")
    k(f"v_lshlrev_b32 {v(GA+2)}, 3, {v(LR)}\nv_add_u32 {v(GA+2)}, {SCR_EX}, {v(GA+2)}")
    k.wait(lg="rsv")
    stamp("pass2")
    for r in range(16):
        k(f"v_mul_f32 {v(SS+r)}, {v(SS+r)}, {v(ACC+r)}\nv_mul_f32 {v(SS+16+r)}, {v(SS+16+r)}, {v(ACC+r)}")
    for r in range(1, 16):
        k(f"v_fmac_f32 {v(SS+r)}, {v(LAR)}, {v(SS+r-1)}\nv_fmac_f32 {v(SS+16+r)}, {v(LAR)}, {v(SS+15+r)}")
        k(f"v_fmac_f32 {v(SS+r)}, {v(NLAI)}, {v(SS+15+r)}\nv_fmac_f32 {v(SS+16+r)}, {v(LAI)}, {v(SS+r-1)}")
    k(f"ds_write2_b32 {v(GA+1)}, {v(SS+15)}, {v(SS+31)} offset0:0 offset1:1", "exw")

    def flag_publish(base, tag):
        k(f"s_lshl_b32 s{t2}, s{sC}, 4\ns_add_u32 s{t2}, s{t2}, s{sG}\ns_lshl_b32 s{t2}, s{t2}, 2\ns_add_u32 s{t2}, s{t2}, s{sW}\ns_lshl_b32 s{t2}, s{t2}, 7\ns_add_u32 s{t2}, s{t2}, {base}")
        k(f"v_mov_b32 {v(TM+26)}, s{sTAG}")
        k.wait(vm=tag)
        k("s_mov_b64 exec, 1")
        text = f"buffer_store_dword {v(TM+26)}, off, {s(rWS,4)}, s{t2}"
        if mode == "global":
            k(text + " sc1", "flag")
        else:
            far, done = k.label("far"), k.label("flagged")
            k(f"s_cmp_eq_u32 s{sLOC}, 0\ns_cbranch_scc1 {far}")
            k(text, "flag")
            k(f"s_branch {done}")
            k(far + ":")
            untracked(f"buffer_wbl2 sc1\ns_waitcnt vmcnt(0)\n{text} sc1")
            k(done + ":")
        k("s_mov_b64 exec, -1")

    PL_A, PL_V = TM + 24, TM + 25
    def poll_addr(base, g0expr):
        k(f"{g0expr}\ns_lshl_b32 s{t3}, s{sC}, 4\ns_add_u32 s3, s3, s{t3}\ns_lshl_b32 s3, s3, 1\ns_lshr_b32 s{t3}, s{sG}, 3\ns_add_u32 s3, s3, s{t3}\ns_lshl_b32 s3, s3, 8\ns_add_u32 s{t3}, s3, {base}")
        k(f"v_bfe_u32 {v(PL_A)}, {v(L)}, 1, 2\nv_and_b32 {v(PL_V)}, 1, {v(L)}\nv_lshl_add_u32 {v(PL_A)}, {v(PL_A)}, 2, {v(PL_V)}\nv_lshlrev_b32 {v(PL_A)}, 7, {v(PL_A)}")
        k(f"buffer_load_dword {v(PL_V)}, {v(PL_A)}, {s(rWS,4)}, s{t3} offen sc1", "poll")

    def poll_check():
        again, ok = k.label("poll_again"), k.label("poll_ok")
        k.wait(vm="poll")
        k(f"s_mov_b32 s{sCNT}, 0")
        k(again + ":")
        k(f"v_cmp_ne_u32 vcc, s{sTAG}, {v(PL_V)}\ns_add_u32 s{sCNT}, s{sCNT}, 1\ns_nop 1\ns_cbranch_vccz {ok}")
        k(f"s_cmp_gt_u32 s{sCNT}, {SPIN}\ns_cbranch_scc1 {ok}")
        untracked(f"buffer_load_dword {v(PL_V)}, {v(PL_A)}, {s(rWS,4)}, s{t3} offen sc1")
        k(f"s_waitcnt vmcnt(0)\ns_branch {again}")
        k(ok + ":")

    flag_publish(FLA, "act")
    k.wait(lg="all")
    k("s_barrier")
    EK = TM
    for q in range(8):
        k(f"ds_read_b64 {v(EK+2*q,2)}, {v(GA+2)} offset:{q*256}", f"ek{q}")
    k(f"s_lshl_b32 s3, s{sG}, 13\ns_add_u32 s{rE}, s{pWS}, s3\ns_addc_u32 s{rE+1}, s{pWS+1}, 0\ns_add_u32 s{rE}, s{rE}, {EG}\ns_addc_u32 s{rE+1}, s{rE+1}, 0")
    k(f"s_mov_b32 s{rE+2}, 8192\ns_mov_b32 s{rE+3}, 0x20000")
    for q in range(1, 8):
        k.wait(lg=f"ek{q}")
        r, i = EK + 2 * q, EK + 2 * q + 1
        k(f"v_fmac_f32 {v(r)}, {v(L16R)}, {v(r-2)}\nv_fmac_f32 {v(i)}, {v(L16R)}, {v(i-2)}")
        k(f"v_fmac_f32 {v(r)}, {v(NL16I)}, {v(i-2)}\nv_fmac_f32 {v(i)}, {v(L16I)}, {v(r-2)}")
    sel = k.label("sel")
    for wv in range(4):
        nx = k.label("selw")
        if wv < 3:
            k(f"s_cmp_lg_u32 s{sW}, {wv}\ns_cbranch_scc1 {nx}")
        lo = ("0", "0") if wv == 0 else (v(EK + 4 * wv - 2), v(EK + 4 * wv - 1))
        k(f"v_cndmask_b32 {v(PR)}, {lo[0]}, {v(EK+4*wv)}, {s(sHI,2)}\nv_cndmask_b32 {v(PI)}, {lo[1]}, {v(EK+4*wv+1)}, {s(sHI,2)}")
        if wv < 3:
            k(f"s_branch {sel}")
            k(nx + ":")
        else:
            k(f"v_mov_b32 {v(EK+16)}, {v(EK+14)}\nv_mov_b32 {v(EK+17)}, s{sTAG}\nv_mov_b32 {v(EK+18)}, {v(EK+15)}\nv_mov_b32 {v(EK+19)}, s{sTAG}")
            k(f"s_lshl_b32 s3, s{sC}, 9\ns_mov_b32 exec_hi, 0")
            untracked(f"buffer_store_dwordx4 {v(EK+16,4)}, {v(L16)}, {s(rE,4)}, s3 offen sc1")
            k("s_mov_b32 exec_hi, -1")
    k(sel + ":")
    stamp("escan")
    poll_addr(FLA, f"s_mul_i32 s3, s{sW}, 7\ns_lshr_b32 s3, s3, 1")
    run(ring_ops(2))
    k(f"s_lshr_b32 s3, s{sG}, 3\ns_lshl_b32 s3, s3, 1\ns_lshr_b32 s{t2}, s{sW}, 1\ns_add_u32 s3, s3, s{t2}\ns_lshl_b32 s3, s3, 7\ns_add_u32 s3, s3, {SCR}")
    k(f"v_lshlrev_b32 {v(GA)}, 6, {v(HF)}\nv_add_u32 {v(GA)}, s3, {v(GA)}")
    for q in range(4):
        k(f"ds_read_b128 {v(ACC+32+4*q,4)}, {v(GA)} offset:{q*16}\nds_read_b128 {v(ACC+48+4*q,4)}, {v(GA)} offset:{512+q*16}", "ast")
    for r in range(16):
        k(f"v_mul_f32 {v(TM)}, {v(SS+r)}, {v(NCFI)}\nv_mul_f32 {v(SS+r)}, {v(SS+r)}, {v(CFR)}")
        k(f"v_fmac_f32 {v(SS+r)}, {v(SS+16+r)}, {v(NCFI)}\nv_fma_f32 {v(SS+16+r)}, {v(SS+16+r)}, {v(NCFR)}, {v(TM)}")
    k.wait(vm="xs", lg="ast")
    for r in range(16):
        k(f"v_lshlrev_b32 {v(ACC+16+r)}, 16, {v(ACC+16+r)}\nv_sub_f32 {v(ACC+r)}, {v(ACC+16+r)}, {v(ACC+48+r)}")
        k(f"v_mul_f32 {v(ACC+r)}, {v(ACC+r)}, {v(ACC+32+r)}\nv_fma_f32 {v(ACC+r)}, {v(ACC+r)}, {v(DSK)}, {v(ACC+16+r)}")
    k(f"s_lshl_b32 s3, s{sM}, 1\ns_lshr_b32 s{t2}, s{sW}, 1\ns_add_u32 s{sA0}, s3, s{t2}\ns_xor_b32 s{sA1}, s{sA0}, 1")
    k(f"s_mul_i32 s{sA0}, s{sA0}, {MT}\ns_mul_i32 s{sA1}, s{sA1}, {MT}\ns_mul_i32 s3, s{sW}, {28*1024}\ns_add_u32 s3, s3, {AF}")
    k(f"s_add_u32 s{sA0}, s{sA0}, s3\ns_add_u32 s{sA1}, s{sA1}, s3")
    poll_check()
    stamp("actpoll")

    def a_ops(b, js):
        ops = []
        for j in js:
            for m in range(2):
                ops.append((f"buffer_load_dwordx4 {a(32*(b%3)+8*j+4*m,4)}, {v(L16)}, {s(rWS,4)}, s{sA1 if m else sA0} offen offset:{j*1024} sc1", f"blk{b}"))
        return ops

    def a_next(b):
        if b == 7:
            return f"s_mul_i32 s3, s{sW}, {-12*1024 & 0xffffffff:#x}\ns_add_u32 s3, s3, {(112-24)*1024}\ns_add_u32 s{sA0}, s{sA0}, s3\ns_add_u32 s{sA1}, s{sA1}, s3"
        return f"s_add_u32 s{sA0}, s{sA0}, 4096\ns_add_u32 s{sA1}, s{sA1}, 4096"

    for b in range(3):
        if b:
            k(a_next(b))
        run(a_ops(b, range(4)))

    EA, EX0, EX1, E0 = TM + 8, TM + 9, TM + 10, TM
    def e_loads():
        return (f"buffer_load_dwordx4 {v(E0,4)}, {v(EA)}, {s(rE,4)}, 0 offen sc1\n"
                f"buffer_load_dwordx4 {v(E0+4,4)}, {v(EA+3)}, {s(rE,4)}, 0 offen sc1")

    def e_issue():
        k(f"s_lshl_b32 s3, s{sW}, 2\ns_sub_u32 s3, s{sC}, s3\ns_sub_u32 s3, s3, 1\nv_sub_u32 {v(EA)}, s3, {v(HF)}\nv_subrev_u32 {v(EA+3)}, 2, {v(EA)}")
        k(f"v_ashrrev_i32 {v(EX0)}, 31, {v(EA)}\nv_ashrrev_i32 {v(EX1)}, 31, {v(EA+3)}\nv_bfi_b32 {v(EX0)}, {v(EX0)}, 0, s{sTAG}\nv_bfi_b32 {v(EX1)}, {v(EX1)}, 0, s{sTAG}")
        k(f"v_lshlrev_b32 {v(EA+4)}, 4, {v(LR)}\nv_lshl_add_u32 {v(EA)}, {v(EA)}, 9, {v(EA+4)}\nv_lshl_add_u32 {v(EA+3)}, {v(EA+3)}, 9, {v(EA+4)}")
        k(e_loads(), "eg")

    def fixup():
        again, ok = k.label("e_again"), k.label("e_ok")
        Y0, Y1 = TM + 12, TM + 13
        k.wait(vm="eg")
        k(f"s_mov_b32 s{sCNT}, 0")
        k(again + ":")
        k(f"v_xor_b32 {v(Y0)}, {v(E0+1)}, {v(EX0)}\nv_xor_b32 {v(Y1)}, {v(E0+3)}, {v(EX0)}\nv_or_b32 {v(Y0)}, {v(Y0)}, {v(Y1)}")
        k(f"v_xor_b32 {v(Y1)}, {v(E0+5)}, {v(EX1)}\nv_or_b32 {v(Y0)}, {v(Y0)}, {v(Y1)}\nv_xor_b32 {v(Y1)}, {v(E0+7)}, {v(EX1)}\nv_or_b32 {v(Y0)}, {v(Y0)}, {v(Y1)}")
        k(f"v_cmp_ne_u32 vcc, 0, {v(Y0)}\ns_add_u32 s{sCNT}, s{sCNT}, 1\ns_nop 1\ns_cbranch_vccz {ok}")
        k(f"s_cmp_gt_u32 s{sCNT}, {SPIN}\ns_cbranch_scc1 {ok}")
        untracked(e_loads())
        k(f"s_waitcnt vmcnt(0)\ns_branch {again}")
        k(ok + ":")
        k(f"v_fmac_f32 {v(E0)}, {v(L2R)}, {v(E0+4)}\nv_fmac_f32 {v(E0+2)}, {v(L2R)}, {v(E0+6)}")
        k(f"v_fma_f32 {v(E0)}, -{v(L2I)}, {v(E0+6)}, {v(E0)}\nv_fmac_f32 {v(E0+2)}, {v(L2I)}, {v(E0+4)}")
        k(f"v_mul_f32 {v(Y0)}, {v(SCRR)}, {v(E0)}\nv_mul_f32 {v(Y1)}, {v(SCRR)}, {v(E0+2)}")
        k(f"v_fma_f32 {v(Y0)}, -{v(SCI)}, {v(E0+2)}, {v(Y0)}\nv_fmac_f32 {v(Y1)}, {v(SCI)}, {v(E0)}")
        k(f"s_lshl_b32 s3, s{sW}, 9\ns_add_u32 s3, s3, {SCR_CX}\nv_lshlrev_b32 {v(GA)}, 3, {v(L)}\nv_add_u32 {v(GA)}, s3, {v(GA)}")
        k(f"ds_write_b64 {v(GA)}, {v(Y0,2)}", "cxw")
        k(f"v_lshlrev_b32 {v(GA)}, 3, {v(LR)}\nv_add_u32 {v(GA)}, {SCR_CX}, {v(GA)}")
        k.wait(lg="all")
        k("s_barrier")
        for q in range(8):
            k(f"ds_read_b64 {v(TM+2*q,2)}, {v(GA)} offset:{q*256}", "cxr")
        k(f"s_lshl_b32 s3, s{sW}, 12\ns_add_u32 s3, s3, {SCR_HT}\nv_lshlrev_b32 {v(GA)}, 5, {v(HF)}\nv_lshl_add_u32 {v(GA)}, {v(LR)}, 6, {v(GA)}\nv_add_u32 {v(GA)}, s3, {v(GA)}")
        k(f"v_bfe_u32 {v(GA+1)}, {v(L)}, 2, 2\nv_lshl_add_u32 {v(GA+1)}, {v(HF)}, 3, {v(GA+1)}\nv_lshlrev_b32 {v(GA+1)}, 6, {v(GA+1)}")
        k(f"v_and_b32 {v(GA+2)}, 1, {v(L)}\nv_lshl_add_u32 {v(GA+1)}, {v(GA+2)}, 5, {v(GA+1)}\nv_bfe_u32 {v(GA+2)}, {v(L)}, 1, 1\nv_lshl_add_u32 {v(GA+1)}, {v(GA+2)}, 3, {v(GA+1)}")
        k(f"v_bfe_u32 {v(GA+2)}, {v(L)}, 4, 1\nv_lshl_add_u32 {v(GA+1)}, {v(GA+2)}, 4, {v(GA+1)}\nv_add_u32 {v(GA+1)}, s3, {v(GA+1)}")
        k.wait(lg="all")
        for step in (8, 4, 2):
            for q in range(0, step, 2):
                k(f"v_add_f32 {v(TM+q)}, {v(TM+q)}, {v(TM+q+step)}\nv_add_f32 {v(TM+q+1)}, {v(TM+q+1)}, {v(TM+q+step+1)}")
        k(f"v_fmac_f32 {v(PR)}, {v(PWR)}, {v(TM)}\nv_fmac_f32 {v(PI)}, {v(PWR)}, {v(TM+1)}")
        k(f"v_fma_f32 {v(PR)}, -{v(PWI)}, {v(TM+1)}, {v(PR)}\nv_fmac_f32 {v(PI)}, {v(PWI)}, {v(TM)}")
        NR, NI = TM + 16, TM + 17
        k(f"v_sub_f32 {v(NR)}, 0, {v(PR)}\nv_sub_f32 {v(NI)}, 0, {v(PI)}")
        for r in range(16):
            k(f"v_fmac_f32 {v(SS+r)}, {v(T+r)}, {v(PR)}\nv_fmac_f32 {v(SS+16+r)}, {v(T+r)}, {v(NI)}")
            k(f"v_fmac_f32 {v(SS+r)}, {v(T+16+r)}, {v(NI)}\nv_fmac_f32 {v(SS+16+r)}, {v(T+16+r)}, {v(NR)}")
        for q in range(16):
            k(f"v_cvt_pk_bf16_f32 {v(TM+q)}, {v(SS+2*q)}, {v(SS+2*q+1)}")
            if q % 4 == 3:
                k(f"ds_write_b128 {v(GA)}, {v(TM+q-3,4)} offset:{(q>>3)*2048 + ((q>>2)&1)*16}", "htw")
        k(f"s_lshr_b32 s3, s{sG}, 2\ns_lshl_b32 s3, s3, 3\ns_and_b32 s{t2}, s{sG}, 3\ns_add_u32 s3, s3, s{t2}\ns_lshl_b32 s3, s3, 11\ns_add_u32 s{t2}, s{sAF}, s3\ns_add_u32 s{t2}, s{t2}, {112*1024}")
        k.wait(lg="all")
        for f in range(4):
            for rd in range(2):
                k(f"ds_read_b64_tr_b16 {v(SS+4*f+2*rd,2)}, {v(GA+1)} offset:{f*1024 + rd*256}", f"htr{f}")
        for f in range(4):
            k.wait(lg=f"htr{f}")
            if f == 2:
                k(f"s_add_u32 s{t2}, s{t2}, 8192")
            k(f"buffer_store_dwordx4 {v(SS+4*f,4)}, {v(L16)}, {s(rWS,4)}, s{t2} offen offset:{(f&1)*1024} {st}", "hst")

    def b_reads(b, j):
        hi = b % 3 == 2
        off = 0 if hi else RING[b % 3]
        if b < 7:
            return [(f"ds_read_b64_tr_b16 {a(FR+8*j+4*n+2*rd,2)}, {v(W2R+2*hi+n)} offset:{off + j*2048 + rd*1024}", f"f{b}_{j}")
                    for n in range(2) for rd in range(2)]
        return [(f"ds_read_b128 {a(FR+8*j+4*n,4)}, {v(CN[n]+4*hi+j)} offset:{off}", f"f{b}_{j}") for n in range(2)]

    CN = (CR, BR)
    for j in range(4):
        k(f"v_xor_b32 {v(BR+j)}, 0x1000, {v(CR+j)}\nv_add_u32 {v(BR+4+j)}, {RING[2]}, {v(BR+j)}")

    hflag_at, hpoll_at = fix_after + 3, 5
    for b in range(11):
        if b == hflag_at:
            flag_publish(FLH, "hst")
        k.wait(vm=f"blk{b}")
        if b in (0, 3, 7):
            stamp(f"blk{b}")
        run(b_reads(b, 0)); run(b_reads(b, 1))
        nb = b + 3
        late = nb == 7
        for j in range(4):
            fill = []
            if j < 2:
                fill = b_reads(b, j + 2)
            elif nb < 11:
                if j == 2 and not late and nb != 8:
                    fill = [(a_next(nb), None)] + a_ops(nb, (0, 1))
                if j == 3:
                    k.wait(lg=f"f{b}_3")
                    fill = ring_ops(nb)
            k.wait(lg=f"f{b}_{j}")
            per = -(-len(fill) // 4)
            for m in range(2):
                for n in range(2):
                    first = b == 0 and j == 0 and (m or n)
                    mfma(ACC + 32 * m + 16 * n, a(32 * (b % 3) + 8 * j + 4 * m, 4), a(FR + 8 * j + 4 * n, 4), "0" if first else None)
                    for _ in range(per):
                        if fill:
                            k(*fill.pop(0))
        if nb < 11 and not late and nb != 8:
            run(a_ops(nb, (2, 3)))
        if b == fix_after - 1:
            e_issue()
        if b == fix_after:
            fixup()
            stamp("fixup")
        if b == hpoll_at - 1:
            poll_addr(FLH, f"s_lshl_b32 s3, s{sW}, 2")
        if b == hpoll_at:
            poll_check()
            stamp("hpoll")
            for nb2 in (7, 8):
                k(a_next(nb2))
                run(a_ops(nb2, range(4)))
    stamp("p2done")
    k(f"s_lshl_b32 s3, s{sW}, 13\nv_add_u32 {v(GA)}, s3, {v(L16)}")
    for u in (1, 2, 3):
        for q in range(4):
            k(f"ds_write_b128 {v(GA)}, {v(ACC+16*u+4*q,4)} offset:{(u>>1)*32768 + (u&1)*4096 + q*1024}", "fw")
    for u in (1, 2, 3):
        k(f"v_xor_b32 {v(GA+u)}, {u << 13}, {v(GA)}")
    k(f"s_lshl_b32 s{t2}, s{sM}, 1\ns_lshr_b32 s3, s{sW}, 1\ns_add_u32 s{t2}, s{t2}, s3\ns_lshl_b32 s{t2}, s{t2}, 16")
    k(f"s_lshl_b32 s3, s{sN}, 8\ns_add_u32 s{t2}, s{t2}, s3\ns_and_b32 s3, s{sW}, 1\ns_lshl_b32 s3, s3, 7\ns_add_u32 s{t2}, s{t2}, s3")
    k(f"v_lshlrev_b32 {v(TM)}, 15, {v(HF)}\nv_lshl_add_u32 {v(TM)}, {v(LR)}, 2, {v(TM)}")
    k.wait(lg="all")
    k("s_barrier")
    for q in range(4):
        for u in (1, 2, 3):
            k(f"ds_read_b128 {v(ACC+16*u+4*q,4)}, {v(GA+u)} offset:{(u>>1)*32768 + (u&1)*4096 + q*1024}", f"fr{q}")
    for q in range(4):
        k.wait(lg=f"fr{q}")
        for i in range(4):
            r = 4 * q + i
            k(f"v_add_f32 {v(ACC+r)}, {v(ACC+r)}, {v(ACC+16+r)}\nv_add_f32 {v(ACC+32+r)}, {v(ACC+32+r)}, {v(ACC+48+r)}")
        for i in range(4):
            r = 4 * q + i
            k(f"v_add_f32 {v(ACC+r)}, {v(ACC+r)}, {v(ACC+32+r)}")
            k(f"buffer_store_dword {v(ACC+r)}, {v(TM)}, {s(rOUT,4)}, s{t2} offen offset:{(r&1)*2048}", "out")
            if r & 1:
                k(f"s_add_u32 s{t2}, s{t2}, 4096")
    k(f"s_cmp_lg_u32 s{sC}, 15\ns_cbranch_scc1 L_fin\ns_or_b32 s3, s{sG}, s{sW}\ns_cmp_lg_u32 s3, 0\ns_cbranch_scc1 L_fin")
    k(f"v_mov_b32 {v(TM+1)}, s{sTAG}\nv_mov_b32 {v(TM+2)}, {EPOCH}\ns_mov_b64 exec, 1")
    k(f"buffer_store_dword {v(TM+1)}, {v(TM+2)}, {s(rWS,4)}, 0 offen sc1\ns_mov_b64 exec, -1")
    k("L_fin:")
    if diag:
        k("s_waitcnt vmcnt(0)")
        stamp("end")
        k(f"s_lshl_b32 s3, s2, 2\ns_add_u32 s3, s3, s{sW}\ns_lshl_b32 s3, s3, 8\ns_add_u32 s3, s3, {DIAG}\nv_lshlrev_b32 {v(TM)}, 2, {v(L)}")
        k(f"buffer_store_dword {v(DG)}, {v(TM)}, {s(rWS,4)}, s3 offen")
        if amplify:
            k(f"s_cmp_lg_u32 s2, {amp_wg}\ns_cbranch_scc1 L_end")
            k(f"v_readlane_b32 s12, {v(DG)}, 0\nv_readlane_b32 s13, {v(DG)}, {stamps.index(amplify)}\nv_readlane_b32 s14, {v(DG)}, {len(stamps)-1}\ns_nop 3")
            k("s_sub_u32 s13, s13, s12\ns_min_u32 s13, s13, 5000\ns_lshl_b32 s13, s13, 2")
            k("L_amp:\ns_memrealtime s[34:35]\ns_waitcnt lgkmcnt(0)\ns_sub_u32 s3, s34, s14\ns_cmp_lt_u32 s3, s13\ns_cbranch_scc1 L_amp")
    k("L_end:")
    k("s_endpgm")

    body, nops = pad(k.lines)
    hdr = open("parallel_sum__ssm_conv_s5__dense_activation_mish__prompt.s.ref").read().split("; Override")[0]
    text = hdr + "; @launch grid=(256,1,1) block=(256,1,1) lds=163840\n"
    text += f'.amdgcn_target "amdgcn-amd-amdhsa--gfx950"\n.text\n.globl {KNAME}\n.p2align 8\n.type {KNAME},@function\n{KNAME}:\n'
    text += "\n".join(body) + "\n"
    text += f""".section .rodata,"a"
.p2align 6
.amdhsa_kernel {KNAME}
  .amdhsa_next_free_vgpr 512
  .amdhsa_next_free_sgpr 102
  .amdhsa_accum_offset 256
  .amdhsa_group_segment_fixed_size 0
  .amdhsa_kernarg_size 128
  .amdhsa_user_sgpr_count 2
  .amdhsa_user_sgpr_kernarg_segment_ptr 1
  .amdhsa_system_sgpr_workgroup_id_x 1
.end_amdhsa_kernel
"""
    return text, dict(nops=nops, vgprs=V.next, stamps=stamps, lines=len(body))


if __name__ == "__main__":
    import json
    kw = json.loads(sys.argv[2]) if len(sys.argv) > 2 else {}
    text, info = gen(**kw)
    open(sys.argv[1], "w").write(text)
    print(info)
```

```python
import sys
from emit import K, Alloc, rng, pad

KNAME = "parallel_sum__ssm_conv_s5__dense_activation_mish__prompt_kernel"
EPOCH, STATS, XID, CS, EG, FLA, FLB, AF = 0, 0x10000, 0x20000, 0x30000, 0x40000, 0x80000, 0xA0000, 0x100000
DIAG = 200 << 20
MT = 176 * 1024
XSLOT = (4, 5, 0, 1, 2, 3, 4, 5)
SCR = 65536
SCR_EX, SCR_CX, SCR_HT = SCR + 1024, SCR + 4096, SCR + 8192
HIGH = 98304
RING = {0: 0, 1: 32768, 2: 0, 3: 32768, 4: HIGH, 5: HIGH + 32768, 6: 0, 7: 32768, 8: HIGH, 9: HIGH + 32768, 10: 0}
RES = 160
LOG2E = 0x3fb8aa3b
SPIN = 1 << 16


def weight(op):
    if callable(op):
        return 0.2
    w = 0.0
    for l in op[0].split("\n"):
        mn = l.split()[0]
        w += 2 if mn in ("v_exp_f32", "v_rcp_f32", "v_sin_f32", "v_cos_f32") else 0.3 if mn.startswith("s_") else 1
    return w


def spread(ops, n):
    total = sum(map(weight, ops)) or 1
    out = [[] for _ in range(n)]
    acc = 0.0
    for op in ops:
        out[min(n - 1, int(acc / total * n + 1e-9))].append(op)
        acc += weight(op)
    return out


def spread_mem(ops, n):
    groups, cur = [], []
    for op in ops:
        cur.append(op)
        if not callable(op) and op[1] is not None:
            groups.append(cur); cur = []
    if cur:
        groups[-1] += cur
    out = [[] for _ in range(n)]
    for i, g in enumerate(groups):
        out[i * n // len(groups)] += g
    return out


def gen(mode="global", mapping="x8g4", diag=False, rot="cg", code_prefetch=True, amplify=None, amp_wg=0, pk=True, out_flags="", ablate=(), l2pf=True, f1_at=16, f2_at=2, npre=3, p1_split=4):
    k = K()
    V = Alloc("v", 1, 256)
    v = lambda r, n=1: rng("v", r, n)
    a = lambda r, n=1: rng("a", r, n)
    s = lambda r, n=1: rng("s", r, n)
    st = "sc1" if mode == "global" else ""

    sC, sG, sW, sROT, sM, sN, sTAG, sLOC = 4, 5, 6, 7, 8, 9, 10, 11
    t0, t1, t2, t3 = 12, 13, 14, 15
    pX, pLR, pLI, pBR, pBI, pCR, pCI, pDT, pDS, pW1, pB1, pW2, pOUT, pWS = 16, 18, 20, 22, 24, 26, 28, 30, 32, 36, 38, 40, 42, 46
    rX, rW1, rB, rE, rW2, rCR, rCI, rWS, rOUT = 48, 52, 56, 60, 64, 68, 72, 76, 80
    sXB, sBB, sWB, sA0, sA1, sB2, sCNT, sAF, sQ, sW12, sW13 = 84, 85, 86, 87, 88, 89, 90, 91, 92, 93, 94
    sHI, sXCC = 98, 100
    sBE, sBX, sBL, sAE, sAX, sAL, sGE, sGL, sJ, sXD = 18, 19, 20, 21, 22, 23, 24, 25, 95, 101
    sD = 34

    L, LR, HF, L16, TAU = V("l"), V("lr"), V("hf"), V("l16"), V("tau")
    XD, CD, WD, W2D = V("xd", 4), V("cd", 4), V("wd", 4), V("w2d", 4)
    XR, CR, W2R, W1R, BD = V("xr", 4), V("cr", 8), V("w2r", 4), V("w1r", 4), V("bd")
    BR = CR
    LAR, LAI, NLAI, L16R, L16I, NL16I, PWR, PWI, L2R, L2I, SCRR, SCI, CFR, NCFR, NCFI = [V(x) for x in
        "lar lai nlai l16r l16i nl16i pwr pwi l2r l2i scr sci cfr ncfr ncfi".split()]
    PR, PI, MF = V("pr"), V("pi"), V("mf")
    ACC, SS, T = V("acc", 64, 4), V("ss", 32, 4), V("t", 32, 4)
    XA, XB, WE = V("xa", 4, 4), V("xb", 4, 4), V("we", 12, 4)
    MI = V("mish", 16, 4)
    TM = V("tmp", 20, 4)
    C1, RS, M2RS = V("c1", 1, 2), V("rs"), V("m2rs")
    DSK = V("dsk")
    BI = V("bias", 2)
    DG = V("diag")
    FR = 128
    RSV, EK, XS = ACC + 32, ACC + 48, SS

    stamps = []
    def stamp(name):
        if diag:
            stamps.append(name)
            k(f"s_memrealtime s[{sD}:{sD+1}]\ns_memtime s[44:45]\ns_waitcnt lgkmcnt(0)")
            k.lg_done = len(k.lg)
            k(f"v_writelane_b32 {v(DG)}, s{sD}, {len(stamps)-1}\nv_writelane_b32 {v(DG)}, s44, {len(stamps)+31}")

    def srd(d, p, nbytes):
        return f"s_mov_b32 s{d}, s{p}\ns_mov_b32 s{d+1}, s{p+1}\ns_mov_b32 s{d+2}, {nbytes:#x}\ns_mov_b32 s{d+3}, 0x20000"

    def mfma(d, x, y, c=None):
        k(f"v_mfma_f32_32x32x16_bf16 {v(d,16)}, {x}, {y}, {v(d,16) if c is None else c}")

    def untracked(text):
        n = len(k.vm)
        k(text)
        del k.vm[n:]

    def run(ops):
        for op in ops:
            if callable(op):
                op()
            else:
                k(*op)

    def ops_of(text, tag=None):
        return [(l, tag) for l in text.split("\n")]

    W = lambda **kw: (lambda: k.wait(**kw))

    k("s_cmp_ge_u32 s2, 256\ns_cbranch_scc1 L_end")
    k("s_load_dwordx16 s[16:31], s[0:1], 0\ns_load_dwordx16 s[32:47], s[0:1], 64")
    if diag:
        k("s_memrealtime s[12:13]\ns_memtime s[10:11]")
    A_, B_, C_, D_ = TM, TM + 1, TM + 2, TM + 3
    k(f"v_and_b32 {v(L)}, 63, v0\nv_lshrrev_b32 {v(A_)}, 6, v0\nv_and_b32 {v(LR)}, 31, v0")
    k(f"v_readfirstlane_b32 s{sW}, {v(A_)}")
    k(f"v_lshrrev_b32 {v(HF)}, 5, {v(L)}\nv_lshlrev_b32 {v(L16)}, 4, {v(L)}")
    k(f"s_and_b32 s14, s2, 7\ns_lshr_b32 s15, s2, 3\ns_mov_b32 s{sXD}, s14\ns_mov_b32 s{sJ}, s15")
    if code_prefetch:
        k(f"s_getpc_b64 s[96:97]\nL_pc:\ns_sub_u32 s96, s96, L_pc-{KNAME}\ns_subb_u32 s97, s97, 0")
        k(f"s_lshl_b32 s3, s{sW}, 5\ns_add_u32 s3, s3, s15\ns_lshl_b32 s3, s3, 8\nv_lshl_add_u32 {v(TM+19)}, {v(L)}, 2, s3\nv_min_u32 {v(TM+19)}, L_end-{KNAME}, {v(TM+19)}")
        k(f"global_load_dword {v(TM+19)}, {v(TM+19)}, s[96:97]", "pf")
    if mapping == "rows":
        k(f"s_and_b32 s3, s15, 1\ns_lshl_b32 s{sC}, s14, 1\ns_or_b32 s{sC}, s{sC}, s3\ns_lshr_b32 s{sG}, s15, 1")
    elif mapping == "x8g4":
        k(f"s_lshr_b32 s3, s14, 2\ns_lshl_b32 s3, s3, 3\ns_and_b32 s{sC}, s15, 7\ns_or_b32 s{sC}, s{sC}, s3")
        k(f"s_and_b32 s3, s14, 3\ns_lshl_b32 s3, s3, 2\ns_lshr_b32 s{sG}, s15, 3\ns_or_b32 s{sG}, s{sG}, s3")
    elif mapping == "x4g8":
        k(f"s_lshr_b32 s3, s14, 1\ns_lshl_b32 s3, s3, 2\ns_and_b32 s{sC}, s15, 3\ns_or_b32 s{sC}, s{sC}, s3")
        k(f"s_and_b32 s3, s14, 1\ns_lshl_b32 s3, s3, 3\ns_lshr_b32 s{sG}, s15, 2\ns_or_b32 s{sG}, s{sG}, s3")
    k({"cg": f"s_add_u32 s{sROT}, s{sC}, s{sG}\ns_and_b32 s{sROT}, s{sROT}, 7", "none": f"s_mov_b32 s{sROT}, 0",
       "c": f"s_and_b32 s{sROT}, s{sC}, 7", "g": f"s_and_b32 s{sROT}, s{sG}, 7"}[rot])
    k(f"s_lshl_b32 s{sW12}, s{sW}, 12\ns_lshl_b32 s{sW13}, s{sW}, 13")
    k(f"v_lshrrev_b32 {v(A_)}, 3, {v(L)}")
    k(f"v_and_b32 {v(B_)}, 7, {v(L)}\nv_lshrrev_b32 {v(C_)}, 4, {v(L)}")
    k(f"v_xor_b32 {v(B_)}, {v(B_)}, {v(C_)}\nv_lshlrev_b32 {v(B_)}, 4, {v(B_)}")
    k(f"v_and_b32 {v(C_)}, 3, {v(A_)}\nv_lshl_add_u32 {v(C_)}, {v(HF)}, 4, {v(C_)}")
    k(f"v_lshl_add_u32 {v(XD)}, {v(C_)}, 10, {v(B_)}")
    k(f"v_xor_b32 {v(XD+1)}, 64, {v(XD)}\nv_add_u32 {v(XD+2)}, 6144, {v(XD)}")
    k(f"v_add_u32 {v(XD+3)}, 9216, {v(XD+1)}\nv_add_u32 {v(XD+1)}, 3072, {v(XD+1)}")
    k(f"v_lshl_add_u32 {v(CD)}, {v(A_)}, 10, {v(B_)}")
    k(f"v_xor_b32 {v(CD+1)}, 64, {v(CD)}\nv_add_u32 {v(CD+2)}, {2*7168}, {v(CD)}\nv_add_u32 {v(CD+3)}, {3*7168}, {v(CD+1)}\nv_add_u32 {v(CD+1)}, 7168, {v(CD+1)}")
    k(f"v_lshlrev_b32 {v(A_)}, 10, {v(HF)}\nv_lshl_add_u32 {v(A_)}, {v(LR)}, 4, {v(A_)}")
    k(f"s_lshl_b32 s{sXB}, s{sC}, 17\ns_lshl_b32 s3, s{sW}, 15\ns_add_u32 s{sXB}, s{sXB}, s3")
    k(f"s_and_b32 s3, s{sW}, 1\ns_lshl_b32 s3, s3, 14\ns_lshl_b32 s{sBB}, s{sG}, 15\ns_add_u32 s{sBB}, s{sBB}, s3")
    k(f"s_lshl_b32 s3, s{sROT}, 7\nv_xor_b32 {v(BD)}, s3, {v(L16)}")
    k(f"s_lshl_b32 s3, s{sC}, 4\ns_add_u32 s3, s3, s{sG}\ns_lshl_b32 s3, s3, 2\ns_add_u32 s3, s3, s{sW}\ns_lshl_b32 s{t2}, s3, 11")
    k(f"s_lshl_b32 s3, s{sG}, 5\nv_add_lshl_u32 {v(B_)}, {v(LR)}, s3, 1")
    k(f"s_lshl_b32 s3, s{sG}, 7\nv_add_lshl_u32 {v(C_)}, {v(L)}, s3, 1\nv_min_u32 {v(C_)}, 3454, {v(C_)}")
    k(f"s_and_b32 s{sN}, s{sG}, 7\ns_lshl_b32 s3, s{sN}, 1\ns_and_b32 s{t3}, s{sW}, 1\ns_or_b32 s3, s3, s{t3}\ns_lshl_b32 s3, s3, 5\nv_add_lshl_u32 {v(D_)}, {v(LR)}, s3, 1")
    k("s_waitcnt lgkmcnt(0)")
    if diag:
        k(f"v_writelane_b32 {v(DG)}, s12, 0\nv_writelane_b32 {v(DG)}, s10, 32"); stamps.append("start")
    if "early" in ablate:
        stamp("karg")
    k(srd(rX, pX, 2 << 20))
    SR = TM + 4
    PL = MI
    k(f"global_load_ushort {v(PL)}, {v(B_)}, {s(pLR,2)}\nglobal_load_ushort {v(PL+1)}, {v(B_)}, {s(pLI,2)}\nglobal_load_ushort {v(PL+2)}, {v(B_)}, {s(pDT,2)}", "par")
    k(f"buffer_load_dwordx4 {v(SR,4)}, {v(A_)}, {s(rX,4)}, s{t2} offen", "srow")
    k(f"buffer_load_dwordx4 {v(SR+4,4)}, {v(A_)}, {s(rX,4)}, s{t2} offen offset:512", "srow")
    k(f"s_load_dword s{sTAG}, s[{pWS}:{pWS+1}], {EPOCH}")
    k(f"s_cmp_lt_u32 s{sW}, 2\ns_cselect_b32 s{rB}, s{pBR}, s{pBI}\ns_cselect_b32 s{rB+1}, s{pBR+1}, s{pBI+1}\ns_mov_b32 s{rB+2}, 0x80000\ns_mov_b32 s{rB+3}, 0x20000")

    def x_ops(stage):
        ops = [(f"s_xor_b32 s{t0}, s{sROT}, {stage}\ns_lshl_b32 s{t0}, s{t0}, 7\ns_add_u32 s{t0}, s{t0}, s{sXB}\ns_add_u32 m0, s{sW12}, {XSLOT[stage]*16384}", None)]
        ops += [(f"buffer_load_dwordx4 {v(XD+i)}, {s(rX,4)}, s{t0} offen offset:{i*1024} lds", f"x{stage}") for i in range(4)]
        return ops

    def b_ops():
        ops = []
        for i in range(16):
            if i % 4 == 0:
                ops.append((f"s_add_u32 s{t0}, s{sBB}, {i*1024}\ns_lshl_b32 s3, s{sW}, 14\ns_add_u32 m0, s3, {HIGH + i*1024}", None))
            tv = TM + 16 + (i & 1)
            ops.append((f"v_xor_b32 {v(tv)}, {i << 4}, {v(BD)}\nbuffer_load_dwordx4 {v(tv)}, {s(rB,4)}, s{t0} offen offset:{(i&3)*1024} lds", "bm"))
        return ops

    def w1_ops(pair, u):
        base = (0, HIGH)[pair] + u * 16384
        ops = [(f"s_lshr_b32 s3, s{sW}, 1\ns_add_u32 s3, s3, {2*u}\ns_xor_b32 s3, s3, s{sROT}\ns_mul_i32 s{t0}, s3, {64*3584}\n"
                f"s_add_u32 s{t0}, s{t0}, s{sWB}\n" + (f"s_add_u32 s{t0}, s{t0}, 128\n" if pair else "") + f"s_add_u32 m0, s{sW12}, {base}", None)]
        ops += [(f"buffer_load_dwordx4 {v(WD+i)}, {s(rW1,4)}, s{t0} offen offset:{i*1024} lds", f"w1_{pair}_{u}") for i in range(4)]
        return ops

    def ring_ops(b):
        tag = f"rb{b}"
        if b < 7:
            src, add = (sBE, b) if b < 3 else (sBX, 0) if b == 3 else (sBL, b - 4)
            head, step = f"s_add_u32 s{t0}, s{src}, {add*131072}", f"s_add_u32 s{t0}, s{t0}, 32768"
            r, D = rW2, W2D
        else:
            head = (f"s_lshl_b32 s{t0}, s{sN}, 1\ns_and_b32 s3, s{sW}, 1\ns_or_b32 s{t0}, s{t0}, s3\ns_lshl_b32 s{t0}, s{t0}, 15\n"
                    f"s_lshl_b32 s3, s{sW}, 8\ns_add_u32 s{t0}, s{t0}, s3")
            if (b - 7) & 1:
                head += f"\ns_add_u32 s{t0}, s{t0}, 128"
            step = f"s_xor_b32 s{t0}, s{t0}, 32768"
            r, D = (rCI if b >= 9 else rCR), CD
        ops = [(head + f"\ns_add_u32 m0, s{sW13}, {RING[b]}", None)]
        for i in range(8):
            if i == 4:
                ops.append((f"s_add_u32 m0, m0, 4096\n{step}", None))
            ops.append((f"buffer_load_dwordx4 {v(D+(i&3))}, {s(r,4)}, s{t0} offen offset:{(i&3)*1024} lds", tag))
        return ops

    def par_loads():
        k(f"global_load_ushort {v(BI)}, {v(C_)}, {s(pB1,2)}\nglobal_load_ushort {v(BI+1)}, {v(C_)}, {s(pB1,2)} offset:128", "par2")
        k(f"global_load_ushort {v(DSK)}, {v(D_)}, {s(pDS,2)}", "par2")

    def early_setup():
        o = [(srd(rWS, pWS, 1 << 28), None), (f"s_mov_b32 s{sHI}, 0\ns_mov_b32 s{sHI+1}, -1\ns_getreg_b32 s{sXCC}, hwreg(HW_REG_XCC_ID)\ns_and_b32 s{sXCC}, s{sXCC}, 15", None)]
        P0, P1 = TM + 12, TM + 13
        o += ops_of(f"v_bfe_u32 {v(P0)}, {v(LR)}, 1, 3\nv_xor_b32 {v(P0)}, {v(P0)}, {v(HF)}\nv_lshlrev_b32 {v(P0)}, 4, {v(P0)}\nv_lshl_add_u32 {v(P0)}, {v(LR)}, 7, {v(P0)}")
        o.append((f"s_add_u32 s3, s{sW12}, 65536\nv_add_u32 {v(XR)}, s3, {v(P0)}", None))
        for j in (1, 2, 3):
            o += ops_of(f"v_xor_b32 {v(XR+j)}, {j << 5}, {v(XR)}")
        o += ops_of(f"v_and_b32 {v(P0)}, 15, {v(L)}\nv_xor_b32 {v(P0)}, {v(P0)}, {v(HF)}\nv_lshlrev_b32 {v(P0)}, 4, {v(P0)}\nv_lshl_add_u32 {v(P0)}, {v(LR)}, 10, {v(P0)}\nv_add_u32 {v(BR)}, {HIGH}, {v(P0)}")
        for i in range(1, 8):
            o += ops_of(f"v_xor_b32 {v(BR+i)}, {i << 5}, {v(BR)}")
        return o

    def cr_ops():
        o = [(f"s_sub_u32 s3, s{sW12}, 65536\n" + "\n".join(f"v_add_u32 {v(CR+j)}, s3, {v(XR+j)}" for j in range(4)), None)]
        return o + [(f"v_add_u32 {v(CR+4+j)}, {HIGH}, {v(CR+j)}", None) for j in range(4)]

    def row_stats():
        o = []
        def k2(text, tag=None, atomic=False):
            o.extend([(text, tag)] if atomic or tag else ops_of(text))
        S1, S2, U1, U2 = TM, TM + 1, TM + 2, TM + 3
        k2(f"v_mov_b32 {v(S1)}, 0\nv_mov_b32 {v(S2)}, 0\ns_mov_b32 s{t3}, 0x3f803f80")
        o.append(W(vm="srow"))
        for i in range(8):
            k2(f"v_dot2c_f32_bf16 {v(S1)}, s{t3}, {v(SR+i)}\nv_dot2c_f32_bf16 {v(S2)}, {v(SR+i)}, {v(SR+i)}")
        for r in (8, 4, 2, 1):
            k2(f"v_add_f32_dpp {v(S1)}, {v(S1)}, {v(S1)} row_ror:{r} row_mask:0xf bank_mask:0xf")
            k2(f"v_add_f32_dpp {v(S2)}, {v(S2)}, {v(S2)} row_ror:{r} row_mask:0xf bank_mask:0xf")
        k2(f"v_mov_b32 {v(U1)}, {v(S1)}\nv_mov_b32 {v(U2)}, {v(S2)}")
        k2(f"v_permlane16_swap_b32 {v(S1)}, {v(U1)}\nv_permlane16_swap_b32 {v(S2)}, {v(U2)}")
        k2(f"v_add_f32 {v(S1)}, {v(S1)}, {v(U1)}\nv_add_f32 {v(S2)}, {v(S2)}, {v(U2)}")
        k2(f"v_mul_f32 {v(S1)}, 0x3b000000, {v(S1)}\nv_mul_f32 {v(S2)}, 0x3b000000, {v(S2)}")
        k2(f"v_fma_f32 {v(S2)}, -{v(S1)}, {v(S1)}, {v(S2)}\nv_max_f32 {v(S2)}, 0, {v(S2)}")
        k2(f"v_cvt_pk_bf16_f32 {v(S2)}, {v(S2)}, {v(S2)}\nv_and_b32 {v(S2)}, 0xffff0000, {v(S2)}\nv_add_f32 {v(S2)}, 0x3727c5ac, {v(S2)}")
        k2(f"v_cvt_pk_bf16_f32 {v(S2)}, {v(S2)}, {v(S2)}\nv_and_b32 {v(S2)}, 0xffff0000, {v(S2)}\nv_sqrt_f32 {v(S2)}, {v(S2)}")
        k2(f"v_cvt_pk_bf16_f32 {v(SR)}, {v(S1)}, {v(S2)}")
        k2("s_waitcnt lgkmcnt(0)")
        k2(f"s_mul_i32 s{sTAG}, s{sTAG}, 0x9e3779b1\ns_add_u32 s{sTAG}, s{sTAG}, 0x7f4a7c15")
        k2(f"v_mov_b32 {v(SR+1)}, s{sTAG}\nv_mov_b32 {v(SR+2)}, s{sXCC}\nv_mov_b32 {v(SR+3)}, s{sTAG}\nv_lshlrev_b32 {v(U1)}, 3, {v(HF)}")
        k2(f"s_lshr_b32 s{t2}, s{t2}, 7\ns_add_u32 s{t2}, s{t2}, {STATS}")
        k2(f"s_lshl_b32 s{t3}, s{sC}, 4\ns_add_u32 s{t3}, s{t3}, s{sG}\ns_lshl_b32 s{t3}, s{t3}, 3\ns_add_u32 s{t3}, s{t3}, {XID}")
        def publish():
            k("s_mov_b32 exec_lo, 1\ns_mov_b32 exec_hi, 1")
            k(f"buffer_store_dwordx2 {v(SR,2)}, {v(U1)}, {s(rWS,4)}, s{t2} offen sc1", "pub0")
            k(f"buffer_store_dwordx2 {v(SR+2,2)}, off, {s(rWS,4)}, s{t3} sc1", "pub0")
            k("s_mov_b64 exec, -1")
            stamp("stats")
        o.append(publish)
        return o

    def late_setup(full):
        o = []
        e = lambda text: o.extend(ops_of(text))
        g = lambda text: o.append((text, None))
        P0, P1, P2 = TM + 12, TM + 13, TM + 14
        if full:
            g(srd(rW1, pW1, 512 * 3584))
        g(f"s_and_b32 s3, s{sW}, 1\ns_mul_i32 s{sWB}, s3, {32*3584}\ns_lshl_b32 s3, s{sG}, 8\ns_add_u32 s{sWB}, s{sWB}, s3")
        e(f"v_lshrrev_b32 {v(P0)}, 3, {v(L)}\nv_and_b32 {v(P1)}, 7, {v(L)}\nv_bfe_u32 {v(P2)}, {v(L)}, 4, 1\nv_lshlrev_b32 {v(P2)}, 2, {v(P2)}")
        e(f"v_xor_b32 {v(P1)}, {v(P1)}, {v(P2)}\nv_lshlrev_b32 {v(P1)}, 4, {v(P1)}\nv_mul_u32_u24 {v(P2)}, 3584, {v(P0)}\nv_add_u32 {v(WD)}, {v(P2)}, {v(P1)}")
        for i in (1, 2, 3):
            e(f"v_add_u32 {v(WD+i)}, {i*(8*3584-1024)}, {v(WD)}")
        g(f"s_and_b32 s3, s{sW}, 1\ns_lshl_b32 s3, s3, 6\nv_xor_b32 {v(P1)}, s3, {v(P1)}")
        e(f"v_lshl_add_u32 {v(W2D)}, {v(P0)}, 10, {v(P1)}")
        for i in (1, 2, 3):
            e(f"v_add_u32 {v(W2D+i)}, {i*7168}, {v(W2D)}")
        e(f"v_bfe_u32 {v(P0)}, {v(LR)}, 2, 1\nv_lshrrev_b32 {v(P1)}, 3, {v(LR)}\nv_and_b32 {v(P2)}, 3, {v(LR)}")
        e(f"v_lshl_add_u32 {v(P2)}, {v(P1)}, 2, {v(P2)}\nv_lshl_add_u32 {v(TAU)}, {v(P0)}, 4, {v(P2)}")
        for z in (XA + 2, XA + 3, XB + 2, XB + 3, WE + 2, WE + 3, WE + 6, WE + 7, WE + 10, WE + 11):
            e(f"v_mov_b32 {v(z)}, 0")
        g(srd(rW2, pW2, 1792 * 1024)); g(srd(rCR, pCR, 1 << 19)); g(srd(rCI, pCI, 1 << 19)); g(srd(rOUT, pOUT, 4 << 20))
        g(f"s_lshl_b32 s3, s{sG}, 13\ns_add_u32 s{rE}, s{pWS}, s3\ns_addc_u32 s{rE+1}, s{pWS+1}, 0\ns_add_u32 s{rE}, s{rE}, {EG}\ns_addc_u32 s{rE+1}, s{rE+1}, 0\n"
          f"s_mov_b32 s{rE+2}, 8192\ns_mov_b32 s{rE+3}, 0x20000")
        g(f"s_lshr_b32 s3, s{sG}, 3\ns_lshl_b32 s{sM}, s{sC}, 1\ns_or_b32 s{sM}, s{sM}, s3")
        g(f"s_cmp_eq_u32 s{sW}, 3\ns_cselect_b32 s3, 1, 0\ns_lshl_b32 s{sGE}, s{sW}, 2\ns_sub_u32 s{sGE}, s{sGE}, s3\ns_mul_i32 s{sGL}, s{sW}, 3\ns_add_u32 s{sGL}, s{sGL}, s3")
        g(f"s_lshl_b32 s{sAE}, s{sGE}, 13\ns_lshl_b32 s{sAL}, s{sGL}, 13\ns_add_u32 s{sAL}, s{sAL}, 4096\ns_add_u32 s{sAX}, s{sAE}, {6*4096}\ns_add_u32 s3, s{sAL}, 8192\n"
          f"s_cmp_lt_u32 s{sW}, 2\ns_cselect_b32 s{sAX}, s{sAX}, s{sAL}\ns_cselect_b32 s{sAL}, s{sAL}, s3")
        g(f"s_lshl_b32 s3, s{sN}, 7\ns_lshl_b32 s{sBE}, s{sAE}, 4\ns_lshl_b32 s{sBX}, s{sAX}, 4\ns_lshl_b32 s{sBL}, s{sAL}, 4\n"
          f"s_add_u32 s{sBE}, s{sBE}, s3\ns_add_u32 s{sBX}, s{sBX}, s3\ns_add_u32 s{sBL}, s{sBL}, s3")
        g(f"s_lshl_b32 s3, s{sC}, 2\ns_add_u32 s3, s3, s{sW}\ns_mul_i32 s{sAF}, s3, {MT}\ns_add_u32 s{sAF}, s{sAF}, {AF}")
        e(f"v_bfe_u32 {v(P0)}, {v(L)}, 2, 2\nv_and_b32 {v(P1)}, 3, {v(L)}\nv_lshlrev_b32 {v(P1)}, 3, {v(P1)}")
        e(f"v_bfe_u32 {v(P2)}, {v(L)}, 4, 1\nv_lshl_add_u32 {v(P1)}, {v(P2)}, 5, {v(P1)}\nv_lshrrev_b32 {v(P2)}, 1, {v(P0)}\nv_lshl_add_u32 {v(P1)}, {v(P2)}, 6, {v(P1)}")
        e(f"v_lshl_add_u32 {v(P2)}, {v(HF)}, 3, {v(P0)}\nv_lshl_add_u32 {v(W1R)}, {v(P2)}, 7, {v(P1)}\nv_xor_b32 {v(W1R+1)}, 64, {v(W1R)}")
        e(f"v_add_u32 {v(W1R+2)}, {HIGH}, {v(W1R)}\nv_add_u32 {v(W1R+3)}, {HIGH}, {v(W1R+1)}")
        e(f"v_lshl_add_u32 {v(P2)}, {v(HF)}, 2, {v(P0)}\nv_lshl_add_u32 {v(P2)}, {v(P2)}, 7, {v(P1)}\nv_add_u32 {v(W2R)}, s{sW13}, {v(P2)}")
        e(f"v_xor_b32 {v(W2R+1)}, 64, {v(W2R)}\nv_add_u32 {v(W2R+2)}, {HIGH}, {v(W2R)}\nv_add_u32 {v(W2R+3)}, {HIGH}, {v(W2R+1)}")
        LRE, LIM, DT, A2, BRV, X0, X1, X2 = range(PL, PL + 8)
        n_early = len(o)
        o.append(W(vm="par2"))
        e(f"v_lshlrev_b32 {v(LRE)}, 16, {v(LRE)}\nv_lshlrev_b32 {v(LIM)}, 16, {v(LIM)}\nv_lshlrev_b32 {v(DT)}, 16, {v(DT)}\nv_lshlrev_b32 {v(DSK)}, 16, {v(DSK)}")
        e(f"v_mul_f32 {v(DT)}, {LOG2E:#x}, {v(DT)}\nv_exp_f32 {v(DT)}, {v(DT)}\nv_cvt_pk_bf16_f32 {v(DT)}, {v(DT)}, {v(DT)}\nv_and_b32 {v(DT)}, 0xffff0000, {v(DT)}")
        e(f"v_mul_f32 {v(A2)}, {v(DT)}, {v(LRE)}\nv_mul_f32 {v(BRV)}, {v(DT)}, {v(LIM)}\nv_mul_f32 {v(A2)}, {LOG2E:#x}, {v(A2)}\nv_mul_f32 {v(BRV)}, 0.15915494, {v(BRV)}")
        def cpow(n, dr, di):
            e(f"v_mul_f32 {v(X0)}, {n}, {v(A2)}\nv_mul_f32 {v(X1)}, {n}, {v(BRV)}\nv_exp_f32 {v(X0)}, {v(X0)}\nv_fract_f32 {v(X1)}, {v(X1)}")
            e(f"v_cos_f32 {v(dr)}, {v(X1)}\nv_sin_f32 {v(di)}, {v(X1)}\nv_mul_f32 {v(dr)}, {v(dr)}, {v(X0)}\nv_mul_f32 {v(di)}, {v(di)}, {v(X0)}")
        cpow("1.0", LAR, LAI); cpow("0x41800000", L16R, L16I); cpow("0x43800000", L2R, L2I)
        g(f"s_lshl_b32 s3, s{sW}, 1\nv_add_u32 {v(X2)}, s3, {v(HF)}")
        e(f"v_lshlrev_b32 {v(X2)}, 4, {v(X2)}\nv_cvt_f32_u32 {v(X2)}, {v(X2)}")
        cpow(v(X2), PWR, PWI)
        g(f"s_lshl_b32 s3, s{sW}, 2\nv_add_u32 {v(X2)}, s3, {v(HF)}")
        e(f"v_lshlrev_b32 {v(X2)}, 7, {v(X2)}\nv_cvt_f32_u32 {v(X2)}, {v(X2)}")
        cpow(v(X2), SCRR, SCI)
        e(f"v_sub_f32 {v(NLAI)}, 0, {v(LAI)}\nv_sub_f32 {v(NL16I)}, 0, {v(L16I)}")
        e(f"v_mul_f32 {v(X0)}, {v(LRE)}, {v(LRE)}\nv_fmac_f32 {v(X0)}, {v(LIM)}, {v(LIM)}\nv_rcp_f32 {v(X0)}, {v(X0)}\nv_subrev_f32 {v(X1)}, 1.0, {v(LAR)}")
        e(f"v_mul_f32 {v(CFR)}, {v(X1)}, {v(LRE)}\nv_mul_f32 {v(NCFI)}, {v(X1)}, {v(LIM)}\nv_add_f32 {v(X0)}, {v(X0)}, {v(X0)}")
        e(f"v_fmac_f32 {v(CFR)}, {v(LAI)}, {v(LIM)}\nv_fmac_f32 {v(NCFI)}, {v(NLAI)}, {v(LRE)}")
        e(f"v_mul_f32 {v(CFR)}, {v(CFR)}, {v(X0)}\nv_mul_f32 {v(NCFI)}, {v(NCFI)}, {v(X0)}\nv_sub_f32 {v(NCFR)}, 0, {v(CFR)}")
        e(f"v_mul_f32 {v(T)}, {v(CFR)}, {v(LAR)}\nv_mul_f32 {v(T+16)}, {v(CFR)}, {v(LAI)}\nv_fmac_f32 {v(T)}, {v(NCFI)}, {v(LAI)}\nv_fma_f32 {v(T+16)}, -{v(NCFI)}, {v(LAR)}, {v(T+16)}")
        for i in range(1, 16):
            e(f"v_mul_f32 {v(T+i)}, {v(T+i-1)}, {v(LAR)}\nv_mul_f32 {v(T+16+i)}, {v(T+15+i)}, {v(LAR)}")
            e(f"v_fmac_f32 {v(T+i)}, {v(T+15+i)}, {v(NLAI)}\nv_fmac_f32 {v(T+16+i)}, {v(T+i-1)}, {v(LAI)}")
        return o, n_early

    GS, GX, GA = TM, TM + 2, TM + 4

    def gran_loads(full):
        ops = [(f"s_lshr_b32 s{t2}, s{sXB}, 7\ns_add_u32 s{t2}, s{t2}, {STATS}\nv_lshlrev_b32 {v(GA)}, 3, {v(TAU)}", None),
               (f"buffer_load_dwordx2 {v(GS,2)}, {v(GA)}, {s(rWS,4)}, s{t2} offen sc1", "gran"),
               (f"s_lshl_b32 s{t2}, s{sC}, 7\ns_add_u32 s{t2}, s{t2}, {XID}\nv_and_b32 {v(GA)}, 15, {v(L)}\nv_lshlrev_b32 {v(GA)}, 3, {v(GA)}", None),
               (f"buffer_load_dwordx2 {v(GX,2)}, {v(GA)}, {s(rWS,4)}, s{t2} offen sc1", "gran"),
               (f"s_lshl_b32 s{t2}, s{sG}, 8\ns_add_u32 s{t2}, s{t2}, {CS + 1792*8}\nv_lshlrev_b32 {v(GA)}, 12, {v(HF)}\nv_lshl_add_u32 {v(GA)}, {v(LR)}, 3, {v(GA)}", None),
               (f"buffer_load_dwordx2 {v(WE+8,2)}, {v(GA)}, {s(rWS,4)}, s{t2} offen sc1", "gran")]
        return ops

    def fcs_loads():
        return [(f"s_lshl_b32 s{t2}, s{sG}, 10\ns_add_u32 s{t2}, s{t2}, {CS}\nv_lshlrev_b32 {v(TM+18)}, 3, {v(L)}", None),
                (f"buffer_load_dwordx2 {v(WE,2)}, {v(TM+18)}, {s(rWS,4)}, s{t2} offen sc1", "fcs"),
                (f"buffer_load_dwordx2 {v(WE+4,2)}, {v(TM+18)}, {s(rWS,4)}, s{t2} offen offset:512 sc1", "fcs")]

    cold = []
    def spin_check(name, tag, mismatch, reload):
        again, ok = k.label(name + "_again"), k.label(name + "_ok")
        k.wait(vm=tag)
        k(mismatch)
        k(f"s_mov_b32 s{sCNT}, 0\ns_nop 0\ns_cbranch_vccnz {again}")
        k(ok + ":")
        loads = "\n".join(op[0] for op in reload)
        cold.append(f"{again}:\n{loads}\ns_waitcnt vmcnt(0)\n{mismatch}\ns_add_u32 s{sCNT}, s{sCNT}, 1\ns_cmp_gt_u32 s{sCNT}, {SPIN}\n"
                    f"s_cbranch_scc1 {ok}\ns_cbranch_vccnz {again}\ns_branch {ok}")

    def tags_differ(regs, tmp):
        t = f"v_xor_b32 {v(tmp)}, s{sTAG}, {v(regs[0])}\n"
        for r in regs[1:]:
            t += f"v_xor_b32 {v(tmp+1)}, s{sTAG}, {v(r)}\nv_or_b32 {v(tmp)}, {v(tmp)}, {v(tmp+1)}\n"
        return t + f"v_cmp_ne_u32 vcc, 0, {v(tmp)}"

    def gran_check():
        spin_check("gran", "gran", tags_differ([GS + 1, GX + 1, WE + 9], GA), gran_loads(True))
        k(f"v_cmp_ne_u32 vcc, s{sXCC}, {v(GX)}")
        k(f"v_and_b32 {v(GA)}, 0xffff, {v(GS)}\nv_and_b32 {v(GA+1)}, 0xffff0000, {v(GS)}\nv_lshlrev_b32 {v(MF)}, 16, {v(GS)}")
        k(f"s_cmp_eq_u64 vcc, 0\ns_cselect_b32 s{sLOC}, 1, 0")
        k(f"v_rcp_f32 {v(RS)}, {v(GA+1)}\nv_xor_b32 {v(GA)}, 0x8000, {v(GA)}\nv_lshrrev_b32 {v(GA+1)}, 16, {v(GS)}\nv_lshl_or_b32 {v(GA)}, {v(GA)}, 16, {v(GA)}")
        k(f"v_cndmask_b32 {v(XA)}, {v(GA)}, 0, {s(sHI,2)}\nv_cndmask_b32 {v(XA+1)}, {v(GA+1)}, 0, {s(sHI,2)}")
        k(f"v_cndmask_b32 {v(XB)}, 0, {v(GA)}, {s(sHI,2)}\nv_cndmask_b32 {v(XB+1)}, 0, {v(GA+1)}, {s(sHI,2)}\nv_mov_b32 {v(WE+9)}, 0")
        k(f"s_lshr_b32 s3, s{sW12}, 5\ns_add_u32 s3, s3, {SCR}\nv_lshlrev_b32 {v(GA)}, 9, {v(HF)}\nv_lshl_add_u32 {v(GA)}, {v(TAU)}, 2, {v(GA)}\nv_add_u32 {v(GA)}, s3, {v(GA)}")
        k(f"v_lshlrev_b32 {v(GA+2)}, 6, {v(HF)}\nv_add_u32 {v(GA+2)}, s3, {v(GA+2)}")
        mfma(SS, v(XA, 4), v(WE + 8, 4)); mfma(SS + 16, v(XB, 4), v(WE + 8, 4))
        k(f"v_cndmask_b32 {v(GA+1)}, {v(RS)}, {v(MF)}, {s(sHI,2)}\nv_mul_f32 {v(C1)}, {LOG2E:#x}, {v(RS)}\nv_mul_f32 {v(M2RS)}, -2.0, {v(RS)}")

    def stats_table():
        k(f"ds_write_b32 {v(GA)}, {v(GA+1)}", "stw")
        for q in range(4):
            k(f"ds_read_b128 {v(RSV+4*q,4)}, {v(GA+2)} offset:{q*16}", "rsv")

    def weave(mem, val):
        n = sum(1 for op in mem if op[1] is not None)
        for m, c in zip(spread_mem(mem, n), spread(val, n)):
            run(m); run(c)

    def pass_a(full, pfx, params):
        def reads(si):
            stg, j = divmod(si, 4)
            if j == 0:
                k.wait(vm=f"x{stg}")
                if stg in (2, 6):
                    for r in range(XR, XR + 4):
                        k(f"v_add_u32 {v(r)}, {(0x10000 if stg == 6 else 0xffff0000):#x}, {v(r)}")
            k(f"ds_read_b128 {a(4*si,4)}, {v(XR+j)} offset:{(XSLOT[stg] % 4)*16384}", f"pa{si}")
            for c in range(2):
                k(f"ds_read_b128 {a(FR+8*(si%4)+4*c,4)}, {v(BR+(si&7))} offset:{(si>>3)*256 + c*32768}", f"pa{si}")
        mem = sum((x_ops(sg) for sg in range(npre, 8)), []) + gran_loads(full)
        if full:
            mem += sum((w1_ops(0, u) for u in range(4)), [])
        mm = spread_mem(mem, 64 if full else 50) + [[]] * 14
        first = lambda tag: min(i for i, g in enumerate(mm) for op in g if op[1] == tag)
        assert first("x6") >= 7 and first("x7") >= 15 and (not full or all(first(f"w1_0_{u}") >= 23 + 8 * u for u in range(4)))
        val = spread(params, 62) + [[]] * 2
        k.wait(vm="bm")
        k("s_barrier")
        stamp(f"{pfx}bm")
        reads(0); reads(1)
        for si in range(32):
            stg, j = divmod(si, 4)
            for c in range(2):
                k.wait(lg=f"pa{si}")
                mfma(SS + 16 * c, a(4 * si, 4), a(FR + 8 * (si % 4) + 4 * c, 4), "0" if si == 0 else None)
                if c == 0 and si + 2 < 32:
                    reads(si + 2)
                run(mm[2 * si + c]); run(val[2 * si + c])
            if si == 15:
                stamp(f"{pfx}half")

    def scan_ops():
        o = [W(lg="rsv")]
        for r in range(16):
            o += ops_of(f"v_mul_f32 {v(SS+r)}, {v(SS+r)}, {v(RSV+r)}\nv_mul_f32 {v(SS+16+r)}, {v(SS+16+r)}, {v(RSV+r)}")
        for r in range(1, 16):
            o += ops_of(f"v_fmac_f32 {v(SS+r)}, {v(LAR)}, {v(SS+r-1)}\nv_fmac_f32 {v(SS+16+r)}, {v(LAR)}, {v(SS+15+r)}\n"
                        f"v_fmac_f32 {v(SS+r)}, {v(NLAI)}, {v(SS+15+r)}\nv_fmac_f32 {v(SS+16+r)}, {v(LAI)}, {v(SS+r-1)}")
        o.append((f"s_lshr_b32 s3, s{sW12}, 3\ns_add_u32 s3, s3, {SCR_EX}\nv_lshlrev_b32 {v(GA)}, 3, {v(L)}\nv_add_u32 {v(GA)}, s3, {v(GA)}", None))
        o.append((f"ds_write2_b32 {v(GA)}, {v(SS+15)}, {v(SS+31)} offset0:0 offset1:1", "exw"))
        o += ops_of(f"v_lshlrev_b32 {v(GA)}, 3, {v(LR)}\nv_add_u32 {v(GA)}, {SCR_EX}, {v(GA)}")
        return o

    def chain_ops():
        o = [(f"ds_read_b64 {v(EK+2*q,2)}, {v(GA)} offset:{q*256}", f"ek{q}") for q in range(8)]
        SG = TM + 5
        o.append((f"s_lshl_b32 s3, s{sW}, 1\nv_add_u32 {v(SG)}, s3, {v(HF)}", None))
        o += ops_of(f"v_mov_b32 {v(PR)}, 0\nv_mov_b32 {v(PI)}, 0\nv_mov_b32 {v(TM+1)}, s{sTAG}\nv_mov_b32 {v(TM+3)}, s{sTAG}")
        o.append(W(lg="ek3"))
        for q in range(1, 8):
            r, i = EK + 2 * q, EK + 2 * q + 1
            dr, di = (TM, TM + 2) if q == 7 else (r, i)
            if q == 4:
                o.append(W(lg="ek7"))
            o += ops_of(f"v_cmp_eq_u32 vcc, {q}, {v(SG)}\nv_fmac_f32 {v(r)}, {v(L16R)}, {v(r-2)}\nv_fmac_f32 {v(i)}, {v(L16R)}, {v(i-2)}\n"
                        f"v_cndmask_b32 {v(PR)}, {v(PR)}, {v(r-2)}, vcc\nv_cndmask_b32 {v(PI)}, {v(PI)}, {v(i-2)}, vcc\n"
                        f"v_fma_f32 {v(dr)}, {v(NL16I)}, {v(i-2)}, {v(r)}\nv_fma_f32 {v(di)}, {v(L16I)}, {v(r-2)}, {v(i)}")
        o.append((f"s_cmp_eq_u32 s{sW}, 3\ns_cselect_b32 s3, 0, 0x10000\nv_lshlrev_b32 {v(SG)}, 13, {v(HF)}\nv_add3_u32 {v(SG)}, {v(SG)}, {v(L16)}, s3\ns_lshl_b32 s3, s{sC}, 9\n"
                  f"buffer_store_dwordx4 {v(TM,4)}, {v(SG)}, {s(rE,4)}, s3 offen sc1", "epub"))
        return o

    def coef_ops():
        o = []
        for r in range(16):
            tt = TM + 16 + (r & 1)
            o += ops_of(f"v_mul_f32 {v(tt)}, {v(SS+r)}, {v(NCFI)}\nv_mul_f32 {v(SS+r)}, {v(SS+r)}, {v(CFR)}\n"
                        f"v_fmac_f32 {v(SS+r)}, {v(SS+16+r)}, {v(NCFI)}\nv_fma_f32 {v(SS+16+r)}, {v(SS+16+r)}, {v(NCFR)}, {v(tt)}")
        return o

    def xs_ops():
        ops = [(f"s_lshl_b32 s{t2}, s{sM}, 1\ns_lshr_b32 s3, s{sW}, 1\ns_add_u32 s{t2}, s{t2}, s3\ns_lshl_b32 s{t2}, s{t2}, 15\n"
                f"s_lshl_b32 s3, s{sN}, 7\ns_add_u32 s{t2}, s{t2}, s3\ns_and_b32 s3, s{sW}, 1\ns_lshl_b32 s3, s3, 6\ns_add_u32 s{t2}, s{t2}, s3\n"
                f"v_lshlrev_b32 {v(TM+19)}, 14, {v(HF)}\nv_lshl_add_u32 {v(TM+19)}, {v(LR)}, 1, {v(TM+19)}", None)]
        for r in range(16):
            pre = f"s_add_u32 s{t2}, s{t2}, 4096\n" if r and r % 4 == 0 else ""
            ops.append((pre + f"buffer_load_ushort {v(XS+r)}, {v(TM+19)}, {s(rX,4)}, s{t2} offen offset:{(r&3)*1024}", "xs"))
        return ops

    def mish_ops(t, packed=False):
        ops = []
        TA, TB = MI, MI + 4
        bc = "op_sel_hi:[1,0]"
        for e in range(2):
            PK = MI + 8 + 4 * e
            for h in range(2):
                R = [ACC + 16 * (t & 1) + 8 * e + 4 * h + i for i in range(4)]
                one = lambda f: [(f(i), None) for i in range(4)]
                two = lambda f: [(f(i), None) for i in (0, 2)]
                if packed:
                    ops += two(lambda i: f"v_pk_mul_f32 {v(TA+i,2)}, {v(R[i],2)}, {v(C1,2)} op_sel_hi:[1,0]")
                    ops += one(lambda i: f"v_exp_f32 {v(TA+i)}, {v(TA+i)}")
                    ops += two(lambda i: f"v_pk_add_f32 {v(TA+i,2)}, {v(TA+i,2)}, 1.0 op_sel_hi:[1,0]")
                    ops += two(lambda i: f"v_pk_fma_f32 {v(TA+i,2)}, {v(TA+i,2)}, {v(TA+i,2)}, 1.0 op_sel_hi:[1,1,0]")
                    ops += one(lambda i: f"v_rcp_f32 {v(TA+i)}, {v(TA+i)}")
                    ops += two(lambda i: f"v_pk_fma_f32 {v(TA+i,2)}, {v(TA+i,2)}, {v(M2RS,2)}, {v(C1,2)} op_sel:[0,0,1] op_sel_hi:[1,0,1]")
                    ops += two(lambda i: f"v_pk_mul_f32 {v(TA+i,2)}, {v(R[i],2)}, {v(TA+i,2)}")
                else:
                    ops += one(lambda i: f"v_mul_f32 {v(TA+i)}, {v(R[i])}, {v(C1)}")
                    ops += one(lambda i: f"v_exp_f32 {v(TA+i)}, {v(TA+i)}")
                    ops += one(lambda i: f"v_add_f32 {v(TA+i)}, 1.0, {v(TA+i)}")
                    ops += one(lambda i: f"v_fma_f32 {v(TA+i)}, {v(TA+i)}, {v(TA+i)}, 1.0")
                    ops += one(lambda i: f"v_rcp_f32 {v(TA+i)}, {v(TA+i)}")
                    ops += one(lambda i: f"v_fma_f32 {v(TA+i)}, {v(TA+i)}, {v(M2RS)}, {v(RS)}")
                    ops += one(lambda i: f"v_mul_f32 {v(TA+i)}, {v(R[i])}, {v(TA+i)}")
                ops += [(f"v_cvt_pk_bf16_f32 {v(PK+2*h+i)}, {v(TA+2*i)}, {v(TA+2*i+1)}", None) for i in range(2)]
            pre = f"s_add_u32 s{sA0}, s{sA0}, 4096\n" if t == 2 and e == 0 else ""
            ops.append((pre + f"buffer_store_dwordx4 {v(PK,4)}, {v(L16)}, {s(rWS,4)}, s{sA0} offen offset:{(2*(t&1)+e)*1024} {st}", "act"))
        return ops

    EA, EX0, EX1, E0 = TM + 8, TM + 9, TM + 10, TM
    def e_loads():
        return [(f"buffer_load_dwordx4 {v(E0,4)}, {v(EA)}, {s(rE,4)}, 0 offen sc1", "eg"),
                (f"buffer_load_dwordx4 {v(E0+4,4)}, {v(EA+3)}, {s(rE,4)}, 0 offen sc1", "eg")]

    def e_issue():
        return [(f"s_lshl_b32 s3, s{sW}, 2\ns_sub_u32 s3, s{sC}, s3\ns_sub_u32 s3, s3, 1\nv_sub_u32 {v(EA)}, s3, {v(HF)}\nv_subrev_u32 {v(EA+3)}, 2, {v(EA)}\n"
                 f"v_ashrrev_i32 {v(EX0)}, 31, {v(EA)}\nv_ashrrev_i32 {v(EX1)}, 31, {v(EA+3)}\nv_bfi_b32 {v(EX0)}, {v(EX0)}, 0, s{sTAG}\nv_bfi_b32 {v(EX1)}, {v(EX1)}, 0, s{sTAG}\n"
                 f"v_lshlrev_b32 {v(EA+4)}, 4, {v(LR)}\nv_lshl_add_u32 {v(EA)}, {v(EA)}, 9, {v(EA+4)}\nv_lshl_add_u32 {v(EA+3)}, {v(EA+3)}, 9, {v(EA+4)}", None)] + e_loads()

    HA, HB = TM + 18, TM + 19
    PA, PV = BI, BI + 1

    def flag_publish(base, tag):
        k(f"s_lshl_b32 s{t2}, s{sC}, 4\ns_add_u32 s{t2}, s{t2}, s{sG}\ns_lshl_b32 s{t2}, s{t2}, 2\ns_add_u32 s{t2}, s{t2}, s{sW}\ns_lshl_b32 s{t2}, s{t2}, 7\ns_add_u32 s{t2}, s{t2}, {base}")
        k(f"v_mov_b32 {v(MF)}, s{sTAG}")
        k.wait(vm=tag)
        k("s_mov_b64 exec, 1")
        text = f"buffer_store_dword {v(MF)}, off, {s(rWS,4)}, s{t2}"
        if mode == "global":
            k(text + " sc1", "flag")
        else:
            far, done = k.label("far"), k.label("flagged")
            k(f"s_cmp_eq_u32 s{sLOC}, 0\ns_cbranch_scc1 {far}")
            k(text, "flag")
            k(f"s_branch {done}\n{far}:")
            untracked(f"buffer_wbl2 sc1\ns_waitcnt vmcnt(0)\n{text} sc1")
            k(done + ":")
        k("s_mov_b64 exec, -1")

    def poll_load(tag):
        return [(f"buffer_load_dword {v(PV)}, {v(PA)}, {s(rWS,4)}, s{t3} offen sc1", tag)]

    def poll_base(base):
        return f"s_lshl_b32 s3, s{sC}, 5\ns_lshr_b32 s{t3}, s{sG}, 3\ns_add_u32 s3, s3, s{t3}\ns_lshl_b32 s3, s3, 8\ns_add_u32 s{t3}, s3, {base}"

    def poll1_ops():
        return [(f"v_bfe_u32 {v(PA)}, {v(L)}, 1, 2\nv_add_u32 {v(PA)}, s{sGE}, {v(PA)}\nv_min_u32 {v(PA)}, 13, {v(PA)}\nv_and_b32 {v(PV)}, 1, {v(L)}\n"
                 f"v_lshl_add_u32 {v(PA)}, {v(PA)}, 2, {v(PV)}\nv_lshlrev_b32 {v(PA)}, 7, {v(PA)}\n" + poll_base(FLA), None)] + poll_load("poll1")

    def poll2_ops():
        return [(f"s_lshl_b32 s3, s{sW}, 2\nv_mov_b32 {v(PA)}, s{sGL}\nv_mov_b32 {v(PV)}, s3\nv_and_b32 {v(MF)}, 8, {v(L)}\nv_cmp_eq_u32 vcc, 0, {v(MF)}\n"
                 f"v_bfe_u32 {v(MF)}, {v(L)}, 1, 2\nv_cndmask_b32 {v(PA)}, {v(PV)}, {v(PA)}, vcc\nv_and_b32 {v(PV)}, 1, {v(L)}\nv_add_u32 {v(PA)}, {v(PA)}, {v(MF)}\n"
                 f"v_lshl_add_u32 {v(PA)}, {v(PA)}, 2, {v(PV)}\nv_lshlrev_b32 {v(PA)}, 7, {v(PA)}\n" + poll_base(FLB), None)] + poll_load("poll2")

    def carry_write():
        Y0, Y1 = TM + 12, TM + 13
        mis = (f"v_xor_b32 {v(Y0)}, {v(E0+1)}, {v(EX0)}\nv_xor_b32 {v(Y1)}, {v(E0+3)}, {v(EX0)}\nv_or_b32 {v(Y0)}, {v(Y0)}, {v(Y1)}\n"
               f"v_xor_b32 {v(Y1)}, {v(E0+5)}, {v(EX1)}\nv_or_b32 {v(Y0)}, {v(Y0)}, {v(Y1)}\nv_xor_b32 {v(Y1)}, {v(E0+7)}, {v(EX1)}\nv_or_b32 {v(Y0)}, {v(Y0)}, {v(Y1)}\n"
               f"v_cmp_ne_u32 vcc, 0, {v(Y0)}")
        spin_check("e", "eg", mis, e_loads())
        k(f"v_fmac_f32 {v(E0)}, {v(L2R)}, {v(E0+4)}\nv_fmac_f32 {v(E0+2)}, {v(L2R)}, {v(E0+6)}")
        k(f"v_fma_f32 {v(E0)}, -{v(L2I)}, {v(E0+6)}, {v(E0)}\nv_fmac_f32 {v(E0+2)}, {v(L2I)}, {v(E0+4)}")
        k(f"v_mul_f32 {v(Y0)}, {v(SCRR)}, {v(E0)}\nv_mul_f32 {v(Y1)}, {v(SCRR)}, {v(E0+2)}")
        k(f"v_fma_f32 {v(Y0)}, -{v(SCI)}, {v(E0+2)}, {v(Y0)}\nv_fmac_f32 {v(Y1)}, {v(SCI)}, {v(E0)}")
        k(f"s_lshr_b32 s3, s{sW12}, 3\ns_add_u32 s3, s3, {SCR_CX}\nv_lshlrev_b32 {v(HA)}, 3, {v(L)}\nv_add_u32 {v(HA)}, s3, {v(HA)}")
        k(f"ds_write_b64 {v(HA)}, {v(Y0,2)}", "cxw")
        k(f"v_lshlrev_b32 {v(HA)}, 3, {v(LR)}\nv_add_u32 {v(HA)}, {SCR_CX}, {v(HA)}")
        k.wait(lg="all")
        k("s_barrier")
        for q in range(8):
            k(f"ds_read_b64 {v(TM+2*q,2)}, {v(HA)} offset:{q*256}", "cxr")

    def fixup(between=(), mem=()):
        mem = list(mem)
        P2 = TM + 16
        k(f"s_add_u32 s3, s{sW12}, {SCR_HT}\nv_lshlrev_b32 {v(HA)}, 5, {v(HF)}\nv_lshl_add_u32 {v(HA)}, {v(LR)}, 6, {v(HA)}\nv_add_u32 {v(HA)}, s3, {v(HA)}")
        k(f"v_bfe_u32 {v(HB)}, {v(L)}, 2, 2\nv_lshl_add_u32 {v(HB)}, {v(HF)}, 3, {v(HB)}\nv_lshlrev_b32 {v(HB)}, 6, {v(HB)}")
        k(f"v_and_b32 {v(P2)}, 1, {v(L)}\nv_lshl_add_u32 {v(HB)}, {v(P2)}, 5, {v(HB)}\nv_bfe_u32 {v(P2)}, {v(L)}, 1, 1\nv_lshl_add_u32 {v(HB)}, {v(P2)}, 3, {v(HB)}")
        k(f"v_bfe_u32 {v(P2)}, {v(L)}, 4, 1\nv_lshl_add_u32 {v(HB)}, {v(P2)}, 4, {v(HB)}\nv_add_u32 {v(HB)}, s3, {v(HB)}")
        k.wait(lg="cxr")
        for step in (8, 4, 2):
            for q in range(0, step, 2):
                k(f"v_add_f32 {v(TM+q)}, {v(TM+q)}, {v(TM+q+step)}\nv_add_f32 {v(TM+q+1)}, {v(TM+q+1)}, {v(TM+q+step+1)}")
        k(f"v_fmac_f32 {v(PR)}, {v(PWR)}, {v(TM)}\nv_fmac_f32 {v(PI)}, {v(PWR)}, {v(TM+1)}")
        k(f"v_fma_f32 {v(PR)}, -{v(PWI)}, {v(TM+1)}, {v(PR)}\nv_fmac_f32 {v(PI)}, {v(PWI)}, {v(TM)}")
        NS = TM + 16
        k(f"v_mov_b32 {v(NS)}, {v(PR)}\nv_sub_f32 {v(NS+1)}, 0, {v(PI)}\nv_sub_f32 {v(PR)}, 0, {v(PR)}")
        for qq in range(4):
            comp, half = qq >> 1, qq & 1
            for r in range(8 * half, 8 * half + 8, 2 if pk else 1):
                d = SS + 16 * comp + r
                if pk:
                    f1 = (f"{v(NS,2)}", "0") if comp == 0 else (f"{v(NS,2)}", "1")
                    k(f"v_pk_fma_f32 {v(d,2)}, {v(T+r,2)}, {v(NS,2)}, {v(d,2)} op_sel:[0,{comp},0] op_sel_hi:[1,{comp},1]")
                    if comp == 0:
                        k(f"v_pk_fma_f32 {v(d,2)}, {v(T+16+r,2)}, {v(NS,2)}, {v(d,2)} op_sel:[0,1,0] op_sel_hi:[1,1,1]")
                    else:
                        k(f"v_pk_fma_f32 {v(d,2)}, {v(T+16+r,2)}, {v(NS,2)}, {v(d,2)} op_sel:[0,0,0] op_sel_hi:[1,0,1] neg_lo:[0,1,0] neg_hi:[0,1,0]")
                else:
                    k(f"v_fmac_f32 {v(d)}, {v(T+r)}, {v(NS+comp)}\nv_fmac_f32 {v(d)}, {v(T+16+r)}, {v(PR if comp else NS+1)}")
            for q in range(4):
                k(f"v_cvt_pk_bf16_f32 {v(TM+4*qq+q)}, {v(SS+8*qq+2*q)}, {v(SS+8*qq+2*q+1)}")
            k(f"ds_write_b128 {v(HA)}, {v(TM+4*qq,4)} offset:{comp*2048 + half*16}", f"htw{comp}")
            run(mem[2*qq:2*qq+2])
        k(f"s_lshr_b32 s3, s{sG}, 2\ns_lshl_b32 s3, s3, 3\ns_and_b32 s{t2}, s{sG}, 3\ns_add_u32 s3, s3, s{t2}\ns_lshl_b32 s3, s3, 11\ns_add_u32 s{t2}, s{sAF}, s3\ns_add_u32 s{t2}, s{t2}, {112*1024}")
        for f in range(4):
            for rd in range(2):
                k(f"ds_read_b64_tr_b16 {v(SS+4*f+2*rd,2)}, {v(HB)} offset:{f*1024 + rd*256}", f"htr{f}")
        run(between)
        for f in range(4):
            k.wait(lg=f"htr{f}")
            if f == 2:
                k(f"s_add_u32 s{t2}, s{t2}, 8192")
            k(f"buffer_store_dwordx4 {v(SS+4*f,4)}, {v(L16)}, {s(rWS,4)}, s{t2} offen offset:{(f&1)*1024} {st}", "hst")

    k(f"s_cmp_ge_u32 s{sG}, 14\ns_cbranch_scc1 L_light")
    snap0 = k.snapshot()
    def setups(full):
        setup, n_early = late_setup(full)
        return early_setup() + setup[:n_early], setup[n_early:]

    addr, params = setups(True)
    run(x_ops(0)); par_loads()
    weave(b_ops() + sum((x_ops(sg) for sg in range(1, npre)), []), addr + row_stats())
    pass_a(True, "", params)
    stamp("passA")
    gran_check()
    stamp("gran")

    LEAD = 6
    def w_reads(t, si):
        b = FR + 4 * ((32 * t + si) % 8)
        return [(f"ds_read_b64_tr_b16 {a(b+2*rd,2)}, {v(W1R+(2 if t >= 2 else 0)+(t&1))} offset:{si*2048 + rd*512}", f"wf{t}_{si}") for rd in range(2)]

    def fcs_check():
        spin_check("fcs", "fcs", tags_differ([WE + 1, WE + 5], TM + 14), fcs_loads())
        k(f"v_mov_b32 {v(WE+1)}, {v(BI)}\nv_mov_b32 {v(WE+5)}, {v(BI+1)}\ns_lshl_b32 s3, s{sG}, 13\ns_add_u32 s{sA0}, s{sAF}, s3")

    def bar(**kw):
        def f():
            k.wait(**kw)
            k("s_barrier")
        return f

    def pf_ops():
        if not l2pf:
            return [("s_nop 0", "none")]
        P, Q = TM + 16, TM + 17
        rows = mapping != "x8g4"
        o = []
        for h in range(2 if rows else 1):
            col = f"s_mov_b32 s3, {h*512}" if rows else f"s_and_b32 s3, s{sXD}, 1\ns_lshl_b32 s3, s3, 9"
            o += [(f"v_lshrrev_b32 {v(P)}, 2, {v(L)}\nv_min_u32 {v(P)}, 13, {v(P)}\nv_and_b32 {v(Q)}, 3, {v(L)}\nv_lshlrev_b32 {v(Q)}, 7, {v(Q)}\nv_lshl_add_u32 {v(P)}, {v(P)}, 10, {v(Q)}\n"
                   f"s_lshl_b32 s{t2}, s{sJ}, 2\ns_add_u32 s{t2}, s{t2}, s{sW}\ns_mul_i32 s{t2}, s{t2}, {14*1024}\n{col}\ns_add_u32 s{t2}, s{t2}, s3", None),
                  (f"buffer_load_dword a255, {v(P)}, {s(rW2,4)}, s{t2} offen", "pf2")]
        half = "" if rows else f"s_and_b32 s3, s{sXD}, 1\ns_lshl_b32 s3, s3, 18\ns_add_u32 s{t2}, s{t2}, s3\n"
        o += [(f"s_lshl_b32 s{t2}, s{sJ}, 2\ns_add_u32 s{t2}, s{t2}, s{sW}\ns_lshl_b32 s{t2}, s{t2}, {12 if rows else 11}\n{half}"
               f"v_and_b32 {v(P)}, {31 if rows else 15}, {v(L)}\nv_lshlrev_b32 {v(P)}, 7, {v(P)}", None),
              (f"buffer_load_dword a255, {v(P)}, {s(rCR,4)}, s{t2} offen", "pf2"),
              (f"buffer_load_dword a255, {v(P)}, {s(rCI,4)}, s{t2} offen", "pf2")]
        return o

    def stage_reads(b):
        return [W(vm=f"rb{b}")] + [(f"ds_read_b64_tr_b16 {a(RES+32*b+8*j+4*c+2*rd,2)}, {v(W2R+c)} offset:{RING[b] + j*2048 + rd*1024}", f"sr{b}")
                                   for j in range(4) for c in range(2) for rd in range(2)]

    co = coef_ops()
    fill = {0: spread(scan_ops(), 18) + spread(chain_ops() + co[:24], 14),
            1: spread(co[24:], 8) + spread(mish_ops(0), 24),
            2: [[]] + spread(mish_ops(1) + cr_ops(), 31),
            3: [[]] + spread(mish_ops(2), 31)}
    p1 = [w1_ops(1, u) for u in range(4)]
    memf = {0: spread_mem(p1[0] + p1[1] + fcs_loads() + sum(p1[2:p1_split], []), 32),
            1: (spread_mem(sum(p1[p1_split:], []), 10) if p1_split < 4 else [[]] * 10) + spread_mem(pf_ops(), 8) + [[]] * 14,
            2: spread_mem(ring_ops(0) + ring_ops(1), 32),
            3: spread_mem(e_issue(), 4) + [[]] * 8 + spread_mem([W(lg="sr0")] + ring_ops(2), 8) + spread_mem([W(lg="sr1")] + ring_ops(3) + poll1_ops(), 12)}
    ldsf = [[]] * 4 + spread(stage_reads(0), 8) + spread(stage_reads(1), 8) + [[]] * 12
    if "fill" in ablate:
        keep = lambda op: callable(op) or op[1] is not None or "s_" in op[0][:2]
        fill = {t: [[op for op in g if keep(op)] for g in fill[t]] for t in fill}
    if "stores" in ablate:
        fill = {t: [[op if callable(op) or op[1] != "act" else ("s_nop 0", None) for op in g] for g in fill[t]] for t in fill}
    def close0():
        fcs_check()
        mfma(ACC, v(WE, 4), v(XA, 4))

    pre = {(0, 8 - LEAD): bar(vm="w1_0_1"), (0, 16 - LEAD): bar(vm="w1_0_2"), (0, 24 - LEAD): bar(vm="w1_0_3", lg="exw"),
           (1, 4): close0, (1, 32 - LEAD): bar(vm="w1_1_3"), (2, 0): bar(),
           (3, f1_at): lambda: flag_publish(FLA, "act")}
    late = []
    k.wait(vm="w1_0_0")
    k("s_barrier")
    stats_table()
    for si in range(LEAD):
        run(w_reads(0, si))
    for t in range(4):
        for si in range(32):
            if (t, si) in pre:
                pre[(t, si)]()
            k.wait(lg=f"wf{t}_{si | 1}")
            mfma(ACC + 16 * (t & 1), a(FR + 4 * ((32 * t + si) % 8), 4), a(4 * si, 4), "0" if si == 0 else None)
            n = 32 * t + si + LEAD
            if n < 128:
                run(w_reads(*divmod(n, 32)))
            if "mem" in ablate and t in (1, 2):
                late.extend(memf[t][si])
            else:
                run(memf[t][si])
            if t == 3:
                run(ldsf[si])
            run(fill[t][si])
        if t:
            mfma(ACC + 16 * (t & 1), v(WE + 4 * (t >> 1), 4), v(XB if t & 1 else XA, 4))
        if "early" not in ablate:
            stamp(f"tile{t}")
    run(late)
    carry_write()
    stamp("carry")
    m3 = mish_ops(3, pk)
    r4 = ring_ops(4)
    weave(r4[:4], m3[:len(m3) // 2])
    fixup(stage_reads(2) + m3[len(m3) // 2:], r4[4:])
    k("s_branch L_join")
    snap_join = k.snapshot()

    k("L_light:")
    k.restore(snap0)
    k(f"s_lshl_b32 s{sQ}, s{sC}, 1\ns_add_u32 s{sQ}, s{sQ}, s{sG}\ns_sub_u32 s{sQ}, s{sQ}, 14")
    k(f"s_cmp_lt_u32 s{sQ}, 16\ns_cselect_b32 s{rE}, s{pBR}, s{pBI}\ns_cselect_b32 s{rE+1}, s{pBR+1}, s{pBI+1}\ns_mov_b32 s{rE+2}, 0x80000\ns_mov_b32 s{rE+3}, 0x20000")
    k(f"s_and_b32 s{t0}, s{sQ}, 15\ns_lshl_b32 s{t0}, s{t0}, 15\ns_add_u32 s{t0}, s{t0}, s{sW13}")
    for i in range(8):
        if i == 4:
            k(f"s_add_u32 s{t0}, s{t0}, 4096")
        k(f"buffer_load_dwordx4 {v(SS+4*i,4)}, {v(L16)}, {s(rE,4)}, s{t0} offen offset:{(i&3)*1024}", "lb")
    k(srd(rW1, pW1, 512 * 3584))
    k(f"s_min_u32 s{t0}, s{sQ}, 27\ns_lshl_b32 s{t0}, s{t0}, 7\ns_mul_i32 s3, s{sW}, {128*3584}\ns_add_u32 s{t0}, s{t0}, s3")
    k(f"v_lshrrev_b32 {v(TM+16)}, 3, {v(L)}\nv_mul_u32_u24 {v(TM+16)}, 3584, {v(TM+16)}\nv_and_b32 {v(TM+17)}, 7, {v(L)}\nv_lshl_add_u32 {v(TM+16)}, {v(TM+17)}, 4, {v(TM+16)}")
    for i in range(16):
        k(f"buffer_load_dwordx4 {v(ACC+4*i,4)}, {v(TM+16)}, {s(rW1,4)}, s{t0} offen", f"lw{i}")
        k(f"s_add_u32 s{t0}, s{t0}, {8*3584}")
    par_loads()
    addr, params = setups(False)
    run(early_setup()); run(row_stats())
    CA, EL = TM, TM + 8

    def fold8(R):
        for j in range(0, 8, 2):
            k(f"v_permlane32_swap_b32 {v(R+j)}, {v(R+j+1)}")
        for j in range(0, 8, 2):
            k(f"v_add_f32 {v(R+j)}, {v(R+j)}, {v(R+j+1)}")
        k(f"v_permlane16_swap_b32 {v(R)}, {v(R+2)}\nv_permlane16_swap_b32 {v(R+4)}, {v(R+6)}")
        k(f"v_add_f32 {v(R)}, {v(R)}, {v(R+2)}\nv_add_f32 {v(R+4)}, {v(R+4)}, {v(R+6)}")

    def split_publish(R, addr, soff):
        k(f"v_cvt_pk_bf16_f32 {v(R+1)}, {v(R)}, {v(R)}\nv_and_b32 {v(R+1)}, 0xffff0000, {v(R+1)}\nv_sub_f32 {v(R+1)}, {v(R)}, {v(R+1)}")
        k(f"v_cvt_pk_bf16_f32 {v(R)}, {v(R)}, {v(R+1)}\nv_mov_b32 {v(R+1)}, s{sTAG}")
        k(f"buffer_store_dwordx2 {v(R,2)}, {v(addr)}, {s(rWS,4)}, s{soff} offen sc1", "cspub")

    k(f"s_mov_b32 s{t0}, 0x3f803f80")
    for j in range(8):
        k(f"v_mov_b32 {v(CA+j)}, 0")
    k(f"v_bfe_u32 {v(EL)}, {v(L)}, 4, 1\nv_lshl_add_u32 {v(EL)}, {v(EL)}, 1, {v(HF)}")
    k.wait(vm="lb")
    for j in range(4):
        for i in range(8):
            k(f"v_dot2c_f32_bf16 {v(CA+i)}, s{t0}, {v(SS+4*i+j)}")
    fold8(CA)
    for r in (8, 4, 2, 1):
        k(f"v_add_f32_dpp {v(CA)}, {v(CA)}, {v(CA)} row_ror:{r} row_mask:0xf bank_mask:0xf")
        k(f"v_add_f32_dpp {v(CA+4)}, {v(CA+4)}, {v(CA+4)} row_ror:{r} row_mask:0xf bank_mask:0xf")
    k(f"v_and_b32 {v(EL+1)}, 1, {v(L)}\nv_cmp_eq_u32 vcc, 1, {v(EL+1)}\nv_lshl_add_u32 {v(EL+1)}, {v(EL+1)}, 2, {v(EL)}\nv_lshlrev_b32 {v(EL+1)}, 3, {v(EL+1)}")
    k(f"v_cndmask_b32 {v(CA)}, {v(CA)}, {v(CA+4)}, vcc")
    k(f"s_lshl_b32 s{t2}, s{sQ}, 8\ns_lshl_b32 s3, s{sW}, 6\ns_add_u32 s{t2}, s{t2}, s3\ns_add_u32 s{t2}, s{t2}, {CS + 1792*8}")
    split_publish(CA, EL + 1, t2)
    stamp("Lbsum")
    run(x_ops(0))
    k(f"s_mov_b32 s{t2}, 0x00003f80\ns_mov_b32 s{t3}, 0x3f800000")
    for j in range(8):
        k(f"v_mov_b32 {v(CA+j)}, 0")
    for i in range(16):
        k.wait(vm=f"lw{i}")
        for j in range(4):
            k(f"v_dot2c_f32_bf16 {v(CA+2*j)}, s{t2}, {v(ACC+4*i+j)}\nv_dot2c_f32_bf16 {v(CA+2*j+1)}, s{t3}, {v(ACC+4*i+j)}")
    for j in range(8):
        k(f"v_add_f32_dpp {v(CA+j)}, {v(CA+j)}, {v(CA+j)} row_ror:8 row_mask:0xf bank_mask:0xf")
    fold8(CA)
    k(f"v_and_b32 {v(EL+1)}, 7, {v(L)}\nv_lshl_add_u32 {v(EL+1)}, {v(EL+1)}, 3, {v(EL)}\nv_lshlrev_b32 {v(EL+1)}, 2, {v(EL+1)}")
    k(f"s_lshl_b32 s3, s{sW}, 8\ns_add_u32 s3, s3, {HIGH}\nv_add_u32 {v(EL+1)}, s3, {v(EL+1)}")
    k(f"ds_write2_b32 {v(EL+1)}, {v(CA)}, {v(CA+4)} offset0:0 offset1:4", "cw")
    k(f"v_lshlrev_b32 {v(EL+1)}, 2, {v(L)}\nv_add_u32 {v(EL+1)}, {HIGH}, {v(EL+1)}")
    k.wait(lg="all")
    k("s_barrier")
    for j in range(4):
        k(f"ds_read_b32 {v(CA+j)}, {v(EL+1)} offset:{j*256}", "cr")
    k(f"s_min_u32 s{t2}, s{sQ}, 27\ns_lshl_b32 s{t2}, s{t2}, 9\ns_add_u32 s{t2}, s{t2}, {CS}\nv_lshlrev_b32 {v(EL+2)}, 3, {v(L)}")
    k.wait(lg="all")
    k("s_barrier")
    k(f"v_add_f32 {v(CA)}, {v(CA)}, {v(CA+1)}\nv_add_f32 {v(CA+2)}, {v(CA+2)}, {v(CA+3)}\nv_add_f32 {v(CA)}, {v(CA)}, {v(CA+2)}")
    split_publish(CA, EL + 2, t2)
    stamp("Lwsum")
    weave(b_ops() + sum((x_ops(sg) for sg in range(1, npre)), []), addr[len(early_setup()):])
    pass_a(False, "L", params)
    stamp("LpassA")
    gran_check()
    k("s_barrier")
    stats_table()
    weave(pf_ops() + ring_ops(0) + ring_ops(1), scan_ops())
    bar(lg="all")()
    run(chain_ops())
    stamp("Lescan")
    run(e_issue())
    weave(ring_ops(4), coef_ops() + cr_ops())
    run(stage_reads(0)); run(stage_reads(1))
    k.wait(lg="all")
    run(ring_ops(2)); run(ring_ops(3))
    carry_write()
    run(poll1_ops())
    fixup(stage_reads(2))
    k.wait(vm="all", lg="all")

    k("L_join:")
    k.restore(snap_join)
    stamp("stored")
    k(f"s_lshl_b32 s3, s{sM}, 1\ns_lshr_b32 s{t2}, s{sW}, 1\ns_add_u32 s{sA0}, s3, s{t2}\ns_xor_b32 s{sA1}, s{sA0}, 1")
    k(f"s_mul_i32 s{sA0}, s{sA0}, {MT}\ns_mul_i32 s{sA1}, s{sA1}, {MT}\ns_add_u32 s{sA0}, s{sA0}, {AF}\ns_add_u32 s{sA1}, s{sA1}, {AF}")
    spin_check("poll1", "poll1", f"v_cmp_ne_u32 vcc, s{sTAG}, {v(PV)}", poll_load("poll1"))
    stamp("poll")

    def a_ops(b):
        if b < 7:
            src, add = (sAE, b) if b < 3 else (sAX, 0) if b == 3 else (sAL, b - 4)
            head = f"s_add_u32 s3, s{src}, {add*8192}"
        else:
            head = f"s_lshl_b32 s3, s{sW}, 14\ns_add_u32 s3, s3, {(112 + 4*(b-7))*1024}"
        ops = [(head + f"\ns_add_u32 s{t1}, s{sA0}, s3\ns_add_u32 s{t2}, s{sA1}, s3", None)]
        for j in range(4):
            for m in range(2):
                ops.append((f"buffer_load_dwordx4 {a(32*(b%4)+8*j+4*m,4)}, {v(L16)}, {s(rWS,4)}, s{t2 if m else t1} offen offset:{j*1024} sc1", f"ab{b}_{j}"))
        return ops

    def b_reads(n):
        b, j = divmod(n, 4)
        hi = RING[b] >= HIGH
        off = RING[b] - (HIGH if hi else 0)
        if b < 3:
            return []
        if b < 7:
            return [(f"ds_read_b64_tr_b16 {a(FR+8*j+4*c+2*rd,2)}, {v(W2R+2*hi+c)} offset:{off + j*2048 + rd*1024}", f"f{n}")
                    for c in range(2) for rd in range(2)]
        return [(f"ds_read_b128 {a(FR+8*j+4*c,4)}, {v(CR+4*hi+j)} offset:{off + c*4096}", f"f{n}") for c in range(2)]

    run(a_ops(0))
    flag_publish(FLB, "hst")
    stamp("flag")
    run(a_ops(1)); run(a_ops(2))
    k.wait(lg="sr2")
    def addend_ops():
        o = [(f"s_lshr_b32 s3, s{sG}, 3\ns_lshl_b32 s3, s3, 1\ns_lshr_b32 s{t3}, s{sW}, 1\ns_add_u32 s3, s3, s{t3}\ns_lshl_b32 s3, s3, 7\ns_add_u32 s3, s3, {SCR}\n"
              f"v_lshlrev_b32 {v(TM+1)}, 6, {v(HF)}\nv_add_u32 {v(TM+1)}, s3, {v(TM+1)}", None)]
        for q in range(4):
            o += ops_of(f"ds_read_b128 {v(T+4*q,4)}, {v(TM+1)} offset:{q*16}\nds_read_b128 {v(T+16+4*q,4)}, {v(TM+1)} offset:{512+q*16}", "ast")
        o.append(W(vm="xs", lg="ast"))
        for r in range(16):
            o += ops_of(f"v_lshlrev_b32 {v(XS+r)}, 16, {v(XS+r)}\nv_sub_f32 {v(T+16+r)}, {v(XS+r)}, {v(T+16+r)}\n"
                        f"v_mul_f32 {v(T+16+r)}, {v(T+16+r)}, {v(T+r)}\nv_fmac_f32 {v(XS+r)}, {v(T+16+r)}, {v(DSK)}")
        return o

    a_next = 3
    for b in range(11):
        nxt = []
        if b == f2_at:
            spin_check("poll2", "poll2", f"v_cmp_ne_u32 vcc, s{sTAG}, {v(PV)}", poll_load("poll2"))
            stamp("poll2")
        if b >= f2_at:
            while a_next <= min(b + 3, 10):
                nxt += a_ops(a_next); a_next += 1
        if b == 0:
            nxt += (poll2_ops() if f2_at == 1 else []) + ring_ops(5) + (poll2_ops() if f2_at == 2 else [])
        if b == 1:
            nxt += ring_ops(6)
        if 7 <= b + 3 < 11:
            nxt += ring_ops(b + 3)
        if b == 8:
            nxt += xs_ops()
        val = spread(addend_ops(), 32)[16 * (b - 9):16 * (b - 8)] if b >= 9 else [[]] * 16
        mm = spread_mem(nxt, 16) if nxt else [[]] * 16
        for j in range(4):
            n = 4 * b + j
            rd = [[]] * 4
            if 12 <= n + 1 < 44:
                if j == 3:
                    k.wait(vm=f"rb{b+1}")
                rd = spread(b_reads(n + 1), 4)
            k.wait(vm=f"ab{b}_{j}", lg=f"f{n}" if b >= 3 else None)
            if j == 0 and b in (0, 4, 8) and "early" not in ablate:
                stamp(f"blk{b}")
            for m in range(2):
                for c in range(2):
                    bop = (RES + 32 * b if b < 3 else FR) + 8 * j + 4 * c
                    mfma(ACC + 32 * m + 16 * c, a(32 * (b % 4) + 8 * j + 4 * m, 4), a(bop, 4), "0" if n == 0 else None)
                    run(rd[2 * m + c]); run(mm[4 * j + 2 * m + c]); run(val[4 * j + 2 * m + c])
    stamp("p2done")
    GA = TM
    k(f"v_add_u32 {v(GA)}, s{sW13}, {v(L16)}")
    for u in (1, 2, 3):
        k(f"v_xor_b32 {v(GA+u)}, {u << 13}, {v(GA)}")
    k(f"s_lshl_b32 s{t2}, s{sM}, 1\ns_lshr_b32 s3, s{sW}, 1\ns_add_u32 s{t2}, s{t2}, s3\ns_lshl_b32 s{t2}, s{t2}, 16")
    k(f"s_lshl_b32 s3, s{sN}, 8\ns_add_u32 s{t2}, s{t2}, s3\ns_and_b32 s3, s{sW}, 1\ns_lshl_b32 s3, s3, 7\ns_add_u32 s{t2}, s{t2}, s3")
    k(f"v_lshlrev_b32 {v(TM+4)}, 15, {v(HF)}\nv_lshl_add_u32 {v(TM+4)}, {v(LR)}, 2, {v(TM+4)}")
    for u in (1, 2, 3):
        for q in range(4):
            k(f"ds_write_b128 {v(GA)}, {v(ACC+16*u+4*q,4)} offset:{(u>>1)*32768 + (u&1)*4096 + q*1024}", "fw")
    for r in range(0, 16, 2):
        k(f"v_pk_add_f32 {v(ACC+r,2)}, {v(ACC+r,2)}, {v(XS+r,2)}")
    k.wait(lg="all")
    k("s_barrier")
    for q in range(4):
        for u in (1, 2, 3):
            k(f"ds_read_b128 {v(ACC+16*u+4*q,4)}, {v(GA+u)} offset:{(u>>1)*32768 + (u&1)*4096 + q*1024}", f"fr{q}")
    for q in range(4):
        k.wait(lg=f"fr{q}")
        for i in (0, 2):
            r = 4 * q + i
            k(f"v_pk_add_f32 {v(ACC+r,2)}, {v(ACC+r,2)}, {v(ACC+16+r,2)}\nv_pk_add_f32 {v(ACC+32+r,2)}, {v(ACC+32+r,2)}, {v(ACC+48+r,2)}")
        for i in (0, 2):
            r = 4 * q + i
            k(f"v_pk_add_f32 {v(ACC+r,2)}, {v(ACC+r,2)}, {v(ACC+32+r,2)}")
        for i in range(4):
            r = 4 * q + i
            k(f"buffer_store_dword {v(ACC+r)}, {v(TM+4)}, {s(rOUT,4)}, s{t2} offen offset:{(r&1)*2048} {out_flags}", "out")
            if r & 1:
                k(f"s_add_u32 s{t2}, s{t2}, 4096")
    k(f"s_cmp_lg_u32 s{sC}, 15\ns_cbranch_scc1 L_fin\ns_or_b32 s3, s{sG}, s{sW}\ns_cmp_lg_u32 s3, 0\ns_cbranch_scc1 L_fin")
    k(f"v_mov_b32 {v(TM+5)}, s{sTAG}\ns_mov_b64 exec, 1")
    k(f"buffer_store_dword {v(TM+5)}, off, {s(rWS,4)}, 0 sc1\ns_mov_b64 exec, -1")
    k("L_fin:")
    if diag:
        k("s_waitcnt vmcnt(0)")
        stamp("end")
        k(f"s_lshl_b32 s3, s2, 2\ns_add_u32 s3, s3, s{sW}\ns_lshl_b32 s3, s3, 8\ns_add_u32 s3, s3, {DIAG}\nv_lshlrev_b32 {v(TM)}, 2, {v(L)}")
        k(f"buffer_store_dword {v(DG)}, {v(TM)}, {s(rWS,4)}, s3 offen")
        if amplify:
            k(f"s_cmp_lg_u32 s2, {amp_wg}\ns_cbranch_scc1 L_end")
            k(f"v_readlane_b32 s12, {v(DG)}, 0\nv_readlane_b32 s13, {v(DG)}, {stamps.index(amplify)}\nv_readlane_b32 s14, {v(DG)}, {len(stamps)-1}\ns_nop 3")
            k("s_sub_u32 s13, s13, s12\ns_min_u32 s13, s13, 5000\ns_lshl_b32 s13, s13, 2")
            k("L_amp:\ns_memrealtime s[34:35]\ns_waitcnt lgkmcnt(0)\ns_sub_u32 s3, s34, s14\ns_cmp_lt_u32 s3, s13\ns_cbranch_scc1 L_amp")
    k("L_end:")
    k("s_endpgm")
    for text in cold:
        k(text)

    body, nops = pad(k.lines)
    hdr = open("parallel_sum__ssm_conv_s5__dense_activation_mish__prompt.s.ref").read().split("; Override")[0]
    text = hdr + "; @launch grid=(256,1,1) block=(256,1,1) lds=163840\n"
    text += f'.amdgcn_target "amdgcn-amd-amdhsa--gfx950"\n.text\n.globl {KNAME}\n.p2align 8\n.type {KNAME},@function\n{KNAME}:\n'
    text += "\n".join(body) + "\n"
    text += f""".section .rodata,"a"
.p2align 6
.amdhsa_kernel {KNAME}
  .amdhsa_next_free_vgpr 512
  .amdhsa_next_free_sgpr 102
  .amdhsa_accum_offset 256
  .amdhsa_group_segment_fixed_size 0
  .amdhsa_kernarg_size 128
  .amdhsa_user_sgpr_count 2
  .amdhsa_user_sgpr_kernarg_segment_ptr 1
  .amdhsa_system_sgpr_workgroup_id_x 1
.end_amdhsa_kernel
"""
    return text, dict(nops=nops, vgprs=V.next, stamps=stamps, lines=len(body), regs=V.names)


if __name__ == "__main__":
    import json
    kw = json.loads(sys.argv[2]) if len(sys.argv) > 2 else {}
    text, info = gen(**kw)
    open(sys.argv[1], "w").write(text)
    print({q: info[q] for q in ("nops", "vgprs", "lines")})
```

```python
import re

REG = re.compile(r"(?<![\w.])(-?\|?)([vas])(\d+|\[(\d+):(\d+)\])(?![\w])|\b(vcc|exec|m0)\b")
TRANS = ("v_exp_f32", "v_log_f32", "v_rcp_f32", "v_rsq_f32", "v_sqrt_f32", "v_sin_f32", "v_cos_f32")


def regs(op):
    out = set()
    for m in REG.finditer(op):
        if m.group(6):
            out.add(m.group(6))
        elif m.group(4):
            out.update(f"{m.group(2)}{i}" for i in range(int(m.group(4)), int(m.group(5)) + 1))
        else:
            out.add(m.group(2) + m.group(3))
    return out


class I:
    def __init__(self, text):
        self.text = text
        t = text.split(";")[0].strip()
        self.label = t.endswith(":")
        self.mn = t.split()[0] if t and not self.label else ""
        rest = t[len(self.mn):].strip()
        ops = [o.strip() for o in rest.split(",")] if rest else []
        self.ops = ops
        mn = self.mn
        self.mfma = mn.startswith("v_mfma")
        self.valu = mn.startswith("v_") and not self.mfma
        self.salu = mn.startswith("s_")
        self.ds = mn.startswith("ds_")
        self.vmem = mn.startswith(("buffer_", "global_"))
        self.trans = mn.split("_e32")[0].split("_e64")[0] in TRANS
        self.dot = mn.startswith("v_dot")
        self.dpp = "_dpp" in mn or "row_" in t or "quad_perm" in t
        self.perm = mn.startswith("v_permlane")
        self.lane = mn.startswith(("v_readlane", "v_readfirstlane"))
        self.dma = self.vmem and re.search(r"\blds\b", t) is not None
        self.wide_store = self.vmem and "store" in mn and mn.endswith(("x3", "x4"))
        self.w, self.r = set(), set()
        self.v = lambda s: {x for x in s if x[0] in "va" and x != "vcc"}
        R = [regs(o) for o in ops]
        if self.mfma:
            self.w = R[0]; self.A = R[1]; self.B = R[2]; self.C = R[3]; self.r = R[1] | R[2] | R[3]
            self.passes = 8 if "32x32" in mn else 4
        elif self.valu:
            self.w = set(R[0]); self.r = set().union(*R[1:]) if len(R) > 1 else set()
            if mn.startswith(("v_fmac", "v_dot2c", "v_permlane")) or self.dpp:
                self.r |= R[0]
            if self.perm:
                self.w |= R[1]
            if mn.startswith(("v_add_co", "v_addc_co", "v_sub_co", "v_subbrev_co")):
                self.w |= R[1]
            if mn.startswith("v_cndmask") and len(ops) == 3:
                self.r.add("vcc")
        elif self.ds:
            if "read" in mn or "permute" in mn or "swizzle" in mn:
                self.w = R[0]; self.r = set().union(*R[1:])
            else:
                self.r = set().union(*R)
        elif self.vmem:
            if "load" in mn and not self.dma:
                self.w = R[0]; self.r = set().union(*R[1:])
            else:
                self.r = set().union(*R) if R else set()
                self.data = (R[0] if mn.startswith("buffer_") else R[1]) if "store" in mn else set()
            if self.dma:
                self.r.add("m0")
        elif self.salu and ops and not mn.startswith(("s_cmp", "s_cbranch", "s_branch", "s_waitcnt", "s_nop", "s_barrier", "s_sleep", "s_setprio", "s_bitcmp")):
            self.w = R[0]; self.r = set().union(*R[1:]) if len(R) > 1 else set()
            if "saveexec" in mn:
                self.w.add("exec")
        elif self.salu:
            self.r = set().union(*R) if R else set()

    def states(self):
        if self.label or not self.mn or self.mn.startswith("."):
            return 0
        if self.mn == "s_nop":
            return int(self.ops[0]) + 1
        return 1


def need(p, c):
    n = 0
    sg = lambda s: {x for x in s if x[0] == "s" or x in ("vcc",)}
    if p.mfma:
        big = 12 if p.passes == 8 else 8
        if c.mfma:
            if p.w & (c.A | c.B):
                n = max(n, big)
            if p.w & c.C and not (p.w == c.C and p.passes == c.passes):
                n = max(n, big - 2)
            if p.w & c.w and p.w != c.C:
                n = max(n, big - 2)
        elif (c.valu or c.ds or c.vmem) and p.w & (c.r | c.w):
            n = max(n, big)
        if c.valu and p.C & c.w:
            n = max(n, 7 if p.passes == 8 else 3)
    if p.valu:
        pv = p.v(p.w)
        if c.mfma and pv & c.r:
            n = max(n, 2)
        if p.trans and c.valu and not c.trans and pv & c.r:
            n = max(n, 1)
        if p.trans and (c.ds or c.vmem) and pv & c.r:
            n = max(n, 1)
        if c.valu and (c.dpp or c.perm) and pv & c.r:
            n = max(n, 2)
        if c.lane and pv & c.r:
            n = max(n, 1)
        if p.dot and (c.valu or c.ds or c.vmem) and pv & (c.r | c.w):
            same_acc = c.dot and c.mn == p.mn and not (pv & set().union(*[regs(o) for o in c.ops[1:3]]))
            if not same_acc:
                n = max(n, 3)
        ps = sg(p.w)
        if ps:
            if c.valu and ps & c.r:
                n = max(n, 4 if c.lane else 2)
            if c.vmem and ps & c.r:
                n = max(n, 5)
            if c.salu and (ps & c.r or ("vcc" in ps and c.mn.startswith("s_cbranch_vcc"))):
                n = max(n, 2)
    if p.salu and "m0" in p.w and c.dma:
        n = max(n, 1)
    if p.wide_store and p.data & c.w:
        n = max(n, 2 if c.valu else 1)
    return n


def pad(lines):
    out = []
    added = 0
    for text in lines:
        c = I(text)
        if c.mn and not c.label and not c.mn.startswith("."):
            dist, lack = 0, 0
            for p in reversed(out):
                if dist >= 20:
                    break
                if p.mn and not p.label:
                    lack = max(lack, need(p, c) - dist)
                dist += p.states()
            while lack > 0:
                k = min(lack, 16)
                out.append(I(f"    s_nop {k-1}"))
                added += k
                lack -= k
        out.append(c)
    return [i.text for i in out], added


class K:
    def __init__(self):
        self.lines = []
        self.vm = []; self.vm_done = 0
        self.lg = []; self.lg_done = 0
        self.uid = 0

    def __call__(self, s, tag=None):
        for l in s.split("\n"):
            l = l.strip()
            if not l:
                continue
            if l.endswith(":") or l.startswith((".", ";")):
                self.lines.append(l)
                continue
            self.lines.append("    " + l)
            mn = l.split()[0]
            if mn.startswith(("buffer_", "global_")) and not mn.startswith(("buffer_wbl2", "buffer_inv")):
                self.vm.append(tag)
            elif mn.startswith("ds_"):
                self.lg.append(tag)

    def label(self, stem):
        self.uid += 1
        return f"L_{stem}_{self.uid}"

    def _n(self, q, done, tag):
        idx = max((i for i, t in enumerate(q) if t == tag or (isinstance(t, tuple) and tag in t)), default=None)
        assert idx is not None, f"unknown tag {tag}"
        if idx < done:
            return None, done
        return len(q) - 1 - idx, idx + 1

    def wait(self, vm=None, lg=None):
        parts = []
        if vm is not None:
            n, d = (0, len(self.vm)) if vm == "all" else self._n(self.vm, self.vm_done, vm)
            if n is not None:
                if n > 63:
                    n, d = 63, len(self.vm) - 63
                parts.append(f"vmcnt({n})"); self.vm_done = d
        if lg is not None:
            n, d = (0, len(self.lg)) if lg == "all" else self._n(self.lg, self.lg_done, lg)
            if n is not None:
                if n > 15:
                    n, d = 15, len(self.lg) - 15
                parts.append(f"lgkmcnt({n})"); self.lg_done = d
        if parts:
            self.lines.append("    s_waitcnt " + " ".join(parts))

    def merge(self, a, b, tags):
        def after(q, tag):
            return len(q) - 1 - max(i for i, t in enumerate(q) if t == tag)
        need = {t: min(after(a[0], t), after(b[0], t)) for t in tags}
        n = max(need.values()) + 1
        self.vm = [tuple(t for t in tags if need[t] == n - 1 - i) for i in range(n)]
        self.vm_done = 0
        self.lg, self.lg_done = [], 0

    def snapshot(self):
        return (list(self.vm), self.vm_done, list(self.lg), self.lg_done)

    def restore(self, s):
        self.vm, self.vm_done, self.lg, self.lg_done = list(s[0]), s[1], list(s[2]), s[3]


class Alloc:
    def __init__(self, kind, start, end):
        self.kind, self.next, self.end, self.names = kind, start, end, {}

    def __call__(self, name, n=1, align=1):
        self.next = (self.next + align - 1) // align * align
        r = self.next
        self.next += n
        assert self.next <= self.end, f"out of {self.kind} registers at {name}"
        self.names[name] = (r, n)
        return r


def rng(kind, r, n):
    return f"{kind}{r}" if n == 1 else f"{kind}[{r}:{r+n-1}]"
```

```python
import sys
from emit import K, Alloc, rng, pad

KNAME = "parallel_sum__ssm_conv_s5__dense_activation_mish__prompt_kernel"
EPOCH, STATS, XID, CS, EG, FLA, FLB, FLC, AF = 0, 0x10000, 0x20000, 0x30000, 0x40000, 0x80000, 0xA0000, 0xC0000, 0x100000
DIAG = 200 << 20
MT = 176 * 1024
SLOT = 40960
HIGH = 2 * SLOT
SCR = 32768
SCR_EX, SCR_CX = SCR + 1024, SCR + 4096
SCR_HT = SLOT + 32768
RING = {b: SLOT * q for b, q in enumerate((0, 1, 2, 3, 0, 1, 2, 3, 0, 1, 2))}
RES = 160
LOG2E = 0x3fb8aa3b
SPIN = 1 << 16


def weight(op):
    if callable(op):
        return 0.2
    w = 0.0
    for l in op[0].split("\n"):
        mn = l.split()[0]
        w += 2 if mn in ("v_exp_f32", "v_rcp_f32", "v_sin_f32", "v_cos_f32") else 0.3 if mn.startswith("s_") else 1
    return w


def spread(ops, n):
    total = sum(map(weight, ops)) or 1
    out = [[] for _ in range(n)]
    acc = 0.0
    for op in ops:
        out[min(n - 1, int(acc / total * n + 1e-9))].append(op)
        acc += weight(op)
    return out


def spread_mem(ops, n):
    groups, cur = [], []
    for op in ops:
        cur.append(op)
        if not callable(op) and op[1] is not None:
            groups.append(cur); cur = []
    if cur:
        groups[-1] += cur
    out = [[] for _ in range(n)]
    for i, g in enumerate(groups):
        out[i * n // len(groups)] += g
    return out


def gen(mode="global", mapping="x8g4", diag=False, rot="none", amplify=None, amp_wg=0, out_flags="", ablate=(), l2pf=False,
        pf_at=4, gran_at=6, look=2, fine=(), p2_at=1, p3_at=4, dist=3, xs_at=4, tail_major=True, far_at=1, mt_pad=0, lite=3, trickle=True):
    MT = 176 * 1024 + mt_pad
    npre = 2
    k = K()
    V = Alloc("v", 1, 256)
    v = lambda r, n=1: rng("v", r, n)
    a = lambda r, n=1: rng("a", r, n)
    s = lambda r, n=1: rng("s", r, n)
    st = "sc1" if mode == "global" else ""

    sC, sG, sW, sROT, sM, sN, sTAG, sLOC = 4, 5, 6, 7, 8, 9, 10, 11
    t0, t1, t2, t3 = 12, 13, 14, 15
    pX, pLR, pLI, pBR, pBI, pCR, pCI, pDT, pDS, pW1, pB1, pW2, pOUT, pWS = 16, 18, 20, 22, 24, 26, 28, 30, 32, 36, 38, 40, 42, 46
    rX, rW1, rB, rE, rW2, rCR, rCI, rWS, rOUT = 48, 52, 56, 60, 64, 68, 72, 76, 80
    sXB, sBB, sWB, sA0, sA1, sKW, sCNT, sAF, sQ, sW12, sW13 = 84, 85, 86, 87, 88, 89, 90, 91, 92, 93, 94
    sHI, sXCC, sF = 98, 100, 97
    sBE, sBX, sBL, sAE, sAX, sAL, sGE, sGL, sJ, sXD = 18, 19, 20, 21, 22, 23, 24, 25, 95, 101
    sD = 34

    L, LR, HF, L16, TAU = V("l"), V("lr"), V("hf"), V("l16"), V("tau")
    XD, CD, WD, W2D = V("xd", 4), V("cd", 4), V("wd", 4), V("w2d", 4)
    XR, WR, BQ, CR, W2R = V("xr", 4), V("wr", 4), V("bq", 4), V("cr", 8), V("w2r", 4)
    LAR, LAI, NLAI, L16R, L16I, NL16I, PWR, PWI, L2R, L2I, SCRR, SCI, CFR, NCFR, NCFI = [V(x) for x in
        "lar lai nlai l16r l16i nl16i pwr pwi l2r l2i scr sci cfr ncfr ncfi".split()]
    PR, PI, MF = V("pr"), V("pi"), V("mf")
    ACC, SS, T = V("acc", 64, 4), V("ss", 32, 4), V("t", 32, 4)
    XA, XB, WE = V("xa", 4, 4), V("xb", 4, 4), V("we", 12, 4)
    MI = V("mish", 16, 4)
    TM = V("tmp", 20, 4)
    C1, RS = V("c1", 1, 2), V("rs")
    DSK = V("dsk")
    BI = V("bias", 2)
    DG = V("diag")
    FR = 128
    RSV, EK, XS = MI, TM, SS

    stamps = []
    def stamp(name):
        probe(name)
        if diag and (not fine or name == "end"):
            stamps.append(name)
            k(f"s_memrealtime s[{sD}:{sD+1}]\ns_memtime s[44:45]\ns_waitcnt lgkmcnt(0)")
            k.lg_done = len(k.lg)
            k(f"v_writelane_b32 {v(DG)}, s{sD}, {len(stamps)-1}\nv_writelane_b32 {v(DG)}, s44, {len(stamps)+31}")

    FINE = (16, 26, 28, 30, 32, 36, 38, 40, 42)
    seen = []
    def probe(key):
        if key in fine and key not in seen:
            k(f"s_memtime s[{FINE[len(seen)]}:{FINE[len(seen)]+1}]")
            seen.append(key)

    def srd(d, p, nbytes):
        return f"s_mov_b32 s{d}, s{p}\ns_mov_b32 s{d+1}, s{p+1}\ns_mov_b32 s{d+2}, {nbytes:#x}\ns_mov_b32 s{d+3}, 0x20000"

    def mfma(d, x, y, c=None):
        k(f"v_mfma_f32_32x32x16_bf16 {v(d,16)}, {x}, {y}, {v(d,16) if c is None else c}")

    def untracked(text):
        n = len(k.vm)
        k(text)
        del k.vm[n:]

    def run(ops):
        for op in ops:
            if callable(op):
                op()
            else:
                k(*op)

    def ops_of(text, tag=None):
        return [(l, tag) for l in text.split("\n")]

    W = lambda **kw: (lambda: k.wait(**kw))

    k("s_cmp_ge_u32 s2, 256\ns_cbranch_scc1 L_end")
    k("s_load_dwordx16 s[16:31], s[0:1], 0\ns_load_dwordx16 s[32:47], s[0:1], 64")
    if diag:
        k("s_memrealtime s[12:13]\ns_memtime s[10:11]")
    A_, B_, C_, D_ = TM, TM + 1, TM + 2, TM + 3
    k(f"v_and_b32 {v(L)}, 63, v0\nv_lshrrev_b32 {v(A_)}, 6, v0\nv_and_b32 {v(LR)}, 31, v0")
    k(f"v_readfirstlane_b32 s{sW}, {v(A_)}")
    k(f"v_lshrrev_b32 {v(HF)}, 5, {v(L)}\nv_lshlrev_b32 {v(L16)}, 4, {v(L)}")
    k(f"s_and_b32 s14, s2, 7\ns_lshr_b32 s15, s2, 3\ns_mov_b32 s{sXD}, s14\ns_mov_b32 s{sJ}, s15")
    if mapping == "rows":
        k(f"s_and_b32 s3, s15, 1\ns_lshl_b32 s{sC}, s14, 1\ns_or_b32 s{sC}, s{sC}, s3\ns_lshr_b32 s{sG}, s15, 1")
    elif mapping == "x8g4":
        k(f"s_lshr_b32 s3, s14, 2\ns_lshl_b32 s3, s3, 3\ns_and_b32 s{sC}, s15, 7\ns_or_b32 s{sC}, s{sC}, s3")
        k(f"s_and_b32 s3, s14, 3\ns_lshl_b32 s3, s3, 2\ns_lshr_b32 s{sG}, s15, 3\ns_or_b32 s{sG}, s{sG}, s3")
    elif mapping == "x4g8":
        k(f"s_lshr_b32 s3, s14, 1\ns_lshl_b32 s3, s3, 2\ns_and_b32 s{sC}, s15, 3\ns_or_b32 s{sC}, s{sC}, s3")
        k(f"s_and_b32 s3, s14, 1\ns_lshl_b32 s3, s3, 3\ns_lshr_b32 s{sG}, s15, 2\ns_or_b32 s{sG}, s{sG}, s3")
    k({"cg": f"s_add_u32 s{sROT}, s{sC}, s{sG}\ns_and_b32 s{sROT}, s{sROT}, 7", "none": f"s_mov_b32 s{sROT}, 0",
       "c": f"s_and_b32 s{sROT}, s{sC}, 7", "g": f"s_and_b32 s{sROT}, s{sG}, 7"}[rot])
    k(f"s_cmp_gt_u32 s{sG}, {lite}\ns_subb_u32 s{sF}, s{sG}, 0\ns_cmp_gt_u32 s{sG}, {lite + 8}\ns_subb_u32 s{sF}, s{sF}, 0")
    k(f"s_lshl_b32 s{sW12}, s{sW}, 12\ns_lshl_b32 s{sW13}, s{sW}, 13")
    k(f"v_lshrrev_b32 {v(A_)}, 3, {v(L)}")
    k(f"v_and_b32 {v(B_)}, 7, {v(L)}\nv_lshrrev_b32 {v(C_)}, 4, {v(L)}")
    k(f"v_xor_b32 {v(B_)}, {v(B_)}, {v(C_)}\nv_lshlrev_b32 {v(B_)}, 4, {v(B_)}")
    k(f"v_and_b32 {v(C_)}, 3, {v(A_)}\nv_lshl_add_u32 {v(C_)}, {v(HF)}, 4, {v(C_)}")
    k(f"v_lshl_add_u32 {v(XD)}, {v(C_)}, 10, {v(B_)}")
    k(f"v_xor_b32 {v(XD+1)}, 64, {v(XD)}\nv_add_u32 {v(XD+2)}, 6144, {v(XD)}")
    k(f"v_add_u32 {v(XD+3)}, 9216, {v(XD+1)}\nv_add_u32 {v(XD+1)}, 3072, {v(XD+1)}")
    k(f"v_lshl_add_u32 {v(CD)}, {v(A_)}, 10, {v(B_)}")
    k(f"v_xor_b32 {v(CD+1)}, 64, {v(CD)}\nv_add_u32 {v(CD+2)}, {2*7168}, {v(CD)}\nv_add_u32 {v(CD+3)}, {3*7168}, {v(CD+1)}\nv_add_u32 {v(CD+1)}, 7168, {v(CD+1)}")
    k(f"v_lshlrev_b32 {v(A_)}, 10, {v(HF)}\nv_lshl_add_u32 {v(A_)}, {v(LR)}, 4, {v(A_)}")
    k(f"s_lshl_b32 s{sXB}, s{sC}, 17\ns_lshl_b32 s3, s{sW}, 15\ns_add_u32 s{sXB}, s{sXB}, s3")
    k(f"s_and_b32 s3, s{sW}, 1\ns_lshl_b32 s3, s3, 14\ns_lshl_b32 s{sBB}, s{sG}, 15\ns_add_u32 s{sBB}, s{sBB}, s3")
    k(f"v_lshrrev_b32 {v(C_)}, 4, {v(L)}\nv_and_b32 {v(D_)}, 15, {v(L)}\nv_lshlrev_b32 {v(B_)}, 2, {v(C_)}")
    k(f"v_xor_b32 {v(D_)}, {v(D_)}, {v(B_)}\nv_lshlrev_b32 {v(D_)}, 4, {v(D_)}\nv_mul_u32_u24 {v(C_)}, 3584, {v(C_)}\nv_add_u32 {v(WD)}, {v(C_)}, {v(D_)}")
    for i in (1, 2, 3):
        k(f"v_add_u32 {v(WD+i)}, {i*13312}, {v(WD)}")
    k(f"s_mul_i32 s{sWB}, s{sW}, {16*3584}\ns_lshl_b32 s3, s{sF}, 8\ns_add_u32 s{sWB}, s{sWB}, s3")
    k(f"s_lshl_b32 s3, s{sC}, 4\ns_add_u32 s3, s3, s{sG}\ns_lshl_b32 s3, s3, 2\ns_add_u32 s3, s3, s{sW}\ns_lshl_b32 s{t2}, s3, 11")
    k(f"s_lshl_b32 s3, s{sG}, 5\nv_add_lshl_u32 {v(B_)}, {v(LR)}, s3, 1")
    k(f"s_lshl_b32 s3, s{sF}, 7\nv_add_lshl_u32 {v(C_)}, {v(L)}, s3, 1\nv_min_u32 {v(C_)}, 3454, {v(C_)}")
    k(f"s_and_b32 s{sN}, s{sG}, 7\ns_lshl_b32 s3, s{sN}, 1\ns_and_b32 s{t3}, s{sW}, 1\ns_or_b32 s3, s3, s{t3}\ns_lshl_b32 s3, s3, 5\nv_add_lshl_u32 {v(D_)}, {v(LR)}, s3, 1")
    k("s_waitcnt lgkmcnt(0)")
    if diag:
        k(f"v_writelane_b32 {v(DG)}, s12, 0\nv_writelane_b32 {v(DG)}, s10, 32"); stamps.append("start")
    k(srd(rX, pX, 2 << 20))
    SR = TM + 4
    PL = MI
    k(f"global_load_ushort {v(PL)}, {v(B_)}, {s(pLR,2)}\nglobal_load_ushort {v(PL+1)}, {v(B_)}, {s(pLI,2)}\nglobal_load_ushort {v(PL+2)}, {v(B_)}, {s(pDT,2)}", "par")
    k(f"buffer_load_dwordx4 {v(SR,4)}, {v(A_)}, {s(rX,4)}, s{t2} offen", "srow")
    k(f"buffer_load_dwordx4 {v(SR+4,4)}, {v(A_)}, {s(rX,4)}, s{t2} offen offset:512", "srow")
    k(f"s_load_dword s{sTAG}, s[{pWS}:{pWS+1}], {EPOCH}")
    k(srd(rW1, pW1, 512 * 3584))
    k(f"s_cmp_lt_u32 s{sW}, 2\ns_cselect_b32 s{rB}, s{pBR}, s{pBI}\ns_cselect_b32 s{rB+1}, s{pBR+1}, s{pBI+1}\ns_mov_b32 s{rB+2}, 0x80000\ns_mov_b32 s{rB+3}, 0x20000")

    def stage_ops(stage, full):
        slot = (stage % 4) * SLOT
        tag = f"st{stage}"
        ops = [(f"s_xor_b32 s3, s{sROT}, {stage}\ns_mul_i32 s{sKW}, s3, {64*3584}\ns_lshl_b32 s3, s3, 7\ns_add_u32 s{t1}, s3, s{sBB}\ns_add_u32 s{t0}, s3, s{sXB}\n"
                f"s_add_u32 s{sKW}, s{sKW}, s{sWB}\ns_add_u32 m0, s{sW12}, {slot}", None)]
        ops += [(f"buffer_load_dwordx4 {v(XD+i)}, {s(rX,4)}, s{t0} offen offset:{i*1024} lds", tag) for i in range(4)]
        ops += [(f"s_lshr_b32 s3, s{sW12}, 1\ns_add_u32 m0, s3, {slot + 32768}", None)]
        ops += [(f"buffer_load_dwordx4 {v(CD+i)}, {s(rB,4)}, s{t1} offen offset:{i*1024} lds", tag) for i in range(2)]
        if full:
            ops += [(f"s_add_u32 m0, s{sW12}, {slot + 16384}", None)]
            ops += [(f"buffer_load_dwordx4 {v(WD+i)}, {s(rW1,4)}, s{sKW} offen offset:{i*1024} lds", tag) for i in range(4)]
        return ops

    def ring_ops(b):
        tag = f"rb{b}"
        if b < 7:
            src, add = (sBE, b) if b < 3 else (sBX, 0) if b == 3 else (sBL, b - 4)
            head, step = f"s_add_u32 s{t0}, s{src}, {add*131072}", f"s_add_u32 s{t0}, s{t0}, 32768"
            r, D = rW2, W2D
        else:
            head = (f"s_lshl_b32 s{t0}, s{sN}, 1\ns_and_b32 s3, s{sW}, 1\ns_or_b32 s{t0}, s{t0}, s3\ns_lshl_b32 s{t0}, s{t0}, 15\n"
                    f"s_lshl_b32 s3, s{sW}, 8\ns_add_u32 s{t0}, s{t0}, s3")
            if (b - 7) & 1:
                head += f"\ns_add_u32 s{t0}, s{t0}, 128"
            step = f"s_xor_b32 s{t0}, s{t0}, 32768"
            r, D = (rCI if b >= 9 else rCR), CD
        ops = [(head + f"\ns_add_u32 m0, s{sW13}, {RING[b]}", None)]
        for i in range(8):
            if i == 4:
                ops.append((f"s_add_u32 m0, m0, 4096\n{step}", None))
            ops.append((f"buffer_load_dwordx4 {v(D+(i&3))}, {s(r,4)}, s{t0} offen offset:{(i&3)*1024} lds", tag))
        return ops

    def par_loads():
        k(f"global_load_ushort {v(BI)}, {v(C_)}, {s(pB1,2)}\nglobal_load_ushort {v(BI+1)}, {v(C_)}, {s(pB1,2)} offset:128", "par2")
        k(f"global_load_ushort {v(DSK)}, {v(D_)}, {s(pDS,2)}", "par2")

    def early_setup():
        o = [(srd(rWS, pWS, 1 << 28), None), (f"s_mov_b32 s{sHI}, 0\ns_mov_b32 s{sHI+1}, -1\ns_getreg_b32 s{sXCC}, hwreg(HW_REG_XCC_ID)\ns_and_b32 s{sXCC}, s{sXCC}, 15", None)]
        P0, P1, P2 = TM + 12, TM + 13, TM + 14
        e = lambda text: o.extend(ops_of(text))
        e(f"v_bfe_u32 {v(P0)}, {v(LR)}, 1, 3\nv_xor_b32 {v(P0)}, {v(P0)}, {v(HF)}\nv_lshlrev_b32 {v(P0)}, 4, {v(P0)}\nv_lshl_add_u32 {v(P0)}, {v(LR)}, 7, {v(P0)}")
        e(f"v_add_u32 {v(XR)}, s{sW12}, {v(P0)}\nv_add_u32 {v(BQ)}, 32768, {v(P0)}\nv_add_u32 {v(CR)}, s{sW13}, {v(P0)}")
        for j in (1, 2, 3):
            e(f"v_xor_b32 {v(XR+j)}, {j << 5}, {v(XR)}\nv_xor_b32 {v(BQ+j)}, {j << 5}, {v(BQ)}")
        e(f"v_bfe_u32 {v(P0)}, {v(L)}, 2, 2\nv_and_b32 {v(P1)}, 3, {v(L)}\nv_lshlrev_b32 {v(P1)}, 3, {v(P1)}\nv_bfe_u32 {v(P2)}, {v(L)}, 4, 1\nv_lshl_add_u32 {v(P1)}, {v(P2)}, 5, {v(P1)}")
        e(f"v_lshl_add_u32 {v(P2)}, {v(HF)}, 3, {v(P0)}\nv_lshl_add_u32 {v(P2)}, {v(P2)}, 8, {v(P1)}\nv_lshl_add_u32 {v(P2)}, {v(P0)}, 6, {v(P2)}\nv_add_u32 {v(WR)}, 16384, {v(P2)}")
        for t in (1, 2, 3):
            e(f"v_xor_b32 {v(WR+t)}, {t << 6}, {v(WR)}")
        e(f"v_lshrrev_b32 {v(P2)}, 1, {v(P0)}\nv_lshl_add_u32 {v(P1)}, {v(P2)}, 6, {v(P1)}\nv_lshl_add_u32 {v(P2)}, {v(HF)}, 2, {v(P0)}\nv_lshl_add_u32 {v(P2)}, {v(P2)}, 7, {v(P1)}\nv_add_u32 {v(W2R)}, s{sW13}, {v(P2)}")
        g = lambda text: o.append((text, None))
        g(srd(rW2, pW2, 1792 * 1024)); g(srd(rCR, pCR, 1 << 19)); g(srd(rCI, pCI, 1 << 19)); g(srd(rOUT, pOUT, 4 << 20))
        g(f"s_lshl_b32 s3, s{sG}, 13\ns_add_u32 s{rE}, s{pWS}, s3\ns_addc_u32 s{rE+1}, s{pWS+1}, 0\ns_add_u32 s{rE}, s{rE}, {EG}\ns_addc_u32 s{rE+1}, s{rE+1}, 0\n"
          f"s_mov_b32 s{rE+2}, 8192\ns_mov_b32 s{rE+3}, 0x20000")
        g(f"s_lshr_b32 s3, s{sG}, 3\ns_lshl_b32 s{sM}, s{sC}, 1\ns_or_b32 s{sM}, s{sM}, s3")
        g(f"s_cmp_eq_u32 s{sW}, 3\ns_cselect_b32 s3, 1, 0\ns_lshl_b32 s{sGE}, s{sW}, 2\ns_sub_u32 s{sGE}, s{sGE}, s3\ns_mul_i32 s{sGL}, s{sW}, 3\ns_add_u32 s{sGL}, s{sGL}, s3")
        g(f"s_lshl_b32 s{sAE}, s{sGE}, 13\ns_lshl_b32 s{sAL}, s{sGL}, 13\ns_add_u32 s{sAL}, s{sAL}, 4096\ns_add_u32 s{sAX}, s{sAE}, {6*4096}\ns_add_u32 s3, s{sAL}, 8192\n"
          f"s_cmp_lt_u32 s{sW}, 2\ns_cselect_b32 s{sAX}, s{sAX}, s{sAL}\ns_cselect_b32 s{sAL}, s{sAL}, s3")
        g(f"s_lshl_b32 s3, s{sN}, 7\ns_lshl_b32 s{sBE}, s{sAE}, 4\ns_lshl_b32 s{sBX}, s{sAX}, 4\ns_lshl_b32 s{sBL}, s{sAL}, 4\n"
          f"s_add_u32 s{sBE}, s{sBE}, s3\ns_add_u32 s{sBX}, s{sBX}, s3\ns_add_u32 s{sBL}, s{sBL}, s3")
        g(f"s_lshl_b32 s3, s{sC}, 2\ns_add_u32 s3, s3, s{sW}\ns_mul_i32 s{sAF}, s3, {MT}\ns_add_u32 s{sAF}, s{sAF}, {AF}")
        return o

    def row_stats():
        o = []
        def k2(text, tag=None, atomic=False):
            o.extend([(text, tag)] if atomic or tag else ops_of(text))
        S1, S2, U1, U2 = TM, TM + 1, TM + 2, TM + 3
        k2(f"v_mov_b32 {v(S1)}, 0\nv_mov_b32 {v(S2)}, 0\ns_mov_b32 s{t3}, 0x3f803f80")
        o.append(W(vm="srow"))
        for i in range(8):
            k2(f"v_dot2c_f32_bf16 {v(S1)}, s{t3}, {v(SR+i)}\nv_dot2c_f32_bf16 {v(S2)}, {v(SR+i)}, {v(SR+i)}")
        for r in (8, 4, 2, 1):
            k2(f"v_add_f32_dpp {v(S1)}, {v(S1)}, {v(S1)} row_ror:{r} row_mask:0xf bank_mask:0xf")
            k2(f"v_add_f32_dpp {v(S2)}, {v(S2)}, {v(S2)} row_ror:{r} row_mask:0xf bank_mask:0xf")
        k2(f"v_mov_b32 {v(U1)}, {v(S1)}\nv_mov_b32 {v(U2)}, {v(S2)}")
        k2(f"v_permlane16_swap_b32 {v(S1)}, {v(U1)}\nv_permlane16_swap_b32 {v(S2)}, {v(U2)}")
        k2(f"v_add_f32 {v(S1)}, {v(S1)}, {v(U1)}\nv_add_f32 {v(S2)}, {v(S2)}, {v(U2)}")
        k2(f"v_mul_f32 {v(S1)}, 0x3b000000, {v(S1)}\nv_mul_f32 {v(S2)}, 0x3b000000, {v(S2)}")
        k2(f"v_fma_f32 {v(S2)}, -{v(S1)}, {v(S1)}, {v(S2)}\nv_max_f32 {v(S2)}, 0, {v(S2)}")
        k2(f"v_cvt_pk_bf16_f32 {v(S2)}, {v(S2)}, {v(S2)}\nv_and_b32 {v(S2)}, 0xffff0000, {v(S2)}\nv_add_f32 {v(S2)}, 0x3727c5ac, {v(S2)}")
        k2(f"v_cvt_pk_bf16_f32 {v(S2)}, {v(S2)}, {v(S2)}\nv_and_b32 {v(S2)}, 0xffff0000, {v(S2)}\nv_sqrt_f32 {v(S2)}, {v(S2)}")
        k2(f"v_cvt_pk_bf16_f32 {v(SR)}, {v(S1)}, {v(S2)}")
        k2("s_waitcnt lgkmcnt(0)")
        k2(f"s_mul_i32 s{sTAG}, s{sTAG}, 0x9e3779b1\ns_add_u32 s{sTAG}, s{sTAG}, 0x7f4a7c15")
        k2(f"v_mov_b32 {v(SR+1)}, s{sTAG}\nv_mov_b32 {v(SR+2)}, s{sXCC}\nv_mov_b32 {v(SR+3)}, s{sTAG}\nv_lshlrev_b32 {v(U1)}, 3, {v(HF)}")
        k2(f"s_lshr_b32 s{t2}, s{t2}, 7\ns_add_u32 s{t2}, s{t2}, {STATS}")
        k2(f"s_lshl_b32 s{t3}, s{sC}, 4\ns_add_u32 s{t3}, s{t3}, s{sG}\ns_lshl_b32 s{t3}, s{t3}, 3\ns_add_u32 s{t3}, s{t3}, {XID}")
        def publish():
            k("s_mov_b32 exec_lo, 1\ns_mov_b32 exec_hi, 1")
            k(f"buffer_store_dwordx2 {v(SR,2)}, {v(U1)}, {s(rWS,4)}, s{t2} offen sc1", "pub0")
            k(f"buffer_store_dwordx2 {v(SR+2,2)}, off, {s(rWS,4)}, s{t3} sc1", "pub0")
            k("s_mov_b64 exec, -1")
            stamp("stats")
        o.append(publish)
        return o

    def late_setup(full):
        o = []
        e = lambda text: o.extend(ops_of(text))
        g = lambda text: o.append((text, None))
        P0, P1, P2 = TM + 12, TM + 13, TM + 14
        for j in (1, 2, 3):
            e(f"v_xor_b32 {v(CR+j)}, {j << 5}, {v(CR)}")
        for j in range(4):
            e(f"v_add_u32 {v(CR+4+j)}, {HIGH}, {v(CR+j)}")
        e(f"v_xor_b32 {v(W2R+1)}, 64, {v(W2R)}\nv_add_u32 {v(W2R+2)}, {HIGH}, {v(W2R)}\nv_add_u32 {v(W2R+3)}, {HIGH}, {v(W2R+1)}")
        e(f"v_lshrrev_b32 {v(P0)}, 3, {v(L)}\nv_and_b32 {v(P1)}, 7, {v(L)}\nv_bfe_u32 {v(P2)}, {v(L)}, 4, 1\nv_lshlrev_b32 {v(P2)}, 2, {v(P2)}")
        e(f"v_xor_b32 {v(P1)}, {v(P1)}, {v(P2)}\nv_lshlrev_b32 {v(P1)}, 4, {v(P1)}")
        g(f"s_and_b32 s3, s{sW}, 1\ns_lshl_b32 s3, s3, 6\nv_xor_b32 {v(P1)}, s3, {v(P1)}")
        e(f"v_lshl_add_u32 {v(W2D)}, {v(P0)}, 10, {v(P1)}")
        for i in (1, 2, 3):
            e(f"v_add_u32 {v(W2D+i)}, {i*7168}, {v(W2D)}")
        e(f"v_bfe_u32 {v(P0)}, {v(LR)}, 2, 1\nv_lshrrev_b32 {v(P1)}, 3, {v(LR)}\nv_and_b32 {v(P2)}, 3, {v(LR)}")
        e(f"v_lshl_add_u32 {v(P2)}, {v(P1)}, 2, {v(P2)}\nv_lshl_add_u32 {v(TAU)}, {v(P0)}, 4, {v(P2)}")
        for z in (XA + 2, XA + 3, XB + 2, XB + 3, WE + 2, WE + 3, WE + 6, WE + 7, WE + 10, WE + 11):
            e(f"v_mov_b32 {v(z)}, 0")
        LRE, LIM, DT, A2, BRV, X0, X1, X2 = range(PL, PL + 8)
        o.append(W(vm="par2"))
        e(f"v_lshlrev_b32 {v(LRE)}, 16, {v(LRE)}\nv_lshlrev_b32 {v(LIM)}, 16, {v(LIM)}\nv_lshlrev_b32 {v(DT)}, 16, {v(DT)}\nv_lshlrev_b32 {v(DSK)}, 16, {v(DSK)}")
        e(f"v_mul_f32 {v(DT)}, {LOG2E:#x}, {v(DT)}\nv_exp_f32 {v(DT)}, {v(DT)}\nv_cvt_pk_bf16_f32 {v(DT)}, {v(DT)}, {v(DT)}\nv_and_b32 {v(DT)}, 0xffff0000, {v(DT)}")
        e(f"v_mul_f32 {v(A2)}, {v(DT)}, {v(LRE)}\nv_mul_f32 {v(BRV)}, {v(DT)}, {v(LIM)}\nv_mul_f32 {v(A2)}, {LOG2E:#x}, {v(A2)}\nv_mul_f32 {v(BRV)}, 0.15915494, {v(BRV)}")
        def cpow(n, dr, di):
            e(f"v_mul_f32 {v(X0)}, {n}, {v(A2)}\nv_mul_f32 {v(X1)}, {n}, {v(BRV)}\nv_exp_f32 {v(X0)}, {v(X0)}\nv_fract_f32 {v(X1)}, {v(X1)}")
            e(f"v_cos_f32 {v(dr)}, {v(X1)}\nv_sin_f32 {v(di)}, {v(X1)}\nv_mul_f32 {v(dr)}, {v(dr)}, {v(X0)}\nv_mul_f32 {v(di)}, {v(di)}, {v(X0)}")
        cpow("1.0", LAR, LAI); cpow("0x41800000", L16R, L16I); cpow("0x43800000", L2R, L2I)
        g(f"s_lshl_b32 s3, s{sW}, 1\nv_add_u32 {v(X2)}, s3, {v(HF)}")
        e(f"v_lshlrev_b32 {v(X2)}, 4, {v(X2)}\nv_cvt_f32_u32 {v(X2)}, {v(X2)}")
        cpow(v(X2), PWR, PWI)
        g(f"s_lshl_b32 s3, s{sW}, 2\nv_add_u32 {v(X2)}, s3, {v(HF)}")
        e(f"v_lshlrev_b32 {v(X2)}, 7, {v(X2)}\nv_cvt_f32_u32 {v(X2)}, {v(X2)}")
        cpow(v(X2), SCRR, SCI)
        e(f"v_sub_f32 {v(NLAI)}, 0, {v(LAI)}\nv_sub_f32 {v(NL16I)}, 0, {v(L16I)}")
        e(f"v_mul_f32 {v(X0)}, {v(LRE)}, {v(LRE)}\nv_fmac_f32 {v(X0)}, {v(LIM)}, {v(LIM)}\nv_rcp_f32 {v(X0)}, {v(X0)}\nv_subrev_f32 {v(X1)}, 1.0, {v(LAR)}")
        e(f"v_mul_f32 {v(CFR)}, {v(X1)}, {v(LRE)}\nv_mul_f32 {v(NCFI)}, {v(X1)}, {v(LIM)}\nv_mul_f32 {v(X0)}, 0x4038aa3b, {v(X0)}")
        e(f"v_fmac_f32 {v(CFR)}, {v(LAI)}, {v(LIM)}\nv_fmac_f32 {v(NCFI)}, {v(NLAI)}, {v(LRE)}")
        e(f"v_mul_f32 {v(CFR)}, {v(CFR)}, {v(X0)}\nv_mul_f32 {v(NCFI)}, {v(NCFI)}, {v(X0)}\nv_sub_f32 {v(NCFR)}, 0, {v(CFR)}")
        e(f"v_mul_f32 {v(T)}, {v(CFR)}, {v(LAR)}\nv_mul_f32 {v(T+16)}, {v(CFR)}, {v(LAI)}\nv_fmac_f32 {v(T)}, {v(NCFI)}, {v(LAI)}\nv_fma_f32 {v(T+16)}, -{v(NCFI)}, {v(LAR)}, {v(T+16)}")
        for i in range(1, 16):
            e(f"v_mul_f32 {v(T+i)}, {v(T+i-1)}, {v(LAR)}\nv_mul_f32 {v(T+16+i)}, {v(T+15+i)}, {v(LAR)}")
            e(f"v_fmac_f32 {v(T+i)}, {v(T+15+i)}, {v(NLAI)}\nv_fmac_f32 {v(T+16+i)}, {v(T+i-1)}, {v(LAI)}")
        return o

    GS, GX, GA = TM, TM + 2, TM + 16

    def gran_loads(full):
        ops = [(f"s_lshr_b32 s{t2}, s{sXB}, 7\ns_add_u32 s{t2}, s{t2}, {STATS}\nv_lshlrev_b32 {v(GA)}, 3, {v(TAU)}", None),
               (f"buffer_load_dwordx2 {v(GS,2)}, {v(GA)}, {s(rWS,4)}, s{t2} offen sc1", "gran"),
               (f"s_lshl_b32 s{t2}, s{sC}, 7\ns_add_u32 s{t2}, s{t2}, {XID}\nv_and_b32 {v(GA)}, 15, {v(L)}\nv_lshlrev_b32 {v(GA)}, 3, {v(GA)}", None),
               (f"buffer_load_dwordx2 {v(GX,2)}, {v(GA)}, {s(rWS,4)}, s{t2} offen sc1", "gran"),
               (f"s_lshl_b32 s{t2}, s{sG}, 8\ns_add_u32 s{t2}, s{t2}, {CS + 1792*8}\nv_lshlrev_b32 {v(GA)}, 12, {v(HF)}\nv_lshl_add_u32 {v(GA)}, {v(LR)}, 3, {v(GA)}", None),
               (f"buffer_load_dwordx2 {v(WE+8,2)}, {v(GA)}, {s(rWS,4)}, s{t2} offen sc1", "gran")]
        if full:
            ops += [(f"s_lshl_b32 s{t2}, s{sF}, 10\ns_add_u32 s{t2}, s{t2}, {CS}\nv_lshlrev_b32 {v(GA)}, 3, {v(L)}", None),
                    (f"buffer_load_dwordx2 {v(WE,2)}, {v(GA)}, {s(rWS,4)}, s{t2} offen sc1", "gran"),
                    (f"buffer_load_dwordx2 {v(WE+4,2)}, {v(GA)}, {s(rWS,4)}, s{t2} offen offset:512 sc1", "gran")]
        return ops

    cold = []
    def spin_check(name, tag, mismatch, reload):
        again, ok = k.label(name + "_again"), k.label(name + "_ok")
        k.wait(vm=tag)
        k(mismatch)
        k(f"s_mov_b32 s{sCNT}, 0\ns_nop 0\ns_cbranch_vccnz {again}")
        k(ok + ":")
        loads = "\n".join(op[0] for op in reload)
        cold.append(f"{again}:\n{loads}\ns_waitcnt vmcnt(0)\n{mismatch}\ns_add_u32 s{sCNT}, s{sCNT}, 1\ns_cmp_gt_u32 s{sCNT}, {SPIN}\n"
                    f"s_cbranch_scc1 {ok}\ns_cbranch_vccnz {again}\ns_branch {ok}")

    def tags_differ(regs, tmp):
        t = f"v_xor_b32 {v(tmp)}, s{sTAG}, {v(regs[0])}\n"
        for r in regs[1:]:
            t += f"v_xor_b32 {v(tmp+1)}, s{sTAG}, {v(r)}\nv_or_b32 {v(tmp)}, {v(tmp)}, {v(tmp+1)}\n"
        return t + f"v_cmp_ne_u32 vcc, 0, {v(tmp)}"

    def gran_check(full):
        spin_check("gran", "gran", tags_differ([GS + 1, GX + 1, WE + 9] + ([WE + 1, WE + 5] if full else []), GA), gran_loads(full))
        k(f"v_cmp_ne_u32 vcc, s{sXCC}, {v(GX)}")
        k(f"v_and_b32 {v(GA)}, 0xffff, {v(GS)}\nv_and_b32 {v(GA+1)}, 0xffff0000, {v(GS)}\nv_lshlrev_b32 {v(MF)}, 16, {v(GS)}")
        k(f"s_cmp_eq_u64 vcc, 0\ns_cselect_b32 s{sLOC}, 1, 0")
        k(f"v_rcp_f32 {v(RS)}, {v(GA+1)}\nv_xor_b32 {v(GA)}, 0x8000, {v(GA)}\nv_lshrrev_b32 {v(GA+1)}, 16, {v(GS)}\nv_lshl_or_b32 {v(GA)}, {v(GA)}, 16, {v(GA)}")
        k(f"v_cndmask_b32 {v(XA)}, {v(GA)}, 0, {s(sHI,2)}\nv_cndmask_b32 {v(XA+1)}, {v(GA+1)}, 0, {s(sHI,2)}")
        k(f"v_cndmask_b32 {v(XB)}, 0, {v(GA)}, {s(sHI,2)}\nv_cndmask_b32 {v(XB+1)}, 0, {v(GA+1)}, {s(sHI,2)}\nv_mov_b32 {v(WE+9)}, 0")
        k(f"s_lshr_b32 s3, s{sW12}, 5\ns_add_u32 s3, s3, {SCR}\nv_lshlrev_b32 {v(GA)}, 9, {v(HF)}\nv_lshl_add_u32 {v(GA)}, {v(TAU)}, 2, {v(GA)}\nv_add_u32 {v(GA)}, s3, {v(GA)}")
        k(f"v_lshlrev_b32 {v(GA+2)}, 6, {v(HF)}\nv_add_u32 {v(GA+2)}, s3, {v(GA+2)}")
        mfma(SS, v(XA, 4), v(WE + 8, 4)); mfma(SS + 16, v(XB, 4), v(WE + 8, 4))
        k(f"v_cndmask_b32 {v(GA+1)}, {v(RS)}, {v(MF)}, {s(sHI,2)}\nv_mul_f32 {v(C1)}, {LOG2E:#x}, {v(RS)}")
        k(f"ds_write_b32 {v(GA)}, {v(GA+1)}", "stw")
        for q in range(4):
            k(f"ds_read_b128 {v(RSV+4*q,4)}, {v(GA+2)} offset:{q*16}", "rsv")
        if full:
            k(f"v_mov_b32 {v(WE+1)}, {v(BI)}\nv_mov_b32 {v(WE+5)}, {v(BI+1)}\ns_lshl_b32 s3, s{sF}, 13\ns_add_u32 s{sA0}, s{sAF}, s3")
            for t in range(4):
                mfma(ACC + 16 * t, v(WE + 4 * (t >> 1), 4), v(XB if t & 1 else XA, 4))

    def pf_ops():
        if not l2pf:
            return [("s_nop 0", "none")]
        P, Q = TM + 18, TM + 19
        rows = mapping != "x8g4"
        o = []
        for h in range(2 if rows else 1):
            col = f"s_mov_b32 s3, {h*4}" if rows else f"s_and_b32 s3, s{sXD}, 1\ns_lshl_b32 s3, s3, 2"
            skip = f"v_cmp_eq_u32 vcc, {lite}, {v(Q)}\nv_lshrrev_b32 {v(P)}, 2, {v(L)}\nv_min_u32 {v(P)}, 13, {v(P)}\nv_subbrev_co_u32 {v(Q)}, vcc, 0, {v(Q)}, vcc\n" if trickle else \
                   f"v_lshrrev_b32 {v(P)}, 2, {v(L)}\nv_min_u32 {v(P)}, 13, {v(P)}\n"
            o += [(f"{col}\nv_and_b32 {v(Q)}, 3, {v(L)}\nv_add_u32 {v(Q)}, s3, {v(Q)}\n{skip}v_lshlrev_b32 {v(Q)}, 7, {v(Q)}\nv_lshl_add_u32 {v(P)}, {v(P)}, 10, {v(Q)}\n"
                   f"s_lshl_b32 s{t2}, s{sJ}, 2\ns_add_u32 s{t2}, s{t2}, s{sW}\ns_mul_i32 s{t2}, s{t2}, {14*1024}", None),
                  (f"buffer_load_dword a255, {v(P)}, {s(rW2,4)}, s{t2} offen", "pf2")]
        half = "" if rows else f"s_and_b32 s3, s{sXD}, 1\ns_lshl_b32 s3, s3, 18\ns_add_u32 s{t2}, s{t2}, s3\n"
        o += [(f"s_lshl_b32 s{t2}, s{sJ}, 2\ns_add_u32 s{t2}, s{t2}, s{sW}\ns_lshl_b32 s{t2}, s{t2}, {12 if rows else 11}\n{half}"
               f"v_and_b32 {v(P)}, {31 if rows else 15}, {v(L)}\nv_lshlrev_b32 {v(P)}, 7, {v(P)}", None),
              (f"buffer_load_dword a255, {v(P)}, {s(rCR,4)}, s{t2} offen", "pf2"),
              (f"buffer_load_dword a255, {v(P)}, {s(rCI,4)}, s{t2} offen", "pf2")]
        return o

    def far_ops():
        if far_at is None:
            return []
        P, Q = TM + 18, TM + 19
        return [(f"s_lshl_b32 s{t2}, s2, 2\ns_add_u32 s{t2}, s{t2}, s{sW}\ns_mul_i32 s3, s{t2}, {14*128}\nv_lshrrev_b32 {v(P)}, 2, {v(L)}\nv_min_u32 {v(Q)}, 13, {v(P)}\nv_lshlrev_b32 {v(Q)}, 7, {v(Q)}\n"
                 f"buffer_load_dword a255, {v(Q)}, {s(rW2,4)}, s3 offen", "far"),
                (f"s_lshl_b32 s{t2}, s{t2}, 9\nv_and_b32 {v(P)}, 3, {v(P)}\nv_lshlrev_b32 {v(P)}, 7, {v(P)}\nbuffer_load_dword a255, {v(P)}, {s(rCR,4)}, s{t2} offen", "far"),
                (f"buffer_load_dword a255, {v(P)}, {s(rCI,4)}, s{t2} offen", "far")]

    def weave(mem, val):
        n = sum(1 for op in mem if op[1] is not None)
        for m, c in zip(spread_mem(mem, n), spread(val, n)):
            run(m); run(c)

    def stage_reads(b):
        hi = RING[b] >= HIGH
        return [W(vm=f"rb{b}")] + [(f"ds_read_b64_tr_b16 {a(RES+32*b+8*j+4*c+2*rd,2)}, {v(W2R+2*hi+c)} offset:{RING[b] - hi*HIGH + j*2048 + rd*1024}", f"sr{b}")
                                   for j in range(4) for c in range(2) for rd in range(2)]

    def gemm1(full, pfx):
        nm = 6 if full else 2
        base_of = lambda stg: ((stg % 4) // 2) * HIGH
        def reads(n):
            stg, j = divmod(n, 4)
            off = (stg % 4) * SLOT - base_of(stg)
            f = FR + 28 * (n & 1)
            d = base_of(stg) - base_of(stg - 1) if stg else 0
            adj = lambda r, on=True: f"v_add_u32 {v(r)}, {d & 0xffffffff:#x}, {v(r)}\n" if d and on else ""
            o = [(adj(XR + j) + f"ds_read_b128 {a(f,4)}, {v(XR+j)} offset:{off}", f"ra{n}")]
            o += [(adj(BQ + j, c == 0) + f"ds_read_b128 {a(f+4+4*c,4)}, {v(BQ+j)} offset:{off + c*4096}", f"ra{n}") for c in range(2)]
            if full:
                o += [(adj(WR + t, j == 0 and rd == 0) + f"ds_read_b64_tr_b16 {a(f+12+4*t+2*rd,2)}, {v(WR+t)} offset:{off + j*4096 + rd*1024}", f"ra{n}" if t == 0 else f"rb_{n}")
                      for t in range(4) for rd in range(2)]
            return o
        if look == 2:
            mem = {sg: stage_ops(sg + 2, full) for sg in range(6)}
            mem.update({6: ring_ops(0), 7: ring_ops(1)})
        else:
            ramp = spread_mem(sum((stage_ops(sg, full) for sg in range(2, 6)), []), 3)
            mem = {0: ramp[0], 1: ramp[1], 2: ramp[2], 3: stage_ops(6, full), 4: stage_ops(7, full), 5: ring_ops(0), 6: ring_ops(1), 7: ring_ops(2)}
        mem[pf_at] = pf_ops() + mem[pf_at]
        if far_at is not None:
            mem[far_at] = mem[far_at] + far_ops()
        mem[gran_at] = gran_loads(full) + mem[gran_at]
        if trickle and not full:
            for sg in range(7):
                P = TM + 15
                head = (f"s_and_b32 s3, s{sC}, 7\ns_lshl_b32 s3, s3, 2\ns_add_u32 s3, s3, s{sW}\ns_mul_i32 s{sQ}, s3, {56*1024}\ns_add_u32 s{sQ}, s{sQ}, {lite*128}\n"
                        f"v_lshrrev_b32 {v(P)}, 3, {v(L)}\nv_lshlrev_b32 {v(P)}, 10, {v(P)}\n") if sg == 0 else f"s_add_u32 s{sQ}, s{sQ}, 8192\n"
                mem[sg] = mem[sg] + [(head + f"buffer_load_dword a255, {v(P)}, {s(rW2,4)}, s{sQ} offen", "trk")]
        val = spread(late_setup(full), 20 * nm) + [[]] * (12 * nm)
        gapno = 0
        for stg in range(8):
            k.wait(vm=f"st{stg}", lg="all" if look == 3 else None)
            k("s_barrier")
            if stg in (0, 4):
                stamp(f"{pfx}st{stg}")
            steps = ([4 * stg - 1] if stg else []) + [4 * stg, 4 * stg + 1, 4 * stg + 2] + ([31] if stg == 7 else [])
            if stg == 0:
                run(reads(0))
            mm = spread_mem(mem[stg], nm * min(4, len(steps)))
            gi = 0
            for n in steps:
                f = FR + 28 * (n & 1)
                last = n % 4 == 2 and look == 3
                rd = spread(reads(n + 1), nm - 2 if last and full else nm) + [[]] * 2 if n < 31 else [[]] * nm
                for i in range(nm):
                    if i == 0:
                        k.wait(lg=f"ra{n}")
                    if i == 3:
                        k.wait(lg=f"rb_{n}")
                    c0 = "0" if n == 0 else None
                    if i < 2:
                        mfma(SS + 16 * i, a(f, 4), a(f + 4 + 4 * i, 4), c0)
                    else:
                        mfma(ACC + 16 * (i - 2), a(f + 12 + 4 * (i - 2), 4), a(f, 4), c0)
                    run(rd[i])
                    if gi < len(mm):
                        run(mm[gi])
                    run(val[gapno])
                    gi += 1; gapno += 1
                probe(f"g{n}")

    def scan_ops():
        o = [W(lg="rsv")]
        for r in range(0, 16, 2):
            o += ops_of(f"v_pk_mul_f32 {v(SS+r,2)}, {v(SS+r,2)}, {v(RSV+r,2)}\nv_pk_mul_f32 {v(SS+16+r,2)}, {v(SS+16+r,2)}, {v(RSV+r,2)}")
        for r in range(1, 16):
            o += ops_of(f"v_fmac_f32 {v(SS+r)}, {v(LAR)}, {v(SS+r-1)}\nv_fmac_f32 {v(SS+16+r)}, {v(LAR)}, {v(SS+15+r)}\n"
                        f"v_fmac_f32 {v(SS+r)}, {v(NLAI)}, {v(SS+15+r)}\nv_fmac_f32 {v(SS+16+r)}, {v(LAI)}, {v(SS+r-1)}")
        o.append((f"s_lshr_b32 s3, s{sW12}, 3\ns_add_u32 s3, s3, {SCR_EX}\nv_lshlrev_b32 {v(GA)}, 3, {v(L)}\nv_add_u32 {v(GA)}, s3, {v(GA)}", None))
        o.append((f"ds_write2_b32 {v(GA)}, {v(SS+15)}, {v(SS+31)} offset0:0 offset1:1", "exw"))
        o += ops_of(f"v_lshlrev_b32 {v(GA)}, 3, {v(LR)}\nv_add_u32 {v(GA)}, {SCR_EX}, {v(GA)}")
        return o

    def chain_ops():
        o = [(f"ds_read_b64 {v(EK+2*q,2)}, {v(GA)} offset:{q*256}", f"ek{q}") for q in range(8)]
        SG = TM + 17
        o.append((f"s_lshl_b32 s3, s{sW}, 1\nv_add_u32 {v(SG)}, s3, {v(HF)}", None))
        o += ops_of(f"v_mov_b32 {v(PR)}, 0\nv_mov_b32 {v(PI)}, 0\nv_mov_b32 {v(XA+1)}, s{sTAG}\nv_mov_b32 {v(XA+3)}, s{sTAG}")
        o.append(W(lg="ek3"))
        for q in range(1, 8):
            r, i = EK + 2 * q, EK + 2 * q + 1
            dr, di = (XA, XA + 2) if q == 7 else (r, i)
            if q == 4:
                o.append(W(lg="ek7"))
            o += ops_of(f"v_cmp_eq_u32 vcc, {q}, {v(SG)}\nv_fmac_f32 {v(r)}, {v(L16R)}, {v(r-2)}\nv_fmac_f32 {v(i)}, {v(L16R)}, {v(i-2)}\n"
                        f"v_cndmask_b32 {v(PR)}, {v(PR)}, {v(r-2)}, vcc\nv_cndmask_b32 {v(PI)}, {v(PI)}, {v(i-2)}, vcc\n"
                        f"v_fma_f32 {v(dr)}, {v(NL16I)}, {v(i-2)}, {v(r)}\nv_fma_f32 {v(di)}, {v(L16I)}, {v(r-2)}, {v(i)}")
        o.append((f"s_cmp_eq_u32 s{sW}, 3\ns_cselect_b32 s3, 0, 0x10000\nv_lshlrev_b32 {v(SG)}, 13, {v(HF)}\nv_add3_u32 {v(SG)}, {v(SG)}, {v(L16)}, s3\ns_lshl_b32 s3, s{sC}, 9\n"
                  f"buffer_store_dwordx4 {v(XA,4)}, {v(SG)}, {s(rE,4)}, s3 offen sc1", "epub"))
        return o

    def coef_ops():
        o = []
        for r in range(0, 16, 2):
            tt = XB + (r & 2)
            o += ops_of(f"v_pk_mul_f32 {v(tt,2)}, {v(SS+r,2)}, {v(NCFI,2)} op_sel_hi:[1,0]\nv_pk_mul_f32 {v(SS+r,2)}, {v(SS+r,2)}, {v(CFR,2)} op_sel_hi:[1,0]\n"
                        f"v_pk_fma_f32 {v(SS+r,2)}, {v(SS+16+r,2)}, {v(NCFI,2)}, {v(SS+r,2)} op_sel_hi:[1,0,1]\n"
                        f"v_pk_fma_f32 {v(SS+16+r,2)}, {v(SS+16+r,2)}, {v(CFR,2)}, {v(tt,2)} op_sel:[0,1,0] op_sel_hi:[1,1,1]")
        return o

    def xs_ops():
        ops = [(f"s_lshl_b32 s{t2}, s{sM}, 1\ns_lshr_b32 s3, s{sW}, 1\ns_add_u32 s{t2}, s{t2}, s3\ns_lshl_b32 s{t2}, s{t2}, 15\n"
                f"s_lshl_b32 s3, s{sN}, 7\ns_add_u32 s{t2}, s{t2}, s3\ns_and_b32 s3, s{sW}, 1\ns_lshl_b32 s3, s3, 6\ns_add_u32 s{t2}, s{t2}, s3\n"
                f"v_lshlrev_b32 {v(TM+19)}, 14, {v(HF)}\nv_lshl_add_u32 {v(TM+19)}, {v(LR)}, 1, {v(TM+19)}", None)]
        for r in range(16):
            pre = f"s_add_u32 s{t2}, s{t2}, 4096\n" if r and r % 4 == 0 else ""
            ops.append((pre + f"buffer_load_ushort {v(XS+r)}, {v(TM+19)}, {s(rX,4)}, s{t2} offen offset:{(r&3)*1024}", "xs"))
        return ops

    def mish_ops(t):
        ops = []
        TA, TB = MI, MI + 8
        for e in range(2):
            R = ACC + 16 * t + 8 * e
            one = lambda f: [(f(i), None) for i in range(8)]
            two = lambda f: [(f(i), None) for i in range(0, 8, 2)]
            ops += two(lambda i: f"v_pk_mul_f32 {v(TA+i,2)}, {v(R+i,2)}, {v(C1,2)} op_sel_hi:[1,0]")
            ops += one(lambda i: f"v_exp_f32 {v(TB+i)}, {v(TA+i)}")
            ops += two(lambda i: f"v_pk_fma_f32 {v(R+i,2)}, {v(TB+i,2)}, 0.5, 1.0 op_sel_hi:[1,0,0]")
            ops += two(lambda i: f"v_pk_fma_f32 {v(TB+i,2)}, {v(TB+i,2)}, {v(R+i,2)}, 1.0 op_sel_hi:[1,1,0]")
            ops += one(lambda i: f"v_rcp_f32 {v(TB+i)}, {v(TB+i)}")
            ops += two(lambda i: f"v_pk_fma_f32 {v(TA+i,2)}, {v(TA+i,2)}, {v(TB+i,2)}, {v(TA+i,2)} neg_lo:[1,0,0] neg_hi:[1,0,0]")
            ops += two(lambda i: f"v_cvt_pk_bf16_f32 {v(R+i//2)}, {v(TA+i)}, {v(TA+i+1)}")
            pre = f"s_add_u32 s{sA0}, s{sA0}, 4096\n" if t == 2 and e == 0 else ""
            ops.append((pre + f"buffer_store_dwordx4 {v(R,4)}, {v(L16)}, {s(rWS,4)}, s{sA0} offen offset:{(2*(t&1)+e)*1024} {st}", f"act{t}"))
        return ops

    EA, EX0, EX1, E0 = TM + 8, TM + 9, TM + 10, TM
    def e_loads():
        return [(f"buffer_load_dwordx4 {v(E0,4)}, {v(EA)}, {s(rE,4)}, 0 offen sc1", "eg"),
                (f"buffer_load_dwordx4 {v(E0+4,4)}, {v(EA+3)}, {s(rE,4)}, 0 offen sc1", "eg")]

    def e_issue():
        return [(f"s_lshl_b32 s3, s{sW}, 2\ns_sub_u32 s3, s{sC}, s3\ns_sub_u32 s3, s3, 1\nv_sub_u32 {v(EA)}, s3, {v(HF)}\nv_subrev_u32 {v(EA+3)}, 2, {v(EA)}\n"
                 f"v_ashrrev_i32 {v(EX0)}, 31, {v(EA)}\nv_ashrrev_i32 {v(EX1)}, 31, {v(EA+3)}\nv_bfi_b32 {v(EX0)}, {v(EX0)}, 0, s{sTAG}\nv_bfi_b32 {v(EX1)}, {v(EX1)}, 0, s{sTAG}\n"
                 f"v_lshlrev_b32 {v(EA+4)}, 4, {v(LR)}\nv_lshl_add_u32 {v(EA)}, {v(EA)}, 9, {v(EA+4)}\nv_lshl_add_u32 {v(EA+3)}, {v(EA+3)}, 9, {v(EA+4)}", None)] + e_loads()

    HA, HB = TM + 18, TM + 19
    PA, PV = BI, BI + 1

    def flag_publish(base, tag):
        k(f"s_lshl_b32 s{t2}, s{sC}, 4\ns_add_u32 s{t2}, s{t2}, s{sG if base == FLC else sF}\ns_lshl_b32 s{t2}, s{t2}, 2\ns_add_u32 s{t2}, s{t2}, s{sW}\ns_lshl_b32 s{t2}, s{t2}, 7\ns_add_u32 s{t2}, s{t2}, {base}")
        k(f"v_mov_b32 {v(MF)}, s{sTAG}")
        k.wait(vm=tag)
        k("s_mov_b64 exec, 1")
        text = f"buffer_store_dword {v(MF)}, off, {s(rWS,4)}, s{t2}"
        if mode == "global":
            k(text + " sc1", "flag")
        else:
            far, done = k.label("far"), k.label("flagged")
            k(f"s_cmp_eq_u32 s{sLOC}, 0\ns_cbranch_scc1 {far}")
            k(text, "flag")
            k(f"s_branch {done}\n{far}:")
            untracked(f"buffer_wbl2 sc1\ns_waitcnt vmcnt(0)\n{text} sc1")
            k(done + ":")
        k("s_mov_b64 exec, -1")

    def poll_load(tag):
        return [(f"buffer_load_dword {v(PV)}, {v(PA)}, {s(rWS,4)}, s{t3} offen sc1", tag)]

    def poll_base(base):
        return f"s_lshl_b32 s3, s{sC}, 5\ns_lshr_b32 s{t3}, s{sG}, 3\ns_add_u32 s3, s3, s{t3}\ns_lshl_b32 s3, s3, 8\ns_add_u32 s{t3}, s3, {base}"

    def poll_ops(first, base, tag):
        top = 15 if base == FLC else 13
        return [(f"{first}\nv_bfe_u32 {v(PA)}, {v(L)}, 1, 2\nv_add_u32 {v(PA)}, s3, {v(PA)}\nv_min_u32 {v(PA)}, {top}, {v(PA)}\nv_and_b32 {v(PV)}, 1, {v(L)}\n"
                 f"v_lshl_add_u32 {v(PA)}, {v(PA)}, 2, {v(PV)}\nv_lshlrev_b32 {v(PA)}, 7, {v(PA)}\n" + poll_base(base), None)] + poll_load(tag)

    poll1_ops = lambda: poll_ops(f"s_mov_b32 s3, s{sGE}", FLA, "poll1")
    poll2_ops = lambda: poll_ops(f"s_mov_b32 s3, s{sGL}", FLB, "poll2")
    poll3_ops = lambda: poll_ops(f"s_lshl_b32 s3, s{sW}, 2", FLC, "poll3")
    poll_check = lambda tag: spin_check(tag, tag, f"v_cmp_ne_u32 vcc, s{sTAG}, {v(PV)}", poll_load(tag))

    def carry_write():
        Y0, Y1 = TM + 12, TM + 13
        mis = (f"v_xor_b32 {v(Y0)}, {v(E0+1)}, {v(EX0)}\nv_xor_b32 {v(Y1)}, {v(E0+3)}, {v(EX0)}\nv_or_b32 {v(Y0)}, {v(Y0)}, {v(Y1)}\n"
               f"v_xor_b32 {v(Y1)}, {v(E0+5)}, {v(EX1)}\nv_or_b32 {v(Y0)}, {v(Y0)}, {v(Y1)}\nv_xor_b32 {v(Y1)}, {v(E0+7)}, {v(EX1)}\nv_or_b32 {v(Y0)}, {v(Y0)}, {v(Y1)}\n"
               f"v_cmp_ne_u32 vcc, 0, {v(Y0)}")
        spin_check("e", "eg", mis, e_loads())
        k(f"v_fmac_f32 {v(E0)}, {v(L2R)}, {v(E0+4)}\nv_fmac_f32 {v(E0+2)}, {v(L2R)}, {v(E0+6)}")
        k(f"v_fma_f32 {v(E0)}, -{v(L2I)}, {v(E0+6)}, {v(E0)}\nv_fmac_f32 {v(E0+2)}, {v(L2I)}, {v(E0+4)}")
        k(f"v_mul_f32 {v(Y0)}, {v(SCRR)}, {v(E0)}\nv_mul_f32 {v(Y1)}, {v(SCRR)}, {v(E0+2)}")
        k(f"v_fma_f32 {v(Y0)}, -{v(SCI)}, {v(E0+2)}, {v(Y0)}\nv_fmac_f32 {v(Y1)}, {v(SCI)}, {v(E0)}")
        k(f"s_lshr_b32 s3, s{sW12}, 3\ns_add_u32 s3, s3, {SCR_CX}\nv_lshlrev_b32 {v(HA)}, 3, {v(L)}\nv_add_u32 {v(HA)}, s3, {v(HA)}")
        k(f"ds_write_b64 {v(HA)}, {v(Y0,2)}", "cxw")
        k(f"v_lshlrev_b32 {v(HA)}, 3, {v(LR)}\nv_add_u32 {v(HA)}, {SCR_CX}, {v(HA)}")
        k.wait(lg="all")
        k("s_barrier")
        for q in range(8):
            k(f"ds_read_b64 {v(TM+2*q,2)}, {v(HA)} offset:{q*256}", "cxr")

    def fix_ops():
        o = []
        e = lambda text, tag=None: o.extend(ops_of(text, tag))
        P2 = TM + 16
        o.append((f"s_lshr_b32 s3, s{sW}, 1\ns_mul_i32 s3, s3, {SLOT - 8192}\ns_add_u32 s3, s3, s{sW12}\ns_add_u32 s{sKW}, s3, {SCR_HT}", None))
        e(f"v_lshlrev_b32 {v(HA)}, 5, {v(HF)}\nv_lshl_add_u32 {v(HA)}, {v(LR)}, 6, {v(HA)}\nv_add_u32 {v(HA)}, s{sKW}, {v(HA)}")
        e(f"v_bfe_u32 {v(HB)}, {v(L)}, 2, 2\nv_lshl_add_u32 {v(HB)}, {v(HF)}, 3, {v(HB)}\nv_lshlrev_b32 {v(HB)}, 6, {v(HB)}")
        e(f"v_and_b32 {v(P2)}, 1, {v(L)}\nv_lshl_add_u32 {v(HB)}, {v(P2)}, 5, {v(HB)}\nv_bfe_u32 {v(P2)}, {v(L)}, 1, 1\nv_lshl_add_u32 {v(HB)}, {v(P2)}, 3, {v(HB)}")
        e(f"v_bfe_u32 {v(P2)}, {v(L)}, 4, 1\nv_lshl_add_u32 {v(HB)}, {v(P2)}, 4, {v(HB)}\nv_add_u32 {v(HB)}, s{sKW}, {v(HB)}")
        o.append(W(lg="cxr"))
        for step in (8, 4, 2):
            for q in range(0, step, 2):
                e(f"v_pk_add_f32 {v(TM+q,2)}, {v(TM+q,2)}, {v(TM+q+step,2)}")
        NS = TM + 16
        e(f"v_fmac_f32 {v(PR)}, {v(PWR)}, {v(TM)}\nv_fmac_f32 {v(PI)}, {v(PWR)}, {v(TM+1)}")
        e(f"v_fma_f32 {v(NS)}, -{v(PWI)}, {v(TM+1)}, {v(PR)}\nv_fma_f32 {v(NS+1)}, -{v(PWI)}, {v(TM)}, -{v(PI)}")
        for qq in range(4):
            comp, half = qq >> 1, qq & 1
            for r in range(8 * half, 8 * half + 8, 2):
                d = SS + 16 * comp + r
                e(f"v_pk_fma_f32 {v(d,2)}, {v(T+r,2)}, {v(NS,2)}, {v(d,2)} op_sel:[0,{comp},0] op_sel_hi:[1,{comp},1]")
                if comp == 0:
                    e(f"v_pk_fma_f32 {v(d,2)}, {v(T+16+r,2)}, {v(NS,2)}, {v(d,2)} op_sel:[0,1,0] op_sel_hi:[1,1,1]")
                else:
                    e(f"v_pk_fma_f32 {v(d,2)}, {v(T+16+r,2)}, {v(NS,2)}, {v(d,2)} op_sel:[0,0,0] op_sel_hi:[1,0,1] neg_lo:[0,1,0] neg_hi:[0,1,0]")
            for q in range(4):
                e(f"v_cvt_pk_bf16_f32 {v(TM+4*qq+q)}, {v(SS+8*qq+2*q)}, {v(SS+8*qq+2*q+1)}")
            e(f"ds_write_b128 {v(HA)}, {v(TM+4*qq,4)} offset:{comp*2048 + half*16}", f"htw{comp}")
            if half:
                for f in (2 * comp, 2 * comp + 1):
                    for rd in range(2):
                        e(f"ds_read_b64_tr_b16 {v(SS+16*comp+4*(f&1)+2*rd,2)}, {v(HB)} offset:{f*1024 + rd*256}", f"htr{f}")
        o.append((f"s_lshr_b32 s3, s{sG}, 2\ns_lshl_b32 s3, s3, 3\ns_and_b32 s{sKW}, s{sG}, 3\ns_add_u32 s3, s3, s{sKW}\ns_lshl_b32 s3, s3, 11\ns_add_u32 s{sKW}, s{sAF}, s3\ns_add_u32 s{sKW}, s{sKW}, {112*1024}", None))
        for f in range(4):
            o.append(W(lg=f"htr{f}"))
            pre = f"s_add_u32 s{sKW}, s{sKW}, 8192\n" if f == 2 else ""
            o.append((pre + f"buffer_store_dwordx4 {v(SS+16*(f>>1)+4*(f&1),4)}, {v(L16)}, {s(rWS,4)}, s{sKW} offen offset:{(f&1)*1024} {st}", "hst"))
        return o

    def bar(**kw):
        def f():
            k.wait(**kw)
            k("s_barrier")
        return f

    k(f"s_cmp_eq_u32 s{sN}, {lite}\ns_cbranch_scc1 L_light")
    snap0 = k.snapshot()
    run(stage_ops(0, True)); par_loads()
    weave(sum((stage_ops(sg, True) for sg in range(1, npre)), []), early_setup() + row_stats())
    gemm1(True, "")
    stamp("gemm")
    gran_check(True)
    stamp("gran")
    m = [mish_ops(t) for t in range(4)]
    h = len(m[0]) // 2
    r2 = ring_ops(2) if look == 2 else []
    run(scan_ops())
    run(m[0][:h])
    bar(lg="all")()
    weave(r2 + ring_ops(3), chain_ops() + stage_reads(0) + m[0][h:] + [W(lg="sr0")])
    stamp("epub")
    weave(ring_ops(4), stage_reads(1) + m[1] + [W(lg="sr1")])
    weave(ring_ops(5), stage_reads(2) + m[2] + [lambda: flag_publish(FLA, "act1"), W(lg="sr2")])
    run(e_issue())
    weave(ring_ops(6), m[3] + coef_ops())
    run(poll1_ops())
    stamp("mish")
    carry_write()
    stamp("carry")
    fx = fix_ops()
    run(fx[:14])
    flag_publish(FLB, "act3")
    run(fx[14:])
    k.wait(lg="all")
    k("s_branch L_join")
    snap_join = k.snapshot()

    k("L_light:")
    k.restore(snap0)
    k(f"s_lshl_b32 s{sQ}, s{sC}, 1\ns_lshr_b32 s3, s{sG}, 3\ns_add_u32 s{sQ}, s{sQ}, s3")
    k(f"s_cmp_lt_u32 s{sQ}, 16\ns_cselect_b32 s{rE}, s{pBR}, s{pBI}\ns_cselect_b32 s{rE+1}, s{pBR+1}, s{pBI+1}\ns_mov_b32 s{rE+2}, 0x80000\ns_mov_b32 s{rE+3}, 0x20000")
    k(f"s_and_b32 s{t0}, s{sQ}, 15\ns_lshl_b32 s{t0}, s{t0}, 15\ns_add_u32 s{t0}, s{t0}, s{sW13}")
    for i in range(8):
        if i == 4:
            k(f"s_add_u32 s{t0}, s{t0}, 4096")
        k(f"buffer_load_dwordx4 {v(SS+4*i,4)}, {v(L16)}, {s(rE,4)}, s{t0} offen offset:{(i&3)*1024}", "lb")
    k(f"s_min_u32 s{t0}, s{sQ}, 27\ns_lshl_b32 s{t0}, s{t0}, 7\ns_mul_i32 s3, s{sW}, {128*3584}\ns_add_u32 s{t0}, s{t0}, s3")
    k(f"v_lshrrev_b32 {v(TM+16)}, 3, {v(L)}\nv_mul_u32_u24 {v(TM+16)}, 3584, {v(TM+16)}\nv_and_b32 {v(TM+17)}, 7, {v(L)}\nv_lshl_add_u32 {v(TM+16)}, {v(TM+17)}, 4, {v(TM+16)}")
    for i in range(16):
        k(f"buffer_load_dwordx4 {v(ACC+4*i,4)}, {v(TM+16)}, {s(rW1,4)}, s{t0} offen", f"lw{i}")
        k(f"s_add_u32 s{t0}, s{t0}, {8*3584}")
    par_loads()
    run(early_setup()); run(row_stats())
    CA, EL = TM, TM + 8

    def fold8(R):
        for j in range(0, 8, 2):
            k(f"v_permlane32_swap_b32 {v(R+j)}, {v(R+j+1)}")
        for j in range(0, 8, 2):
            k(f"v_add_f32 {v(R+j)}, {v(R+j)}, {v(R+j+1)}")
        k(f"v_permlane16_swap_b32 {v(R)}, {v(R+2)}\nv_permlane16_swap_b32 {v(R+4)}, {v(R+6)}")
        k(f"v_add_f32 {v(R)}, {v(R)}, {v(R+2)}\nv_add_f32 {v(R+4)}, {v(R+4)}, {v(R+6)}")

    def split_publish(R, addr, soff):
        k(f"v_cvt_pk_bf16_f32 {v(R+1)}, {v(R)}, {v(R)}\nv_and_b32 {v(R+1)}, 0xffff0000, {v(R+1)}\nv_sub_f32 {v(R+1)}, {v(R)}, {v(R+1)}")
        k(f"v_cvt_pk_bf16_f32 {v(R)}, {v(R)}, {v(R+1)}\nv_mov_b32 {v(R+1)}, s{sTAG}")
        k(f"buffer_store_dwordx2 {v(R,2)}, {v(addr)}, {s(rWS,4)}, s{soff} offen sc1", "cspub")

    k(f"s_mov_b32 s{t0}, 0x3f803f80")
    for j in range(8):
        k(f"v_mov_b32 {v(CA+j)}, 0")
    k(f"v_bfe_u32 {v(EL)}, {v(L)}, 4, 1\nv_lshl_add_u32 {v(EL)}, {v(EL)}, 1, {v(HF)}")
    k.wait(vm="lb")
    for j in range(4):
        for i in range(8):
            k(f"v_dot2c_f32_bf16 {v(CA+i)}, s{t0}, {v(SS+4*i+j)}")
    fold8(CA)
    for r in (8, 4, 2, 1):
        k(f"v_add_f32_dpp {v(CA)}, {v(CA)}, {v(CA)} row_ror:{r} row_mask:0xf bank_mask:0xf")
        k(f"v_add_f32_dpp {v(CA+4)}, {v(CA+4)}, {v(CA+4)} row_ror:{r} row_mask:0xf bank_mask:0xf")
    k(f"v_and_b32 {v(EL+1)}, 1, {v(L)}\nv_cmp_eq_u32 vcc, 1, {v(EL+1)}\nv_lshl_add_u32 {v(EL+1)}, {v(EL+1)}, 2, {v(EL)}\nv_lshlrev_b32 {v(EL+1)}, 3, {v(EL+1)}")
    k(f"v_cndmask_b32 {v(CA)}, {v(CA)}, {v(CA+4)}, vcc")
    k(f"s_lshl_b32 s{t2}, s{sQ}, 8\ns_lshl_b32 s3, s{sW}, 6\ns_add_u32 s{t2}, s{t2}, s3\ns_add_u32 s{t2}, s{t2}, {CS + 1792*8}")
    split_publish(CA, EL + 1, t2)
    stamp("Lbsum")
    run(stage_ops(0, False))
    k(f"s_mov_b32 s{t2}, 0x00003f80\ns_mov_b32 s{t3}, 0x3f800000")
    for j in range(8):
        k(f"v_mov_b32 {v(CA+j)}, 0")
    for i in range(16):
        k.wait(vm=f"lw{i}")
        for j in range(4):
            k(f"v_dot2c_f32_bf16 {v(CA+2*j)}, s{t2}, {v(ACC+4*i+j)}\nv_dot2c_f32_bf16 {v(CA+2*j+1)}, s{t3}, {v(ACC+4*i+j)}")
    for j in range(8):
        k(f"v_add_f32_dpp {v(CA+j)}, {v(CA+j)}, {v(CA+j)} row_ror:8 row_mask:0xf bank_mask:0xf")
    fold8(CA)
    k(f"v_and_b32 {v(EL+1)}, 7, {v(L)}\nv_lshl_add_u32 {v(EL+1)}, {v(EL+1)}, 3, {v(EL)}\nv_lshlrev_b32 {v(EL+1)}, 2, {v(EL+1)}")
    k(f"s_lshl_b32 s3, s{sW}, 8\ns_add_u32 s3, s3, 16384\nv_add_u32 {v(EL+1)}, s3, {v(EL+1)}")
    k(f"ds_write2_b32 {v(EL+1)}, {v(CA)}, {v(CA+4)} offset0:0 offset1:4", "cw")
    k(f"v_lshlrev_b32 {v(EL+1)}, 2, {v(L)}\nv_add_u32 {v(EL+1)}, 16384, {v(EL+1)}")
    k.wait(lg="all")
    k("s_barrier")
    for j in range(4):
        k(f"ds_read_b32 {v(CA+j)}, {v(EL+1)} offset:{j*256}", "cr")
    k(f"s_min_u32 s{t2}, s{sQ}, 27\ns_lshl_b32 s{t2}, s{t2}, 9\ns_add_u32 s{t2}, s{t2}, {CS}\nv_lshlrev_b32 {v(EL+2)}, 3, {v(L)}")
    k.wait(lg="all")
    k(f"v_add_f32 {v(CA)}, {v(CA)}, {v(CA+1)}\nv_add_f32 {v(CA+2)}, {v(CA+2)}, {v(CA+3)}\nv_add_f32 {v(CA)}, {v(CA)}, {v(CA+2)}")
    split_publish(CA, EL + 2, t2)
    stamp("Lwsum")
    for sg in range(1, npre):
        run(stage_ops(sg, False))
    gemm1(False, "L")
    stamp("Lgemm")
    gran_check(False)
    run(scan_ops())
    bar(lg="all")()
    weave(r2 + ring_ops(3), chain_ops() + stage_reads(0) + stage_reads(1) + [W(lg="all")])
    stamp("Lepub")
    weave(ring_ops(4), stage_reads(2) + [W(lg="all")])
    weave(ring_ops(5) + ring_ops(6), coef_ops())
    run(e_issue())
    carry_write()
    run(poll1_ops())
    run(fix_ops())
    k.wait(lg="all")
    snap_light = k.snapshot()

    k("L_join:")
    k.merge(snap_join, snap_light, ("rb3", "rb4", "rb5", "rb6", "hst", "poll1"))
    stamp("stored")
    k(f"s_lshl_b32 s3, s{sM}, 1\ns_lshr_b32 s{t2}, s{sW}, 1\ns_add_u32 s{sA0}, s3, s{t2}\ns_xor_b32 s{sA1}, s{sA0}, 1")
    k(f"s_mul_i32 s{sA0}, s{sA0}, {MT}\ns_mul_i32 s{sA1}, s{sA1}, {MT}\ns_add_u32 s{sA0}, s{sA0}, {AF}\ns_add_u32 s{sA1}, s{sA1}, {AF}")
    poll_check("poll1")
    stamp("poll")

    def a_ops(b):
        if b < 7:
            src, add = (sAE, b) if b < 3 else (sAX, 0) if b == 3 else (sAL, b - 4)
            head = f"s_add_u32 s3, s{src}, {add*8192}"
        else:
            head = f"s_lshl_b32 s3, s{sW}, 14\ns_add_u32 s3, s3, {(112 + 4*(b-7))*1024}"
        ops = [(head + f"\ns_add_u32 s{t1}, s{sA0}, s3\ns_add_u32 s{t2}, s{sA1}, s3", None)]
        for j in range(4):
            for m in range(2):
                ops.append((f"buffer_load_dwordx4 {a(32*(b%4)+8*j+4*m,4)}, {v(L16)}, {s(rWS,4)}, s{t2 if m else t1} offen offset:{j*1024} sc1", f"ab{b}_{j}"))
        return ops

    def b_reads(n):
        b, j = divmod(n, 4)
        hi = RING[b] >= HIGH
        off = RING[b] - (HIGH if hi else 0)
        if b < 3:
            return []
        if b < 7:
            return [(f"ds_read_b64_tr_b16 {a(FR+8*j+4*c+2*rd,2)}, {v(W2R+2*hi+c)} offset:{off + j*2048 + rd*1024}", f"f{n}")
                    for c in range(2) for rd in range(2)]
        return [(f"ds_read_b128 {a(FR+8*j+4*c,4)}, {v(CR+4*hi+j)} offset:{off + c*4096}", f"f{n}") for c in range(2)]

    run(a_ops(0))
    flag_publish(FLC, "hst")
    stamp("flag")
    run(a_ops(1))
    if p2_at == 1:
        run(poll2_ops())
    if dist == 3:
        run(a_ops(2))
        if p2_at == 2:
            run(poll2_ops())
    def addend_ops():
        o = [(f"s_lshr_b32 s3, s{sG}, 3\ns_lshl_b32 s3, s3, 1\ns_lshr_b32 s{t3}, s{sW}, 1\ns_add_u32 s3, s3, s{t3}\ns_lshl_b32 s3, s3, 7\ns_add_u32 s3, s3, {SCR}\n"
              f"v_lshlrev_b32 {v(TM+1)}, 6, {v(HF)}\nv_add_u32 {v(TM+1)}, s3, {v(TM+1)}", None)]
        for q in range(4):
            o += ops_of(f"ds_read_b128 {v(T+4*q,4)}, {v(TM+1)} offset:{q*16}\nds_read_b128 {v(T+16+4*q,4)}, {v(TM+1)} offset:{512+q*16}", "ast")
        o.append(W(vm="xs", lg="ast"))
        for r in range(16):
            o += ops_of(f"v_lshlrev_b32 {v(XS+r)}, 16, {v(XS+r)}\nv_sub_f32 {v(T+16+r)}, {v(XS+r)}, {v(T+16+r)}\n"
                        f"v_mul_f32 {v(T+16+r)}, {v(T+16+r)}, {v(T+r)}\nv_fmac_f32 {v(XS+r)}, {v(T+16+r)}, {v(DSK)}")
        return o

    a_next = dist
    for b in range(11):
        nxt = []
        if b == p2_at:
            poll_check("poll2")
            stamp("poll2")
        if b == p3_at:
            poll_check("poll3")
            stamp("poll3")
        while a_next <= min(b + dist, 10) and b >= (0 if a_next < 3 else p2_at if a_next < 7 else p3_at):
            nxt += a_ops(a_next); a_next += 1
            if dist == 2 and a_next == 3 and p2_at == 2:
                nxt += poll2_ops()
        if b == p3_at - 2:
            nxt += poll3_ops()
        if 7 <= b + dist < 11:
            nxt += ring_ops(b + dist)
        if b == xs_at:
            nxt += xs_ops()
        val = spread(addend_ops(), 32)[16 * (b - xs_at - 2):16 * (b - xs_at - 1)] if 2 <= b - xs_at <= 3 else [[]] * 16
        mm = spread_mem(nxt, 16) if nxt else [[]] * 16
        if b == 10 and tail_major:
            break
        for j in range(4):
            n = 4 * b + j
            rd = [[]] * 4
            if 12 <= n + 1 < 44:
                if j == 3:
                    k.wait(vm=f"rb{b+1}")
                rd = spread(b_reads(n + 1), 4)
            k.wait(vm=f"ab{b}_{j}", lg=f"f{n}" if b >= 3 else None)
            if j == 0 and b in (0, 8):
                stamp(f"blk{b}")
            for m in range(2):
                for c in range(2):
                    bop = (RES + 32 * b if b < 3 else FR) + 8 * j + 4 * c
                    mfma(ACC + 32 * m + 16 * c, a(32 * (b % 4) + 8 * j + 4 * m, 4), a(bop, 4), "0" if n == 0 else None)
                    run(rd[2 * m + c]); run(mm[4 * j + 2 * m + c]); run(val[4 * j + 2 * m + c])
            probe(f"b{b}_{j}")
    GA = TM
    pre = ops_of(f"v_add_u32 {v(GA)}, s{sW13}, {v(L16)}")
    for u in (1, 2, 3):
        pre += ops_of(f"v_xor_b32 {v(GA+u)}, {u << 13}, {v(GA)}")
    pre.append((f"s_lshl_b32 s{t2}, s{sM}, 1\ns_lshr_b32 s3, s{sW}, 1\ns_add_u32 s{t2}, s{t2}, s3\ns_lshl_b32 s{t2}, s{t2}, 16\n"
                f"s_lshl_b32 s3, s{sN}, 8\ns_add_u32 s{t2}, s{t2}, s3\ns_and_b32 s3, s{sW}, 1\ns_lshl_b32 s3, s3, 7\ns_add_u32 s{t2}, s{t2}, s3", None))
    pre += ops_of(f"v_lshlrev_b32 {v(TM+4)}, 15, {v(HF)}\nv_lshl_add_u32 {v(TM+4)}, {v(LR)}, 2, {v(TM+4)}")
    wr = lambda u: [(f"ds_write_b128 {v(GA)}, {v(ACC+16*u+4*q,4)} offset:{(u>>1)*SLOT + (u&1)*4096 + q*1024}", "fw") for q in range(4)]
    if tail_major:
        for j in (1, 2, 3):
            run(b_reads(40 + j))
        run(pre)
        for u in (3, 2, 1, 0):
            for j in range(4):
                k.wait(vm=f"ab10_{j}", lg=f"f{40+j}")
                mfma(ACC + 16 * u, a(32 * (10 % 4) + 8 * j + 4 * (u >> 1), 4), a(FR + 8 * j + 4 * (u & 1), 4))
                late = {(2, 3): wr(3)[:1], (1, 0): wr(3)[1:2], (1, 1): wr(3)[2:3], (1, 2): wr(3)[3:], (1, 3): wr(2)[:1], (0, 0): wr(2)[1:2], (0, 1): wr(2)[2:3], (0, 2): wr(2)[3:],
                        (0, 3): wr(1)}
                run(late.get((u, j), []))
        stamp("p2done")
    else:
        stamp("p2done")
        run(pre)
        for u in (1, 2, 3):
            run(wr(u))
    k(f"s_mov_b32 s{t0}, 0x3f317218")
    k.wait(lg="all")
    k("s_barrier")
    for q in range(4):
        for u in (1, 2, 3):
            k(f"ds_read_b128 {v(ACC+16*u+4*q,4)}, {v(GA+u)} offset:{(u>>1)*SLOT + (u&1)*4096 + q*1024}", f"fr{q}")
    for q in range(4):
        k.wait(lg=f"fr{q}")
        for i in (0, 2):
            r = 4 * q + i
            k(f"v_pk_add_f32 {v(ACC+r,2)}, {v(ACC+r,2)}, {v(ACC+16+r,2)}\nv_pk_add_f32 {v(ACC+32+r,2)}, {v(ACC+32+r,2)}, {v(ACC+48+r,2)}")
        for i in (0, 2):
            r = 4 * q + i
            k(f"v_pk_add_f32 {v(ACC+r,2)}, {v(ACC+r,2)}, {v(ACC+32+r,2)}\nv_pk_fma_f32 {v(ACC+r,2)}, {v(ACC+r,2)}, {s(t0,2)}, {v(XS+r,2)} op_sel_hi:[1,0,1]")
        for i in range(4):
            r = 4 * q + i
            k(f"buffer_store_dword {v(ACC+r)}, {v(TM+4)}, {s(rOUT,4)}, s{t2} offen offset:{(r&1)*2048} {out_flags}", "out")
            if r & 1:
                k(f"s_add_u32 s{t2}, s{t2}, 4096")
    k(f"s_cmp_lg_u32 s{sC}, 15\ns_cbranch_scc1 L_fin\ns_or_b32 s3, s{sG}, s{sW}\ns_cmp_lg_u32 s3, 0\ns_cbranch_scc1 L_fin")
    k(f"v_mov_b32 {v(TM+5)}, s{sTAG}\ns_mov_b64 exec, 1")
    k(f"buffer_store_dword {v(TM+5)}, off, {s(rWS,4)}, 0 sc1\ns_mov_b64 exec, -1")
    k("L_fin:")
    if diag:
        k("s_waitcnt vmcnt(0)")
        stamp("end")
        for i in range(len(seen)):
            k(f"v_writelane_b32 {v(DG)}, s{FINE[i]}, {16+i}")
        k(f"s_lshl_b32 s3, s2, 2\ns_add_u32 s3, s3, s{sW}\ns_lshl_b32 s3, s3, 8\ns_add_u32 s3, s3, {DIAG}\nv_lshlrev_b32 {v(TM)}, 2, {v(L)}")
        k(f"buffer_store_dword {v(DG)}, {v(TM)}, {s(rWS,4)}, s3 offen")
        if amplify:
            k(f"s_cmp_lg_u32 s2, {amp_wg}\ns_cbranch_scc1 L_end")
            k(f"v_readlane_b32 s12, {v(DG)}, 0\nv_readlane_b32 s13, {v(DG)}, {stamps.index(amplify)}\nv_readlane_b32 s14, {v(DG)}, {len(stamps)-1}\ns_nop 3")
            k("s_sub_u32 s13, s13, s12\ns_min_u32 s13, s13, 5000\ns_lshl_b32 s13, s13, 2")
            k("L_amp:\ns_memrealtime s[34:35]\ns_waitcnt lgkmcnt(0)\ns_sub_u32 s3, s34, s14\ns_cmp_lt_u32 s3, s13\ns_cbranch_scc1 L_amp")
    k("L_end:")
    k("s_endpgm")
    for text in cold:
        k(text)

    body, nops = pad(k.lines)
    hdr = open("parallel_sum__ssm_conv_s5__dense_activation_mish__prompt.s.ref").read().split("; Override")[0]
    text = hdr + "; @launch grid=(256,1,1) block=(256,1,1) lds=163840\n"
    text += f'.amdgcn_target "amdgcn-amd-amdhsa--gfx950"\n.text\n.globl {KNAME}\n.p2align 8\n.type {KNAME},@function\n{KNAME}:\n'
    text += "\n".join(body) + "\n"
    text += f""".section .rodata,"a"
.p2align 6
.amdhsa_kernel {KNAME}
  .amdhsa_next_free_vgpr 512
  .amdhsa_next_free_sgpr 102
  .amdhsa_accum_offset 256
  .amdhsa_group_segment_fixed_size 0
  .amdhsa_kernarg_size 128
  .amdhsa_user_sgpr_count 2
  .amdhsa_user_sgpr_kernarg_segment_ptr 1
  .amdhsa_system_sgpr_workgroup_id_x 1
.end_amdhsa_kernel
"""
    return text, dict(nops=nops, vgprs=V.next, stamps=stamps, seen=seen, lines=len(body), regs=V.names)


if __name__ == "__main__":
    import json
    kw = json.loads(sys.argv[2]) if len(sys.argv) > 2 else {}
    text, info = gen(**kw)
    open(sys.argv[1], "w").write(text)
    print({q: info[q] for q in ("nops", "vgprs", "lines")})
```

```python
import sys
from emit import K, Alloc, rng, pad

KNAME = "parallel_sum__ssm_conv_s5__dense_activation_mish__prompt_kernel"
EPOCH, STATS, XID, CS, EG, FLA, FLB, FLC, AF = 0, 0x10000, 0x20000, 0x30000, 0x40000, 0x80000, 0xA0000, 0xC0000, 0x100000
DIAG = 200 << 20
MT = 176 * 1024
SLOT = 40960
HIGH = 2 * SLOT
SCR = 32768
SCR_EX, SCR_CX = SCR + 1024, SCR + 4096
SCR_HT = SLOT + 32768
RING = {b: SLOT * q for b, q in enumerate((0, 1, 2, 3, 0, 1, 2, 3, 0, 1, 2))}
RES = 160
LOG2E = 0x3fb8aa3b
SPIN = 1 << 16


def weight(op):
    if callable(op):
        return 0.2
    w = 0.0
    for l in op[0].split("\n"):
        mn = l.split()[0]
        w += 2 if mn in ("v_exp_f32", "v_rcp_f32", "v_sin_f32", "v_cos_f32") else 0.3 if mn.startswith("s_") else 1
    return w


def cost(op):
    if callable(op):
        return 3
    c = 0.0
    for l in op[0].split("\n"):
        mn = l.split()[0]
        c += (8.3 if mn in ("v_exp_f32", "v_rcp_f32", "v_sin_f32", "v_cos_f32") else 13 if mn.startswith("buffer_") else
              1 if mn.startswith("s_") else 4.3)
    return c


def spread(ops, n):
    total = sum(map(weight, ops)) or 1
    out = [[] for _ in range(n)]
    acc = 0.0
    for op in ops:
        out[min(n - 1, int(acc / total * n + 1e-9))].append(op)
        acc += weight(op)
    return out


def spread_mem(ops, n):
    groups, cur = [], []
    for op in ops:
        cur.append(op)
        if not callable(op) and op[1] is not None:
            groups.append(cur); cur = []
    if cur:
        groups[-1] += cur
    out = [[] for _ in range(n)]
    for i, g in enumerate(groups):
        out[i * n // len(groups)] += g
    return out


def gen(mode="global", mapping="x8g4", diag=False, rot="none", amplify=None, amp_wg=0, out_flags="", ablate=(), l2pf=False,
        pf_at=4, gran_at=6, look=2, fine=(), p2_at=1, p3_at=5, dist=3, xs_at=4, tail_major=True, far_at=1, mt_pad=0, lite=3, trickle=True, budget=33, pre3=True, f3_at=2, p2_mid=False):
    MT = 176 * 1024 + mt_pad
    npre = 2
    k = K()
    V = Alloc("v", 1, 256)
    v = lambda r, n=1: rng("v", r, n)
    a = lambda r, n=1: rng("a", r, n)
    s = lambda r, n=1: rng("s", r, n)
    st = "sc1" if mode == "global" else ""

    sC, sG, sW, sROT, sM, sN, sTAG, sLOC = 4, 5, 6, 7, 8, 9, 10, 11
    t0, t1, t2, t3 = 12, 13, 14, 15
    pX, pLR, pLI, pBR, pBI, pCR, pCI, pDT, pDS, pW1, pB1, pW2, pOUT, pWS = 16, 18, 20, 22, 24, 26, 28, 30, 32, 36, 38, 40, 42, 46
    rX, rW1, rB, rE, rW2, rCR, rCI, rWS, rOUT = 48, 52, 56, 60, 64, 68, 72, 76, 80
    sXB, sBB, sWB, sA0, sP1, sKW, sCNT, sAF, sQ, sW12, sW13 = 84, 85, 86, 87, 88, 89, 90, 91, 92, 93, 94
    sHI, sXCC, sF, sP0 = 98, 100, 97, 96
    sBE, sBX, sBL, sAE, sAX, sAL, sGE, sGL, sJ, sXD = 18, 19, 20, 21, 22, 23, 24, 25, 95, 101
    sD = 34

    L, LR, HF, L16, TAU = V("l"), V("lr"), V("hf"), V("l16"), V("tau")
    XD, CD, WD, W2D = V("xd", 4), V("cd", 4), V("wd", 4), V("w2d", 4)
    XR, WR, BQ, CR, W2R = V("xr", 4), V("wr", 4), V("bq", 4), V("cr", 8), V("w2r", 4)
    LAR, LAI, NLAI, L16R, L16I, NL16I, PWR, PWI, L2R, L2I, SCRR, SCI, CFR, NCFR, NCFI = [V(x) for x in
        "lar lai nlai l16r l16i nl16i pwr pwi l2r l2i scr sci cfr ncfr ncfi".split()]
    PR, PI, MF = V("pr"), V("pi"), V("mf")
    ACC, SS, T = V("acc", 64, 4), V("ss", 32, 4), V("t", 32, 4)
    XA, XB, WE = V("xa", 4, 4), V("xb", 4, 4), V("we", 12, 4)
    MI = V("mish", 16, 4)
    TM = V("tmp", 20, 4)
    C1, RS = V("c1", 1, 2), V("rs")
    DSK = V("dsk")
    BI = V("bias", 2)
    DG = V("diag")
    FR = 128
    RSV, EK, XS = MI, TM, SS

    stamps = []
    def stamp(name):
        probe(name)
        if diag and (not fine or name == "end"):
            stamps.append(name)
            k(f"s_memrealtime s[{sD}:{sD+1}]\ns_memtime s[44:45]\ns_waitcnt lgkmcnt(0)")
            k.lg_done = len(k.lg)
            k(f"v_writelane_b32 {v(DG)}, s{sD}, {len(stamps)-1}\nv_writelane_b32 {v(DG)}, s44, {len(stamps)+31}")

    FINE = (16, 26, 28, 30, 32, 36, 38, 40, 42)
    seen = []
    def probe(key):
        if key in fine and key not in seen:
            k(f"s_memtime s[{FINE[len(seen)]}:{FINE[len(seen)]+1}]")
            seen.append(key)

    def srd(d, p, nbytes):
        return f"s_mov_b32 s{d}, s{p}\ns_mov_b32 s{d+1}, s{p+1}\ns_mov_b32 s{d+2}, {nbytes:#x}\ns_mov_b32 s{d+3}, 0x20000"

    def mfma(d, x, y, c=None):
        k(f"v_mfma_f32_32x32x16_bf16 {v(d,16)}, {x}, {y}, {v(d,16) if c is None else c}")

    def untracked(text):
        n = len(k.vm)
        k(text)
        del k.vm[n:]

    def run(ops):
        for op in ops:
            if callable(op):
                op()
            else:
                k(*op)

    def ops_of(text, tag=None):
        return [(l, tag) for l in text.split("\n")]

    W = lambda **kw: (lambda: k.wait(**kw))

    k("s_cmp_ge_u32 s2, 256\ns_cbranch_scc1 L_end")
    k("s_load_dwordx16 s[16:31], s[0:1], 0\ns_load_dwordx16 s[32:47], s[0:1], 64")
    if diag:
        k("s_memrealtime s[12:13]\ns_memtime s[10:11]")
    A_, B_, C_, D_ = TM, TM + 1, TM + 2, TM + 3
    k(f"v_and_b32 {v(L)}, 63, v0\nv_lshrrev_b32 {v(A_)}, 6, v0\nv_and_b32 {v(LR)}, 31, v0")
    k(f"v_readfirstlane_b32 s{sW}, {v(A_)}")
    k(f"v_lshrrev_b32 {v(HF)}, 5, {v(L)}\nv_lshlrev_b32 {v(L16)}, 4, {v(L)}")
    k(f"s_and_b32 s14, s2, 7\ns_lshr_b32 s15, s2, 3\ns_mov_b32 s{sXD}, s14\ns_mov_b32 s{sJ}, s15")
    if mapping == "rows":
        k(f"s_and_b32 s3, s15, 1\ns_lshl_b32 s{sC}, s14, 1\ns_or_b32 s{sC}, s{sC}, s3\ns_lshr_b32 s{sG}, s15, 1")
    elif mapping == "x8g4":
        k(f"s_lshr_b32 s3, s14, 2\ns_lshl_b32 s3, s3, 3\ns_and_b32 s{sC}, s15, 7\ns_or_b32 s{sC}, s{sC}, s3")
        k(f"s_and_b32 s3, s14, 3\ns_lshl_b32 s3, s3, 2\ns_lshr_b32 s{sG}, s15, 3\ns_or_b32 s{sG}, s{sG}, s3")
    elif mapping == "x4g8":
        k(f"s_lshr_b32 s3, s14, 1\ns_lshl_b32 s3, s3, 2\ns_and_b32 s{sC}, s15, 3\ns_or_b32 s{sC}, s{sC}, s3")
        k(f"s_and_b32 s3, s14, 1\ns_lshl_b32 s3, s3, 3\ns_lshr_b32 s{sG}, s15, 2\ns_or_b32 s{sG}, s{sG}, s3")
    k({"cg": f"s_add_u32 s{sROT}, s{sC}, s{sG}\ns_and_b32 s{sROT}, s{sROT}, 7", "none": f"s_mov_b32 s{sROT}, 0",
       "c": f"s_and_b32 s{sROT}, s{sC}, 7", "g": f"s_and_b32 s{sROT}, s{sG}, 7"}[rot])
    k(f"s_cmp_gt_u32 s{sG}, {lite}\ns_subb_u32 s{sF}, s{sG}, 0\ns_cmp_gt_u32 s{sG}, {lite + 8}\ns_subb_u32 s{sF}, s{sF}, 0")
    k(f"s_lshl_b32 s{sW12}, s{sW}, 12\ns_lshl_b32 s{sW13}, s{sW}, 13")
    k(f"v_lshrrev_b32 {v(A_)}, 3, {v(L)}")
    k(f"v_and_b32 {v(B_)}, 7, {v(L)}\nv_lshrrev_b32 {v(C_)}, 4, {v(L)}")
    k(f"v_xor_b32 {v(B_)}, {v(B_)}, {v(C_)}\nv_lshlrev_b32 {v(B_)}, 4, {v(B_)}")
    k(f"v_and_b32 {v(C_)}, 3, {v(A_)}\nv_lshl_add_u32 {v(C_)}, {v(HF)}, 4, {v(C_)}")
    k(f"v_lshl_add_u32 {v(XD)}, {v(C_)}, 10, {v(B_)}")
    k(f"v_xor_b32 {v(XD+1)}, 64, {v(XD)}\nv_add_u32 {v(XD+2)}, 6144, {v(XD)}")
    k(f"v_add_u32 {v(XD+3)}, 9216, {v(XD+1)}\nv_add_u32 {v(XD+1)}, 3072, {v(XD+1)}")
    k(f"v_lshl_add_u32 {v(CD)}, {v(A_)}, 10, {v(B_)}")
    k(f"v_xor_b32 {v(CD+1)}, 64, {v(CD)}\nv_add_u32 {v(CD+2)}, {2*7168}, {v(CD)}\nv_add_u32 {v(CD+3)}, {3*7168}, {v(CD+1)}\nv_add_u32 {v(CD+1)}, 7168, {v(CD+1)}")
    k(f"v_lshlrev_b32 {v(A_)}, 10, {v(HF)}\nv_lshl_add_u32 {v(A_)}, {v(LR)}, 4, {v(A_)}")
    k(f"s_lshl_b32 s{sXB}, s{sC}, 17\ns_lshl_b32 s3, s{sW}, 15\ns_add_u32 s{sXB}, s{sXB}, s3")
    k(f"s_and_b32 s3, s{sW}, 1\ns_lshl_b32 s3, s3, 14\ns_lshl_b32 s{sBB}, s{sG}, 15\ns_add_u32 s{sBB}, s{sBB}, s3")
    k(f"v_lshrrev_b32 {v(C_)}, 4, {v(L)}\nv_and_b32 {v(D_)}, 15, {v(L)}\nv_lshlrev_b32 {v(B_)}, 2, {v(C_)}")
    k(f"v_xor_b32 {v(D_)}, {v(D_)}, {v(B_)}\nv_lshlrev_b32 {v(D_)}, 4, {v(D_)}\nv_mul_u32_u24 {v(C_)}, 3584, {v(C_)}\nv_add_u32 {v(WD)}, {v(C_)}, {v(D_)}")
    for i in (1, 2, 3):
        k(f"v_add_u32 {v(WD+i)}, {i*13312}, {v(WD)}")
    k(f"s_mul_i32 s{sWB}, s{sW}, {16*3584}\ns_lshl_b32 s3, s{sF}, 8\ns_add_u32 s{sWB}, s{sWB}, s3")
    k(f"s_lshl_b32 s3, s{sC}, 4\ns_add_u32 s3, s3, s{sG}\ns_lshl_b32 s3, s3, 2\ns_add_u32 s3, s3, s{sW}\ns_lshl_b32 s{t2}, s3, 11")
    k(f"s_lshl_b32 s3, s{sG}, 5\nv_add_lshl_u32 {v(B_)}, {v(LR)}, s3, 1")
    k(f"s_lshl_b32 s3, s{sF}, 7\nv_add_lshl_u32 {v(C_)}, {v(L)}, s3, 1\nv_min_u32 {v(C_)}, 3454, {v(C_)}")
    k(f"s_and_b32 s{sN}, s{sG}, 7\ns_lshl_b32 s3, s{sN}, 1\ns_and_b32 s{t3}, s{sW}, 1\ns_or_b32 s3, s3, s{t3}\ns_lshl_b32 s3, s3, 5\nv_add_lshl_u32 {v(D_)}, {v(LR)}, s3, 1")
    k("s_waitcnt lgkmcnt(0)")
    if diag:
        k(f"v_writelane_b32 {v(DG)}, s12, 0\nv_writelane_b32 {v(DG)}, s10, 32"); stamps.append("start")
    k(srd(rX, pX, 2 << 20))
    SR = TM + 4
    PL = MI
    k(f"global_load_ushort {v(PL)}, {v(B_)}, {s(pLR,2)}\nglobal_load_ushort {v(PL+1)}, {v(B_)}, {s(pLI,2)}\nglobal_load_ushort {v(PL+2)}, {v(B_)}, {s(pDT,2)}", "par")
    k(f"buffer_load_dwordx4 {v(SR,4)}, {v(A_)}, {s(rX,4)}, s{t2} offen", "srow")
    k(f"buffer_load_dwordx4 {v(SR+4,4)}, {v(A_)}, {s(rX,4)}, s{t2} offen offset:512", "srow")
    k(f"s_load_dword s{sTAG}, s[{pWS}:{pWS+1}], {EPOCH}")
    k(srd(rW1, pW1, 512 * 3584))
    k(f"s_cmp_lt_u32 s{sW}, 2\ns_cselect_b32 s{rB}, s{pBR}, s{pBI}\ns_cselect_b32 s{rB+1}, s{pBR+1}, s{pBI+1}\ns_mov_b32 s{rB+2}, 0x80000\ns_mov_b32 s{rB+3}, 0x20000")

    def stage_ops(stage, full):
        slot = (stage % 4) * SLOT
        tag = f"st{stage}"
        ops = [(f"s_xor_b32 s3, s{sROT}, {stage}\ns_mul_i32 s{sKW}, s3, {64*3584}\ns_lshl_b32 s3, s3, 7\ns_add_u32 s{t1}, s3, s{sBB}\ns_add_u32 s{t0}, s3, s{sXB}\n"
                f"s_add_u32 s{sKW}, s{sKW}, s{sWB}\ns_add_u32 m0, s{sW12}, {slot}", None)]
        ops += [(f"buffer_load_dwordx4 {v(XD+i)}, {s(rX,4)}, s{t0} offen offset:{i*1024} lds", tag) for i in range(4)]
        ops += [(f"s_lshr_b32 s3, s{sW12}, 1\ns_add_u32 m0, s3, {slot + 32768}", None)]
        ops += [(f"buffer_load_dwordx4 {v(CD+i)}, {s(rB,4)}, s{t1} offen offset:{i*1024} lds", tag) for i in range(2)]
        if full:
            ops += [(f"s_add_u32 m0, s{sW12}, {slot + 16384}", None)]
            ops += [(f"buffer_load_dwordx4 {v(WD+i)}, {s(rW1,4)}, s{sKW} offen offset:{i*1024} lds", tag) for i in range(4)]
        return ops

    def ring_ops(b):
        tag = f"rb{b}"
        if b < 7:
            src, add = (sBE, b) if b < 3 else (sBX, 0) if b == 3 else (sBL, b - 4)
            head, step = f"s_add_u32 s{t0}, s{src}, {add*131072}", f"s_add_u32 s{t0}, s{t0}, 32768"
            r, D = rW2, W2D
        else:
            head = (f"s_lshl_b32 s{t0}, s{sN}, 1\ns_and_b32 s3, s{sW}, 1\ns_or_b32 s{t0}, s{t0}, s3\ns_lshl_b32 s{t0}, s{t0}, 15\n"
                    f"s_lshl_b32 s3, s{sW}, 8\ns_add_u32 s{t0}, s{t0}, s3")
            if (b - 7) & 1:
                head += f"\ns_add_u32 s{t0}, s{t0}, 128"
            step = f"s_xor_b32 s{t0}, s{t0}, 32768"
            r, D = (rCI if b >= 9 else rCR), CD
        ops = [(head + f"\ns_add_u32 m0, s{sW13}, {RING[b]}", None)]
        for i in range(8):
            if i == 4:
                ops.append((f"s_add_u32 m0, m0, 4096\n{step}", None))
            ops.append((f"buffer_load_dwordx4 {v(D+(i&3))}, {s(r,4)}, s{t0} offen offset:{(i&3)*1024} lds", tag))
        return ops

    def par_loads():
        k(f"global_load_ushort {v(BI)}, {v(C_)}, {s(pB1,2)}\nglobal_load_ushort {v(BI+1)}, {v(C_)}, {s(pB1,2)} offset:128", "par2")
        k(f"global_load_ushort {v(DSK)}, {v(D_)}, {s(pDS,2)}", "par2")

    def early_setup():
        o = [(srd(rWS, pWS, 1 << 28), None), (f"s_mov_b32 s{sHI}, 0\ns_mov_b32 s{sHI+1}, -1\ns_getreg_b32 s{sXCC}, hwreg(HW_REG_XCC_ID)\ns_and_b32 s{sXCC}, s{sXCC}, 15", None)]
        P0, P1, P2 = TM + 12, TM + 13, TM + 14
        e = lambda text: o.extend(ops_of(text))
        e(f"v_bfe_u32 {v(P0)}, {v(LR)}, 1, 3\nv_xor_b32 {v(P0)}, {v(P0)}, {v(HF)}\nv_lshlrev_b32 {v(P0)}, 4, {v(P0)}\nv_lshl_add_u32 {v(P0)}, {v(LR)}, 7, {v(P0)}")
        e(f"v_add_u32 {v(XR)}, s{sW12}, {v(P0)}\nv_add_u32 {v(BQ)}, 32768, {v(P0)}\nv_add_u32 {v(CR)}, s{sW13}, {v(P0)}")
        for j in (1, 2, 3):
            e(f"v_xor_b32 {v(XR+j)}, {j << 5}, {v(XR)}\nv_xor_b32 {v(BQ+j)}, {j << 5}, {v(BQ)}")
        e(f"v_bfe_u32 {v(P0)}, {v(L)}, 2, 2\nv_and_b32 {v(P1)}, 3, {v(L)}\nv_lshlrev_b32 {v(P1)}, 3, {v(P1)}\nv_bfe_u32 {v(P2)}, {v(L)}, 4, 1\nv_lshl_add_u32 {v(P1)}, {v(P2)}, 5, {v(P1)}")
        e(f"v_lshl_add_u32 {v(P2)}, {v(HF)}, 3, {v(P0)}\nv_lshl_add_u32 {v(P2)}, {v(P2)}, 8, {v(P1)}\nv_lshl_add_u32 {v(P2)}, {v(P0)}, 6, {v(P2)}\nv_add_u32 {v(WR)}, 16384, {v(P2)}")
        for t in (1, 2, 3):
            e(f"v_xor_b32 {v(WR+t)}, {t << 6}, {v(WR)}")
        e(f"v_lshrrev_b32 {v(P2)}, 1, {v(P0)}\nv_lshl_add_u32 {v(P1)}, {v(P2)}, 6, {v(P1)}\nv_lshl_add_u32 {v(P2)}, {v(HF)}, 2, {v(P0)}\nv_lshl_add_u32 {v(P2)}, {v(P2)}, 7, {v(P1)}\nv_add_u32 {v(W2R)}, s{sW13}, {v(P2)}")
        g = lambda text: o.append((text, None))
        g(srd(rW2, pW2, 1792 * 1024)); g(srd(rCR, pCR, 1 << 19)); g(srd(rCI, pCI, 1 << 19)); g(srd(rOUT, pOUT, 4 << 20))
        g(f"s_lshl_b32 s3, s{sG}, 13\ns_add_u32 s{rE}, s{pWS}, s3\ns_addc_u32 s{rE+1}, s{pWS+1}, 0\ns_add_u32 s{rE}, s{rE}, {EG}\ns_addc_u32 s{rE+1}, s{rE+1}, 0\n"
          f"s_mov_b32 s{rE+2}, 8192\ns_mov_b32 s{rE+3}, 0x20000")
        g(f"s_lshr_b32 s3, s{sG}, 3\ns_lshl_b32 s{sM}, s{sC}, 1\ns_or_b32 s{sM}, s{sM}, s3")
        g(f"s_cmp_eq_u32 s{sW}, 3\ns_cselect_b32 s3, 1, 0\ns_lshl_b32 s{sGE}, s{sW}, 2\ns_sub_u32 s{sGE}, s{sGE}, s3\ns_mul_i32 s{sGL}, s{sW}, 3\ns_add_u32 s{sGL}, s{sGL}, s3")
        g(f"s_lshl_b32 s{sAE}, s{sGE}, 13\ns_lshl_b32 s{sAL}, s{sGL}, 13\ns_add_u32 s{sAL}, s{sAL}, 4096\ns_add_u32 s{sAX}, s{sAE}, {6*4096}\ns_add_u32 s3, s{sAL}, 8192\n"
          f"s_cmp_lt_u32 s{sW}, 2\ns_cselect_b32 s{sAX}, s{sAX}, s{sAL}\ns_cselect_b32 s{sAL}, s{sAL}, s3")
        g(f"s_lshl_b32 s3, s{sN}, 7\ns_lshl_b32 s{sBE}, s{sAE}, 4\ns_lshl_b32 s{sBX}, s{sAX}, 4\ns_lshl_b32 s{sBL}, s{sAL}, 4\n"
          f"s_add_u32 s{sBE}, s{sBE}, s3\ns_add_u32 s{sBX}, s{sBX}, s3\ns_add_u32 s{sBL}, s{sBL}, s3")
        g(f"s_lshl_b32 s3, s{sC}, 2\ns_add_u32 s3, s3, s{sW}\ns_mul_i32 s{sAF}, s3, {MT}\ns_add_u32 s{sAF}, s{sAF}, {AF}")
        return o

    def row_stats():
        o = []
        def k2(text, tag=None, atomic=False):
            o.extend([(text, tag)] if atomic or tag else ops_of(text))
        S1, S2, U1, U2 = TM, TM + 1, TM + 2, TM + 3
        k2(f"v_mov_b32 {v(S1)}, 0\nv_mov_b32 {v(S2)}, 0\ns_mov_b32 s{t3}, 0x3f803f80")
        o.append(W(vm="srow"))
        for i in range(8):
            k2(f"v_dot2c_f32_bf16 {v(S1)}, s{t3}, {v(SR+i)}\nv_dot2c_f32_bf16 {v(S2)}, {v(SR+i)}, {v(SR+i)}")
        for r in (8, 4, 2, 1):
            k2(f"v_add_f32_dpp {v(S1)}, {v(S1)}, {v(S1)} row_ror:{r} row_mask:0xf bank_mask:0xf")
            k2(f"v_add_f32_dpp {v(S2)}, {v(S2)}, {v(S2)} row_ror:{r} row_mask:0xf bank_mask:0xf")
        k2(f"v_mov_b32 {v(U1)}, {v(S1)}\nv_mov_b32 {v(U2)}, {v(S2)}")
        k2(f"v_permlane16_swap_b32 {v(S1)}, {v(U1)}\nv_permlane16_swap_b32 {v(S2)}, {v(U2)}")
        k2(f"v_add_f32 {v(S1)}, {v(S1)}, {v(U1)}\nv_add_f32 {v(S2)}, {v(S2)}, {v(U2)}")
        k2(f"v_mul_f32 {v(S1)}, 0x3b000000, {v(S1)}\nv_mul_f32 {v(S2)}, 0x3b000000, {v(S2)}")
        k2(f"v_fma_f32 {v(S2)}, -{v(S1)}, {v(S1)}, {v(S2)}\nv_max_f32 {v(S2)}, 0, {v(S2)}")
        k2(f"v_cvt_pk_bf16_f32 {v(S2)}, {v(S2)}, {v(S2)}\nv_and_b32 {v(S2)}, 0xffff0000, {v(S2)}\nv_add_f32 {v(S2)}, 0x3727c5ac, {v(S2)}")
        k2(f"v_cvt_pk_bf16_f32 {v(S2)}, {v(S2)}, {v(S2)}\nv_and_b32 {v(S2)}, 0xffff0000, {v(S2)}\nv_sqrt_f32 {v(S2)}, {v(S2)}")
        k2(f"v_cvt_pk_bf16_f32 {v(SR)}, {v(S1)}, {v(S2)}")
        k2("s_waitcnt lgkmcnt(0)")
        k2(f"s_mul_i32 s{sTAG}, s{sTAG}, 0x9e3779b1\ns_add_u32 s{sTAG}, s{sTAG}, 0x7f4a7c15")
        k2(f"v_mov_b32 {v(SR+1)}, s{sTAG}\nv_mov_b32 {v(SR+2)}, s{sXCC}\nv_mov_b32 {v(SR+3)}, s{sTAG}\nv_lshlrev_b32 {v(U1)}, 3, {v(HF)}")
        k2(f"s_lshr_b32 s{t2}, s{t2}, 7\ns_add_u32 s{t2}, s{t2}, {STATS}")
        k2(f"s_lshl_b32 s{t3}, s{sC}, 4\ns_add_u32 s{t3}, s{t3}, s{sG}\ns_lshl_b32 s{t3}, s{t3}, 3\ns_add_u32 s{t3}, s{t3}, {XID}")
        def publish():
            k("s_mov_b32 exec_lo, 1\ns_mov_b32 exec_hi, 1")
            k(f"buffer_store_dwordx2 {v(SR,2)}, {v(U1)}, {s(rWS,4)}, s{t2} offen sc1", "pub0")
            k(f"buffer_store_dwordx2 {v(SR+2,2)}, off, {s(rWS,4)}, s{t3} sc1", "pub0")
            k("s_mov_b64 exec, -1")
            stamp("stats")
        o.append(publish)
        return o

    def late_setup(full):
        o = []
        e = lambda text: o.extend(ops_of(text))
        g = lambda text: o.append((text, None))
        P0, P1, P2 = TM + 12, TM + 13, TM + 14
        for j in (1, 2, 3):
            e(f"v_xor_b32 {v(CR+j)}, {j << 5}, {v(CR)}")
        for j in range(4):
            e(f"v_add_u32 {v(CR+4+j)}, {HIGH}, {v(CR+j)}")
        e(f"v_xor_b32 {v(W2R+1)}, 64, {v(W2R)}\nv_add_u32 {v(W2R+2)}, {HIGH}, {v(W2R)}\nv_add_u32 {v(W2R+3)}, {HIGH}, {v(W2R+1)}")
        e(f"v_lshrrev_b32 {v(P0)}, 3, {v(L)}\nv_and_b32 {v(P1)}, 7, {v(L)}\nv_bfe_u32 {v(P2)}, {v(L)}, 4, 1\nv_lshlrev_b32 {v(P2)}, 2, {v(P2)}")
        e(f"v_xor_b32 {v(P1)}, {v(P1)}, {v(P2)}\nv_lshlrev_b32 {v(P1)}, 4, {v(P1)}")
        g(f"s_and_b32 s3, s{sW}, 1\ns_lshl_b32 s3, s3, 6\nv_xor_b32 {v(P1)}, s3, {v(P1)}")
        e(f"v_lshl_add_u32 {v(W2D)}, {v(P0)}, 10, {v(P1)}")
        for i in (1, 2, 3):
            e(f"v_add_u32 {v(W2D+i)}, {i*7168}, {v(W2D)}")
        e(f"v_bfe_u32 {v(P0)}, {v(LR)}, 2, 1\nv_lshrrev_b32 {v(P1)}, 3, {v(LR)}\nv_and_b32 {v(P2)}, 3, {v(LR)}")
        e(f"v_lshl_add_u32 {v(P2)}, {v(P1)}, 2, {v(P2)}\nv_lshl_add_u32 {v(TAU)}, {v(P0)}, 4, {v(P2)}")
        for z in (XA + 2, XA + 3, XB + 2, XB + 3, WE + 2, WE + 3, WE + 6, WE + 7, WE + 10, WE + 11):
            e(f"v_mov_b32 {v(z)}, 0")
        LRE, LIM, DT, A2, BRV, X0, X1, X2 = range(PL, PL + 8)
        o.append(W(vm="par2"))
        e(f"v_lshlrev_b32 {v(LRE)}, 16, {v(LRE)}\nv_lshlrev_b32 {v(LIM)}, 16, {v(LIM)}\nv_lshlrev_b32 {v(DT)}, 16, {v(DT)}\nv_lshlrev_b32 {v(DSK)}, 16, {v(DSK)}")
        e(f"v_mul_f32 {v(DT)}, {LOG2E:#x}, {v(DT)}\nv_exp_f32 {v(DT)}, {v(DT)}\nv_cvt_pk_bf16_f32 {v(DT)}, {v(DT)}, {v(DT)}\nv_and_b32 {v(DT)}, 0xffff0000, {v(DT)}")
        e(f"v_mul_f32 {v(A2)}, {v(DT)}, {v(LRE)}\nv_mul_f32 {v(BRV)}, {v(DT)}, {v(LIM)}\nv_mul_f32 {v(A2)}, {LOG2E:#x}, {v(A2)}\nv_mul_f32 {v(BRV)}, 0.15915494, {v(BRV)}")
        def cpow(n, dr, di):
            e(f"v_mul_f32 {v(X0)}, {n}, {v(A2)}\nv_mul_f32 {v(X1)}, {n}, {v(BRV)}\nv_exp_f32 {v(X0)}, {v(X0)}\nv_fract_f32 {v(X1)}, {v(X1)}")
            e(f"v_cos_f32 {v(dr)}, {v(X1)}\nv_sin_f32 {v(di)}, {v(X1)}\nv_mul_f32 {v(dr)}, {v(dr)}, {v(X0)}\nv_mul_f32 {v(di)}, {v(di)}, {v(X0)}")
        cpow("1.0", LAR, LAI); cpow("0x41800000", L16R, L16I); cpow("0x43800000", L2R, L2I)
        g(f"s_lshl_b32 s3, s{sW}, 1\nv_add_u32 {v(X2)}, s3, {v(HF)}")
        e(f"v_lshlrev_b32 {v(X2)}, 4, {v(X2)}\nv_cvt_f32_u32 {v(X2)}, {v(X2)}")
        cpow(v(X2), PWR, PWI)
        g(f"s_lshl_b32 s3, s{sW}, 2\nv_add_u32 {v(X2)}, s3, {v(HF)}")
        e(f"v_lshlrev_b32 {v(X2)}, 7, {v(X2)}\nv_cvt_f32_u32 {v(X2)}, {v(X2)}")
        cpow(v(X2), SCRR, SCI)
        e(f"v_sub_f32 {v(NLAI)}, 0, {v(LAI)}\nv_sub_f32 {v(NL16I)}, 0, {v(L16I)}")
        e(f"v_mul_f32 {v(X0)}, {v(LRE)}, {v(LRE)}\nv_fmac_f32 {v(X0)}, {v(LIM)}, {v(LIM)}\nv_rcp_f32 {v(X0)}, {v(X0)}\nv_subrev_f32 {v(X1)}, 1.0, {v(LAR)}")
        e(f"v_mul_f32 {v(CFR)}, {v(X1)}, {v(LRE)}\nv_mul_f32 {v(NCFI)}, {v(X1)}, {v(LIM)}\nv_mul_f32 {v(X0)}, 0x4038aa3b, {v(X0)}")
        e(f"v_fmac_f32 {v(CFR)}, {v(LAI)}, {v(LIM)}\nv_fmac_f32 {v(NCFI)}, {v(NLAI)}, {v(LRE)}")
        e(f"v_mul_f32 {v(CFR)}, {v(CFR)}, {v(X0)}\nv_mul_f32 {v(NCFI)}, {v(NCFI)}, {v(X0)}\nv_sub_f32 {v(NCFR)}, 0, {v(CFR)}")
        e(f"v_mul_f32 {v(T)}, {v(CFR)}, {v(LAR)}\nv_mul_f32 {v(T+16)}, {v(CFR)}, {v(LAI)}\nv_fmac_f32 {v(T)}, {v(NCFI)}, {v(LAI)}\nv_fma_f32 {v(T+16)}, -{v(NCFI)}, {v(LAR)}, {v(T+16)}")
        for i in range(1, 16):
            e(f"v_mul_f32 {v(T+i)}, {v(T+i-1)}, {v(LAR)}\nv_mul_f32 {v(T+16+i)}, {v(T+15+i)}, {v(LAR)}")
            e(f"v_fmac_f32 {v(T+i)}, {v(T+15+i)}, {v(NLAI)}\nv_fmac_f32 {v(T+16+i)}, {v(T+i-1)}, {v(LAI)}")
        return o

    GS, GX, GA = TM, TM + 2, TM + 16

    def gran_loads(full):
        ops = [(f"s_lshr_b32 s{t2}, s{sXB}, 7\ns_add_u32 s{t2}, s{t2}, {STATS}\nv_lshlrev_b32 {v(GA)}, 3, {v(TAU)}", None),
               (f"buffer_load_dwordx2 {v(GS,2)}, {v(GA)}, {s(rWS,4)}, s{t2} offen sc1", "gran"),
               (f"s_lshl_b32 s{t2}, s{sC}, 7\ns_add_u32 s{t2}, s{t2}, {XID}\nv_and_b32 {v(GA)}, 15, {v(L)}\nv_lshlrev_b32 {v(GA)}, 3, {v(GA)}", None),
               (f"buffer_load_dwordx2 {v(GX,2)}, {v(GA)}, {s(rWS,4)}, s{t2} offen sc1", "gran"),
               (f"s_lshl_b32 s{t2}, s{sG}, 8\ns_add_u32 s{t2}, s{t2}, {CS + 1792*8}\nv_lshlrev_b32 {v(GA)}, 12, {v(HF)}\nv_lshl_add_u32 {v(GA)}, {v(LR)}, 3, {v(GA)}", None),
               (f"buffer_load_dwordx2 {v(WE+8,2)}, {v(GA)}, {s(rWS,4)}, s{t2} offen sc1", "gran")]
        if full:
            ops += [(f"s_lshl_b32 s{t2}, s{sF}, 10\ns_add_u32 s{t2}, s{t2}, {CS}\nv_lshlrev_b32 {v(GA)}, 3, {v(L)}", None),
                    (f"buffer_load_dwordx2 {v(WE,2)}, {v(GA)}, {s(rWS,4)}, s{t2} offen sc1", "gran"),
                    (f"buffer_load_dwordx2 {v(WE+4,2)}, {v(GA)}, {s(rWS,4)}, s{t2} offen offset:512 sc1", "gran")]
        return ops

    cold = []
    def spin_check(name, tag, mismatch, reload):
        again, ok = k.label(name + "_again"), k.label(name + "_ok")
        k.wait(vm=tag)
        k(mismatch)
        k(f"s_mov_b32 s{sCNT}, 0\ns_nop 0\ns_cbranch_vccnz {again}")
        k(ok + ":")
        loads = "\n".join(op[0] for op in reload)
        cold.append(f"{again}:\n{loads}\ns_waitcnt vmcnt(0)\n{mismatch}\ns_add_u32 s{sCNT}, s{sCNT}, 1\ns_cmp_gt_u32 s{sCNT}, {SPIN}\n"
                    f"s_cbranch_scc1 {ok}\ns_cbranch_vccnz {again}\ns_branch {ok}")

    def tags_differ(regs, tmp):
        t = f"v_xor_b32 {v(tmp)}, s{sTAG}, {v(regs[0])}\n"
        for r in regs[1:]:
            t += f"v_xor_b32 {v(tmp+1)}, s{sTAG}, {v(r)}\nv_or_b32 {v(tmp)}, {v(tmp)}, {v(tmp+1)}\n"
        return t + f"v_cmp_ne_u32 vcc, 0, {v(tmp)}"

    def gran_check(full):
        spin_check("gran", "gran", tags_differ([GS + 1, GX + 1, WE + 9] + ([WE + 1, WE + 5] if full else []), GA), gran_loads(full))
        k(f"v_cmp_ne_u32 vcc, s{sXCC}, {v(GX)}")
        k(f"v_and_b32 {v(GA)}, 0xffff, {v(GS)}\nv_and_b32 {v(GA+1)}, 0xffff0000, {v(GS)}\nv_lshlrev_b32 {v(MF)}, 16, {v(GS)}")
        k(f"s_cmp_eq_u64 vcc, 0\ns_cselect_b32 s{sLOC}, 1, 0")
        k(f"v_rcp_f32 {v(RS)}, {v(GA+1)}\nv_xor_b32 {v(GA)}, 0x8000, {v(GA)}\nv_lshrrev_b32 {v(GA+1)}, 16, {v(GS)}\nv_lshl_or_b32 {v(GA)}, {v(GA)}, 16, {v(GA)}")
        k(f"v_cndmask_b32 {v(XA)}, {v(GA)}, 0, {s(sHI,2)}\nv_cndmask_b32 {v(XA+1)}, {v(GA+1)}, 0, {s(sHI,2)}")
        k(f"v_cndmask_b32 {v(XB)}, 0, {v(GA)}, {s(sHI,2)}\nv_cndmask_b32 {v(XB+1)}, 0, {v(GA+1)}, {s(sHI,2)}\nv_mov_b32 {v(WE+9)}, 0")
        k(f"s_lshr_b32 s3, s{sW12}, 5\ns_add_u32 s3, s3, {SCR}\nv_lshlrev_b32 {v(GA)}, 9, {v(HF)}\nv_lshl_add_u32 {v(GA)}, {v(TAU)}, 2, {v(GA)}\nv_add_u32 {v(GA)}, s3, {v(GA)}")
        k(f"v_lshlrev_b32 {v(GA+2)}, 6, {v(HF)}\nv_add_u32 {v(GA+2)}, s3, {v(GA+2)}")
        mfma(SS, v(XA, 4), v(WE + 8, 4)); mfma(SS + 16, v(XB, 4), v(WE + 8, 4))
        k(f"v_cndmask_b32 {v(GA+1)}, {v(RS)}, {v(MF)}, {s(sHI,2)}\nv_mul_f32 {v(C1)}, {LOG2E:#x}, {v(RS)}")
        k(f"ds_write_b32 {v(GA)}, {v(GA+1)}", "stw")
        for q in range(4):
            k(f"ds_read_b128 {v(RSV+4*q,4)}, {v(GA+2)} offset:{q*16}", "rsv")
        if full:
            k(f"v_mov_b32 {v(WE+1)}, {v(BI)}\nv_mov_b32 {v(WE+5)}, {v(BI+1)}\ns_lshl_b32 s3, s{sF}, 13\ns_add_u32 s{sA0}, s{sAF}, s3")
            for t in range(4):
                mfma(ACC + 16 * t, v(WE + 4 * (t >> 1), 4), v(XB if t & 1 else XA, 4))

    def pf_ops():
        if not l2pf:
            return [("s_nop 0", "none")]
        P, Q = TM + 18, TM + 19
        rows = mapping != "x8g4"
        o = []
        for h in range(2 if rows else 1):
            col = f"s_mov_b32 s3, {h*4}" if rows else f"s_and_b32 s3, s{sXD}, 1\ns_lshl_b32 s3, s3, 2"
            skip = f"v_cmp_eq_u32 vcc, {lite}, {v(Q)}\nv_lshrrev_b32 {v(P)}, 2, {v(L)}\nv_min_u32 {v(P)}, 13, {v(P)}\nv_subbrev_co_u32 {v(Q)}, vcc, 0, {v(Q)}, vcc\n" if trickle else \
                   f"v_lshrrev_b32 {v(P)}, 2, {v(L)}\nv_min_u32 {v(P)}, 13, {v(P)}\n"
            o += [(f"{col}\nv_and_b32 {v(Q)}, 3, {v(L)}\nv_add_u32 {v(Q)}, s3, {v(Q)}\n{skip}v_lshlrev_b32 {v(Q)}, 7, {v(Q)}\nv_lshl_add_u32 {v(P)}, {v(P)}, 10, {v(Q)}\n"
                   f"s_lshl_b32 s{t2}, s{sJ}, 2\ns_add_u32 s{t2}, s{t2}, s{sW}\ns_mul_i32 s{t2}, s{t2}, {14*1024}", None),
                  (f"buffer_load_dword a255, {v(P)}, {s(rW2,4)}, s{t2} offen", "pf2")]
        half = "" if rows else f"s_and_b32 s3, s{sXD}, 1\ns_lshl_b32 s3, s3, 18\ns_add_u32 s{t2}, s{t2}, s3\n"
        o += [(f"s_lshl_b32 s{t2}, s{sJ}, 2\ns_add_u32 s{t2}, s{t2}, s{sW}\ns_lshl_b32 s{t2}, s{t2}, {12 if rows else 11}\n{half}"
               f"v_and_b32 {v(P)}, {31 if rows else 15}, {v(L)}\nv_lshlrev_b32 {v(P)}, 7, {v(P)}", None),
              (f"buffer_load_dword a255, {v(P)}, {s(rCR,4)}, s{t2} offen", "pf2"),
              (f"buffer_load_dword a255, {v(P)}, {s(rCI,4)}, s{t2} offen", "pf2")]
        return o

    def far_ops():
        if far_at is None:
            return []
        P, Q = TM + 18, TM + 19
        return [(f"s_lshl_b32 s{t2}, s2, 2\ns_add_u32 s{t2}, s{t2}, s{sW}\ns_mul_i32 s3, s{t2}, {14*128}\nv_lshrrev_b32 {v(P)}, 2, {v(L)}\nv_min_u32 {v(Q)}, 13, {v(P)}\nv_lshlrev_b32 {v(Q)}, 7, {v(Q)}\n"
                 f"buffer_load_dword a255, {v(Q)}, {s(rW2,4)}, s3 offen", "far"),
                (f"s_lshl_b32 s{t2}, s{t2}, 9\nv_and_b32 {v(P)}, 3, {v(P)}\nv_lshlrev_b32 {v(P)}, 7, {v(P)}\nbuffer_load_dword a255, {v(P)}, {s(rCR,4)}, s{t2} offen", "far"),
                (f"buffer_load_dword a255, {v(P)}, {s(rCI,4)}, s{t2} offen", "far")]

    def weave(mem, val):
        n = sum(1 for op in mem if op[1] is not None)
        for m, c in zip(spread_mem(mem, n), spread(val, n)):
            run(m); run(c)

    def stage_reads(b):
        hi = RING[b] >= HIGH
        return [W(vm=f"rb{b}")] + [(f"ds_read_b64_tr_b16 {a(RES+32*b+8*j+4*c+2*rd,2)}, {v(W2R+2*hi+c)} offset:{RING[b] - hi*HIGH + j*2048 + rd*1024}", f"sr{b}")
                                   for j in range(4) for c in range(2) for rd in range(2)]

    EA, EB, EX0, EX1, E0 = XD, XD + 1, XD + 2, XD + 3, TM
    HA, HB, XW, XQ = WD, WD + 1, WD + 2, WD + 3
    def e_loads():
        return [(f"buffer_load_dwordx4 {v(E0,4)}, {v(EA)}, {s(rE,4)}, 0 offen sc1", "eg"),
                (f"buffer_load_dwordx4 {v(E0+4,4)}, {v(EB)}, {s(rE,4)}, 0 offen sc1", "eg")]

    def epi_addr():
        o = []
        e = lambda text: o.extend(ops_of(text))
        P = TM + 12
        o.append((f"s_lshl_b32 s3, s{sW}, 2\ns_sub_u32 s3, s{sC}, s3\ns_sub_u32 s3, s3, 1\nv_sub_u32 {v(EA)}, s3, {v(HF)}", None))
        e(f"v_subrev_u32 {v(EB)}, 2, {v(EA)}\nv_ashrrev_i32 {v(EX0)}, 31, {v(EA)}\nv_ashrrev_i32 {v(EX1)}, 31, {v(EB)}\n"
          f"v_bfi_b32 {v(EX0)}, {v(EX0)}, 0, s{sTAG}\nv_bfi_b32 {v(EX1)}, {v(EX1)}, 0, s{sTAG}\nv_lshlrev_b32 {v(P)}, 4, {v(LR)}\n"
          f"v_lshl_add_u32 {v(EA)}, {v(EA)}, 9, {v(P)}\nv_lshl_add_u32 {v(EB)}, {v(EB)}, 9, {v(P)}")
        o.append((f"s_lshr_b32 s3, s{sW12}, 3\ns_add_u32 s3, s3, {SCR_EX}\nv_lshl_add_u32 {v(XW)}, {v(L)}, 3, s3", None))
        e(f"v_lshlrev_b32 {v(XQ)}, 3, {v(LR)}\nv_add_u32 {v(XQ)}, {SCR_EX}, {v(XQ)}")
        o.append((f"s_lshr_b32 s3, s{sW}, 1\ns_mul_i32 s3, s3, {SLOT - 8192}\ns_add_u32 s3, s3, s{sW12}\ns_add_u32 s{sKW}, s3, {SCR_HT}", None))
        e(f"v_lshlrev_b32 {v(HA)}, 5, {v(HF)}\nv_lshl_add_u32 {v(HA)}, {v(LR)}, 6, {v(HA)}\nv_add_u32 {v(HA)}, s{sKW}, {v(HA)}")
        e(f"v_bfe_u32 {v(HB)}, {v(L)}, 2, 2\nv_lshl_add_u32 {v(HB)}, {v(HF)}, 3, {v(HB)}\nv_lshlrev_b32 {v(HB)}, 6, {v(HB)}")
        e(f"v_and_b32 {v(P)}, 1, {v(L)}\nv_lshl_add_u32 {v(HB)}, {v(P)}, 5, {v(HB)}\nv_bfe_u32 {v(P)}, {v(L)}, 1, 1\nv_lshl_add_u32 {v(HB)}, {v(P)}, 3, {v(HB)}")
        e(f"v_bfe_u32 {v(P)}, {v(L)}, 4, 1\nv_lshl_add_u32 {v(HB)}, {v(P)}, 4, {v(HB)}\nv_add_u32 {v(HB)}, s{sKW}, {v(HB)}")
        o.append((f"s_lshr_b32 s3, s{sG}, 2\ns_lshl_b32 s3, s3, 3\ns_and_b32 s{sKW}, s{sG}, 3\ns_add_u32 s3, s3, s{sKW}\ns_lshl_b32 s3, s3, 11\ns_add_u32 s{sKW}, s{sAF}, s3\ns_add_u32 s{sKW}, s{sKW}, {112*1024}", None))
        o.append((f"s_lshl_b32 s3, s{sM}, 1\ns_lshr_b32 s{sP0}, s{sW}, 1\ns_add_u32 s{sP0}, s3, s{sP0}\ns_xor_b32 s{sP1}, s{sP0}, 1\n"
                  f"s_mul_i32 s{sP0}, s{sP0}, {MT}\ns_mul_i32 s{sP1}, s{sP1}, {MT}\ns_add_u32 s{sP0}, s{sP0}, {AF}\ns_add_u32 s{sP1}, s{sP1}, {AF}", None))
        return o

    def gemm1(full, pfx):
        nm = 6 if full else 2
        base_of = lambda stg: ((stg % 4) // 2) * HIGH
        def reads(n):
            stg, j = divmod(n, 4)
            off = (stg % 4) * SLOT - base_of(stg)
            f = FR + 28 * (n & 1)
            d = base_of(stg) - base_of(stg - 1) if stg else 0
            adj = lambda r, on=True: f"v_add_u32 {v(r)}, {d & 0xffffffff:#x}, {v(r)}\n" if d and on else ""
            o = [(adj(XR + j) + f"ds_read_b128 {a(f,4)}, {v(XR+j)} offset:{off}", f"ra{n}")]
            o += [(adj(BQ + j, c == 0) + f"ds_read_b128 {a(f+4+4*c,4)}, {v(BQ+j)} offset:{off + c*4096}", f"ra{n}") for c in range(2)]
            if full:
                o += [(adj(WR + t, j == 0 and rd == 0) + f"ds_read_b64_tr_b16 {a(f+12+4*t+2*rd,2)}, {v(WR+t)} offset:{off + j*4096 + rd*1024}", f"ra{n}" if t == 0 else f"rb_{n}")
                      for t in range(4) for rd in range(2)]
            return o
        if look == 2:
            mem = {sg: stage_ops(sg + 2, full) for sg in range(6)}
            if pre3:
                mem[0] = []
            mem.update({6: ring_ops(0), 7: ring_ops(1)})
        else:
            ramp = spread_mem(sum((stage_ops(sg, full) for sg in range(2, 6)), []), 3)
            mem = {0: ramp[0], 1: ramp[1], 2: ramp[2], 3: stage_ops(6, full), 4: stage_ops(7, full), 5: ring_ops(0), 6: ring_ops(1), 7: ring_ops(2)}
        mem[pf_at] = pf_ops() + mem[pf_at]
        if far_at is not None:
            mem[far_at] = mem[far_at] + far_ops()
        mem[gran_at] = gran_loads(full) + mem[gran_at]
        if trickle and not full:
            for sg in range(7):
                P = TM + 15
                rows = mapping == "rows"
                who = (f"s_and_b32 s3, s{sC}, 1\ns_lshl_b32 s3, s3, 1\ns_lshr_b32 s{sQ}, s{sG}, 3\ns_add_u32 s3, s3, s{sQ}" if rows else f"s_and_b32 s3, s{sC}, 7")
                head = (f"{who}\ns_lshl_b32 s3, s3, 2\ns_add_u32 s3, s3, s{sW}\ns_mul_i32 s{sQ}, s3, {(112 if rows else 56)*1024}\ns_add_u32 s{sQ}, s{sQ}, {lite*128}\n"
                        f"v_lshrrev_b32 {v(P)}, {2 if rows else 3}, {v(L)}\nv_lshlrev_b32 {v(P)}, 10, {v(P)}\n") if sg == 0 else f"s_add_u32 s{sQ}, s{sQ}, {16384 if rows else 8192}\n"
                mem[sg] = mem[sg] + [(head + f"buffer_load_dword a255, {v(P)}, {s(rW2,4)}, s{sQ} offen", "trk")]
        val = ([] if pre3 else late_setup(full))
        for stg in range(8):
            k.wait(vm=f"st{stg}", lg="all" if look == 3 else None)
            k("s_barrier")
            if stg in (0, 4):
                stamp(f"{pfx}st{stg}")
            steps = ([4 * stg - 1] if stg else []) + [4 * stg, 4 * stg + 1, 4 * stg + 2] + ([31] if stg == 7 else [])
            if stg == 0:
                run(reads(0))
            mm = spread_mem(mem[stg], nm * min(4, len(steps))) if mem[stg] else []
            if stg == 6:
                assert look == 2 or not val
                val = val + epi_addr()
            gi = 0
            for n in steps:
                f = FR + 28 * (n & 1)
                last = n % 4 == 2 and look == 3
                rd = spread(reads(n + 1), nm - 2 if last and full else nm) + [[]] * 2 if n < 31 else [[]] * nm
                for i in range(nm):
                    if i == 0:
                        k.wait(lg=f"ra{n}")
                    if i == 3:
                        k.wait(lg=f"rb_{n}")
                    c0 = "0" if n == 0 else None
                    if i < 2:
                        mfma(SS + 16 * i, a(f, 4), a(f + 4 + 4 * i, 4), c0)
                    else:
                        mfma(ACC + 16 * (i - 2), a(f + 12 + 4 * (i - 2), 4), a(f, 4), c0)
                    here = rd[i] + (mm[gi] if gi < len(mm) else [])
                    run(here)
                    used = 8 + sum(map(cost, here)) + (6 if i in (2, nm - 1) else 0)
                    while val and (used + cost(val[0]) <= budget or (not full and used < 60)):
                        used += cost(val[0])
                        run([val.pop(0)])
                    gi += 1
                probe(f"g{n}")
        run(val)

    def scan_ops():
        o = [W(lg="rsv")]
        for r in range(0, 16, 2):
            o += ops_of(f"v_pk_mul_f32 {v(SS+r,2)}, {v(SS+r,2)}, {v(RSV+r,2)}\nv_pk_mul_f32 {v(SS+16+r,2)}, {v(SS+16+r,2)}, {v(RSV+r,2)}")
        for r in range(1, 16):
            o += ops_of(f"v_fmac_f32 {v(SS+r)}, {v(LAR)}, {v(SS+r-1)}\nv_fmac_f32 {v(SS+16+r)}, {v(LAR)}, {v(SS+15+r)}\n"
                        f"v_fmac_f32 {v(SS+r)}, {v(NLAI)}, {v(SS+15+r)}\nv_fmac_f32 {v(SS+16+r)}, {v(LAI)}, {v(SS+r-1)}")
        o.append((f"ds_write2_b32 {v(XW)}, {v(SS+15)}, {v(SS+31)} offset0:0 offset1:1", "exw"))
        return o

    def chain_ops():
        o = [(f"ds_read_b64 {v(EK+2*q,2)}, {v(XQ)} offset:{q*256}", f"ek{q}") for q in range(8)]
        SG = TM + 17
        o.append((f"s_lshl_b32 s3, s{sW}, 1\nv_add_u32 {v(SG)}, s3, {v(HF)}", None))
        o += ops_of(f"v_mov_b32 {v(PR)}, 0\nv_mov_b32 {v(PI)}, 0\nv_mov_b32 {v(XA+1)}, s{sTAG}\nv_mov_b32 {v(XA+3)}, s{sTAG}")
        o.append(W(lg="ek3"))
        for q in range(1, 8):
            r, i = EK + 2 * q, EK + 2 * q + 1
            dr, di = (XA, XA + 2) if q == 7 else (r, i)
            if q == 4:
                o.append(W(lg="ek7"))
            o += ops_of(f"v_cmp_eq_u32 vcc, {q}, {v(SG)}\nv_fmac_f32 {v(r)}, {v(L16R)}, {v(r-2)}\nv_fmac_f32 {v(i)}, {v(L16R)}, {v(i-2)}\n"
                        f"v_cndmask_b32 {v(PR)}, {v(PR)}, {v(r-2)}, vcc\nv_cndmask_b32 {v(PI)}, {v(PI)}, {v(i-2)}, vcc\n"
                        f"v_fma_f32 {v(dr)}, {v(NL16I)}, {v(i-2)}, {v(r)}\nv_fma_f32 {v(di)}, {v(L16I)}, {v(r-2)}, {v(i)}")
        o.append((f"s_cmp_eq_u32 s{sW}, 3\ns_cselect_b32 s3, 0, 0x10000\nv_lshlrev_b32 {v(SG)}, 13, {v(HF)}\nv_add3_u32 {v(SG)}, {v(SG)}, {v(L16)}, s3\ns_lshl_b32 s3, s{sC}, 9\n"
                  f"buffer_store_dwordx4 {v(XA,4)}, {v(SG)}, {s(rE,4)}, s3 offen sc1", "epub"))
        return o

    def coef_ops():
        o = []
        for r in range(0, 16, 2):
            tt = XB + (r & 2)
            o += ops_of(f"v_pk_mul_f32 {v(tt,2)}, {v(SS+r,2)}, {v(NCFI,2)} op_sel_hi:[1,0]\nv_pk_mul_f32 {v(SS+r,2)}, {v(SS+r,2)}, {v(CFR,2)} op_sel_hi:[1,0]\n"
                        f"v_pk_fma_f32 {v(SS+r,2)}, {v(SS+16+r,2)}, {v(NCFI,2)}, {v(SS+r,2)} op_sel_hi:[1,0,1]\n"
                        f"v_pk_fma_f32 {v(SS+16+r,2)}, {v(SS+16+r,2)}, {v(CFR,2)}, {v(tt,2)} op_sel:[0,1,0] op_sel_hi:[1,1,1]")
        return o

    XSL = 3 * SLOT + 32768
    def xs_ops():
        P = TM + 19
        return [(f"s_lshl_b32 s{t2}, s{sM}, 1\ns_lshr_b32 s3, s{sW}, 1\ns_add_u32 s{t2}, s{t2}, s3\ns_lshl_b32 s{t2}, s{t2}, 15\n"
                 f"s_lshl_b32 s3, s{sN}, 7\ns_add_u32 s{t2}, s{t2}, s3\ns_and_b32 s3, s{sW}, 1\ns_lshl_b32 s3, s3, 6\ns_add_u32 s{t2}, s{t2}, s3\n"
                 f"v_lshrrev_b32 {v(P)}, 2, {v(L)}\nv_and_b32 {v(P-1)}, 3, {v(L)}\nv_lshlrev_b32 {v(P-1)}, 4, {v(P-1)}\nv_lshl_add_u32 {v(P)}, {v(P)}, 10, {v(P-1)}\n"
                 f"s_lshr_b32 s3, s{sW12}, 1\ns_add_u32 m0, s3, {XSL}", None),
                (f"buffer_load_dwordx4 {v(P)}, {s(rX,4)}, s{t2} offen lds", "xs"),
                (f"s_add_u32 s{t2}, s{t2}, {16384 - 1024}\nbuffer_load_dwordx4 {v(P)}, {s(rX,4)}, s{t2} offen offset:1024 lds", "xs")]

    def mish_ops(t):
        ops = []
        TA, TB = MI, MI + 8
        for e in range(2):
            R = ACC + 16 * t + 8 * e
            one = lambda f: [(f(i), None) for i in range(8)]
            two = lambda f: [(f(i), None) for i in range(0, 8, 2)]
            ops += two(lambda i: f"v_pk_mul_f32 {v(TA+i,2)}, {v(R+i,2)}, {v(C1,2)} op_sel_hi:[1,0]")
            ops += one(lambda i: f"v_exp_f32 {v(TB+i)}, {v(TA+i)}")
            ops += two(lambda i: f"v_pk_fma_f32 {v(R+i,2)}, {v(TB+i,2)}, 0.5, 1.0 op_sel_hi:[1,0,0]")
            ops += two(lambda i: f"v_pk_fma_f32 {v(TB+i,2)}, {v(TB+i,2)}, {v(R+i,2)}, 1.0 op_sel_hi:[1,1,0]")
            ops += one(lambda i: f"v_rcp_f32 {v(TB+i)}, {v(TB+i)}")
            ops += two(lambda i: f"v_pk_fma_f32 {v(TA+i,2)}, {v(TA+i,2)}, {v(TB+i,2)}, {v(TA+i,2)} neg_lo:[1,0,0] neg_hi:[1,0,0]")
            ops += two(lambda i: f"v_cvt_pk_bf16_f32 {v(R+i//2)}, {v(TA+i)}, {v(TA+i+1)}")
            pre = f"s_add_u32 s{sA0}, s{sA0}, 4096\n" if t == 2 and e == 0 else ""
            ops.append((pre + f"buffer_store_dwordx4 {v(R,4)}, {v(L16)}, {s(rWS,4)}, s{sA0} offen offset:{(2*(t&1)+e)*1024} {st}", f"act{t}"))
        return ops

    PA, PV = BI, BI + 1

    def flag_publish(base, tag):
        k(f"s_lshl_b32 s{sQ}, s{sC}, 4\ns_add_u32 s{sQ}, s{sQ}, s{sG if base == FLC else sF}\ns_lshl_b32 s{sQ}, s{sQ}, 2\ns_add_u32 s{sQ}, s{sQ}, s{sW}\ns_lshl_b32 s{sQ}, s{sQ}, 7\ns_add_u32 s{sQ}, s{sQ}, {base}")
        k(f"v_mov_b32 {v(MF)}, s{sTAG}")
        k.wait(vm=tag)
        k("s_mov_b64 exec, 1")
        text = f"buffer_store_dword {v(MF)}, off, {s(rWS,4)}, s{sQ}"
        if mode == "global":
            k(text + " sc1", "flag")
        else:
            far, done = k.label("far"), k.label("flagged")
            k(f"s_cmp_eq_u32 s{sLOC}, 0\ns_cbranch_scc1 {far}")
            k(text, "flag")
            k(f"s_branch {done}\n{far}:")
            untracked(f"buffer_wbl2 sc1\ns_waitcnt vmcnt(0)\n{text} sc1")
            k(done + ":")
        k("s_mov_b64 exec, -1")

    def poll_load(tag):
        return [(f"buffer_load_dword {v(PV)}, {v(PA)}, {s(rWS,4)}, s{t3} offen sc1", tag)]

    def poll_base(base):
        return f"s_lshl_b32 s3, s{sC}, 5\ns_lshr_b32 s{t3}, s{sG}, 3\ns_add_u32 s3, s3, s{t3}\ns_lshl_b32 s3, s3, 8\ns_add_u32 s{t3}, s3, {base}"

    def poll_ops(first, base, tag):
        top = 15 if base == FLC else 13
        return [(f"{first}\nv_bfe_u32 {v(PA)}, {v(L)}, 1, 2\nv_add_u32 {v(PA)}, s3, {v(PA)}\nv_min_u32 {v(PA)}, {top}, {v(PA)}\nv_and_b32 {v(PV)}, 1, {v(L)}\n"
                 f"v_lshl_add_u32 {v(PA)}, {v(PA)}, 2, {v(PV)}\nv_lshlrev_b32 {v(PA)}, 7, {v(PA)}\n" + poll_base(base), None)] + poll_load(tag)

    poll1_ops = lambda: poll_ops(f"s_mov_b32 s3, s{sGE}", FLA, "poll1")
    poll2_ops = lambda: poll_ops(f"s_mov_b32 s3, s{sGL}", FLB, "poll2")
    poll3_ops = lambda: poll_ops(f"s_lshl_b32 s3, s{sW}, 2", FLC, "poll3")
    poll_check = lambda tag: spin_check(tag, tag, f"v_cmp_ne_u32 vcc, s{sTAG}, {v(PV)}", poll_load(tag))

    def carry_write():
        Y0, Y1 = TM + 12, TM + 13
        mis = (f"v_xor_b32 {v(Y0)}, {v(E0+1)}, {v(EX0)}\nv_xor_b32 {v(Y1)}, {v(E0+3)}, {v(EX0)}\nv_or_b32 {v(Y0)}, {v(Y0)}, {v(Y1)}\n"
               f"v_xor_b32 {v(Y1)}, {v(E0+5)}, {v(EX1)}\nv_or_b32 {v(Y0)}, {v(Y0)}, {v(Y1)}\nv_xor_b32 {v(Y1)}, {v(E0+7)}, {v(EX1)}\nv_or_b32 {v(Y0)}, {v(Y0)}, {v(Y1)}\n"
               f"v_cmp_ne_u32 vcc, 0, {v(Y0)}")
        spin_check("e", "eg", mis, e_loads())
        k(f"v_fmac_f32 {v(E0)}, {v(L2R)}, {v(E0+4)}\nv_fmac_f32 {v(E0+2)}, {v(L2R)}, {v(E0+6)}")
        k(f"v_fma_f32 {v(E0)}, -{v(L2I)}, {v(E0+6)}, {v(E0)}\nv_fmac_f32 {v(E0+2)}, {v(L2I)}, {v(E0+4)}")
        k(f"v_mul_f32 {v(Y0)}, {v(SCRR)}, {v(E0)}\nv_mul_f32 {v(Y1)}, {v(SCRR)}, {v(E0+2)}")
        k(f"v_fma_f32 {v(Y0)}, -{v(SCI)}, {v(E0+2)}, {v(Y0)}\nv_fmac_f32 {v(Y1)}, {v(SCI)}, {v(E0)}")
        k(f"ds_write_b64 {v(XW)}, {v(Y0,2)} offset:{SCR_CX - SCR_EX}", "cxw")
        k.wait(lg="all")
        k("s_barrier")
        for q in range(8):
            k(f"ds_read_b64 {v(TM+2*q,2)}, {v(XQ)} offset:{SCR_CX - SCR_EX + q*256}", "cxr")

    def fix_ops():
        o = []
        e = lambda text, tag=None: o.extend(ops_of(text, tag))
        o.append(W(lg="cxr"))
        for step in (8, 4, 2):
            for q in range(0, step, 2):
                e(f"v_pk_add_f32 {v(TM+q,2)}, {v(TM+q,2)}, {v(TM+q+step,2)}")
        NS = TM + 16
        e(f"v_fmac_f32 {v(PR)}, {v(PWR)}, {v(TM)}\nv_fmac_f32 {v(PI)}, {v(PWR)}, {v(TM+1)}")
        e(f"v_fma_f32 {v(NS)}, -{v(PWI)}, {v(TM+1)}, {v(PR)}\nv_fma_f32 {v(NS+1)}, -{v(PWI)}, {v(TM)}, -{v(PI)}")
        for qq in range(4):
            comp, half = qq >> 1, qq & 1
            for r in range(8 * half, 8 * half + 8, 2):
                d = SS + 16 * comp + r
                e(f"v_pk_fma_f32 {v(d,2)}, {v(T+r,2)}, {v(NS,2)}, {v(d,2)} op_sel:[0,{comp},0] op_sel_hi:[1,{comp},1]")
                if comp == 0:
                    e(f"v_pk_fma_f32 {v(d,2)}, {v(T+16+r,2)}, {v(NS,2)}, {v(d,2)} op_sel:[0,1,0] op_sel_hi:[1,1,1]")
                else:
                    e(f"v_pk_fma_f32 {v(d,2)}, {v(T+16+r,2)}, {v(NS,2)}, {v(d,2)} op_sel:[0,0,0] op_sel_hi:[1,0,1] neg_lo:[0,1,0] neg_hi:[0,1,0]")
            for q in range(4):
                e(f"v_cvt_pk_bf16_f32 {v(TM+4*qq+q)}, {v(SS+8*qq+2*q)}, {v(SS+8*qq+2*q+1)}")
            e(f"ds_write_b128 {v(HA)}, {v(TM+4*qq,4)} offset:{comp*2048 + half*16}", f"htw{comp}")
            if half:
                for f in (2 * comp, 2 * comp + 1):
                    for rd in range(2):
                        e(f"ds_read_b64_tr_b16 {v(SS+16*comp+4*(f&1)+2*rd,2)}, {v(HB)} offset:{f*1024 + rd*256}", f"htr{f}")
        for f in range(4):
            o.append(W(lg=f"htr{f}"))
            pre = f"s_add_u32 s{sKW}, s{sKW}, 8192\n" if f == 2 else ""
            o.append((pre + f"buffer_store_dwordx4 {v(SS+16*(f>>1)+4*(f&1),4)}, {v(L16)}, {s(rWS,4)}, s{sKW} offen offset:{(f&1)*1024} {st}", "hst"))
        return o

    def a_ops(b):
        if b < 7:
            src, add = (sAE, b) if b < 3 else (sAX, 0) if b == 3 else (sAL, b - 4)
            head = f"s_add_u32 s3, s{src}, {add*8192}"
        else:
            head = f"s_lshl_b32 s3, s{sW}, 14\ns_add_u32 s3, s3, {(112 + 4*(b-7))*1024}"
        ops = [(head + f"\ns_add_u32 s{t1}, s{sP0}, s3\ns_add_u32 s{t2}, s{sP1}, s3", None)]
        for j in range(4):
            for m in range(2):
                ops.append((f"buffer_load_dwordx4 {a(32*(b%4)+8*j+4*m,4)}, {v(L16)}, {s(rWS,4)}, s{t2 if m else t1} offen offset:{j*1024} sc1", f"ab{b}_{j}"))
        return ops

    def finish(full):
        carry_write()
        poll_check("poll1")
        stamp("poll" if full else "Lpoll")
        fx = fix_ops()
        if full:
            fx.insert(12, lambda: flag_publish(FLB, "act3"))
        weave(a_ops(0) + a_ops(1) + (poll2_ops() if p2_mid else []) + (a_ops(2) if dist == 3 else []), fx[:-8])
        run(fx[-8:])

    def bar(**kw):
        def f():
            k.wait(**kw)
            k("s_barrier")
        return f

    k(f"s_cmp_eq_u32 s{sN}, {lite}\ns_cbranch_scc1 L_light")
    snap0 = k.snapshot()
    run(stage_ops(0, True)); par_loads()
    weave(stage_ops(1, True), early_setup() + row_stats())
    if pre3:
        weave(stage_ops(2, True), late_setup(True))
    gemm1(True, "")
    stamp("gemm")
    gran_check(True)
    stamp("gran")
    m = [mish_ops(t) for t in range(4)]
    h = len(m[0]) // 2
    if "stores" in ablate:
        m = [[op if op[1] is None else (op[0].replace("offen", "offen").replace(v(L16), v(TM + 19)), op[1]) for op in mt] for mt in m]
        k(f"v_mov_b32 {v(TM+19)}, 0x7fffffff")
    for t in range(4):
        m[t].insert(0, (lambda tt: (lambda: probe(f"m{tt}")))(t))
    if "f1" in ablate:
        k(f"v_mov_b32 {v(MF)}, 0")
    r2 = ring_ops(2) if look == 2 else []
    run(scan_ops())
    run(m[0][:h])
    bar(lg="all")()
    weave(r2 + ring_ops(3), chain_ops() + stage_reads(0) + m[0][h:] + [W(lg="sr0")])
    stamp("epub")
    weave(ring_ops(4), stage_reads(1) + m[1] + [W(lg="sr1")])
    weave(ring_ops(5), stage_reads(2) + m[2] + [lambda: probe("f1a"), lambda: flag_publish(FLA, "act1"), lambda: probe("f1b"), W(lg="sr2")])
    run(e_loads())
    weave(ring_ops(6), m[3] + coef_ops())
    run(poll1_ops())
    stamp("mish")
    finish(True)
    k.wait(lg="all")
    k("s_branch L_join")
    snap_join = k.snapshot()

    k("L_light:")
    k.restore(snap0)
    k(f"s_lshl_b32 s{sQ}, s{sC}, 1\ns_lshr_b32 s3, s{sG}, 3\ns_add_u32 s{sQ}, s{sQ}, s3")
    k(f"s_cmp_lt_u32 s{sQ}, 16\ns_cselect_b32 s{rE}, s{pBR}, s{pBI}\ns_cselect_b32 s{rE+1}, s{pBR+1}, s{pBI+1}\ns_mov_b32 s{rE+2}, 0x80000\ns_mov_b32 s{rE+3}, 0x20000")
    k(f"s_and_b32 s{t0}, s{sQ}, 15\ns_lshl_b32 s{t0}, s{t0}, 15\ns_add_u32 s{t0}, s{t0}, s{sW13}")
    for i in range(8):
        if i == 4:
            k(f"s_add_u32 s{t0}, s{t0}, 4096")
        k(f"buffer_load_dwordx4 {v(SS+4*i,4)}, {v(L16)}, {s(rE,4)}, s{t0} offen offset:{(i&3)*1024}", "lb")
    k(f"s_min_u32 s{t0}, s{sQ}, 27\ns_lshl_b32 s{t0}, s{t0}, 7\ns_mul_i32 s3, s{sW}, {128*3584}\ns_add_u32 s{t0}, s{t0}, s3")
    k(f"v_lshrrev_b32 {v(TM+16)}, 3, {v(L)}\nv_mul_u32_u24 {v(TM+16)}, 3584, {v(TM+16)}\nv_and_b32 {v(TM+17)}, 7, {v(L)}\nv_lshl_add_u32 {v(TM+16)}, {v(TM+17)}, 4, {v(TM+16)}")
    for i in range(16):
        k(f"buffer_load_dwordx4 {v(ACC+4*i,4)}, {v(TM+16)}, {s(rW1,4)}, s{t0} offen", f"lw{i}")
        k(f"s_add_u32 s{t0}, s{t0}, {8*3584}")
    par_loads()
    run(early_setup()); run(row_stats())
    CA, EL = TM, TM + 8

    def fold8(R):
        for j in range(0, 8, 2):
            k(f"v_permlane32_swap_b32 {v(R+j)}, {v(R+j+1)}")
        for j in range(0, 8, 2):
            k(f"v_add_f32 {v(R+j)}, {v(R+j)}, {v(R+j+1)}")
        k(f"v_permlane16_swap_b32 {v(R)}, {v(R+2)}\nv_permlane16_swap_b32 {v(R+4)}, {v(R+6)}")
        k(f"v_add_f32 {v(R)}, {v(R)}, {v(R+2)}\nv_add_f32 {v(R+4)}, {v(R+4)}, {v(R+6)}")

    def split_publish(R, addr, soff):
        k(f"v_cvt_pk_bf16_f32 {v(R+1)}, {v(R)}, {v(R)}\nv_and_b32 {v(R+1)}, 0xffff0000, {v(R+1)}\nv_sub_f32 {v(R+1)}, {v(R)}, {v(R+1)}")
        k(f"v_cvt_pk_bf16_f32 {v(R)}, {v(R)}, {v(R+1)}\nv_mov_b32 {v(R+1)}, s{sTAG}")
        k(f"buffer_store_dwordx2 {v(R,2)}, {v(addr)}, {s(rWS,4)}, s{soff} offen sc1", "cspub")

    k(f"s_mov_b32 s{t0}, 0x3f803f80")
    for j in range(8):
        k(f"v_mov_b32 {v(CA+j)}, 0")
    k(f"v_bfe_u32 {v(EL)}, {v(L)}, 4, 1\nv_lshl_add_u32 {v(EL)}, {v(EL)}, 1, {v(HF)}")
    k.wait(vm="lb")
    for j in range(4):
        for i in range(8):
            k(f"v_dot2c_f32_bf16 {v(CA+i)}, s{t0}, {v(SS+4*i+j)}")
    fold8(CA)
    for r in (8, 4, 2, 1):
        k(f"v_add_f32_dpp {v(CA)}, {v(CA)}, {v(CA)} row_ror:{r} row_mask:0xf bank_mask:0xf")
        k(f"v_add_f32_dpp {v(CA+4)}, {v(CA+4)}, {v(CA+4)} row_ror:{r} row_mask:0xf bank_mask:0xf")
    k(f"v_and_b32 {v(EL+1)}, 1, {v(L)}\nv_cmp_eq_u32 vcc, 1, {v(EL+1)}\nv_lshl_add_u32 {v(EL+1)}, {v(EL+1)}, 2, {v(EL)}\nv_lshlrev_b32 {v(EL+1)}, 3, {v(EL+1)}")
    k(f"v_cndmask_b32 {v(CA)}, {v(CA)}, {v(CA+4)}, vcc")
    k(f"s_lshl_b32 s{t2}, s{sQ}, 8\ns_lshl_b32 s3, s{sW}, 6\ns_add_u32 s{t2}, s{t2}, s3\ns_add_u32 s{t2}, s{t2}, {CS + 1792*8}")
    split_publish(CA, EL + 1, t2)
    stamp("Lbsum")
    run(stage_ops(0, False))
    k(f"s_mov_b32 s{t2}, 0x00003f80\ns_mov_b32 s{t3}, 0x3f800000")
    for j in range(8):
        k(f"v_mov_b32 {v(CA+j)}, 0")
    for i in range(16):
        k.wait(vm=f"lw{i}")
        for j in range(4):
            k(f"v_dot2c_f32_bf16 {v(CA+2*j)}, s{t2}, {v(ACC+4*i+j)}\nv_dot2c_f32_bf16 {v(CA+2*j+1)}, s{t3}, {v(ACC+4*i+j)}")
    for j in range(8):
        k(f"v_add_f32_dpp {v(CA+j)}, {v(CA+j)}, {v(CA+j)} row_ror:8 row_mask:0xf bank_mask:0xf")
    fold8(CA)
    k(f"v_and_b32 {v(EL+1)}, 7, {v(L)}\nv_lshl_add_u32 {v(EL+1)}, {v(EL+1)}, 3, {v(EL)}\nv_lshlrev_b32 {v(EL+1)}, 2, {v(EL+1)}")
    k(f"s_lshl_b32 s3, s{sW}, 8\ns_add_u32 s3, s3, 16384\nv_add_u32 {v(EL+1)}, s3, {v(EL+1)}")
    k(f"ds_write2_b32 {v(EL+1)}, {v(CA)}, {v(CA+4)} offset0:0 offset1:4", "cw")
    k(f"v_lshlrev_b32 {v(EL+1)}, 2, {v(L)}\nv_add_u32 {v(EL+1)}, 16384, {v(EL+1)}")
    k.wait(lg="all")
    k("s_barrier")
    for j in range(4):
        k(f"ds_read_b32 {v(CA+j)}, {v(EL+1)} offset:{j*256}", "cr")
    k(f"s_min_u32 s{t2}, s{sQ}, 27\ns_lshl_b32 s{t2}, s{t2}, 9\ns_add_u32 s{t2}, s{t2}, {CS}\nv_lshlrev_b32 {v(EL+2)}, 3, {v(L)}")
    k.wait(lg="all")
    k(f"v_add_f32 {v(CA)}, {v(CA)}, {v(CA+1)}\nv_add_f32 {v(CA+2)}, {v(CA+2)}, {v(CA+3)}\nv_add_f32 {v(CA)}, {v(CA)}, {v(CA+2)}")
    split_publish(CA, EL + 2, t2)
    stamp("Lwsum")
    run(stage_ops(1, False))
    if pre3:
        weave(stage_ops(2, False), late_setup(False))
    gemm1(False, "L")
    stamp("Lgemm")
    gran_check(False)
    run(scan_ops())
    bar(lg="all")()
    weave(r2 + ring_ops(3), chain_ops() + stage_reads(0) + stage_reads(1) + [W(lg="all")])
    stamp("Lepub")
    weave(ring_ops(4), stage_reads(2) + [W(lg="all")])
    weave(ring_ops(5) + ring_ops(6), coef_ops())
    run(e_loads()); run(poll1_ops())
    finish(False)
    k.wait(lg="all")
    snap_light = k.snapshot()

    k("L_join:")
    k.merge(snap_join, snap_light, ("rb3", "rb4", "rb5", "rb6", "hst") + (("poll2",) if p2_mid else ()) + tuple(f"ab{b}_{j}" for b in range(dist) for j in range(4)))
    stamp("stored")

    def b_reads(n):
        b, j = divmod(n, 4)
        hi = RING[b] >= HIGH
        off = RING[b] - (HIGH if hi else 0)
        if b < 3:
            return []
        if b < 7:
            return [(f"ds_read_b64_tr_b16 {a(FR+8*j+4*c+2*rd,2)}, {v(W2R+2*hi+c)} offset:{off + j*2048 + rd*1024}", f"f{n}")
                    for c in range(2) for rd in range(2)]
        return [(f"ds_read_b128 {a(FR+8*j+4*c,4)}, {v(CR+4*hi+j)} offset:{off + c*4096}", f"f{n}") for c in range(2)]

    if p2_at == 1 and not p2_mid:
        run(poll2_ops())

    def addend_ops():
        o = [(f"s_lshr_b32 s3, s{sG}, 3\ns_lshl_b32 s3, s3, 1\ns_lshr_b32 s{t3}, s{sW}, 1\ns_add_u32 s3, s3, s{t3}\ns_lshl_b32 s3, s3, 7\ns_add_u32 s3, s3, {SCR}\n"
              f"v_lshlrev_b32 {v(TM+1)}, 6, {v(HF)}\nv_add_u32 {v(TM+1)}, s3, {v(TM+1)}", None)]
        for q in range(4):
            o += ops_of(f"ds_read_b128 {v(T+4*q,4)}, {v(TM+1)} offset:{q*16}\nds_read_b128 {v(T+16+4*q,4)}, {v(TM+1)} offset:{512+q*16}", "ast")
        P = TM + 2
        o.append((f"s_lshr_b32 s3, s{sW12}, 1\ns_add_u32 s3, s3, {XSL}\nv_bfe_u32 {v(P)}, {v(L)}, 2, 2\nv_lshl_add_u32 {v(P)}, {v(HF)}, 4, {v(P)}\nv_lshlrev_b32 {v(P)}, 6, {v(P)}\n"
                  f"v_bfe_u32 {v(P+1)}, {v(L)}, 4, 1\nv_lshl_add_u32 {v(P)}, {v(P+1)}, 5, {v(P)}\nv_and_b32 {v(P+1)}, 3, {v(L)}\nv_lshl_add_u32 {v(P)}, {v(P+1)}, 3, {v(P)}\nv_add_u32 {v(P)}, s3, {v(P)}", None))
        o.append(W(vm="xs"))
        for q in range(4):
            o += ops_of(f"ds_read_b64_tr_b16 {v(XS+16+2*q,2)}, {v(P)} offset:{q*256}", "ast")
        o.append(W(lg="ast"))
        for r in range(16):
            unpack = f"v_and_b32 {v(XS+r)}, 0xffff0000, {v(XS+16+r//2)}" if r & 1 else f"v_lshlrev_b32 {v(XS+r)}, 16, {v(XS+16+r//2)}"
            o += ops_of(f"{unpack}\nv_sub_f32 {v(T+16+r)}, {v(XS+r)}, {v(T+16+r)}\n"
                        f"v_mul_f32 {v(T+16+r)}, {v(T+16+r)}, {v(T+r)}\nv_fmac_f32 {v(XS+r)}, {v(T+16+r)}, {v(DSK)}")
        return o

    a_next = dist
    for b in range(11):
        nxt = []
        if b == f3_at:
            flag_publish(FLC, "hst")
            stamp("flag")
        if b == p2_at:
            poll_check("poll2")
            stamp("poll2")
        if b == p3_at:
            poll_check("poll3")
            stamp("poll3")
        while a_next <= min(b + dist, 10) and b >= (0 if a_next < 3 else p2_at if a_next < 7 else p3_at):
            nxt += a_ops(a_next); a_next += 1
        if b == p2_at - 2 and not p2_mid:
            nxt += poll2_ops()
        if b == p3_at - 2:
            nxt += poll3_ops()
        if 7 <= b + dist < 11:
            nxt += ring_ops(b + dist)
        if b == xs_at:
            nxt += xs_ops()
        val = spread(addend_ops(), 32)[16 * (b - xs_at - 2):16 * (b - xs_at - 1)] if 2 <= b - xs_at <= 3 else [[]] * 16
        mm = spread_mem(nxt, 16) if nxt else [[]] * 16
        if b == 10 and tail_major:
            break
        for j in range(4):
            n = 4 * b + j
            rd = [[]] * 4
            if 12 <= n + 1 < 44:
                if j == 3:
                    k.wait(vm=f"rb{b+1}")
                rd = spread(b_reads(n + 1), 4)
            k.wait(vm=f"ab{b}_{j}", lg=f"f{n}" if b >= 3 else None)
            if j == 0 and b in (0, 8):
                stamp(f"blk{b}")
            for m in range(2):
                for c in range(2):
                    bop = (RES + 32 * b if b < 3 else FR) + 8 * j + 4 * c
                    mfma(ACC + 32 * m + 16 * c, a(32 * (b % 4) + 8 * j + 4 * m, 4), a(bop, 4), "0" if n == 0 else None)
                    run(rd[2 * m + c]); run(mm[4 * j + 2 * m + c]); run(val[4 * j + 2 * m + c])
            probe(f"b{b}_{j}")
    GA = TM
    pre = ops_of(f"v_add_u32 {v(GA)}, s{sW13}, {v(L16)}")
    for u in (1, 2, 3):
        pre += ops_of(f"v_xor_b32 {v(GA+u)}, {u << 13}, {v(GA)}")
    pre.append((f"s_lshl_b32 s{t2}, s{sM}, 1\ns_lshr_b32 s3, s{sW}, 1\ns_add_u32 s{t2}, s{t2}, s3\ns_lshl_b32 s{t2}, s{t2}, 16\n"
                f"s_lshl_b32 s3, s{sN}, 8\ns_add_u32 s{t2}, s{t2}, s3\ns_and_b32 s3, s{sW}, 1\ns_lshl_b32 s3, s3, 7\ns_add_u32 s{t2}, s{t2}, s3", None))
    pre += ops_of(f"v_lshlrev_b32 {v(TM+4)}, 15, {v(HF)}\nv_lshl_add_u32 {v(TM+4)}, {v(LR)}, 2, {v(TM+4)}")
    wr = lambda u: [(f"ds_write_b128 {v(GA)}, {v(ACC+16*u+4*q,4)} offset:{(u>>1)*SLOT + (u&1)*4096 + q*1024}", "fw") for q in range(4)]
    if tail_major:
        for j in (1, 2, 3):
            run(b_reads(40 + j))
        run(pre)
        for u in (3, 2, 1, 0):
            for j in range(4):
                k.wait(vm=f"ab10_{j}", lg=f"f{40+j}")
                mfma(ACC + 16 * u, a(32 * (10 % 4) + 8 * j + 4 * (u >> 1), 4), a(FR + 8 * j + 4 * (u & 1), 4))
                late = {(2, 3): wr(3)[:1], (1, 0): wr(3)[1:2], (1, 1): wr(3)[2:3], (1, 2): wr(3)[3:], (1, 3): wr(2)[:1], (0, 0): wr(2)[1:2], (0, 1): wr(2)[2:3], (0, 2): wr(2)[3:],
                        (0, 3): wr(1)}
                run(late.get((u, j), []))
        stamp("p2done")
    else:
        stamp("p2done")
        run(pre)
        for u in (1, 2, 3):
            run(wr(u))
    k(f"s_mov_b32 s{t0}, 0x3f317218")
    k.wait(lg="all")
    k("s_barrier")
    for q in range(4):
        for u in (1, 2, 3):
            k(f"ds_read_b128 {v(ACC+16*u+4*q,4)}, {v(GA+u)} offset:{(u>>1)*SLOT + (u&1)*4096 + q*1024}", f"fr{q}")
    for q in range(4):
        k.wait(lg=f"fr{q}")
        for i in (0, 2):
            r = 4 * q + i
            k(f"v_pk_add_f32 {v(ACC+r,2)}, {v(ACC+r,2)}, {v(ACC+16+r,2)}\nv_pk_add_f32 {v(ACC+32+r,2)}, {v(ACC+32+r,2)}, {v(ACC+48+r,2)}")
        for i in (0, 2):
            r = 4 * q + i
            k(f"v_pk_add_f32 {v(ACC+r,2)}, {v(ACC+r,2)}, {v(ACC+32+r,2)}\nv_pk_fma_f32 {v(ACC+r,2)}, {v(ACC+r,2)}, {s(t0,2)}, {v(XS+r,2)} op_sel_hi:[1,0,1]")
        for i in range(4):
            r = 4 * q + i
            k(f"buffer_store_dword {v(ACC+r)}, {v(TM+4)}, {s(rOUT,4)}, s{t2} offen offset:{(r&1)*2048} {out_flags}", "out")
            if r & 1:
                k(f"s_add_u32 s{t2}, s{t2}, 4096")
    k(f"s_cmp_lg_u32 s{sC}, 15\ns_cbranch_scc1 L_fin\ns_or_b32 s3, s{sG}, s{sW}\ns_cmp_lg_u32 s3, 0\ns_cbranch_scc1 L_fin")
    k(f"v_mov_b32 {v(TM+5)}, s{sTAG}\ns_mov_b64 exec, 1")
    k(f"buffer_store_dword {v(TM+5)}, off, {s(rWS,4)}, 0 sc1\ns_mov_b64 exec, -1")
    k("L_fin:")
    if diag:
        k("s_waitcnt vmcnt(0)")
        stamp("end")
        for i in range(len(seen)):
            k(f"v_writelane_b32 {v(DG)}, s{FINE[i]}, {16+i}")
        k(f"s_lshl_b32 s3, s2, 2\ns_add_u32 s3, s3, s{sW}\ns_lshl_b32 s3, s3, 8\ns_add_u32 s3, s3, {DIAG}\nv_lshlrev_b32 {v(TM)}, 2, {v(L)}")
        k(f"buffer_store_dword {v(DG)}, {v(TM)}, {s(rWS,4)}, s3 offen")
        if amplify:
            k(f"s_cmp_lg_u32 s2, {amp_wg}\ns_cbranch_scc1 L_end")
            k(f"v_readlane_b32 s12, {v(DG)}, 0\nv_readlane_b32 s13, {v(DG)}, {stamps.index(amplify)}\nv_readlane_b32 s14, {v(DG)}, {len(stamps)-1}\ns_nop 3")
            k("s_sub_u32 s13, s13, s12\ns_min_u32 s13, s13, 5000\ns_lshl_b32 s13, s13, 2")
            k("L_amp:\ns_memrealtime s[34:35]\ns_waitcnt lgkmcnt(0)\ns_sub_u32 s3, s34, s14\ns_cmp_lt_u32 s3, s13\ns_cbranch_scc1 L_amp")
    k("L_end:")
    k("s_endpgm")
    for text in cold:
        k(text)

    body, nops = pad(k.lines)
    hdr = open("parallel_sum__ssm_conv_s5__dense_activation_mish__prompt.s.ref").read().split("; Override")[0]
    text = hdr + "; @launch grid=(256,1,1) block=(256,1,1) lds=163840\n"
    text += f'.amdgcn_target "amdgcn-amd-amdhsa--gfx950"\n.text\n.globl {KNAME}\n.p2align 8\n.type {KNAME},@function\n{KNAME}:\n'
    text += "\n".join(body) + "\n"
    text += f""".section .rodata,"a"
.p2align 6
.amdhsa_kernel {KNAME}
  .amdhsa_next_free_vgpr 512
  .amdhsa_next_free_sgpr 102
  .amdhsa_accum_offset 256
  .amdhsa_group_segment_fixed_size 0
  .amdhsa_kernarg_size 128
  .amdhsa_user_sgpr_count 2
  .amdhsa_user_sgpr_kernarg_segment_ptr 1
  .amdhsa_system_sgpr_workgroup_id_x 1
.end_amdhsa_kernel
"""
    return text, dict(nops=nops, vgprs=V.next, stamps=stamps, seen=seen, lines=len(body), regs=V.names)


if __name__ == "__main__":
    import json
    kw = json.loads(sys.argv[2]) if len(sys.argv) > 2 else {}
    text, info = gen(**kw)
    open(sys.argv[1], "w").write(text)
    print({q: info[q] for q in ("nops", "vgprs", "lines")})
```

```python
import sys
from emit import K, Alloc, rng, pad

KNAME = "parallel_sum__ssm_conv_s5__dense_activation_mish__prompt_kernel"
EPOCH, STATS, XID, CS, EG, FLA, FLB, FLC, AF = 0, 0x10000, 0x20000, 0x30000, 0x40000, 0x80000, 0xA0000, 0xC0000, 0x100000
DIAG = 200 << 20
MT = 176 * 1024
SLOT = 40960
HIGH = 2 * SLOT
SCR = 32768
SCR_EX, SCR_CX = SCR + 1024, SCR + 4096
SCR_HT = SLOT + 32768
RING = {b: SLOT * q for b, q in enumerate((0, 1, 2, 3, 0, 1, 2, 3, 0, 1, 2))}
RES = 160
LOG2E = 0x3fb8aa3b
SPIN = 1 << 16


def weight(op):
    if callable(op):
        return 0.2
    w = 0.0
    for l in op[0].split("\n"):
        mn = l.split()[0]
        w += 2 if mn in ("v_exp_f32", "v_rcp_f32", "v_sin_f32", "v_cos_f32") else 0.3 if mn.startswith("s_") else 1
    return w


def cost(op):
    if callable(op):
        return 3
    c = 0.0
    for l in op[0].split("\n"):
        mn = l.split()[0]
        c += (8.3 if mn in ("v_exp_f32", "v_rcp_f32", "v_sin_f32", "v_cos_f32") else 13 if mn.startswith("buffer_") else
              1 if mn.startswith("s_") else 4.3)
    return c


def spread(ops, n):
    total = sum(map(weight, ops)) or 1
    out = [[] for _ in range(n)]
    acc = 0.0
    for op in ops:
        out[min(n - 1, int(acc / total * n + 1e-9))].append(op)
        acc += weight(op)
    return out


def spread_mem(ops, n):
    groups, cur = [], []
    for op in ops:
        cur.append(op)
        if not callable(op) and op[1] is not None:
            groups.append(cur); cur = []
    if cur:
        groups[-1] += cur
    out = [[] for _ in range(n)]
    for i, g in enumerate(groups):
        out[i * n // len(groups)] += g
    return out


def gen(mode="global", mapping="x8g4", diag=False, rot="none", amplify=None, amp_wg=0, out_flags="", ablate=(), l2pf=False,
        pf_at=4, gran_at=6, look=2, fine=(), p2_at=2, p3_at=4, dist=2, xs_at=4, tail_major=True, far_at=1, mt_pad=0, lite=3, trickle=True, budget=33, pre3=True, f3_at=1, p2_mid=False, backoff=0, early_a=0, trk_w2=None, code_pf=True, krot=False, brot=False, trk_c=None, nres=5):
    assert nres == 3 or dist == 2
    RESB = {0: 160, 1: 192, 2: 224} if nres == 3 else {0: 128, 1: 160, 2: 192, 3: 224, 4: 96}
    NA = 4 if nres == 3 else 3
    MT = 176 * 1024 + mt_pad
    npre = 2
    k = K()
    V = Alloc("v", 1, 256)
    v = lambda r, n=1: rng("v", r, n)
    a = lambda r, n=1: rng("a", r, n)
    s = lambda r, n=1: rng("s", r, n)
    st = "sc1" if mode == "global" else ""

    sC, sG, sW, sROT, sM, sN, sTAG, sLOC = 4, 5, 6, 7, 8, 9, 10, 11
    t0, t1, t2, t3 = 12, 13, 14, 15
    pX, pLR, pLI, pBR, pBI, pCR, pCI, pDT, pDS, pW1, pB1, pW2, pOUT, pWS = 16, 18, 20, 22, 24, 26, 28, 30, 32, 36, 38, 40, 42, 46
    rX, rW1, rB, rE, rW2, rCR, rCI, rWS, rOUT = 48, 52, 56, 60, 64, 68, 72, 76, 80
    sXB, sBB, sWB, sA0, sP1, sKW, sCNT, sAF, sQ, sW12, sW13 = 84, 85, 86, 87, 88, 89, 90, 91, 92, 93, 94
    sHI, sXCC, sF, sP0, sROT2, sR3 = 98, 100, 97, 96, 17, 16
    sBE, sBX, sBL, sAE, sAX, sAL, sGE, sGL, sJ, sXD = 18, 19, 20, 21, 22, 23, 24, 25, 95, 101
    sD = 34

    L, LR, HF, L16, TAU = V("l"), V("lr"), V("hf"), V("l16"), V("tau")
    XD, CD, WD, W2D = V("xd", 4), V("cd", 4), V("wd", 4), V("w2d", 4)
    XR, WR, BQ, CR, W2R = V("xr", 4), V("wr", 4), V("bq", 4), V("cr", 8), V("w2r", 4)
    LAR, LAI, NLAI, L16R, L16I, NL16I, PWR, PWI, L2R, L2I, SCRR, SCI, CFR, NCFR, NCFI = [V(x) for x in
        "lar lai nlai l16r l16i nl16i pwr pwi l2r l2i scr sci cfr ncfr ncfi".split()]
    PR, PI, MF = V("pr"), V("pi"), V("mf")
    ACC, SS, T = V("acc", 64, 4), V("ss", 32, 4), V("t", 32, 4)
    XA, XB, WE = V("xa", 4, 4), V("xb", 4, 4), V("we", 12, 4)
    MI = V("mish", 16, 4)
    TM = V("tmp", 20, 4)
    C1, RS = V("c1", 1, 2), V("rs")
    DSK = V("dsk")
    BI = V("bias", 2)
    DG = V("diag")
    AL = V("al") if krot else L16
    FR = 128
    RSV, EK, XS = MI, TM, SS

    stamps = []
    def stamp(name):
        probe(name)
        if diag and (not fine or name == "end"):
            stamps.append(name)
            k(f"s_memrealtime s[{sD}:{sD+1}]\ns_memtime s[44:45]\ns_waitcnt lgkmcnt(0)")
            k.lg_done = len(k.lg)
            k(f"v_writelane_b32 {v(DG)}, s{sD}, {len(stamps)-1}\nv_writelane_b32 {v(DG)}, s44, {len(stamps)+31}")

    FINE = (26, 28, 30, 32, 36, 38, 40, 42)
    seen = []
    def probe(key):
        if key in fine and key not in seen:
            k(f"s_memtime s[{FINE[len(seen)]}:{FINE[len(seen)]+1}]")
            seen.append(key)

    def srd(d, p, nbytes):
        return f"s_mov_b32 s{d}, s{p}\ns_mov_b32 s{d+1}, s{p+1}\ns_mov_b32 s{d+2}, {nbytes:#x}\ns_mov_b32 s{d+3}, 0x20000"

    def mfma(d, x, y, c=None):
        k(f"v_mfma_f32_32x32x16_bf16 {v(d,16)}, {x}, {y}, {v(d,16) if c is None else c}")

    def untracked(text):
        n = len(k.vm)
        k(text)
        del k.vm[n:]

    def run(ops):
        for op in ops:
            if callable(op):
                op()
            else:
                k(*op)

    def ops_of(text, tag=None):
        return [(l, tag) for l in text.split("\n")]

    W = lambda **kw: (lambda: k.wait(**kw))

    k("s_cmp_ge_u32 s2, 256\ns_cbranch_scc1 L_end")
    k("s_load_dwordx16 s[16:31], s[0:1], 0\ns_load_dwordx16 s[32:47], s[0:1], 64")
    if diag:
        k("s_memrealtime s[12:13]\ns_memtime s[10:11]")
    A_, B_, C_, D_ = TM, TM + 1, TM + 2, TM + 3
    k(f"v_and_b32 {v(L)}, 63, v0\nv_lshrrev_b32 {v(A_)}, 6, v0\nv_and_b32 {v(LR)}, 31, v0")
    k(f"v_readfirstlane_b32 s{sW}, {v(A_)}")
    k(f"v_lshrrev_b32 {v(HF)}, 5, {v(L)}\nv_lshlrev_b32 {v(L16)}, 4, {v(L)}")
    k(f"s_and_b32 s14, s2, 7\ns_lshr_b32 s15, s2, 3\ns_mov_b32 s{sXD}, s14\ns_mov_b32 s{sJ}, s15")
    if code_pf:
        k(f"s_getpc_b64 s[96:97]\nL_pc:\ns_sub_u32 s96, s96, L_pc-{KNAME}\ns_subb_u32 s97, s97, 0")
        k(f"s_lshl_b32 s3, s{sW}, 5\ns_add_u32 s3, s3, s15\ns_lshl_b32 s3, s3, 8\nv_lshl_add_u32 {v(TM+19)}, {v(L)}, 2, s3\nv_min_u32 {v(TM+19)}, L_end-{KNAME}, {v(TM+19)}")
        k(f"global_load_dword a255, {v(TM+19)}, s[96:97]", "pf")
    if mapping == "rows":
        k(f"s_and_b32 s3, s15, 1\ns_lshl_b32 s{sC}, s14, 1\ns_or_b32 s{sC}, s{sC}, s3\ns_lshr_b32 s{sG}, s15, 1")
    elif mapping == "x8g4":
        k(f"s_lshr_b32 s3, s14, 2\ns_lshl_b32 s3, s3, 3\ns_and_b32 s{sC}, s15, 7\ns_or_b32 s{sC}, s{sC}, s3")
        k(f"s_and_b32 s3, s14, 3\ns_lshl_b32 s3, s3, 2\ns_lshr_b32 s{sG}, s15, 3\ns_or_b32 s{sG}, s{sG}, s3")
    elif mapping == "x4g8":
        k(f"s_lshr_b32 s3, s14, 1\ns_lshl_b32 s3, s3, 2\ns_and_b32 s{sC}, s15, 3\ns_or_b32 s{sC}, s{sC}, s3")
        k(f"s_and_b32 s3, s14, 1\ns_lshl_b32 s3, s3, 3\ns_lshr_b32 s{sG}, s15, 2\ns_or_b32 s{sG}, s{sG}, s3")
    k({"cg": f"s_add_u32 s{sROT}, s{sC}, s{sG}\ns_and_b32 s{sROT}, s{sROT}, 7", "none": f"s_mov_b32 s{sROT}, 0",
       "c": f"s_and_b32 s{sROT}, s{sC}, 7", "g": f"s_and_b32 s{sROT}, s{sG}, 7"}[rot])
    k(f"s_cmp_gt_u32 s{sG}, {lite}\ns_subb_u32 s{sF}, s{sG}, 0\ns_cmp_gt_u32 s{sG}, {lite + 8}\ns_subb_u32 s{sF}, s{sF}, 0")
    k(f"s_lshl_b32 s{sW12}, s{sW}, 12\ns_lshl_b32 s{sW13}, s{sW}, 13")
    k(f"v_lshrrev_b32 {v(A_)}, 3, {v(L)}")
    k(f"v_and_b32 {v(B_)}, 7, {v(L)}\nv_lshrrev_b32 {v(C_)}, 4, {v(L)}")
    k(f"v_xor_b32 {v(B_)}, {v(B_)}, {v(C_)}\nv_lshlrev_b32 {v(B_)}, 4, {v(B_)}")
    k(f"v_and_b32 {v(C_)}, 3, {v(A_)}\nv_lshl_add_u32 {v(C_)}, {v(HF)}, 4, {v(C_)}")
    k(f"v_lshl_add_u32 {v(XD)}, {v(C_)}, 10, {v(B_)}")
    k(f"v_xor_b32 {v(XD+1)}, 64, {v(XD)}\nv_add_u32 {v(XD+2)}, 6144, {v(XD)}")
    k(f"v_add_u32 {v(XD+3)}, 9216, {v(XD+1)}\nv_add_u32 {v(XD+1)}, 3072, {v(XD+1)}")
    k(f"v_lshl_add_u32 {v(CD)}, {v(A_)}, 10, {v(B_)}")
    k(f"v_xor_b32 {v(CD+1)}, 64, {v(CD)}\nv_add_u32 {v(CD+2)}, {2*7168}, {v(CD)}\nv_add_u32 {v(CD+3)}, {3*7168}, {v(CD+1)}\nv_add_u32 {v(CD+1)}, 7168, {v(CD+1)}")
    k(f"v_lshlrev_b32 {v(A_)}, 10, {v(HF)}\nv_lshl_add_u32 {v(A_)}, {v(LR)}, 4, {v(A_)}")
    k(f"s_lshl_b32 s{sXB}, s{sC}, 17\ns_lshl_b32 s3, s{sW}, 15\ns_add_u32 s{sXB}, s{sXB}, s3")
    k(f"s_and_b32 s3, s{sW}, 1\ns_lshl_b32 s3, s3, 14\ns_lshl_b32 s{sBB}, s{sG}, 15\ns_add_u32 s{sBB}, s{sBB}, s3")
    k(f"v_lshrrev_b32 {v(C_)}, 4, {v(L)}\nv_and_b32 {v(D_)}, 15, {v(L)}\nv_lshlrev_b32 {v(B_)}, 2, {v(C_)}")
    k(f"v_xor_b32 {v(D_)}, {v(D_)}, {v(B_)}\nv_lshlrev_b32 {v(D_)}, 4, {v(D_)}\nv_mul_u32_u24 {v(C_)}, 3584, {v(C_)}\nv_add_u32 {v(WD)}, {v(C_)}, {v(D_)}")
    for i in (1, 2, 3):
        k(f"v_add_u32 {v(WD+i)}, {i*13312}, {v(WD)}")
    k(f"s_mul_i32 s{sWB}, s{sW}, {16*3584}\ns_lshl_b32 s3, s{sF}, 8\ns_add_u32 s{sWB}, s{sWB}, s3")
    k(f"s_lshl_b32 s3, s{sC}, 4\ns_add_u32 s3, s3, s{sG}\ns_lshl_b32 s3, s3, 2\ns_add_u32 s3, s3, s{sW}\ns_lshl_b32 s{t2}, s3, 11")
    k(f"s_lshl_b32 s3, s{sG}, 5\nv_add_lshl_u32 {v(B_)}, {v(LR)}, s3, 1")
    k(f"s_lshl_b32 s3, s{sF}, 7\nv_add_lshl_u32 {v(C_)}, {v(L)}, s3, 1\nv_min_u32 {v(C_)}, 3454, {v(C_)}")
    k(f"s_and_b32 s{sN}, s{sG}, 7\ns_lshl_b32 s3, s{sN}, 1\ns_and_b32 s{t3}, s{sW}, 1\ns_or_b32 s3, s3, s{t3}\ns_lshl_b32 s3, s3, 5\nv_add_lshl_u32 {v(D_)}, {v(LR)}, s3, 1")
    k("s_waitcnt lgkmcnt(0)")
    if diag:
        k(f"v_writelane_b32 {v(DG)}, s12, 0\nv_writelane_b32 {v(DG)}, s10, 32"); stamps.append("start")
    k(srd(rX, pX, 2 << 20))
    SR = TM + 4
    PL = MI
    k(f"global_load_ushort {v(PL)}, {v(B_)}, {s(pLR,2)}\nglobal_load_ushort {v(PL+1)}, {v(B_)}, {s(pLI,2)}\nglobal_load_ushort {v(PL+2)}, {v(B_)}, {s(pDT,2)}", "par")
    k(f"buffer_load_dwordx4 {v(SR,4)}, {v(A_)}, {s(rX,4)}, s{t2} offen", "srow")
    k(f"buffer_load_dwordx4 {v(SR+4,4)}, {v(A_)}, {s(rX,4)}, s{t2} offen offset:512", "srow")
    k(f"s_load_dword s{sTAG}, s[{pWS}:{pWS+1}], {EPOCH}")
    k(srd(rW1, pW1, 512 * 3584))
    k(f"s_cmp_lt_u32 s{sW}, 2\ns_cselect_b32 s{rB}, s{pBR}, s{pBI}\ns_cselect_b32 s{rB+1}, s{pBR+1}, s{pBI+1}\ns_mov_b32 s{rB+2}, 0x80000\ns_mov_b32 s{rB+3}, 0x20000")

    def stage_ops(stage, full):
        slot = (stage % 4) * SLOT
        tag = f"st{stage}"
        ops = [(f"s_xor_b32 s3, s{sROT}, {stage}\ns_mul_i32 s{sKW}, s3, {64*3584}\ns_lshl_b32 s3, s3, 7\ns_add_u32 s{t1}, s3, s{sBB}\ns_add_u32 s{t0}, s3, s{sXB}\n"
                f"s_add_u32 s{sKW}, s{sKW}, s{sWB}\ns_add_u32 m0, s{sW12}, {slot}", None)]
        ops += [(f"buffer_load_dwordx4 {v(XD+i)}, {s(rX,4)}, s{t0} offen offset:{i*1024} lds", tag) for i in range(4)]
        ops += [(f"s_lshr_b32 s3, s{sW12}, 1\ns_add_u32 m0, s3, {slot + 32768}", None)]
        ops += [(f"buffer_load_dwordx4 {v(CD+i)}, {s(rB,4)}, s{t1} offen offset:{i*1024} lds", tag) for i in range(2)]
        if full:
            ops += [(f"s_add_u32 m0, s{sW12}, {slot + 16384}", None)]
            ops += [(f"buffer_load_dwordx4 {v(WD+i)}, {s(rW1,4)}, s{sKW} offen offset:{i*1024} lds", tag) for i in range(4)]
        return ops

    def turn(i, shift):
        if not brot:
            return f"s_mov_b32 s3, {i << shift}"
        return f"s_add_u32 s3, s{sR3}, {i}\ns_cmp_ge_u32 s3, 3\ns_cselect_b32 s{sCNT}, 3, 0\ns_sub_u32 s3, s3, s{sCNT}\ns_lshl_b32 s3, s3, {shift}"

    def ring_ops(b):
        tag = f"rb{b}"
        if b < 7:
            src, add = (sBE, b) if b < 3 else (sBX, 0) if b == 3 else (sBL, b - 4)
            head = f"s_mov_b32 s{t0}, s{src}" if b == 3 else turn(add, 17) + f"\ns_add_u32 s{t0}, s{src}, s3"
            step = f"s_xor_b32 s{t0}, s{t0}, 32768"
            r, D = rW2, W2D
        else:
            head = (f"s_lshl_b32 s{t0}, s{sN}, 1\ns_and_b32 s3, s{sW}, 1\ns_or_b32 s{t0}, s{t0}, s3\ns_lshl_b32 s{t0}, s{t0}, 15\n"
                    f"s_lshl_b32 s3, s{sW}, 8\ns_add_u32 s{t0}, s{t0}, s3")
            step = f"s_xor_b32 s{t0}, s{t0}, 32768"
            if brot:
                head += (f"\ns_xor_b32 s3, s{sN}, {b-7}\ns_bitcmp1_b32 s3, 1\ns_cselect_b32 s{rB}, s{rCI}, s{rCR}\ns_cselect_b32 s{rB+1}, s{rCI+1}, s{rCR+1}"
                         f"\ns_and_b32 s3, s3, 1\ns_lshl_b32 s3, s3, 7\ns_add_u32 s{t0}, s{t0}, s3")
                r, D = rB, CD
            else:
                if (b - 7) & 1:
                    head += f"\ns_add_u32 s{t0}, s{t0}, 128"
                r, D = (rCI if b >= 9 else rCR), CD
        ops = [(head + f"\ns_add_u32 m0, s{sW13}, {RING[b]}", None)]
        for i in range(8):
            flat = krot and b < 7
            if i == 4:
                ops.append((f"s_add_u32 m0, m0, {1024 if flat else 4096}\n{step}", None))
            elif i and flat:
                ops.append(("s_add_u32 m0, m0, 1024", None))
            ops.append((f"buffer_load_dwordx4 {v(D+(i&3))}, {s(r,4)}, s{t0} offen offset:{0 if flat else (i&3)*1024} lds", tag))
        return ops

    def par_loads():
        k(f"global_load_ushort {v(BI)}, {v(C_)}, {s(pB1,2)}\nglobal_load_ushort {v(BI+1)}, {v(C_)}, {s(pB1,2)} offset:128", "par2")
        k(f"global_load_ushort {v(DSK)}, {v(D_)}, {s(pDS,2)}", "par2")

    def early_setup():
        o = [(srd(rWS, pWS, 1 << 28), None), (f"s_mov_b32 s{sHI}, 0\ns_mov_b32 s{sHI+1}, -1\ns_getreg_b32 s{sXCC}, hwreg(HW_REG_XCC_ID)\ns_and_b32 s{sXCC}, s{sXCC}, 15", None)]
        P0, P1, P2 = TM + 12, TM + 13, TM + 14
        e = lambda text: o.extend(ops_of(text))
        e(f"v_bfe_u32 {v(P0)}, {v(LR)}, 1, 3\nv_xor_b32 {v(P0)}, {v(P0)}, {v(HF)}\nv_lshlrev_b32 {v(P0)}, 4, {v(P0)}\nv_lshl_add_u32 {v(P0)}, {v(LR)}, 7, {v(P0)}")
        e(f"v_add_u32 {v(XR)}, s{sW12}, {v(P0)}\nv_add_u32 {v(BQ)}, 32768, {v(P0)}\nv_add_u32 {v(CR)}, s{sW13}, {v(P0)}")
        for j in (1, 2, 3):
            e(f"v_xor_b32 {v(XR+j)}, {j << 5}, {v(XR)}\nv_xor_b32 {v(BQ+j)}, {j << 5}, {v(BQ)}")
        e(f"v_bfe_u32 {v(P0)}, {v(L)}, 2, 2\nv_and_b32 {v(P1)}, 3, {v(L)}\nv_lshlrev_b32 {v(P1)}, 3, {v(P1)}\nv_bfe_u32 {v(P2)}, {v(L)}, 4, 1\nv_lshl_add_u32 {v(P1)}, {v(P2)}, 5, {v(P1)}")
        e(f"v_lshl_add_u32 {v(P2)}, {v(HF)}, 3, {v(P0)}\nv_lshl_add_u32 {v(P2)}, {v(P2)}, 8, {v(P1)}\nv_lshl_add_u32 {v(P2)}, {v(P0)}, 6, {v(P2)}\nv_add_u32 {v(WR)}, 16384, {v(P2)}")
        for t in (1, 2, 3):
            e(f"v_xor_b32 {v(WR+t)}, {t << 6}, {v(WR)}")
        e(f"v_lshrrev_b32 {v(P2)}, 1, {v(P0)}\nv_lshl_add_u32 {v(P1)}, {v(P2)}, 6, {v(P1)}\nv_lshl_add_u32 {v(P2)}, {v(HF)}, 2, {v(P0)}\nv_lshl_add_u32 {v(P2)}, {v(P2)}, 7, {v(P1)}\nv_add_u32 {v(W2R)}, s{sW13}, {v(P2)}")
        g = lambda text: o.append((text, None))
        g(srd(rW2, pW2, 1792 * 1024)); g(srd(rCR, pCR, 1 << 19)); g(srd(rCI, pCI, 1 << 19)); g(srd(rOUT, pOUT, 4 << 20))
        g(f"s_lshl_b32 s3, s{sG}, 13\ns_add_u32 s{rE}, s{pWS}, s3\ns_addc_u32 s{rE+1}, s{pWS+1}, 0\ns_add_u32 s{rE}, s{rE}, {EG}\ns_addc_u32 s{rE+1}, s{rE+1}, 0\n"
          f"s_mov_b32 s{rE+2}, 8192\ns_mov_b32 s{rE+3}, 0x20000")
        g(f"s_lshr_b32 s3, s{sG}, 3\ns_lshl_b32 s{sM}, s{sC}, 1\ns_or_b32 s{sM}, s{sM}, s3")
        g(f"s_and_b32 s{sR3}, s{sN}, 3\ns_cmp_eq_u32 s{sR3}, 3\ns_cselect_b32 s{sR3}, 0, s{sR3}")
        g(f"s_cmp_eq_u32 s{sW}, 3\ns_cselect_b32 s3, 1, 0\ns_lshl_b32 s{sGE}, s{sW}, 2\ns_sub_u32 s{sGE}, s{sGE}, s3\ns_mul_i32 s{sGL}, s{sW}, 3\ns_add_u32 s{sGL}, s{sGL}, s3")
        g(f"s_lshl_b32 s{sAE}, s{sGE}, 13\ns_lshl_b32 s{sAL}, s{sGL}, 13\ns_add_u32 s{sAL}, s{sAL}, 4096\ns_add_u32 s{sAX}, s{sAE}, {6*4096}\ns_add_u32 s3, s{sAL}, 8192\n"
          f"s_cmp_lt_u32 s{sW}, 2\ns_cselect_b32 s{sAX}, s{sAX}, s{sAL}\ns_cselect_b32 s{sAL}, s{sAL}, s3")
        g(f"s_lshl_b32 s3, s{sN}, 7\ns_lshl_b32 s{sBE}, s{sAE}, 4\ns_lshl_b32 s{sBX}, s{sAX}, 4\ns_lshl_b32 s{sBL}, s{sAL}, 4\n"
          f"s_add_u32 s{sBE}, s{sBE}, s3\ns_add_u32 s{sBX}, s{sBX}, s3\ns_add_u32 s{sBL}, s{sBL}, s3")
        g(f"s_lshl_b32 s3, s{sC}, 2\ns_add_u32 s3, s3, s{sW}\ns_mul_i32 s{sAF}, s3, {MT}\ns_add_u32 s{sAF}, s{sAF}, {AF}")
        return o

    def row_stats():
        o = []
        def k2(text, tag=None, atomic=False):
            o.extend([(text, tag)] if atomic or tag else ops_of(text))
        S1, S2, U1, U2 = TM, TM + 1, TM + 2, TM + 3
        k2(f"v_mov_b32 {v(S1)}, 0\nv_mov_b32 {v(S2)}, 0\ns_mov_b32 s{t3}, 0x3f803f80")
        o.append(W(vm="srow"))
        for i in range(8):
            k2(f"v_dot2c_f32_bf16 {v(S1)}, s{t3}, {v(SR+i)}\nv_dot2c_f32_bf16 {v(S2)}, {v(SR+i)}, {v(SR+i)}")
        for r in (8, 4, 2, 1):
            k2(f"v_add_f32_dpp {v(S1)}, {v(S1)}, {v(S1)} row_ror:{r} row_mask:0xf bank_mask:0xf")
            k2(f"v_add_f32_dpp {v(S2)}, {v(S2)}, {v(S2)} row_ror:{r} row_mask:0xf bank_mask:0xf")
        k2(f"v_mov_b32 {v(U1)}, {v(S1)}\nv_mov_b32 {v(U2)}, {v(S2)}")
        k2(f"v_permlane16_swap_b32 {v(S1)}, {v(U1)}\nv_permlane16_swap_b32 {v(S2)}, {v(U2)}")
        k2(f"v_add_f32 {v(S1)}, {v(S1)}, {v(U1)}\nv_add_f32 {v(S2)}, {v(S2)}, {v(U2)}")
        k2(f"v_mul_f32 {v(S1)}, 0x3b000000, {v(S1)}\nv_mul_f32 {v(S2)}, 0x3b000000, {v(S2)}")
        k2(f"v_fma_f32 {v(S2)}, -{v(S1)}, {v(S1)}, {v(S2)}\nv_max_f32 {v(S2)}, 0, {v(S2)}")
        k2(f"v_cvt_pk_bf16_f32 {v(S2)}, {v(S2)}, {v(S2)}\nv_and_b32 {v(S2)}, 0xffff0000, {v(S2)}\nv_add_f32 {v(S2)}, 0x3727c5ac, {v(S2)}")
        k2(f"v_cvt_pk_bf16_f32 {v(S2)}, {v(S2)}, {v(S2)}\nv_and_b32 {v(S2)}, 0xffff0000, {v(S2)}\nv_sqrt_f32 {v(S2)}, {v(S2)}")
        k2(f"v_cvt_pk_bf16_f32 {v(SR)}, {v(S1)}, {v(S2)}")
        k2("s_waitcnt lgkmcnt(0)")
        k2(f"s_mul_i32 s{sTAG}, s{sTAG}, 0x9e3779b1\ns_add_u32 s{sTAG}, s{sTAG}, 0x7f4a7c15")
        k2(f"v_mov_b32 {v(SR+1)}, s{sTAG}\nv_mov_b32 {v(SR+2)}, s{sXCC}\nv_mov_b32 {v(SR+3)}, s{sTAG}\nv_lshlrev_b32 {v(U1)}, 3, {v(HF)}")
        k2(f"s_lshr_b32 s{t2}, s{t2}, 7\ns_add_u32 s{t2}, s{t2}, {STATS}")
        k2(f"s_lshl_b32 s{t3}, s{sC}, 4\ns_add_u32 s{t3}, s{t3}, s{sG}\ns_lshl_b32 s{t3}, s{t3}, 3\ns_add_u32 s{t3}, s{t3}, {XID}")
        def publish():
            k("s_mov_b32 exec_lo, 1\ns_mov_b32 exec_hi, 1")
            k(f"buffer_store_dwordx2 {v(SR,2)}, {v(U1)}, {s(rWS,4)}, s{t2} offen sc1", "pub0")
            k(f"buffer_store_dwordx2 {v(SR+2,2)}, off, {s(rWS,4)}, s{t3} sc1", "pub0")
            k("s_mov_b64 exec, -1")
            stamp("stats")
        o.append(publish)
        return o

    def late_setup(full):
        o = []
        e = lambda text: o.extend(ops_of(text))
        g = lambda text: o.append((text, None))
        P0, P1, P2 = TM + 12, TM + 13, TM + 14
        if krot:
            g(f"s_add_u32 s{sROT2}, s{sC}, s{sN}\ns_and_b32 s{sROT2}, s{sROT2}, 3\ns_lshl_b32 s3, s{sROT2}, 5\nv_xor_b32 {v(CR)}, s3, {v(CR)}")
        for j in (1, 2, 3):
            e(f"v_xor_b32 {v(CR+j)}, {j << 5}, {v(CR)}")
        for j in range(4):
            e(f"v_add_u32 {v(CR+4+j)}, {HIGH}, {v(CR+j)}")
        e(f"v_xor_b32 {v(W2R+1)}, 64, {v(W2R)}\nv_add_u32 {v(W2R+2)}, {HIGH}, {v(W2R)}\nv_add_u32 {v(W2R+3)}, {HIGH}, {v(W2R+1)}")
        e(f"v_lshrrev_b32 {v(P0)}, 3, {v(L)}\nv_and_b32 {v(P1)}, 7, {v(L)}\nv_bfe_u32 {v(P2)}, {v(L)}, 4, 1\nv_lshlrev_b32 {v(P2)}, 2, {v(P2)}")
        e(f"v_xor_b32 {v(P1)}, {v(P1)}, {v(P2)}\nv_lshlrev_b32 {v(P1)}, 4, {v(P1)}")
        g(f"s_and_b32 s3, s{sW}, 1\ns_lshl_b32 s3, s3, 6\nv_xor_b32 {v(P1)}, s3, {v(P1)}")
        e(f"v_lshl_add_u32 {v(W2D)}, {v(P0)}, 10, {v(P1)}")
        if krot:
            g(f"s_and_b32 s3, s{sROT2}, 1\ns_lshl_b32 s3, s3, 14\nv_xor_b32 {v(W2D)}, s3, {v(W2D)}")
            e(f"v_xor_b32 {v(W2D+2)}, 0x4000, {v(W2D)}\nv_add_u32 {v(W2D+1)}, 8192, {v(W2D)}\nv_add_u32 {v(W2D+3)}, 8192, {v(W2D+2)}")
            g(f"s_lshr_b32 s3, s{sROT2}, 1\ns_lshl_b32 s3, s3, 15\ns_add_u32 s{sBE}, s{sBE}, s3\ns_add_u32 s{sBX}, s{sBX}, s3\ns_add_u32 s{sBL}, s{sBL}, s3")
        else:
            for i in (1, 2, 3):
                e(f"v_add_u32 {v(W2D+i)}, {i*7168}, {v(W2D)}")
        e(f"v_bfe_u32 {v(P0)}, {v(LR)}, 2, 1\nv_lshrrev_b32 {v(P1)}, 3, {v(LR)}\nv_and_b32 {v(P2)}, 3, {v(LR)}")
        e(f"v_lshl_add_u32 {v(P2)}, {v(P1)}, 2, {v(P2)}\nv_lshl_add_u32 {v(TAU)}, {v(P0)}, 4, {v(P2)}")
        for z in (XA + 2, XA + 3, XB + 2, XB + 3, WE + 2, WE + 3, WE + 6, WE + 7, WE + 10, WE + 11):
            e(f"v_mov_b32 {v(z)}, 0")
        LRE, LIM, DT, A2, BRV, X0, X1, X2 = range(PL, PL + 8)
        o.append(W(vm="par2"))
        e(f"v_lshlrev_b32 {v(LRE)}, 16, {v(LRE)}\nv_lshlrev_b32 {v(LIM)}, 16, {v(LIM)}\nv_lshlrev_b32 {v(DT)}, 16, {v(DT)}\nv_lshlrev_b32 {v(DSK)}, 16, {v(DSK)}")
        e(f"v_mul_f32 {v(DT)}, {LOG2E:#x}, {v(DT)}\nv_exp_f32 {v(DT)}, {v(DT)}\nv_cvt_pk_bf16_f32 {v(DT)}, {v(DT)}, {v(DT)}\nv_and_b32 {v(DT)}, 0xffff0000, {v(DT)}")
        e(f"v_mul_f32 {v(A2)}, {v(DT)}, {v(LRE)}\nv_mul_f32 {v(BRV)}, {v(DT)}, {v(LIM)}\nv_mul_f32 {v(A2)}, {LOG2E:#x}, {v(A2)}\nv_mul_f32 {v(BRV)}, 0.15915494, {v(BRV)}")
        def cpow(n, dr, di):
            e(f"v_mul_f32 {v(X0)}, {n}, {v(A2)}\nv_mul_f32 {v(X1)}, {n}, {v(BRV)}\nv_exp_f32 {v(X0)}, {v(X0)}\nv_fract_f32 {v(X1)}, {v(X1)}")
            e(f"v_cos_f32 {v(dr)}, {v(X1)}\nv_sin_f32 {v(di)}, {v(X1)}\nv_mul_f32 {v(dr)}, {v(dr)}, {v(X0)}\nv_mul_f32 {v(di)}, {v(di)}, {v(X0)}")
        cpow("1.0", LAR, LAI); cpow("0x41800000", L16R, L16I); cpow("0x43800000", L2R, L2I)
        g(f"s_lshl_b32 s3, s{sW}, 1\nv_add_u32 {v(X2)}, s3, {v(HF)}")
        e(f"v_lshlrev_b32 {v(X2)}, 4, {v(X2)}\nv_cvt_f32_u32 {v(X2)}, {v(X2)}")
        cpow(v(X2), PWR, PWI)
        g(f"s_lshl_b32 s3, s{sW}, 2\nv_add_u32 {v(X2)}, s3, {v(HF)}")
        e(f"v_lshlrev_b32 {v(X2)}, 7, {v(X2)}\nv_cvt_f32_u32 {v(X2)}, {v(X2)}")
        cpow(v(X2), SCRR, SCI)
        e(f"v_sub_f32 {v(NLAI)}, 0, {v(LAI)}\nv_sub_f32 {v(NL16I)}, 0, {v(L16I)}")
        e(f"v_mul_f32 {v(X0)}, {v(LRE)}, {v(LRE)}\nv_fmac_f32 {v(X0)}, {v(LIM)}, {v(LIM)}\nv_rcp_f32 {v(X0)}, {v(X0)}\nv_subrev_f32 {v(X1)}, 1.0, {v(LAR)}")
        e(f"v_mul_f32 {v(CFR)}, {v(X1)}, {v(LRE)}\nv_mul_f32 {v(NCFI)}, {v(X1)}, {v(LIM)}\nv_mul_f32 {v(X0)}, 0x4038aa3b, {v(X0)}")
        e(f"v_fmac_f32 {v(CFR)}, {v(LAI)}, {v(LIM)}\nv_fmac_f32 {v(NCFI)}, {v(NLAI)}, {v(LRE)}")
        e(f"v_mul_f32 {v(CFR)}, {v(CFR)}, {v(X0)}\nv_mul_f32 {v(NCFI)}, {v(NCFI)}, {v(X0)}\nv_sub_f32 {v(NCFR)}, 0, {v(CFR)}")
        e(f"v_mul_f32 {v(T)}, {v(CFR)}, {v(LAR)}\nv_mul_f32 {v(T+16)}, {v(CFR)}, {v(LAI)}\nv_fmac_f32 {v(T)}, {v(NCFI)}, {v(LAI)}\nv_fma_f32 {v(T+16)}, -{v(NCFI)}, {v(LAR)}, {v(T+16)}")
        for i in range(1, 16):
            e(f"v_mul_f32 {v(T+i)}, {v(T+i-1)}, {v(LAR)}\nv_mul_f32 {v(T+16+i)}, {v(T+15+i)}, {v(LAR)}")
            e(f"v_fmac_f32 {v(T+i)}, {v(T+15+i)}, {v(NLAI)}\nv_fmac_f32 {v(T+16+i)}, {v(T+i-1)}, {v(LAI)}")
        return o

    GS, GX, GA = TM, TM + 2, TM + 16

    def gran_loads(full):
        ops = [(f"s_lshr_b32 s{t2}, s{sXB}, 7\ns_add_u32 s{t2}, s{t2}, {STATS}\nv_lshlrev_b32 {v(GA)}, 3, {v(TAU)}", None),
               (f"buffer_load_dwordx2 {v(GS,2)}, {v(GA)}, {s(rWS,4)}, s{t2} offen sc1", "gran"),
               (f"s_lshl_b32 s{t2}, s{sC}, 7\ns_add_u32 s{t2}, s{t2}, {XID}\nv_and_b32 {v(GA)}, 15, {v(L)}\nv_lshlrev_b32 {v(GA)}, 3, {v(GA)}", None),
               (f"buffer_load_dwordx2 {v(GX,2)}, {v(GA)}, {s(rWS,4)}, s{t2} offen sc1", "gran"),
               (f"s_lshl_b32 s{t2}, s{sG}, 8\ns_add_u32 s{t2}, s{t2}, {CS + 1792*8}\nv_lshlrev_b32 {v(GA)}, 12, {v(HF)}\nv_lshl_add_u32 {v(GA)}, {v(LR)}, 3, {v(GA)}", None),
               (f"buffer_load_dwordx2 {v(WE+8,2)}, {v(GA)}, {s(rWS,4)}, s{t2} offen sc1", "gran")]
        if full:
            ops += [(f"s_lshl_b32 s{t2}, s{sF}, 10\ns_add_u32 s{t2}, s{t2}, {CS}\nv_lshlrev_b32 {v(GA)}, 3, {v(L)}", None),
                    (f"buffer_load_dwordx2 {v(WE,2)}, {v(GA)}, {s(rWS,4)}, s{t2} offen sc1", "gran"),
                    (f"buffer_load_dwordx2 {v(WE+4,2)}, {v(GA)}, {s(rWS,4)}, s{t2} offen offset:512 sc1", "gran")]
        return ops

    cold = []
    def spin_check(name, tag, mismatch, reload):
        again, ok = k.label(name + "_again"), k.label(name + "_ok")
        k.wait(vm=tag)
        k(mismatch)
        k(f"s_mov_b32 s{sCNT}, 0\ns_nop 0\ns_cbranch_vccnz {again}")
        k(ok + ":")
        loads = "\n".join(op[0] for op in reload)
        if backoff:
            loads = f"s_sleep {backoff}\n" + loads
        cold.append(f"{again}:\n{loads}\ns_waitcnt vmcnt(0)\n{mismatch}\ns_add_u32 s{sCNT}, s{sCNT}, 1\ns_cmp_gt_u32 s{sCNT}, {SPIN}\n"
                    f"s_cbranch_scc1 {ok}\ns_cbranch_vccnz {again}\ns_branch {ok}")

    def tags_differ(regs, tmp):
        t = f"v_xor_b32 {v(tmp)}, s{sTAG}, {v(regs[0])}\n"
        for r in regs[1:]:
            t += f"v_xor_b32 {v(tmp+1)}, s{sTAG}, {v(r)}\nv_or_b32 {v(tmp)}, {v(tmp)}, {v(tmp+1)}\n"
        return t + f"v_cmp_ne_u32 vcc, 0, {v(tmp)}"

    def gran_check(full):
        spin_check("gran", "gran", tags_differ([GS + 1, GX + 1, WE + 9] + ([WE + 1, WE + 5] if full else []), GA), gran_loads(full))
        k(f"v_cmp_ne_u32 vcc, s{sXCC}, {v(GX)}")
        k(f"v_and_b32 {v(GA)}, 0xffff, {v(GS)}\nv_and_b32 {v(GA+1)}, 0xffff0000, {v(GS)}\nv_lshlrev_b32 {v(MF)}, 16, {v(GS)}")
        k(f"s_cmp_eq_u64 vcc, 0\ns_cselect_b32 s{sLOC}, 1, 0")
        k(f"v_rcp_f32 {v(RS)}, {v(GA+1)}\nv_xor_b32 {v(GA)}, 0x8000, {v(GA)}\nv_lshrrev_b32 {v(GA+1)}, 16, {v(GS)}\nv_lshl_or_b32 {v(GA)}, {v(GA)}, 16, {v(GA)}")
        k(f"v_cndmask_b32 {v(XA)}, {v(GA)}, 0, {s(sHI,2)}\nv_cndmask_b32 {v(XA+1)}, {v(GA+1)}, 0, {s(sHI,2)}")
        k(f"v_cndmask_b32 {v(XB)}, 0, {v(GA)}, {s(sHI,2)}\nv_cndmask_b32 {v(XB+1)}, 0, {v(GA+1)}, {s(sHI,2)}\nv_mov_b32 {v(WE+9)}, 0")
        k(f"s_lshr_b32 s3, s{sW12}, 5\ns_add_u32 s3, s3, {SCR}\nv_lshlrev_b32 {v(GA)}, 9, {v(HF)}\nv_lshl_add_u32 {v(GA)}, {v(TAU)}, 2, {v(GA)}\nv_add_u32 {v(GA)}, s3, {v(GA)}")
        k(f"v_lshlrev_b32 {v(GA+2)}, 6, {v(HF)}\nv_add_u32 {v(GA+2)}, s3, {v(GA+2)}")
        mfma(SS, v(XA, 4), v(WE + 8, 4)); mfma(SS + 16, v(XB, 4), v(WE + 8, 4))
        k(f"v_cndmask_b32 {v(GA+1)}, {v(RS)}, {v(MF)}, {s(sHI,2)}\nv_mul_f32 {v(C1)}, {LOG2E:#x}, {v(RS)}")
        k(f"ds_write_b32 {v(GA)}, {v(GA+1)}", "stw")
        for q in range(4):
            k(f"ds_read_b128 {v(RSV+4*q,4)}, {v(GA+2)} offset:{q*16}", "rsv")
        if full:
            k(f"v_mov_b32 {v(WE+1)}, {v(BI)}\nv_mov_b32 {v(WE+5)}, {v(BI+1)}\ns_lshl_b32 s3, s{sF}, 13\ns_add_u32 s{sA0}, s{sAF}, s3")
            for t in range(4):
                mfma(ACC + 16 * t, v(WE + 4 * (t >> 1), 4), v(XB if t & 1 else XA, 4))

    def pf_ops():
        if not l2pf:
            return [("s_nop 0", "none")]
        P, Q = TM + 18, TM + 19
        rows = mapping != "x8g4"
        o = []
        for h in range(2 if rows else 1):
            col = f"s_mov_b32 s3, {h*4}" if rows else f"s_and_b32 s3, s{sXD}, 1\ns_lshl_b32 s3, s3, 2"
            skip = f"v_cmp_eq_u32 vcc, {lite}, {v(Q)}\nv_lshrrev_b32 {v(P)}, 2, {v(L)}\nv_min_u32 {v(P)}, 13, {v(P)}\nv_subbrev_co_u32 {v(Q)}, vcc, 0, {v(Q)}, vcc\n" if trickle else \
                   f"v_lshrrev_b32 {v(P)}, 2, {v(L)}\nv_min_u32 {v(P)}, 13, {v(P)}\n"
            o += [(f"{col}\nv_and_b32 {v(Q)}, 3, {v(L)}\nv_add_u32 {v(Q)}, s3, {v(Q)}\n{skip}v_lshlrev_b32 {v(Q)}, 7, {v(Q)}\nv_lshl_add_u32 {v(P)}, {v(P)}, 10, {v(Q)}\n"
                   f"s_lshl_b32 s{t2}, s{sJ}, 2\ns_add_u32 s{t2}, s{t2}, s{sW}\ns_mul_i32 s{t2}, s{t2}, {14*1024}", None),
                  (f"buffer_load_dword a255, {v(P)}, {s(rW2,4)}, s{t2} offen", "pf2")]
        half = "" if rows else f"s_and_b32 s3, s{sXD}, 1\ns_lshl_b32 s3, s3, 18\ns_add_u32 s{t2}, s{t2}, s3\n"
        o += [(f"s_lshl_b32 s{t2}, s{sJ}, 2\ns_add_u32 s{t2}, s{t2}, s{sW}\ns_lshl_b32 s{t2}, s{t2}, {12 if rows else 11}\n{half}"
               f"v_and_b32 {v(P)}, {31 if rows else 15}, {v(L)}\nv_lshlrev_b32 {v(P)}, 7, {v(P)}", None),
              (f"buffer_load_dword a255, {v(P)}, {s(rCR,4)}, s{t2} offen", "pf2"),
              (f"buffer_load_dword a255, {v(P)}, {s(rCI,4)}, s{t2} offen", "pf2")]
        return o

    def far_ops():
        if far_at is None:
            return []
        P, Q = TM + 18, TM + 19
        return [(f"s_lshl_b32 s{t2}, s2, 2\ns_add_u32 s{t2}, s{t2}, s{sW}\ns_mul_i32 s3, s{t2}, {14*128}\nv_lshrrev_b32 {v(P)}, 2, {v(L)}\nv_min_u32 {v(Q)}, 13, {v(P)}\nv_lshlrev_b32 {v(Q)}, 7, {v(Q)}\n"
                 f"buffer_load_dword a255, {v(Q)}, {s(rW2,4)}, s3 offen", "far"),
                (f"s_lshl_b32 s{t2}, s{t2}, 9\nv_and_b32 {v(P)}, 3, {v(P)}\nv_lshlrev_b32 {v(P)}, 7, {v(P)}\nbuffer_load_dword a255, {v(P)}, {s(rCR,4)}, s{t2} offen", "far"),
                (f"buffer_load_dword a255, {v(P)}, {s(rCI,4)}, s{t2} offen", "far")]

    def weave(mem, val):
        n = sum(1 for op in mem if op[1] is not None)
        for m, c in zip(spread_mem(mem, n), spread(val, n)):
            run(m); run(c)

    def stage_reads(b):
        hi = RING[b] >= HIGH
        return [W(vm=f"rb{b}")] + [(f"ds_read_b64_tr_b16 {a(RESB[b]+8*j+4*c+2*rd,2)}, {v(W2R+2*hi+c)} offset:{RING[b] - hi*HIGH + j*2048 + rd*1024}", f"sr{b}")
                                   for j in range(4) for c in range(2) for rd in range(2)]

    EA, EB, EX0, EX1, E0 = XD, XD + 1, XD + 2, XD + 3, TM
    HA, HB, XW, XQ = WD, WD + 1, WD + 2, WD + 3
    def e_loads():
        return [(f"buffer_load_dwordx4 {v(E0,4)}, {v(EA)}, {s(rE,4)}, 0 offen sc1", "eg"),
                (f"buffer_load_dwordx4 {v(E0+4,4)}, {v(EB)}, {s(rE,4)}, 0 offen sc1", "eg")]

    def epi_addr():
        o = []
        e = lambda text: o.extend(ops_of(text))
        P = TM + 12
        o.append((f"s_lshl_b32 s3, s{sW}, 2\ns_sub_u32 s3, s{sC}, s3\ns_sub_u32 s3, s3, 1\nv_sub_u32 {v(EA)}, s3, {v(HF)}", None))
        e(f"v_subrev_u32 {v(EB)}, 2, {v(EA)}\nv_ashrrev_i32 {v(EX0)}, 31, {v(EA)}\nv_ashrrev_i32 {v(EX1)}, 31, {v(EB)}\n"
          f"v_bfi_b32 {v(EX0)}, {v(EX0)}, 0, s{sTAG}\nv_bfi_b32 {v(EX1)}, {v(EX1)}, 0, s{sTAG}\nv_lshlrev_b32 {v(P)}, 4, {v(LR)}\n"
          f"v_lshl_add_u32 {v(EA)}, {v(EA)}, 9, {v(P)}\nv_lshl_add_u32 {v(EB)}, {v(EB)}, 9, {v(P)}")
        o.append((f"s_lshr_b32 s3, s{sW12}, 3\ns_add_u32 s3, s3, {SCR_EX}\nv_lshl_add_u32 {v(XW)}, {v(L)}, 3, s3", None))
        e(f"v_lshlrev_b32 {v(XQ)}, 3, {v(LR)}\nv_add_u32 {v(XQ)}, {SCR_EX}, {v(XQ)}")
        o.append((f"s_lshr_b32 s3, s{sW}, 1\ns_mul_i32 s3, s3, {SLOT - 8192}\ns_add_u32 s3, s3, s{sW12}\ns_add_u32 s{sKW}, s3, {SCR_HT}", None))
        e(f"v_lshlrev_b32 {v(HA)}, 5, {v(HF)}\nv_lshl_add_u32 {v(HA)}, {v(LR)}, 6, {v(HA)}\nv_add_u32 {v(HA)}, s{sKW}, {v(HA)}")
        e(f"v_bfe_u32 {v(HB)}, {v(L)}, 2, 2\nv_lshl_add_u32 {v(HB)}, {v(HF)}, 3, {v(HB)}\nv_lshlrev_b32 {v(HB)}, 6, {v(HB)}")
        e(f"v_and_b32 {v(P)}, 1, {v(L)}\nv_lshl_add_u32 {v(HB)}, {v(P)}, 5, {v(HB)}\nv_bfe_u32 {v(P)}, {v(L)}, 1, 1\nv_lshl_add_u32 {v(HB)}, {v(P)}, 3, {v(HB)}")
        e(f"v_bfe_u32 {v(P)}, {v(L)}, 4, 1\nv_lshl_add_u32 {v(HB)}, {v(P)}, 4, {v(HB)}\nv_add_u32 {v(HB)}, s{sKW}, {v(HB)}")
        o.append((f"s_lshr_b32 s3, s{sG}, 2\ns_lshl_b32 s3, s3, 3\ns_and_b32 s{sKW}, s{sG}, 3\ns_add_u32 s3, s3, s{sKW}\ns_lshl_b32 s3, s3, 11\ns_add_u32 s{sKW}, s{sAF}, s3\ns_add_u32 s{sKW}, s{sKW}, {112*1024}", None))
        o.append((f"s_lshl_b32 s3, s{sM}, 1\ns_lshr_b32 s{sP0}, s{sW}, 1\ns_add_u32 s{sP0}, s3, s{sP0}\ns_xor_b32 s{sP1}, s{sP0}, 1\n"
                  f"s_mul_i32 s{sP0}, s{sP0}, {MT}\ns_mul_i32 s{sP1}, s{sP1}, {MT}\ns_add_u32 s{sP0}, s{sP0}, {AF}\ns_add_u32 s{sP1}, s{sP1}, {AF}", None))
        return o

    def gemm1(full, pfx):
        nm = 6 if full else 2
        base_of = lambda stg: ((stg % 4) // 2) * HIGH
        def reads(n):
            stg, j = divmod(n, 4)
            off = (stg % 4) * SLOT - base_of(stg)
            f = FR + 28 * (n & 1)
            d = base_of(stg) - base_of(stg - 1) if stg else 0
            adj = lambda r, on=True: f"v_add_u32 {v(r)}, {d & 0xffffffff:#x}, {v(r)}\n" if d and on else ""
            o = [(adj(XR + j) + f"ds_read_b128 {a(f,4)}, {v(XR+j)} offset:{off}", f"ra{n}")]
            o += [(adj(BQ + j, c == 0) + f"ds_read_b128 {a(f+4+4*c,4)}, {v(BQ+j)} offset:{off + c*4096}", f"ra{n}") for c in range(2)]
            if full:
                o += [(adj(WR + t, j == 0 and rd == 0) + f"ds_read_b64_tr_b16 {a(f+12+4*t+2*rd,2)}, {v(WR+t)} offset:{off + j*4096 + rd*1024}", f"ra{n}" if t == 0 else f"rb_{n}")
                      for t in range(4) for rd in range(2)]
            return o
        if look == 2:
            mem = {sg: stage_ops(sg + 2, full) for sg in range(6)}
            if pre3:
                mem[0] = []
            mem.update({6: ring_ops(0), 7: ring_ops(1)})
        else:
            ramp = spread_mem(sum((stage_ops(sg, full) for sg in range(2, 6)), []), 3)
            mem = {0: ramp[0], 1: ramp[1], 2: ramp[2], 3: stage_ops(6, full), 4: stage_ops(7, full), 5: ring_ops(0), 6: ring_ops(1), 7: ring_ops(2)}
        mem[pf_at] = pf_ops() + mem[pf_at]
        if far_at is not None:
            mem[far_at] = mem[far_at] + far_ops()
        mem[gran_at] = gran_loads(full) + mem[gran_at]
        if trk_w2 is not None and mapping == "x8g4":
            P, Q = TM + 18, TM + 19
            for q in range(4):
                head = (f"s_and_b32 s3, s{sXD}, 1\ns_lshl_b32 s3, s3, 2\nv_bfe_u32 {v(Q)}, {v(L)}, 2, 2\nv_add_u32 {v(Q)}, s3, {v(Q)}\nv_cmp_eq_u32 vcc, {lite}, {v(Q)}\n"
                        f"v_lshrrev_b32 {v(P)}, 4, {v(L)}\nv_lshlrev_b32 {v(P)}, 10, {v(P)}\nv_subbrev_co_u32 {v(Q)}, vcc, 0, {v(Q)}, vcc\nv_lshl_add_u32 {v(P)}, {v(Q)}, 7, {v(P)}\n"
                        f"s_lshl_b32 s{sJ}, s{sJ}, 2\ns_add_u32 s{sJ}, s{sJ}, s{sW}\ns_mul_i32 s{sJ}, s{sJ}, {14*1024}\n") if q == 0 else f"s_add_u32 s{sJ}, s{sJ}, {4096 if q < 3 else 2048}\n"
                mem[trk_w2 + q] = mem[trk_w2 + q] + [(head + f"buffer_load_dword a255, {v(P)}, {s(rW2,4)}, s{sJ} offen", "trk")]
        if trk_c is not None:
            P = TM + 19
            nrow = 2 if mapping == "x8g4" else 4
            half = f"s_and_b32 s3, s{sXD}, 1\ns_lshl_b32 s3, s3, 18\ns_add_u32 s{t2}, s{t2}, s3\n" if mapping == "x8g4" else ""
            mem[trk_c] = mem[trk_c] + [
                (f"s_lshl_b32 s{t2}, s{sJ}, 2\ns_add_u32 s{t2}, s{t2}, s{sW}\ns_mul_i32 s{t2}, s{t2}, {nrow*1024}\n{half}v_bfe_u32 {v(P)}, {v(L)}, 4, {nrow//2}\nv_lshlrev_b32 {v(P)}, 10, {v(P)}\n"
                 f"buffer_load_dword a255, {v(P)}, {s(rCR,4)}, s{t2} offen offset:384", "trk"),
                (f"buffer_load_dword a255, {v(P)}, {s(rCI,4)}, s{t2} offen offset:384", "trk")]
        if trickle and not full:
            for sg in range(7):
                P = TM + 15
                rows = mapping != "x8g4"
                who = {"rows": f"s_and_b32 s3, s{sC}, 1\ns_lshl_b32 s3, s3, 1\ns_lshr_b32 s{sQ}, s{sG}, 3\ns_add_u32 s3, s3, s{sQ}",
                       "x4g8": f"s_and_b32 s3, s{sC}, 3", "x8g4": f"s_and_b32 s3, s{sC}, 7"}[mapping]
                head = (f"{who}\ns_lshl_b32 s3, s3, 2\ns_add_u32 s3, s3, s{sW}\ns_mul_i32 s{sQ}, s3, {(112 if rows else 56)*1024}\ns_add_u32 s{sQ}, s{sQ}, {lite*128}\n"
                        f"v_lshrrev_b32 {v(P)}, {2 if rows else 3}, {v(L)}\nv_lshlrev_b32 {v(P)}, 10, {v(P)}\n") if sg == 0 else f"s_add_u32 s{sQ}, s{sQ}, {16384 if rows else 8192}\n"
                mem[sg] = mem[sg] + [(head + f"buffer_load_dword a255, {v(P)}, {s(rW2,4)}, s{sQ} offen", "trk")]
        val = ([] if pre3 else late_setup(full))
        for stg in range(8):
            k.wait(vm=f"st{stg}", lg="all" if look == 3 else None)
            k("s_barrier")
            if stg in (0, 4):
                stamp(f"{pfx}st{stg}")
            steps = ([4 * stg - 1] if stg else []) + [4 * stg, 4 * stg + 1, 4 * stg + 2] + ([31] if stg == 7 else [])
            if stg == 0:
                run(reads(0))
            mm = spread_mem(mem[stg], nm * min(4, len(steps))) if mem[stg] else []
            if stg == 6:
                assert look == 2 or not val
                val = val + epi_addr()
            gi = 0
            for n in steps:
                f = FR + 28 * (n & 1)
                last = n % 4 == 2 and look == 3
                rd = spread(reads(n + 1), nm - 2 if last and full else nm) + [[]] * 2 if n < 31 else [[]] * nm
                for i in range(nm):
                    if i == 0:
                        k.wait(lg=f"ra{n}")
                    if i == 3:
                        k.wait(lg=f"rb_{n}")
                    c0 = "0" if n == 0 else None
                    if i < 2:
                        mfma(SS + 16 * i, a(f, 4), a(f + 4 + 4 * i, 4), c0)
                    else:
                        mfma(ACC + 16 * (i - 2), a(f + 12 + 4 * (i - 2), 4), a(f, 4), c0)
                    here = rd[i] + (mm[gi] if gi < len(mm) else [])
                    run(here)
                    used = 8 + sum(map(cost, here)) + (6 if i in (2, nm - 1) else 0)
                    while val and (used + cost(val[0]) <= budget or (not full and used < 60)):
                        used += cost(val[0])
                        run([val.pop(0)])
                    gi += 1
                probe(f"g{n}")
        run(val)

    def scan_ops():
        o = [W(lg="rsv")]
        for r in range(0, 16, 2):
            o += ops_of(f"v_pk_mul_f32 {v(SS+r,2)}, {v(SS+r,2)}, {v(RSV+r,2)}\nv_pk_mul_f32 {v(SS+16+r,2)}, {v(SS+16+r,2)}, {v(RSV+r,2)}")
        for r in range(1, 16):
            o += ops_of(f"v_fmac_f32 {v(SS+r)}, {v(LAR)}, {v(SS+r-1)}\nv_fmac_f32 {v(SS+16+r)}, {v(LAR)}, {v(SS+15+r)}\n"
                        f"v_fmac_f32 {v(SS+r)}, {v(NLAI)}, {v(SS+15+r)}\nv_fmac_f32 {v(SS+16+r)}, {v(LAI)}, {v(SS+r-1)}")
        o.append((f"ds_write2_b32 {v(XW)}, {v(SS+15)}, {v(SS+31)} offset0:0 offset1:1", "exw"))
        return o

    def chain_ops():
        o = [(f"ds_read_b64 {v(EK+2*q,2)}, {v(XQ)} offset:{q*256}", f"ek{q}") for q in range(8)]
        SG = TM + 17
        o.append((f"s_lshl_b32 s3, s{sW}, 1\nv_add_u32 {v(SG)}, s3, {v(HF)}", None))
        o += ops_of(f"v_mov_b32 {v(PR)}, 0\nv_mov_b32 {v(PI)}, 0\nv_mov_b32 {v(XA+1)}, s{sTAG}\nv_mov_b32 {v(XA+3)}, s{sTAG}")
        o.append(W(lg="ek3"))
        for q in range(1, 8):
            r, i = EK + 2 * q, EK + 2 * q + 1
            dr, di = (XA, XA + 2) if q == 7 else (r, i)
            if q == 4:
                o.append(W(lg="ek7"))
            o += ops_of(f"v_cmp_eq_u32 vcc, {q}, {v(SG)}\nv_fmac_f32 {v(r)}, {v(L16R)}, {v(r-2)}\nv_fmac_f32 {v(i)}, {v(L16R)}, {v(i-2)}\n"
                        f"v_cndmask_b32 {v(PR)}, {v(PR)}, {v(r-2)}, vcc\nv_cndmask_b32 {v(PI)}, {v(PI)}, {v(i-2)}, vcc\n"
                        f"v_fma_f32 {v(dr)}, {v(NL16I)}, {v(i-2)}, {v(r)}\nv_fma_f32 {v(di)}, {v(L16I)}, {v(r-2)}, {v(i)}")
        o.append((f"s_cmp_eq_u32 s{sW}, 3\ns_cselect_b32 s3, 0, 0x10000\nv_lshlrev_b32 {v(SG)}, 13, {v(HF)}\nv_add3_u32 {v(SG)}, {v(SG)}, {v(L16)}, s3\ns_lshl_b32 s3, s{sC}, 9\n"
                  f"buffer_store_dwordx4 {v(XA,4)}, {v(SG)}, {s(rE,4)}, s3 offen sc1", "epub"))
        return o

    def coef_ops():
        o = []
        for r in range(0, 16, 2):
            tt = XB + (r & 2)
            o += ops_of(f"v_pk_mul_f32 {v(tt,2)}, {v(SS+r,2)}, {v(NCFI,2)} op_sel_hi:[1,0]\nv_pk_mul_f32 {v(SS+r,2)}, {v(SS+r,2)}, {v(CFR,2)} op_sel_hi:[1,0]\n"
                        f"v_pk_fma_f32 {v(SS+r,2)}, {v(SS+16+r,2)}, {v(NCFI,2)}, {v(SS+r,2)} op_sel_hi:[1,0,1]\n"
                        f"v_pk_fma_f32 {v(SS+16+r,2)}, {v(SS+16+r,2)}, {v(CFR,2)}, {v(tt,2)} op_sel:[0,1,0] op_sel_hi:[1,1,1]")
        return o

    XSL = 3 * SLOT + 32768
    def xs_ops():
        P = TM + 19
        return [(f"s_lshl_b32 s{t2}, s{sM}, 1\ns_lshr_b32 s3, s{sW}, 1\ns_add_u32 s{t2}, s{t2}, s3\ns_lshl_b32 s{t2}, s{t2}, 15\n"
                 f"s_lshl_b32 s3, s{sN}, 7\ns_add_u32 s{t2}, s{t2}, s3\ns_and_b32 s3, s{sW}, 1\ns_lshl_b32 s3, s3, 6\ns_add_u32 s{t2}, s{t2}, s3\n"
                 f"v_lshrrev_b32 {v(P)}, 2, {v(L)}\nv_and_b32 {v(P-1)}, 3, {v(L)}\nv_lshlrev_b32 {v(P-1)}, 4, {v(P-1)}\nv_lshl_add_u32 {v(P)}, {v(P)}, 10, {v(P-1)}\n"
                 f"s_lshr_b32 s3, s{sW12}, 1\ns_add_u32 m0, s3, {XSL}", None),
                (f"buffer_load_dwordx4 {v(P)}, {s(rX,4)}, s{t2} offen lds", "xs"),
                (f"s_add_u32 s{t2}, s{t2}, {16384 - 1024}\nbuffer_load_dwordx4 {v(P)}, {s(rX,4)}, s{t2} offen offset:1024 lds", "xs")]

    def mish_ops(t):
        ops = []
        TA, TB = MI, MI + 8
        for e in range(2):
            R = ACC + 16 * t + 8 * e
            one = lambda f: [(f(i), None) for i in range(8)]
            two = lambda f: [(f(i), None) for i in range(0, 8, 2)]
            ops += two(lambda i: f"v_pk_mul_f32 {v(TA+i,2)}, {v(R+i,2)}, {v(C1,2)} op_sel_hi:[1,0]")
            ops += one(lambda i: f"v_exp_f32 {v(TB+i)}, {v(TA+i)}")
            ops += two(lambda i: f"v_pk_fma_f32 {v(R+i,2)}, {v(TB+i,2)}, 0.5, 1.0 op_sel_hi:[1,0,0]")
            ops += two(lambda i: f"v_pk_fma_f32 {v(TB+i,2)}, {v(TB+i,2)}, {v(R+i,2)}, 1.0 op_sel_hi:[1,1,0]")
            ops += one(lambda i: f"v_rcp_f32 {v(TB+i)}, {v(TB+i)}")
            ops += two(lambda i: f"v_pk_fma_f32 {v(TA+i,2)}, {v(TA+i,2)}, {v(TB+i,2)}, {v(TA+i,2)} neg_lo:[1,0,0] neg_hi:[1,0,0]")
            ops += two(lambda i: f"v_cvt_pk_bf16_f32 {v(R+i//2)}, {v(TA+i)}, {v(TA+i+1)}")
            pre = f"s_add_u32 s{sA0}, s{sA0}, 4096\n" if t == 2 and e == 0 else ""
            ops.append((pre + f"buffer_store_dwordx4 {v(R,4)}, {v(L16)}, {s(rWS,4)}, s{sA0} offen offset:{(2*(t&1)+e)*1024} {st}", f"act{t}"))
        return ops

    PA, PV = BI, BI + 1

    def flag_publish(base, tag):
        k(f"s_lshl_b32 s{sQ}, s{sC}, 4\ns_add_u32 s{sQ}, s{sQ}, s{sG if base == FLC else sF}\ns_lshl_b32 s{sQ}, s{sQ}, 2\ns_add_u32 s{sQ}, s{sQ}, s{sW}\ns_lshl_b32 s{sQ}, s{sQ}, 7\ns_add_u32 s{sQ}, s{sQ}, {base}")
        k(f"v_mov_b32 {v(MF)}, s{sTAG}")
        k.wait(vm=tag)
        k("s_mov_b64 exec, 1")
        text = f"buffer_store_dword {v(MF)}, off, {s(rWS,4)}, s{sQ}"
        if mode == "global":
            k(text + " sc1", "flag")
        else:
            far, done = k.label("far"), k.label("flagged")
            k(f"s_cmp_eq_u32 s{sLOC}, 0\ns_cbranch_scc1 {far}")
            k(text, "flag")
            k(f"s_branch {done}\n{far}:")
            untracked(f"buffer_wbl2 sc1\ns_waitcnt vmcnt(0)\n{text} sc1")
            k(done + ":")
        k("s_mov_b64 exec, -1")

    def poll_load(tag):
        return [(f"buffer_load_dword {v(PV)}, {v(PA)}, {s(rWS,4)}, s{t3} offen sc1", tag)]

    def poll_base(base):
        return f"s_lshl_b32 s3, s{sC}, 5\ns_lshr_b32 s{t3}, s{sG}, 3\ns_add_u32 s3, s3, s{t3}\ns_lshl_b32 s3, s3, 8\ns_add_u32 s{t3}, s3, {base}"

    def poll_ops(first, base, tag):
        top = 15 if base == FLC else 13
        return [(f"{first}\nv_bfe_u32 {v(PA)}, {v(L)}, 1, 2\nv_add_u32 {v(PA)}, s3, {v(PA)}\nv_min_u32 {v(PA)}, {top}, {v(PA)}\nv_and_b32 {v(PV)}, 1, {v(L)}\n"
                 f"v_lshl_add_u32 {v(PA)}, {v(PA)}, 2, {v(PV)}\nv_lshlrev_b32 {v(PA)}, 7, {v(PA)}\n" + poll_base(base), None)] + poll_load(tag)

    poll1_ops = lambda: poll_ops(f"s_mov_b32 s3, s{sGE}", FLA, "poll1")
    poll2_ops = lambda: poll_ops(f"s_mov_b32 s3, s{sGL}", FLB, "poll2")
    poll3_ops = lambda: poll_ops(f"s_lshl_b32 s3, s{sW}, 2", FLC, "poll3")
    poll_check = lambda tag: spin_check(tag, tag, f"v_cmp_ne_u32 vcc, s{sTAG}, {v(PV)}", poll_load(tag))

    def carry_write():
        Y0, Y1 = TM + 12, TM + 13
        mis = (f"v_xor_b32 {v(Y0)}, {v(E0+1)}, {v(EX0)}\nv_xor_b32 {v(Y1)}, {v(E0+3)}, {v(EX0)}\nv_or_b32 {v(Y0)}, {v(Y0)}, {v(Y1)}\n"
               f"v_xor_b32 {v(Y1)}, {v(E0+5)}, {v(EX1)}\nv_or_b32 {v(Y0)}, {v(Y0)}, {v(Y1)}\nv_xor_b32 {v(Y1)}, {v(E0+7)}, {v(EX1)}\nv_or_b32 {v(Y0)}, {v(Y0)}, {v(Y1)}\n"
               f"v_cmp_ne_u32 vcc, 0, {v(Y0)}")
        spin_check("e", "eg", mis, e_loads())
        k(f"v_fmac_f32 {v(E0)}, {v(L2R)}, {v(E0+4)}\nv_fmac_f32 {v(E0+2)}, {v(L2R)}, {v(E0+6)}")
        k(f"v_fma_f32 {v(E0)}, -{v(L2I)}, {v(E0+6)}, {v(E0)}\nv_fmac_f32 {v(E0+2)}, {v(L2I)}, {v(E0+4)}")
        k(f"v_mul_f32 {v(Y0)}, {v(SCRR)}, {v(E0)}\nv_mul_f32 {v(Y1)}, {v(SCRR)}, {v(E0+2)}")
        k(f"v_fma_f32 {v(Y0)}, -{v(SCI)}, {v(E0+2)}, {v(Y0)}\nv_fmac_f32 {v(Y1)}, {v(SCI)}, {v(E0)}")
        k(f"ds_write_b64 {v(XW)}, {v(Y0,2)} offset:{SCR_CX - SCR_EX}", "cxw")
        k.wait(lg="all")
        k("s_barrier")
        for q in range(8):
            k(f"ds_read_b64 {v(TM+2*q,2)}, {v(XQ)} offset:{SCR_CX - SCR_EX + q*256}", "cxr")

    def fix_ops():
        o = []
        e = lambda text, tag=None: o.extend(ops_of(text, tag))
        o.append(W(lg="cxr"))
        for step in (8, 4, 2):
            for q in range(0, step, 2):
                e(f"v_pk_add_f32 {v(TM+q,2)}, {v(TM+q,2)}, {v(TM+q+step,2)}")
        NS = TM + 16
        e(f"v_fmac_f32 {v(PR)}, {v(PWR)}, {v(TM)}\nv_fmac_f32 {v(PI)}, {v(PWR)}, {v(TM+1)}")
        e(f"v_fma_f32 {v(NS)}, -{v(PWI)}, {v(TM+1)}, {v(PR)}\nv_fma_f32 {v(NS+1)}, -{v(PWI)}, {v(TM)}, -{v(PI)}")
        for qq in range(4):
            comp, half = qq >> 1, qq & 1
            for r in range(8 * half, 8 * half + 8, 2):
                d = SS + 16 * comp + r
                e(f"v_pk_fma_f32 {v(d,2)}, {v(T+r,2)}, {v(NS,2)}, {v(d,2)} op_sel:[0,{comp},0] op_sel_hi:[1,{comp},1]")
                if comp == 0:
                    e(f"v_pk_fma_f32 {v(d,2)}, {v(T+16+r,2)}, {v(NS,2)}, {v(d,2)} op_sel:[0,1,0] op_sel_hi:[1,1,1]")
                else:
                    e(f"v_pk_fma_f32 {v(d,2)}, {v(T+16+r,2)}, {v(NS,2)}, {v(d,2)} op_sel:[0,0,0] op_sel_hi:[1,0,1] neg_lo:[0,1,0] neg_hi:[0,1,0]")
            for q in range(4):
                e(f"v_cvt_pk_bf16_f32 {v(TM+4*qq+q)}, {v(SS+8*qq+2*q)}, {v(SS+8*qq+2*q+1)}")
            e(f"ds_write_b128 {v(HA)}, {v(TM+4*qq,4)} offset:{comp*2048 + half*16}", f"htw{comp}")
            if half:
                for f in (2 * comp, 2 * comp + 1):
                    for rd in range(2):
                        e(f"ds_read_b64_tr_b16 {v(SS+16*comp+4*(f&1)+2*rd,2)}, {v(HB)} offset:{f*1024 + rd*256}", f"htr{f}")
        for f in range(4):
            o.append(W(lg=f"htr{f}"))
            pre = f"s_add_u32 s{sKW}, s{sKW}, 8192\n" if f == 2 else ""
            o.append((pre + f"buffer_store_dwordx4 {v(SS+16*(f>>1)+4*(f&1),4)}, {v(L16)}, {s(rWS,4)}, s{sKW} offen offset:{(f&1)*1024} {st}", "hst"))
        return o

    def a_ops(b):
        if b < 7:
            src, add = (sAE, b) if b < 3 else (sAX, 0) if b == 3 else (sAL, b - 4)
            head = f"s_mov_b32 s3, s{src}" if b == 3 else turn(add, 13) + f"\ns_add_u32 s3, s{src}, s3"
        elif brot:
            head = f"s_xor_b32 s3, s{sN}, {b-7}\ns_and_b32 s3, s3, 3\ns_lshl_b32 s{t1}, s{sW}, 2\ns_add_u32 s3, s3, s{t1}\ns_lshl_b32 s3, s3, 12\ns_add_u32 s3, s3, {112*1024}"
        else:
            head = f"s_lshl_b32 s3, s{sW}, 14\ns_add_u32 s3, s3, {(112 + 4*(b-7))*1024}"
        ops = [(head + f"\ns_add_u32 s{t1}, s{sP0}, s3\ns_add_u32 s{t2}, s{sP1}, s3", None)]
        for j in range(4):
            for m in range(2):
                pre = f"s_xor_b32 s3, s{sROT2}, {j}\ns_lshl_b32 s3, s3, 10\nv_add_u32 {v(AL)}, s3, {v(L16)}\n" if krot and m == 0 else ""
                ops.append((pre + f"buffer_load_dwordx4 {a(32*(b%NA)+8*j+4*m,4)}, {v(AL)}, {s(rWS,4)}, s{t2 if m else t1} offen offset:{0 if krot else j*1024} sc1", f"ab{b}_{j}"))
        return ops

    def finish(full):
        carry_write()
        if early_a != 0:
            poll_check("poll1")
        stamp("poll" if full else "Lpoll")
        fx = fix_ops()
        if full:
            fx.insert(12, lambda: flag_publish(FLB, "act3"))
        na = dist if early_a is None else early_a
        blocks = [a_ops(0), a_ops(1) + (poll2_ops() if p2_mid else [])] + ([a_ops(2)] if dist == 3 else [])
        r7 = ring_ops(7) if nres == 5 else []
        if nres == 5:
            fx = fx[:-8] + stage_reads(4) + fx[-8:]
        if na or r7:
            weave(r7 + sum(blocks[:na], []), fx[:-8])
            run(fx[-8:])
        else:
            run(fx)
        if nres == 5:
            k.wait(lg="sr4")
            run(ring_ops(8))
        if not na:
            poll_check("poll1")
        run(sum(blocks[na:], []))

    def bar(**kw):
        def f():
            k.wait(**kw)
            k("s_barrier")
        return f

    k(f"s_cmp_eq_u32 s{sN}, {lite}\ns_cbranch_scc1 L_light")
    snap0 = k.snapshot()
    run(stage_ops(0, True)); par_loads()
    weave(stage_ops(1, True), early_setup() + row_stats())
    if pre3:
        weave(stage_ops(2, True), late_setup(True))
    gemm1(True, "")
    stamp("gemm")
    gran_check(True)
    stamp("gran")
    m = [mish_ops(t) for t in range(4)]
    h = len(m[0]) // 2
    if "stores" in ablate:
        m = [[op if op[1] is None else (op[0].replace("offen", "offen").replace(v(L16), v(TM + 19)), op[1]) for op in mt] for mt in m]
        k(f"v_mov_b32 {v(TM+19)}, 0x7fffffff")
    for t in range(4):
        m[t].insert(0, (lambda tt: (lambda: probe(f"m{tt}")))(t))
    if "f1" in ablate:
        k(f"v_mov_b32 {v(MF)}, 0")
    r2 = ring_ops(2) if look == 2 else []
    if "scan" in ablate:
        drop = lambda ops: [op for op in ops if callable(op) or not op[0].startswith(("v_fmac", "v_pk_mul", "v_cmp", "v_cnd", "v_fma"))]
        so, co = scan_ops, chain_ops
        scan_ops, chain_ops = (lambda: drop(so())), (lambda: drop(co()))
    if "mish" in ablate:
        m = [[op for op in mt if callable(op) or op[1] is not None] for mt in m]
        h = 2
    run(scan_ops())
    run(m[0][:h])
    bar(lg="all")()
    weave(r2 + ring_ops(3), chain_ops() + stage_reads(0) + m[0][h:] + [W(lg="sr0")])
    stamp("epub")
    weave(ring_ops(4), stage_reads(1) + m[1] + [W(lg="sr1")])
    weave(ring_ops(5), stage_reads(2) + m[2] + [lambda: probe("f1a"), lambda: flag_publish(FLA, "act1"), lambda: probe("f1b"), W(lg="sr2")])
    run(e_loads())
    weave(ring_ops(6), (stage_reads(3) if nres == 5 else []) + m[3] + coef_ops())
    run(poll1_ops())
    stamp("mish")
    finish(True)
    k.wait(lg="all")
    k("s_branch L_join")
    snap_join = k.snapshot()

    k("L_light:")
    k.restore(snap0)
    k(f"s_lshl_b32 s{sQ}, s{sC}, 1\ns_lshr_b32 s3, s{sG}, 3\ns_add_u32 s{sQ}, s{sQ}, s3")
    k(f"s_cmp_lt_u32 s{sQ}, 16\ns_cselect_b32 s{rE}, s{pBR}, s{pBI}\ns_cselect_b32 s{rE+1}, s{pBR+1}, s{pBI+1}\ns_mov_b32 s{rE+2}, 0x80000\ns_mov_b32 s{rE+3}, 0x20000")
    k(f"s_and_b32 s{t0}, s{sQ}, 15\ns_lshl_b32 s{t0}, s{t0}, 15\ns_add_u32 s{t0}, s{t0}, s{sW13}")
    for i in range(8):
        if i == 4:
            k(f"s_add_u32 s{t0}, s{t0}, 4096")
        k(f"buffer_load_dwordx4 {v(SS+4*i,4)}, {v(L16)}, {s(rE,4)}, s{t0} offen offset:{(i&3)*1024}", "lb")
    k(f"s_min_u32 s{t0}, s{sQ}, 27\ns_lshl_b32 s{t0}, s{t0}, 7\ns_mul_i32 s3, s{sW}, {128*3584}\ns_add_u32 s{t0}, s{t0}, s3")
    k(f"v_lshrrev_b32 {v(TM+16)}, 3, {v(L)}\nv_mul_u32_u24 {v(TM+16)}, 3584, {v(TM+16)}\nv_and_b32 {v(TM+17)}, 7, {v(L)}\nv_lshl_add_u32 {v(TM+16)}, {v(TM+17)}, 4, {v(TM+16)}")
    for i in range(16):
        k(f"buffer_load_dwordx4 {v(ACC+4*i,4)}, {v(TM+16)}, {s(rW1,4)}, s{t0} offen", f"lw{i}")
        k(f"s_add_u32 s{t0}, s{t0}, {8*3584}")
    par_loads()
    run(early_setup()); run(row_stats())
    CA, EL = TM, TM + 8

    def fold8(R):
        for j in range(0, 8, 2):
            k(f"v_permlane32_swap_b32 {v(R+j)}, {v(R+j+1)}")
        for j in range(0, 8, 2):
            k(f"v_add_f32 {v(R+j)}, {v(R+j)}, {v(R+j+1)}")
        k(f"v_permlane16_swap_b32 {v(R)}, {v(R+2)}\nv_permlane16_swap_b32 {v(R+4)}, {v(R+6)}")
        k(f"v_add_f32 {v(R)}, {v(R)}, {v(R+2)}\nv_add_f32 {v(R+4)}, {v(R+4)}, {v(R+6)}")

    def split_publish(R, addr, soff):
        k(f"v_cvt_pk_bf16_f32 {v(R+1)}, {v(R)}, {v(R)}\nv_and_b32 {v(R+1)}, 0xffff0000, {v(R+1)}\nv_sub_f32 {v(R+1)}, {v(R)}, {v(R+1)}")
        k(f"v_cvt_pk_bf16_f32 {v(R)}, {v(R)}, {v(R+1)}\nv_mov_b32 {v(R+1)}, s{sTAG}")
        k(f"buffer_store_dwordx2 {v(R,2)}, {v(addr)}, {s(rWS,4)}, s{soff} offen sc1", "cspub")

    k(f"s_mov_b32 s{t0}, 0x3f803f80")
    for j in range(8):
        k(f"v_mov_b32 {v(CA+j)}, 0")
    k(f"v_bfe_u32 {v(EL)}, {v(L)}, 4, 1\nv_lshl_add_u32 {v(EL)}, {v(EL)}, 1, {v(HF)}")
    k.wait(vm="lb")
    for j in range(4):
        for i in range(8):
            k(f"v_dot2c_f32_bf16 {v(CA+i)}, s{t0}, {v(SS+4*i+j)}")
    fold8(CA)
    for r in (8, 4, 2, 1):
        k(f"v_add_f32_dpp {v(CA)}, {v(CA)}, {v(CA)} row_ror:{r} row_mask:0xf bank_mask:0xf")
        k(f"v_add_f32_dpp {v(CA+4)}, {v(CA+4)}, {v(CA+4)} row_ror:{r} row_mask:0xf bank_mask:0xf")
    k(f"v_and_b32 {v(EL+1)}, 1, {v(L)}\nv_cmp_eq_u32 vcc, 1, {v(EL+1)}\nv_lshl_add_u32 {v(EL+1)}, {v(EL+1)}, 2, {v(EL)}\nv_lshlrev_b32 {v(EL+1)}, 3, {v(EL+1)}")
    k(f"v_cndmask_b32 {v(CA)}, {v(CA)}, {v(CA+4)}, vcc")
    k(f"s_lshl_b32 s{t2}, s{sQ}, 8\ns_lshl_b32 s3, s{sW}, 6\ns_add_u32 s{t2}, s{t2}, s3\ns_add_u32 s{t2}, s{t2}, {CS + 1792*8}")
    split_publish(CA, EL + 1, t2)
    stamp("Lbsum")
    run(stage_ops(0, False))
    k(f"s_mov_b32 s{t2}, 0x00003f80\ns_mov_b32 s{t3}, 0x3f800000")
    for j in range(8):
        k(f"v_mov_b32 {v(CA+j)}, 0")
    for i in range(16):
        k.wait(vm=f"lw{i}")
        for j in range(4):
            k(f"v_dot2c_f32_bf16 {v(CA+2*j)}, s{t2}, {v(ACC+4*i+j)}\nv_dot2c_f32_bf16 {v(CA+2*j+1)}, s{t3}, {v(ACC+4*i+j)}")
    for j in range(8):
        k(f"v_add_f32_dpp {v(CA+j)}, {v(CA+j)}, {v(CA+j)} row_ror:8 row_mask:0xf bank_mask:0xf")
    fold8(CA)
    k(f"v_and_b32 {v(EL+1)}, 7, {v(L)}\nv_lshl_add_u32 {v(EL+1)}, {v(EL+1)}, 3, {v(EL)}\nv_lshlrev_b32 {v(EL+1)}, 2, {v(EL+1)}")
    k(f"s_lshl_b32 s3, s{sW}, 8\ns_add_u32 s3, s3, 16384\nv_add_u32 {v(EL+1)}, s3, {v(EL+1)}")
    k(f"ds_write2_b32 {v(EL+1)}, {v(CA)}, {v(CA+4)} offset0:0 offset1:4", "cw")
    k(f"v_lshlrev_b32 {v(EL+1)}, 2, {v(L)}\nv_add_u32 {v(EL+1)}, 16384, {v(EL+1)}")
    k.wait(lg="all")
    k("s_barrier")
    for j in range(4):
        k(f"ds_read_b32 {v(CA+j)}, {v(EL+1)} offset:{j*256}", "cr")
    k(f"s_min_u32 s{t2}, s{sQ}, 27\ns_lshl_b32 s{t2}, s{t2}, 9\ns_add_u32 s{t2}, s{t2}, {CS}\nv_lshlrev_b32 {v(EL+2)}, 3, {v(L)}")
    k.wait(lg="all")
    k(f"v_add_f32 {v(CA)}, {v(CA)}, {v(CA+1)}\nv_add_f32 {v(CA+2)}, {v(CA+2)}, {v(CA+3)}\nv_add_f32 {v(CA)}, {v(CA)}, {v(CA+2)}")
    split_publish(CA, EL + 2, t2)
    stamp("Lwsum")
    run(stage_ops(1, False))
    if pre3:
        weave(stage_ops(2, False), late_setup(False))
    gemm1(False, "L")
    stamp("Lgemm")
    gran_check(False)
    run(scan_ops())
    bar(lg="all")()
    weave(r2 + ring_ops(3), chain_ops() + stage_reads(0) + stage_reads(1) + [W(lg="all")])
    stamp("Lepub")
    weave(ring_ops(4), stage_reads(2) + [W(lg="all")])
    weave(ring_ops(5) + ring_ops(6), coef_ops() + (stage_reads(3) if nres == 5 else []))
    run(e_loads()); run(poll1_ops())
    finish(False)
    k.wait(lg="all")
    snap_light = k.snapshot()

    k("L_join:")
    k.merge(snap_join, snap_light, tuple(f"rb{b}" for b in range(nres, nres + 4)) + ("hst",) + (("poll2",) if p2_mid else ()) + tuple(f"ab{b}_{j}" for b in range(dist) for j in range(4)))
    stamp("stored")

    def b_reads(n):
        b, j = divmod(n, 4)
        hi = RING[b] >= HIGH
        off = RING[b] - (HIGH if hi else 0)
        if b < nres:
            return []
        if b < 7:
            return [(f"ds_read_b64_tr_b16 {a(FR+8*j+4*c+2*rd,2)}, {v(W2R+2*hi+c)} offset:{off + j*2048 + rd*1024}", f"f{n}")
                    for c in range(2) for rd in range(2)]
        return [(f"ds_read_b128 {a(FR+8*j+4*c,4)}, {v(CR+4*hi+j)} offset:{off + c*4096}", f"f{n}") for c in range(2)]

    if p2_at == 1 and not p2_mid:
        run(poll2_ops())

    def addend_ops():
        o = [(f"s_lshr_b32 s3, s{sG}, 3\ns_lshl_b32 s3, s3, 1\ns_lshr_b32 s{t3}, s{sW}, 1\ns_add_u32 s3, s3, s{t3}\ns_lshl_b32 s3, s3, 7\ns_add_u32 s3, s3, {SCR}\n"
              f"v_lshlrev_b32 {v(TM+1)}, 6, {v(HF)}\nv_add_u32 {v(TM+1)}, s3, {v(TM+1)}", None)]
        for q in range(4):
            o += ops_of(f"ds_read_b128 {v(T+4*q,4)}, {v(TM+1)} offset:{q*16}\nds_read_b128 {v(T+16+4*q,4)}, {v(TM+1)} offset:{512+q*16}", "ast")
        P = TM + 2
        o.append((f"s_lshr_b32 s3, s{sW12}, 1\ns_add_u32 s3, s3, {XSL}\nv_bfe_u32 {v(P)}, {v(L)}, 2, 2\nv_lshl_add_u32 {v(P)}, {v(HF)}, 4, {v(P)}\nv_lshlrev_b32 {v(P)}, 6, {v(P)}\n"
                  f"v_bfe_u32 {v(P+1)}, {v(L)}, 4, 1\nv_lshl_add_u32 {v(P)}, {v(P+1)}, 5, {v(P)}\nv_and_b32 {v(P+1)}, 3, {v(L)}\nv_lshl_add_u32 {v(P)}, {v(P+1)}, 3, {v(P)}\nv_add_u32 {v(P)}, s3, {v(P)}", None))
        o.append(W(vm="xs"))
        for q in range(4):
            o += ops_of(f"ds_read_b64_tr_b16 {v(XS+16+2*q,2)}, {v(P)} offset:{q*256}", "ast")
        o.append(W(lg="ast"))
        for r in range(16):
            unpack = f"v_and_b32 {v(XS+r)}, 0xffff0000, {v(XS+16+r//2)}" if r & 1 else f"v_lshlrev_b32 {v(XS+r)}, 16, {v(XS+16+r//2)}"
            o += ops_of(f"{unpack}\nv_sub_f32 {v(T+16+r)}, {v(XS+r)}, {v(T+16+r)}\n"
                        f"v_mul_f32 {v(T+16+r)}, {v(T+16+r)}, {v(T+r)}\nv_fmac_f32 {v(XS+r)}, {v(T+16+r)}, {v(DSK)}")
        return o

    a_next = dist
    for b in range(11):
        nxt = []
        if b == f3_at:
            flag_publish(FLC, "hst")
            stamp("flag")
        if b == p2_at:
            poll_check("poll2")
            stamp("poll2")
        if b == p3_at:
            poll_check("poll3")
            stamp("poll3")
        while a_next <= min(b + dist, 10) and b >= (0 if a_next < 3 else p2_at if a_next < 7 else p3_at):
            nxt += a_ops(a_next); a_next += 1
        if b == p2_at - 2 and not p2_mid:
            nxt += poll2_ops()
        if b == p3_at - 2:
            nxt += poll3_ops()
        if nres == 5:
            if b in (6, 7):
                nxt = ring_ops(b + 3) + nxt
        elif 7 <= b + dist < (9 if "rb" in ablate else 11):
            nxt += ring_ops(b + dist)
        if b == xs_at:
            nxt += xs_ops()
        val = spread(addend_ops(), 32)[16 * (b - xs_at - 2):16 * (b - xs_at - 1)] if 2 <= b - xs_at <= 3 else [[]] * 16
        mm = spread_mem(nxt, 16) if nxt else [[]] * 16
        if b == 10 and tail_major:
            break
        for j in range(4):
            n = 4 * b + j
            rd = [[]] * 4
            if 4 * nres <= n + 1 < 44:
                if j == 3 and not ("rb" in ablate and b >= 8):
                    k.wait(vm=f"rb{b+1}")
                rd = spread(b_reads(n + 1), 4)
            k.wait(vm=f"ab{b}_{j}", lg=f"f{n}" if b >= nres else None)
            if j == 0 and b in (0, 8):
                stamp(f"blk{b}")
            for m in range(2):
                for c in range(2):
                    bop = (RESB[b] if b < nres else FR) + 8 * j + 4 * c
                    mfma(ACC + 32 * m + 16 * c, a(32 * (b % NA) + 8 * j + 4 * m, 4), a(bop, 4), "0" if n == 0 else None)
                    run(rd[2 * m + c]); run(mm[4 * j + 2 * m + c]); run(val[4 * j + 2 * m + c])
            probe(f"b{b}_{j}")
    GA = TM
    pre = ops_of(f"v_add_u32 {v(GA)}, s{sW13}, {v(L16)}")
    for u in (1, 2, 3):
        pre += ops_of(f"v_xor_b32 {v(GA+u)}, {u << 13}, {v(GA)}")
    pre.append((f"s_lshl_b32 s{t2}, s{sM}, 1\ns_lshr_b32 s3, s{sW}, 1\ns_add_u32 s{t2}, s{t2}, s3\ns_lshl_b32 s{t2}, s{t2}, 16\n"
                f"s_lshl_b32 s3, s{sN}, 8\ns_add_u32 s{t2}, s{t2}, s3\ns_and_b32 s3, s{sW}, 1\ns_lshl_b32 s3, s3, 7\ns_add_u32 s{t2}, s{t2}, s3", None))
    pre += ops_of(f"v_lshlrev_b32 {v(TM+4)}, 15, {v(HF)}\nv_lshl_add_u32 {v(TM+4)}, {v(LR)}, 2, {v(TM+4)}")
    wr = lambda u: [(f"ds_write_b128 {v(GA)}, {v(ACC+16*u+4*q,4)} offset:{(u>>1)*SLOT + (u&1)*4096 + q*1024}", "fw") for q in range(4)]
    if tail_major:
        for j in (1, 2, 3):
            run(b_reads(40 + j))
        run(pre)
        for u in (3, 2, 1, 0):
            for j in range(4):
                k.wait(vm=f"ab10_{j}", lg=f"f{40+j}")
                mfma(ACC + 16 * u, a(32 * (10 % NA) + 8 * j + 4 * (u >> 1), 4), a(FR + 8 * j + 4 * (u & 1), 4))
                late = {(2, 3): wr(3)[:1], (1, 0): wr(3)[1:2], (1, 1): wr(3)[2:3], (1, 2): wr(3)[3:], (1, 3): wr(2)[:1], (0, 0): wr(2)[1:2], (0, 1): wr(2)[2:3], (0, 2): wr(2)[3:],
                        (0, 3): wr(1)}
                run(late.get((u, j), []))
        stamp("p2done")
    else:
        stamp("p2done")
        run(pre)
        for u in (1, 2, 3):
            run(wr(u))
    k(f"s_mov_b32 s{t0}, 0x3f317218")
    k.wait(lg="all")
    k("s_barrier")
    for q in range(4):
        for u in (1, 2, 3):
            k(f"ds_read_b128 {v(ACC+16*u+4*q,4)}, {v(GA+u)} offset:{(u>>1)*SLOT + (u&1)*4096 + q*1024}", f"fr{q}")
    for q in range(4):
        k.wait(lg=f"fr{q}")
        for i in (0, 2):
            r = 4 * q + i
            k(f"v_pk_add_f32 {v(ACC+r,2)}, {v(ACC+r,2)}, {v(ACC+16+r,2)}\nv_pk_add_f32 {v(ACC+32+r,2)}, {v(ACC+32+r,2)}, {v(ACC+48+r,2)}")
        for i in (0, 2):
            r = 4 * q + i
            k(f"v_pk_add_f32 {v(ACC+r,2)}, {v(ACC+r,2)}, {v(ACC+32+r,2)}\nv_pk_fma_f32 {v(ACC+r,2)}, {v(ACC+r,2)}, {s(t0,2)}, {v(XS+r,2)} op_sel_hi:[1,0,1]")
        for i in range(4):
            r = 4 * q + i
            k(f"buffer_store_dword {v(ACC+r)}, {v(TM+4)}, {s(rOUT,4)}, s{t2} offen offset:{(r&1)*2048} {out_flags}", "out")
            if r & 1:
                k(f"s_add_u32 s{t2}, s{t2}, 4096")
    k(f"s_cmp_lg_u32 s{sC}, 15\ns_cbranch_scc1 L_fin\ns_or_b32 s3, s{sG}, s{sW}\ns_cmp_lg_u32 s3, 0\ns_cbranch_scc1 L_fin")
    k(f"v_mov_b32 {v(TM+5)}, s{sTAG}\ns_mov_b64 exec, 1")
    k(f"buffer_store_dword {v(TM+5)}, off, {s(rWS,4)}, 0 sc1\ns_mov_b64 exec, -1")
    k("L_fin:")
    if diag:
        k("s_waitcnt vmcnt(0)")
        stamp("end")
        for i in range(len(seen)):
            k(f"v_writelane_b32 {v(DG)}, s{FINE[i]}, {16+i}")
        k(f"s_lshl_b32 s3, s2, 2\ns_add_u32 s3, s3, s{sW}\ns_lshl_b32 s3, s3, 8\ns_add_u32 s3, s3, {DIAG}\nv_lshlrev_b32 {v(TM)}, 2, {v(L)}")
        k(f"buffer_store_dword {v(DG)}, {v(TM)}, {s(rWS,4)}, s3 offen")
        if amplify:
            k(f"s_cmp_lg_u32 s2, {amp_wg}\ns_cbranch_scc1 L_end")
            k(f"v_readlane_b32 s12, {v(DG)}, 0\nv_readlane_b32 s13, {v(DG)}, {stamps.index(amplify)}\nv_readlane_b32 s14, {v(DG)}, {len(stamps)-1}\ns_nop 3")
            k("s_sub_u32 s13, s13, s12\ns_min_u32 s13, s13, 5000\ns_lshl_b32 s13, s13, 2")
            k("L_amp:\ns_memrealtime s[34:35]\ns_waitcnt lgkmcnt(0)\ns_sub_u32 s3, s34, s14\ns_cmp_lt_u32 s3, s13\ns_cbranch_scc1 L_amp")
    k("L_end:")
    k("s_endpgm")
    for text in cold:
        k(text)

    body, nops = pad(k.lines)
    hdr = open("parallel_sum__ssm_conv_s5__dense_activation_mish__prompt.s.ref").read().split("; Override")[0]
    text = hdr + "; @launch grid=(256,1,1) block=(256,1,1) lds=163840\n"
    text += f'.amdgcn_target "amdgcn-amd-amdhsa--gfx950"\n.text\n.globl {KNAME}\n.p2align 8\n.type {KNAME},@function\n{KNAME}:\n'
    text += "\n".join(body) + "\n"
    text += f""".section .rodata,"a"
.p2align 6
.amdhsa_kernel {KNAME}
  .amdhsa_next_free_vgpr 512
  .amdhsa_next_free_sgpr 102
  .amdhsa_accum_offset 256
  .amdhsa_group_segment_fixed_size 0
  .amdhsa_kernarg_size 128
  .amdhsa_user_sgpr_count 2
  .amdhsa_user_sgpr_kernarg_segment_ptr 1
  .amdhsa_system_sgpr_workgroup_id_x 1
.end_amdhsa_kernel
"""
    return text, dict(nops=nops, vgprs=V.next, stamps=stamps, seen=seen, lines=len(body), regs=V.names)


if __name__ == "__main__":
    import json
    kw = json.loads(sys.argv[2]) if len(sys.argv) > 2 else {}
    text, info = gen(**kw)
    open(sys.argv[1], "w").write(text)
    print({q: info[q] for q in ("nops", "vgprs", "lines")})
```

```python
import sys
from emit import K, Alloc, rng, pad

KNAME = "parallel_sum__ssm_conv_s5__dense_activation_mish__prompt_kernel"
EPOCH, STATS, CS, EG, FLA, FLH, AF = 0, 0x10000, 0x30000, 0x40000, 0x80000, 0xC0000, 0x100000
DIAG = 200 << 20
MT = 176 * 1024
SLOT, BA = 32768, 98304
SCR = 65536
SCR_EX, SCR_CX, SCR_HT, SCR_XS = SCR + 1024, SCR + 4096, SCR + 8192, SCR + 24576
RING = {0: 0, 1: SLOT, 2: 0, 3: SLOT, 4: BA, 5: BA + SLOT, 6: 0, 7: SLOT, 8: BA, 9: BA + SLOT, 10: 0}
RESB = {0: 160, 1: 192, 2: 224, 3: 128, 4: 96}
FR = 128
LITE = 3
LOG2E = 0x3fb8aa3b
SPIN = 1 << 16
TRANS = ("v_exp_f32", "v_rcp_f32", "v_sin_f32", "v_cos_f32")


def cost(op):
    if callable(op):
        return 3
    c = 0.0
    for l in op[0].split("\n"):
        mn = l.split()[0]
        c += 8.3 if mn in TRANS else 13 if mn.startswith("buffer_") else 1 if mn.startswith("s_") else 4.3
    return c


def spread(ops, n):
    total = sum(map(cost, ops)) or 1
    out = [[] for _ in range(n)]
    acc = 0.0
    for op in ops:
        out[min(n - 1, int(acc / total * n + 1e-9))].append(op)
        acc += cost(op)
    return out


def is_mem(op):
    return not callable(op) and op[1] is not None


def spread_mem(ops, n):
    groups, cur = [], []
    for op in ops:
        cur.append(op)
        if is_mem(op):
            groups.append(cur); cur = []
    out = [[] for _ in range(n)]
    for i, g in enumerate(groups):
        out[i * n // len(groups)] += g
    out[-1] += cur
    return out


def gen(diag=False, fine=(), amplify=None, amp_wg=0, far_at=1, gran_at=6, budget=33, f12_at=20, e_after=0, f3_at=1, f3_step=2, p3_issue=4, p3_at=5,
        xs_at=4, b_at=(6, 7), n_mish=1, out_flags="", n_before=40):
    k = K()
    V = Alloc("v", 1, 256)
    v = lambda r, n=1: rng("v", r, n)
    a = lambda r, n=1: rng("a", r, n)
    s = lambda r, n=1: rng("s", r, n)

    sC, sG, sW, sF, sM, sN, sTAG, sQ = 4, 5, 6, 7, 8, 9, 10, 11
    t0, t1, t2, t3 = 12, 13, 14, 15
    pX, pLR, pLI, pBR, pBI, pCR, pCI, pDT, pDS, pW1, pB1, pW2, pOUT, pWS = 16, 18, 20, 22, 24, 26, 28, 30, 32, 36, 38, 40, 42, 46
    rX, rW1, rB, rE, rW2, rCR, rCI, rWS, rOUT = 48, 52, 56, 60, 64, 68, 72, 76, 80
    sXB, sBB, sWB, sA0, sP0, sP1, sH, sCNT, sAF, sW12, sW13, sAE, sBE, sGE = range(84, 98)
    sHI = 98
    sD = 34

    L, LR, HF, L16, TAU = V("l"), V("lr"), V("hf"), V("l16"), V("tau")
    XD, CD, WD, W2D = V("xd", 4), V("cd", 4), V("wd", 4), V("w2d", 4)
    XR, WR, BQ, CR, W2R = V("xr", 4), V("wr", 4), V("bq", 4), V("cr", 8), V("w2r", 4)
    LAR, LAI, NLAI, L16R, L16I, NL16I, PWR, PWI, L2R, L2I, SCRR, SCI, CFR, NCFR, NCFI = [V(x) for x in
        "lar lai nlai l16r l16i nl16i pwr pwi l2r l2i scr sci cfr ncfr ncfi".split()]
    PR, PI, MF = V("pr"), V("pi"), V("mf")
    ACC, SS, T = V("acc", 64, 4), V("ss", 32, 4), V("t", 32, 4)
    XA, XB, WE = V("xa", 4, 4), V("xb", 4, 4), V("we", 12, 4)
    MI, TM = V("mish", 16, 4), V("tmp", 20, 4)
    C1, RS, DSK, BI, DG = V("c1", 1, 2), V("rs"), V("dsk"), V("bias", 2), V("diag")
    RSV, EK, XS, PL = MI, TM, SS, MI
    EA, EB, EX0, EX1, E0 = XD, XD + 1, XD + 2, XD + 3, TM
    HA, HB, XW, XQ = WD, WD + 1, WD + 2, WD + 3
    PA, PV = BI, BI + 1
    GS, GA = TM, TM + 16
    SR = TM + 4

    stamps, seen = [], []
    FINE = (26, 28, 30, 32, 36, 38, 40, 42)

    def probe(key):
        if key in fine and key not in seen:
            k(f"s_memtime s[{FINE[len(seen)]}:{FINE[len(seen)]+1}]")
            seen.append(key)

    def stamp(name):
        probe(name)
        if diag and ((not fine and diag != "se") or name == "end"):
            stamps.append(name)
            k(f"s_memrealtime s[{sD}:{sD+1}]\ns_memtime s[44:45]\ns_waitcnt lgkmcnt(0)")
            k.lg_done = len(k.lg)
            k(f"v_writelane_b32 {v(DG)}, s{sD}, {len(stamps)-1}\nv_writelane_b32 {v(DG)}, s44, {len(stamps)+31}")

    def note(text):
        for l in text.split("\n"):
            k("; " + l)

    def srd(d, p, nbytes):
        return f"s_mov_b32 s{d}, s{p}\ns_mov_b32 s{d+1}, s{p+1}\ns_mov_b32 s{d+2}, {nbytes:#x}\ns_mov_b32 s{d+3}, 0x20000"

    def mfma(d, x, y, c=None):
        k(f"v_mfma_f32_32x32x16_bf16 {v(d,16)}, {x}, {y}, {v(d,16) if c is None else c}")

    def run(ops):
        for op in ops:
            if callable(op):
                op()
            else:
                k(*op)

    def ops_of(text, tag=None):
        return [(l, tag) for l in text.split("\n")]

    def weave(mem, val):
        n = sum(map(is_mem, mem))
        if not n:
            return run(mem + val)
        for m, c in zip(spread_mem(mem, n), spread(val, n)):
            run(m); run(c)

    W = lambda **kw: (lambda: k.wait(**kw))

    def bar(**kw):
        k.wait(**kw)
        k("s_barrier")

    cold = []
    def spin_check(name, tag, mismatch, reload):
        again, ok = k.label(name + "_again"), k.label(name + "_ok")
        k.wait(vm=tag)
        k(mismatch)
        k(f"s_mov_b32 s{sCNT}, 0\ns_nop 0\ns_cbranch_vccnz {again}")
        k(ok + ":")
        loads = "\n".join(op[0] for op in reload)
        cold.append(f"{again}:\n{loads}\ns_waitcnt vmcnt(0)\n{mismatch}\ns_add_u32 s{sCNT}, s{sCNT}, 1\ns_cmp_gt_u32 s{sCNT}, {SPIN}\n"
                    f"s_cbranch_scc1 {ok}\ns_cbranch_vccnz {again}\ns_branch {ok}")

    k("s_cmp_ge_u32 s2, 256\ns_cbranch_scc1 L_end")
    k("s_load_dwordx16 s[16:31], s[0:1], 0\ns_load_dwordx16 s[32:47], s[0:1], 64")
    if diag:
        k("s_memrealtime s[12:13]\ns_memtime s[10:11]")
    A_, B_, C_, D_ = TM, TM + 1, TM + 2, TM + 3
    k(f"v_and_b32 {v(L)}, 63, v0\nv_lshrrev_b32 {v(A_)}, 6, v0\nv_and_b32 {v(LR)}, 31, v0")
    k(f"v_readfirstlane_b32 s{sW}, {v(A_)}")
    k(f"v_lshrrev_b32 {v(HF)}, 5, {v(L)}\nv_lshlrev_b32 {v(L16)}, 4, {v(L)}")
    k("s_and_b32 s14, s2, 7\ns_lshr_b32 s15, s2, 3")
    k(f"s_getpc_b64 s[96:97]\nL_pc:\ns_sub_u32 s96, s96, L_pc-{KNAME}\ns_subb_u32 s97, s97, 0")
    k(f"s_lshl_b32 s3, s{sW}, 5\ns_add_u32 s3, s3, s15\ns_lshl_b32 s3, s3, 8\nv_lshl_add_u32 {v(TM+19)}, {v(L)}, 2, s3\nv_min_u32 {v(TM+19)}, L_end-{KNAME}, {v(TM+19)}")
    k(f"global_load_dword a255, {v(TM+19)}, s[96:97]", "code")
    k(f"s_lshr_b32 s3, s14, 2\ns_lshl_b32 s3, s3, 3\ns_and_b32 s{sC}, s15, 7\ns_or_b32 s{sC}, s{sC}, s3")
    k(f"s_and_b32 s3, s14, 3\ns_lshl_b32 s3, s3, 2\ns_lshr_b32 s{sG}, s15, 3\ns_or_b32 s{sG}, s{sG}, s3")
    k(f"s_cmp_gt_u32 s{sG}, {LITE}\ns_subb_u32 s{sF}, s{sG}, 0\ns_cmp_gt_u32 s{sG}, {LITE + 8}\ns_subb_u32 s{sF}, s{sF}, 0")
    k(f"s_lshl_b32 s{sW12}, s{sW}, 12\ns_lshl_b32 s{sW13}, s{sW}, 13")
    k(f"v_lshrrev_b32 {v(A_)}, 3, {v(L)}\nv_and_b32 {v(B_)}, 7, {v(L)}\nv_lshrrev_b32 {v(C_)}, 4, {v(L)}")
    k(f"v_xor_b32 {v(B_)}, {v(B_)}, {v(C_)}\nv_lshlrev_b32 {v(B_)}, 4, {v(B_)}")
    k(f"v_and_b32 {v(C_)}, 3, {v(A_)}\nv_lshl_add_u32 {v(C_)}, {v(HF)}, 4, {v(C_)}\nv_lshl_add_u32 {v(XD)}, {v(C_)}, 10, {v(B_)}")
    k(f"v_xor_b32 {v(XD+1)}, 64, {v(XD)}\nv_add_u32 {v(XD+2)}, 6144, {v(XD)}\nv_add_u32 {v(XD+3)}, 9216, {v(XD+1)}\nv_add_u32 {v(XD+1)}, 3072, {v(XD+1)}")
    k(f"v_lshl_add_u32 {v(CD)}, {v(A_)}, 10, {v(B_)}")
    k(f"v_xor_b32 {v(CD+1)}, 64, {v(CD)}\nv_add_u32 {v(CD+2)}, {2*7168}, {v(CD)}\nv_add_u32 {v(CD+3)}, {3*7168}, {v(CD+1)}\nv_add_u32 {v(CD+1)}, 7168, {v(CD+1)}")
    k(f"v_lshrrev_b32 {v(C_)}, 4, {v(L)}\nv_and_b32 {v(D_)}, 15, {v(L)}\nv_lshlrev_b32 {v(B_)}, 2, {v(C_)}")
    k(f"v_xor_b32 {v(D_)}, {v(D_)}, {v(B_)}\nv_lshlrev_b32 {v(D_)}, 4, {v(D_)}\nv_mul_u32_u24 {v(C_)}, 3584, {v(C_)}\nv_add_u32 {v(WD)}, {v(C_)}, {v(D_)}")
    for i in (1, 2, 3):
        k(f"v_add_u32 {v(WD+i)}, {i*13312}, {v(WD)}")
    k(f"v_lshlrev_b32 {v(A_)}, 10, {v(HF)}\nv_lshl_add_u32 {v(A_)}, {v(LR)}, 4, {v(A_)}")
    k(f"s_lshl_b32 s{sXB}, s{sC}, 17\ns_lshl_b32 s3, s{sW}, 15\ns_add_u32 s{sXB}, s{sXB}, s3")
    k(f"s_and_b32 s3, s{sW}, 1\ns_lshl_b32 s3, s3, 14\ns_lshl_b32 s{sBB}, s{sG}, 15\ns_add_u32 s{sBB}, s{sBB}, s3")
    k(f"s_mul_i32 s{sWB}, s{sW}, {16*3584}\ns_lshl_b32 s3, s{sF}, 8\ns_add_u32 s{sWB}, s{sWB}, s3")
    k(f"s_lshl_b32 s3, s{sC}, 4\ns_add_u32 s3, s3, s{sG}\ns_lshl_b32 s3, s3, 2\ns_add_u32 s3, s3, s{sW}\ns_lshl_b32 s{t2}, s3, 11")
    k(f"s_lshl_b32 s3, s{sG}, 5\nv_add_lshl_u32 {v(B_)}, {v(LR)}, s3, 1")
    k(f"s_lshl_b32 s3, s{sF}, 7\nv_add_lshl_u32 {v(C_)}, {v(L)}, s3, 1\nv_min_u32 {v(C_)}, 3454, {v(C_)}")
    k(f"s_and_b32 s{sN}, s{sG}, 7\ns_lshl_b32 s3, s{sN}, 1\ns_and_b32 s{t3}, s{sW}, 1\ns_or_b32 s3, s3, s{t3}\ns_lshl_b32 s3, s3, 5\nv_add_lshl_u32 {v(D_)}, {v(LR)}, s3, 1")
    k("s_waitcnt lgkmcnt(0)")
    if diag:
        k(f"v_writelane_b32 {v(DG)}, s12, 0\nv_writelane_b32 {v(DG)}, s10, 32"); stamps.append("start")
    k(srd(rX, pX, 2 << 20))
    k(f"global_load_ushort {v(PL)}, {v(B_)}, {s(pLR,2)}\nglobal_load_ushort {v(PL+1)}, {v(B_)}, {s(pLI,2)}\nglobal_load_ushort {v(PL+2)}, {v(B_)}, {s(pDT,2)}", "par")
    k(f"buffer_load_dwordx4 {v(SR,4)}, {v(A_)}, {s(rX,4)}, s{t2} offen\nbuffer_load_dwordx4 {v(SR+4,4)}, {v(A_)}, {s(rX,4)}, s{t2} offen offset:512", "srow")
    k(f"s_load_dword s{sTAG}, s[{pWS}:{pWS+1}], {EPOCH}")
    k(srd(rW1, pW1, 512 * 3584))
    k(f"s_cmp_lt_u32 s{sW}, 2\ns_cselect_b32 s{rB}, s{pBR}, s{pBI}\ns_cselect_b32 s{rB+1}, s{pBR+1}, s{pBI+1}\ns_mov_b32 s{rB+2}, 0x80000\ns_mov_b32 s{rB+3}, 0x20000")

    slot_of = lambda stg: ((stg + 1) % 3) * SLOT

    def stage_ops(stg, full):
        tag = f"st{stg}"
        ops = [(f"s_add_u32 s{t0}, s{sXB}, {stg*128}\ns_add_u32 m0, s{sW12}, {slot_of(stg)}", None)]
        ops += [(f"buffer_load_dwordx4 {v(XD+i)}, {s(rX,4)}, s{t0} offen offset:{i*1024} lds", tag) for i in range(4)]
        if full:
            ops += [(f"s_add_u32 s{t0}, s{sWB}, {stg*64*3584}\ns_add_u32 m0, s{sW12}, {slot_of(stg) + 16384}", None)]
            ops += [(f"buffer_load_dwordx4 {v(WD+i)}, {s(rW1,4)}, s{t0} offen offset:{i*1024} lds", tag) for i in range(4)]
        else:
            ops += b_ops([stg], tag)
        return ops

    def b_ops(kbs, tag):
        ops = []
        for kb in kbs:
            ops += [(f"s_add_u32 s{t0}, s{sBB}, {kb*128}\ns_lshr_b32 s3, s{sW12}, 1\ns_add_u32 m0, s3, {BA + kb*8192}", None)]
            ops += [(f"buffer_load_dwordx4 {v(CD+i)}, {s(rB,4)}, s{t0} offen offset:{i*1024} lds", tag) for i in range(2)]
        return ops

    def ring_ops(b):
        if b < 7:
            head, r, D = f"s_add_u32 s{t0}, s{sBE}, {b*65536}", rW2, W2D
        else:
            head = (f"s_lshl_b32 s{t0}, s{sN}, 1\ns_and_b32 s3, s{sW}, 1\ns_or_b32 s{t0}, s{t0}, s3\ns_lshl_b32 s{t0}, s{t0}, 15\n"
                    f"s_lshl_b32 s3, s{sW}, 8\ns_add_u32 s{t0}, s{t0}, s3" + (f"\ns_add_u32 s{t0}, s{t0}, 128" if (b - 7) & 1 else ""))
            r, D = (rCI if b >= 9 else rCR), CD
        ops = [(head + f"\ns_add_u32 m0, s{sW13}, {RING[b]}", None)]
        for i in range(8):
            if i == 4:
                ops.append((f"s_add_u32 m0, m0, 4096\ns_xor_b32 s{t0}, s{t0}, 32768", None))
            ops.append((f"buffer_load_dwordx4 {v(D+(i&3))}, {s(r,4)}, s{t0} offen offset:{(i&3)*1024} lds", f"rb{b}"))
        return ops

    def keep_reads(b):
        hi = RING[b] >= BA
        return [W(vm=f"rb{b}")] + [(f"ds_read_b64_tr_b16 {a(RESB[b]+8*j+4*c+2*rd,2)}, {v(W2R+2*hi+c)} offset:{RING[b] - hi*BA + j*2048 + rd*1024}", f"sr{b}")
                                   for j in range(4) for c in range(2) for rd in range(2)]

    def a_ops(b):
        head = f"s_add_u32 s3, s{sAE}, {b*4096}" if b < 7 else f"s_lshl_b32 s3, s{sW}, 14\ns_add_u32 s3, s3, {(112 + 4*(b-7))*1024}"
        ops = [(head + f"\ns_add_u32 s{t1}, s{sP0}, s3\ns_add_u32 s{t2}, s{sP1}, s3", None)]
        for j in range(4):
            for m in range(2):
                ops.append((f"buffer_load_dwordx4 {a(32*(b%3)+8*j+4*m,4)}, {v(L16)}, {s(rWS,4)}, s{t2 if m else t1} offen offset:{j*1024} sc1", f"ab{b}_{j}"))
        return ops

    def far_ops():
        P, Q = TM + 18, TM + 19
        return [(f"s_lshl_b32 s{t2}, s2, 2\ns_add_u32 s{t2}, s{t2}, s{sW}\ns_mul_i32 s3, s{t2}, {14*128}\nv_lshrrev_b32 {v(P)}, 2, {v(L)}\nv_min_u32 {v(Q)}, 13, {v(P)}\nv_lshlrev_b32 {v(Q)}, 7, {v(Q)}\n"
                 f"buffer_load_dword a255, {v(Q)}, {s(rW2,4)}, s3 offen", "far"),
                (f"s_lshl_b32 s{t2}, s{t2}, 9\nv_and_b32 {v(P)}, 3, {v(P)}\nv_lshlrev_b32 {v(P)}, 7, {v(P)}\nbuffer_load_dword a255, {v(P)}, {s(rCR,4)}, s{t2} offen", "far"),
                (f"buffer_load_dword a255, {v(P)}, {s(rCI,4)}, s{t2} offen", "far")]

    def par_loads():
        k(f"global_load_ushort {v(BI)}, {v(C_)}, {s(pB1,2)}\nglobal_load_ushort {v(BI+1)}, {v(C_)}, {s(pB1,2)} offset:128", "par2")
        k(f"global_load_ushort {v(DSK)}, {v(D_)}, {s(pDS,2)}", "par2")

    def early_setup():
        o = [(srd(rWS, pWS, 1 << 28), None), (f"s_mov_b32 s{sHI}, 0\ns_mov_b32 s{sHI+1}, -1", None)]
        P0, P1, P2 = TM + 12, TM + 13, TM + 14
        e = lambda text: o.extend(ops_of(text))
        g = lambda text: o.append((text, None))
        e(f"v_bfe_u32 {v(P0)}, {v(LR)}, 1, 3\nv_xor_b32 {v(P0)}, {v(P0)}, {v(HF)}\nv_lshlrev_b32 {v(P0)}, 4, {v(P0)}\nv_lshl_add_u32 {v(P0)}, {v(LR)}, 7, {v(P0)}")
        e(f"v_add_u32 {v(XR)}, s{sW12}, {v(P0)}\nv_add_u32 {v(BQ)}, {BA}, {v(P0)}\nv_add_u32 {v(CR)}, s{sW13}, {v(P0)}")
        for j in (1, 2, 3):
            e(f"v_xor_b32 {v(XR+j)}, {j << 5}, {v(XR)}\nv_xor_b32 {v(BQ+j)}, {j << 5}, {v(BQ)}")
        e(f"v_bfe_u32 {v(P0)}, {v(L)}, 2, 2\nv_and_b32 {v(P1)}, 3, {v(L)}\nv_lshlrev_b32 {v(P1)}, 3, {v(P1)}\nv_bfe_u32 {v(P2)}, {v(L)}, 4, 1\nv_lshl_add_u32 {v(P1)}, {v(P2)}, 5, {v(P1)}")
        e(f"v_lshl_add_u32 {v(P2)}, {v(HF)}, 3, {v(P0)}\nv_lshl_add_u32 {v(P2)}, {v(P2)}, 8, {v(P1)}\nv_lshl_add_u32 {v(P2)}, {v(P0)}, 6, {v(P2)}\nv_add_u32 {v(WR)}, 16384, {v(P2)}")
        for t in (1, 2, 3):
            e(f"v_xor_b32 {v(WR+t)}, {t << 6}, {v(WR)}")
        e(f"v_lshrrev_b32 {v(P2)}, 1, {v(P0)}\nv_lshl_add_u32 {v(P1)}, {v(P2)}, 6, {v(P1)}\nv_lshl_add_u32 {v(P2)}, {v(HF)}, 2, {v(P0)}\nv_lshl_add_u32 {v(P2)}, {v(P2)}, 7, {v(P1)}\nv_add_u32 {v(W2R)}, s{sW13}, {v(P2)}")
        g(srd(rW2, pW2, 1792 * 1024)); g(srd(rCR, pCR, 1 << 19)); g(srd(rCI, pCI, 1 << 19)); g(srd(rOUT, pOUT, 4 << 20))
        g(f"s_lshl_b32 s3, s{sG}, 13\ns_add_u32 s{rE}, s{pWS}, s3\ns_addc_u32 s{rE+1}, s{pWS+1}, 0\ns_add_u32 s{rE}, s{rE}, {EG}\ns_addc_u32 s{rE+1}, s{rE+1}, 0\n"
          f"s_mov_b32 s{rE+2}, 8192\ns_mov_b32 s{rE+3}, 0x20000")
        g(f"s_lshr_b32 s3, s{sG}, 3\ns_lshl_b32 s{sM}, s{sC}, 1\ns_or_b32 s{sM}, s{sM}, s3")
        g(f"s_mul_i32 s{sAE}, s{sW}, {7*4096}\ns_mul_i32 s{sGE}, s{sW}, 7\ns_lshr_b32 s{sGE}, s{sGE}, 1\ns_lshl_b32 s3, s{sN}, 7\ns_lshl_b32 s{sBE}, s{sAE}, 4\ns_add_u32 s{sBE}, s{sBE}, s3")
        g(f"s_lshl_b32 s3, s{sC}, 2\ns_add_u32 s3, s3, s{sW}\ns_mul_i32 s{sAF}, s3, {MT}\ns_add_u32 s{sAF}, s{sAF}, {AF}")
        g(f"s_lshl_b32 s3, s{sM}, 1\ns_lshr_b32 s{sP0}, s{sW}, 1\ns_add_u32 s{sP0}, s3, s{sP0}\ns_xor_b32 s{sP1}, s{sP0}, 1\n"
          f"s_mul_i32 s{sP0}, s{sP0}, {MT}\ns_mul_i32 s{sP1}, s{sP1}, {MT}\ns_add_u32 s{sP0}, s{sP0}, {AF}\ns_add_u32 s{sP1}, s{sP1}, {AF}")
        return o

    def row_stats():
        o = []
        e = lambda text: o.extend(ops_of(text))
        S1, S2, U1, U2 = TM, TM + 1, TM + 2, TM + 3
        e(f"v_mov_b32 {v(S1)}, 0\nv_mov_b32 {v(S2)}, 0\ns_mov_b32 s{t3}, 0x3f803f80")
        o.append(W(vm="srow"))
        for i in range(8):
            e(f"v_dot2c_f32_bf16 {v(S1)}, s{t3}, {v(SR+i)}\nv_dot2c_f32_bf16 {v(S2)}, {v(SR+i)}, {v(SR+i)}")
        for r in (8, 4, 2, 1):
            e(f"v_add_f32_dpp {v(S1)}, {v(S1)}, {v(S1)} row_ror:{r} row_mask:0xf bank_mask:0xf\nv_add_f32_dpp {v(S2)}, {v(S2)}, {v(S2)} row_ror:{r} row_mask:0xf bank_mask:0xf")
        e(f"v_mov_b32 {v(U1)}, {v(S1)}\nv_mov_b32 {v(U2)}, {v(S2)}\nv_permlane16_swap_b32 {v(S1)}, {v(U1)}\nv_permlane16_swap_b32 {v(S2)}, {v(U2)}")
        e(f"v_add_f32 {v(S1)}, {v(S1)}, {v(U1)}\nv_add_f32 {v(S2)}, {v(S2)}, {v(U2)}\nv_mul_f32 {v(S1)}, 0x3b000000, {v(S1)}\nv_mul_f32 {v(S2)}, 0x3b000000, {v(S2)}")
        e(f"v_fma_f32 {v(S2)}, -{v(S1)}, {v(S1)}, {v(S2)}\nv_max_f32 {v(S2)}, 0, {v(S2)}")
        e(f"v_cvt_pk_bf16_f32 {v(S2)}, {v(S2)}, {v(S2)}\nv_and_b32 {v(S2)}, 0xffff0000, {v(S2)}\nv_add_f32 {v(S2)}, 0x3727c5ac, {v(S2)}")
        e(f"v_cvt_pk_bf16_f32 {v(S2)}, {v(S2)}, {v(S2)}\nv_and_b32 {v(S2)}, 0xffff0000, {v(S2)}\nv_sqrt_f32 {v(S2)}, {v(S2)}\nv_cvt_pk_bf16_f32 {v(SR)}, {v(S1)}, {v(S2)}")
        e(f"s_waitcnt lgkmcnt(0)\ns_mul_i32 s{sTAG}, s{sTAG}, 0x9e3779b1\ns_add_u32 s{sTAG}, s{sTAG}, 0x7f4a7c15")
        e(f"v_mov_b32 {v(SR+1)}, s{sTAG}\nv_lshlrev_b32 {v(U1)}, 3, {v(HF)}\ns_lshr_b32 s{t2}, s{t2}, 7\ns_add_u32 s{t2}, s{t2}, {STATS}")
        def publish():
            k("s_mov_b32 exec_lo, 1\ns_mov_b32 exec_hi, 1")
            k(f"buffer_store_dwordx2 {v(SR,2)}, {v(U1)}, {s(rWS,4)}, s{t2} offen sc1", "pub0")
            k("s_mov_b64 exec, -1")
            stamp("stats")
        return o + [publish]

    def late_setup():
        o = []
        e = lambda text: o.extend(ops_of(text))
        g = lambda text: o.append((text, None))
        P0, P1, P2 = TM + 12, TM + 13, TM + 14
        for j in (1, 2, 3):
            e(f"v_xor_b32 {v(CR+j)}, {j << 5}, {v(CR)}")
        for j in range(4):
            e(f"v_add_u32 {v(CR+4+j)}, {BA}, {v(CR+j)}")
        e(f"v_xor_b32 {v(W2R+1)}, 64, {v(W2R)}\nv_add_u32 {v(W2R+2)}, {BA}, {v(W2R)}\nv_add_u32 {v(W2R+3)}, {BA}, {v(W2R+1)}")
        e(f"v_lshrrev_b32 {v(P0)}, 3, {v(L)}\nv_and_b32 {v(P1)}, 7, {v(L)}\nv_bfe_u32 {v(P2)}, {v(L)}, 4, 1\nv_lshlrev_b32 {v(P2)}, 2, {v(P2)}")
        e(f"v_xor_b32 {v(P1)}, {v(P1)}, {v(P2)}\nv_lshlrev_b32 {v(P1)}, 4, {v(P1)}")
        g(f"s_and_b32 s3, s{sW}, 1\ns_lshl_b32 s3, s3, 6\nv_xor_b32 {v(P1)}, s3, {v(P1)}")
        e(f"v_lshl_add_u32 {v(W2D)}, {v(P0)}, 10, {v(P1)}")
        for i in (1, 2, 3):
            e(f"v_add_u32 {v(W2D+i)}, {i*7168}, {v(W2D)}")
        e(f"v_bfe_u32 {v(P0)}, {v(LR)}, 2, 1\nv_lshrrev_b32 {v(P1)}, 3, {v(LR)}\nv_and_b32 {v(P2)}, 3, {v(LR)}")
        e(f"v_lshl_add_u32 {v(P2)}, {v(P1)}, 2, {v(P2)}\nv_lshl_add_u32 {v(TAU)}, {v(P0)}, 4, {v(P2)}")
        for z in (XA + 2, XA + 3, XB + 2, XB + 3, WE + 2, WE + 3, WE + 6, WE + 7, WE + 10, WE + 11):
            e(f"v_mov_b32 {v(z)}, 0")
        LRE, LIM, DT, A2, BRV, X0, X1, X2 = range(PL, PL + 8)
        o.append(W(vm="par2"))
        e(f"v_lshlrev_b32 {v(LRE)}, 16, {v(LRE)}\nv_lshlrev_b32 {v(LIM)}, 16, {v(LIM)}\nv_lshlrev_b32 {v(DT)}, 16, {v(DT)}\nv_lshlrev_b32 {v(DSK)}, 16, {v(DSK)}")
        e(f"v_mul_f32 {v(DT)}, {LOG2E:#x}, {v(DT)}\nv_exp_f32 {v(DT)}, {v(DT)}\nv_cvt_pk_bf16_f32 {v(DT)}, {v(DT)}, {v(DT)}\nv_and_b32 {v(DT)}, 0xffff0000, {v(DT)}")
        e(f"v_mul_f32 {v(A2)}, {v(DT)}, {v(LRE)}\nv_mul_f32 {v(BRV)}, {v(DT)}, {v(LIM)}\nv_mul_f32 {v(A2)}, {LOG2E:#x}, {v(A2)}\nv_mul_f32 {v(BRV)}, 0.15915494, {v(BRV)}")
        def cpow(n, dr, di):
            e(f"v_mul_f32 {v(X0)}, {n}, {v(A2)}\nv_mul_f32 {v(X1)}, {n}, {v(BRV)}\nv_exp_f32 {v(X0)}, {v(X0)}\nv_fract_f32 {v(X1)}, {v(X1)}")
            e(f"v_cos_f32 {v(dr)}, {v(X1)}\nv_sin_f32 {v(di)}, {v(X1)}\nv_mul_f32 {v(dr)}, {v(dr)}, {v(X0)}\nv_mul_f32 {v(di)}, {v(di)}, {v(X0)}")
        cpow("1.0", LAR, LAI); cpow("0x41800000", L16R, L16I); cpow("0x43800000", L2R, L2I)
        g(f"s_lshl_b32 s3, s{sW}, 1\nv_add_u32 {v(X2)}, s3, {v(HF)}")
        e(f"v_lshlrev_b32 {v(X2)}, 4, {v(X2)}\nv_cvt_f32_u32 {v(X2)}, {v(X2)}")
        cpow(v(X2), PWR, PWI)
        g(f"s_lshl_b32 s3, s{sW}, 2\nv_add_u32 {v(X2)}, s3, {v(HF)}")
        e(f"v_lshlrev_b32 {v(X2)}, 7, {v(X2)}\nv_cvt_f32_u32 {v(X2)}, {v(X2)}")
        cpow(v(X2), SCRR, SCI)
        e(f"v_sub_f32 {v(NLAI)}, 0, {v(LAI)}\nv_sub_f32 {v(NL16I)}, 0, {v(L16I)}")
        e(f"v_mul_f32 {v(X0)}, {v(LRE)}, {v(LRE)}\nv_fmac_f32 {v(X0)}, {v(LIM)}, {v(LIM)}\nv_rcp_f32 {v(X0)}, {v(X0)}\nv_subrev_f32 {v(X1)}, 1.0, {v(LAR)}")
        e(f"v_mul_f32 {v(CFR)}, {v(X1)}, {v(LRE)}\nv_mul_f32 {v(NCFI)}, {v(X1)}, {v(LIM)}\nv_mul_f32 {v(X0)}, 0x4038aa3b, {v(X0)}")
        e(f"v_fmac_f32 {v(CFR)}, {v(LAI)}, {v(LIM)}\nv_fmac_f32 {v(NCFI)}, {v(NLAI)}, {v(LRE)}")
        e(f"v_mul_f32 {v(CFR)}, {v(CFR)}, {v(X0)}\nv_mul_f32 {v(NCFI)}, {v(NCFI)}, {v(X0)}\nv_sub_f32 {v(NCFR)}, 0, {v(CFR)}")
        e(f"v_mul_f32 {v(T)}, {v(CFR)}, {v(LAR)}\nv_mul_f32 {v(T+16)}, {v(CFR)}, {v(LAI)}\nv_fmac_f32 {v(T)}, {v(NCFI)}, {v(LAI)}\nv_fma_f32 {v(T+16)}, -{v(NCFI)}, {v(LAR)}, {v(T+16)}")
        for i in range(1, 16):
            e(f"v_mul_f32 {v(T+i)}, {v(T+i-1)}, {v(LAR)}\nv_mul_f32 {v(T+16+i)}, {v(T+15+i)}, {v(LAR)}")
            e(f"v_fmac_f32 {v(T+i)}, {v(T+15+i)}, {v(NLAI)}\nv_fmac_f32 {v(T+16+i)}, {v(T+i-1)}, {v(LAI)}")
        return o

    def epi_addr():
        o = []
        e = lambda text: o.extend(ops_of(text))
        P = TM + 12
        o.append((f"s_lshl_b32 s3, s{sW}, 2\ns_sub_u32 s3, s{sC}, s3\ns_sub_u32 s3, s3, 1\nv_sub_u32 {v(EA)}, s3, {v(HF)}", None))
        e(f"v_subrev_u32 {v(EB)}, 2, {v(EA)}\nv_ashrrev_i32 {v(EX0)}, 31, {v(EA)}\nv_ashrrev_i32 {v(EX1)}, 31, {v(EB)}\n"
          f"v_bfi_b32 {v(EX0)}, {v(EX0)}, 0, s{sTAG}\nv_bfi_b32 {v(EX1)}, {v(EX1)}, 0, s{sTAG}\nv_lshlrev_b32 {v(P)}, 4, {v(LR)}\n"
          f"v_lshl_add_u32 {v(EA)}, {v(EA)}, 9, {v(P)}\nv_lshl_add_u32 {v(EB)}, {v(EB)}, 9, {v(P)}")
        o.append((f"s_lshr_b32 s3, s{sW12}, 3\ns_add_u32 s3, s3, {SCR_EX}\nv_lshl_add_u32 {v(XW)}, {v(L)}, 3, s3", None))
        e(f"v_lshlrev_b32 {v(XQ)}, 3, {v(LR)}\nv_add_u32 {v(XQ)}, {SCR_EX}, {v(XQ)}")
        o.append((f"s_add_u32 s{sH}, s{sW12}, {SCR_HT}", None))
        e(f"v_lshlrev_b32 {v(HA)}, 5, {v(HF)}\nv_lshl_add_u32 {v(HA)}, {v(LR)}, 6, {v(HA)}\nv_add_u32 {v(HA)}, s{sH}, {v(HA)}")
        e(f"v_bfe_u32 {v(HB)}, {v(L)}, 2, 2\nv_lshl_add_u32 {v(HB)}, {v(HF)}, 3, {v(HB)}\nv_lshlrev_b32 {v(HB)}, 6, {v(HB)}")
        e(f"v_and_b32 {v(P)}, 1, {v(L)}\nv_lshl_add_u32 {v(HB)}, {v(P)}, 5, {v(HB)}\nv_bfe_u32 {v(P)}, {v(L)}, 1, 1\nv_lshl_add_u32 {v(HB)}, {v(P)}, 3, {v(HB)}")
        e(f"v_bfe_u32 {v(P)}, {v(L)}, 4, 1\nv_lshl_add_u32 {v(HB)}, {v(P)}, 4, {v(HB)}\nv_add_u32 {v(HB)}, s{sH}, {v(HB)}")
        o.append((f"s_lshr_b32 s3, s{sG}, 2\ns_lshl_b32 s3, s3, 3\ns_and_b32 s{sH}, s{sG}, 3\ns_add_u32 s3, s3, s{sH}\ns_lshl_b32 s3, s3, 11\n"
                  f"s_add_u32 s{sH}, s{sAF}, s3\ns_add_u32 s{sH}, s{sH}, {112*1024}", None))
        return o

    bsum_loads = lambda tag: [
        (f"s_lshl_b32 s{t2}, s{sG}, 8\ns_add_u32 s{t2}, s{t2}, {CS + 1792*8}\nv_lshlrev_b32 {v(TM+19)}, 12, {v(HF)}\nv_lshl_add_u32 {v(TM+19)}, {v(LR)}, 3, {v(TM+19)}", None),
        (f"buffer_load_dwordx2 {v(WE+8,2)}, {v(TM+19)}, {s(rWS,4)}, s{t2} offen sc1", tag)]

    def gran_loads(full):
        ops = [(f"s_lshr_b32 s{t2}, s{sXB}, 7\ns_add_u32 s{t2}, s{t2}, {STATS}\nv_lshlrev_b32 {v(GA)}, 3, {v(TAU)}", None),
               (f"buffer_load_dwordx2 {v(GS,2)}, {v(GA)}, {s(rWS,4)}, s{t2} offen sc1", "gran")]
        if not full:
            return ops + bsum_loads("gran")
        return ops + [(f"s_lshl_b32 s{t2}, s{sF}, 10\ns_add_u32 s{t2}, s{t2}, {CS}\nv_lshlrev_b32 {v(GA)}, 3, {v(L)}", None),
                      (f"buffer_load_dwordx2 {v(WE,2)}, {v(GA)}, {s(rWS,4)}, s{t2} offen sc1", "gran"),
                      (f"buffer_load_dwordx2 {v(WE+4,2)}, {v(GA)}, {s(rWS,4)}, s{t2} offen offset:512 sc1", "gran")]

    def bsum_check():
        spin_check("bsum", "bsum", f"v_cmp_ne_u32 vcc, s{sTAG}, {v(WE+9)}", bsum_loads("bsum"))
        k(f"v_mov_b32 {v(WE+9)}, 0")

    def gran_check(full):
        tags = [GS + 1] + ([WE + 1, WE + 5] if full else [WE + 9])
        mis = f"v_xor_b32 {v(GA)}, s{sTAG}, {v(tags[0])}\n"
        for r in tags[1:]:
            mis += f"v_xor_b32 {v(GA+1)}, s{sTAG}, {v(r)}\nv_or_b32 {v(GA)}, {v(GA)}, {v(GA+1)}\n"
        spin_check("gran", "gran", mis + f"v_cmp_ne_u32 vcc, 0, {v(GA)}", gran_loads(full))
        k(f"v_and_b32 {v(GA)}, 0xffff, {v(GS)}\nv_and_b32 {v(GA+1)}, 0xffff0000, {v(GS)}\nv_lshlrev_b32 {v(MF)}, 16, {v(GS)}")
        k(f"v_rcp_f32 {v(RS)}, {v(GA+1)}\nv_xor_b32 {v(GA)}, 0x8000, {v(GA)}\nv_lshrrev_b32 {v(GA+1)}, 16, {v(GS)}\nv_lshl_or_b32 {v(GA)}, {v(GA)}, 16, {v(GA)}")
        k(f"v_cndmask_b32 {v(XA)}, {v(GA)}, 0, {s(sHI,2)}\nv_cndmask_b32 {v(XA+1)}, {v(GA+1)}, 0, {s(sHI,2)}")
        k(f"v_cndmask_b32 {v(XB)}, 0, {v(GA)}, {s(sHI,2)}\nv_cndmask_b32 {v(XB+1)}, 0, {v(GA+1)}, {s(sHI,2)}" + ("" if full else f"\nv_mov_b32 {v(WE+9)}, 0"))
        if full:
            k(f"v_mov_b32 {v(WE+1)}, {v(BI)}\nv_mov_b32 {v(WE+5)}, {v(BI+1)}\ns_lshl_b32 s3, s{sF}, 13\ns_add_u32 s{sA0}, s{sAF}, s3")
            for t in range(4):
                mfma(ACC + 16 * t, v(WE + 4 * (t >> 1), 4), v(XB if t & 1 else XA, 4))
        k(f"s_lshr_b32 s3, s{sW12}, 5\ns_add_u32 s3, s3, {SCR}\nv_lshlrev_b32 {v(GA)}, 9, {v(HF)}\nv_lshl_add_u32 {v(GA)}, {v(TAU)}, 2, {v(GA)}\nv_add_u32 {v(GA)}, s3, {v(GA)}")
        k(f"v_lshlrev_b32 {v(GA+2)}, 6, {v(HF)}\nv_add_u32 {v(GA+2)}, s3, {v(GA+2)}")
        k(f"v_cndmask_b32 {v(GA+1)}, {v(RS)}, {v(MF)}, {s(sHI,2)}\nv_mul_f32 {v(C1)}, {LOG2E:#x}, {v(RS)}")

    table_write = lambda: k(f"ds_write_b32 {v(GA)}, {v(GA+1)}", "stw")
    rsv_reads = lambda: [(f"ds_read_b128 {v(RSV+4*q,4)}, {v(GA+2)} offset:{q*16}", "rsv") for q in range(4)]
    close_ssm = lambda: (mfma(SS, v(XA, 4), v(WE + 8, 4)), mfma(SS + 16, v(XB, 4), v(WE + 8, 4)))

    def stream(full, pfx, val):
        nm = 4 if full else 2
        base_of = lambda stg: 65536 if slot_of(stg) == 2 * SLOT else 0
        def reads(n):
            stg, j = divmod(n, 4)
            off = slot_of(stg) - base_of(stg)
            d = base_of(stg) - (base_of(stg - 1) if stg else 0)
            adj = lambda r, on=True: f"v_add_u32 {v(r)}, {d & 0xffffffff:#x}, {v(r)}\n" if d and on else ""
            f = FR + 16 * (n & 1)
            o = [(adj(XR + j) + f"ds_read_b128 {a(4*n,4)}, {v(XR+j)} offset:{off}", f"ra{n}")]
            if full:
                o += [(adj(WR + t, j == 0 and rd == 0) + f"ds_read_b64_tr_b16 {a(f+4*t+2*rd,2)}, {v(WR+t)} offset:{off + j*4096 + rd*1024}", f"ra{n}" if t < 2 else f"rb_{n}")
                      for t in range(4) for rd in range(2)]
            else:
                o += [(f"ds_read_b128 {a(f+4*c,4)}, {v(BQ+j)} offset:{stg*8192 + c*4096}", f"ra{n}") for c in range(2)]
            return o
        mem = {sg: stage_ops(sg + 2, full) if sg else [] for sg in range(6)}
        if full:
            mem.update({6: [], 7: []})
            per = 8 // len(b_at)
            for i, sg in enumerate(b_at):
                mem[sg] = mem[sg] + b_ops(range(per * i, per * i + per), "bm")
        else:
            mem.update({6: ring_ops(0), 7: ring_ops(1)})
            for sg in range(7):
                P = TM + 15
                head = (f"s_and_b32 s3, s{sC}, 7\ns_lshl_b32 s3, s3, 2\ns_add_u32 s3, s3, s{sW}\ns_mul_i32 s{sQ}, s3, {56*1024}\ns_add_u32 s{sQ}, s{sQ}, {LITE*128}\n"
                        f"v_lshrrev_b32 {v(P)}, 3, {v(L)}\nv_lshlrev_b32 {v(P)}, 10, {v(P)}\n") if sg == 0 else f"s_add_u32 s{sQ}, s{sQ}, 8192\n"
                mem[sg] = mem[sg] + [(head + f"buffer_load_dword a255, {v(P)}, {s(rW2,4)}, s{sQ} offen", "trk")]
        mem[far_at] = mem[far_at] + far_ops()
        mem[gran_at] = gran_loads(full) + mem[gran_at]
        for stg in range(8):
            bar(vm=f"st{stg}", lg="all")
            if stg in (0, 4):
                stamp(f"{pfx}st{stg}")
            steps = ([4 * stg - 1] if stg else []) + [4 * stg, 4 * stg + 1, 4 * stg + 2] + ([31] if stg == 7 else [])
            if stg == 0:
                run(reads(0))
            if stg == 6:
                val = val + epi_addr()
            mm = spread_mem(mem[stg], nm * min(4, len(steps))) if mem[stg] else []
            gi = 0
            for n in steps:
                f = FR + 16 * (n & 1)
                rd = spread(reads(n + 1), nm - 1 if n % 4 == 2 and full else nm) + [[]] if n < 31 else [[]] * nm
                for i in range(nm):
                    if i == 0:
                        k.wait(lg=f"ra{n}")
                    if i == 2:
                        k.wait(lg=f"rb_{n}")
                    c0 = "0" if n == 0 else None
                    if full:
                        mfma(ACC + 16 * i, a(f + 4 * i, 4), a(4 * n, 4), c0)
                    else:
                        mfma(SS + 16 * i, a(4 * n, 4), a(f + 4 * i, 4), c0)
                    here = rd[i] + (mm[gi] if gi < len(mm) else [])
                    run(here)
                    used = 8 + sum(map(cost, here)) + (6 if i in (1, nm - 1) else 0)
                    while val and (used + cost(val[0]) <= budget or (not full and used < 60)):
                        used += cost(val[0])
                        run([val.pop(0)])
                    gi += 1
                probe(f"g{n}")
        run(val)

    def ssm_gemm(mem, lds, pre):
        def rd(n):
            return [(f"ds_read_b128 {a(FR+8*(n%4)+4*c,4)}, {v(BQ+(n&3))} offset:{(n>>2)*8192 + c*4096}", f"bq{n}") for c in range(2)]
        for n in range(3):
            run(rd(n))
        for n in range(32):
            k.wait(lg=f"bq{n}")
            for c in range(2):
                if 2 * n + c in pre:
                    pre[2 * n + c]()
                mfma(SS + 16 * c, a(4 * n, 4), a(FR + 8 * (n % 4) + 4 * c, 4), "0" if n == 0 else None)
                if n + 3 < 32:
                    run(rd(n + 3)[c:c + 1])
                run(mem[2 * n + c]); run(lds[2 * n + c])
        close_ssm()

    def mish_ops(t):
        ops = []
        TA, TB = MI, MI + 8
        for e in range(2):
            R = ACC + 16 * t + 8 * e
            one = lambda f: [(f(i), None) for i in range(8)]
            two = lambda f: [(f(i), None) for i in range(0, 8, 2)]
            ops += two(lambda i: f"v_pk_mul_f32 {v(TA+i,2)}, {v(R+i,2)}, {v(C1,2)} op_sel_hi:[1,0]")
            ops += one(lambda i: f"v_exp_f32 {v(TB+i)}, {v(TA+i)}")
            ops += two(lambda i: f"v_pk_fma_f32 {v(R+i,2)}, {v(TB+i,2)}, 0.5, 1.0 op_sel_hi:[1,0,0]")
            ops += two(lambda i: f"v_pk_fma_f32 {v(TB+i,2)}, {v(TB+i,2)}, {v(R+i,2)}, 1.0 op_sel_hi:[1,1,0]")
            ops += one(lambda i: f"v_rcp_f32 {v(TB+i)}, {v(TB+i)}")
            ops += two(lambda i: f"v_pk_fma_f32 {v(TA+i,2)}, {v(TA+i,2)}, {v(TB+i,2)}, {v(TA+i,2)} neg_lo:[1,0,0] neg_hi:[1,0,0]")
            ops += two(lambda i: f"v_cvt_pk_bf16_f32 {v(R+i//2)}, {v(TA+i)}, {v(TA+i+1)}")
            pre = f"s_add_u32 s{sA0}, s{sA0}, 4096\n" if t == 2 and e == 0 else ""
            ops.append((pre + f"buffer_store_dwordx4 {v(R,4)}, {v(L16)}, {s(rWS,4)}, s{sA0} offen offset:{(2*(t&1)+e)*1024} sc1", "act"))
        return ops

    def scan_ops():
        o = [W(lg="rsv")]
        for r in range(0, 16, 2):
            o += ops_of(f"v_pk_mul_f32 {v(SS+r,2)}, {v(SS+r,2)}, {v(RSV+r,2)}\nv_pk_mul_f32 {v(SS+16+r,2)}, {v(SS+16+r,2)}, {v(RSV+r,2)}")
        for r in range(1, 16):
            o += ops_of(f"v_fmac_f32 {v(SS+r)}, {v(LAR)}, {v(SS+r-1)}\nv_fmac_f32 {v(SS+16+r)}, {v(LAR)}, {v(SS+15+r)}\n"
                        f"v_fmac_f32 {v(SS+r)}, {v(NLAI)}, {v(SS+15+r)}\nv_fmac_f32 {v(SS+16+r)}, {v(LAI)}, {v(SS+r-1)}")
        o.append((f"ds_write2_b32 {v(XW)}, {v(SS+15)}, {v(SS+31)} offset0:0 offset1:1", "exw"))
        return o

    def chain_ops():
        o = [(f"ds_read_b64 {v(EK+2*q,2)}, {v(XQ)} offset:{q*256}", f"ek{q}") for q in range(8)]
        SG = TM + 17
        o.append((f"s_lshl_b32 s3, s{sW}, 1\nv_add_u32 {v(SG)}, s3, {v(HF)}", None))
        o += ops_of(f"v_mov_b32 {v(PR)}, 0\nv_mov_b32 {v(PI)}, 0\nv_mov_b32 {v(XA+1)}, s{sTAG}\nv_mov_b32 {v(XA+3)}, s{sTAG}")
        o.append(W(lg="ek3"))
        for q in range(1, 8):
            r, i = EK + 2 * q, EK + 2 * q + 1
            dr, di = (XA, XA + 2) if q == 7 else (r, i)
            if q == 4:
                o.append(W(lg="ek7"))
            o += ops_of(f"v_cmp_eq_u32 vcc, {q}, {v(SG)}\nv_fmac_f32 {v(r)}, {v(L16R)}, {v(r-2)}\nv_fmac_f32 {v(i)}, {v(L16R)}, {v(i-2)}\n"
                        f"v_cndmask_b32 {v(PR)}, {v(PR)}, {v(r-2)}, vcc\nv_cndmask_b32 {v(PI)}, {v(PI)}, {v(i-2)}, vcc\n"
                        f"v_fma_f32 {v(dr)}, {v(NL16I)}, {v(i-2)}, {v(r)}\nv_fma_f32 {v(di)}, {v(L16I)}, {v(r-2)}, {v(i)}")
        o.append((f"s_cmp_eq_u32 s{sW}, 3\ns_cselect_b32 s3, 0, 0x10000\nv_lshlrev_b32 {v(SG)}, 13, {v(HF)}\nv_add3_u32 {v(SG)}, {v(SG)}, {v(L16)}, s3\ns_lshl_b32 s3, s{sC}, 9\n"
                  f"buffer_store_dwordx4 {v(XA,4)}, {v(SG)}, {s(rE,4)}, s3 offen sc1", "epub"))
        return o

    def coef_ops():
        o = []
        for r in range(0, 16, 2):
            tt = XB + (r & 2)
            o += ops_of(f"v_pk_mul_f32 {v(tt,2)}, {v(SS+r,2)}, {v(NCFI,2)} op_sel_hi:[1,0]\nv_pk_mul_f32 {v(SS+r,2)}, {v(SS+r,2)}, {v(CFR,2)} op_sel_hi:[1,0]\n"
                        f"v_pk_fma_f32 {v(SS+r,2)}, {v(SS+16+r,2)}, {v(NCFI,2)}, {v(SS+r,2)} op_sel_hi:[1,0,1]\n"
                        f"v_pk_fma_f32 {v(SS+16+r,2)}, {v(SS+16+r,2)}, {v(CFR,2)}, {v(tt,2)} op_sel:[0,1,0] op_sel_hi:[1,1,1]")
        return o

    e_loads = lambda: [(f"buffer_load_dwordx4 {v(E0,4)}, {v(EA)}, {s(rE,4)}, 0 offen sc1", "eg"),
                       (f"buffer_load_dwordx4 {v(E0+4,4)}, {v(EB)}, {s(rE,4)}, 0 offen sc1", "eg")]

    def carry_write():
        Y0, Y1 = TM + 12, TM + 13
        mis = (f"v_xor_b32 {v(Y0)}, {v(E0+1)}, {v(EX0)}\nv_xor_b32 {v(Y1)}, {v(E0+3)}, {v(EX0)}\nv_or_b32 {v(Y0)}, {v(Y0)}, {v(Y1)}\n"
               f"v_xor_b32 {v(Y1)}, {v(E0+5)}, {v(EX1)}\nv_or_b32 {v(Y0)}, {v(Y0)}, {v(Y1)}\nv_xor_b32 {v(Y1)}, {v(E0+7)}, {v(EX1)}\nv_or_b32 {v(Y0)}, {v(Y0)}, {v(Y1)}\n"
               f"v_cmp_ne_u32 vcc, 0, {v(Y0)}")
        spin_check("e", "eg", mis, e_loads())
        k(f"v_fmac_f32 {v(E0)}, {v(L2R)}, {v(E0+4)}\nv_fmac_f32 {v(E0+2)}, {v(L2R)}, {v(E0+6)}")
        k(f"v_fma_f32 {v(E0)}, -{v(L2I)}, {v(E0+6)}, {v(E0)}\nv_fmac_f32 {v(E0+2)}, {v(L2I)}, {v(E0+4)}")
        k(f"v_mul_f32 {v(Y0)}, {v(SCRR)}, {v(E0)}\nv_mul_f32 {v(Y1)}, {v(SCRR)}, {v(E0+2)}")
        k(f"v_fma_f32 {v(Y0)}, -{v(SCI)}, {v(E0+2)}, {v(Y0)}\nv_fmac_f32 {v(Y1)}, {v(SCI)}, {v(E0)}")
        k(f"ds_write_b64 {v(XW)}, {v(Y0,2)} offset:{SCR_CX - SCR_EX}", "cxw")
        bar(lg="all")
        for q in range(8):
            k(f"ds_read_b64 {v(TM+2*q,2)}, {v(XQ)} offset:{SCR_CX - SCR_EX + q*256}", "cxr")

    def fix_ops():
        o = []
        e = lambda text, tag=None: o.extend(ops_of(text, tag))
        o.append(W(lg="cxr"))
        for step in (8, 4, 2):
            for q in range(0, step, 2):
                e(f"v_pk_add_f32 {v(TM+q,2)}, {v(TM+q,2)}, {v(TM+q+step,2)}")
        NS = TM + 16
        e(f"v_fmac_f32 {v(PR)}, {v(PWR)}, {v(TM)}\nv_fmac_f32 {v(PI)}, {v(PWR)}, {v(TM+1)}")
        e(f"v_fma_f32 {v(NS)}, -{v(PWI)}, {v(TM+1)}, {v(PR)}\nv_fma_f32 {v(NS+1)}, -{v(PWI)}, {v(TM)}, -{v(PI)}")
        for qq in range(4):
            comp, half = qq >> 1, qq & 1
            for r in range(8 * half, 8 * half + 8, 2):
                d = SS + 16 * comp + r
                e(f"v_pk_fma_f32 {v(d,2)}, {v(T+r,2)}, {v(NS,2)}, {v(d,2)} op_sel:[0,{comp},0] op_sel_hi:[1,{comp},1]")
                if comp == 0:
                    e(f"v_pk_fma_f32 {v(d,2)}, {v(T+16+r,2)}, {v(NS,2)}, {v(d,2)} op_sel:[0,1,0] op_sel_hi:[1,1,1]")
                else:
                    e(f"v_pk_fma_f32 {v(d,2)}, {v(T+16+r,2)}, {v(NS,2)}, {v(d,2)} op_sel:[0,0,0] op_sel_hi:[1,0,1] neg_lo:[0,1,0] neg_hi:[0,1,0]")
            for q in range(4):
                e(f"v_cvt_pk_bf16_f32 {v(TM+4*qq+q)}, {v(SS+8*qq+2*q)}, {v(SS+8*qq+2*q+1)}")
            e(f"ds_write_b128 {v(HA)}, {v(TM+4*qq,4)} offset:{comp*2048 + half*16}", f"htw{comp}")
            if half:
                for f in (2 * comp, 2 * comp + 1):
                    for rd in range(2):
                        e(f"ds_read_b64_tr_b16 {v(SS+16*comp+4*(f&1)+2*rd,2)}, {v(HB)} offset:{f*1024 + rd*256}", f"htr{f}")
        for f in range(4):
            o.append(W(lg=f"htr{f}"))
            pre = f"s_add_u32 s{sH}, s{sH}, 8192\n" if f == 2 else ""
            o.append((pre + f"buffer_store_dwordx4 {v(SS+16*(f>>1)+4*(f&1),4)}, {v(L16)}, {s(rWS,4)}, s{sH} offen offset:{(f&1)*1024} sc1", "hst"))
        return o

    def flag_publish(base, tag):
        k(f"s_lshl_b32 s{sQ}, s{sC}, 4\ns_add_u32 s{sQ}, s{sQ}, s{sG if base == FLH else sF}\ns_lshl_b32 s{sQ}, s{sQ}, 2\ns_add_u32 s{sQ}, s{sQ}, s{sW}\n"
          f"s_lshl_b32 s{sQ}, s{sQ}, 7\ns_add_u32 s{sQ}, s{sQ}, {base}\nv_mov_b32 {v(MF)}, s{sTAG}")
        k.wait(vm=tag)
        k("s_mov_b64 exec, 1")
        k(f"buffer_store_dword {v(MF)}, off, {s(rWS,4)}, s{sQ} sc1", "flag")
        k("s_mov_b64 exec, -1")

    poll_load = lambda tag: [(f"buffer_load_dword {v(PV)}, {v(PA)}, {s(rWS,4)}, s{t3} offen sc1", tag)]

    def poll_ops(first, base, tag):
        return [(f"{first}\nv_bfe_u32 {v(PA)}, {v(L)}, 1, 2\nv_add_u32 {v(PA)}, s3, {v(PA)}\nv_and_b32 {v(PV)}, 1, {v(L)}\n"
                 f"v_lshl_add_u32 {v(PA)}, {v(PA)}, 2, {v(PV)}\nv_lshlrev_b32 {v(PA)}, 7, {v(PA)}\n"
                 f"s_lshl_b32 s3, s{sC}, 5\ns_lshr_b32 s{t3}, s{sG}, 3\ns_add_u32 s3, s3, s{t3}\ns_lshl_b32 s3, s3, 8\ns_add_u32 s{t3}, s3, {base}", None)] + poll_load(tag)

    poll_check = lambda tag: spin_check(tag, tag, f"v_cmp_ne_u32 vcc, s{sTAG}, {v(PV)}", poll_load(tag))

    def scan_section(pfx, rings):
        run(rsv_reads())
        weave(rings[0], scan_ops())
        bar(lg="all")
        weave(rings[1], chain_ops() + [lambda: stamp(pfx + "epub")] + coef_ops() + rings[2])

    k(f"s_cmp_eq_u32 s{sN}, {LITE}\ns_cbranch_scc1 L_light")
    snap0 = k.snapshot()
    late = late_setup()
    run(stage_ops(0, True)); par_loads()
    weave(stage_ops(1, True), early_setup() + row_stats())
    weave(stage_ops(2, True), late[:n_before])
    stream(True, "", late[n_before:])
    stamp("gemm")
    gran_check(True)
    k("s_barrier")
    table_write()
    stamp("gran")
    rings = [ring_ops(b) for b in range(2)]
    weave(bsum_loads("bsum") + sum(rings[:n_mish], []), sum((mish_ops(t) for t in range(4)), []))
    stamp("mish")
    bar(vm="bm")
    late_r = sum(rings[n_mish:], [])
    head = spread_mem(late_r, 16) if late_r else []
    n0 = len(head)
    seg = (64 - n0) // 4
    mem = head + [[]] * seg + spread_mem([W(lg="sr0")] + ring_ops(2), seg) + spread_mem([W(lg="sr1")] + ring_ops(3), seg)
    lds = [[]] * n0 + spread(keep_reads(0), seg) + spread(keep_reads(1), seg) + [[]] * seg + spread(keep_reads(2), seg)
    mem += [[]] * (64 - len(mem)); lds += [[]] * (64 - len(lds))
    ssm_gemm(mem, lds, {f12_at: lambda: flag_publish(FLA, "act"), 60: bsum_check})
    stamp("ssm")
    weave([W(lg="sr2")] + ring_ops(6), rsv_reads() + scan_ops())
    bar(lg="all")
    weave(ring_ops(4) + ring_ops(5), chain_ops() + [lambda: stamp("epub")] + coef_ops() + keep_reads(3) + [W(lg="sr3")])
    weave(ring_ops(7), keep_reads(4) + [W(lg="all")])
    k("s_branch L_join")
    snap_full = k.snapshot()

    k("L_light:")
    k.restore(snap0)
    k(f"s_lshl_b32 s{sQ}, s{sC}, 1\ns_lshr_b32 s3, s{sG}, 3\ns_add_u32 s{sQ}, s{sQ}, s3")
    k(f"s_min_u32 s{t0}, s{sQ}, 27\ns_lshl_b32 s{t0}, s{t0}, 7\ns_mul_i32 s3, s{sW}, {128*3584}\ns_add_u32 s{t0}, s{t0}, s3")
    k(f"v_lshrrev_b32 {v(TM+16)}, 3, {v(L)}\nv_mul_u32_u24 {v(TM+16)}, 3584, {v(TM+16)}\nv_and_b32 {v(TM+17)}, 7, {v(L)}\nv_lshl_add_u32 {v(TM+16)}, {v(TM+17)}, 4, {v(TM+16)}")
    for i in range(16):
        k(f"buffer_load_dwordx4 {v(ACC+4*i,4)}, {v(TM+16)}, {s(rW1,4)}, s{t0} offen\ns_add_u32 s{t0}, s{t0}, {8*3584}", f"lw{i}")
    k(f"s_cmp_lt_u32 s{sQ}, 16\ns_cselect_b32 s{rE}, s{pBR}, s{pBI}\ns_cselect_b32 s{rE+1}, s{pBR+1}, s{pBI+1}\ns_mov_b32 s{rE+2}, 0x80000\ns_mov_b32 s{rE+3}, 0x20000")
    k(f"s_and_b32 s{t0}, s{sQ}, 15\ns_lshl_b32 s{t0}, s{t0}, 15\ns_add_u32 s{t0}, s{t0}, s{sW13}")
    for i in range(8):
        if i == 4:
            k(f"s_add_u32 s{t0}, s{t0}, 4096")
        k(f"buffer_load_dwordx4 {v(SS+4*i,4)}, {v(L16)}, {s(rE,4)}, s{t0} offen offset:{(i&3)*1024}", "lb")
    par_loads()
    run(early_setup()); run(row_stats())
    CA, EL = TM, TM + 8

    def fold8(R):
        for j in range(0, 8, 2):
            k(f"v_permlane32_swap_b32 {v(R+j)}, {v(R+j+1)}")
        for j in range(0, 8, 2):
            k(f"v_add_f32 {v(R+j)}, {v(R+j)}, {v(R+j+1)}")
        k(f"v_permlane16_swap_b32 {v(R)}, {v(R+2)}\nv_permlane16_swap_b32 {v(R+4)}, {v(R+6)}")
        k(f"v_add_f32 {v(R)}, {v(R)}, {v(R+2)}\nv_add_f32 {v(R+4)}, {v(R+4)}, {v(R+6)}")

    def split_publish(R, addr, soff):
        k(f"v_cvt_pk_bf16_f32 {v(R+1)}, {v(R)}, {v(R)}\nv_and_b32 {v(R+1)}, 0xffff0000, {v(R+1)}\nv_sub_f32 {v(R+1)}, {v(R)}, {v(R+1)}")
        k(f"v_cvt_pk_bf16_f32 {v(R)}, {v(R)}, {v(R+1)}\nv_mov_b32 {v(R+1)}, s{sTAG}")
        k(f"buffer_store_dwordx2 {v(R,2)}, {v(addr)}, {s(rWS,4)}, s{soff} offen sc1", "cspub")

    k(f"v_bfe_u32 {v(EL)}, {v(L)}, 4, 1\nv_lshl_add_u32 {v(EL)}, {v(EL)}, 1, {v(HF)}")
    k(f"s_mov_b32 s{t2}, 0x00003f80\ns_mov_b32 s{t3}, 0x3f800000")
    for j in range(8):
        k(f"v_mov_b32 {v(CA+j)}, 0")
    for i in range(16):
        k.wait(vm=f"lw{i}")
        for j in range(4):
            k(f"v_dot2c_f32_bf16 {v(CA+2*j)}, s{t2}, {v(ACC+4*i+j)}\nv_dot2c_f32_bf16 {v(CA+2*j+1)}, s{t3}, {v(ACC+4*i+j)}")
    for j in range(8):
        k(f"v_add_f32_dpp {v(CA+j)}, {v(CA+j)}, {v(CA+j)} row_ror:8 row_mask:0xf bank_mask:0xf")
    fold8(CA)
    k(f"v_and_b32 {v(EL+1)}, 7, {v(L)}\nv_lshl_add_u32 {v(EL+1)}, {v(EL+1)}, 3, {v(EL)}\nv_lshlrev_b32 {v(EL+1)}, 2, {v(EL+1)}")
    k(f"s_lshl_b32 s3, s{sW}, 8\ns_add_u32 s3, s3, 16384\nv_add_u32 {v(EL+1)}, s3, {v(EL+1)}")
    k(f"ds_write2_b32 {v(EL+1)}, {v(CA)}, {v(CA+4)} offset0:0 offset1:4", "cw")
    k(f"v_lshlrev_b32 {v(EL+1)}, 2, {v(L)}\nv_add_u32 {v(EL+1)}, 16384, {v(EL+1)}")
    bar(lg="all")
    for j in range(4):
        k(f"ds_read_b32 {v(CA+j)}, {v(EL+1)} offset:{j*256}", "cr")
    k(f"s_min_u32 s{t2}, s{sQ}, 27\ns_lshl_b32 s{t2}, s{t2}, 9\ns_add_u32 s{t2}, s{t2}, {CS}\nv_lshlrev_b32 {v(EL+2)}, 3, {v(L)}")
    k.wait(lg="all")
    k(f"v_add_f32 {v(CA)}, {v(CA)}, {v(CA+1)}\nv_add_f32 {v(CA+2)}, {v(CA+2)}, {v(CA+3)}\nv_add_f32 {v(CA)}, {v(CA)}, {v(CA+2)}")
    split_publish(CA, EL + 2, t2)
    stamp("Lwsum")
    run(stage_ops(0, False))
    k(f"s_mov_b32 s{t3}, 0x3f803f80")
    for j in range(8):
        k(f"v_mov_b32 {v(CA+j)}, 0")
    k.wait(vm="lb")
    for j in range(4):
        for i in range(8):
            k(f"v_dot2c_f32_bf16 {v(CA+i)}, s{t3}, {v(SS+4*i+j)}")
    fold8(CA)
    for r in (8, 4, 2, 1):
        k(f"v_add_f32_dpp {v(CA)}, {v(CA)}, {v(CA)} row_ror:{r} row_mask:0xf bank_mask:0xf\nv_add_f32_dpp {v(CA+4)}, {v(CA+4)}, {v(CA+4)} row_ror:{r} row_mask:0xf bank_mask:0xf")
    k(f"v_and_b32 {v(EL+1)}, 1, {v(L)}\nv_cmp_eq_u32 vcc, 1, {v(EL+1)}\nv_lshl_add_u32 {v(EL+1)}, {v(EL+1)}, 2, {v(EL)}\nv_lshlrev_b32 {v(EL+1)}, 3, {v(EL+1)}")
    k(f"v_cndmask_b32 {v(CA)}, {v(CA)}, {v(CA+4)}, vcc")
    k(f"s_lshl_b32 s{t2}, s{sQ}, 8\ns_lshl_b32 s3, s{sW}, 6\ns_add_u32 s{t2}, s{t2}, s3\ns_add_u32 s{t2}, s{t2}, {CS + 1792*8}")
    split_publish(CA, EL + 1, t2)
    stamp("Lbsum")
    run(stage_ops(1, False))
    weave(stage_ops(2, False), late_setup())
    stream(False, "L", [])
    stamp("Lgemm")
    gran_check(False)
    close_ssm()
    k("s_barrier")
    table_write()
    weave(ring_ops(4), rsv_reads() + scan_ops())
    bar(lg="all")
    weave(ring_ops(5), chain_ops() + [lambda: stamp("Lepub")] + keep_reads(0) + keep_reads(1) + [W(lg="all")])
    weave(ring_ops(2) + ring_ops(3), coef_ops() + keep_reads(4))
    run(keep_reads(2) + keep_reads(3) + [W(lg="all")])
    run(ring_ops(6) + ring_ops(7))
    snap_light = k.snapshot()

    k("L_join:")
    k.merge(snap_full, snap_light, ("rb5", "rb6", "rb7"))
    stamp("join")
    run(poll_ops(f"s_mov_b32 s3, s{sGE}", FLA, "poll1") + (e_loads() if e_after == 0 else []) + ring_ops(8))
    poll_check("poll1")
    stamp("poll")
    run(a_ops(0))
    if e_after == 1:
        run(e_loads())
    fx = fix_ops()
    if e_after == 0:
        carry_write()
        weave(a_ops(1), fx[:-8])
        run(fx[-8:])
    else:
        run(a_ops(1))
    stamp("stored")

    def b_reads(n):
        b, j = divmod(n, 4)
        hi = RING[b] >= BA
        off = RING[b] - hi * BA
        if b < 7:
            return [(f"ds_read_b64_tr_b16 {a(FR+8*j+4*c+2*rd,2)}, {v(W2R+2*hi+c)} offset:{off + j*2048 + rd*1024}", f"f{n}") for c in range(2) for rd in range(2)]
        return [(f"ds_read_b128 {a(FR+8*j+4*c,4)}, {v(CR+4*hi+j)} offset:{off + c*4096}", f"f{n}") for c in range(2)]

    def xs_ops():
        P = TM + 19
        return [(f"s_lshl_b32 s{t2}, s{sM}, 1\ns_lshr_b32 s3, s{sW}, 1\ns_add_u32 s{t2}, s{t2}, s3\ns_lshl_b32 s{t2}, s{t2}, 15\n"
                 f"s_lshl_b32 s3, s{sN}, 7\ns_add_u32 s{t2}, s{t2}, s3\ns_and_b32 s3, s{sW}, 1\ns_lshl_b32 s3, s3, 6\ns_add_u32 s{t2}, s{t2}, s3\n"
                 f"v_lshrrev_b32 {v(P)}, 2, {v(L)}\nv_and_b32 {v(P-1)}, 3, {v(L)}\nv_lshlrev_b32 {v(P-1)}, 4, {v(P-1)}\nv_lshl_add_u32 {v(P)}, {v(P)}, 10, {v(P-1)}\n"
                 f"s_lshr_b32 s3, s{sW12}, 1\ns_add_u32 m0, s3, {SCR_XS}", None),
                (f"buffer_load_dwordx4 {v(P)}, {s(rX,4)}, s{t2} offen lds", "xs"),
                (f"s_add_u32 s{t2}, s{t2}, {16384 - 1024}\nbuffer_load_dwordx4 {v(P)}, {s(rX,4)}, s{t2} offen offset:1024 lds", "xs")]

    def addend_ops():
        o = [(f"s_lshr_b32 s3, s{sG}, 3\ns_lshl_b32 s3, s3, 1\ns_lshr_b32 s{sCNT}, s{sW}, 1\ns_add_u32 s3, s3, s{sCNT}\ns_lshl_b32 s3, s3, 7\ns_add_u32 s3, s3, {SCR}\n"
              f"v_lshlrev_b32 {v(TM+1)}, 6, {v(HF)}\nv_add_u32 {v(TM+1)}, s3, {v(TM+1)}", None)]
        for q in range(4):
            o += ops_of(f"ds_read_b128 {v(T+4*q,4)}, {v(TM+1)} offset:{q*16}\nds_read_b128 {v(T+16+4*q,4)}, {v(TM+1)} offset:{512+q*16}", "ast")
        P = TM + 2
        o.append((f"s_lshr_b32 s3, s{sW12}, 1\ns_add_u32 s3, s3, {SCR_XS}\nv_bfe_u32 {v(P)}, {v(L)}, 2, 2\nv_lshl_add_u32 {v(P)}, {v(HF)}, 4, {v(P)}\nv_lshlrev_b32 {v(P)}, 6, {v(P)}\n"
                  f"v_bfe_u32 {v(P+1)}, {v(L)}, 4, 1\nv_lshl_add_u32 {v(P)}, {v(P+1)}, 5, {v(P)}\nv_and_b32 {v(P+1)}, 3, {v(L)}\nv_lshl_add_u32 {v(P)}, {v(P+1)}, 3, {v(P)}\nv_add_u32 {v(P)}, s3, {v(P)}", None))
        o.append(W(vm="xs"))
        for q in range(4):
            o += ops_of(f"ds_read_b64_tr_b16 {v(XS+16+2*q,2)}, {v(P)} offset:{q*256}", "ast")
        o.append(W(lg="ast"))
        for r in range(16):
            unpack = f"v_and_b32 {v(XS+r)}, 0xffff0000, {v(XS+16+r//2)}" if r & 1 else f"v_lshlrev_b32 {v(XS+r)}, 16, {v(XS+16+r//2)}"
            o += ops_of(f"{unpack}\nv_sub_f32 {v(T+16+r)}, {v(XS+r)}, {v(T+16+r)}\n"
                        f"v_mul_f32 {v(T+16+r)}, {v(T+16+r)}, {v(T+r)}\nv_fmac_f32 {v(XS+r)}, {v(T+16+r)}, {v(DSK)}")
        return o

    a_next = 2
    for b in range(10):
        nxt = []
        if b == p3_at:
            poll_check("poll3")
            stamp("poll3")
        if b == 1 and e_after == 1:
            carry_write()
            nxt = a_ops(a_next); a_next += 1
            weave(nxt, fx[:-8])
            run(fx[-8:])
            nxt = []
        if b == p3_issue:
            nxt += poll_ops(f"s_lshl_b32 s3, s{sW}, 2", FLH, "poll3")
        if b in (6, 7):
            nxt += ring_ops(b + 3)
        while a_next <= min(b + 2, 10) and (a_next < 7 or b >= p3_at):
            nxt += a_ops(a_next); a_next += 1
        if b == xs_at:
            nxt += xs_ops()
        val = spread(addend_ops(), 32)[16 * (b - xs_at - 2):16 * (b - xs_at - 1)] if 2 <= b - xs_at <= 3 else [[]] * 16
        mm = spread_mem(nxt, 16) if nxt else [[]] * 16
        for j in range(4):
            n = 4 * b + j
            rd = [[]] * 4
            if n + 1 >= 20:
                if j == 3:
                    k.wait(vm=f"rb{b+1}")
                rd = spread(b_reads(n + 1), 4)
            if b == f3_at and j == f3_step:
                flag_publish(FLH, "hst")
            k.wait(vm=f"ab{b}_{j}", lg=f"f{n}" if b >= 5 else None)
            if j == 0 and b in (0, 8):
                stamp(f"blk{b}")
            for m in range(2):
                for c in range(2):
                    mfma(ACC + 32 * m + 16 * c, a(32 * (b % 3) + 8 * j + 4 * m, 4), a(RESB.get(b, FR) + 8 * j + 4 * c, 4), "0" if n == 0 else None)
                    run(rd[2 * m + c]); run(mm[4 * j + 2 * m + c]); run(val[4 * j + 2 * m + c])
            probe(f"b{b}_{j}")

    GW, GR, OA = TM, TM + 2, TM + 5
    pre = [(f"s_add_u32 s3, s{sW13}, {SLOT}\nv_add_u32 {v(GW)}, s3, {v(L16)}\ns_add_u32 s3, s{sW12}, {SCR_HT}\nv_add_u32 {v(GW+1)}, s3, {v(L16)}", None)]
    pre += ops_of(f"v_xor_b32 {v(GR)}, {1 << 12}, {v(GW+1)}\nv_xor_b32 {v(GR+1)}, {2 << 13}, {v(GW)}\nv_xor_b32 {v(GR+2)}, {3 << 13}, {v(GW)}")
    pre.append((f"s_lshl_b32 s{t2}, s{sM}, 1\ns_lshr_b32 s3, s{sW}, 1\ns_add_u32 s{t2}, s{t2}, s3\ns_lshl_b32 s{t2}, s{t2}, 16\n"
                f"s_lshl_b32 s3, s{sN}, 8\ns_add_u32 s{t2}, s{t2}, s3\ns_and_b32 s3, s{sW}, 1\ns_lshl_b32 s3, s3, 7\ns_add_u32 s{t2}, s{t2}, s3\ns_mov_b32 s{t0}, 0x3f317218", None))
    pre += ops_of(f"v_lshlrev_b32 {v(OA)}, 15, {v(HF)}\nv_lshl_add_u32 {v(OA)}, {v(LR)}, 2, {v(OA)}")
    place = lambda u, q: (u == 1, (u == 3) * 4096 + q * 1024)
    wr = lambda u: [(f"ds_write_b128 {v(GW + place(u, q)[0])}, {v(ACC+16*u+4*q,4)} offset:{place(u, q)[1]}", "fw") for q in range(4)]
    for j in (1, 2, 3):
        run(b_reads(40 + j))
    run(pre)
    late_w = {(2, 3): wr(3)[:1], (1, 0): wr(3)[1:2], (1, 1): wr(3)[2:3], (1, 2): wr(3)[3:], (1, 3): wr(2)[:1], (0, 0): wr(2)[1:2], (0, 1): wr(2)[2:3],
              (0, 2): wr(2)[3:], (0, 3): wr(1)}
    for u in (3, 2, 1, 0):
        for j in range(4):
            k.wait(vm=f"ab10_{j}", lg=f"f{40+j}")
            mfma(ACC + 16 * u, a(32 * (10 % 3) + 8 * j + 4 * (u >> 1), 4), a(FR + 8 * j + 4 * (u & 1), 4))
            run(late_w.get((u, j), []))
    stamp("p2done")
    bar(lg="all")
    for q in range(4):
        for u in (1, 2, 3):
            k(f"ds_read_b128 {v(ACC+16*u+4*q,4)}, {v(GR+u-1)} offset:{place(u, q)[1]}", f"fr{q}")
    for q in range(4):
        k.wait(lg=f"fr{q}")
        for r in (4 * q, 4 * q + 2):
            k(f"v_pk_add_f32 {v(ACC+r,2)}, {v(ACC+r,2)}, {v(ACC+16+r,2)}\nv_pk_add_f32 {v(ACC+32+r,2)}, {v(ACC+32+r,2)}, {v(ACC+48+r,2)}")
        for r in (4 * q, 4 * q + 2):
            k(f"v_pk_add_f32 {v(ACC+r,2)}, {v(ACC+r,2)}, {v(ACC+32+r,2)}\nv_pk_fma_f32 {v(ACC+r,2)}, {v(ACC+r,2)}, {s(t0,2)}, {v(XS+r,2)} op_sel_hi:[1,0,1]")
        for r in range(4 * q, 4 * q + 4):
            k(f"buffer_store_dword {v(ACC+r)}, {v(OA)}, {s(rOUT,4)}, s{t2} offen offset:{(r&1)*2048} {out_flags}", "out")
            if r & 1:
                k(f"s_add_u32 s{t2}, s{t2}, 4096")
    k(f"s_cmp_lg_u32 s{sC}, 15\ns_cbranch_scc1 L_fin\ns_or_b32 s3, s{sG}, s{sW}\ns_cmp_lg_u32 s3, 0\ns_cbranch_scc1 L_fin")
    k(f"v_mov_b32 {v(TM+6)}, s{sTAG}\ns_mov_b64 exec, 1")
    k(f"buffer_store_dword {v(TM+6)}, off, {s(rWS,4)}, 0 sc1\ns_mov_b64 exec, -1")
    k("L_fin:")
    if diag:
        k("s_waitcnt vmcnt(0)")
        stamp("end")
        for i in range(len(seen)):
            k(f"v_writelane_b32 {v(DG)}, s{FINE[i]}, {16+i}")
        k(f"s_lshl_b32 s3, s2, 2\ns_add_u32 s3, s3, s{sW}\ns_lshl_b32 s3, s3, 8\ns_add_u32 s3, s3, {DIAG}\nv_lshlrev_b32 {v(TM)}, 2, {v(L)}")
        k(f"buffer_store_dword {v(DG)}, {v(TM)}, {s(rWS,4)}, s3 offen")
        if amplify:
            k(f"s_cmp_lg_u32 s2, {amp_wg}\ns_cbranch_scc1 L_end")
            k(f"v_readlane_b32 s12, {v(DG)}, 0\nv_readlane_b32 s13, {v(DG)}, {stamps.index(amplify)}\nv_readlane_b32 s14, {v(DG)}, {len(stamps)-1}\ns_nop 3")
            k("s_sub_u32 s13, s13, s12\ns_min_u32 s13, s13, 5000\ns_lshl_b32 s13, s13, 2")
            k("L_amp:\ns_memrealtime s[34:35]\ns_waitcnt lgkmcnt(0)\ns_sub_u32 s3, s34, s14\ns_cmp_lt_u32 s3, s13\ns_cbranch_scc1 L_amp")
    k("L_end:")
    k("s_endpgm")
    for text in cold:
        k(text)

    body, nops = pad(k.lines)
    hdr = open("parallel_sum__ssm_conv_s5__dense_activation_mish__prompt.s.ref").read().split("; Override")[0]
    text = hdr + "; @launch grid=(256,1,1) block=(256,1,1) lds=163840\n"
    text += f'.amdgcn_target "amdgcn-amd-amdhsa--gfx950"\n.text\n.globl {KNAME}\n.p2align 8\n.type {KNAME},@function\n{KNAME}:\n'
    text += "\n".join(body) + "\n"
    text += f""".section .rodata,"a"
.p2align 6
.amdhsa_kernel {KNAME}
  .amdhsa_next_free_vgpr 512
  .amdhsa_next_free_sgpr 102
  .amdhsa_accum_offset 256
  .amdhsa_group_segment_fixed_size 0
  .amdhsa_kernarg_size 128
  .amdhsa_user_sgpr_count 2
  .amdhsa_user_sgpr_kernarg_segment_ptr 1
  .amdhsa_system_sgpr_workgroup_id_x 1
.end_amdhsa_kernel
"""
    return text, dict(nops=nops, vgprs=V.next, stamps=stamps, seen=seen, lines=len(body), regs=V.names)


if __name__ == "__main__":
    import json
    kw = json.loads(sys.argv[2]) if len(sys.argv) > 2 else {}
    text, info = gen(**kw)
    open(sys.argv[1], "w").write(text)
    print({q: info[q] for q in ("nops", "vgprs", "lines")})
```

```python
import sys
from emit import K, Alloc, rng, pad

KNAME = "parallel_sum__ssm_conv_s5__dense_activation_mish__prompt_kernel"
EPOCH, STATS, XID, CS, EG, FLA, FLB, FLC, AF = 0, 0x10000, 0x20000, 0x30000, 0x40000, 0x80000, 0xA0000, 0xC0000, 0x100000
DIAG = 200 << 20
MT = 176 * 1024
SLOT = 40960
HIGH = 2 * SLOT
SCR = 32768
SCR_EX, SCR_CX = SCR + 1024, SCR + 4096
SCR_HT = SLOT + 32768
RING = {b: SLOT * q for b, q in enumerate((0, 1, 2, 3, 0, 1, 2, 3, 0, 1, 2))}
RES = 160
LOG2E = 0x3fb8aa3b
SPIN = 1 << 16


def weight(op):
    if callable(op):
        return 0.2
    w = 0.0
    for l in op[0].split("\n"):
        mn = l.split()[0]
        w += 2 if mn in ("v_exp_f32", "v_rcp_f32", "v_sin_f32", "v_cos_f32") else 0.3 if mn.startswith("s_") else 1
    return w


def cost(op):
    if callable(op):
        return 3
    c = 0.0
    for l in op[0].split("\n"):
        mn = l.split()[0]
        c += (8.3 if mn in ("v_exp_f32", "v_rcp_f32", "v_sin_f32", "v_cos_f32") else 13 if mn.startswith("buffer_") else
              1 if mn.startswith("s_") else 4.3)
    return c


def spread(ops, n):
    total = sum(map(weight, ops)) or 1
    out = [[] for _ in range(n)]
    acc = 0.0
    for op in ops:
        out[min(n - 1, int(acc / total * n + 1e-9))].append(op)
        acc += weight(op)
    return out


def spread_mem(ops, n):
    groups, cur = [], []
    for op in ops:
        cur.append(op)
        if not callable(op) and op[1] is not None:
            groups.append(cur); cur = []
    if cur:
        groups[-1] += cur
    out = [[] for _ in range(n)]
    for i, g in enumerate(groups):
        out[i * n // len(groups)] += g
    return out


def gen(mode="global", mapping="x8g4", diag=False, rot="none", amplify=None, amp_wg=0, out_flags="", ablate=(), l2pf=False,
        pf_at=4, gran_at=6, look=2, fine=(), p2_at=2, p3_at=5, dist=2, xs_at=4, tail_major=True, far_at=1, mt_pad=0, lite=3, trickle=True, budget=33, pre3=True, f3_at=1, p2_mid=False, backoff=0, early_a=0, trk_w2=None, code_pf=True, krot=False, brot=False, trk_c=None, nres=5, one=True, poll_pos="pre", a_first=2, af_mb=1, order="m", f12_at=0, m_r6=True, n_pre=2, flag_first=False, ep_pos="pre", a_lead=True, f12_late=40, f3_step=2, p3_issue=4, n_before=999):
    AF = af_mb << 20
    assert nres == 3 or dist == 2
    RESB = {0: 160, 1: 192, 2: 224} if nres == 3 else {0: 128, 1: 160, 2: 192, 3: 224, 4: 96}
    NA = 4 if nres == 3 else 3
    MT = 176 * 1024 + mt_pad
    npre = 2
    k = K()
    V = Alloc("v", 1, 256)
    v = lambda r, n=1: rng("v", r, n)
    a = lambda r, n=1: rng("a", r, n)
    s = lambda r, n=1: rng("s", r, n)
    st = "sc1" if mode == "global" else ""
    xid = mode != "global"

    sC, sG, sW, sROT, sM, sN, sTAG, sLOC = 4, 5, 6, 7, 8, 9, 10, 11
    t0, t1, t2, t3 = 12, 13, 14, 15
    pX, pLR, pLI, pBR, pBI, pCR, pCI, pDT, pDS, pW1, pB1, pW2, pOUT, pWS = 16, 18, 20, 22, 24, 26, 28, 30, 32, 36, 38, 40, 42, 46
    rX, rW1, rB, rE, rW2, rCR, rCI, rWS, rOUT = 48, 52, 56, 60, 64, 68, 72, 76, 80
    sXB, sBB, sWB, sA0, sP1, sKW, sCNT, sAF, sQ, sW12, sW13 = 84, 85, 86, 87, 88, 89, 90, 91, 92, 93, 94
    sHI, sXCC, sF, sP0, sROT2, sR3 = 98, 100, 97, 96, 17, 16
    sBE, sBX, sBL, sAE, sAX, sAL, sGE, sGL, sJ, sXD = 18, 19, 20, 21, 22, 23, 24, 25, 95, 101
    sD = 34

    L, LR, HF, L16, TAU = V("l"), V("lr"), V("hf"), V("l16"), V("tau")
    XD, CD, WD, W2D = V("xd", 4), V("cd", 4), V("wd", 4), V("w2d", 4)
    XR, WR, BQ, CR, W2R = V("xr", 4), V("wr", 4), V("bq", 4), V("cr", 8), V("w2r", 4)
    LAR, LAI, NLAI, L16R, L16I, NL16I, PWR, PWI, L2R, L2I, SCRR, SCI, CFR, NCFR, NCFI = [V(x) for x in
        "lar lai nlai l16r l16i nl16i pwr pwi l2r l2i scr sci cfr ncfr ncfi".split()]
    PR, PI, MF = V("pr"), V("pi"), V("mf")
    ACC, SS, T = V("acc", 64, 4), V("ss", 32, 4), V("t", 32, 4)
    XA, XB, WE = V("xa", 4, 4), V("xb", 4, 4), V("we", 12, 4)
    MI = V("mish", 16, 4)
    TM = V("tmp", 20, 4)
    C1, RS = V("c1", 1, 2), V("rs")
    DSK = V("dsk")
    BI = V("bias", 2)
    DG = V("diag")
    AL = V("al") if krot else L16
    FR = 128
    RSV, EK, XS = MI, TM, SS

    stamps = []
    def stamp(name):
        probe(name)
        if diag and (not fine or name == "end"):
            stamps.append(name)
            k(f"s_memrealtime s[{sD}:{sD+1}]\ns_memtime s[44:45]\ns_waitcnt lgkmcnt(0)")
            k.lg_done = len(k.lg)
            k(f"v_writelane_b32 {v(DG)}, s{sD}, {len(stamps)-1}\nv_writelane_b32 {v(DG)}, s44, {len(stamps)+31}")

    FINE = (26, 28, 30, 32, 36, 38, 40, 42)
    seen = []
    def probe(key):
        if key in fine and key not in seen:
            k(f"s_memtime s[{FINE[len(seen)]}:{FINE[len(seen)]+1}]")
            seen.append(key)

    def srd(d, p, nbytes):
        return f"s_mov_b32 s{d}, s{p}\ns_mov_b32 s{d+1}, s{p+1}\ns_mov_b32 s{d+2}, {nbytes:#x}\ns_mov_b32 s{d+3}, 0x20000"

    def mfma(d, x, y, c=None):
        k(f"v_mfma_f32_32x32x16_bf16 {v(d,16)}, {x}, {y}, {v(d,16) if c is None else c}")

    def untracked(text):
        n = len(k.vm)
        k(text)
        del k.vm[n:]

    def run(ops):
        for op in ops:
            if callable(op):
                op()
            else:
                k(*op)

    def ops_of(text, tag=None):
        return [(l, tag) for l in text.split("\n")]

    W = lambda **kw: (lambda: k.wait(**kw))

    k("s_cmp_ge_u32 s2, 256\ns_cbranch_scc1 L_end")
    k("s_load_dwordx16 s[16:31], s[0:1], 0\ns_load_dwordx16 s[32:47], s[0:1], 64")
    if diag:
        k("s_memrealtime s[12:13]\ns_memtime s[10:11]")
    A_, B_, C_, D_ = TM, TM + 1, TM + 2, TM + 3
    k(f"v_and_b32 {v(L)}, 63, v0\nv_lshrrev_b32 {v(A_)}, 6, v0\nv_and_b32 {v(LR)}, 31, v0")
    k(f"v_readfirstlane_b32 s{sW}, {v(A_)}")
    k(f"v_lshrrev_b32 {v(HF)}, 5, {v(L)}\nv_lshlrev_b32 {v(L16)}, 4, {v(L)}")
    k(f"s_and_b32 s14, s2, 7\ns_lshr_b32 s15, s2, 3\ns_mov_b32 s{sXD}, s14\ns_mov_b32 s{sJ}, s15")
    if code_pf:
        k(f"s_getpc_b64 s[96:97]\nL_pc:\ns_sub_u32 s96, s96, L_pc-{KNAME}\ns_subb_u32 s97, s97, 0")
        k(f"s_lshl_b32 s3, s{sW}, 5\ns_add_u32 s3, s3, s15\ns_lshl_b32 s3, s3, 8\nv_lshl_add_u32 {v(TM+19)}, {v(L)}, 2, s3\nv_min_u32 {v(TM+19)}, L_end-{KNAME}, {v(TM+19)}")
        k(f"global_load_dword a255, {v(TM+19)}, s[96:97]", "pf")
    if mapping == "rows":
        k(f"s_and_b32 s3, s15, 1\ns_lshl_b32 s{sC}, s14, 1\ns_or_b32 s{sC}, s{sC}, s3\ns_lshr_b32 s{sG}, s15, 1")
    elif mapping == "x8g4":
        k(f"s_lshr_b32 s3, s14, 2\ns_lshl_b32 s3, s3, 3\ns_and_b32 s{sC}, s15, 7\ns_or_b32 s{sC}, s{sC}, s3")
        k(f"s_and_b32 s3, s14, 3\ns_lshl_b32 s3, s3, 2\ns_lshr_b32 s{sG}, s15, 3\ns_or_b32 s{sG}, s{sG}, s3")
    elif mapping == "x4g8":
        k(f"s_lshr_b32 s3, s14, 1\ns_lshl_b32 s3, s3, 2\ns_and_b32 s{sC}, s15, 3\ns_or_b32 s{sC}, s{sC}, s3")
        k(f"s_and_b32 s3, s14, 1\ns_lshl_b32 s3, s3, 3\ns_lshr_b32 s{sG}, s15, 2\ns_or_b32 s{sG}, s{sG}, s3")
    k({"cg": f"s_add_u32 s{sROT}, s{sC}, s{sG}\ns_and_b32 s{sROT}, s{sROT}, 7", "none": f"s_mov_b32 s{sROT}, 0",
       "c": f"s_and_b32 s{sROT}, s{sC}, 7", "g": f"s_and_b32 s{sROT}, s{sG}, 7"}[rot])
    k(f"s_cmp_gt_u32 s{sG}, {lite}\ns_subb_u32 s{sF}, s{sG}, 0\ns_cmp_gt_u32 s{sG}, {lite + 8}\ns_subb_u32 s{sF}, s{sF}, 0")
    k(f"s_lshl_b32 s{sW12}, s{sW}, 12\ns_lshl_b32 s{sW13}, s{sW}, 13")
    k(f"v_lshrrev_b32 {v(A_)}, 3, {v(L)}")
    k(f"v_and_b32 {v(B_)}, 7, {v(L)}\nv_lshrrev_b32 {v(C_)}, 4, {v(L)}")
    k(f"v_xor_b32 {v(B_)}, {v(B_)}, {v(C_)}\nv_lshlrev_b32 {v(B_)}, 4, {v(B_)}")
    k(f"v_and_b32 {v(C_)}, 3, {v(A_)}\nv_lshl_add_u32 {v(C_)}, {v(HF)}, 4, {v(C_)}")
    k(f"v_lshl_add_u32 {v(XD)}, {v(C_)}, 10, {v(B_)}")
    k(f"v_xor_b32 {v(XD+1)}, 64, {v(XD)}\nv_add_u32 {v(XD+2)}, 6144, {v(XD)}")
    k(f"v_add_u32 {v(XD+3)}, 9216, {v(XD+1)}\nv_add_u32 {v(XD+1)}, 3072, {v(XD+1)}")
    k(f"v_lshl_add_u32 {v(CD)}, {v(A_)}, 10, {v(B_)}")
    k(f"v_xor_b32 {v(CD+1)}, 64, {v(CD)}\nv_add_u32 {v(CD+2)}, {2*7168}, {v(CD)}\nv_add_u32 {v(CD+3)}, {3*7168}, {v(CD+1)}\nv_add_u32 {v(CD+1)}, 7168, {v(CD+1)}")
    k(f"v_lshlrev_b32 {v(A_)}, 10, {v(HF)}\nv_lshl_add_u32 {v(A_)}, {v(LR)}, 4, {v(A_)}")
    k(f"s_lshl_b32 s{sXB}, s{sC}, 17\ns_lshl_b32 s3, s{sW}, 15\ns_add_u32 s{sXB}, s{sXB}, s3")
    k(f"s_and_b32 s3, s{sW}, 1\ns_lshl_b32 s3, s3, 14\ns_lshl_b32 s{sBB}, s{sG}, 15\ns_add_u32 s{sBB}, s{sBB}, s3")
    k(f"v_lshrrev_b32 {v(C_)}, 4, {v(L)}\nv_and_b32 {v(D_)}, 15, {v(L)}\nv_lshlrev_b32 {v(B_)}, 2, {v(C_)}")
    k(f"v_xor_b32 {v(D_)}, {v(D_)}, {v(B_)}\nv_lshlrev_b32 {v(D_)}, 4, {v(D_)}\nv_mul_u32_u24 {v(C_)}, 3584, {v(C_)}\nv_add_u32 {v(WD)}, {v(C_)}, {v(D_)}")
    for i in (1, 2, 3):
        k(f"v_add_u32 {v(WD+i)}, {i*13312}, {v(WD)}")
    k(f"s_mul_i32 s{sWB}, s{sW}, {16*3584}\ns_lshl_b32 s3, s{sF}, 8\ns_add_u32 s{sWB}, s{sWB}, s3")
    k(f"s_lshl_b32 s3, s{sC}, 4\ns_add_u32 s3, s3, s{sG}\ns_lshl_b32 s3, s3, 2\ns_add_u32 s3, s3, s{sW}\ns_lshl_b32 s{t2}, s3, 11")
    k(f"s_lshl_b32 s3, s{sG}, 5\nv_add_lshl_u32 {v(B_)}, {v(LR)}, s3, 1")
    k(f"s_lshl_b32 s3, s{sF}, 7\nv_add_lshl_u32 {v(C_)}, {v(L)}, s3, 1\nv_min_u32 {v(C_)}, 3454, {v(C_)}")
    k(f"s_and_b32 s{sN}, s{sG}, 7\ns_lshl_b32 s3, s{sN}, 1\ns_and_b32 s{t3}, s{sW}, 1\ns_or_b32 s3, s3, s{t3}\ns_lshl_b32 s3, s3, 5\nv_add_lshl_u32 {v(D_)}, {v(LR)}, s3, 1")
    k("s_waitcnt lgkmcnt(0)")
    if diag:
        k(f"v_writelane_b32 {v(DG)}, s12, 0\nv_writelane_b32 {v(DG)}, s10, 32"); stamps.append("start")
    k(srd(rX, pX, 2 << 20))
    SR = TM + 4
    PL = MI
    k(f"global_load_ushort {v(PL)}, {v(B_)}, {s(pLR,2)}\nglobal_load_ushort {v(PL+1)}, {v(B_)}, {s(pLI,2)}\nglobal_load_ushort {v(PL+2)}, {v(B_)}, {s(pDT,2)}", "par")
    k(f"buffer_load_dwordx4 {v(SR,4)}, {v(A_)}, {s(rX,4)}, s{t2} offen", "srow")
    k(f"buffer_load_dwordx4 {v(SR+4,4)}, {v(A_)}, {s(rX,4)}, s{t2} offen offset:512", "srow")
    k(f"s_load_dword s{sTAG}, s[{pWS}:{pWS+1}], {EPOCH}")
    k(srd(rW1, pW1, 512 * 3584))
    k(f"s_cmp_lt_u32 s{sW}, 2\ns_cselect_b32 s{rB}, s{pBR}, s{pBI}\ns_cselect_b32 s{rB+1}, s{pBR+1}, s{pBI+1}\ns_mov_b32 s{rB+2}, 0x80000\ns_mov_b32 s{rB+3}, 0x20000")

    def stage_ops(stage, full):
        slot = (stage % 4) * SLOT
        tag = f"st{stage}"
        ops = [(f"s_xor_b32 s3, s{sROT}, {stage}\ns_mul_i32 s{sKW}, s3, {64*3584}\ns_lshl_b32 s3, s3, 7\ns_add_u32 s{t1}, s3, s{sBB}\ns_add_u32 s{t0}, s3, s{sXB}\n"
                f"s_add_u32 s{sKW}, s{sKW}, s{sWB}\ns_add_u32 m0, s{sW12}, {slot}", None)]
        ops += [(f"buffer_load_dwordx4 {v(XD+i)}, {s(rX,4)}, s{t0} offen offset:{i*1024} lds", tag) for i in range(4)]
        ops += [(f"s_lshr_b32 s3, s{sW12}, 1\ns_add_u32 m0, s3, {slot + 32768}", None)]
        ops += [(f"buffer_load_dwordx4 {v(CD+i)}, {s(rB,4)}, s{t1} offen offset:{i*1024} lds", tag) for i in range(2)]
        if full:
            ops += [(f"s_add_u32 m0, s{sW12}, {slot + 16384}", None)]
            ops += [(f"buffer_load_dwordx4 {v(WD+i)}, {s(rW1,4)}, s{sKW} offen offset:{i*1024} lds", tag) for i in range(4)]
        return ops

    def turn(i, shift):
        if not brot:
            return f"s_mov_b32 s3, {i << shift}"
        return f"s_add_u32 s3, s{sR3}, {i}\ns_cmp_ge_u32 s3, 3\ns_cselect_b32 s{sCNT}, 3, 0\ns_sub_u32 s3, s3, s{sCNT}\ns_lshl_b32 s3, s3, {shift}"

    def ring_ops(b):
        if "pair" in ablate and b >= 6:
            return [(f"buffer_load_dword a254, {v(L16)}, {s(rW2,4)}, 0 offen", f"rb{b}")]
        tag = f"rb{b}"
        if b < 7:
            src, add = (sBE, b) if b < 3 else (sBX, 0) if b == 3 else (sBL, b - 4)
            head = f"s_mov_b32 s{t0}, s{src}" if b == 3 else turn(add, 17) + f"\ns_add_u32 s{t0}, s{src}, s3"
            if one:
                head = f"s_add_u32 s{t0}, s{sBE}, {b*65536}"
            step = f"s_xor_b32 s{t0}, s{t0}, 32768"
            r, D = rW2, W2D
        else:
            head = (f"s_lshl_b32 s{t0}, s{sN}, 1\ns_and_b32 s3, s{sW}, 1\ns_or_b32 s{t0}, s{t0}, s3\ns_lshl_b32 s{t0}, s{t0}, 15\n"
                    f"s_lshl_b32 s3, s{sW}, 8\ns_add_u32 s{t0}, s{t0}, s3")
            step = f"s_xor_b32 s{t0}, s{t0}, 32768"
            if brot:
                head += (f"\ns_xor_b32 s3, s{sN}, {b-7}\ns_bitcmp1_b32 s3, 1\ns_cselect_b32 s{rB}, s{rCI}, s{rCR}\ns_cselect_b32 s{rB+1}, s{rCI+1}, s{rCR+1}"
                         f"\ns_and_b32 s3, s3, 1\ns_lshl_b32 s3, s3, 7\ns_add_u32 s{t0}, s{t0}, s3")
                r, D = rB, CD
            else:
                if (b - 7) & 1:
                    head += f"\ns_add_u32 s{t0}, s{t0}, 128"
                r, D = (rCI if b >= 9 else rCR), CD
        ops = [(head + f"\ns_add_u32 m0, s{sW13}, {RING[b]}", None)]
        for i in range(8):
            flat = krot and b < 7
            if i == 4:
                ops.append((f"s_add_u32 m0, m0, {1024 if flat else 4096}\n{step}", None))
            elif i and flat:
                ops.append(("s_add_u32 m0, m0, 1024", None))
            ops.append((f"buffer_load_dwordx4 {v(D+(i&3))}, {s(r,4)}, s{t0} offen offset:{0 if flat else (i&3)*1024} lds", tag))
        return ops

    def par_loads():
        k(f"global_load_ushort {v(BI)}, {v(C_)}, {s(pB1,2)}\nglobal_load_ushort {v(BI+1)}, {v(C_)}, {s(pB1,2)} offset:128", "par2")
        k(f"global_load_ushort {v(DSK)}, {v(D_)}, {s(pDS,2)}", "par2")

    def early_setup():
        o = [(srd(rWS, pWS, 1 << 28), None), (f"s_mov_b32 s{sHI}, 0\ns_mov_b32 s{sHI+1}, -1" + (f"\ns_getreg_b32 s{sXCC}, hwreg(HW_REG_XCC_ID)\ns_and_b32 s{sXCC}, s{sXCC}, 15" if xid else ""), None)]
        P0, P1, P2 = TM + 12, TM + 13, TM + 14
        e = lambda text: o.extend(ops_of(text))
        e(f"v_bfe_u32 {v(P0)}, {v(LR)}, 1, 3\nv_xor_b32 {v(P0)}, {v(P0)}, {v(HF)}\nv_lshlrev_b32 {v(P0)}, 4, {v(P0)}\nv_lshl_add_u32 {v(P0)}, {v(LR)}, 7, {v(P0)}")
        e(f"v_add_u32 {v(XR)}, s{sW12}, {v(P0)}\nv_add_u32 {v(BQ)}, 32768, {v(P0)}\nv_add_u32 {v(CR)}, s{sW13}, {v(P0)}")
        for j in (1, 2, 3):
            e(f"v_xor_b32 {v(XR+j)}, {j << 5}, {v(XR)}\nv_xor_b32 {v(BQ+j)}, {j << 5}, {v(BQ)}")
        e(f"v_bfe_u32 {v(P0)}, {v(L)}, 2, 2\nv_and_b32 {v(P1)}, 3, {v(L)}\nv_lshlrev_b32 {v(P1)}, 3, {v(P1)}\nv_bfe_u32 {v(P2)}, {v(L)}, 4, 1\nv_lshl_add_u32 {v(P1)}, {v(P2)}, 5, {v(P1)}")
        e(f"v_lshl_add_u32 {v(P2)}, {v(HF)}, 3, {v(P0)}\nv_lshl_add_u32 {v(P2)}, {v(P2)}, 8, {v(P1)}\nv_lshl_add_u32 {v(P2)}, {v(P0)}, 6, {v(P2)}\nv_add_u32 {v(WR)}, 16384, {v(P2)}")
        for t in (1, 2, 3):
            e(f"v_xor_b32 {v(WR+t)}, {t << 6}, {v(WR)}")
        e(f"v_lshrrev_b32 {v(P2)}, 1, {v(P0)}\nv_lshl_add_u32 {v(P1)}, {v(P2)}, 6, {v(P1)}\nv_lshl_add_u32 {v(P2)}, {v(HF)}, 2, {v(P0)}\nv_lshl_add_u32 {v(P2)}, {v(P2)}, 7, {v(P1)}\nv_add_u32 {v(W2R)}, s{sW13}, {v(P2)}")
        g = lambda text: o.append((text, None))
        g(srd(rW2, pW2, 1792 * 1024)); g(srd(rCR, pCR, 1 << 19)); g(srd(rCI, pCI, 1 << 19)); g(srd(rOUT, pOUT, 4 << 20))
        g(f"s_lshl_b32 s3, s{sG}, 13\ns_add_u32 s{rE}, s{pWS}, s3\ns_addc_u32 s{rE+1}, s{pWS+1}, 0\ns_add_u32 s{rE}, s{rE}, {EG}\ns_addc_u32 s{rE+1}, s{rE+1}, 0\n"
          f"s_mov_b32 s{rE+2}, 8192\ns_mov_b32 s{rE+3}, 0x20000")
        g(f"s_lshr_b32 s3, s{sG}, 3\ns_lshl_b32 s{sM}, s{sC}, 1\ns_or_b32 s{sM}, s{sM}, s3")
        g(f"s_and_b32 s{sR3}, s{sN}, 3\ns_cmp_eq_u32 s{sR3}, 3\ns_cselect_b32 s{sR3}, 0, s{sR3}")
        g(f"s_cmp_eq_u32 s{sW}, 3\ns_cselect_b32 s3, 1, 0\ns_lshl_b32 s{sGE}, s{sW}, 2\ns_sub_u32 s{sGE}, s{sGE}, s3\ns_mul_i32 s{sGL}, s{sW}, 3\ns_add_u32 s{sGL}, s{sGL}, s3")
        g(f"s_lshl_b32 s{sAE}, s{sGE}, 13\ns_lshl_b32 s{sAL}, s{sGL}, 13\ns_add_u32 s{sAL}, s{sAL}, 4096\ns_add_u32 s{sAX}, s{sAE}, {6*4096}\ns_add_u32 s3, s{sAL}, 8192\n"
          f"s_cmp_lt_u32 s{sW}, 2\ns_cselect_b32 s{sAX}, s{sAX}, s{sAL}\ns_cselect_b32 s{sAL}, s{sAL}, s3")
        if one:
            g(f"s_mul_i32 s{sAE}, s{sW}, {7*4096}\ns_mul_i32 s{sGE}, s{sW}, 7\ns_lshr_b32 s{sGE}, s{sGE}, 1")
        g(f"s_lshl_b32 s3, s{sN}, 7\ns_lshl_b32 s{sBE}, s{sAE}, 4\ns_lshl_b32 s{sBX}, s{sAX}, 4\ns_lshl_b32 s{sBL}, s{sAL}, 4\n"
          f"s_add_u32 s{sBE}, s{sBE}, s3\ns_add_u32 s{sBX}, s{sBX}, s3\ns_add_u32 s{sBL}, s{sBL}, s3")
        g(f"s_lshl_b32 s3, s{sC}, 2\ns_add_u32 s3, s3, s{sW}\ns_mul_i32 s{sAF}, s3, {MT}\ns_add_u32 s{sAF}, s{sAF}, {AF}")
        return o

    def row_stats():
        o = []
        def k2(text, tag=None, atomic=False):
            o.extend([(text, tag)] if atomic or tag else ops_of(text))
        S1, S2, U1, U2 = TM, TM + 1, TM + 2, TM + 3
        k2(f"v_mov_b32 {v(S1)}, 0\nv_mov_b32 {v(S2)}, 0\ns_mov_b32 s{t3}, 0x3f803f80")
        o.append(W(vm="srow"))
        for i in range(8):
            k2(f"v_dot2c_f32_bf16 {v(S1)}, s{t3}, {v(SR+i)}\nv_dot2c_f32_bf16 {v(S2)}, {v(SR+i)}, {v(SR+i)}")
        for r in (8, 4, 2, 1):
            k2(f"v_add_f32_dpp {v(S1)}, {v(S1)}, {v(S1)} row_ror:{r} row_mask:0xf bank_mask:0xf")
            k2(f"v_add_f32_dpp {v(S2)}, {v(S2)}, {v(S2)} row_ror:{r} row_mask:0xf bank_mask:0xf")
        k2(f"v_mov_b32 {v(U1)}, {v(S1)}\nv_mov_b32 {v(U2)}, {v(S2)}")
        k2(f"v_permlane16_swap_b32 {v(S1)}, {v(U1)}\nv_permlane16_swap_b32 {v(S2)}, {v(U2)}")
        k2(f"v_add_f32 {v(S1)}, {v(S1)}, {v(U1)}\nv_add_f32 {v(S2)}, {v(S2)}, {v(U2)}")
        k2(f"v_mul_f32 {v(S1)}, 0x3b000000, {v(S1)}\nv_mul_f32 {v(S2)}, 0x3b000000, {v(S2)}")
        k2(f"v_fma_f32 {v(S2)}, -{v(S1)}, {v(S1)}, {v(S2)}\nv_max_f32 {v(S2)}, 0, {v(S2)}")
        k2(f"v_cvt_pk_bf16_f32 {v(S2)}, {v(S2)}, {v(S2)}\nv_and_b32 {v(S2)}, 0xffff0000, {v(S2)}\nv_add_f32 {v(S2)}, 0x3727c5ac, {v(S2)}")
        k2(f"v_cvt_pk_bf16_f32 {v(S2)}, {v(S2)}, {v(S2)}\nv_and_b32 {v(S2)}, 0xffff0000, {v(S2)}\nv_sqrt_f32 {v(S2)}, {v(S2)}")
        k2(f"v_cvt_pk_bf16_f32 {v(SR)}, {v(S1)}, {v(S2)}")
        k2("s_waitcnt lgkmcnt(0)")
        k2(f"s_mul_i32 s{sTAG}, s{sTAG}, 0x9e3779b1\ns_add_u32 s{sTAG}, s{sTAG}, 0x7f4a7c15")
        k2(f"v_mov_b32 {v(SR+1)}, s{sTAG}\nv_lshlrev_b32 {v(U1)}, 3, {v(HF)}")
        if xid:
            k2(f"v_mov_b32 {v(SR+2)}, s{sXCC}\nv_mov_b32 {v(SR+3)}, s{sTAG}")
        k2(f"s_lshr_b32 s{t2}, s{t2}, 7\ns_add_u32 s{t2}, s{t2}, {STATS}")
        if xid:
            k2(f"s_lshl_b32 s{t3}, s{sC}, 4\ns_add_u32 s{t3}, s{t3}, s{sG}\ns_lshl_b32 s{t3}, s{t3}, 3\ns_add_u32 s{t3}, s{t3}, {XID}")
        def publish():
            k("s_mov_b32 exec_lo, 1\ns_mov_b32 exec_hi, 1")
            k(f"buffer_store_dwordx2 {v(SR,2)}, {v(U1)}, {s(rWS,4)}, s{t2} offen sc1", "pub0")
            if xid:
                k(f"buffer_store_dwordx2 {v(SR+2,2)}, off, {s(rWS,4)}, s{t3} sc1", "pub0")
            k("s_mov_b64 exec, -1")
            stamp("stats")
        o.append(publish)
        return o

    def late_setup(full):
        o = []
        e = lambda text: o.extend(ops_of(text))
        g = lambda text: o.append((text, None))
        P0, P1, P2 = TM + 12, TM + 13, TM + 14
        if krot:
            g(f"s_add_u32 s{sROT2}, s{sC}, s{sN}\ns_and_b32 s{sROT2}, s{sROT2}, 3\ns_lshl_b32 s3, s{sROT2}, 5\nv_xor_b32 {v(CR)}, s3, {v(CR)}")
        for j in (1, 2, 3):
            e(f"v_xor_b32 {v(CR+j)}, {j << 5}, {v(CR)}")
        for j in range(4):
            e(f"v_add_u32 {v(CR+4+j)}, {HIGH}, {v(CR+j)}")
        e(f"v_xor_b32 {v(W2R+1)}, 64, {v(W2R)}\nv_add_u32 {v(W2R+2)}, {HIGH}, {v(W2R)}\nv_add_u32 {v(W2R+3)}, {HIGH}, {v(W2R+1)}")
        e(f"v_lshrrev_b32 {v(P0)}, 3, {v(L)}\nv_and_b32 {v(P1)}, 7, {v(L)}\nv_bfe_u32 {v(P2)}, {v(L)}, 4, 1\nv_lshlrev_b32 {v(P2)}, 2, {v(P2)}")
        e(f"v_xor_b32 {v(P1)}, {v(P1)}, {v(P2)}\nv_lshlrev_b32 {v(P1)}, 4, {v(P1)}")
        g(f"s_and_b32 s3, s{sW}, 1\ns_lshl_b32 s3, s3, 6\nv_xor_b32 {v(P1)}, s3, {v(P1)}")
        e(f"v_lshl_add_u32 {v(W2D)}, {v(P0)}, 10, {v(P1)}")
        if krot:
            g(f"s_and_b32 s3, s{sROT2}, 1\ns_lshl_b32 s3, s3, 14\nv_xor_b32 {v(W2D)}, s3, {v(W2D)}")
            e(f"v_xor_b32 {v(W2D+2)}, 0x4000, {v(W2D)}\nv_add_u32 {v(W2D+1)}, 8192, {v(W2D)}\nv_add_u32 {v(W2D+3)}, 8192, {v(W2D+2)}")
            g(f"s_lshr_b32 s3, s{sROT2}, 1\ns_lshl_b32 s3, s3, 15\ns_add_u32 s{sBE}, s{sBE}, s3\ns_add_u32 s{sBX}, s{sBX}, s3\ns_add_u32 s{sBL}, s{sBL}, s3")
        else:
            for i in (1, 2, 3):
                e(f"v_add_u32 {v(W2D+i)}, {i*7168}, {v(W2D)}")
        e(f"v_bfe_u32 {v(P0)}, {v(LR)}, 2, 1\nv_lshrrev_b32 {v(P1)}, 3, {v(LR)}\nv_and_b32 {v(P2)}, 3, {v(LR)}")
        e(f"v_lshl_add_u32 {v(P2)}, {v(P1)}, 2, {v(P2)}\nv_lshl_add_u32 {v(TAU)}, {v(P0)}, 4, {v(P2)}")
        for z in (XA + 2, XA + 3, XB + 2, XB + 3, WE + 2, WE + 3, WE + 6, WE + 7, WE + 10, WE + 11):
            e(f"v_mov_b32 {v(z)}, 0")
        LRE, LIM, DT, A2, BRV, X0, X1, X2 = range(PL, PL + 8)
        o.append(W(vm="par2"))
        e(f"v_lshlrev_b32 {v(LRE)}, 16, {v(LRE)}\nv_lshlrev_b32 {v(LIM)}, 16, {v(LIM)}\nv_lshlrev_b32 {v(DT)}, 16, {v(DT)}\nv_lshlrev_b32 {v(DSK)}, 16, {v(DSK)}")
        e(f"v_mul_f32 {v(DT)}, {LOG2E:#x}, {v(DT)}\nv_exp_f32 {v(DT)}, {v(DT)}\nv_cvt_pk_bf16_f32 {v(DT)}, {v(DT)}, {v(DT)}\nv_and_b32 {v(DT)}, 0xffff0000, {v(DT)}")
        e(f"v_mul_f32 {v(A2)}, {v(DT)}, {v(LRE)}\nv_mul_f32 {v(BRV)}, {v(DT)}, {v(LIM)}\nv_mul_f32 {v(A2)}, {LOG2E:#x}, {v(A2)}\nv_mul_f32 {v(BRV)}, 0.15915494, {v(BRV)}")
        def cpow(n, dr, di):
            e(f"v_mul_f32 {v(X0)}, {n}, {v(A2)}\nv_mul_f32 {v(X1)}, {n}, {v(BRV)}\nv_exp_f32 {v(X0)}, {v(X0)}\nv_fract_f32 {v(X1)}, {v(X1)}")
            e(f"v_cos_f32 {v(dr)}, {v(X1)}\nv_sin_f32 {v(di)}, {v(X1)}\nv_mul_f32 {v(dr)}, {v(dr)}, {v(X0)}\nv_mul_f32 {v(di)}, {v(di)}, {v(X0)}")
        cpow("1.0", LAR, LAI); cpow("0x41800000", L16R, L16I); cpow("0x43800000", L2R, L2I)
        g(f"s_lshl_b32 s3, s{sW}, 1\nv_add_u32 {v(X2)}, s3, {v(HF)}")
        e(f"v_lshlrev_b32 {v(X2)}, 4, {v(X2)}\nv_cvt_f32_u32 {v(X2)}, {v(X2)}")
        cpow(v(X2), PWR, PWI)
        g(f"s_lshl_b32 s3, s{sW}, 2\nv_add_u32 {v(X2)}, s3, {v(HF)}")
        e(f"v_lshlrev_b32 {v(X2)}, 7, {v(X2)}\nv_cvt_f32_u32 {v(X2)}, {v(X2)}")
        cpow(v(X2), SCRR, SCI)
        e(f"v_sub_f32 {v(NLAI)}, 0, {v(LAI)}\nv_sub_f32 {v(NL16I)}, 0, {v(L16I)}")
        e(f"v_mul_f32 {v(X0)}, {v(LRE)}, {v(LRE)}\nv_fmac_f32 {v(X0)}, {v(LIM)}, {v(LIM)}\nv_rcp_f32 {v(X0)}, {v(X0)}\nv_subrev_f32 {v(X1)}, 1.0, {v(LAR)}")
        e(f"v_mul_f32 {v(CFR)}, {v(X1)}, {v(LRE)}\nv_mul_f32 {v(NCFI)}, {v(X1)}, {v(LIM)}\nv_mul_f32 {v(X0)}, 0x4038aa3b, {v(X0)}")
        e(f"v_fmac_f32 {v(CFR)}, {v(LAI)}, {v(LIM)}\nv_fmac_f32 {v(NCFI)}, {v(NLAI)}, {v(LRE)}")
        e(f"v_mul_f32 {v(CFR)}, {v(CFR)}, {v(X0)}\nv_mul_f32 {v(NCFI)}, {v(NCFI)}, {v(X0)}\nv_sub_f32 {v(NCFR)}, 0, {v(CFR)}")
        e(f"v_mul_f32 {v(T)}, {v(CFR)}, {v(LAR)}\nv_mul_f32 {v(T+16)}, {v(CFR)}, {v(LAI)}\nv_fmac_f32 {v(T)}, {v(NCFI)}, {v(LAI)}\nv_fma_f32 {v(T+16)}, -{v(NCFI)}, {v(LAR)}, {v(T+16)}")
        for i in range(1, 16):
            e(f"v_mul_f32 {v(T+i)}, {v(T+i-1)}, {v(LAR)}\nv_mul_f32 {v(T+16+i)}, {v(T+15+i)}, {v(LAR)}")
            e(f"v_fmac_f32 {v(T+i)}, {v(T+15+i)}, {v(NLAI)}\nv_fmac_f32 {v(T+16+i)}, {v(T+i-1)}, {v(LAI)}")
        return o

    GS, GX, GA = TM, TM + 2, TM + 16

    def gran_loads(full):
        ops = [(f"s_lshr_b32 s{t2}, s{sXB}, 7\ns_add_u32 s{t2}, s{t2}, {STATS}\nv_lshlrev_b32 {v(GA)}, 3, {v(TAU)}", None),
               (f"buffer_load_dwordx2 {v(GS,2)}, {v(GA)}, {s(rWS,4)}, s{t2} offen sc1", "gran"),
               (f"s_lshl_b32 s{t2}, s{sC}, 7\ns_add_u32 s{t2}, s{t2}, {XID}\nv_and_b32 {v(GA)}, 15, {v(L)}\nv_lshlrev_b32 {v(GA)}, 3, {v(GA)}", None),
               (f"buffer_load_dwordx2 {v(GX,2)}, {v(GA)}, {s(rWS,4)}, s{t2} offen sc1", "gran"),
               (f"s_lshl_b32 s{t2}, s{sG}, 8\ns_add_u32 s{t2}, s{t2}, {CS + 1792*8}\nv_lshlrev_b32 {v(GA)}, 12, {v(HF)}\nv_lshl_add_u32 {v(GA)}, {v(LR)}, 3, {v(GA)}", None),
               (f"buffer_load_dwordx2 {v(WE+8,2)}, {v(GA)}, {s(rWS,4)}, s{t2} offen sc1", "gran")]
        if not xid:
            del ops[2:4]
        if full:
            ops += [(f"s_lshl_b32 s{t2}, s{sF}, 10\ns_add_u32 s{t2}, s{t2}, {CS}\nv_lshlrev_b32 {v(GA)}, 3, {v(L)}", None),
                    (f"buffer_load_dwordx2 {v(WE,2)}, {v(GA)}, {s(rWS,4)}, s{t2} offen sc1", "gran"),
                    (f"buffer_load_dwordx2 {v(WE+4,2)}, {v(GA)}, {s(rWS,4)}, s{t2} offen offset:512 sc1", "gran")]
        return ops

    cold = []
    def spin_check(name, tag, mismatch, reload):
        again, ok = k.label(name + "_again"), k.label(name + "_ok")
        k.wait(vm=tag)
        k(mismatch)
        k(f"s_mov_b32 s{sCNT}, 0\ns_nop 0\ns_cbranch_vccnz {again}")
        k(ok + ":")
        loads = "\n".join(op[0] for op in reload)
        if backoff:
            loads = f"s_sleep {backoff}\n" + loads
        cold.append(f"{again}:\n{loads}\ns_waitcnt vmcnt(0)\n{mismatch}\ns_add_u32 s{sCNT}, s{sCNT}, 1\ns_cmp_gt_u32 s{sCNT}, {SPIN}\n"
                    f"s_cbranch_scc1 {ok}\ns_cbranch_vccnz {again}\ns_branch {ok}")

    def tags_differ(regs, tmp):
        t = f"v_xor_b32 {v(tmp)}, s{sTAG}, {v(regs[0])}\n"
        for r in regs[1:]:
            t += f"v_xor_b32 {v(tmp+1)}, s{sTAG}, {v(r)}\nv_or_b32 {v(tmp)}, {v(tmp)}, {v(tmp+1)}\n"
        return t + f"v_cmp_ne_u32 vcc, 0, {v(tmp)}"

    rsv_reads = lambda: [(f"ds_read_b128 {v(RSV+4*q,4)}, {v(GA+2)} offset:{q*16}", "rsv") for q in range(4)]

    def gran_check(full):
        spin_check("gran", "gran", tags_differ([GS + 1, WE + 9] + ([GX + 1] if xid else []) + ([WE + 1, WE + 5] if full else []), GA), gran_loads(full))
        if xid:
            k(f"v_cmp_ne_u32 vcc, s{sXCC}, {v(GX)}")
        k(f"v_and_b32 {v(GA)}, 0xffff, {v(GS)}\nv_and_b32 {v(GA+1)}, 0xffff0000, {v(GS)}\nv_lshlrev_b32 {v(MF)}, 16, {v(GS)}")
        if xid:
            k(f"s_cmp_eq_u64 vcc, 0\ns_cselect_b32 s{sLOC}, 1, 0")
        k(f"v_rcp_f32 {v(RS)}, {v(GA+1)}\nv_xor_b32 {v(GA)}, 0x8000, {v(GA)}\nv_lshrrev_b32 {v(GA+1)}, 16, {v(GS)}\nv_lshl_or_b32 {v(GA)}, {v(GA)}, 16, {v(GA)}")
        k(f"v_cndmask_b32 {v(XA)}, {v(GA)}, 0, {s(sHI,2)}\nv_cndmask_b32 {v(XA+1)}, {v(GA+1)}, 0, {s(sHI,2)}")
        k(f"v_cndmask_b32 {v(XB)}, 0, {v(GA)}, {s(sHI,2)}\nv_cndmask_b32 {v(XB+1)}, 0, {v(GA+1)}, {s(sHI,2)}\nv_mov_b32 {v(WE+9)}, 0")
        k(f"s_lshr_b32 s3, s{sW12}, 5\ns_add_u32 s3, s3, {SCR}\nv_lshlrev_b32 {v(GA)}, 9, {v(HF)}\nv_lshl_add_u32 {v(GA)}, {v(TAU)}, 2, {v(GA)}\nv_add_u32 {v(GA)}, s3, {v(GA)}")
        k(f"v_lshlrev_b32 {v(GA+2)}, 6, {v(HF)}\nv_add_u32 {v(GA+2)}, s3, {v(GA+2)}")
        mfma(SS, v(XA, 4), v(WE + 8, 4)); mfma(SS + 16, v(XB, 4), v(WE + 8, 4))
        k(f"v_cndmask_b32 {v(GA+1)}, {v(RS)}, {v(MF)}, {s(sHI,2)}\nv_mul_f32 {v(C1)}, {LOG2E:#x}, {v(RS)}")
        k(f"ds_write_b32 {v(GA)}, {v(GA+1)}", "stw")
        if not (full and order == "m"):
            run(rsv_reads())
        if full:
            k(f"v_mov_b32 {v(WE+1)}, {v(BI)}\nv_mov_b32 {v(WE+5)}, {v(BI+1)}\ns_lshl_b32 s3, s{sF}, 13\ns_add_u32 s{sA0}, s{sAF}, s3")
            for t in range(4):
                mfma(ACC + 16 * t, v(WE + 4 * (t >> 1), 4), v(XB if t & 1 else XA, 4))

    def pf_ops():
        if not l2pf:
            return [("s_nop 0", "none")]
        P, Q = TM + 18, TM + 19
        rows = mapping != "x8g4"
        o = []
        for h in range(2 if rows else 1):
            col = f"s_mov_b32 s3, {h*4}" if rows else f"s_and_b32 s3, s{sXD}, 1\ns_lshl_b32 s3, s3, 2"
            skip = f"v_cmp_eq_u32 vcc, {lite}, {v(Q)}\nv_lshrrev_b32 {v(P)}, 2, {v(L)}\nv_min_u32 {v(P)}, 13, {v(P)}\nv_subbrev_co_u32 {v(Q)}, vcc, 0, {v(Q)}, vcc\n" if trickle else \
                   f"v_lshrrev_b32 {v(P)}, 2, {v(L)}\nv_min_u32 {v(P)}, 13, {v(P)}\n"
            o += [(f"{col}\nv_and_b32 {v(Q)}, 3, {v(L)}\nv_add_u32 {v(Q)}, s3, {v(Q)}\n{skip}v_lshlrev_b32 {v(Q)}, 7, {v(Q)}\nv_lshl_add_u32 {v(P)}, {v(P)}, 10, {v(Q)}\n"
                   f"s_lshl_b32 s{t2}, s{sJ}, 2\ns_add_u32 s{t2}, s{t2}, s{sW}\ns_mul_i32 s{t2}, s{t2}, {14*1024}", None),
                  (f"buffer_load_dword a255, {v(P)}, {s(rW2,4)}, s{t2} offen", "pf2")]
        half = "" if rows else f"s_and_b32 s3, s{sXD}, 1\ns_lshl_b32 s3, s3, 18\ns_add_u32 s{t2}, s{t2}, s3\n"
        o += [(f"s_lshl_b32 s{t2}, s{sJ}, 2\ns_add_u32 s{t2}, s{t2}, s{sW}\ns_lshl_b32 s{t2}, s{t2}, {12 if rows else 11}\n{half}"
               f"v_and_b32 {v(P)}, {31 if rows else 15}, {v(L)}\nv_lshlrev_b32 {v(P)}, 7, {v(P)}", None),
              (f"buffer_load_dword a255, {v(P)}, {s(rCR,4)}, s{t2} offen", "pf2"),
              (f"buffer_load_dword a255, {v(P)}, {s(rCI,4)}, s{t2} offen", "pf2")]
        return o

    def far_ops():
        if far_at is None:
            return []
        P, Q = TM + 18, TM + 19
        return [(f"s_lshl_b32 s{t2}, s2, 2\ns_add_u32 s{t2}, s{t2}, s{sW}\ns_mul_i32 s3, s{t2}, {14*128}\nv_lshrrev_b32 {v(P)}, 2, {v(L)}\nv_min_u32 {v(Q)}, 13, {v(P)}\nv_lshlrev_b32 {v(Q)}, 7, {v(Q)}\n"
                 f"buffer_load_dword a255, {v(Q)}, {s(rW2,4)}, s3 offen", "far"),
                (f"s_lshl_b32 s{t2}, s{t2}, 9\nv_and_b32 {v(P)}, 3, {v(P)}\nv_lshlrev_b32 {v(P)}, 7, {v(P)}\nbuffer_load_dword a255, {v(P)}, {s(rCR,4)}, s{t2} offen", "far"),
                (f"buffer_load_dword a255, {v(P)}, {s(rCI,4)}, s{t2} offen", "far")]

    def weave(mem, val):
        n = sum(1 for op in mem if not callable(op) and op[1] is not None)
        for m, c in zip(spread_mem(mem, n), spread(val, n)):
            run(m); run(c)

    def stage_reads(b):
        hi = RING[b] >= HIGH
        return [W(vm=f"rb{b}")] + [(f"ds_read_b64_tr_b16 {a(RESB[b]+8*j+4*c+2*rd,2)}, {v(W2R+2*hi+c)} offset:{RING[b] - hi*HIGH + j*2048 + rd*1024}", f"sr{b}")
                                   for j in range(4) for c in range(2) for rd in range(2)]

    EA, EB, EX0, EX1, E0 = XD, XD + 1, XD + 2, XD + 3, TM
    HA, HB, XW, XQ = WD, WD + 1, WD + 2, WD + 3
    def e_loads():
        return [(f"buffer_load_dwordx4 {v(E0,4)}, {v(EA)}, {s(rE,4)}, 0 offen sc1", "eg"),
                (f"buffer_load_dwordx4 {v(E0+4,4)}, {v(EB)}, {s(rE,4)}, 0 offen sc1", "eg")]

    def epi_addr():
        o = []
        e = lambda text: o.extend(ops_of(text))
        P = TM + 12
        o.append((f"s_lshl_b32 s3, s{sW}, 2\ns_sub_u32 s3, s{sC}, s3\ns_sub_u32 s3, s3, 1\nv_sub_u32 {v(EA)}, s3, {v(HF)}", None))
        e(f"v_subrev_u32 {v(EB)}, 2, {v(EA)}\nv_ashrrev_i32 {v(EX0)}, 31, {v(EA)}\nv_ashrrev_i32 {v(EX1)}, 31, {v(EB)}\n"
          f"v_bfi_b32 {v(EX0)}, {v(EX0)}, 0, s{sTAG}\nv_bfi_b32 {v(EX1)}, {v(EX1)}, 0, s{sTAG}\nv_lshlrev_b32 {v(P)}, 4, {v(LR)}\n"
          f"v_lshl_add_u32 {v(EA)}, {v(EA)}, 9, {v(P)}\nv_lshl_add_u32 {v(EB)}, {v(EB)}, 9, {v(P)}")
        o.append((f"s_lshr_b32 s3, s{sW12}, 3\ns_add_u32 s3, s3, {SCR_EX}\nv_lshl_add_u32 {v(XW)}, {v(L)}, 3, s3", None))
        e(f"v_lshlrev_b32 {v(XQ)}, 3, {v(LR)}\nv_add_u32 {v(XQ)}, {SCR_EX}, {v(XQ)}")
        o.append((f"s_lshr_b32 s3, s{sW}, 1\ns_mul_i32 s3, s3, {SLOT - 8192}\ns_add_u32 s3, s3, s{sW12}\ns_add_u32 s{sKW}, s3, {SCR_HT}", None))
        e(f"v_lshlrev_b32 {v(HA)}, 5, {v(HF)}\nv_lshl_add_u32 {v(HA)}, {v(LR)}, 6, {v(HA)}\nv_add_u32 {v(HA)}, s{sKW}, {v(HA)}")
        e(f"v_bfe_u32 {v(HB)}, {v(L)}, 2, 2\nv_lshl_add_u32 {v(HB)}, {v(HF)}, 3, {v(HB)}\nv_lshlrev_b32 {v(HB)}, 6, {v(HB)}")
        e(f"v_and_b32 {v(P)}, 1, {v(L)}\nv_lshl_add_u32 {v(HB)}, {v(P)}, 5, {v(HB)}\nv_bfe_u32 {v(P)}, {v(L)}, 1, 1\nv_lshl_add_u32 {v(HB)}, {v(P)}, 3, {v(HB)}")
        e(f"v_bfe_u32 {v(P)}, {v(L)}, 4, 1\nv_lshl_add_u32 {v(HB)}, {v(P)}, 4, {v(HB)}\nv_add_u32 {v(HB)}, s{sKW}, {v(HB)}")
        o.append((f"s_lshr_b32 s3, s{sG}, 2\ns_lshl_b32 s3, s3, 3\ns_and_b32 s{sKW}, s{sG}, 3\ns_add_u32 s3, s3, s{sKW}\ns_lshl_b32 s3, s3, 11\ns_add_u32 s{sKW}, s{sAF}, s3\ns_add_u32 s{sKW}, s{sKW}, {112*1024}", None))
        o.append((f"s_lshl_b32 s3, s{sM}, 1\ns_lshr_b32 s{sP0}, s{sW}, 1\ns_add_u32 s{sP0}, s3, s{sP0}\ns_xor_b32 s{sP1}, s{sP0}, 1\n"
                  f"s_mul_i32 s{sP0}, s{sP0}, {MT}\ns_mul_i32 s{sP1}, s{sP1}, {MT}\ns_add_u32 s{sP0}, s{sP0}, {AF}\ns_add_u32 s{sP1}, s{sP1}, {AF}", None))
        return o

    def gemm1(full, pfx):
        nm = 6 if full else 2
        base_of = lambda stg: ((stg % 4) // 2) * HIGH
        def reads(n):
            stg, j = divmod(n, 4)
            off = (stg % 4) * SLOT - base_of(stg)
            f = FR + 28 * (n & 1)
            d = base_of(stg) - base_of(stg - 1) if stg else 0
            adj = lambda r, on=True: f"v_add_u32 {v(r)}, {d & 0xffffffff:#x}, {v(r)}\n" if d and on else ""
            o = [(adj(XR + j) + f"ds_read_b128 {a(f,4)}, {v(XR+j)} offset:{off}", f"ra{n}")]
            o += [(adj(BQ + j, c == 0) + f"ds_read_b128 {a(f+4+4*c,4)}, {v(BQ+j)} offset:{off + c*4096}", f"ra{n}") for c in range(2)]
            if full:
                o += [(adj(WR + t, j == 0 and rd == 0) + f"ds_read_b64_tr_b16 {a(f+12+4*t+2*rd,2)}, {v(WR+t)} offset:{off + j*4096 + rd*1024}", f"ra{n}" if t == 0 else f"rb_{n}")
                      for t in range(4) for rd in range(2)]
            return o
        if look == 2:
            mem = {sg: stage_ops(sg + 2, full) for sg in range(6)}
            if pre3:
                mem[0] = []
            mem.update({6: ring_ops(0), 7: ring_ops(1)})
        else:
            ramp = spread_mem(sum((stage_ops(sg, full) for sg in range(2, 6)), []), 3)
            mem = {0: ramp[0], 1: ramp[1], 2: ramp[2], 3: stage_ops(6, full), 4: stage_ops(7, full), 5: ring_ops(0), 6: ring_ops(1), 7: ring_ops(2)}
        mem[pf_at] = pf_ops() + mem[pf_at]
        if far_at is not None:
            mem[far_at] = mem[far_at] + far_ops()
        mem[gran_at] = gran_loads(full) + mem[gran_at]
        if trk_w2 is not None and mapping == "x8g4":
            P, Q = TM + 18, TM + 19
            for q in range(4):
                head = (f"s_and_b32 s3, s{sXD}, 1\ns_lshl_b32 s3, s3, 2\nv_bfe_u32 {v(Q)}, {v(L)}, 2, 2\nv_add_u32 {v(Q)}, s3, {v(Q)}\nv_cmp_eq_u32 vcc, {lite}, {v(Q)}\n"
                        f"v_lshrrev_b32 {v(P)}, 4, {v(L)}\nv_lshlrev_b32 {v(P)}, 10, {v(P)}\nv_subbrev_co_u32 {v(Q)}, vcc, 0, {v(Q)}, vcc\nv_lshl_add_u32 {v(P)}, {v(Q)}, 7, {v(P)}\n"
                        f"s_lshl_b32 s{sJ}, s{sJ}, 2\ns_add_u32 s{sJ}, s{sJ}, s{sW}\ns_mul_i32 s{sJ}, s{sJ}, {14*1024}\n") if q == 0 else f"s_add_u32 s{sJ}, s{sJ}, {4096 if q < 3 else 2048}\n"
                mem[trk_w2 + q] = mem[trk_w2 + q] + [(head + f"buffer_load_dword a255, {v(P)}, {s(rW2,4)}, s{sJ} offen", "trk")]
        if trk_c is not None:
            P = TM + 19
            nrow = 2 if mapping == "x8g4" else 4
            half = f"s_and_b32 s3, s{sXD}, 1\ns_lshl_b32 s3, s3, 18\ns_add_u32 s{t2}, s{t2}, s3\n" if mapping == "x8g4" else ""
            mem[trk_c] = mem[trk_c] + [
                (f"s_lshl_b32 s{t2}, s{sJ}, 2\ns_add_u32 s{t2}, s{t2}, s{sW}\ns_mul_i32 s{t2}, s{t2}, {nrow*1024}\n{half}v_bfe_u32 {v(P)}, {v(L)}, 4, {nrow//2}\nv_lshlrev_b32 {v(P)}, 10, {v(P)}\n"
                 f"buffer_load_dword a255, {v(P)}, {s(rCR,4)}, s{t2} offen offset:384", "trk"),
                (f"buffer_load_dword a255, {v(P)}, {s(rCI,4)}, s{t2} offen offset:384", "trk")]
        if trickle and not full:
            for sg in range(7):
                P = TM + 15
                rows = mapping != "x8g4"
                who = {"rows": f"s_and_b32 s3, s{sC}, 1\ns_lshl_b32 s3, s3, 1\ns_lshr_b32 s{sQ}, s{sG}, 3\ns_add_u32 s3, s3, s{sQ}",
                       "x4g8": f"s_and_b32 s3, s{sC}, 3", "x8g4": f"s_and_b32 s3, s{sC}, 7"}[mapping]
                head = (f"{who}\ns_lshl_b32 s3, s3, 2\ns_add_u32 s3, s3, s{sW}\ns_mul_i32 s{sQ}, s3, {(112 if rows else 56)*1024}\ns_add_u32 s{sQ}, s{sQ}, {lite*128}\n"
                        f"v_lshrrev_b32 {v(P)}, {2 if rows else 3}, {v(L)}\nv_lshlrev_b32 {v(P)}, 10, {v(P)}\n") if sg == 0 else f"s_add_u32 s{sQ}, s{sQ}, {16384 if rows else 8192}\n"
                mem[sg] = mem[sg] + [(head + f"buffer_load_dword a255, {v(P)}, {s(rW2,4)}, s{sQ} offen", "trk")]
        val = late_setup(full)[n_before:] if pre3 else late_setup(full)
        for stg in range(8):
            k.wait(vm=f"st{stg}", lg="all" if look == 3 else None)
            k("s_barrier")
            if stg in (0, 4):
                stamp(f"{pfx}st{stg}")
            steps = ([4 * stg - 1] if stg else []) + [4 * stg, 4 * stg + 1, 4 * stg + 2] + ([31] if stg == 7 else [])
            if stg == 0:
                run(reads(0))
            mm = spread_mem(mem[stg], nm * min(4, len(steps))) if mem[stg] else []
            if stg == 6:
                assert look == 2 or not val
                val = val + epi_addr()
            gi = 0
            for n in steps:
                f = FR + 28 * (n & 1)
                last = n % 4 == 2 and look == 3
                rd = spread(reads(n + 1), nm - 2 if last and full else nm) + [[]] * 2 if n < 31 else [[]] * nm
                for i in range(nm):
                    if i == 0:
                        k.wait(lg=f"ra{n}")
                    if i == 3:
                        k.wait(lg=f"rb_{n}")
                    c0 = "0" if n == 0 else None
                    if i < 2:
                        mfma(SS + 16 * i, a(f, 4), a(f + 4 + 4 * i, 4), c0)
                    else:
                        mfma(ACC + 16 * (i - 2), a(f + 12 + 4 * (i - 2), 4), a(f, 4), c0)
                    here = rd[i] + (mm[gi] if gi < len(mm) else [])
                    run(here)
                    used = 8 + sum(map(cost, here)) + (6 if i in (2, nm - 1) else 0)
                    while val and (used + cost(val[0]) <= budget or (not full and used < 60)):
                        used += cost(val[0])
                        run([val.pop(0)])
                    gi += 1
                probe(f"g{n}")
        run(val)

    def scan_ops():
        o = [W(lg="rsv")]
        for r in range(0, 16, 2):
            o += ops_of(f"v_pk_mul_f32 {v(SS+r,2)}, {v(SS+r,2)}, {v(RSV+r,2)}\nv_pk_mul_f32 {v(SS+16+r,2)}, {v(SS+16+r,2)}, {v(RSV+r,2)}")
        for r in range(1, 16):
            o += ops_of(f"v_fmac_f32 {v(SS+r)}, {v(LAR)}, {v(SS+r-1)}\nv_fmac_f32 {v(SS+16+r)}, {v(LAR)}, {v(SS+15+r)}\n"
                        f"v_fmac_f32 {v(SS+r)}, {v(NLAI)}, {v(SS+15+r)}\nv_fmac_f32 {v(SS+16+r)}, {v(LAI)}, {v(SS+r-1)}")
        o.append((f"ds_write2_b32 {v(XW)}, {v(SS+15)}, {v(SS+31)} offset0:0 offset1:1", "exw"))
        return o

    def chain_ops():
        o = [(f"ds_read_b64 {v(EK+2*q,2)}, {v(XQ)} offset:{q*256}", f"ek{q}") for q in range(8)]
        SG = TM + 17
        o.append((f"s_lshl_b32 s3, s{sW}, 1\nv_add_u32 {v(SG)}, s3, {v(HF)}", None))
        o += ops_of(f"v_mov_b32 {v(PR)}, 0\nv_mov_b32 {v(PI)}, 0\nv_mov_b32 {v(XA+1)}, s{sTAG}\nv_mov_b32 {v(XA+3)}, s{sTAG}")
        o.append(W(lg="ek3"))
        for q in range(1, 8):
            r, i = EK + 2 * q, EK + 2 * q + 1
            dr, di = (XA, XA + 2) if q == 7 else (r, i)
            if q == 4:
                o.append(W(lg="ek7"))
            o += ops_of(f"v_cmp_eq_u32 vcc, {q}, {v(SG)}\nv_fmac_f32 {v(r)}, {v(L16R)}, {v(r-2)}\nv_fmac_f32 {v(i)}, {v(L16R)}, {v(i-2)}\n"
                        f"v_cndmask_b32 {v(PR)}, {v(PR)}, {v(r-2)}, vcc\nv_cndmask_b32 {v(PI)}, {v(PI)}, {v(i-2)}, vcc\n"
                        f"v_fma_f32 {v(dr)}, {v(NL16I)}, {v(i-2)}, {v(r)}\nv_fma_f32 {v(di)}, {v(L16I)}, {v(r-2)}, {v(i)}")
        o.append((f"s_cmp_eq_u32 s{sW}, 3\ns_cselect_b32 s3, 0, 0x10000\nv_lshlrev_b32 {v(SG)}, 13, {v(HF)}\nv_add3_u32 {v(SG)}, {v(SG)}, {v(L16)}, s3\ns_lshl_b32 s3, s{sC}, 9\n"
                  f"buffer_store_dwordx4 {v(XA,4)}, {v(SG)}, {s(rE,4)}, s3 offen sc1", "epub"))
        return o

    def coef_ops():
        o = []
        for r in range(0, 16, 2):
            tt = XB + (r & 2)
            o += ops_of(f"v_pk_mul_f32 {v(tt,2)}, {v(SS+r,2)}, {v(NCFI,2)} op_sel_hi:[1,0]\nv_pk_mul_f32 {v(SS+r,2)}, {v(SS+r,2)}, {v(CFR,2)} op_sel_hi:[1,0]\n"
                        f"v_pk_fma_f32 {v(SS+r,2)}, {v(SS+16+r,2)}, {v(NCFI,2)}, {v(SS+r,2)} op_sel_hi:[1,0,1]\n"
                        f"v_pk_fma_f32 {v(SS+16+r,2)}, {v(SS+16+r,2)}, {v(CFR,2)}, {v(tt,2)} op_sel:[0,1,0] op_sel_hi:[1,1,1]")
        return o

    XSL = 3 * SLOT + 32768
    def xs_ops():
        P = TM + 19
        return [(f"s_lshl_b32 s{t2}, s{sM}, 1\ns_lshr_b32 s3, s{sW}, 1\ns_add_u32 s{t2}, s{t2}, s3\ns_lshl_b32 s{t2}, s{t2}, 15\n"
                 f"s_lshl_b32 s3, s{sN}, 7\ns_add_u32 s{t2}, s{t2}, s3\ns_and_b32 s3, s{sW}, 1\ns_lshl_b32 s3, s3, 6\ns_add_u32 s{t2}, s{t2}, s3\n"
                 f"v_lshrrev_b32 {v(P)}, 2, {v(L)}\nv_and_b32 {v(P-1)}, 3, {v(L)}\nv_lshlrev_b32 {v(P-1)}, 4, {v(P-1)}\nv_lshl_add_u32 {v(P)}, {v(P)}, 10, {v(P-1)}\n"
                 f"s_lshr_b32 s3, s{sW12}, 1\ns_add_u32 m0, s3, {XSL}", None),
                (f"buffer_load_dwordx4 {v(P)}, {s(rX,4)}, s{t2} offen lds", "xs"),
                (f"s_add_u32 s{t2}, s{t2}, {16384 - 1024}\nbuffer_load_dwordx4 {v(P)}, {s(rX,4)}, s{t2} offen offset:1024 lds", "xs")]

    def mish_ops(t):
        ops = []
        TA, TB = MI, MI + 8
        for e in range(2):
            R = ACC + 16 * t + 8 * e
            one = lambda f: [(f(i), None) for i in range(8)]
            two = lambda f: [(f(i), None) for i in range(0, 8, 2)]
            ops += two(lambda i: f"v_pk_mul_f32 {v(TA+i,2)}, {v(R+i,2)}, {v(C1,2)} op_sel_hi:[1,0]")
            ops += one(lambda i: f"v_exp_f32 {v(TB+i)}, {v(TA+i)}")
            ops += two(lambda i: f"v_pk_fma_f32 {v(R+i,2)}, {v(TB+i,2)}, 0.5, 1.0 op_sel_hi:[1,0,0]")
            ops += two(lambda i: f"v_pk_fma_f32 {v(TB+i,2)}, {v(TB+i,2)}, {v(R+i,2)}, 1.0 op_sel_hi:[1,1,0]")
            ops += one(lambda i: f"v_rcp_f32 {v(TB+i)}, {v(TB+i)}")
            ops += two(lambda i: f"v_pk_fma_f32 {v(TA+i,2)}, {v(TA+i,2)}, {v(TB+i,2)}, {v(TA+i,2)} neg_lo:[1,0,0] neg_hi:[1,0,0]")
            ops += two(lambda i: f"v_cvt_pk_bf16_f32 {v(R+i//2)}, {v(TA+i)}, {v(TA+i+1)}")
            pre = f"s_add_u32 s{sA0}, s{sA0}, 4096\n" if t == 2 and e == 0 else ""
            ops.append((pre + f"buffer_store_dwordx4 {v(R,4)}, {v(L16)}, {s(rWS,4)}, s{sA0} offen offset:{(2*(t&1)+e)*1024} {st}", f"act{t}"))
        return ops

    PA, PV = BI, BI + 1

    def flag_publish(base, tag):
        k(f"s_lshl_b32 s{sQ}, s{sC}, 4\ns_add_u32 s{sQ}, s{sQ}, s{sG if base == FLC else sF}\ns_lshl_b32 s{sQ}, s{sQ}, 2\ns_add_u32 s{sQ}, s{sQ}, s{sW}\ns_lshl_b32 s{sQ}, s{sQ}, 7\ns_add_u32 s{sQ}, s{sQ}, {base}")
        k(f"v_mov_b32 {v(MF)}, s{sTAG}")
        k.wait(vm=tag)
        k("s_mov_b64 exec, 1")
        text = f"buffer_store_dword {v(MF)}, off, {s(rWS,4)}, s{sQ}"
        if mode == "global":
            k(text + " sc1", "flag")
        else:
            far, done = k.label("far"), k.label("flagged")
            k(f"s_cmp_eq_u32 s{sLOC}, 0\ns_cbranch_scc1 {far}")
            k(text, "flag")
            k(f"s_branch {done}\n{far}:")
            untracked(f"buffer_wbl2 sc1\ns_waitcnt vmcnt(0)\n{text} sc1")
            k(done + ":")
        k("s_mov_b64 exec, -1")

    def poll_load(tag):
        return [(f"buffer_load_dword {v(PV)}, {v(PA)}, {s(rWS,4)}, s{t3} offen sc1", tag)]

    def poll_base(base):
        return f"s_lshl_b32 s3, s{sC}, 5\ns_lshr_b32 s{t3}, s{sG}, 3\ns_add_u32 s3, s3, s{t3}\ns_lshl_b32 s3, s3, 8\ns_add_u32 s{t3}, s3, {base}"

    def poll_ops(first, base, tag):
        top = 15 if base == FLC else 13
        return [(f"{first}\nv_bfe_u32 {v(PA)}, {v(L)}, 1, 2\nv_add_u32 {v(PA)}, s3, {v(PA)}\nv_min_u32 {v(PA)}, {top}, {v(PA)}\nv_and_b32 {v(PV)}, 1, {v(L)}\n"
                 f"v_lshl_add_u32 {v(PA)}, {v(PA)}, 2, {v(PV)}\nv_lshlrev_b32 {v(PA)}, 7, {v(PA)}\n" + poll_base(base), None)] + poll_load(tag)

    poll1_ops = lambda: poll_ops(f"s_mov_b32 s3, s{sGE}", FLB if one else FLA, "poll1")
    poll2_ops = lambda: poll_ops(f"s_mov_b32 s3, s{sGL}", FLB, "poll2")
    poll3_ops = lambda: poll_ops(f"s_lshl_b32 s3, s{sW}, 2", FLC, "poll3")
    poll_check = lambda tag: spin_check(tag, tag, f"v_cmp_ne_u32 vcc, s{sTAG}, {v(PV)}", poll_load(tag))

    def carry_write():
        Y0, Y1 = TM + 12, TM + 13
        mis = (f"v_xor_b32 {v(Y0)}, {v(E0+1)}, {v(EX0)}\nv_xor_b32 {v(Y1)}, {v(E0+3)}, {v(EX0)}\nv_or_b32 {v(Y0)}, {v(Y0)}, {v(Y1)}\n"
               f"v_xor_b32 {v(Y1)}, {v(E0+5)}, {v(EX1)}\nv_or_b32 {v(Y0)}, {v(Y0)}, {v(Y1)}\nv_xor_b32 {v(Y1)}, {v(E0+7)}, {v(EX1)}\nv_or_b32 {v(Y0)}, {v(Y0)}, {v(Y1)}\n"
               f"v_cmp_ne_u32 vcc, 0, {v(Y0)}")
        spin_check("e", "eg", mis, e_loads())
        k(f"v_fmac_f32 {v(E0)}, {v(L2R)}, {v(E0+4)}\nv_fmac_f32 {v(E0+2)}, {v(L2R)}, {v(E0+6)}")
        k(f"v_fma_f32 {v(E0)}, -{v(L2I)}, {v(E0+6)}, {v(E0)}\nv_fmac_f32 {v(E0+2)}, {v(L2I)}, {v(E0+4)}")
        k(f"v_mul_f32 {v(Y0)}, {v(SCRR)}, {v(E0)}\nv_mul_f32 {v(Y1)}, {v(SCRR)}, {v(E0+2)}")
        k(f"v_fma_f32 {v(Y0)}, -{v(SCI)}, {v(E0+2)}, {v(Y0)}\nv_fmac_f32 {v(Y1)}, {v(SCI)}, {v(E0)}")
        k(f"ds_write_b64 {v(XW)}, {v(Y0,2)} offset:{SCR_CX - SCR_EX}", "cxw")
        k.wait(lg="all")
        k("s_barrier")
        for q in range(8):
            k(f"ds_read_b64 {v(TM+2*q,2)}, {v(XQ)} offset:{SCR_CX - SCR_EX + q*256}", "cxr")

    def fix_ops():
        o = []
        e = lambda text, tag=None: o.extend(ops_of(text, tag))
        o.append(W(lg="cxr"))
        for step in (8, 4, 2):
            for q in range(0, step, 2):
                e(f"v_pk_add_f32 {v(TM+q,2)}, {v(TM+q,2)}, {v(TM+q+step,2)}")
        NS = TM + 16
        e(f"v_fmac_f32 {v(PR)}, {v(PWR)}, {v(TM)}\nv_fmac_f32 {v(PI)}, {v(PWR)}, {v(TM+1)}")
        e(f"v_fma_f32 {v(NS)}, -{v(PWI)}, {v(TM+1)}, {v(PR)}\nv_fma_f32 {v(NS+1)}, -{v(PWI)}, {v(TM)}, -{v(PI)}")
        for qq in range(4):
            comp, half = qq >> 1, qq & 1
            for r in range(8 * half, 8 * half + 8, 2):
                d = SS + 16 * comp + r
                e(f"v_pk_fma_f32 {v(d,2)}, {v(T+r,2)}, {v(NS,2)}, {v(d,2)} op_sel:[0,{comp},0] op_sel_hi:[1,{comp},1]")
                if comp == 0:
                    e(f"v_pk_fma_f32 {v(d,2)}, {v(T+16+r,2)}, {v(NS,2)}, {v(d,2)} op_sel:[0,1,0] op_sel_hi:[1,1,1]")
                else:
                    e(f"v_pk_fma_f32 {v(d,2)}, {v(T+16+r,2)}, {v(NS,2)}, {v(d,2)} op_sel:[0,0,0] op_sel_hi:[1,0,1] neg_lo:[0,1,0] neg_hi:[0,1,0]")
            for q in range(4):
                e(f"v_cvt_pk_bf16_f32 {v(TM+4*qq+q)}, {v(SS+8*qq+2*q)}, {v(SS+8*qq+2*q+1)}")
            e(f"ds_write_b128 {v(HA)}, {v(TM+4*qq,4)} offset:{comp*2048 + half*16}", f"htw{comp}")
            if half:
                for f in (2 * comp, 2 * comp + 1):
                    for rd in range(2):
                        e(f"ds_read_b64_tr_b16 {v(SS+16*comp+4*(f&1)+2*rd,2)}, {v(HB)} offset:{f*1024 + rd*256}", f"htr{f}")
        for f in range(4):
            o.append(W(lg=f"htr{f}"))
            pre = f"s_add_u32 s{sKW}, s{sKW}, 8192\n" if f == 2 else ""
            o.append((pre + f"buffer_store_dwordx4 {v(SS+16*(f>>1)+4*(f&1),4)}, {v(L16)}, {s(rWS,4)}, s{sKW} offen offset:{(f&1)*1024} {st}", "hst"))
        return o

    def a_ops(b):
        if b < 7:
            src, add = (sAE, b) if b < 3 else (sAX, 0) if b == 3 else (sAL, b - 4)
            head = f"s_mov_b32 s3, s{src}" if b == 3 else turn(add, 13) + f"\ns_add_u32 s3, s{src}, s3"
            if one:
                head = f"s_add_u32 s3, s{sAE}, {b*4096}"
        elif brot:
            head = f"s_xor_b32 s3, s{sN}, {b-7}\ns_and_b32 s3, s3, 3\ns_lshl_b32 s{t1}, s{sW}, 2\ns_add_u32 s3, s3, s{t1}\ns_lshl_b32 s3, s3, 12\ns_add_u32 s3, s3, {112*1024}"
        else:
            head = f"s_lshl_b32 s3, s{sW}, 14\ns_add_u32 s3, s3, {(112 + 4*(b-7))*1024}"
        ops = [(head + f"\ns_add_u32 s{t1}, s{sP0}, s3\ns_add_u32 s{t2}, s{sP1}, s3", None)]
        for j in range(4):
            for m in range(2):
                pre = f"s_xor_b32 s3, s{sROT2}, {j}\ns_lshl_b32 s3, s3, 10\nv_add_u32 {v(AL)}, s3, {v(L16)}\n" if krot and m == 0 else ""
                ops.append((pre + f"buffer_load_dwordx4 {a(32*(b%NA)+8*j+4*m,4)}, {v(AL)}, {s(rWS,4)}, s{t2 if m else t1} offen offset:{0 if krot else j*1024} sc1", f"ab{b}_{j}"))
        return ops

    def finish(full):
        carry_write()
        if early_a != 0:
            poll_check("poll1")
        stamp("poll" if full else "Lpoll")
        fx = fix_ops()
        if full:
            fx[f12_at:f12_at] = [lambda: probe("f12a"), lambda: flag_publish(FLB, "act3"), lambda: probe("f12b")]
        na = dist if early_a is None else early_a
        blocks = [a_ops(0), a_ops(1) + (poll2_ops() if p2_mid else [])] + ([a_ops(2)] if dist == 3 else [])
        r7 = ring_ops(7) if nres == 5 else []
        if nres == 5:
            fx = fx[:-8] + stage_reads(4) + fx[-8:]
        if one and order in ("c", "d"):
            fx = fix_ops()
            if full:
                flag_publish(FLB, "act3")
                probe("f12b")
            weave(ring_ops(7) + ring_ops(8), fx[:-8])
            probe("fxend")
            run(poll1_ops())
            if order == "d":
                run(fx[-8:])
            poll_check("poll1")
            probe("p1ok")
            if order == "c":
                weave(a_ops(0), fx[-8:])
            run(sum((a_ops(b) for b in range(order == "c", a_first)), []))
            return
        if one and order == "b":
            weave(r7, fx[:-8])
            probe("fxend")
            run(poll1_ops())
            run(fx[-8:-4])
            poll_check("poll1")
            probe("p1ok")
            weave(a_ops(0), fx[-4:])
            run(sum((a_ops(b) for b in range(1, a_first)), []))
            return
        if one:
            blocks = [a_ops(b) for b in range(a_first)]
            weave(r7, fx[:-8])
            probe("fxend")
            if poll_pos == "pre":
                run(poll1_ops())
            run(fx[-8:])
            if poll_pos == "post":
                run(poll1_ops())
        elif na or r7:
            weave(r7 + sum(blocks[:na], []), fx[:-8])
            run(fx[-8:])
        else:
            run(fx)
        if nres == 5:
            k.wait(lg="sr4")
            run(ring_ops(8))
        if not na:
            probe("p1in")
            poll_check("poll1")
            probe("p1ok")
        run(sum(blocks[na:], []))

    def bar(**kw):
        def f():
            k.wait(**kw)
            k("s_barrier")
        return f

    k(f"s_cmp_eq_u32 s{sN}, {lite}\ns_cbranch_scc1 L_light")
    snap0 = k.snapshot()
    run(stage_ops(0, True)); par_loads()
    weave(stage_ops(1, True), early_setup() + row_stats())
    if pre3:
        weave(stage_ops(2, True), late_setup(True)[:n_before])
    gemm1(True, "")
    stamp("gemm")
    gran_check(True)
    stamp("gran")
    m = [mish_ops(t) for t in range(4)]
    h = len(m[0]) // 2
    if "stores" in ablate:
        m = [[op if op[1] is None else (op[0].replace("offen", "offen").replace(v(L16), v(TM + 19)), op[1]) for op in mt] for mt in m]
        k(f"v_mov_b32 {v(TM+19)}, 0x7fffffff")
    for t in range(4):
        m[t].insert(0, (lambda tt: (lambda: probe(f"m{tt}")))(t))
    if "f1" in ablate:
        k(f"v_mov_b32 {v(MF)}, 0")
    r2 = ring_ops(2) if look == 2 else []
    if "scan" in ablate:
        drop = lambda ops: [op for op in ops if callable(op) or not op[0].startswith(("v_fmac", "v_pk_mul", "v_cmp", "v_cnd", "v_fma"))]
        so, co = scan_ops, chain_ops
        scan_ops, chain_ops = (lambda: drop(so())), (lambda: drop(co()))
    if "mish" in ablate:
        m = [[op for op in mt if callable(op) or op[1] is not None] for mt in m]
        h = 2
    if order == "m" and n_pre is not None:
        k("s_barrier")
        rings = [ring_ops(b) for b in range(2, 6)]
        pre = stage_reads(0) + stage_reads(1)
        weave(sum(rings[:n_pre], []) or [("s_nop 0", "none")], pre[:17] + m[0] + pre[17:] + m[1] + m[2] + m[3])
        stamp("mish")
        rest = sum(rings[n_pre:], [])
        cutp = len(rest) // 3
        while cutp and rest[cutp - 1][1] is None:
            cutp += 1
        run(rsv_reads())
        if flag_first:
            run(scan_ops())
            flag_publish(FLB, "act3")
            cutp = 0
        else:
            weave(rest[:cutp], scan_ops())
            probe("scan")
            if f12_late is None:
                flag_publish(FLB, "act3")
            probe("f12")
        bar(lg="all")()
        ch = chain_ops()
        if f12_late is not None:
            ch.insert(min(f12_late, len(ch)), lambda: flag_publish(FLB, "act3"))
        weave(rest[cutp:], ch + [lambda: stamp("epub")] + coef_ops() + stage_reads(2) + [W(lg="sr2")])
        weave(ring_ops(6), stage_reads(3) + [W(lg="sr3")])
        weave(ring_ops(7), stage_reads(4) + [W(lg="sr4")])
    elif order == "m":
        k("s_barrier")
        weave(ring_ops(2), stage_reads(0) + m[0])
        weave(ring_ops(3) + [W(lg="sr0")] + ring_ops(4), stage_reads(1) + m[1] + stage_reads(2))
        weave([W(lg="sr2")] + ring_ops(5), m[2])
        weave(ring_ops(6) if m_r6 else [("s_nop 0", "none")], m[3])
        stamp("mish")
        run(rsv_reads() + stage_reads(3) + scan_ops())
        flag_publish(FLB, "act3")
        bar(lg="all")()
        weave(([] if m_r6 else ring_ops(6)) + ring_ops(7), chain_ops())
        stamp("epub")
        run(stage_reads(4) + coef_ops() + [W(lg="sr4")])
    else:
      run(scan_ops())
      run(m[0][:h])
      bar(lg="all")()
      weave(r2 + ring_ops(3), chain_ops() + stage_reads(0) + m[0][h:] + [W(lg="sr0")])
      stamp("epub")
    if order == "m":
        pass
    elif order in ("c", "d"):
        hh = len(m[1]) // 2
        weave(ring_ops(4), stage_reads(1) + m[1][:hh] + [W(lg="sr1")])
        weave(ring_ops(5), stage_reads(2) + m[1][hh:] + [W(lg="sr2")])
        weave(ring_ops(6), m[2] + stage_reads(3))
        run(e_loads())
        run(m[3] + stage_reads(4) + coef_ops())
        stamp("mish")
        finish(True)
    else:
      weave(ring_ops(4), stage_reads(1) + m[1] + [W(lg="sr1")])
      weave(ring_ops(5), stage_reads(2) + m[2] + ([] if one else [lambda: flag_publish(FLA, "act1")]) + [W(lg="sr2")])
      run(e_loads())
      weave(ring_ops(6), (stage_reads(3) if nres == 5 else []) + m[3] + coef_ops())
      if not one:
          run(poll1_ops())
      stamp("mish")
      finish(True)
    k.wait(lg="all")
    k("s_branch L_join")
    snap_join = k.snapshot()

    k("L_light:")
    k.restore(snap0)
    k(f"s_lshl_b32 s{sQ}, s{sC}, 1\ns_lshr_b32 s3, s{sG}, 3\ns_add_u32 s{sQ}, s{sQ}, s3")
    k(f"s_cmp_lt_u32 s{sQ}, 16\ns_cselect_b32 s{rE}, s{pBR}, s{pBI}\ns_cselect_b32 s{rE+1}, s{pBR+1}, s{pBI+1}\ns_mov_b32 s{rE+2}, 0x80000\ns_mov_b32 s{rE+3}, 0x20000")
    k(f"s_and_b32 s{t0}, s{sQ}, 15\ns_lshl_b32 s{t0}, s{t0}, 15\ns_add_u32 s{t0}, s{t0}, s{sW13}")
    for i in range(8):
        if i == 4:
            k(f"s_add_u32 s{t0}, s{t0}, 4096")
        k(f"buffer_load_dwordx4 {v(SS+4*i,4)}, {v(L16)}, {s(rE,4)}, s{t0} offen offset:{(i&3)*1024}", "lb")
    k(f"s_min_u32 s{t0}, s{sQ}, 27\ns_lshl_b32 s{t0}, s{t0}, 7\ns_mul_i32 s3, s{sW}, {128*3584}\ns_add_u32 s{t0}, s{t0}, s3")
    k(f"v_lshrrev_b32 {v(TM+16)}, 3, {v(L)}\nv_mul_u32_u24 {v(TM+16)}, 3584, {v(TM+16)}\nv_and_b32 {v(TM+17)}, 7, {v(L)}\nv_lshl_add_u32 {v(TM+16)}, {v(TM+17)}, 4, {v(TM+16)}")
    for i in range(16):
        k(f"buffer_load_dwordx4 {v(ACC+4*i,4)}, {v(TM+16)}, {s(rW1,4)}, s{t0} offen", f"lw{i}")
        k(f"s_add_u32 s{t0}, s{t0}, {8*3584}")
    par_loads()
    run(early_setup()); run(row_stats())
    CA, EL = TM, TM + 8

    def fold8(R):
        for j in range(0, 8, 2):
            k(f"v_permlane32_swap_b32 {v(R+j)}, {v(R+j+1)}")
        for j in range(0, 8, 2):
            k(f"v_add_f32 {v(R+j)}, {v(R+j)}, {v(R+j+1)}")
        k(f"v_permlane16_swap_b32 {v(R)}, {v(R+2)}\nv_permlane16_swap_b32 {v(R+4)}, {v(R+6)}")
        k(f"v_add_f32 {v(R)}, {v(R)}, {v(R+2)}\nv_add_f32 {v(R+4)}, {v(R+4)}, {v(R+6)}")

    def split_publish(R, addr, soff):
        k(f"v_cvt_pk_bf16_f32 {v(R+1)}, {v(R)}, {v(R)}\nv_and_b32 {v(R+1)}, 0xffff0000, {v(R+1)}\nv_sub_f32 {v(R+1)}, {v(R)}, {v(R+1)}")
        k(f"v_cvt_pk_bf16_f32 {v(R)}, {v(R)}, {v(R+1)}\nv_mov_b32 {v(R+1)}, s{sTAG}")
        k(f"buffer_store_dwordx2 {v(R,2)}, {v(addr)}, {s(rWS,4)}, s{soff} offen sc1", "cspub")

    k(f"s_mov_b32 s{t0}, 0x3f803f80")
    for j in range(8):
        k(f"v_mov_b32 {v(CA+j)}, 0")
    k(f"v_bfe_u32 {v(EL)}, {v(L)}, 4, 1\nv_lshl_add_u32 {v(EL)}, {v(EL)}, 1, {v(HF)}")
    k.wait(vm="lb")
    for j in range(4):
        for i in range(8):
            k(f"v_dot2c_f32_bf16 {v(CA+i)}, s{t0}, {v(SS+4*i+j)}")
    fold8(CA)
    for r in (8, 4, 2, 1):
        k(f"v_add_f32_dpp {v(CA)}, {v(CA)}, {v(CA)} row_ror:{r} row_mask:0xf bank_mask:0xf")
        k(f"v_add_f32_dpp {v(CA+4)}, {v(CA+4)}, {v(CA+4)} row_ror:{r} row_mask:0xf bank_mask:0xf")
    k(f"v_and_b32 {v(EL+1)}, 1, {v(L)}\nv_cmp_eq_u32 vcc, 1, {v(EL+1)}\nv_lshl_add_u32 {v(EL+1)}, {v(EL+1)}, 2, {v(EL)}\nv_lshlrev_b32 {v(EL+1)}, 3, {v(EL+1)}")
    k(f"v_cndmask_b32 {v(CA)}, {v(CA)}, {v(CA+4)}, vcc")
    k(f"s_lshl_b32 s{t2}, s{sQ}, 8\ns_lshl_b32 s3, s{sW}, 6\ns_add_u32 s{t2}, s{t2}, s3\ns_add_u32 s{t2}, s{t2}, {CS + 1792*8}")
    split_publish(CA, EL + 1, t2)
    stamp("Lbsum")
    run(stage_ops(0, False))
    k(f"s_mov_b32 s{t2}, 0x00003f80\ns_mov_b32 s{t3}, 0x3f800000")
    for j in range(8):
        k(f"v_mov_b32 {v(CA+j)}, 0")
    for i in range(16):
        k.wait(vm=f"lw{i}")
        for j in range(4):
            k(f"v_dot2c_f32_bf16 {v(CA+2*j)}, s{t2}, {v(ACC+4*i+j)}\nv_dot2c_f32_bf16 {v(CA+2*j+1)}, s{t3}, {v(ACC+4*i+j)}")
    for j in range(8):
        k(f"v_add_f32_dpp {v(CA+j)}, {v(CA+j)}, {v(CA+j)} row_ror:8 row_mask:0xf bank_mask:0xf")
    fold8(CA)
    k(f"v_and_b32 {v(EL+1)}, 7, {v(L)}\nv_lshl_add_u32 {v(EL+1)}, {v(EL+1)}, 3, {v(EL)}\nv_lshlrev_b32 {v(EL+1)}, 2, {v(EL+1)}")
    k(f"s_lshl_b32 s3, s{sW}, 8\ns_add_u32 s3, s3, 16384\nv_add_u32 {v(EL+1)}, s3, {v(EL+1)}")
    k(f"ds_write2_b32 {v(EL+1)}, {v(CA)}, {v(CA+4)} offset0:0 offset1:4", "cw")
    k(f"v_lshlrev_b32 {v(EL+1)}, 2, {v(L)}\nv_add_u32 {v(EL+1)}, 16384, {v(EL+1)}")
    k.wait(lg="all")
    k("s_barrier")
    for j in range(4):
        k(f"ds_read_b32 {v(CA+j)}, {v(EL+1)} offset:{j*256}", "cr")
    k(f"s_min_u32 s{t2}, s{sQ}, 27\ns_lshl_b32 s{t2}, s{t2}, 9\ns_add_u32 s{t2}, s{t2}, {CS}\nv_lshlrev_b32 {v(EL+2)}, 3, {v(L)}")
    k.wait(lg="all")
    k(f"v_add_f32 {v(CA)}, {v(CA)}, {v(CA+1)}\nv_add_f32 {v(CA+2)}, {v(CA+2)}, {v(CA+3)}\nv_add_f32 {v(CA)}, {v(CA)}, {v(CA+2)}")
    split_publish(CA, EL + 2, t2)
    stamp("Lwsum")
    run(stage_ops(1, False))
    if pre3:
        weave(stage_ops(2, False), late_setup(False)[:n_before])
    gemm1(False, "L")
    stamp("Lgemm")
    gran_check(False)
    run(scan_ops())
    bar(lg="all")()
    weave(r2 + ring_ops(3), chain_ops() + stage_reads(0) + stage_reads(1) + [W(lg="all")])
    stamp("Lepub")
    weave(ring_ops(4), stage_reads(2) + [W(lg="all")])
    weave(ring_ops(5) + ring_ops(6), coef_ops() + (stage_reads(3) if nres == 5 else []) + (stage_reads(4) if order in ("c", "d") else []))
    if order == "m":
        run(stage_reads(4) + [W(lg="all")] + ring_ops(7))
    else:
        run(e_loads())
        if not one:
            run(poll1_ops())
        finish(False)
    k.wait(lg="all")
    snap_light = k.snapshot()

    k("L_join:")
    if order == "m":
        k.merge(snap_join, snap_light, ("rb5", "rb6", "rb7"))
        probe("join")
        r8 = ring_ops(8)
        at = {"pre": 0, "mid": 5, "post": len(r8)}[ep_pos]
        run(r8[:at] + poll1_ops() + e_loads() + r8[at:])
        blocks = [a_ops(b) for b in range(a_first)]
        if a_lead:
            probe("r8")
            poll_check("poll1")
            probe("p1")
            run(blocks.pop(0))
            probe("a0")
            carry_write()
        else:
            carry_write()
            poll_check("poll1")
        stamp("poll")
        fx = fix_ops()
        weave(sum(blocks, []), fx[:-8])
        run(fx[-8:])
    else:
      k.merge(snap_join, snap_light, tuple(f"rb{b}" for b in range(nres, nres + (3 if order == "b" else 4))) + ("hst",) + (("poll2",) if p2_mid else ()) + tuple(f"ab{b}_{j}" for b in range(a_first if one else dist) for j in range(4)))
    stamp("stored")

    def b_reads(n):
        b, j = divmod(n, 4)
        hi = RING[b] >= HIGH
        off = RING[b] - (HIGH if hi else 0)
        if b < nres:
            return []
        if b < 7:
            return [(f"ds_read_b64_tr_b16 {a(FR+8*j+4*c+2*rd,2)}, {v(W2R+2*hi+c)} offset:{off + j*2048 + rd*1024}", f"f{n}")
                    for c in range(2) for rd in range(2)]
        return [(f"ds_read_b128 {a(FR+8*j+4*c,4)}, {v(CR+4*hi+j)} offset:{off + c*4096}", f"f{n}") for c in range(2)]

    if p2_at == 1 and not p2_mid and not one:
        run(poll2_ops())

    def addend_ops():
        o = [(f"s_lshr_b32 s3, s{sG}, 3\ns_lshl_b32 s3, s3, 1\ns_lshr_b32 s{sCNT}, s{sW}, 1\ns_add_u32 s3, s3, s{sCNT}\ns_lshl_b32 s3, s3, 7\ns_add_u32 s3, s3, {SCR}\n"
              f"v_lshlrev_b32 {v(TM+1)}, 6, {v(HF)}\nv_add_u32 {v(TM+1)}, s3, {v(TM+1)}", None)]
        for q in range(4):
            o += ops_of(f"ds_read_b128 {v(T+4*q,4)}, {v(TM+1)} offset:{q*16}\nds_read_b128 {v(T+16+4*q,4)}, {v(TM+1)} offset:{512+q*16}", "ast")
        P = TM + 2
        o.append((f"s_lshr_b32 s3, s{sW12}, 1\ns_add_u32 s3, s3, {XSL}\nv_bfe_u32 {v(P)}, {v(L)}, 2, 2\nv_lshl_add_u32 {v(P)}, {v(HF)}, 4, {v(P)}\nv_lshlrev_b32 {v(P)}, 6, {v(P)}\n"
                  f"v_bfe_u32 {v(P+1)}, {v(L)}, 4, 1\nv_lshl_add_u32 {v(P)}, {v(P+1)}, 5, {v(P)}\nv_and_b32 {v(P+1)}, 3, {v(L)}\nv_lshl_add_u32 {v(P)}, {v(P+1)}, 3, {v(P)}\nv_add_u32 {v(P)}, s3, {v(P)}", None))
        o.append(W(vm="xs"))
        for q in range(4):
            o += ops_of(f"ds_read_b64_tr_b16 {v(XS+16+2*q,2)}, {v(P)} offset:{q*256}", "ast")
        o.append(W(lg="ast"))
        for r in range(16):
            unpack = f"v_and_b32 {v(XS+r)}, 0xffff0000, {v(XS+16+r//2)}" if r & 1 else f"v_lshlrev_b32 {v(XS+r)}, 16, {v(XS+16+r//2)}"
            o += ops_of(f"{unpack}\nv_sub_f32 {v(T+16+r)}, {v(XS+r)}, {v(T+16+r)}\n"
                        f"v_mul_f32 {v(T+16+r)}, {v(T+16+r)}, {v(T+r)}\nv_fmac_f32 {v(XS+r)}, {v(T+16+r)}, {v(DSK)}")
        return o

    a_next = a_first if one else dist
    for b in range(11):
        nxt = []
        if b == f3_at and not f3_step:
            flag_publish(FLC, "hst")
            stamp("flag")
        if b == p2_at and not one:
            poll_check("poll2")
            stamp("poll2")
        if b == p3_at:
            poll_check("poll3")
            stamp("poll3")
        while a_next <= min(b + dist, 10) and b >= (0 if a_next < (7 if one else 3) else p2_at if a_next < 7 else p3_at):
            nxt += a_ops(a_next); a_next += 1
        if b == p2_at - 2 and not p2_mid and not one:
            nxt += poll2_ops()
        if b == (p3_at - 2 if p3_issue is None else p3_issue):
            nxt = nxt + poll3_ops() if p3_issue is None else poll3_ops() + nxt
        if nres == 5:
            if b in (6, 7):
                nxt = ring_ops(b + 3) + nxt
            if order == "b" and b == 2:
                nxt += ring_ops(8)
        elif 7 <= b + dist < (9 if "rb" in ablate else 11):
            nxt += ring_ops(b + dist)
        if b == xs_at:
            nxt += xs_ops()
        if "xchg" in ablate and b == 6:
            nxt += [(f"s_lshl_b32 s3, s2, 2\ns_add_u32 s3, s3, s{sW}\ns_lshl_b32 s{sKW}, s3, 12\ns_add_u32 s{sKW}, s{sKW}, {32 << 20}", None)]
            nxt += [(f"buffer_store_dwordx4 {v(MI,4)}, {v(L16)}, {s(rWS,4)}, s{sKW} offen offset:{q*1024} sc1", "xst") for q in range(4)]
        if "xchg" in ablate and b == 9:
            nxt += [(f"s_xor_b32 s{sKW}, s{sKW}, {2 << 14}", None)]
            nxt += [(f"buffer_load_dwordx4 {v(MI+4*q,4)}, {v(L16)}, {s(rWS,4)}, s{sKW} offen offset:{q*1024} sc1", "xld") for q in range(4)]
        val = spread(addend_ops(), 32)[16 * (b - xs_at - 2):16 * (b - xs_at - 1)] if 2 <= b - xs_at <= 3 else [[]] * 16
        mm = spread_mem(nxt, 16) if nxt else [[]] * 16
        if b == 10 and tail_major:
            break
        for j in range(4):
            n = 4 * b + j
            rd = [[]] * 4
            if 4 * nres <= n + 1 < 44:
                if j == 3 and not ("rb" in ablate and b >= 8):
                    k.wait(vm=f"rb{b+1}")
                rd = spread(b_reads(n + 1), 4)
            if b == f3_at and f3_step and j == f3_step:
                flag_publish(FLC, "hst")
            k.wait(vm=f"ab{b}_{j}", lg=f"f{n}" if b >= nres else None)
            if j == 0 and b in (0, 8):
                stamp(f"blk{b}")
            for m in range(2):
                for c in range(2):
                    bop = (RESB[b] if b < nres else FR) + 8 * j + 4 * c
                    mfma(ACC + 32 * m + 16 * c, a(32 * (b % NA) + 8 * j + 4 * m, 4), a(bop, 4), "0" if n == 0 else None)
                    run(rd[2 * m + c]); run(mm[4 * j + 2 * m + c]); run(val[4 * j + 2 * m + c])
            probe(f"b{b}_{j}")
    GA = TM
    pre = ops_of(f"v_add_u32 {v(GA)}, s{sW13}, {v(L16)}")
    for u in (1, 2, 3):
        pre += ops_of(f"v_xor_b32 {v(GA+u)}, {u << 13}, {v(GA)}")
    pre.append((f"s_lshl_b32 s{t2}, s{sM}, 1\ns_lshr_b32 s3, s{sW}, 1\ns_add_u32 s{t2}, s{t2}, s3\ns_lshl_b32 s{t2}, s{t2}, 16\n"
                f"s_lshl_b32 s3, s{sN}, 8\ns_add_u32 s{t2}, s{t2}, s3\ns_and_b32 s3, s{sW}, 1\ns_lshl_b32 s3, s3, 7\ns_add_u32 s{t2}, s{t2}, s3", None))
    pre += ops_of(f"v_lshlrev_b32 {v(TM+4)}, 15, {v(HF)}\nv_lshl_add_u32 {v(TM+4)}, {v(LR)}, 2, {v(TM+4)}")
    wr = lambda u: [(f"ds_write_b128 {v(GA)}, {v(ACC+16*u+4*q,4)} offset:{(u>>1)*SLOT + (u&1)*4096 + q*1024}", "fw") for q in range(4)]
    if tail_major:
        for j in (1, 2, 3):
            run(b_reads(40 + j))
        run(pre)
        for u in (3, 2, 1, 0):
            for j in range(4):
                k.wait(vm=f"ab10_{j}", lg=f"f{40+j}")
                mfma(ACC + 16 * u, a(32 * (10 % NA) + 8 * j + 4 * (u >> 1), 4), a(FR + 8 * j + 4 * (u & 1), 4))
                late = {(2, 3): wr(3)[:1], (1, 0): wr(3)[1:2], (1, 1): wr(3)[2:3], (1, 2): wr(3)[3:], (1, 3): wr(2)[:1], (0, 0): wr(2)[1:2], (0, 1): wr(2)[2:3], (0, 2): wr(2)[3:],
                        (0, 3): wr(1)}
                run(late.get((u, j), []))
        stamp("p2done")
    else:
        stamp("p2done")
        run(pre)
        for u in (1, 2, 3):
            run(wr(u))
    k(f"s_mov_b32 s{t0}, 0x3f317218")
    k.wait(lg="all")
    k("s_barrier")
    for q in range(4):
        for u in (1, 2, 3):
            k(f"ds_read_b128 {v(ACC+16*u+4*q,4)}, {v(GA+u)} offset:{(u>>1)*SLOT + (u&1)*4096 + q*1024}", f"fr{q}")
    for q in range(4):
        k.wait(lg=f"fr{q}")
        for i in (0, 2):
            r = 4 * q + i
            k(f"v_pk_add_f32 {v(ACC+r,2)}, {v(ACC+r,2)}, {v(ACC+16+r,2)}\nv_pk_add_f32 {v(ACC+32+r,2)}, {v(ACC+32+r,2)}, {v(ACC+48+r,2)}")
        for i in (0, 2):
            r = 4 * q + i
            k(f"v_pk_add_f32 {v(ACC+r,2)}, {v(ACC+r,2)}, {v(ACC+32+r,2)}\nv_pk_fma_f32 {v(ACC+r,2)}, {v(ACC+r,2)}, {s(t0,2)}, {v(XS+r,2)} op_sel_hi:[1,0,1]")
        for i in range(4):
            r = 4 * q + i
            k(f"buffer_store_dword {v(ACC+r)}, {v(TM+4)}, {s(rOUT,4)}, s{t2} offen offset:{(r&1)*2048} {out_flags}", "out")
            if r & 1:
                k(f"s_add_u32 s{t2}, s{t2}, 4096")
    k(f"s_cmp_lg_u32 s{sC}, 15\ns_cbranch_scc1 L_fin\ns_or_b32 s3, s{sG}, s{sW}\ns_cmp_lg_u32 s3, 0\ns_cbranch_scc1 L_fin")
    k(f"v_mov_b32 {v(TM+5)}, s{sTAG}\ns_mov_b64 exec, 1")
    k(f"buffer_store_dword {v(TM+5)}, off, {s(rWS,4)}, 0 sc1\ns_mov_b64 exec, -1")
    k("L_fin:")
    if diag:
        k("s_waitcnt vmcnt(0)")
        stamp("end")
        for i in range(len(seen)):
            k(f"v_writelane_b32 {v(DG)}, s{FINE[i]}, {16+i}")
        k(f"s_lshl_b32 s3, s2, 2\ns_add_u32 s3, s3, s{sW}\ns_lshl_b32 s3, s3, 8\ns_add_u32 s3, s3, {DIAG}\nv_lshlrev_b32 {v(TM)}, 2, {v(L)}")
        k(f"buffer_store_dword {v(DG)}, {v(TM)}, {s(rWS,4)}, s3 offen")
        if amplify:
            k(f"s_cmp_lg_u32 s2, {amp_wg}\ns_cbranch_scc1 L_end")
            k(f"v_readlane_b32 s12, {v(DG)}, 0\nv_readlane_b32 s13, {v(DG)}, {stamps.index(amplify)}\nv_readlane_b32 s14, {v(DG)}, {len(stamps)-1}\ns_nop 3")
            k("s_sub_u32 s13, s13, s12\ns_min_u32 s13, s13, 5000\ns_lshl_b32 s13, s13, 2")
            k("L_amp:\ns_memrealtime s[34:35]\ns_waitcnt lgkmcnt(0)\ns_sub_u32 s3, s34, s14\ns_cmp_lt_u32 s3, s13\ns_cbranch_scc1 L_amp")
    k("L_end:")
    k("s_endpgm")
    for text in cold:
        k(text)

    body, nops = pad(k.lines)
    hdr = open("parallel_sum__ssm_conv_s5__dense_activation_mish__prompt.s.ref").read().split("; Override")[0]
    text = hdr + "; @launch grid=(256,1,1) block=(256,1,1) lds=163840\n"
    text += f'.amdgcn_target "amdgcn-amd-amdhsa--gfx950"\n.text\n.globl {KNAME}\n.p2align 8\n.type {KNAME},@function\n{KNAME}:\n'
    text += "\n".join(body) + "\n"
    text += f""".section .rodata,"a"
.p2align 6
.amdhsa_kernel {KNAME}
  .amdhsa_next_free_vgpr 512
  .amdhsa_next_free_sgpr 102
  .amdhsa_accum_offset 256
  .amdhsa_group_segment_fixed_size 0
  .amdhsa_kernarg_size 128
  .amdhsa_user_sgpr_count 2
  .amdhsa_user_sgpr_kernarg_segment_ptr 1
  .amdhsa_system_sgpr_workgroup_id_x 1
.end_amdhsa_kernel
"""
    return text, dict(nops=nops, vgprs=V.next, stamps=stamps, seen=seen, lines=len(body), regs=V.names)


if __name__ == "__main__":
    import json
    kw = json.loads(sys.argv[2]) if len(sys.argv) > 2 else {}
    text, info = gen(**kw)
    open(sys.argv[1], "w").write(text)
    print({q: info[q] for q in ("nops", "vgprs", "lines")})
```

```python
import sys
from emit import K, Alloc, rng, pad

KNAME = "parallel_sum__ssm_conv_s5__dense_activation_mish__prompt_kernel"
EPOCH, STATS, XID, CS, EG, FLA, FLB, FLC, AF = 0, 0x10000, 0x20000, 0x30000, 0x40000, 0x80000, 0xA0000, 0xC0000, 0x100000
DIAG = 200 << 20
MT = 176 * 1024
SLOT = 40960
HIGH = 2 * SLOT
SCR = 32768
SCR_EX, SCR_CX = SCR + 1024, SCR + 4096
SCR_HT = SLOT + 32768
RING = {b: SLOT * q for b, q in enumerate((0, 1, 2, 3, 0, 1, 2, 3, 0, 1, 2))}
RES = 160
LOG2E = 0x3fb8aa3b
SPIN = 1 << 16


def weight(op):
    if callable(op):
        return 0.2
    w = 0.0
    for l in op[0].split("\n"):
        mn = l.split()[0]
        w += 2 if mn in ("v_exp_f32", "v_rcp_f32", "v_sin_f32", "v_cos_f32") else 0.3 if mn.startswith("s_") else 1
    return w


def cost(op):
    if callable(op):
        return 3
    c = 0.0
    for l in op[0].split("\n"):
        mn = l.split()[0]
        c += (8.3 if mn in ("v_exp_f32", "v_rcp_f32", "v_sin_f32", "v_cos_f32") else 13 if mn.startswith("buffer_") else
              1 if mn.startswith("s_") else 4.3)
    return c


def spread(ops, n):
    total = sum(map(weight, ops)) or 1
    out = [[] for _ in range(n)]
    acc = 0.0
    for op in ops:
        out[min(n - 1, int(acc / total * n + 1e-9))].append(op)
        acc += weight(op)
    return out


def spread_mem(ops, n):
    groups, cur = [], []
    for op in ops:
        cur.append(op)
        if not callable(op) and op[1] is not None:
            groups.append(cur); cur = []
    if cur:
        groups[-1] += cur
    out = [[] for _ in range(n)]
    for i, g in enumerate(groups):
        out[i * n // len(groups)] += g
    return out


def gen(mode="global", mapping="x8g4", diag=False, rot="none", amplify=None, amp_wg=0, out_flags="", ablate=(), l2pf=False,
        pf_at=4, gran_at=6, look=2, fine=(), p2_at=2, p3_at=5, dist=2, xs_at=4, tail_major=True, far_at=1, mt_pad=0, lite=3, trickle=True, budget=33, pre3=True, f3_at=1, p2_mid=False, backoff=0, early_a=0, trk_w2=None, code_pf=True, krot=False, brot=False, trk_c=None, nres=5, one=True, poll_pos="pre", a_first=2, af_mb=1, order="m", f12_at=0, m_r6=True, n_pre=2, flag_first=False, ep_pos="pre", a_lead=True, f12_late=40, f3_step=2, p3_issue=4, n_before=999):
    AF = af_mb << 20
    assert nres == 3 or dist == 2
    RESB = {0: 160, 1: 192, 2: 224} if nres == 3 else {0: 128, 1: 160, 2: 192, 3: 224, 4: 96}
    NA = 4 if nres == 3 else 3
    MT = 176 * 1024 + mt_pad
    npre = 2
    k = K()
    V = Alloc("v", 1, 256)
    v = lambda r, n=1: rng("v", r, n)
    a = lambda r, n=1: rng("a", r, n)
    s = lambda r, n=1: rng("s", r, n)
    st = "sc1" if mode == "global" else ""
    xid = mode != "global"

    sC, sG, sW, sROT, sM, sN, sTAG, sLOC = 4, 5, 6, 7, 8, 9, 10, 11
    t0, t1, t2, t3 = 12, 13, 14, 15
    pX, pLR, pLI, pBR, pBI, pCR, pCI, pDT, pDS, pW1, pB1, pW2, pOUT, pWS = 16, 18, 20, 22, 24, 26, 28, 30, 32, 36, 38, 40, 42, 46
    rX, rW1, rB, rE, rW2, rCR, rCI, rWS, rOUT = 48, 52, 56, 60, 64, 68, 72, 76, 80
    sXB, sBB, sWB, sA0, sP1, sKW, sCNT, sAF, sQ, sW12, sW13 = 84, 85, 86, 87, 88, 89, 90, 91, 92, 93, 94
    sHI, sXCC, sF, sP0, sROT2, sR3 = 98, 100, 97, 96, 17, 16
    sBE, sBX, sBL, sAE, sAX, sAL, sGE, sGL, sJ, sXD = 18, 19, 20, 21, 22, 23, 24, 25, 95, 101
    sD = 34

    L, LR, HF, L16, TAU = V("l"), V("lr"), V("hf"), V("l16"), V("tau")
    XD, CD, WD, W2D = V("xd", 4), V("cd", 4), V("wd", 4), V("w2d", 4)
    XR, WR, BQ, CR, W2R = V("xr", 4), V("wr", 4), V("bq", 4), V("cr", 8), V("w2r", 4)
    LAR, LAI, NLAI, L16R, L16I, NL16I, PWR, PWI, L2R, L2I, SCRR, SCI, CFR, NCFR, NCFI = [V(x) for x in
        "lar lai nlai l16r l16i nl16i pwr pwi l2r l2i scr sci cfr ncfr ncfi".split()]
    PR, PI, MF = V("pr"), V("pi"), V("mf")
    ACC, SS, T = V("acc", 64, 4), V("ss", 32, 4), V("t", 32, 4)
    XA, XB, WE = V("xa", 4, 4), V("xb", 4, 4), V("we", 12, 4)
    MI = V("mish", 16, 4)
    TM = V("tmp", 20, 4)
    C1, RS = V("c1", 1, 2), V("rs")
    DSK = V("dsk")
    BI = V("bias", 2)
    DG = V("diag")
    AL = V("al") if krot else L16
    FR = 128
    RSV, EK, XS = MI, TM, SS

    stamps = []
    def stamp(name):
        probe(name)
        if diag and (not fine or name == "end"):
            stamps.append(name)
            k(f"s_memrealtime s[{sD}:{sD+1}]\ns_memtime s[44:45]\ns_waitcnt lgkmcnt(0)")
            k.lg_done = len(k.lg)
            k(f"v_writelane_b32 {v(DG)}, s{sD}, {len(stamps)-1}\nv_writelane_b32 {v(DG)}, s44, {len(stamps)+31}")

    FINE = (26, 28, 30, 32, 36, 38, 40, 42)
    seen = []
    def probe(key):
        if key in fine and key not in seen:
            k(f"s_memtime s[{FINE[len(seen)]}:{FINE[len(seen)]+1}]")
            seen.append(key)

    def srd(d, p, nbytes):
        return f"s_mov_b32 s{d}, s{p}\ns_mov_b32 s{d+1}, s{p+1}\ns_mov_b32 s{d+2}, {nbytes:#x}\ns_mov_b32 s{d+3}, 0x20000"

    def mfma(d, x, y, c=None):
        k(f"v_mfma_f32_32x32x16_bf16 {v(d,16)}, {x}, {y}, {v(d,16) if c is None else c}")

    def untracked(text):
        n = len(k.vm)
        k(text)
        del k.vm[n:]

    def run(ops):
        for op in ops:
            if callable(op):
                op()
            else:
                k(*op)

    def ops_of(text, tag=None):
        return [(l, tag) for l in text.split("\n")]

    W = lambda **kw: (lambda: k.wait(**kw))

    note = lambda text: k("; ---- " + text)
    k("s_cmp_ge_u32 s2, 256\ns_cbranch_scc1 L_end")
    k("s_load_dwordx16 s[16:31], s[0:1], 0\ns_load_dwordx16 s[32:47], s[0:1], 64")
    if diag:
        k("s_memrealtime s[12:13]\ns_memtime s[10:11]")
    A_, B_, C_, D_ = TM, TM + 1, TM + 2, TM + 3
    k(f"v_and_b32 {v(L)}, 63, v0\nv_lshrrev_b32 {v(A_)}, 6, v0\nv_and_b32 {v(LR)}, 31, v0")
    k(f"v_readfirstlane_b32 s{sW}, {v(A_)}")
    k(f"v_lshrrev_b32 {v(HF)}, 5, {v(L)}\nv_lshlrev_b32 {v(L16)}, 4, {v(L)}")
    k(f"s_and_b32 s14, s2, 7\ns_lshr_b32 s15, s2, 3\ns_mov_b32 s{sXD}, s14\ns_mov_b32 s{sJ}, s15")
    if code_pf:
        k(f"s_getpc_b64 s[96:97]\nL_pc:\ns_sub_u32 s96, s96, L_pc-{KNAME}\ns_subb_u32 s97, s97, 0")
        k(f"s_lshl_b32 s3, s{sW}, 5\ns_add_u32 s3, s3, s15\ns_lshl_b32 s3, s3, 8\nv_lshl_add_u32 {v(TM+19)}, {v(L)}, 2, s3\nv_min_u32 {v(TM+19)}, L_end-{KNAME}, {v(TM+19)}")
        k(f"global_load_dword a255, {v(TM+19)}, s[96:97]", "pf")
    if mapping == "rows":
        k(f"s_and_b32 s3, s15, 1\ns_lshl_b32 s{sC}, s14, 1\ns_or_b32 s{sC}, s{sC}, s3\ns_lshr_b32 s{sG}, s15, 1")
    elif mapping == "x8g4":
        k(f"s_lshr_b32 s3, s14, 2\ns_lshl_b32 s3, s3, 3\ns_and_b32 s{sC}, s15, 7\ns_or_b32 s{sC}, s{sC}, s3")
        k(f"s_and_b32 s3, s14, 3\ns_lshl_b32 s3, s3, 2\ns_lshr_b32 s{sG}, s15, 3\ns_or_b32 s{sG}, s{sG}, s3")
    elif mapping == "x4g8":
        k(f"s_lshr_b32 s3, s14, 1\ns_lshl_b32 s3, s3, 2\ns_and_b32 s{sC}, s15, 3\ns_or_b32 s{sC}, s{sC}, s3")
        k(f"s_and_b32 s3, s14, 1\ns_lshl_b32 s3, s3, 3\ns_lshr_b32 s{sG}, s15, 2\ns_or_b32 s{sG}, s{sG}, s3")
    k({"cg": f"s_add_u32 s{sROT}, s{sC}, s{sG}\ns_and_b32 s{sROT}, s{sROT}, 7", "none": f"s_mov_b32 s{sROT}, 0",
       "c": f"s_and_b32 s{sROT}, s{sC}, 7", "g": f"s_and_b32 s{sROT}, s{sG}, 7"}[rot])
    k(f"s_cmp_gt_u32 s{sG}, {lite}\ns_subb_u32 s{sF}, s{sG}, 0\ns_cmp_gt_u32 s{sG}, {lite + 8}\ns_subb_u32 s{sF}, s{sF}, 0")
    k(f"s_lshl_b32 s{sW12}, s{sW}, 12\ns_lshl_b32 s{sW13}, s{sW}, 13")
    k(f"v_lshrrev_b32 {v(A_)}, 3, {v(L)}")
    k(f"v_and_b32 {v(B_)}, 7, {v(L)}\nv_lshrrev_b32 {v(C_)}, 4, {v(L)}")
    k(f"v_xor_b32 {v(B_)}, {v(B_)}, {v(C_)}\nv_lshlrev_b32 {v(B_)}, 4, {v(B_)}")
    k(f"v_and_b32 {v(C_)}, 3, {v(A_)}\nv_lshl_add_u32 {v(C_)}, {v(HF)}, 4, {v(C_)}")
    k(f"v_lshl_add_u32 {v(XD)}, {v(C_)}, 10, {v(B_)}")
    k(f"v_xor_b32 {v(XD+1)}, 64, {v(XD)}\nv_add_u32 {v(XD+2)}, 6144, {v(XD)}")
    k(f"v_add_u32 {v(XD+3)}, 9216, {v(XD+1)}\nv_add_u32 {v(XD+1)}, 3072, {v(XD+1)}")
    k(f"v_lshl_add_u32 {v(CD)}, {v(A_)}, 10, {v(B_)}")
    k(f"v_xor_b32 {v(CD+1)}, 64, {v(CD)}\nv_add_u32 {v(CD+2)}, {2*7168}, {v(CD)}\nv_add_u32 {v(CD+3)}, {3*7168}, {v(CD+1)}\nv_add_u32 {v(CD+1)}, 7168, {v(CD+1)}")
    k(f"v_lshlrev_b32 {v(A_)}, 10, {v(HF)}\nv_lshl_add_u32 {v(A_)}, {v(LR)}, 4, {v(A_)}")
    k(f"s_lshl_b32 s{sXB}, s{sC}, 17\ns_lshl_b32 s3, s{sW}, 15\ns_add_u32 s{sXB}, s{sXB}, s3")
    k(f"s_and_b32 s3, s{sW}, 1\ns_lshl_b32 s3, s3, 14\ns_lshl_b32 s{sBB}, s{sG}, 15\ns_add_u32 s{sBB}, s{sBB}, s3")
    k(f"v_lshrrev_b32 {v(C_)}, 4, {v(L)}\nv_and_b32 {v(D_)}, 15, {v(L)}\nv_lshlrev_b32 {v(B_)}, 2, {v(C_)}")
    k(f"v_xor_b32 {v(D_)}, {v(D_)}, {v(B_)}\nv_lshlrev_b32 {v(D_)}, 4, {v(D_)}\nv_mul_u32_u24 {v(C_)}, 3584, {v(C_)}\nv_add_u32 {v(WD)}, {v(C_)}, {v(D_)}")
    for i in (1, 2, 3):
        k(f"v_add_u32 {v(WD+i)}, {i*13312}, {v(WD)}")
    k(f"s_mul_i32 s{sWB}, s{sW}, {16*3584}\ns_lshl_b32 s3, s{sF}, 8\ns_add_u32 s{sWB}, s{sWB}, s3")
    k(f"s_lshl_b32 s3, s{sC}, 4\ns_add_u32 s3, s3, s{sG}\ns_lshl_b32 s3, s3, 2\ns_add_u32 s3, s3, s{sW}\ns_lshl_b32 s{t2}, s3, 11")
    k(f"s_lshl_b32 s3, s{sG}, 5\nv_add_lshl_u32 {v(B_)}, {v(LR)}, s3, 1")
    k(f"s_lshl_b32 s3, s{sF}, 7\nv_add_lshl_u32 {v(C_)}, {v(L)}, s3, 1\nv_min_u32 {v(C_)}, 3454, {v(C_)}")
    k(f"s_and_b32 s{sN}, s{sG}, 7\ns_lshl_b32 s3, s{sN}, 1\ns_and_b32 s{t3}, s{sW}, 1\ns_or_b32 s3, s3, s{t3}\ns_lshl_b32 s3, s3, 5\nv_add_lshl_u32 {v(D_)}, {v(LR)}, s3, 1")
    k("s_waitcnt lgkmcnt(0)")
    if diag:
        k(f"v_writelane_b32 {v(DG)}, s12, 0\nv_writelane_b32 {v(DG)}, s10, 32"); stamps.append("start")
    k(srd(rX, pX, 2 << 20))
    SR = TM + 4
    PL = MI
    k(f"global_load_ushort {v(PL)}, {v(B_)}, {s(pLR,2)}\nglobal_load_ushort {v(PL+1)}, {v(B_)}, {s(pLI,2)}\nglobal_load_ushort {v(PL+2)}, {v(B_)}, {s(pDT,2)}", "par")
    k(f"buffer_load_dwordx4 {v(SR,4)}, {v(A_)}, {s(rX,4)}, s{t2} offen", "srow")
    k(f"buffer_load_dwordx4 {v(SR+4,4)}, {v(A_)}, {s(rX,4)}, s{t2} offen offset:512", "srow")
    k(f"s_load_dword s{sTAG}, s[{pWS}:{pWS+1}], {EPOCH}")
    k(srd(rW1, pW1, 512 * 3584))
    k(f"s_cmp_lt_u32 s{sW}, 2\ns_cselect_b32 s{rB}, s{pBR}, s{pBI}\ns_cselect_b32 s{rB+1}, s{pBR+1}, s{pBI+1}\ns_mov_b32 s{rB+2}, 0x80000\ns_mov_b32 s{rB+3}, 0x20000")

    def stage_ops(stage, full):
        slot = (stage % 4) * SLOT
        tag = f"st{stage}"
        ops = [(f"s_xor_b32 s3, s{sROT}, {stage}\ns_mul_i32 s{sKW}, s3, {64*3584}\ns_lshl_b32 s3, s3, 7\ns_add_u32 s{t1}, s3, s{sBB}\ns_add_u32 s{t0}, s3, s{sXB}\n"
                f"s_add_u32 s{sKW}, s{sKW}, s{sWB}\ns_add_u32 m0, s{sW12}, {slot}", None)]
        ops += [(f"buffer_load_dwordx4 {v(XD+i)}, {s(rX,4)}, s{t0} offen offset:{i*1024} lds", tag) for i in range(4)]
        ops += [(f"s_lshr_b32 s3, s{sW12}, 1\ns_add_u32 m0, s3, {slot + 32768}", None)]
        ops += [(f"buffer_load_dwordx4 {v(CD+i)}, {s(rB,4)}, s{t1} offen offset:{i*1024} lds", tag) for i in range(2)]
        if full:
            ops += [(f"s_add_u32 m0, s{sW12}, {slot + 16384}", None)]
            ops += [(f"buffer_load_dwordx4 {v(WD+i)}, {s(rW1,4)}, s{sKW} offen offset:{i*1024} lds", tag) for i in range(4)]
        return ops

    def turn(i, shift):
        if not brot:
            return f"s_mov_b32 s3, {i << shift}"
        return f"s_add_u32 s3, s{sR3}, {i}\ns_cmp_ge_u32 s3, 3\ns_cselect_b32 s{sCNT}, 3, 0\ns_sub_u32 s3, s3, s{sCNT}\ns_lshl_b32 s3, s3, {shift}"

    def ring_ops(b):
        if "pair" in ablate and b >= 6:
            return [(f"buffer_load_dword a254, {v(L16)}, {s(rW2,4)}, 0 offen", f"rb{b}")]
        tag = f"rb{b}"
        if b < 7:
            src, add = (sBE, b) if b < 3 else (sBX, 0) if b == 3 else (sBL, b - 4)
            head = f"s_mov_b32 s{t0}, s{src}" if b == 3 else turn(add, 17) + f"\ns_add_u32 s{t0}, s{src}, s3"
            if one:
                head = f"s_add_u32 s{t0}, s{sBE}, {b*65536}"
            step = f"s_xor_b32 s{t0}, s{t0}, 32768"
            r, D = rW2, W2D
        else:
            head = (f"s_lshl_b32 s{t0}, s{sN}, 1\ns_and_b32 s3, s{sW}, 1\ns_or_b32 s{t0}, s{t0}, s3\ns_lshl_b32 s{t0}, s{t0}, 15\n"
                    f"s_lshl_b32 s3, s{sW}, 8\ns_add_u32 s{t0}, s{t0}, s3")
            step = f"s_xor_b32 s{t0}, s{t0}, 32768"
            if brot:
                head += (f"\ns_xor_b32 s3, s{sN}, {b-7}\ns_bitcmp1_b32 s3, 1\ns_cselect_b32 s{rB}, s{rCI}, s{rCR}\ns_cselect_b32 s{rB+1}, s{rCI+1}, s{rCR+1}"
                         f"\ns_and_b32 s3, s3, 1\ns_lshl_b32 s3, s3, 7\ns_add_u32 s{t0}, s{t0}, s3")
                r, D = rB, CD
            else:
                if (b - 7) & 1:
                    head += f"\ns_add_u32 s{t0}, s{t0}, 128"
                r, D = (rCI if b >= 9 else rCR), CD
        ops = [(head + f"\ns_add_u32 m0, s{sW13}, {RING[b]}", None)]
        for i in range(8):
            flat = krot and b < 7
            if i == 4:
                ops.append((f"s_add_u32 m0, m0, {1024 if flat else 4096}\n{step}", None))
            elif i and flat:
                ops.append(("s_add_u32 m0, m0, 1024", None))
            ops.append((f"buffer_load_dwordx4 {v(D+(i&3))}, {s(r,4)}, s{t0} offen offset:{0 if flat else (i&3)*1024} lds", tag))
        return ops

    def par_loads():
        k(f"global_load_ushort {v(BI)}, {v(C_)}, {s(pB1,2)}\nglobal_load_ushort {v(BI+1)}, {v(C_)}, {s(pB1,2)} offset:128", "par2")
        k(f"global_load_ushort {v(DSK)}, {v(D_)}, {s(pDS,2)}", "par2")

    def early_setup():
        o = [(srd(rWS, pWS, 1 << 28), None), (f"s_mov_b32 s{sHI}, 0\ns_mov_b32 s{sHI+1}, -1" + (f"\ns_getreg_b32 s{sXCC}, hwreg(HW_REG_XCC_ID)\ns_and_b32 s{sXCC}, s{sXCC}, 15" if xid else ""), None)]
        P0, P1, P2 = TM + 12, TM + 13, TM + 14
        e = lambda text: o.extend(ops_of(text))
        e(f"v_bfe_u32 {v(P0)}, {v(LR)}, 1, 3\nv_xor_b32 {v(P0)}, {v(P0)}, {v(HF)}\nv_lshlrev_b32 {v(P0)}, 4, {v(P0)}\nv_lshl_add_u32 {v(P0)}, {v(LR)}, 7, {v(P0)}")
        e(f"v_add_u32 {v(XR)}, s{sW12}, {v(P0)}\nv_add_u32 {v(BQ)}, 32768, {v(P0)}\nv_add_u32 {v(CR)}, s{sW13}, {v(P0)}")
        for j in (1, 2, 3):
            e(f"v_xor_b32 {v(XR+j)}, {j << 5}, {v(XR)}\nv_xor_b32 {v(BQ+j)}, {j << 5}, {v(BQ)}")
        e(f"v_bfe_u32 {v(P0)}, {v(L)}, 2, 2\nv_and_b32 {v(P1)}, 3, {v(L)}\nv_lshlrev_b32 {v(P1)}, 3, {v(P1)}\nv_bfe_u32 {v(P2)}, {v(L)}, 4, 1\nv_lshl_add_u32 {v(P1)}, {v(P2)}, 5, {v(P1)}")
        e(f"v_lshl_add_u32 {v(P2)}, {v(HF)}, 3, {v(P0)}\nv_lshl_add_u32 {v(P2)}, {v(P2)}, 8, {v(P1)}\nv_lshl_add_u32 {v(P2)}, {v(P0)}, 6, {v(P2)}\nv_add_u32 {v(WR)}, 16384, {v(P2)}")
        for t in (1, 2, 3):
            e(f"v_xor_b32 {v(WR+t)}, {t << 6}, {v(WR)}")
        e(f"v_lshrrev_b32 {v(P2)}, 1, {v(P0)}\nv_lshl_add_u32 {v(P1)}, {v(P2)}, 6, {v(P1)}\nv_lshl_add_u32 {v(P2)}, {v(HF)}, 2, {v(P0)}\nv_lshl_add_u32 {v(P2)}, {v(P2)}, 7, {v(P1)}\nv_add_u32 {v(W2R)}, s{sW13}, {v(P2)}")
        g = lambda text: o.append((text, None))
        g(srd(rW2, pW2, 1792 * 1024)); g(srd(rCR, pCR, 1 << 19)); g(srd(rCI, pCI, 1 << 19)); g(srd(rOUT, pOUT, 4 << 20))
        g(f"s_lshl_b32 s3, s{sG}, 13\ns_add_u32 s{rE}, s{pWS}, s3\ns_addc_u32 s{rE+1}, s{pWS+1}, 0\ns_add_u32 s{rE}, s{rE}, {EG}\ns_addc_u32 s{rE+1}, s{rE+1}, 0\n"
          f"s_mov_b32 s{rE+2}, 8192\ns_mov_b32 s{rE+3}, 0x20000")
        g(f"s_lshr_b32 s3, s{sG}, 3\ns_lshl_b32 s{sM}, s{sC}, 1\ns_or_b32 s{sM}, s{sM}, s3")
        g(f"s_and_b32 s{sR3}, s{sN}, 3\ns_cmp_eq_u32 s{sR3}, 3\ns_cselect_b32 s{sR3}, 0, s{sR3}")
        g(f"s_cmp_eq_u32 s{sW}, 3\ns_cselect_b32 s3, 1, 0\ns_lshl_b32 s{sGE}, s{sW}, 2\ns_sub_u32 s{sGE}, s{sGE}, s3\ns_mul_i32 s{sGL}, s{sW}, 3\ns_add_u32 s{sGL}, s{sGL}, s3")
        g(f"s_lshl_b32 s{sAE}, s{sGE}, 13\ns_lshl_b32 s{sAL}, s{sGL}, 13\ns_add_u32 s{sAL}, s{sAL}, 4096\ns_add_u32 s{sAX}, s{sAE}, {6*4096}\ns_add_u32 s3, s{sAL}, 8192\n"
          f"s_cmp_lt_u32 s{sW}, 2\ns_cselect_b32 s{sAX}, s{sAX}, s{sAL}\ns_cselect_b32 s{sAL}, s{sAL}, s3")
        if one:
            g(f"s_mul_i32 s{sAE}, s{sW}, {7*4096}\ns_mul_i32 s{sGE}, s{sW}, 7\ns_lshr_b32 s{sGE}, s{sGE}, 1")
        g(f"s_lshl_b32 s3, s{sN}, 7\ns_lshl_b32 s{sBE}, s{sAE}, 4\ns_lshl_b32 s{sBX}, s{sAX}, 4\ns_lshl_b32 s{sBL}, s{sAL}, 4\n"
          f"s_add_u32 s{sBE}, s{sBE}, s3\ns_add_u32 s{sBX}, s{sBX}, s3\ns_add_u32 s{sBL}, s{sBL}, s3")
        g(f"s_lshl_b32 s3, s{sC}, 2\ns_add_u32 s3, s3, s{sW}\ns_mul_i32 s{sAF}, s3, {MT}\ns_add_u32 s{sAF}, s{sAF}, {AF}")
        return o

    def row_stats():
        o = []
        def k2(text, tag=None, atomic=False):
            o.extend([(text, tag)] if atomic or tag else ops_of(text))
        S1, S2, U1, U2 = TM, TM + 1, TM + 2, TM + 3
        k2(f"v_mov_b32 {v(S1)}, 0\nv_mov_b32 {v(S2)}, 0\ns_mov_b32 s{t3}, 0x3f803f80")
        o.append(W(vm="srow"))
        for i in range(8):
            k2(f"v_dot2c_f32_bf16 {v(S1)}, s{t3}, {v(SR+i)}\nv_dot2c_f32_bf16 {v(S2)}, {v(SR+i)}, {v(SR+i)}")
        for r in (8, 4, 2, 1):
            k2(f"v_add_f32_dpp {v(S1)}, {v(S1)}, {v(S1)} row_ror:{r} row_mask:0xf bank_mask:0xf")
            k2(f"v_add_f32_dpp {v(S2)}, {v(S2)}, {v(S2)} row_ror:{r} row_mask:0xf bank_mask:0xf")
        k2(f"v_mov_b32 {v(U1)}, {v(S1)}\nv_mov_b32 {v(U2)}, {v(S2)}")
        k2(f"v_permlane16_swap_b32 {v(S1)}, {v(U1)}\nv_permlane16_swap_b32 {v(S2)}, {v(U2)}")
        k2(f"v_add_f32 {v(S1)}, {v(S1)}, {v(U1)}\nv_add_f32 {v(S2)}, {v(S2)}, {v(U2)}")
        k2(f"v_mul_f32 {v(S1)}, 0x3b000000, {v(S1)}\nv_mul_f32 {v(S2)}, 0x3b000000, {v(S2)}")
        k2(f"v_fma_f32 {v(S2)}, -{v(S1)}, {v(S1)}, {v(S2)}\nv_max_f32 {v(S2)}, 0, {v(S2)}")
        k2(f"v_cvt_pk_bf16_f32 {v(S2)}, {v(S2)}, {v(S2)}\nv_and_b32 {v(S2)}, 0xffff0000, {v(S2)}\nv_add_f32 {v(S2)}, 0x3727c5ac, {v(S2)}")
        k2(f"v_cvt_pk_bf16_f32 {v(S2)}, {v(S2)}, {v(S2)}\nv_and_b32 {v(S2)}, 0xffff0000, {v(S2)}\nv_sqrt_f32 {v(S2)}, {v(S2)}")
        k2(f"v_cvt_pk_bf16_f32 {v(SR)}, {v(S1)}, {v(S2)}")
        k2("s_waitcnt lgkmcnt(0)")
        k2(f"s_mul_i32 s{sTAG}, s{sTAG}, 0x9e3779b1\ns_add_u32 s{sTAG}, s{sTAG}, 0x7f4a7c15")
        k2(f"v_mov_b32 {v(SR+1)}, s{sTAG}\nv_lshlrev_b32 {v(U1)}, 3, {v(HF)}")
        if xid:
            k2(f"v_mov_b32 {v(SR+2)}, s{sXCC}\nv_mov_b32 {v(SR+3)}, s{sTAG}")
        k2(f"s_lshr_b32 s{t2}, s{t2}, 7\ns_add_u32 s{t2}, s{t2}, {STATS}")
        if xid:
            k2(f"s_lshl_b32 s{t3}, s{sC}, 4\ns_add_u32 s{t3}, s{t3}, s{sG}\ns_lshl_b32 s{t3}, s{t3}, 3\ns_add_u32 s{t3}, s{t3}, {XID}")
        def publish():
            k("s_mov_b32 exec_lo, 1\ns_mov_b32 exec_hi, 1")
            k(f"buffer_store_dwordx2 {v(SR,2)}, {v(U1)}, {s(rWS,4)}, s{t2} offen sc1", "pub0")
            if xid:
                k(f"buffer_store_dwordx2 {v(SR+2,2)}, off, {s(rWS,4)}, s{t3} sc1", "pub0")
            k("s_mov_b64 exec, -1")
            stamp("stats")
        o.append(publish)
        return o

    def late_setup(full):
        o = []
        e = lambda text: o.extend(ops_of(text))
        g = lambda text: o.append((text, None))
        P0, P1, P2 = TM + 12, TM + 13, TM + 14
        if krot:
            g(f"s_add_u32 s{sROT2}, s{sC}, s{sN}\ns_and_b32 s{sROT2}, s{sROT2}, 3\ns_lshl_b32 s3, s{sROT2}, 5\nv_xor_b32 {v(CR)}, s3, {v(CR)}")
        for j in (1, 2, 3):
            e(f"v_xor_b32 {v(CR+j)}, {j << 5}, {v(CR)}")
        for j in range(4):
            e(f"v_add_u32 {v(CR+4+j)}, {HIGH}, {v(CR+j)}")
        e(f"v_xor_b32 {v(W2R+1)}, 64, {v(W2R)}\nv_add_u32 {v(W2R+2)}, {HIGH}, {v(W2R)}\nv_add_u32 {v(W2R+3)}, {HIGH}, {v(W2R+1)}")
        e(f"v_lshrrev_b32 {v(P0)}, 3, {v(L)}\nv_and_b32 {v(P1)}, 7, {v(L)}\nv_bfe_u32 {v(P2)}, {v(L)}, 4, 1\nv_lshlrev_b32 {v(P2)}, 2, {v(P2)}")
        e(f"v_xor_b32 {v(P1)}, {v(P1)}, {v(P2)}\nv_lshlrev_b32 {v(P1)}, 4, {v(P1)}")
        g(f"s_and_b32 s3, s{sW}, 1\ns_lshl_b32 s3, s3, 6\nv_xor_b32 {v(P1)}, s3, {v(P1)}")
        e(f"v_lshl_add_u32 {v(W2D)}, {v(P0)}, 10, {v(P1)}")
        if krot:
            g(f"s_and_b32 s3, s{sROT2}, 1\ns_lshl_b32 s3, s3, 14\nv_xor_b32 {v(W2D)}, s3, {v(W2D)}")
            e(f"v_xor_b32 {v(W2D+2)}, 0x4000, {v(W2D)}\nv_add_u32 {v(W2D+1)}, 8192, {v(W2D)}\nv_add_u32 {v(W2D+3)}, 8192, {v(W2D+2)}")
            g(f"s_lshr_b32 s3, s{sROT2}, 1\ns_lshl_b32 s3, s3, 15\ns_add_u32 s{sBE}, s{sBE}, s3\ns_add_u32 s{sBX}, s{sBX}, s3\ns_add_u32 s{sBL}, s{sBL}, s3")
        else:
            for i in (1, 2, 3):
                e(f"v_add_u32 {v(W2D+i)}, {i*7168}, {v(W2D)}")
        e(f"v_bfe_u32 {v(P0)}, {v(LR)}, 2, 1\nv_lshrrev_b32 {v(P1)}, 3, {v(LR)}\nv_and_b32 {v(P2)}, 3, {v(LR)}")
        e(f"v_lshl_add_u32 {v(P2)}, {v(P1)}, 2, {v(P2)}\nv_lshl_add_u32 {v(TAU)}, {v(P0)}, 4, {v(P2)}")
        for z in (XA + 2, XA + 3, XB + 2, XB + 3, WE + 2, WE + 3, WE + 6, WE + 7, WE + 10, WE + 11):
            e(f"v_mov_b32 {v(z)}, 0")
        LRE, LIM, DT, A2, BRV, X0, X1, X2 = range(PL, PL + 8)
        o.append(W(vm="par2"))
        e(f"v_lshlrev_b32 {v(LRE)}, 16, {v(LRE)}\nv_lshlrev_b32 {v(LIM)}, 16, {v(LIM)}\nv_lshlrev_b32 {v(DT)}, 16, {v(DT)}\nv_lshlrev_b32 {v(DSK)}, 16, {v(DSK)}")
        e(f"v_mul_f32 {v(DT)}, {LOG2E:#x}, {v(DT)}\nv_exp_f32 {v(DT)}, {v(DT)}\nv_cvt_pk_bf16_f32 {v(DT)}, {v(DT)}, {v(DT)}\nv_and_b32 {v(DT)}, 0xffff0000, {v(DT)}")
        e(f"v_mul_f32 {v(A2)}, {v(DT)}, {v(LRE)}\nv_mul_f32 {v(BRV)}, {v(DT)}, {v(LIM)}\nv_mul_f32 {v(A2)}, {LOG2E:#x}, {v(A2)}\nv_mul_f32 {v(BRV)}, 0.15915494, {v(BRV)}")
        def cpow(n, dr, di):
            e(f"v_mul_f32 {v(X0)}, {n}, {v(A2)}\nv_mul_f32 {v(X1)}, {n}, {v(BRV)}\nv_exp_f32 {v(X0)}, {v(X0)}\nv_fract_f32 {v(X1)}, {v(X1)}")
            e(f"v_cos_f32 {v(dr)}, {v(X1)}\nv_sin_f32 {v(di)}, {v(X1)}\nv_mul_f32 {v(dr)}, {v(dr)}, {v(X0)}\nv_mul_f32 {v(di)}, {v(di)}, {v(X0)}")
        cpow("1.0", LAR, LAI); cpow("0x41800000", L16R, L16I); cpow("0x43800000", L2R, L2I)
        g(f"s_lshl_b32 s3, s{sW}, 1\nv_add_u32 {v(X2)}, s3, {v(HF)}")
        e(f"v_lshlrev_b32 {v(X2)}, 4, {v(X2)}\nv_cvt_f32_u32 {v(X2)}, {v(X2)}")
        cpow(v(X2), PWR, PWI)
        g(f"s_lshl_b32 s3, s{sW}, 2\nv_add_u32 {v(X2)}, s3, {v(HF)}")
        e(f"v_lshlrev_b32 {v(X2)}, 7, {v(X2)}\nv_cvt_f32_u32 {v(X2)}, {v(X2)}")
        cpow(v(X2), SCRR, SCI)
        e(f"v_sub_f32 {v(NLAI)}, 0, {v(LAI)}\nv_sub_f32 {v(NL16I)}, 0, {v(L16I)}")
        e(f"v_mul_f32 {v(X0)}, {v(LRE)}, {v(LRE)}\nv_fmac_f32 {v(X0)}, {v(LIM)}, {v(LIM)}\nv_rcp_f32 {v(X0)}, {v(X0)}\nv_subrev_f32 {v(X1)}, 1.0, {v(LAR)}")
        e(f"v_mul_f32 {v(CFR)}, {v(X1)}, {v(LRE)}\nv_mul_f32 {v(NCFI)}, {v(X1)}, {v(LIM)}\nv_mul_f32 {v(X0)}, 0x4038aa3b, {v(X0)}")
        e(f"v_fmac_f32 {v(CFR)}, {v(LAI)}, {v(LIM)}\nv_fmac_f32 {v(NCFI)}, {v(NLAI)}, {v(LRE)}")
        e(f"v_mul_f32 {v(CFR)}, {v(CFR)}, {v(X0)}\nv_mul_f32 {v(NCFI)}, {v(NCFI)}, {v(X0)}\nv_sub_f32 {v(NCFR)}, 0, {v(CFR)}")
        e(f"v_mul_f32 {v(T)}, {v(CFR)}, {v(LAR)}\nv_mul_f32 {v(T+16)}, {v(CFR)}, {v(LAI)}\nv_fmac_f32 {v(T)}, {v(NCFI)}, {v(LAI)}\nv_fma_f32 {v(T+16)}, -{v(NCFI)}, {v(LAR)}, {v(T+16)}")
        for i in range(1, 16):
            e(f"v_mul_f32 {v(T+i)}, {v(T+i-1)}, {v(LAR)}\nv_mul_f32 {v(T+16+i)}, {v(T+15+i)}, {v(LAR)}")
            e(f"v_fmac_f32 {v(T+i)}, {v(T+15+i)}, {v(NLAI)}\nv_fmac_f32 {v(T+16+i)}, {v(T+i-1)}, {v(LAI)}")
        return o

    GS, GX, GA = TM, TM + 2, TM + 16

    def gran_loads(full):
        ops = [(f"s_lshr_b32 s{t2}, s{sXB}, 7\ns_add_u32 s{t2}, s{t2}, {STATS}\nv_lshlrev_b32 {v(GA)}, 3, {v(TAU)}", None),
               (f"buffer_load_dwordx2 {v(GS,2)}, {v(GA)}, {s(rWS,4)}, s{t2} offen sc1", "gran"),
               (f"s_lshl_b32 s{t2}, s{sC}, 7\ns_add_u32 s{t2}, s{t2}, {XID}\nv_and_b32 {v(GA)}, 15, {v(L)}\nv_lshlrev_b32 {v(GA)}, 3, {v(GA)}", None),
               (f"buffer_load_dwordx2 {v(GX,2)}, {v(GA)}, {s(rWS,4)}, s{t2} offen sc1", "gran"),
               (f"s_lshl_b32 s{t2}, s{sG}, 8\ns_add_u32 s{t2}, s{t2}, {CS + 1792*8}\nv_lshlrev_b32 {v(GA)}, 12, {v(HF)}\nv_lshl_add_u32 {v(GA)}, {v(LR)}, 3, {v(GA)}", None),
               (f"buffer_load_dwordx2 {v(WE+8,2)}, {v(GA)}, {s(rWS,4)}, s{t2} offen sc1", "gran")]
        if not xid:
            del ops[2:4]
        if full:
            ops += [(f"s_lshl_b32 s{t2}, s{sF}, 10\ns_add_u32 s{t2}, s{t2}, {CS}\nv_lshlrev_b32 {v(GA)}, 3, {v(L)}", None),
                    (f"buffer_load_dwordx2 {v(WE,2)}, {v(GA)}, {s(rWS,4)}, s{t2} offen sc1", "gran"),
                    (f"buffer_load_dwordx2 {v(WE+4,2)}, {v(GA)}, {s(rWS,4)}, s{t2} offen offset:512 sc1", "gran")]
        return ops

    cold = []
    def spin_check(name, tag, mismatch, reload):
        again, ok = k.label(name + "_again"), k.label(name + "_ok")
        k.wait(vm=tag)
        k(mismatch)
        k(f"s_mov_b32 s{sCNT}, 0\ns_nop 0\ns_cbranch_vccnz {again}")
        k(ok + ":")
        loads = "\n".join(op[0] for op in reload)
        if backoff:
            loads = f"s_sleep {backoff}\n" + loads
        cold.append(f"{again}:\n{loads}\ns_waitcnt vmcnt(0)\n{mismatch}\ns_add_u32 s{sCNT}, s{sCNT}, 1\ns_cmp_gt_u32 s{sCNT}, {SPIN}\n"
                    f"s_cbranch_scc1 {ok}\ns_cbranch_vccnz {again}\ns_branch {ok}")

    def tags_differ(regs, tmp):
        t = f"v_xor_b32 {v(tmp)}, s{sTAG}, {v(regs[0])}\n"
        for r in regs[1:]:
            t += f"v_xor_b32 {v(tmp+1)}, s{sTAG}, {v(r)}\nv_or_b32 {v(tmp)}, {v(tmp)}, {v(tmp+1)}\n"
        return t + f"v_cmp_ne_u32 vcc, 0, {v(tmp)}"

    rsv_reads = lambda: [(f"ds_read_b128 {v(RSV+4*q,4)}, {v(GA+2)} offset:{q*16}", "rsv") for q in range(4)]

    def gran_check(full):
        spin_check("gran", "gran", tags_differ([GS + 1, WE + 9] + ([GX + 1] if xid else []) + ([WE + 1, WE + 5] if full else []), GA), gran_loads(full))
        if xid:
            k(f"v_cmp_ne_u32 vcc, s{sXCC}, {v(GX)}")
        k(f"v_and_b32 {v(GA)}, 0xffff, {v(GS)}\nv_and_b32 {v(GA+1)}, 0xffff0000, {v(GS)}\nv_lshlrev_b32 {v(MF)}, 16, {v(GS)}")
        if xid:
            k(f"s_cmp_eq_u64 vcc, 0\ns_cselect_b32 s{sLOC}, 1, 0")
        k(f"v_rcp_f32 {v(RS)}, {v(GA+1)}\nv_xor_b32 {v(GA)}, 0x8000, {v(GA)}\nv_lshrrev_b32 {v(GA+1)}, 16, {v(GS)}\nv_lshl_or_b32 {v(GA)}, {v(GA)}, 16, {v(GA)}")
        k(f"v_cndmask_b32 {v(XA)}, {v(GA)}, 0, {s(sHI,2)}\nv_cndmask_b32 {v(XA+1)}, {v(GA+1)}, 0, {s(sHI,2)}")
        k(f"v_cndmask_b32 {v(XB)}, 0, {v(GA)}, {s(sHI,2)}\nv_cndmask_b32 {v(XB+1)}, 0, {v(GA+1)}, {s(sHI,2)}\nv_mov_b32 {v(WE+9)}, 0")
        k(f"s_lshr_b32 s3, s{sW12}, 5\ns_add_u32 s3, s3, {SCR}\nv_lshlrev_b32 {v(GA)}, 9, {v(HF)}\nv_lshl_add_u32 {v(GA)}, {v(TAU)}, 2, {v(GA)}\nv_add_u32 {v(GA)}, s3, {v(GA)}")
        k(f"v_lshlrev_b32 {v(GA+2)}, 6, {v(HF)}\nv_add_u32 {v(GA+2)}, s3, {v(GA+2)}")
        mfma(SS, v(XA, 4), v(WE + 8, 4)); mfma(SS + 16, v(XB, 4), v(WE + 8, 4))
        k(f"v_cndmask_b32 {v(GA+1)}, {v(RS)}, {v(MF)}, {s(sHI,2)}\nv_mul_f32 {v(C1)}, {LOG2E:#x}, {v(RS)}")
        k(f"ds_write_b32 {v(GA)}, {v(GA+1)}", "stw")
        if not (full and order == "m"):
            run(rsv_reads())
        if full:
            k(f"v_mov_b32 {v(WE+1)}, {v(BI)}\nv_mov_b32 {v(WE+5)}, {v(BI+1)}\ns_lshl_b32 s3, s{sF}, 13\ns_add_u32 s{sA0}, s{sAF}, s3")
            for t in range(4):
                mfma(ACC + 16 * t, v(WE + 4 * (t >> 1), 4), v(XB if t & 1 else XA, 4))

    def pf_ops():
        if not l2pf:
            return [("s_nop 0", "none")]
        P, Q = TM + 18, TM + 19
        rows = mapping != "x8g4"
        o = []
        for h in range(2 if rows else 1):
            col = f"s_mov_b32 s3, {h*4}" if rows else f"s_and_b32 s3, s{sXD}, 1\ns_lshl_b32 s3, s3, 2"
            skip = f"v_cmp_eq_u32 vcc, {lite}, {v(Q)}\nv_lshrrev_b32 {v(P)}, 2, {v(L)}\nv_min_u32 {v(P)}, 13, {v(P)}\nv_subbrev_co_u32 {v(Q)}, vcc, 0, {v(Q)}, vcc\n" if trickle else \
                   f"v_lshrrev_b32 {v(P)}, 2, {v(L)}\nv_min_u32 {v(P)}, 13, {v(P)}\n"
            o += [(f"{col}\nv_and_b32 {v(Q)}, 3, {v(L)}\nv_add_u32 {v(Q)}, s3, {v(Q)}\n{skip}v_lshlrev_b32 {v(Q)}, 7, {v(Q)}\nv_lshl_add_u32 {v(P)}, {v(P)}, 10, {v(Q)}\n"
                   f"s_lshl_b32 s{t2}, s{sJ}, 2\ns_add_u32 s{t2}, s{t2}, s{sW}\ns_mul_i32 s{t2}, s{t2}, {14*1024}", None),
                  (f"buffer_load_dword a255, {v(P)}, {s(rW2,4)}, s{t2} offen", "pf2")]
        half = "" if rows else f"s_and_b32 s3, s{sXD}, 1\ns_lshl_b32 s3, s3, 18\ns_add_u32 s{t2}, s{t2}, s3\n"
        o += [(f"s_lshl_b32 s{t2}, s{sJ}, 2\ns_add_u32 s{t2}, s{t2}, s{sW}\ns_lshl_b32 s{t2}, s{t2}, {12 if rows else 11}\n{half}"
               f"v_and_b32 {v(P)}, {31 if rows else 15}, {v(L)}\nv_lshlrev_b32 {v(P)}, 7, {v(P)}", None),
              (f"buffer_load_dword a255, {v(P)}, {s(rCR,4)}, s{t2} offen", "pf2"),
              (f"buffer_load_dword a255, {v(P)}, {s(rCI,4)}, s{t2} offen", "pf2")]
        return o

    def far_ops():
        if far_at is None:
            return []
        P, Q = TM + 18, TM + 19
        return [(f"s_lshl_b32 s{t2}, s2, 2\ns_add_u32 s{t2}, s{t2}, s{sW}\ns_mul_i32 s3, s{t2}, {14*128}\nv_lshrrev_b32 {v(P)}, 2, {v(L)}\nv_min_u32 {v(Q)}, 13, {v(P)}\nv_lshlrev_b32 {v(Q)}, 7, {v(Q)}\n"
                 f"buffer_load_dword a255, {v(Q)}, {s(rW2,4)}, s3 offen", "far"),
                (f"s_lshl_b32 s{t2}, s{t2}, 9\nv_and_b32 {v(P)}, 3, {v(P)}\nv_lshlrev_b32 {v(P)}, 7, {v(P)}\nbuffer_load_dword a255, {v(P)}, {s(rCR,4)}, s{t2} offen", "far"),
                (f"buffer_load_dword a255, {v(P)}, {s(rCI,4)}, s{t2} offen", "far")]

    def weave(mem, val):
        n = sum(1 for op in mem if not callable(op) and op[1] is not None)
        for m, c in zip(spread_mem(mem, n), spread(val, n)):
            run(m); run(c)

    def stage_reads(b):
        hi = RING[b] >= HIGH
        return [W(vm=f"rb{b}")] + [(f"ds_read_b64_tr_b16 {a(RESB[b]+8*j+4*c+2*rd,2)}, {v(W2R+2*hi+c)} offset:{RING[b] - hi*HIGH + j*2048 + rd*1024}", f"sr{b}")
                                   for j in range(4) for c in range(2) for rd in range(2)]

    EA, EB, EX0, EX1, E0 = XD, XD + 1, XD + 2, XD + 3, TM
    HA, HB, XW, XQ = WD, WD + 1, WD + 2, WD + 3
    def e_loads():
        return [(f"buffer_load_dwordx4 {v(E0,4)}, {v(EA)}, {s(rE,4)}, 0 offen sc1", "eg"),
                (f"buffer_load_dwordx4 {v(E0+4,4)}, {v(EB)}, {s(rE,4)}, 0 offen sc1", "eg")]

    def epi_addr():
        o = []
        e = lambda text: o.extend(ops_of(text))
        P = TM + 12
        o.append((f"s_lshl_b32 s3, s{sW}, 2\ns_sub_u32 s3, s{sC}, s3\ns_sub_u32 s3, s3, 1\nv_sub_u32 {v(EA)}, s3, {v(HF)}", None))
        e(f"v_subrev_u32 {v(EB)}, 2, {v(EA)}\nv_ashrrev_i32 {v(EX0)}, 31, {v(EA)}\nv_ashrrev_i32 {v(EX1)}, 31, {v(EB)}\n"
          f"v_bfi_b32 {v(EX0)}, {v(EX0)}, 0, s{sTAG}\nv_bfi_b32 {v(EX1)}, {v(EX1)}, 0, s{sTAG}\nv_lshlrev_b32 {v(P)}, 4, {v(LR)}\n"
          f"v_lshl_add_u32 {v(EA)}, {v(EA)}, 9, {v(P)}\nv_lshl_add_u32 {v(EB)}, {v(EB)}, 9, {v(P)}")
        o.append((f"s_lshr_b32 s3, s{sW12}, 3\ns_add_u32 s3, s3, {SCR_EX}\nv_lshl_add_u32 {v(XW)}, {v(L)}, 3, s3", None))
        e(f"v_lshlrev_b32 {v(XQ)}, 3, {v(LR)}\nv_add_u32 {v(XQ)}, {SCR_EX}, {v(XQ)}")
        o.append((f"s_lshr_b32 s3, s{sW}, 1\ns_mul_i32 s3, s3, {SLOT - 8192}\ns_add_u32 s3, s3, s{sW12}\ns_add_u32 s{sKW}, s3, {SCR_HT}", None))
        e(f"v_lshlrev_b32 {v(HA)}, 5, {v(HF)}\nv_lshl_add_u32 {v(HA)}, {v(LR)}, 6, {v(HA)}\nv_add_u32 {v(HA)}, s{sKW}, {v(HA)}")
        e(f"v_bfe_u32 {v(HB)}, {v(L)}, 2, 2\nv_lshl_add_u32 {v(HB)}, {v(HF)}, 3, {v(HB)}\nv_lshlrev_b32 {v(HB)}, 6, {v(HB)}")
        e(f"v_and_b32 {v(P)}, 1, {v(L)}\nv_lshl_add_u32 {v(HB)}, {v(P)}, 5, {v(HB)}\nv_bfe_u32 {v(P)}, {v(L)}, 1, 1\nv_lshl_add_u32 {v(HB)}, {v(P)}, 3, {v(HB)}")
        e(f"v_bfe_u32 {v(P)}, {v(L)}, 4, 1\nv_lshl_add_u32 {v(HB)}, {v(P)}, 4, {v(HB)}\nv_add_u32 {v(HB)}, s{sKW}, {v(HB)}")
        o.append((f"s_lshr_b32 s3, s{sG}, 2\ns_lshl_b32 s3, s3, 3\ns_and_b32 s{sKW}, s{sG}, 3\ns_add_u32 s3, s3, s{sKW}\ns_lshl_b32 s3, s3, 11\ns_add_u32 s{sKW}, s{sAF}, s3\ns_add_u32 s{sKW}, s{sKW}, {112*1024}", None))
        o.append((f"s_lshl_b32 s3, s{sM}, 1\ns_lshr_b32 s{sP0}, s{sW}, 1\ns_add_u32 s{sP0}, s3, s{sP0}\ns_xor_b32 s{sP1}, s{sP0}, 1\n"
                  f"s_mul_i32 s{sP0}, s{sP0}, {MT}\ns_mul_i32 s{sP1}, s{sP1}, {MT}\ns_add_u32 s{sP0}, s{sP0}, {AF}\ns_add_u32 s{sP1}, s{sP1}, {AF}", None))
        return o

    def gemm1(full, pfx):
        nm = 6 if full else 2
        base_of = lambda stg: ((stg % 4) // 2) * HIGH
        def reads(n):
            stg, j = divmod(n, 4)
            off = (stg % 4) * SLOT - base_of(stg)
            f = FR + 28 * (n & 1)
            d = base_of(stg) - base_of(stg - 1) if stg else 0
            adj = lambda r, on=True: f"v_add_u32 {v(r)}, {d & 0xffffffff:#x}, {v(r)}\n" if d and on else ""
            o = [(adj(XR + j) + f"ds_read_b128 {a(f,4)}, {v(XR+j)} offset:{off}", f"ra{n}")]
            o += [(adj(BQ + j, c == 0) + f"ds_read_b128 {a(f+4+4*c,4)}, {v(BQ+j)} offset:{off + c*4096}", f"ra{n}") for c in range(2)]
            if full:
                o += [(adj(WR + t, j == 0 and rd == 0) + f"ds_read_b64_tr_b16 {a(f+12+4*t+2*rd,2)}, {v(WR+t)} offset:{off + j*4096 + rd*1024}", f"ra{n}" if t == 0 else f"rb_{n}")
                      for t in range(4) for rd in range(2)]
            return o
        if look == 2:
            mem = {sg: stage_ops(sg + 2, full) for sg in range(6)}
            if pre3:
                mem[0] = []
            mem.update({6: ring_ops(0), 7: ring_ops(1)})
        else:
            ramp = spread_mem(sum((stage_ops(sg, full) for sg in range(2, 6)), []), 3)
            mem = {0: ramp[0], 1: ramp[1], 2: ramp[2], 3: stage_ops(6, full), 4: stage_ops(7, full), 5: ring_ops(0), 6: ring_ops(1), 7: ring_ops(2)}
        mem[pf_at] = pf_ops() + mem[pf_at]
        if far_at is not None:
            mem[far_at] = mem[far_at] + far_ops()
        mem[gran_at] = gran_loads(full) + mem[gran_at]
        if trk_w2 is not None and mapping == "x8g4":
            P, Q = TM + 18, TM + 19
            for q in range(4):
                head = (f"s_and_b32 s3, s{sXD}, 1\ns_lshl_b32 s3, s3, 2\nv_bfe_u32 {v(Q)}, {v(L)}, 2, 2\nv_add_u32 {v(Q)}, s3, {v(Q)}\nv_cmp_eq_u32 vcc, {lite}, {v(Q)}\n"
                        f"v_lshrrev_b32 {v(P)}, 4, {v(L)}\nv_lshlrev_b32 {v(P)}, 10, {v(P)}\nv_subbrev_co_u32 {v(Q)}, vcc, 0, {v(Q)}, vcc\nv_lshl_add_u32 {v(P)}, {v(Q)}, 7, {v(P)}\n"
                        f"s_lshl_b32 s{sJ}, s{sJ}, 2\ns_add_u32 s{sJ}, s{sJ}, s{sW}\ns_mul_i32 s{sJ}, s{sJ}, {14*1024}\n") if q == 0 else f"s_add_u32 s{sJ}, s{sJ}, {4096 if q < 3 else 2048}\n"
                mem[trk_w2 + q] = mem[trk_w2 + q] + [(head + f"buffer_load_dword a255, {v(P)}, {s(rW2,4)}, s{sJ} offen", "trk")]
        if trk_c is not None:
            P = TM + 19
            nrow = 2 if mapping == "x8g4" else 4
            half = f"s_and_b32 s3, s{sXD}, 1\ns_lshl_b32 s3, s3, 18\ns_add_u32 s{t2}, s{t2}, s3\n" if mapping == "x8g4" else ""
            mem[trk_c] = mem[trk_c] + [
                (f"s_lshl_b32 s{t2}, s{sJ}, 2\ns_add_u32 s{t2}, s{t2}, s{sW}\ns_mul_i32 s{t2}, s{t2}, {nrow*1024}\n{half}v_bfe_u32 {v(P)}, {v(L)}, 4, {nrow//2}\nv_lshlrev_b32 {v(P)}, 10, {v(P)}\n"
                 f"buffer_load_dword a255, {v(P)}, {s(rCR,4)}, s{t2} offen offset:384", "trk"),
                (f"buffer_load_dword a255, {v(P)}, {s(rCI,4)}, s{t2} offen offset:384", "trk")]
        if trickle and not full:
            for sg in range(7):
                P = TM + 15
                rows = mapping != "x8g4"
                who = {"rows": f"s_and_b32 s3, s{sC}, 1\ns_lshl_b32 s3, s3, 1\ns_lshr_b32 s{sQ}, s{sG}, 3\ns_add_u32 s3, s3, s{sQ}",
                       "x4g8": f"s_and_b32 s3, s{sC}, 3", "x8g4": f"s_and_b32 s3, s{sC}, 7"}[mapping]
                head = (f"{who}\ns_lshl_b32 s3, s3, 2\ns_add_u32 s3, s3, s{sW}\ns_mul_i32 s{sQ}, s3, {(112 if rows else 56)*1024}\ns_add_u32 s{sQ}, s{sQ}, {lite*128}\n"
                        f"v_lshrrev_b32 {v(P)}, {2 if rows else 3}, {v(L)}\nv_lshlrev_b32 {v(P)}, 10, {v(P)}\n") if sg == 0 else f"s_add_u32 s{sQ}, s{sQ}, {16384 if rows else 8192}\n"
                mem[sg] = mem[sg] + [(head + f"buffer_load_dword a255, {v(P)}, {s(rW2,4)}, s{sQ} offen", "trk")]
        val = late_setup(full)[n_before:] if pre3 else late_setup(full)
        for stg in range(8):
            k.wait(vm=f"st{stg}", lg="all" if look == 3 else None)
            k("s_barrier")
            if stg in (0, 4):
                stamp(f"{pfx}st{stg}")
            steps = ([4 * stg - 1] if stg else []) + [4 * stg, 4 * stg + 1, 4 * stg + 2] + ([31] if stg == 7 else [])
            if stg == 0:
                run(reads(0))
            mm = spread_mem(mem[stg], nm * min(4, len(steps))) if mem[stg] else []
            if stg == 6:
                assert look == 2 or not val
                val = val + epi_addr()
            gi = 0
            for n in steps:
                f = FR + 28 * (n & 1)
                last = n % 4 == 2 and look == 3
                rd = spread(reads(n + 1), nm - 2 if last and full else nm) + [[]] * 2 if n < 31 else [[]] * nm
                for i in range(nm):
                    if i == 0:
                        k.wait(lg=f"ra{n}")
                    if i == 3:
                        k.wait(lg=f"rb_{n}")
                    c0 = "0" if n == 0 else None
                    if i < 2:
                        mfma(SS + 16 * i, a(f, 4), a(f + 4 + 4 * i, 4), c0)
                    else:
                        mfma(ACC + 16 * (i - 2), a(f + 12 + 4 * (i - 2), 4), a(f, 4), c0)
                    here = rd[i] + (mm[gi] if gi < len(mm) else [])
                    run(here)
                    used = 8 + sum(map(cost, here)) + (6 if i in (2, nm - 1) else 0)
                    while val and (used + cost(val[0]) <= budget or (not full and used < 60)):
                        used += cost(val[0])
                        run([val.pop(0)])
                    gi += 1
                probe(f"g{n}")
        run(val)

    def scan_ops():
        o = [W(lg="rsv")]
        for r in range(0, 16, 2):
            o += ops_of(f"v_pk_mul_f32 {v(SS+r,2)}, {v(SS+r,2)}, {v(RSV+r,2)}\nv_pk_mul_f32 {v(SS+16+r,2)}, {v(SS+16+r,2)}, {v(RSV+r,2)}")
        for r in range(1, 16):
            o += ops_of(f"v_fmac_f32 {v(SS+r)}, {v(LAR)}, {v(SS+r-1)}\nv_fmac_f32 {v(SS+16+r)}, {v(LAR)}, {v(SS+15+r)}\n"
                        f"v_fmac_f32 {v(SS+r)}, {v(NLAI)}, {v(SS+15+r)}\nv_fmac_f32 {v(SS+16+r)}, {v(LAI)}, {v(SS+r-1)}")
        o.append((f"ds_write2_b32 {v(XW)}, {v(SS+15)}, {v(SS+31)} offset0:0 offset1:1", "exw"))
        return o

    def chain_ops():
        o = [(f"ds_read_b64 {v(EK+2*q,2)}, {v(XQ)} offset:{q*256}", f"ek{q}") for q in range(8)]
        SG = TM + 17
        o.append((f"s_lshl_b32 s3, s{sW}, 1\nv_add_u32 {v(SG)}, s3, {v(HF)}", None))
        o += ops_of(f"v_mov_b32 {v(PR)}, 0\nv_mov_b32 {v(PI)}, 0\nv_mov_b32 {v(XA+1)}, s{sTAG}\nv_mov_b32 {v(XA+3)}, s{sTAG}")
        o.append(W(lg="ek3"))
        for q in range(1, 8):
            r, i = EK + 2 * q, EK + 2 * q + 1
            dr, di = (XA, XA + 2) if q == 7 else (r, i)
            if q == 4:
                o.append(W(lg="ek7"))
            o += ops_of(f"v_cmp_eq_u32 vcc, {q}, {v(SG)}\nv_fmac_f32 {v(r)}, {v(L16R)}, {v(r-2)}\nv_fmac_f32 {v(i)}, {v(L16R)}, {v(i-2)}\n"
                        f"v_cndmask_b32 {v(PR)}, {v(PR)}, {v(r-2)}, vcc\nv_cndmask_b32 {v(PI)}, {v(PI)}, {v(i-2)}, vcc\n"
                        f"v_fma_f32 {v(dr)}, {v(NL16I)}, {v(i-2)}, {v(r)}\nv_fma_f32 {v(di)}, {v(L16I)}, {v(r-2)}, {v(i)}")
        o.append((f"s_cmp_eq_u32 s{sW}, 3\ns_cselect_b32 s3, 0, 0x10000\nv_lshlrev_b32 {v(SG)}, 13, {v(HF)}\nv_add3_u32 {v(SG)}, {v(SG)}, {v(L16)}, s3\ns_lshl_b32 s3, s{sC}, 9\n"
                  f"buffer_store_dwordx4 {v(XA,4)}, {v(SG)}, {s(rE,4)}, s3 offen sc1", "epub"))
        return o

    def coef_ops():
        o = []
        for r in range(0, 16, 2):
            tt = XB + (r & 2)
            o += ops_of(f"v_pk_mul_f32 {v(tt,2)}, {v(SS+r,2)}, {v(NCFI,2)} op_sel_hi:[1,0]\nv_pk_mul_f32 {v(SS+r,2)}, {v(SS+r,2)}, {v(CFR,2)} op_sel_hi:[1,0]\n"
                        f"v_pk_fma_f32 {v(SS+r,2)}, {v(SS+16+r,2)}, {v(NCFI,2)}, {v(SS+r,2)} op_sel_hi:[1,0,1]\n"
                        f"v_pk_fma_f32 {v(SS+16+r,2)}, {v(SS+16+r,2)}, {v(CFR,2)}, {v(tt,2)} op_sel:[0,1,0] op_sel_hi:[1,1,1]")
        return o

    XSL = 3 * SLOT + 32768
    def xs_ops():
        P = TM + 19
        return [(f"s_lshl_b32 s{t2}, s{sM}, 1\ns_lshr_b32 s3, s{sW}, 1\ns_add_u32 s{t2}, s{t2}, s3\ns_lshl_b32 s{t2}, s{t2}, 15\n"
                 f"s_lshl_b32 s3, s{sN}, 7\ns_add_u32 s{t2}, s{t2}, s3\ns_and_b32 s3, s{sW}, 1\ns_lshl_b32 s3, s3, 6\ns_add_u32 s{t2}, s{t2}, s3\n"
                 f"v_lshrrev_b32 {v(P)}, 2, {v(L)}\nv_and_b32 {v(P-1)}, 3, {v(L)}\nv_lshlrev_b32 {v(P-1)}, 4, {v(P-1)}\nv_lshl_add_u32 {v(P)}, {v(P)}, 10, {v(P-1)}\n"
                 f"s_lshr_b32 s3, s{sW12}, 1\ns_add_u32 m0, s3, {XSL}", None),
                (f"buffer_load_dwordx4 {v(P)}, {s(rX,4)}, s{t2} offen lds", "xs"),
                (f"s_add_u32 s{t2}, s{t2}, {16384 - 1024}\nbuffer_load_dwordx4 {v(P)}, {s(rX,4)}, s{t2} offen offset:1024 lds", "xs")]

    def mish_ops(t):
        ops = []
        TA, TB = MI, MI + 8
        for e in range(2):
            R = ACC + 16 * t + 8 * e
            one = lambda f: [(f(i), None) for i in range(8)]
            two = lambda f: [(f(i), None) for i in range(0, 8, 2)]
            ops += two(lambda i: f"v_pk_mul_f32 {v(TA+i,2)}, {v(R+i,2)}, {v(C1,2)} op_sel_hi:[1,0]")
            ops += one(lambda i: f"v_exp_f32 {v(TB+i)}, {v(TA+i)}")
            ops += two(lambda i: f"v_pk_fma_f32 {v(R+i,2)}, {v(TB+i,2)}, 0.5, 1.0 op_sel_hi:[1,0,0]")
            ops += two(lambda i: f"v_pk_fma_f32 {v(TB+i,2)}, {v(TB+i,2)}, {v(R+i,2)}, 1.0 op_sel_hi:[1,1,0]")
            ops += one(lambda i: f"v_rcp_f32 {v(TB+i)}, {v(TB+i)}")
            ops += two(lambda i: f"v_pk_fma_f32 {v(TA+i,2)}, {v(TA+i,2)}, {v(TB+i,2)}, {v(TA+i,2)} neg_lo:[1,0,0] neg_hi:[1,0,0]")
            ops += two(lambda i: f"v_cvt_pk_bf16_f32 {v(R+i//2)}, {v(TA+i)}, {v(TA+i+1)}")
            pre = f"s_add_u32 s{sA0}, s{sA0}, 4096\n" if t == 2 and e == 0 else ""
            ops.append((pre + f"buffer_store_dwordx4 {v(R,4)}, {v(L16)}, {s(rWS,4)}, s{sA0} offen offset:{(2*(t&1)+e)*1024} {st}", f"act{t}"))
        return ops

    PA, PV = BI, BI + 1

    def flag_publish(base, tag):
        k(f"s_lshl_b32 s{sQ}, s{sC}, 4\ns_add_u32 s{sQ}, s{sQ}, s{sG if base == FLC else sF}\ns_lshl_b32 s{sQ}, s{sQ}, 2\ns_add_u32 s{sQ}, s{sQ}, s{sW}\ns_lshl_b32 s{sQ}, s{sQ}, 7\ns_add_u32 s{sQ}, s{sQ}, {base}")
        k(f"v_mov_b32 {v(MF)}, s{sTAG}")
        k.wait(vm=tag)
        k("s_mov_b64 exec, 1")
        text = f"buffer_store_dword {v(MF)}, off, {s(rWS,4)}, s{sQ}"
        if mode == "global":
            k(text + " sc1", "flag")
        else:
            far, done = k.label("far"), k.label("flagged")
            k(f"s_cmp_eq_u32 s{sLOC}, 0\ns_cbranch_scc1 {far}")
            k(text, "flag")
            k(f"s_branch {done}\n{far}:")
            untracked(f"buffer_wbl2 sc1\ns_waitcnt vmcnt(0)\n{text} sc1")
            k(done + ":")
        k("s_mov_b64 exec, -1")

    def poll_load(tag):
        return [(f"buffer_load_dword {v(PV)}, {v(PA)}, {s(rWS,4)}, s{t3} offen sc1", tag)]

    def poll_base(base):
        return f"s_lshl_b32 s3, s{sC}, 5\ns_lshr_b32 s{t3}, s{sG}, 3\ns_add_u32 s3, s3, s{t3}\ns_lshl_b32 s3, s3, 8\ns_add_u32 s{t3}, s3, {base}"

    def poll_ops(first, base, tag):
        top = 15 if base == FLC else 13
        return [(f"{first}\nv_bfe_u32 {v(PA)}, {v(L)}, 1, 2\nv_add_u32 {v(PA)}, s3, {v(PA)}\nv_min_u32 {v(PA)}, {top}, {v(PA)}\nv_and_b32 {v(PV)}, 1, {v(L)}\n"
                 f"v_lshl_add_u32 {v(PA)}, {v(PA)}, 2, {v(PV)}\nv_lshlrev_b32 {v(PA)}, 7, {v(PA)}\n" + poll_base(base), None)] + poll_load(tag)

    poll1_ops = lambda: poll_ops(f"s_mov_b32 s3, s{sGE}", FLB if one else FLA, "poll1")
    poll2_ops = lambda: poll_ops(f"s_mov_b32 s3, s{sGL}", FLB, "poll2")
    poll3_ops = lambda: poll_ops(f"s_lshl_b32 s3, s{sW}, 2", FLC, "poll3")
    poll_check = lambda tag: spin_check(tag, tag, f"v_cmp_ne_u32 vcc, s{sTAG}, {v(PV)}", poll_load(tag))

    def carry_write():
        Y0, Y1 = TM + 12, TM + 13
        mis = (f"v_xor_b32 {v(Y0)}, {v(E0+1)}, {v(EX0)}\nv_xor_b32 {v(Y1)}, {v(E0+3)}, {v(EX0)}\nv_or_b32 {v(Y0)}, {v(Y0)}, {v(Y1)}\n"
               f"v_xor_b32 {v(Y1)}, {v(E0+5)}, {v(EX1)}\nv_or_b32 {v(Y0)}, {v(Y0)}, {v(Y1)}\nv_xor_b32 {v(Y1)}, {v(E0+7)}, {v(EX1)}\nv_or_b32 {v(Y0)}, {v(Y0)}, {v(Y1)}\n"
               f"v_cmp_ne_u32 vcc, 0, {v(Y0)}")
        spin_check("e", "eg", mis, e_loads())
        k(f"v_fmac_f32 {v(E0)}, {v(L2R)}, {v(E0+4)}\nv_fmac_f32 {v(E0+2)}, {v(L2R)}, {v(E0+6)}")
        k(f"v_fma_f32 {v(E0)}, -{v(L2I)}, {v(E0+6)}, {v(E0)}\nv_fmac_f32 {v(E0+2)}, {v(L2I)}, {v(E0+4)}")
        k(f"v_mul_f32 {v(Y0)}, {v(SCRR)}, {v(E0)}\nv_mul_f32 {v(Y1)}, {v(SCRR)}, {v(E0+2)}")
        k(f"v_fma_f32 {v(Y0)}, -{v(SCI)}, {v(E0+2)}, {v(Y0)}\nv_fmac_f32 {v(Y1)}, {v(SCI)}, {v(E0)}")
        k(f"ds_write_b64 {v(XW)}, {v(Y0,2)} offset:{SCR_CX - SCR_EX}", "cxw")
        k.wait(lg="all")
        k("s_barrier")
        for q in range(8):
            k(f"ds_read_b64 {v(TM+2*q,2)}, {v(XQ)} offset:{SCR_CX - SCR_EX + q*256}", "cxr")

    def fix_ops():
        o = []
        e = lambda text, tag=None: o.extend(ops_of(text, tag))
        o.append(W(lg="cxr"))
        for step in (8, 4, 2):
            for q in range(0, step, 2):
                e(f"v_pk_add_f32 {v(TM+q,2)}, {v(TM+q,2)}, {v(TM+q+step,2)}")
        NS = TM + 16
        e(f"v_fmac_f32 {v(PR)}, {v(PWR)}, {v(TM)}\nv_fmac_f32 {v(PI)}, {v(PWR)}, {v(TM+1)}")
        e(f"v_fma_f32 {v(NS)}, -{v(PWI)}, {v(TM+1)}, {v(PR)}\nv_fma_f32 {v(NS+1)}, -{v(PWI)}, {v(TM)}, -{v(PI)}")
        for qq in range(4):
            comp, half = qq >> 1, qq & 1
            for r in range(8 * half, 8 * half + 8, 2):
                d = SS + 16 * comp + r
                e(f"v_pk_fma_f32 {v(d,2)}, {v(T+r,2)}, {v(NS,2)}, {v(d,2)} op_sel:[0,{comp},0] op_sel_hi:[1,{comp},1]")
                if comp == 0:
                    e(f"v_pk_fma_f32 {v(d,2)}, {v(T+16+r,2)}, {v(NS,2)}, {v(d,2)} op_sel:[0,1,0] op_sel_hi:[1,1,1]")
                else:
                    e(f"v_pk_fma_f32 {v(d,2)}, {v(T+16+r,2)}, {v(NS,2)}, {v(d,2)} op_sel:[0,0,0] op_sel_hi:[1,0,1] neg_lo:[0,1,0] neg_hi:[0,1,0]")
            for q in range(4):
                e(f"v_cvt_pk_bf16_f32 {v(TM+4*qq+q)}, {v(SS+8*qq+2*q)}, {v(SS+8*qq+2*q+1)}")
            e(f"ds_write_b128 {v(HA)}, {v(TM+4*qq,4)} offset:{comp*2048 + half*16}", f"htw{comp}")
            if half:
                for f in (2 * comp, 2 * comp + 1):
                    for rd in range(2):
                        e(f"ds_read_b64_tr_b16 {v(SS+16*comp+4*(f&1)+2*rd,2)}, {v(HB)} offset:{f*1024 + rd*256}", f"htr{f}")
        for f in range(4):
            o.append(W(lg=f"htr{f}"))
            pre = f"s_add_u32 s{sKW}, s{sKW}, 8192\n" if f == 2 else ""
            o.append((pre + f"buffer_store_dwordx4 {v(SS+16*(f>>1)+4*(f&1),4)}, {v(L16)}, {s(rWS,4)}, s{sKW} offen offset:{(f&1)*1024} {st}", "hst"))
        return o

    def a_ops(b):
        if b < 7:
            src, add = (sAE, b) if b < 3 else (sAX, 0) if b == 3 else (sAL, b - 4)
            head = f"s_mov_b32 s3, s{src}" if b == 3 else turn(add, 13) + f"\ns_add_u32 s3, s{src}, s3"
            if one:
                head = f"s_add_u32 s3, s{sAE}, {b*4096}"
        elif brot:
            head = f"s_xor_b32 s3, s{sN}, {b-7}\ns_and_b32 s3, s3, 3\ns_lshl_b32 s{t1}, s{sW}, 2\ns_add_u32 s3, s3, s{t1}\ns_lshl_b32 s3, s3, 12\ns_add_u32 s3, s3, {112*1024}"
        else:
            head = f"s_lshl_b32 s3, s{sW}, 14\ns_add_u32 s3, s3, {(112 + 4*(b-7))*1024}"
        ops = [(head + f"\ns_add_u32 s{t1}, s{sP0}, s3\ns_add_u32 s{t2}, s{sP1}, s3", None)]
        for j in range(4):
            for m in range(2):
                pre = f"s_xor_b32 s3, s{sROT2}, {j}\ns_lshl_b32 s3, s3, 10\nv_add_u32 {v(AL)}, s3, {v(L16)}\n" if krot and m == 0 else ""
                ops.append((pre + f"buffer_load_dwordx4 {a(32*(b%NA)+8*j+4*m,4)}, {v(AL)}, {s(rWS,4)}, s{t2 if m else t1} offen offset:{0 if krot else j*1024} sc1", f"ab{b}_{j}"))
        return ops

    def finish(full):
        carry_write()
        if early_a != 0:
            poll_check("poll1")
        stamp("poll" if full else "Lpoll")
        fx = fix_ops()
        if full:
            fx[f12_at:f12_at] = [lambda: probe("f12a"), lambda: flag_publish(FLB, "act3"), lambda: probe("f12b")]
        na = dist if early_a is None else early_a
        blocks = [a_ops(0), a_ops(1) + (poll2_ops() if p2_mid else [])] + ([a_ops(2)] if dist == 3 else [])
        r7 = ring_ops(7) if nres == 5 else []
        if nres == 5:
            fx = fx[:-8] + stage_reads(4) + fx[-8:]
        if one and order in ("c", "d"):
            fx = fix_ops()
            if full:
                flag_publish(FLB, "act3")
                probe("f12b")
            weave(ring_ops(7) + ring_ops(8), fx[:-8])
            probe("fxend")
            run(poll1_ops())
            if order == "d":
                run(fx[-8:])
            poll_check("poll1")
            probe("p1ok")
            if order == "c":
                weave(a_ops(0), fx[-8:])
            run(sum((a_ops(b) for b in range(order == "c", a_first)), []))
            return
        if one and order == "b":
            weave(r7, fx[:-8])
            probe("fxend")
            run(poll1_ops())
            run(fx[-8:-4])
            poll_check("poll1")
            probe("p1ok")
            weave(a_ops(0), fx[-4:])
            run(sum((a_ops(b) for b in range(1, a_first)), []))
            return
        if one:
            blocks = [a_ops(b) for b in range(a_first)]
            weave(r7, fx[:-8])
            probe("fxend")
            if poll_pos == "pre":
                run(poll1_ops())
            run(fx[-8:])
            if poll_pos == "post":
                run(poll1_ops())
        elif na or r7:
            weave(r7 + sum(blocks[:na], []), fx[:-8])
            run(fx[-8:])
        else:
            run(fx)
        if nres == 5:
            k.wait(lg="sr4")
            run(ring_ops(8))
        if not na:
            probe("p1in")
            poll_check("poll1")
            probe("p1ok")
        run(sum(blocks[na:], []))

    def bar(**kw):
        def f():
            k.wait(**kw)
            k("s_barrier")
        return f

    k(f"s_cmp_eq_u32 s{sN}, {lite}\ns_cbranch_scc1 L_light")
    snap0 = k.snapshot()
    run(stage_ops(0, True)); par_loads()
    weave(stage_ops(1, True), early_setup() + row_stats())
    if pre3:
        weave(stage_ops(2, True), late_setup(True)[:n_before])
    gemm1(True, "")
    stamp("gemm")
    gran_check(True)
    stamp("gran")
    m = [mish_ops(t) for t in range(4)]
    h = len(m[0]) // 2
    if "stores" in ablate:
        m = [[op if op[1] is None else (op[0].replace("offen", "offen").replace(v(L16), v(TM + 19)), op[1]) for op in mt] for mt in m]
        k(f"v_mov_b32 {v(TM+19)}, 0x7fffffff")
    for t in range(4):
        m[t].insert(0, (lambda tt: (lambda: probe(f"m{tt}")))(t))
    if "f1" in ablate:
        k(f"v_mov_b32 {v(MF)}, 0")
    r2 = ring_ops(2) if look == 2 else []
    if "scan" in ablate:
        drop = lambda ops: [op for op in ops if callable(op) or not op[0].startswith(("v_fmac", "v_pk_mul", "v_cmp", "v_cnd", "v_fma"))]
        so, co = scan_ops, chain_ops
        scan_ops, chain_ops = (lambda: drop(so())), (lambda: drop(co()))
    if "mish" in ablate:
        m = [[op for op in mt if callable(op) or op[1] is not None] for mt in m]
        h = 2
    if order == "m" and n_pre is not None:
        k("s_barrier")
        rings = [ring_ops(b) for b in range(2, 6)]
        pre = stage_reads(0) + stage_reads(1)
        weave(sum(rings[:n_pre], []) or [("s_nop 0", "none")], pre[:17] + m[0] + pre[17:] + m[1] + m[2] + m[3])
        stamp("mish")
        rest = sum(rings[n_pre:], [])
        cutp = len(rest) // 3
        while cutp and rest[cutp - 1][1] is None:
            cutp += 1
        run(rsv_reads())
        if flag_first:
            run(scan_ops())
            flag_publish(FLB, "act3")
            cutp = 0
        else:
            weave(rest[:cutp], scan_ops())
            probe("scan")
            if f12_late is None:
                flag_publish(FLB, "act3")
            probe("f12")
        bar(lg="all")()
        ch = chain_ops()
        if f12_late is not None:
            ch.insert(min(f12_late, len(ch)), lambda: flag_publish(FLB, "act3"))
        weave(rest[cutp:], ch + [lambda: stamp("epub")] + coef_ops() + stage_reads(2) + [W(lg="sr2")])
        weave(ring_ops(6), stage_reads(3) + [W(lg="sr3")])
        weave(ring_ops(7), stage_reads(4) + [W(lg="sr4")])
    elif order == "m":
        k("s_barrier")
        weave(ring_ops(2), stage_reads(0) + m[0])
        weave(ring_ops(3) + [W(lg="sr0")] + ring_ops(4), stage_reads(1) + m[1] + stage_reads(2))
        weave([W(lg="sr2")] + ring_ops(5), m[2])
        weave(ring_ops(6) if m_r6 else [("s_nop 0", "none")], m[3])
        stamp("mish")
        run(rsv_reads() + stage_reads(3) + scan_ops())
        flag_publish(FLB, "act3")
        bar(lg="all")()
        weave(([] if m_r6 else ring_ops(6)) + ring_ops(7), chain_ops())
        stamp("epub")
        run(stage_reads(4) + coef_ops() + [W(lg="sr4")])
    else:
      run(scan_ops())
      run(m[0][:h])
      bar(lg="all")()
      weave(r2 + ring_ops(3), chain_ops() + stage_reads(0) + m[0][h:] + [W(lg="sr0")])
      stamp("epub")
    if order == "m":
        pass
    elif order in ("c", "d"):
        hh = len(m[1]) // 2
        weave(ring_ops(4), stage_reads(1) + m[1][:hh] + [W(lg="sr1")])
        weave(ring_ops(5), stage_reads(2) + m[1][hh:] + [W(lg="sr2")])
        weave(ring_ops(6), m[2] + stage_reads(3))
        run(e_loads())
        run(m[3] + stage_reads(4) + coef_ops())
        stamp("mish")
        finish(True)
    else:
      weave(ring_ops(4), stage_reads(1) + m[1] + [W(lg="sr1")])
      weave(ring_ops(5), stage_reads(2) + m[2] + ([] if one else [lambda: flag_publish(FLA, "act1")]) + [W(lg="sr2")])
      run(e_loads())
      weave(ring_ops(6), (stage_reads(3) if nres == 5 else []) + m[3] + coef_ops())
      if not one:
          run(poll1_ops())
      stamp("mish")
      finish(True)
    k.wait(lg="all")
    k("s_branch L_join")
    snap_join = k.snapshot()

    k("L_light:")
    k.restore(snap0)
    k(f"s_lshl_b32 s{sQ}, s{sC}, 1\ns_lshr_b32 s3, s{sG}, 3\ns_add_u32 s{sQ}, s{sQ}, s3")
    k(f"s_cmp_lt_u32 s{sQ}, 16\ns_cselect_b32 s{rE}, s{pBR}, s{pBI}\ns_cselect_b32 s{rE+1}, s{pBR+1}, s{pBI+1}\ns_mov_b32 s{rE+2}, 0x80000\ns_mov_b32 s{rE+3}, 0x20000")
    k(f"s_and_b32 s{t0}, s{sQ}, 15\ns_lshl_b32 s{t0}, s{t0}, 15\ns_add_u32 s{t0}, s{t0}, s{sW13}")
    for i in range(8):
        if i == 4:
            k(f"s_add_u32 s{t0}, s{t0}, 4096")
        k(f"buffer_load_dwordx4 {v(SS+4*i,4)}, {v(L16)}, {s(rE,4)}, s{t0} offen offset:{(i&3)*1024}", "lb")
    k(f"s_min_u32 s{t0}, s{sQ}, 27\ns_lshl_b32 s{t0}, s{t0}, 7\ns_mul_i32 s3, s{sW}, {128*3584}\ns_add_u32 s{t0}, s{t0}, s3")
    k(f"v_lshrrev_b32 {v(TM+16)}, 3, {v(L)}\nv_mul_u32_u24 {v(TM+16)}, 3584, {v(TM+16)}\nv_and_b32 {v(TM+17)}, 7, {v(L)}\nv_lshl_add_u32 {v(TM+16)}, {v(TM+17)}, 4, {v(TM+16)}")
    for i in range(16):
        k(f"buffer_load_dwordx4 {v(ACC+4*i,4)}, {v(TM+16)}, {s(rW1,4)}, s{t0} offen", f"lw{i}")
        k(f"s_add_u32 s{t0}, s{t0}, {8*3584}")
    par_loads()
    run(early_setup()); run(row_stats())
    CA, EL = TM, TM + 8

    def fold8(R):
        for j in range(0, 8, 2):
            k(f"v_permlane32_swap_b32 {v(R+j)}, {v(R+j+1)}")
        for j in range(0, 8, 2):
            k(f"v_add_f32 {v(R+j)}, {v(R+j)}, {v(R+j+1)}")
        k(f"v_permlane16_swap_b32 {v(R)}, {v(R+2)}\nv_permlane16_swap_b32 {v(R+4)}, {v(R+6)}")
        k(f"v_add_f32 {v(R)}, {v(R)}, {v(R+2)}\nv_add_f32 {v(R+4)}, {v(R+4)}, {v(R+6)}")

    def split_publish(R, addr, soff):
        k(f"v_cvt_pk_bf16_f32 {v(R+1)}, {v(R)}, {v(R)}\nv_and_b32 {v(R+1)}, 0xffff0000, {v(R+1)}\nv_sub_f32 {v(R+1)}, {v(R)}, {v(R+1)}")
        k(f"v_cvt_pk_bf16_f32 {v(R)}, {v(R)}, {v(R+1)}\nv_mov_b32 {v(R+1)}, s{sTAG}")
        k(f"buffer_store_dwordx2 {v(R,2)}, {v(addr)}, {s(rWS,4)}, s{soff} offen sc1", "cspub")

    k(f"s_mov_b32 s{t0}, 0x3f803f80")
    for j in range(8):
        k(f"v_mov_b32 {v(CA+j)}, 0")
    k(f"v_bfe_u32 {v(EL)}, {v(L)}, 4, 1\nv_lshl_add_u32 {v(EL)}, {v(EL)}, 1, {v(HF)}")
    k.wait(vm="lb")
    for j in range(4):
        for i in range(8):
            k(f"v_dot2c_f32_bf16 {v(CA+i)}, s{t0}, {v(SS+4*i+j)}")
    fold8(CA)
    for r in (8, 4, 2, 1):
        k(f"v_add_f32_dpp {v(CA)}, {v(CA)}, {v(CA)} row_ror:{r} row_mask:0xf bank_mask:0xf")
        k(f"v_add_f32_dpp {v(CA+4)}, {v(CA+4)}, {v(CA+4)} row_ror:{r} row_mask:0xf bank_mask:0xf")
    k(f"v_and_b32 {v(EL+1)}, 1, {v(L)}\nv_cmp_eq_u32 vcc, 1, {v(EL+1)}\nv_lshl_add_u32 {v(EL+1)}, {v(EL+1)}, 2, {v(EL)}\nv_lshlrev_b32 {v(EL+1)}, 3, {v(EL+1)}")
    k(f"v_cndmask_b32 {v(CA)}, {v(CA)}, {v(CA+4)}, vcc")
    k(f"s_lshl_b32 s{t2}, s{sQ}, 8\ns_lshl_b32 s3, s{sW}, 6\ns_add_u32 s{t2}, s{t2}, s3\ns_add_u32 s{t2}, s{t2}, {CS + 1792*8}")
    split_publish(CA, EL + 1, t2)
    stamp("Lbsum")
    run(stage_ops(0, False))
    k(f"s_mov_b32 s{t2}, 0x00003f80\ns_mov_b32 s{t3}, 0x3f800000")
    for j in range(8):
        k(f"v_mov_b32 {v(CA+j)}, 0")
    for i in range(16):
        k.wait(vm=f"lw{i}")
        for j in range(4):
            k(f"v_dot2c_f32_bf16 {v(CA+2*j)}, s{t2}, {v(ACC+4*i+j)}\nv_dot2c_f32_bf16 {v(CA+2*j+1)}, s{t3}, {v(ACC+4*i+j)}")
    for j in range(8):
        k(f"v_add_f32_dpp {v(CA+j)}, {v(CA+j)}, {v(CA+j)} row_ror:8 row_mask:0xf bank_mask:0xf")
    fold8(CA)
    k(f"v_and_b32 {v(EL+1)}, 7, {v(L)}\nv_lshl_add_u32 {v(EL+1)}, {v(EL+1)}, 3, {v(EL)}\nv_lshlrev_b32 {v(EL+1)}, 2, {v(EL+1)}")
    k(f"s_lshl_b32 s3, s{sW}, 8\ns_add_u32 s3, s3, 16384\nv_add_u32 {v(EL+1)}, s3, {v(EL+1)}")
    k(f"ds_write2_b32 {v(EL+1)}, {v(CA)}, {v(CA+4)} offset0:0 offset1:4", "cw")
    k(f"v_lshlrev_b32 {v(EL+1)}, 2, {v(L)}\nv_add_u32 {v(EL+1)}, 16384, {v(EL+1)}")
    k.wait(lg="all")
    k("s_barrier")
    for j in range(4):
        k(f"ds_read_b32 {v(CA+j)}, {v(EL+1)} offset:{j*256}", "cr")
    k(f"s_min_u32 s{t2}, s{sQ}, 27\ns_lshl_b32 s{t2}, s{t2}, 9\ns_add_u32 s{t2}, s{t2}, {CS}\nv_lshlrev_b32 {v(EL+2)}, 3, {v(L)}")
    k.wait(lg="all")
    k(f"v_add_f32 {v(CA)}, {v(CA)}, {v(CA+1)}\nv_add_f32 {v(CA+2)}, {v(CA+2)}, {v(CA+3)}\nv_add_f32 {v(CA)}, {v(CA)}, {v(CA+2)}")
    split_publish(CA, EL + 2, t2)
    stamp("Lwsum")
    run(stage_ops(1, False))
    if pre3:
        weave(stage_ops(2, False), late_setup(False)[:n_before])
    gemm1(False, "L")
    stamp("Lgemm")
    gran_check(False)
    run(scan_ops())
    bar(lg="all")()
    weave(r2 + ring_ops(3), chain_ops() + stage_reads(0) + stage_reads(1) + [W(lg="all")])
    stamp("Lepub")
    weave(ring_ops(4), stage_reads(2) + [W(lg="all")])
    weave(ring_ops(5) + ring_ops(6), coef_ops() + (stage_reads(3) if nres == 5 else []) + (stage_reads(4) if order in ("c", "d") else []))
    if order == "m":
        run(stage_reads(4) + [W(lg="all")] + ring_ops(7))
    else:
        run(e_loads())
        if not one:
            run(poll1_ops())
        finish(False)
    k.wait(lg="all")
    snap_light = k.snapshot()

    k("L_join:")
    if order == "m":
        k.merge(snap_join, snap_light, ("rb5", "rb6", "rb7"))
        probe("join")
        r8 = ring_ops(8)
        at = {"pre": 0, "mid": 5, "post": len(r8)}[ep_pos]
        run(r8[:at] + poll1_ops() + e_loads() + r8[at:])
        blocks = [a_ops(b) for b in range(a_first)]
        if a_lead:
            probe("r8")
            poll_check("poll1")
            probe("p1")
            run(blocks.pop(0))
            probe("a0")
            carry_write()
        else:
            carry_write()
            poll_check("poll1")
        stamp("poll")
        fx = fix_ops()
        weave(sum(blocks, []), fx[:-8])
        run(fx[-8:])
    else:
      k.merge(snap_join, snap_light, tuple(f"rb{b}" for b in range(nres, nres + (3 if order == "b" else 4))) + ("hst",) + (("poll2",) if p2_mid else ()) + tuple(f"ab{b}_{j}" for b in range(a_first if one else dist) for j in range(4)))
    stamp("stored")

    def b_reads(n):
        b, j = divmod(n, 4)
        hi = RING[b] >= HIGH
        off = RING[b] - (HIGH if hi else 0)
        if b < nres:
            return []
        if b < 7:
            return [(f"ds_read_b64_tr_b16 {a(FR+8*j+4*c+2*rd,2)}, {v(W2R+2*hi+c)} offset:{off + j*2048 + rd*1024}", f"f{n}")
                    for c in range(2) for rd in range(2)]
        return [(f"ds_read_b128 {a(FR+8*j+4*c,4)}, {v(CR+4*hi+j)} offset:{off + c*4096}", f"f{n}") for c in range(2)]

    if p2_at == 1 and not p2_mid and not one:
        run(poll2_ops())

    def addend_ops():
        o = [(f"s_lshr_b32 s3, s{sG}, 3\ns_lshl_b32 s3, s3, 1\ns_lshr_b32 s{sCNT}, s{sW}, 1\ns_add_u32 s3, s3, s{sCNT}\ns_lshl_b32 s3, s3, 7\ns_add_u32 s3, s3, {SCR}\n"
              f"v_lshlrev_b32 {v(TM+1)}, 6, {v(HF)}\nv_add_u32 {v(TM+1)}, s3, {v(TM+1)}", None)]
        for q in range(4):
            o += ops_of(f"ds_read_b128 {v(T+4*q,4)}, {v(TM+1)} offset:{q*16}\nds_read_b128 {v(T+16+4*q,4)}, {v(TM+1)} offset:{512+q*16}", "ast")
        P = TM + 2
        o.append((f"s_lshr_b32 s3, s{sW12}, 1\ns_add_u32 s3, s3, {XSL}\nv_bfe_u32 {v(P)}, {v(L)}, 2, 2\nv_lshl_add_u32 {v(P)}, {v(HF)}, 4, {v(P)}\nv_lshlrev_b32 {v(P)}, 6, {v(P)}\n"
                  f"v_bfe_u32 {v(P+1)}, {v(L)}, 4, 1\nv_lshl_add_u32 {v(P)}, {v(P+1)}, 5, {v(P)}\nv_and_b32 {v(P+1)}, 3, {v(L)}\nv_lshl_add_u32 {v(P)}, {v(P+1)}, 3, {v(P)}\nv_add_u32 {v(P)}, s3, {v(P)}", None))
        o.append(W(vm="xs"))
        for q in range(4):
            o += ops_of(f"ds_read_b64_tr_b16 {v(XS+16+2*q,2)}, {v(P)} offset:{q*256}", "ast")
        o.append(W(lg="ast"))
        for r in range(16):
            unpack = f"v_and_b32 {v(XS+r)}, 0xffff0000, {v(XS+16+r//2)}" if r & 1 else f"v_lshlrev_b32 {v(XS+r)}, 16, {v(XS+16+r//2)}"
            o += ops_of(f"{unpack}\nv_sub_f32 {v(T+16+r)}, {v(XS+r)}, {v(T+16+r)}\n"
                        f"v_mul_f32 {v(T+16+r)}, {v(T+16+r)}, {v(T+r)}\nv_fmac_f32 {v(XS+r)}, {v(T+16+r)}, {v(DSK)}")
        return o

    a_next = a_first if one else dist
    for b in range(11):
        nxt = []
        if b == f3_at and not f3_step:
            flag_publish(FLC, "hst")
            stamp("flag")
        if b == p2_at and not one:
            poll_check("poll2")
            stamp("poll2")
        if b == p3_at:
            poll_check("poll3")
            stamp("poll3")
        while a_next <= min(b + dist, 10) and b >= (0 if a_next < (7 if one else 3) else p2_at if a_next < 7 else p3_at):
            nxt += a_ops(a_next); a_next += 1
        if b == p2_at - 2 and not p2_mid and not one:
            nxt += poll2_ops()
        if b == (p3_at - 2 if p3_issue is None else p3_issue):
            nxt = nxt + poll3_ops() if p3_issue is None else poll3_ops() + nxt
        if nres == 5:
            if b in (6, 7):
                nxt = ring_ops(b + 3) + nxt
            if order == "b" and b == 2:
                nxt += ring_ops(8)
        elif 7 <= b + dist < (9 if "rb" in ablate else 11):
            nxt += ring_ops(b + dist)
        if b == xs_at:
            nxt += xs_ops()
        if "xchg" in ablate and b == 6:
            nxt += [(f"s_lshl_b32 s3, s2, 2\ns_add_u32 s3, s3, s{sW}\ns_lshl_b32 s{sKW}, s3, 12\ns_add_u32 s{sKW}, s{sKW}, {32 << 20}", None)]
            nxt += [(f"buffer_store_dwordx4 {v(MI,4)}, {v(L16)}, {s(rWS,4)}, s{sKW} offen offset:{q*1024} sc1", "xst") for q in range(4)]
        if "xchg" in ablate and b == 9:
            nxt += [(f"s_xor_b32 s{sKW}, s{sKW}, {2 << 14}", None)]
            nxt += [(f"buffer_load_dwordx4 {v(MI+4*q,4)}, {v(L16)}, {s(rWS,4)}, s{sKW} offen offset:{q*1024} sc1", "xld") for q in range(4)]
        val = spread(addend_ops(), 32)[16 * (b - xs_at - 2):16 * (b - xs_at - 1)] if 2 <= b - xs_at <= 3 else [[]] * 16
        mm = spread_mem(nxt, 16) if nxt else [[]] * 16
        if b == 10 and tail_major:
            break
        for j in range(4):
            n = 4 * b + j
            rd = [[]] * 4
            if 4 * nres <= n + 1 < 44:
                if j == 3 and not ("rb" in ablate and b >= 8):
                    k.wait(vm=f"rb{b+1}")
                rd = spread(b_reads(n + 1), 4)
            if b == f3_at and f3_step and j == f3_step:
                flag_publish(FLC, "hst")
            k.wait(vm=f"ab{b}_{j}", lg=f"f{n}" if b >= nres else None)
            if j == 0 and b in (0, 8):
                stamp(f"blk{b}")
            for m in range(2):
                for c in range(2):
                    bop = (RESB[b] if b < nres else FR) + 8 * j + 4 * c
                    mfma(ACC + 32 * m + 16 * c, a(32 * (b % NA) + 8 * j + 4 * m, 4), a(bop, 4), "0" if n == 0 else None)
                    run(rd[2 * m + c]); run(mm[4 * j + 2 * m + c]); run(val[4 * j + 2 * m + c])
            probe(f"b{b}_{j}")
    GA = TM
    pre = ops_of(f"v_add_u32 {v(GA)}, s{sW13}, {v(L16)}")
    for u in (1, 2, 3):
        pre += ops_of(f"v_xor_b32 {v(GA+u)}, {u << 13}, {v(GA)}")
    pre.append((f"s_lshl_b32 s{t2}, s{sM}, 1\ns_lshr_b32 s3, s{sW}, 1\ns_add_u32 s{t2}, s{t2}, s3\ns_lshl_b32 s{t2}, s{t2}, 16\n"
                f"s_lshl_b32 s3, s{sN}, 8\ns_add_u32 s{t2}, s{t2}, s3\ns_and_b32 s3, s{sW}, 1\ns_lshl_b32 s3, s3, 7\ns_add_u32 s{t2}, s{t2}, s3", None))
    pre += ops_of(f"v_lshlrev_b32 {v(TM+4)}, 15, {v(HF)}\nv_lshl_add_u32 {v(TM+4)}, {v(LR)}, 2, {v(TM+4)}")
    wr = lambda u: [(f"ds_write_b128 {v(GA)}, {v(ACC+16*u+4*q,4)} offset:{(u>>1)*SLOT + (u&1)*4096 + q*1024}", "fw") for q in range(4)]
    if tail_major:
        for j in (1, 2, 3):
            run(b_reads(40 + j))
        run(pre)
        for u in (3, 2, 1, 0):
            for j in range(4):
                k.wait(vm=f"ab10_{j}", lg=f"f{40+j}")
                mfma(ACC + 16 * u, a(32 * (10 % NA) + 8 * j + 4 * (u >> 1), 4), a(FR + 8 * j + 4 * (u & 1), 4))
                late = {(2, 3): wr(3)[:1], (1, 0): wr(3)[1:2], (1, 1): wr(3)[2:3], (1, 2): wr(3)[3:], (1, 3): wr(2)[:1], (0, 0): wr(2)[1:2], (0, 1): wr(2)[2:3], (0, 2): wr(2)[3:],
                        (0, 3): wr(1)}
                run(late.get((u, j), []))
        stamp("p2done")
    else:
        stamp("p2done")
        run(pre)
        for u in (1, 2, 3):
            run(wr(u))
    k(f"s_mov_b32 s{t0}, 0x3f317218")
    k.wait(lg="all")
    k("s_barrier")
    for q in range(4):
        for u in (1, 2, 3):
            k(f"ds_read_b128 {v(ACC+16*u+4*q,4)}, {v(GA+u)} offset:{(u>>1)*SLOT + (u&1)*4096 + q*1024}", f"fr{q}")
    for q in range(4):
        k.wait(lg=f"fr{q}")
        for i in (0, 2):
            r = 4 * q + i
            k(f"v_pk_add_f32 {v(ACC+r,2)}, {v(ACC+r,2)}, {v(ACC+16+r,2)}\nv_pk_add_f32 {v(ACC+32+r,2)}, {v(ACC+32+r,2)}, {v(ACC+48+r,2)}")
        for i in (0, 2):
            r = 4 * q + i
            k(f"v_pk_add_f32 {v(ACC+r,2)}, {v(ACC+r,2)}, {v(ACC+32+r,2)}\nv_pk_fma_f32 {v(ACC+r,2)}, {v(ACC+r,2)}, {s(t0,2)}, {v(XS+r,2)} op_sel_hi:[1,0,1]")
        for i in range(4):
            r = 4 * q + i
            k(f"buffer_store_dword {v(ACC+r)}, {v(TM+4)}, {s(rOUT,4)}, s{t2} offen offset:{(r&1)*2048} {out_flags}", "out")
            if r & 1:
                k(f"s_add_u32 s{t2}, s{t2}, 4096")
    k(f"s_cmp_lg_u32 s{sC}, 15\ns_cbranch_scc1 L_fin\ns_or_b32 s3, s{sG}, s{sW}\ns_cmp_lg_u32 s3, 0\ns_cbranch_scc1 L_fin")
    k(f"v_mov_b32 {v(TM+5)}, s{sTAG}\ns_mov_b64 exec, 1")
    k(f"buffer_store_dword {v(TM+5)}, off, {s(rWS,4)}, 0 sc1\ns_mov_b64 exec, -1")
    k("L_fin:")
    if diag:
        k("s_waitcnt vmcnt(0)")
        stamp("end")
        for i in range(len(seen)):
            k(f"v_writelane_b32 {v(DG)}, s{FINE[i]}, {16+i}")
        k(f"s_lshl_b32 s3, s2, 2\ns_add_u32 s3, s3, s{sW}\ns_lshl_b32 s3, s3, 8\ns_add_u32 s3, s3, {DIAG}\nv_lshlrev_b32 {v(TM)}, 2, {v(L)}")
        k(f"buffer_store_dword {v(DG)}, {v(TM)}, {s(rWS,4)}, s3 offen sc1")
        if amplify == "skew":
            k(f"s_cmp_lg_u32 s2, {amp_wg}\ns_cbranch_scc1 L_end\nv_readlane_b32 s14, {v(DG)}, {len(stamps)-1}\ns_nop 3")
            k("L_w:\ns_memrealtime s[34:35]\ns_waitcnt lgkmcnt(0)\ns_sub_u32 s3, s34, s14\ns_cmp_lt_u32 s3, 500\ns_cbranch_scc1 L_w")
            k(f"v_lshlrev_b32 {v(TM)}, 10, {v(L)}\ns_mov_b32 s3, {DIAG}")
            for q in range(4):
                k(f"buffer_load_dword {v(TM+4+q)}, {v(TM)}, {s(rWS,4)}, s3 offen sc1\ns_add_u32 s3, s3, 65536")
            k(f"s_waitcnt vmcnt(0)\nv_min_u32 {v(TM+1)}, {v(TM+4)}, {v(TM+5)}\nv_min3_u32 {v(TM+1)}, {v(TM+1)}, {v(TM+6)}, {v(TM+7)}")
            k(f"v_max_u32 {v(TM+2)}, {v(TM+4)}, {v(TM+5)}\nv_max3_u32 {v(TM+2)}, {v(TM+2)}, {v(TM+6)}, {v(TM+7)}")
            for r in (8, 4, 2, 1):
                k(f"v_min_u32_dpp {v(TM+1)}, {v(TM+1)}, {v(TM+1)} row_ror:{r} row_mask:0xf bank_mask:0xf\nv_max_u32_dpp {v(TM+2)}, {v(TM+2)}, {v(TM+2)} row_ror:{r} row_mask:0xf bank_mask:0xf")
            k(f"s_nop 1\nv_readlane_b32 s12, {v(TM+1)}, 0\nv_readlane_b32 s13, {v(TM+2)}, 0\ns_nop 3\ns_sub_u32 s13, s13, s12\ns_min_u32 s13, s13, 1000\ns_lshl_b32 s13, s13, 2\ns_add_u32 s13, s13, 600")
            k("L_amp:\ns_memrealtime s[34:35]\ns_waitcnt lgkmcnt(0)\ns_sub_u32 s3, s34, s14\ns_cmp_lt_u32 s3, s13\ns_cbranch_scc1 L_amp")
        elif amplify:
            k(f"s_cmp_lg_u32 s2, {amp_wg}\ns_cbranch_scc1 L_end")
            k(f"v_readlane_b32 s12, {v(DG)}, 0\nv_readlane_b32 s13, {v(DG)}, {stamps.index(amplify)}\nv_readlane_b32 s14, {v(DG)}, {len(stamps)-1}\ns_nop 3")
            k("s_sub_u32 s13, s13, s12\ns_min_u32 s13, s13, 5000\ns_lshl_b32 s13, s13, 2")
            k("L_amp:\ns_memrealtime s[34:35]\ns_waitcnt lgkmcnt(0)\ns_sub_u32 s3, s34, s14\ns_cmp_lt_u32 s3, s13\ns_cbranch_scc1 L_amp")
    k("L_end:")
    k("s_endpgm")
    for text in cold:
        k(text)

    body, nops = pad(k.lines)
    hdr = open("parallel_sum__ssm_conv_s5__dense_activation_mish__prompt.s.ref").read().split("; Override")[0]
    hdr += """;
; One launch, 256 workgroups of 4 waves (one per CU, all resident). Workgroup (c, g): rows 128c..128c+127,
; scan channels 32g..32g+31 and, unless g & 7 == 3, 128 FFN columns. Raw x is the matrix operand; the
; LayerNorm mean and the bias are one extra k-step, the row scale is applied to the accumulators. The scan is
; exact: 16-step segments in registers, segment and tile end states combined with powers of lambda. Mish
; activations and states go to d_ws as bf16 matrix operands; each workgroup then finishes a 64 x 64 output tile.
; Hand-offs use write-through stores and tags derived from a generation word in d_ws that each launch advances.
"""
    text = hdr + "; @launch grid=(256,1,1) block=(256,1,1) lds=163840\n"
    text += f'.amdgcn_target "amdgcn-amd-amdhsa--gfx950"\n.text\n.globl {KNAME}\n.p2align 8\n.type {KNAME},@function\n{KNAME}:\n'
    text += "\n".join(body) + "\n"
    text += f""".section .rodata,"a"
.p2align 6
.amdhsa_kernel {KNAME}
  .amdhsa_next_free_vgpr 512
  .amdhsa_next_free_sgpr 102
  .amdhsa_accum_offset 256
  .amdhsa_group_segment_fixed_size 0
  .amdhsa_kernarg_size 128
  .amdhsa_user_sgpr_count 2
  .amdhsa_user_sgpr_kernarg_segment_ptr 1
  .amdhsa_system_sgpr_workgroup_id_x 1
.end_amdhsa_kernel
"""
    return text, dict(nops=nops, vgprs=V.next, stamps=stamps, seen=seen, lines=len(body), regs=V.names)


if __name__ == "__main__":
    import json
    kw = json.loads(sys.argv[2]) if len(sys.argv) > 2 else {}
    text, info = gen(**kw)
    open(sys.argv[1], "w").write(text)
    print({q: info[q] for q in ("nops", "vgprs", "lines")})
```

```python
import sys
from emit import K, Alloc, rng, pad

KNAME = "parallel_sum__ssm_conv_s5__dense_activation_mish__prompt_kernel"
EPOCH, STATS, XID, CS, EG, FLA, FLB, FLC, AF = 0, 0x10000, 0x20000, 0x30000, 0x40000, 0x80000, 0xA0000, 0xC0000, 0x100000
DIAG = 200 << 20
MT = 176 * 1024
SLOT = 40960
HIGH = 2 * SLOT
SCR = 32768
SCR_EX, SCR_CX = SCR + 1024, SCR + 4096
SCR_HT = SLOT + 32768
RING = {b: SLOT * q for b, q in enumerate((0, 1, 2, 3, 0, 1, 2, 3, 0, 1, 2))}
RES = 160
LOG2E = 0x3fb8aa3b
SPIN = 1 << 16


def weight(op):
    if callable(op):
        return 0.2
    w = 0.0
    for l in op[0].split("\n"):
        mn = l.split()[0]
        w += 2 if mn in ("v_exp_f32", "v_rcp_f32", "v_sin_f32", "v_cos_f32") else 0.3 if mn.startswith("s_") else 1
    return w


def cost(op):
    if callable(op):
        return 3
    c = 0.0
    for l in op[0].split("\n"):
        mn = l.split()[0]
        c += (8.3 if mn in ("v_exp_f32", "v_rcp_f32", "v_sin_f32", "v_cos_f32") else 13 if mn.startswith("buffer_") else
              1 if mn.startswith("s_") else 4.3)
    return c


def spread(ops, n):
    total = sum(map(weight, ops)) or 1
    out = [[] for _ in range(n)]
    acc = 0.0
    for op in ops:
        out[min(n - 1, int(acc / total * n + 1e-9))].append(op)
        acc += weight(op)
    return out


def spread_mem(ops, n):
    groups, cur = [], []
    for op in ops:
        cur.append(op)
        if not callable(op) and op[1] is not None:
            groups.append(cur); cur = []
    if cur:
        groups[-1] += cur
    out = [[] for _ in range(n)]
    for i, g in enumerate(groups):
        out[i * n // len(groups)] += g
    return out


def gen(mode="global", mapping="x8g4", diag=False, rot="none", amplify=None, amp_wg=0, out_flags="", ablate=(), l2pf=False,
        pf_at=4, gran_at=6, look=2, fine=(), p2_at=2, p3_at=5, dist=2, xs_at=4, tail_major=True, far_at=2, mt_pad=0, lite=3, trickle=True, budget=33, pre3=True, f3_at=1, p2_mid=False, backoff=0, early_a=0, trk_w2=None, code_pf=True, krot=False, brot=False, trk_c=None, nres=5, one=True, poll_pos="pre", a_first=2, af_mb=1, order="m", f12_at=0, m_r6=True, n_pre=2, flag_first=False, ep_pos="pre", a_lead=True, f12_late=40, f3_step=2, p3_issue=4, n_before=110, nt="m"):
    NT = lambda c: "nt " if c in nt else ""
    AF = af_mb << 20
    assert nres == 3 or dist == 2
    RESB = {0: 160, 1: 192, 2: 224} if nres == 3 else {0: 128, 1: 160, 2: 192, 3: 224, 4: 96}
    NA = 4 if nres == 3 else 3
    MT = 176 * 1024 + mt_pad
    npre = 2
    k = K()
    V = Alloc("v", 1, 256)
    v = lambda r, n=1: rng("v", r, n)
    a = lambda r, n=1: rng("a", r, n)
    s = lambda r, n=1: rng("s", r, n)
    st = "sc1" if mode == "global" else ""
    xid = mode != "global"

    sC, sG, sW, sROT, sM, sN, sTAG, sLOC = 4, 5, 6, 7, 8, 9, 10, 11
    t0, t1, t2, t3 = 12, 13, 14, 15
    pX, pLR, pLI, pBR, pBI, pCR, pCI, pDT, pDS, pW1, pB1, pW2, pOUT, pWS = 16, 18, 20, 22, 24, 26, 28, 30, 32, 36, 38, 40, 42, 46
    rX, rW1, rB, rE, rW2, rCR, rCI, rWS, rOUT = 48, 52, 56, 60, 64, 68, 72, 76, 80
    sXB, sBB, sWB, sA0, sP1, sKW, sCNT, sAF, sQ, sW12, sW13 = 84, 85, 86, 87, 88, 89, 90, 91, 92, 93, 94
    sHI, sXCC, sF, sP0, sROT2, sR3 = 98, 100, 97, 96, 17, 16
    sBE, sBX, sBL, sAE, sAX, sAL, sGE, sGL, sJ, sXD = 18, 19, 20, 21, 22, 23, 24, 25, 95, 101
    sD = 34

    L, LR, HF, L16, TAU = V("l"), V("lr"), V("hf"), V("l16"), V("tau")
    XD, CD, WD, W2D = V("xd", 4), V("cd", 4), V("wd", 4), V("w2d", 4)
    XR, WR, BQ, CR, W2R = V("xr", 4), V("wr", 4), V("bq", 4), V("cr", 8), V("w2r", 4)
    LAR, LAI, NLAI, L16R, L16I, NL16I, PWR, PWI, L2R, L2I, SCRR, SCI, CFR, NCFR, NCFI = [V(x) for x in
        "lar lai nlai l16r l16i nl16i pwr pwi l2r l2i scr sci cfr ncfr ncfi".split()]
    PR, PI, MF = V("pr"), V("pi"), V("mf")
    ACC, SS, T = V("acc", 64, 4), V("ss", 32, 4), V("t", 32, 4)
    XA, XB, WE = V("xa", 4, 4), V("xb", 4, 4), V("we", 12, 4)
    MI = V("mish", 16, 4)
    TM = V("tmp", 20, 4)
    C1, RS = V("c1", 1, 2), V("rs")
    DSK = V("dsk")
    BI = V("bias", 2)
    DG = V("diag")
    AL = V("al") if krot else L16
    FR = 128
    RSV, EK, XS = MI, TM, SS

    stamps = []
    def stamp(name):
        probe(name)
        if diag and (not fine or name == "end"):
            stamps.append(name)
            k(f"s_memrealtime s[{sD}:{sD+1}]\ns_memtime s[44:45]\ns_waitcnt lgkmcnt(0)")
            k.lg_done = len(k.lg)
            k(f"v_writelane_b32 {v(DG)}, s{sD}, {len(stamps)-1}\nv_writelane_b32 {v(DG)}, s44, {len(stamps)+31}")

    FINE = (26, 28, 30, 32, 36, 38, 40, 42)
    seen = []
    def probe(key):
        if key in fine and key not in seen:
            k(f"s_memtime s[{FINE[len(seen)]}:{FINE[len(seen)]+1}]")
            seen.append(key)

    def srd(d, p, nbytes):
        return f"s_mov_b32 s{d}, s{p}\ns_mov_b32 s{d+1}, s{p+1}\ns_mov_b32 s{d+2}, {nbytes:#x}\ns_mov_b32 s{d+3}, 0x20000"

    def mfma(d, x, y, c=None):
        k(f"v_mfma_f32_32x32x16_bf16 {v(d,16)}, {x}, {y}, {v(d,16) if c is None else c}")

    def untracked(text):
        n = len(k.vm)
        k(text)
        del k.vm[n:]

    def run(ops):
        for op in ops:
            if callable(op):
                op()
            else:
                k(*op)

    def ops_of(text, tag=None):
        return [(l, tag) for l in text.split("\n")]

    W = lambda **kw: (lambda: k.wait(**kw))

    note = lambda text: k("; ---- " + text)
    k("s_cmp_ge_u32 s2, 256\ns_cbranch_scc1 L_end")
    k("s_load_dwordx16 s[16:31], s[0:1], 0\ns_load_dwordx16 s[32:47], s[0:1], 64")
    if diag:
        k("s_memrealtime s[12:13]\ns_memtime s[10:11]")
    A_, B_, C_, D_ = TM, TM + 1, TM + 2, TM + 3
    k(f"v_and_b32 {v(L)}, 63, v0\nv_lshrrev_b32 {v(A_)}, 6, v0\nv_and_b32 {v(LR)}, 31, v0")
    k(f"v_readfirstlane_b32 s{sW}, {v(A_)}")
    k(f"v_lshrrev_b32 {v(HF)}, 5, {v(L)}\nv_lshlrev_b32 {v(L16)}, 4, {v(L)}")
    k(f"s_and_b32 s14, s2, 7\ns_lshr_b32 s15, s2, 3\ns_mov_b32 s{sXD}, s14\ns_mov_b32 s{sJ}, s15")
    if code_pf:
        k(f"s_getpc_b64 s[96:97]\nL_pc:\ns_sub_u32 s96, s96, L_pc-{KNAME}\ns_subb_u32 s97, s97, 0")
        k(f"s_lshl_b32 s3, s{sW}, 5\ns_add_u32 s3, s3, s15\ns_lshl_b32 s3, s3, 8\nv_lshl_add_u32 {v(TM+19)}, {v(L)}, 2, s3\nv_min_u32 {v(TM+19)}, L_end-{KNAME}, {v(TM+19)}")
        k(f"global_load_dword a255, {v(TM+19)}, s[96:97] {NT('c')}", "pf")
    if mapping == "rows":
        k(f"s_and_b32 s3, s15, 1\ns_lshl_b32 s{sC}, s14, 1\ns_or_b32 s{sC}, s{sC}, s3\ns_lshr_b32 s{sG}, s15, 1")
    elif mapping == "x8g4":
        k(f"s_lshr_b32 s3, s14, 2\ns_lshl_b32 s3, s3, 3\ns_and_b32 s{sC}, s15, 7\ns_or_b32 s{sC}, s{sC}, s3")
        k(f"s_and_b32 s3, s14, 3\ns_lshl_b32 s3, s3, 2\ns_lshr_b32 s{sG}, s15, 3\ns_or_b32 s{sG}, s{sG}, s3")
    elif mapping == "x4g8":
        k(f"s_lshr_b32 s3, s14, 1\ns_lshl_b32 s3, s3, 2\ns_and_b32 s{sC}, s15, 3\ns_or_b32 s{sC}, s{sC}, s3")
        k(f"s_and_b32 s3, s14, 1\ns_lshl_b32 s3, s3, 3\ns_lshr_b32 s{sG}, s15, 2\ns_or_b32 s{sG}, s{sG}, s3")
    k({"cg": f"s_add_u32 s{sROT}, s{sC}, s{sG}\ns_and_b32 s{sROT}, s{sROT}, 7", "none": f"s_mov_b32 s{sROT}, 0",
       "c": f"s_and_b32 s{sROT}, s{sC}, 7", "g": f"s_and_b32 s{sROT}, s{sG}, 7"}[rot])
    k(f"s_cmp_gt_u32 s{sG}, {lite}\ns_subb_u32 s{sF}, s{sG}, 0\ns_cmp_gt_u32 s{sG}, {lite + 8}\ns_subb_u32 s{sF}, s{sF}, 0")
    k(f"s_lshl_b32 s{sW12}, s{sW}, 12\ns_lshl_b32 s{sW13}, s{sW}, 13")
    k(f"v_lshrrev_b32 {v(A_)}, 3, {v(L)}")
    k(f"v_and_b32 {v(B_)}, 7, {v(L)}\nv_lshrrev_b32 {v(C_)}, 4, {v(L)}")
    k(f"v_xor_b32 {v(B_)}, {v(B_)}, {v(C_)}\nv_lshlrev_b32 {v(B_)}, 4, {v(B_)}")
    k(f"v_and_b32 {v(C_)}, 3, {v(A_)}\nv_lshl_add_u32 {v(C_)}, {v(HF)}, 4, {v(C_)}")
    k(f"v_lshl_add_u32 {v(XD)}, {v(C_)}, 10, {v(B_)}")
    k(f"v_xor_b32 {v(XD+1)}, 64, {v(XD)}\nv_add_u32 {v(XD+2)}, 6144, {v(XD)}")
    k(f"v_add_u32 {v(XD+3)}, 9216, {v(XD+1)}\nv_add_u32 {v(XD+1)}, 3072, {v(XD+1)}")
    k(f"v_lshl_add_u32 {v(CD)}, {v(A_)}, 10, {v(B_)}")
    k(f"v_xor_b32 {v(CD+1)}, 64, {v(CD)}\nv_add_u32 {v(CD+2)}, {2*7168}, {v(CD)}\nv_add_u32 {v(CD+3)}, {3*7168}, {v(CD+1)}\nv_add_u32 {v(CD+1)}, 7168, {v(CD+1)}")
    k(f"v_lshlrev_b32 {v(A_)}, 10, {v(HF)}\nv_lshl_add_u32 {v(A_)}, {v(LR)}, 4, {v(A_)}")
    k(f"s_lshl_b32 s{sXB}, s{sC}, 17\ns_lshl_b32 s3, s{sW}, 15\ns_add_u32 s{sXB}, s{sXB}, s3")
    k(f"s_and_b32 s3, s{sW}, 1\ns_lshl_b32 s3, s3, 14\ns_lshl_b32 s{sBB}, s{sG}, 15\ns_add_u32 s{sBB}, s{sBB}, s3")
    k(f"v_lshrrev_b32 {v(C_)}, 4, {v(L)}\nv_and_b32 {v(D_)}, 15, {v(L)}\nv_lshlrev_b32 {v(B_)}, 2, {v(C_)}")
    k(f"v_xor_b32 {v(D_)}, {v(D_)}, {v(B_)}\nv_lshlrev_b32 {v(D_)}, 4, {v(D_)}\nv_mul_u32_u24 {v(C_)}, 3584, {v(C_)}\nv_add_u32 {v(WD)}, {v(C_)}, {v(D_)}")
    for i in (1, 2, 3):
        k(f"v_add_u32 {v(WD+i)}, {i*13312}, {v(WD)}")
    k(f"s_mul_i32 s{sWB}, s{sW}, {16*3584}\ns_lshl_b32 s3, s{sF}, 8\ns_add_u32 s{sWB}, s{sWB}, s3")
    k(f"s_lshl_b32 s3, s{sC}, 4\ns_add_u32 s3, s3, s{sG}\ns_lshl_b32 s3, s3, 2\ns_add_u32 s3, s3, s{sW}\ns_lshl_b32 s{t2}, s3, 11")
    k(f"s_lshl_b32 s3, s{sG}, 5\nv_add_lshl_u32 {v(B_)}, {v(LR)}, s3, 1")
    k(f"s_lshl_b32 s3, s{sF}, 7\nv_add_lshl_u32 {v(C_)}, {v(L)}, s3, 1\nv_min_u32 {v(C_)}, 3454, {v(C_)}")
    k(f"s_and_b32 s{sN}, s{sG}, 7\ns_lshl_b32 s3, s{sN}, 1\ns_and_b32 s{t3}, s{sW}, 1\ns_or_b32 s3, s3, s{t3}\ns_lshl_b32 s3, s3, 5\nv_add_lshl_u32 {v(D_)}, {v(LR)}, s3, 1")
    k("s_waitcnt lgkmcnt(0)")
    if diag:
        k(f"v_writelane_b32 {v(DG)}, s12, 0\nv_writelane_b32 {v(DG)}, s10, 32"); stamps.append("start")
    k(srd(rX, pX, 2 << 20))
    SR = TM + 4
    PL = MI
    k(f"global_load_ushort {v(PL)}, {v(B_)}, {s(pLR,2)} {NT('p')}\nglobal_load_ushort {v(PL+1)}, {v(B_)}, {s(pLI,2)} {NT('p')}\nglobal_load_ushort {v(PL+2)}, {v(B_)}, {s(pDT,2)} {NT('p')}", "par")
    k(f"buffer_load_dwordx4 {v(SR,4)}, {v(A_)}, {s(rX,4)}, s{t2} offen {NT('s') or NT('u')}", "srow")
    k(f"buffer_load_dwordx4 {v(SR+4,4)}, {v(A_)}, {s(rX,4)}, s{t2} offen offset:512 {NT('s')}", "srow")
    k(f"s_load_dword s{sTAG}, s[{pWS}:{pWS+1}], {EPOCH}")
    k(srd(rW1, pW1, 512 * 3584))
    k(f"s_cmp_lt_u32 s{sW}, 2\ns_cselect_b32 s{rB}, s{pBR}, s{pBI}\ns_cselect_b32 s{rB+1}, s{pBR+1}, s{pBI+1}\ns_mov_b32 s{rB+2}, 0x80000\ns_mov_b32 s{rB+3}, 0x20000")

    def stage_ops(stage, full):
        slot = (stage % 4) * SLOT
        tag = f"st{stage}"
        ops = [(f"s_xor_b32 s3, s{sROT}, {stage}\ns_mul_i32 s{sKW}, s3, {64*3584}\ns_lshl_b32 s3, s3, 7\ns_add_u32 s{t1}, s3, s{sBB}\ns_add_u32 s{t0}, s3, s{sXB}\n"
                f"s_add_u32 s{sKW}, s{sKW}, s{sWB}\ns_add_u32 m0, s{sW12}, {slot}", None)]
        ops += [(f"buffer_load_dwordx4 {v(XD+i)}, {s(rX,4)}, s{t0} offen offset:{i*1024} {NT('x')}lds", tag) for i in range(4)]
        ops += [(f"s_lshr_b32 s3, s{sW12}, 1\ns_add_u32 m0, s3, {slot + 32768}", None)]
        ops += [(f"buffer_load_dwordx4 {v(CD+i)}, {s(rB,4)}, s{t1} offen offset:{i*1024} {NT('b')}lds", tag) for i in range(2)]
        if full:
            ops += [(f"s_add_u32 m0, s{sW12}, {slot + 16384}", None)]
            ops += [(f"buffer_load_dwordx4 {v(WD+i)}, {s(rW1,4)}, s{sKW} offen offset:{i*1024} {NT('w')}lds", tag) for i in range(4)]
        return ops

    def turn(i, shift):
        if not brot:
            return f"s_mov_b32 s3, {i << shift}"
        return f"s_add_u32 s3, s{sR3}, {i}\ns_cmp_ge_u32 s3, 3\ns_cselect_b32 s{sCNT}, 3, 0\ns_sub_u32 s3, s3, s{sCNT}\ns_lshl_b32 s3, s3, {shift}"

    def ring_ops(b):
        if "pair" in ablate and b >= 6:
            return [(f"buffer_load_dword a254, {v(L16)}, {s(rW2,4)}, 0 offen", f"rb{b}")]
        tag = f"rb{b}"
        if b < 7:
            src, add = (sBE, b) if b < 3 else (sBX, 0) if b == 3 else (sBL, b - 4)
            head = f"s_mov_b32 s{t0}, s{src}" if b == 3 else turn(add, 17) + f"\ns_add_u32 s{t0}, s{src}, s3"
            if one:
                head = f"s_add_u32 s{t0}, s{sBE}, {b*65536}"
            step = f"s_xor_b32 s{t0}, s{t0}, 32768"
            r, D = rW2, W2D
        else:
            head = (f"s_lshl_b32 s{t0}, s{sN}, 1\ns_and_b32 s3, s{sW}, 1\ns_or_b32 s{t0}, s{t0}, s3\ns_lshl_b32 s{t0}, s{t0}, 15\n"
                    f"s_lshl_b32 s3, s{sW}, 8\ns_add_u32 s{t0}, s{t0}, s3")
            step = f"s_xor_b32 s{t0}, s{t0}, 32768"
            if brot:
                head += (f"\ns_xor_b32 s3, s{sN}, {b-7}\ns_bitcmp1_b32 s3, 1\ns_cselect_b32 s{rB}, s{rCI}, s{rCR}\ns_cselect_b32 s{rB+1}, s{rCI+1}, s{rCR+1}"
                         f"\ns_and_b32 s3, s3, 1\ns_lshl_b32 s3, s3, 7\ns_add_u32 s{t0}, s{t0}, s3")
                r, D = rB, CD
            else:
                if (b - 7) & 1:
                    head += f"\ns_add_u32 s{t0}, s{t0}, 128"
                r, D = (rCI if b >= 9 else rCR), CD
        ops = [(head + f"\ns_add_u32 m0, s{sW13}, {RING[b]}", None)]
        for i in range(8):
            flat = krot and b < 7
            if i == 4:
                ops.append((f"s_add_u32 m0, m0, {1024 if flat else 4096}\n{step}", None))
            elif i and flat:
                ops.append(("s_add_u32 m0, m0, 1024", None))
            ops.append((f"buffer_load_dwordx4 {v(D+(i&3))}, {s(r,4)}, s{t0} offen offset:{0 if flat else (i&3)*1024} {NT('r')}lds", tag))
        return ops

    def par_loads():
        k(f"global_load_ushort {v(BI)}, {v(C_)}, {s(pB1,2)}\nglobal_load_ushort {v(BI+1)}, {v(C_)}, {s(pB1,2)} offset:128", "par2")
        k(f"global_load_ushort {v(DSK)}, {v(D_)}, {s(pDS,2)}", "par2")

    def early_setup():
        o = [(srd(rWS, pWS, 1 << 28), None), (f"s_mov_b32 s{sHI}, 0\ns_mov_b32 s{sHI+1}, -1" + (f"\ns_getreg_b32 s{sXCC}, hwreg(HW_REG_XCC_ID)\ns_and_b32 s{sXCC}, s{sXCC}, 15" if xid else ""), None)]
        P0, P1, P2 = TM + 12, TM + 13, TM + 14
        e = lambda text: o.extend(ops_of(text))
        e(f"v_bfe_u32 {v(P0)}, {v(LR)}, 1, 3\nv_xor_b32 {v(P0)}, {v(P0)}, {v(HF)}\nv_lshlrev_b32 {v(P0)}, 4, {v(P0)}\nv_lshl_add_u32 {v(P0)}, {v(LR)}, 7, {v(P0)}")
        e(f"v_add_u32 {v(XR)}, s{sW12}, {v(P0)}\nv_add_u32 {v(BQ)}, 32768, {v(P0)}\nv_add_u32 {v(CR)}, s{sW13}, {v(P0)}")
        for j in (1, 2, 3):
            e(f"v_xor_b32 {v(XR+j)}, {j << 5}, {v(XR)}\nv_xor_b32 {v(BQ+j)}, {j << 5}, {v(BQ)}")
        e(f"v_bfe_u32 {v(P0)}, {v(L)}, 2, 2\nv_and_b32 {v(P1)}, 3, {v(L)}\nv_lshlrev_b32 {v(P1)}, 3, {v(P1)}\nv_bfe_u32 {v(P2)}, {v(L)}, 4, 1\nv_lshl_add_u32 {v(P1)}, {v(P2)}, 5, {v(P1)}")
        e(f"v_lshl_add_u32 {v(P2)}, {v(HF)}, 3, {v(P0)}\nv_lshl_add_u32 {v(P2)}, {v(P2)}, 8, {v(P1)}\nv_lshl_add_u32 {v(P2)}, {v(P0)}, 6, {v(P2)}\nv_add_u32 {v(WR)}, 16384, {v(P2)}")
        for t in (1, 2, 3):
            e(f"v_xor_b32 {v(WR+t)}, {t << 6}, {v(WR)}")
        e(f"v_lshrrev_b32 {v(P2)}, 1, {v(P0)}\nv_lshl_add_u32 {v(P1)}, {v(P2)}, 6, {v(P1)}\nv_lshl_add_u32 {v(P2)}, {v(HF)}, 2, {v(P0)}\nv_lshl_add_u32 {v(P2)}, {v(P2)}, 7, {v(P1)}\nv_add_u32 {v(W2R)}, s{sW13}, {v(P2)}")
        g = lambda text: o.append((text, None))
        g(srd(rW2, pW2, 1792 * 1024)); g(srd(rCR, pCR, 1 << 19)); g(srd(rCI, pCI, 1 << 19)); g(srd(rOUT, pOUT, 4 << 20))
        g(f"s_lshl_b32 s3, s{sG}, 13\ns_add_u32 s{rE}, s{pWS}, s3\ns_addc_u32 s{rE+1}, s{pWS+1}, 0\ns_add_u32 s{rE}, s{rE}, {EG}\ns_addc_u32 s{rE+1}, s{rE+1}, 0\n"
          f"s_mov_b32 s{rE+2}, 8192\ns_mov_b32 s{rE+3}, 0x20000")
        g(f"s_lshr_b32 s3, s{sG}, 3\ns_lshl_b32 s{sM}, s{sC}, 1\ns_or_b32 s{sM}, s{sM}, s3")
        g(f"s_and_b32 s{sR3}, s{sN}, 3\ns_cmp_eq_u32 s{sR3}, 3\ns_cselect_b32 s{sR3}, 0, s{sR3}")
        g(f"s_cmp_eq_u32 s{sW}, 3\ns_cselect_b32 s3, 1, 0\ns_lshl_b32 s{sGE}, s{sW}, 2\ns_sub_u32 s{sGE}, s{sGE}, s3\ns_mul_i32 s{sGL}, s{sW}, 3\ns_add_u32 s{sGL}, s{sGL}, s3")
        g(f"s_lshl_b32 s{sAE}, s{sGE}, 13\ns_lshl_b32 s{sAL}, s{sGL}, 13\ns_add_u32 s{sAL}, s{sAL}, 4096\ns_add_u32 s{sAX}, s{sAE}, {6*4096}\ns_add_u32 s3, s{sAL}, 8192\n"
          f"s_cmp_lt_u32 s{sW}, 2\ns_cselect_b32 s{sAX}, s{sAX}, s{sAL}\ns_cselect_b32 s{sAL}, s{sAL}, s3")
        if one:
            g(f"s_mul_i32 s{sAE}, s{sW}, {7*4096}\ns_mul_i32 s{sGE}, s{sW}, 7\ns_lshr_b32 s{sGE}, s{sGE}, 1")
        g(f"s_lshl_b32 s3, s{sN}, 7\ns_lshl_b32 s{sBE}, s{sAE}, 4\ns_lshl_b32 s{sBX}, s{sAX}, 4\ns_lshl_b32 s{sBL}, s{sAL}, 4\n"
          f"s_add_u32 s{sBE}, s{sBE}, s3\ns_add_u32 s{sBX}, s{sBX}, s3\ns_add_u32 s{sBL}, s{sBL}, s3")
        g(f"s_lshl_b32 s3, s{sC}, 2\ns_add_u32 s3, s3, s{sW}\ns_mul_i32 s{sAF}, s3, {MT}\ns_add_u32 s{sAF}, s{sAF}, {AF}")
        return o

    def row_stats():
        o = []
        def k2(text, tag=None, atomic=False):
            o.extend([(text, tag)] if atomic or tag else ops_of(text))
        S1, S2, U1, U2 = TM, TM + 1, TM + 2, TM + 3
        k2(f"v_mov_b32 {v(S1)}, 0\nv_mov_b32 {v(S2)}, 0\ns_mov_b32 s{t3}, 0x3f803f80")
        o.append(W(vm="srow"))
        for i in range(8):
            k2(f"v_dot2c_f32_bf16 {v(S1)}, s{t3}, {v(SR+i)}\nv_dot2c_f32_bf16 {v(S2)}, {v(SR+i)}, {v(SR+i)}")
        for r in (8, 4, 2, 1):
            k2(f"v_add_f32_dpp {v(S1)}, {v(S1)}, {v(S1)} row_ror:{r} row_mask:0xf bank_mask:0xf")
            k2(f"v_add_f32_dpp {v(S2)}, {v(S2)}, {v(S2)} row_ror:{r} row_mask:0xf bank_mask:0xf")
        k2(f"v_mov_b32 {v(U1)}, {v(S1)}\nv_mov_b32 {v(U2)}, {v(S2)}")
        k2(f"v_permlane16_swap_b32 {v(S1)}, {v(U1)}\nv_permlane16_swap_b32 {v(S2)}, {v(U2)}")
        k2(f"v_add_f32 {v(S1)}, {v(S1)}, {v(U1)}\nv_add_f32 {v(S2)}, {v(S2)}, {v(U2)}")
        k2(f"v_mul_f32 {v(S1)}, 0x3b000000, {v(S1)}\nv_mul_f32 {v(S2)}, 0x3b000000, {v(S2)}")
        k2(f"v_fma_f32 {v(S2)}, -{v(S1)}, {v(S1)}, {v(S2)}\nv_max_f32 {v(S2)}, 0, {v(S2)}")
        k2(f"v_cvt_pk_bf16_f32 {v(S2)}, {v(S2)}, {v(S2)}\nv_and_b32 {v(S2)}, 0xffff0000, {v(S2)}\nv_add_f32 {v(S2)}, 0x3727c5ac, {v(S2)}")
        k2(f"v_cvt_pk_bf16_f32 {v(S2)}, {v(S2)}, {v(S2)}\nv_and_b32 {v(S2)}, 0xffff0000, {v(S2)}\nv_sqrt_f32 {v(S2)}, {v(S2)}")
        k2(f"v_cvt_pk_bf16_f32 {v(SR)}, {v(S1)}, {v(S2)}")
        k2("s_waitcnt lgkmcnt(0)")
        k2(f"s_mul_i32 s{sTAG}, s{sTAG}, 0x9e3779b1\ns_add_u32 s{sTAG}, s{sTAG}, 0x7f4a7c15")
        k2(f"v_mov_b32 {v(SR+1)}, s{sTAG}\nv_lshlrev_b32 {v(U1)}, 3, {v(HF)}")
        if xid:
            k2(f"v_mov_b32 {v(SR+2)}, s{sXCC}\nv_mov_b32 {v(SR+3)}, s{sTAG}")
        k2(f"s_lshr_b32 s{t2}, s{t2}, 7\ns_add_u32 s{t2}, s{t2}, {STATS}")
        if xid:
            k2(f"s_lshl_b32 s{t3}, s{sC}, 4\ns_add_u32 s{t3}, s{t3}, s{sG}\ns_lshl_b32 s{t3}, s{t3}, 3\ns_add_u32 s{t3}, s{t3}, {XID}")
        def publish():
            k("s_mov_b32 exec_lo, 1\ns_mov_b32 exec_hi, 1")
            k(f"buffer_store_dwordx2 {v(SR,2)}, {v(U1)}, {s(rWS,4)}, s{t2} offen sc1", "pub0")
            if xid:
                k(f"buffer_store_dwordx2 {v(SR+2,2)}, off, {s(rWS,4)}, s{t3} sc1", "pub0")
            k("s_mov_b64 exec, -1")
            stamp("stats")
        o.append(publish)
        return o

    def late_setup(full):
        o = []
        e = lambda text: o.extend(ops_of(text))
        g = lambda text: o.append((text, None))
        P0, P1, P2 = TM + 12, TM + 13, TM + 14
        if krot:
            g(f"s_add_u32 s{sROT2}, s{sC}, s{sN}\ns_and_b32 s{sROT2}, s{sROT2}, 3\ns_lshl_b32 s3, s{sROT2}, 5\nv_xor_b32 {v(CR)}, s3, {v(CR)}")
        for j in (1, 2, 3):
            e(f"v_xor_b32 {v(CR+j)}, {j << 5}, {v(CR)}")
        for j in range(4):
            e(f"v_add_u32 {v(CR+4+j)}, {HIGH}, {v(CR+j)}")
        e(f"v_xor_b32 {v(W2R+1)}, 64, {v(W2R)}\nv_add_u32 {v(W2R+2)}, {HIGH}, {v(W2R)}\nv_add_u32 {v(W2R+3)}, {HIGH}, {v(W2R+1)}")
        e(f"v_lshrrev_b32 {v(P0)}, 3, {v(L)}\nv_and_b32 {v(P1)}, 7, {v(L)}\nv_bfe_u32 {v(P2)}, {v(L)}, 4, 1\nv_lshlrev_b32 {v(P2)}, 2, {v(P2)}")
        e(f"v_xor_b32 {v(P1)}, {v(P1)}, {v(P2)}\nv_lshlrev_b32 {v(P1)}, 4, {v(P1)}")
        g(f"s_and_b32 s3, s{sW}, 1\ns_lshl_b32 s3, s3, 6\nv_xor_b32 {v(P1)}, s3, {v(P1)}")
        e(f"v_lshl_add_u32 {v(W2D)}, {v(P0)}, 10, {v(P1)}")
        if krot:
            g(f"s_and_b32 s3, s{sROT2}, 1\ns_lshl_b32 s3, s3, 14\nv_xor_b32 {v(W2D)}, s3, {v(W2D)}")
            e(f"v_xor_b32 {v(W2D+2)}, 0x4000, {v(W2D)}\nv_add_u32 {v(W2D+1)}, 8192, {v(W2D)}\nv_add_u32 {v(W2D+3)}, 8192, {v(W2D+2)}")
            g(f"s_lshr_b32 s3, s{sROT2}, 1\ns_lshl_b32 s3, s3, 15\ns_add_u32 s{sBE}, s{sBE}, s3\ns_add_u32 s{sBX}, s{sBX}, s3\ns_add_u32 s{sBL}, s{sBL}, s3")
        else:
            for i in (1, 2, 3):
                e(f"v_add_u32 {v(W2D+i)}, {i*7168}, {v(W2D)}")
        e(f"v_bfe_u32 {v(P0)}, {v(LR)}, 2, 1\nv_lshrrev_b32 {v(P1)}, 3, {v(LR)}\nv_and_b32 {v(P2)}, 3, {v(LR)}")
        e(f"v_lshl_add_u32 {v(P2)}, {v(P1)}, 2, {v(P2)}\nv_lshl_add_u32 {v(TAU)}, {v(P0)}, 4, {v(P2)}")
        for z in (XA + 2, XA + 3, XB + 2, XB + 3, WE + 2, WE + 3, WE + 6, WE + 7, WE + 10, WE + 11):
            e(f"v_mov_b32 {v(z)}, 0")
        LRE, LIM, DT, A2, BRV, X0, X1, X2 = range(PL, PL + 8)
        o.append(W(vm="par2"))
        e(f"v_lshlrev_b32 {v(LRE)}, 16, {v(LRE)}\nv_lshlrev_b32 {v(LIM)}, 16, {v(LIM)}\nv_lshlrev_b32 {v(DT)}, 16, {v(DT)}\nv_lshlrev_b32 {v(DSK)}, 16, {v(DSK)}")
        e(f"v_mul_f32 {v(DT)}, {LOG2E:#x}, {v(DT)}\nv_exp_f32 {v(DT)}, {v(DT)}\nv_cvt_pk_bf16_f32 {v(DT)}, {v(DT)}, {v(DT)}\nv_and_b32 {v(DT)}, 0xffff0000, {v(DT)}")
        e(f"v_mul_f32 {v(A2)}, {v(DT)}, {v(LRE)}\nv_mul_f32 {v(BRV)}, {v(DT)}, {v(LIM)}\nv_mul_f32 {v(A2)}, {LOG2E:#x}, {v(A2)}\nv_mul_f32 {v(BRV)}, 0.15915494, {v(BRV)}")
        def cpow(n, dr, di):
            e(f"v_mul_f32 {v(X0)}, {n}, {v(A2)}\nv_mul_f32 {v(X1)}, {n}, {v(BRV)}\nv_exp_f32 {v(X0)}, {v(X0)}\nv_fract_f32 {v(X1)}, {v(X1)}")
            e(f"v_cos_f32 {v(dr)}, {v(X1)}\nv_sin_f32 {v(di)}, {v(X1)}\nv_mul_f32 {v(dr)}, {v(dr)}, {v(X0)}\nv_mul_f32 {v(di)}, {v(di)}, {v(X0)}")
        cpow("1.0", LAR, LAI); cpow("0x41800000", L16R, L16I); cpow("0x43800000", L2R, L2I)
        g(f"s_lshl_b32 s3, s{sW}, 1\nv_add_u32 {v(X2)}, s3, {v(HF)}")
        e(f"v_lshlrev_b32 {v(X2)}, 4, {v(X2)}\nv_cvt_f32_u32 {v(X2)}, {v(X2)}")
        cpow(v(X2), PWR, PWI)
        g(f"s_lshl_b32 s3, s{sW}, 2\nv_add_u32 {v(X2)}, s3, {v(HF)}")
        e(f"v_lshlrev_b32 {v(X2)}, 7, {v(X2)}\nv_cvt_f32_u32 {v(X2)}, {v(X2)}")
        cpow(v(X2), SCRR, SCI)
        e(f"v_sub_f32 {v(NLAI)}, 0, {v(LAI)}\nv_sub_f32 {v(NL16I)}, 0, {v(L16I)}")
        e(f"v_mul_f32 {v(X0)}, {v(LRE)}, {v(LRE)}\nv_fmac_f32 {v(X0)}, {v(LIM)}, {v(LIM)}\nv_rcp_f32 {v(X0)}, {v(X0)}\nv_subrev_f32 {v(X1)}, 1.0, {v(LAR)}")
        e(f"v_mul_f32 {v(CFR)}, {v(X1)}, {v(LRE)}\nv_mul_f32 {v(NCFI)}, {v(X1)}, {v(LIM)}\nv_mul_f32 {v(X0)}, 0x4038aa3b, {v(X0)}")
        e(f"v_fmac_f32 {v(CFR)}, {v(LAI)}, {v(LIM)}\nv_fmac_f32 {v(NCFI)}, {v(NLAI)}, {v(LRE)}")
        e(f"v_mul_f32 {v(CFR)}, {v(CFR)}, {v(X0)}\nv_mul_f32 {v(NCFI)}, {v(NCFI)}, {v(X0)}\nv_sub_f32 {v(NCFR)}, 0, {v(CFR)}")
        e(f"v_mul_f32 {v(T)}, {v(CFR)}, {v(LAR)}\nv_mul_f32 {v(T+16)}, {v(CFR)}, {v(LAI)}\nv_fmac_f32 {v(T)}, {v(NCFI)}, {v(LAI)}\nv_fma_f32 {v(T+16)}, -{v(NCFI)}, {v(LAR)}, {v(T+16)}")
        for i in range(1, 16):
            e(f"v_mul_f32 {v(T+i)}, {v(T+i-1)}, {v(LAR)}\nv_mul_f32 {v(T+16+i)}, {v(T+15+i)}, {v(LAR)}")
            e(f"v_fmac_f32 {v(T+i)}, {v(T+15+i)}, {v(NLAI)}\nv_fmac_f32 {v(T+16+i)}, {v(T+i-1)}, {v(LAI)}")
        return o

    GS, GX, GA = TM, TM + 2, TM + 16

    def gran_loads(full):
        ops = [(f"s_lshr_b32 s{t2}, s{sXB}, 7\ns_add_u32 s{t2}, s{t2}, {STATS}\nv_lshlrev_b32 {v(GA)}, 3, {v(TAU)}", None),
               (f"buffer_load_dwordx2 {v(GS,2)}, {v(GA)}, {s(rWS,4)}, s{t2} offen sc1", "gran"),
               (f"s_lshl_b32 s{t2}, s{sC}, 7\ns_add_u32 s{t2}, s{t2}, {XID}\nv_and_b32 {v(GA)}, 15, {v(L)}\nv_lshlrev_b32 {v(GA)}, 3, {v(GA)}", None),
               (f"buffer_load_dwordx2 {v(GX,2)}, {v(GA)}, {s(rWS,4)}, s{t2} offen sc1", "gran"),
               (f"s_lshl_b32 s{t2}, s{sG}, 8\ns_add_u32 s{t2}, s{t2}, {CS + 1792*8}\nv_lshlrev_b32 {v(GA)}, 12, {v(HF)}\nv_lshl_add_u32 {v(GA)}, {v(LR)}, 3, {v(GA)}", None),
               (f"buffer_load_dwordx2 {v(WE+8,2)}, {v(GA)}, {s(rWS,4)}, s{t2} offen sc1", "gran")]
        if not xid:
            del ops[2:4]
        if full:
            ops += [(f"s_lshl_b32 s{t2}, s{sF}, 10\ns_add_u32 s{t2}, s{t2}, {CS}\nv_lshlrev_b32 {v(GA)}, 3, {v(L)}", None),
                    (f"buffer_load_dwordx2 {v(WE,2)}, {v(GA)}, {s(rWS,4)}, s{t2} offen sc1", "gran"),
                    (f"buffer_load_dwordx2 {v(WE+4,2)}, {v(GA)}, {s(rWS,4)}, s{t2} offen offset:512 sc1", "gran")]
        return ops

    cold = []
    def spin_check(name, tag, mismatch, reload):
        again, ok = k.label(name + "_again"), k.label(name + "_ok")
        k.wait(vm=tag)
        k(mismatch)
        k(f"s_mov_b32 s{sCNT}, 0\ns_nop 0\ns_cbranch_vccnz {again}")
        k(ok + ":")
        loads = "\n".join(op[0] for op in reload)
        if backoff:
            loads = f"s_sleep {backoff}\n" + loads
        cold.append(f"{again}:\n{loads}\ns_waitcnt vmcnt(0)\n{mismatch}\ns_add_u32 s{sCNT}, s{sCNT}, 1\ns_cmp_gt_u32 s{sCNT}, {SPIN}\n"
                    f"s_cbranch_scc1 {ok}\ns_cbranch_vccnz {again}\ns_branch {ok}")

    def tags_differ(regs, tmp):
        t = f"v_xor_b32 {v(tmp)}, s{sTAG}, {v(regs[0])}\n"
        for r in regs[1:]:
            t += f"v_xor_b32 {v(tmp+1)}, s{sTAG}, {v(r)}\nv_or_b32 {v(tmp)}, {v(tmp)}, {v(tmp+1)}\n"
        return t + f"v_cmp_ne_u32 vcc, 0, {v(tmp)}"

    rsv_reads = lambda: [(f"ds_read_b128 {v(RSV+4*q,4)}, {v(GA+2)} offset:{q*16}", "rsv") for q in range(4)]

    def gran_check(full):
        spin_check("gran", "gran", tags_differ([GS + 1, WE + 9] + ([GX + 1] if xid else []) + ([WE + 1, WE + 5] if full else []), GA), gran_loads(full))
        if xid:
            k(f"v_cmp_ne_u32 vcc, s{sXCC}, {v(GX)}")
        k(f"v_and_b32 {v(GA)}, 0xffff, {v(GS)}\nv_and_b32 {v(GA+1)}, 0xffff0000, {v(GS)}\nv_lshlrev_b32 {v(MF)}, 16, {v(GS)}")
        if xid:
            k(f"s_cmp_eq_u64 vcc, 0\ns_cselect_b32 s{sLOC}, 1, 0")
        k(f"v_rcp_f32 {v(RS)}, {v(GA+1)}\nv_xor_b32 {v(GA)}, 0x8000, {v(GA)}\nv_lshrrev_b32 {v(GA+1)}, 16, {v(GS)}\nv_lshl_or_b32 {v(GA)}, {v(GA)}, 16, {v(GA)}")
        k(f"v_cndmask_b32 {v(XA)}, {v(GA)}, 0, {s(sHI,2)}\nv_cndmask_b32 {v(XA+1)}, {v(GA+1)}, 0, {s(sHI,2)}")
        k(f"v_cndmask_b32 {v(XB)}, 0, {v(GA)}, {s(sHI,2)}\nv_cndmask_b32 {v(XB+1)}, 0, {v(GA+1)}, {s(sHI,2)}\nv_mov_b32 {v(WE+9)}, 0")
        k(f"s_lshr_b32 s3, s{sW12}, 5\ns_add_u32 s3, s3, {SCR}\nv_lshlrev_b32 {v(GA)}, 9, {v(HF)}\nv_lshl_add_u32 {v(GA)}, {v(TAU)}, 2, {v(GA)}\nv_add_u32 {v(GA)}, s3, {v(GA)}")
        k(f"v_lshlrev_b32 {v(GA+2)}, 6, {v(HF)}\nv_add_u32 {v(GA+2)}, s3, {v(GA+2)}")
        mfma(SS, v(XA, 4), v(WE + 8, 4)); mfma(SS + 16, v(XB, 4), v(WE + 8, 4))
        k(f"v_cndmask_b32 {v(GA+1)}, {v(RS)}, {v(MF)}, {s(sHI,2)}\nv_mul_f32 {v(C1)}, {LOG2E:#x}, {v(RS)}")
        k(f"ds_write_b32 {v(GA)}, {v(GA+1)}", "stw")
        if not (full and order == "m"):
            run(rsv_reads())
        if full:
            k(f"v_mov_b32 {v(WE+1)}, {v(BI)}\nv_mov_b32 {v(WE+5)}, {v(BI+1)}\ns_lshl_b32 s3, s{sF}, 13\ns_add_u32 s{sA0}, s{sAF}, s3")
            for t in range(4):
                mfma(ACC + 16 * t, v(WE + 4 * (t >> 1), 4), v(XB if t & 1 else XA, 4))

    def pf_ops():
        if not l2pf:
            return [("s_nop 0", "none")]
        P, Q = TM + 18, TM + 19
        rows = mapping != "x8g4"
        o = []
        for h in range(2 if rows else 1):
            col = f"s_mov_b32 s3, {h*4}" if rows else f"s_and_b32 s3, s{sXD}, 1\ns_lshl_b32 s3, s3, 2"
            skip = f"v_cmp_eq_u32 vcc, {lite}, {v(Q)}\nv_lshrrev_b32 {v(P)}, 2, {v(L)}\nv_min_u32 {v(P)}, 13, {v(P)}\nv_subbrev_co_u32 {v(Q)}, vcc, 0, {v(Q)}, vcc\n" if trickle else \
                   f"v_lshrrev_b32 {v(P)}, 2, {v(L)}\nv_min_u32 {v(P)}, 13, {v(P)}\n"
            o += [(f"{col}\nv_and_b32 {v(Q)}, 3, {v(L)}\nv_add_u32 {v(Q)}, s3, {v(Q)}\n{skip}v_lshlrev_b32 {v(Q)}, 7, {v(Q)}\nv_lshl_add_u32 {v(P)}, {v(P)}, 10, {v(Q)}\n"
                   f"s_lshl_b32 s{t2}, s{sJ}, 2\ns_add_u32 s{t2}, s{t2}, s{sW}\ns_mul_i32 s{t2}, s{t2}, {14*1024}", None),
                  (f"buffer_load_dword a255, {v(P)}, {s(rW2,4)}, s{t2} offen", "pf2")]
        half = "" if rows else f"s_and_b32 s3, s{sXD}, 1\ns_lshl_b32 s3, s3, 18\ns_add_u32 s{t2}, s{t2}, s3\n"
        o += [(f"s_lshl_b32 s{t2}, s{sJ}, 2\ns_add_u32 s{t2}, s{t2}, s{sW}\ns_lshl_b32 s{t2}, s{t2}, {12 if rows else 11}\n{half}"
               f"v_and_b32 {v(P)}, {31 if rows else 15}, {v(L)}\nv_lshlrev_b32 {v(P)}, 7, {v(P)}", None),
              (f"buffer_load_dword a255, {v(P)}, {s(rCR,4)}, s{t2} offen", "pf2"),
              (f"buffer_load_dword a255, {v(P)}, {s(rCI,4)}, s{t2} offen", "pf2")]
        return o

    def far_ops():
        if far_at is None:
            return []
        P, Q = TM + 18, TM + 19
        return [(f"s_lshl_b32 s{t2}, s2, 2\ns_add_u32 s{t2}, s{t2}, s{sW}\ns_mul_i32 s3, s{t2}, {14*128}\nv_lshrrev_b32 {v(P)}, 2, {v(L)}\nv_min_u32 {v(Q)}, 13, {v(P)}\nv_lshlrev_b32 {v(Q)}, 7, {v(Q)}\n"
                 f"buffer_load_dword a255, {v(Q)}, {s(rW2,4)}, s3 offen", "far"),
                (f"s_lshl_b32 s{t2}, s{t2}, 9\nv_and_b32 {v(P)}, 3, {v(P)}\nv_lshlrev_b32 {v(P)}, 7, {v(P)}\nbuffer_load_dword a255, {v(P)}, {s(rCR,4)}, s{t2} offen", "far"),
                (f"buffer_load_dword a255, {v(P)}, {s(rCI,4)}, s{t2} offen", "far")]

    def weave(mem, val):
        n = sum(1 for op in mem if not callable(op) and op[1] is not None)
        for m, c in zip(spread_mem(mem, n), spread(val, n)):
            run(m); run(c)

    def stage_reads(b):
        hi = RING[b] >= HIGH
        return [W(vm=f"rb{b}")] + [(f"ds_read_b64_tr_b16 {a(RESB[b]+8*j+4*c+2*rd,2)}, {v(W2R+2*hi+c)} offset:{RING[b] - hi*HIGH + j*2048 + rd*1024}", f"sr{b}")
                                   for j in range(4) for c in range(2) for rd in range(2)]

    EA, EB, EX0, EX1, E0 = XD, XD + 1, XD + 2, XD + 3, TM
    HA, HB, XW, XQ = WD, WD + 1, WD + 2, WD + 3
    def e_loads():
        return [(f"buffer_load_dwordx4 {v(E0,4)}, {v(EA)}, {s(rE,4)}, 0 offen sc1", "eg"),
                (f"buffer_load_dwordx4 {v(E0+4,4)}, {v(EB)}, {s(rE,4)}, 0 offen sc1", "eg")]

    def epi_addr():
        o = []
        e = lambda text: o.extend(ops_of(text))
        P = TM + 12
        o.append((f"s_lshl_b32 s3, s{sW}, 2\ns_sub_u32 s3, s{sC}, s3\ns_sub_u32 s3, s3, 1\nv_sub_u32 {v(EA)}, s3, {v(HF)}", None))
        e(f"v_subrev_u32 {v(EB)}, 2, {v(EA)}\nv_ashrrev_i32 {v(EX0)}, 31, {v(EA)}\nv_ashrrev_i32 {v(EX1)}, 31, {v(EB)}\n"
          f"v_bfi_b32 {v(EX0)}, {v(EX0)}, 0, s{sTAG}\nv_bfi_b32 {v(EX1)}, {v(EX1)}, 0, s{sTAG}\nv_lshlrev_b32 {v(P)}, 4, {v(LR)}\n"
          f"v_lshl_add_u32 {v(EA)}, {v(EA)}, 9, {v(P)}\nv_lshl_add_u32 {v(EB)}, {v(EB)}, 9, {v(P)}")
        o.append((f"s_lshr_b32 s3, s{sW12}, 3\ns_add_u32 s3, s3, {SCR_EX}\nv_lshl_add_u32 {v(XW)}, {v(L)}, 3, s3", None))
        e(f"v_lshlrev_b32 {v(XQ)}, 3, {v(LR)}\nv_add_u32 {v(XQ)}, {SCR_EX}, {v(XQ)}")
        o.append((f"s_lshr_b32 s3, s{sW}, 1\ns_mul_i32 s3, s3, {SLOT - 8192}\ns_add_u32 s3, s3, s{sW12}\ns_add_u32 s{sKW}, s3, {SCR_HT}", None))
        e(f"v_lshlrev_b32 {v(HA)}, 5, {v(HF)}\nv_lshl_add_u32 {v(HA)}, {v(LR)}, 6, {v(HA)}\nv_add_u32 {v(HA)}, s{sKW}, {v(HA)}")
        e(f"v_bfe_u32 {v(HB)}, {v(L)}, 2, 2\nv_lshl_add_u32 {v(HB)}, {v(HF)}, 3, {v(HB)}\nv_lshlrev_b32 {v(HB)}, 6, {v(HB)}")
        e(f"v_and_b32 {v(P)}, 1, {v(L)}\nv_lshl_add_u32 {v(HB)}, {v(P)}, 5, {v(HB)}\nv_bfe_u32 {v(P)}, {v(L)}, 1, 1\nv_lshl_add_u32 {v(HB)}, {v(P)}, 3, {v(HB)}")
        e(f"v_bfe_u32 {v(P)}, {v(L)}, 4, 1\nv_lshl_add_u32 {v(HB)}, {v(P)}, 4, {v(HB)}\nv_add_u32 {v(HB)}, s{sKW}, {v(HB)}")
        o.append((f"s_lshr_b32 s3, s{sG}, 2\ns_lshl_b32 s3, s3, 3\ns_and_b32 s{sKW}, s{sG}, 3\ns_add_u32 s3, s3, s{sKW}\ns_lshl_b32 s3, s3, 11\ns_add_u32 s{sKW}, s{sAF}, s3\ns_add_u32 s{sKW}, s{sKW}, {112*1024}", None))
        o.append((f"s_lshl_b32 s3, s{sM}, 1\ns_lshr_b32 s{sP0}, s{sW}, 1\ns_add_u32 s{sP0}, s3, s{sP0}\ns_xor_b32 s{sP1}, s{sP0}, 1\n"
                  f"s_mul_i32 s{sP0}, s{sP0}, {MT}\ns_mul_i32 s{sP1}, s{sP1}, {MT}\ns_add_u32 s{sP0}, s{sP0}, {AF}\ns_add_u32 s{sP1}, s{sP1}, {AF}", None))
        return o

    def gemm1(full, pfx):
        nm = 6 if full else 2
        base_of = lambda stg: ((stg % 4) // 2) * HIGH
        def reads(n):
            stg, j = divmod(n, 4)
            off = (stg % 4) * SLOT - base_of(stg)
            f = FR + 28 * (n & 1)
            d = base_of(stg) - base_of(stg - 1) if stg else 0
            adj = lambda r, on=True: f"v_add_u32 {v(r)}, {d & 0xffffffff:#x}, {v(r)}\n" if d and on else ""
            o = [(adj(XR + j) + f"ds_read_b128 {a(f,4)}, {v(XR+j)} offset:{off}", f"ra{n}")]
            o += [(adj(BQ + j, c == 0) + f"ds_read_b128 {a(f+4+4*c,4)}, {v(BQ+j)} offset:{off + c*4096}", f"ra{n}") for c in range(2)]
            if full:
                o += [(adj(WR + t, j == 0 and rd == 0) + f"ds_read_b64_tr_b16 {a(f+12+4*t+2*rd,2)}, {v(WR+t)} offset:{off + j*4096 + rd*1024}", f"ra{n}" if t == 0 else f"rb_{n}")
                      for t in range(4) for rd in range(2)]
            return o
        if look == 2:
            mem = {sg: stage_ops(sg + 2, full) for sg in range(6)}
            if pre3:
                mem[0] = []
            mem.update({6: ring_ops(0), 7: ring_ops(1)})
        else:
            ramp = spread_mem(sum((stage_ops(sg, full) for sg in range(2, 6)), []), 3)
            mem = {0: ramp[0], 1: ramp[1], 2: ramp[2], 3: stage_ops(6, full), 4: stage_ops(7, full), 5: ring_ops(0), 6: ring_ops(1), 7: ring_ops(2)}
        mem[pf_at] = pf_ops() + mem[pf_at]
        if far_at is not None:
            mem[far_at] = mem[far_at] + far_ops()
        mem[gran_at] = gran_loads(full) + mem[gran_at]
        if trk_w2 is not None and mapping == "x8g4":
            P, Q = TM + 18, TM + 19
            for q in range(4):
                head = (f"s_and_b32 s3, s{sXD}, 1\ns_lshl_b32 s3, s3, 2\nv_bfe_u32 {v(Q)}, {v(L)}, 2, 2\nv_add_u32 {v(Q)}, s3, {v(Q)}\nv_cmp_eq_u32 vcc, {lite}, {v(Q)}\n"
                        f"v_lshrrev_b32 {v(P)}, 4, {v(L)}\nv_lshlrev_b32 {v(P)}, 10, {v(P)}\nv_subbrev_co_u32 {v(Q)}, vcc, 0, {v(Q)}, vcc\nv_lshl_add_u32 {v(P)}, {v(Q)}, 7, {v(P)}\n"
                        f"s_lshl_b32 s{sJ}, s{sJ}, 2\ns_add_u32 s{sJ}, s{sJ}, s{sW}\ns_mul_i32 s{sJ}, s{sJ}, {14*1024}\n") if q == 0 else f"s_add_u32 s{sJ}, s{sJ}, {4096 if q < 3 else 2048}\n"
                mem[trk_w2 + q] = mem[trk_w2 + q] + [(head + f"buffer_load_dword a255, {v(P)}, {s(rW2,4)}, s{sJ} offen", "trk")]
        if trk_c is not None:
            P = TM + 19
            nrow = 2 if mapping == "x8g4" else 4
            half = f"s_and_b32 s3, s{sXD}, 1\ns_lshl_b32 s3, s3, 18\ns_add_u32 s{t2}, s{t2}, s3\n" if mapping == "x8g4" else ""
            mem[trk_c] = mem[trk_c] + [
                (f"s_lshl_b32 s{t2}, s{sJ}, 2\ns_add_u32 s{t2}, s{t2}, s{sW}\ns_mul_i32 s{t2}, s{t2}, {nrow*1024}\n{half}v_bfe_u32 {v(P)}, {v(L)}, 4, {nrow//2}\nv_lshlrev_b32 {v(P)}, 10, {v(P)}\n"
                 f"buffer_load_dword a255, {v(P)}, {s(rCR,4)}, s{t2} offen offset:384", "trk"),
                (f"buffer_load_dword a255, {v(P)}, {s(rCI,4)}, s{t2} offen offset:384", "trk")]
        if trickle and not full:
            for sg in range(7):
                P = TM + 15
                rows = mapping != "x8g4"
                who = {"rows": f"s_and_b32 s3, s{sC}, 1\ns_lshl_b32 s3, s3, 1\ns_lshr_b32 s{sQ}, s{sG}, 3\ns_add_u32 s3, s3, s{sQ}",
                       "x4g8": f"s_and_b32 s3, s{sC}, 3", "x8g4": f"s_and_b32 s3, s{sC}, 7"}[mapping]
                head = (f"{who}\ns_lshl_b32 s3, s3, 2\ns_add_u32 s3, s3, s{sW}\ns_mul_i32 s{sQ}, s3, {(112 if rows else 56)*1024}\ns_add_u32 s{sQ}, s{sQ}, {lite*128}\n"
                        f"v_lshrrev_b32 {v(P)}, {2 if rows else 3}, {v(L)}\nv_lshlrev_b32 {v(P)}, 10, {v(P)}\n") if sg == 0 else f"s_add_u32 s{sQ}, s{sQ}, {16384 if rows else 8192}\n"
                mem[sg] = mem[sg] + [(head + f"buffer_load_dword a255, {v(P)}, {s(rW2,4)}, s{sQ} offen {NT('t')}", "trk")]
        val = late_setup(full)[n_before:] if pre3 else late_setup(full)
        for stg in range(8):
            k.wait(vm=f"st{stg}", lg="all" if look == 3 else None)
            k("s_barrier")
            if stg in (0, 4):
                stamp(f"{pfx}st{stg}")
            steps = ([4 * stg - 1] if stg else []) + [4 * stg, 4 * stg + 1, 4 * stg + 2] + ([31] if stg == 7 else [])
            if stg == 0:
                run(reads(0))
            mm = spread_mem(mem[stg], nm * min(4, len(steps))) if mem[stg] else []
            if stg == 6:
                assert look == 2 or not val
                val = val + epi_addr()
            gi = 0
            for n in steps:
                f = FR + 28 * (n & 1)
                last = n % 4 == 2 and look == 3
                rd = spread(reads(n + 1), nm - 2 if last and full else nm) + [[]] * 2 if n < 31 else [[]] * nm
                for i in range(nm):
                    if i == 0:
                        k.wait(lg=f"ra{n}")
                    if i == 3:
                        k.wait(lg=f"rb_{n}")
                    c0 = "0" if n == 0 else None
                    if i < 2:
                        mfma(SS + 16 * i, a(f, 4), a(f + 4 + 4 * i, 4), c0)
                    else:
                        mfma(ACC + 16 * (i - 2), a(f + 12 + 4 * (i - 2), 4), a(f, 4), c0)
                    here = rd[i] + (mm[gi] if gi < len(mm) else [])
                    run(here)
                    used = 8 + sum(map(cost, here)) + (6 if i in (2, nm - 1) else 0)
                    while val and (used + cost(val[0]) <= budget or (not full and used < 60)):
                        used += cost(val[0])
                        run([val.pop(0)])
                    gi += 1
                probe(f"g{n}")
        run(val)

    def scan_ops():
        o = [W(lg="rsv")]
        for r in range(0, 16, 2):
            o += ops_of(f"v_pk_mul_f32 {v(SS+r,2)}, {v(SS+r,2)}, {v(RSV+r,2)}\nv_pk_mul_f32 {v(SS+16+r,2)}, {v(SS+16+r,2)}, {v(RSV+r,2)}")
        for r in range(1, 16):
            o += ops_of(f"v_fmac_f32 {v(SS+r)}, {v(LAR)}, {v(SS+r-1)}\nv_fmac_f32 {v(SS+16+r)}, {v(LAR)}, {v(SS+15+r)}\n"
                        f"v_fmac_f32 {v(SS+r)}, {v(NLAI)}, {v(SS+15+r)}\nv_fmac_f32 {v(SS+16+r)}, {v(LAI)}, {v(SS+r-1)}")
        o.append((f"ds_write2_b32 {v(XW)}, {v(SS+15)}, {v(SS+31)} offset0:0 offset1:1", "exw"))
        return o

    def chain_ops():
        o = [(f"ds_read_b64 {v(EK+2*q,2)}, {v(XQ)} offset:{q*256}", f"ek{q}") for q in range(8)]
        SG = TM + 17
        o.append((f"s_lshl_b32 s3, s{sW}, 1\nv_add_u32 {v(SG)}, s3, {v(HF)}", None))
        o += ops_of(f"v_mov_b32 {v(PR)}, 0\nv_mov_b32 {v(PI)}, 0\nv_mov_b32 {v(XA+1)}, s{sTAG}\nv_mov_b32 {v(XA+3)}, s{sTAG}")
        o.append(W(lg="ek3"))
        for q in range(1, 8):
            r, i = EK + 2 * q, EK + 2 * q + 1
            dr, di = (XA, XA + 2) if q == 7 else (r, i)
            if q == 4:
                o.append(W(lg="ek7"))
            o += ops_of(f"v_cmp_eq_u32 vcc, {q}, {v(SG)}\nv_fmac_f32 {v(r)}, {v(L16R)}, {v(r-2)}\nv_fmac_f32 {v(i)}, {v(L16R)}, {v(i-2)}\n"
                        f"v_cndmask_b32 {v(PR)}, {v(PR)}, {v(r-2)}, vcc\nv_cndmask_b32 {v(PI)}, {v(PI)}, {v(i-2)}, vcc\n"
                        f"v_fma_f32 {v(dr)}, {v(NL16I)}, {v(i-2)}, {v(r)}\nv_fma_f32 {v(di)}, {v(L16I)}, {v(r-2)}, {v(i)}")
        o.append((f"s_cmp_eq_u32 s{sW}, 3\ns_cselect_b32 s3, 0, 0x10000\nv_lshlrev_b32 {v(SG)}, 13, {v(HF)}\nv_add3_u32 {v(SG)}, {v(SG)}, {v(L16)}, s3\ns_lshl_b32 s3, s{sC}, 9\n"
                  f"buffer_store_dwordx4 {v(XA,4)}, {v(SG)}, {s(rE,4)}, s3 offen sc1", "epub"))
        return o

    def coef_ops():
        o = []
        for r in range(0, 16, 2):
            tt = XB + (r & 2)
            o += ops_of(f"v_pk_mul_f32 {v(tt,2)}, {v(SS+r,2)}, {v(NCFI,2)} op_sel_hi:[1,0]\nv_pk_mul_f32 {v(SS+r,2)}, {v(SS+r,2)}, {v(CFR,2)} op_sel_hi:[1,0]\n"
                        f"v_pk_fma_f32 {v(SS+r,2)}, {v(SS+16+r,2)}, {v(NCFI,2)}, {v(SS+r,2)} op_sel_hi:[1,0,1]\n"
                        f"v_pk_fma_f32 {v(SS+16+r,2)}, {v(SS+16+r,2)}, {v(CFR,2)}, {v(tt,2)} op_sel:[0,1,0] op_sel_hi:[1,1,1]")
        return o

    XSL = 3 * SLOT + 32768
    def xs_ops():
        P = TM + 19
        return [(f"s_lshl_b32 s{t2}, s{sM}, 1\ns_lshr_b32 s3, s{sW}, 1\ns_add_u32 s{t2}, s{t2}, s3\ns_lshl_b32 s{t2}, s{t2}, 15\n"
                 f"s_lshl_b32 s3, s{sN}, 7\ns_add_u32 s{t2}, s{t2}, s3\ns_and_b32 s3, s{sW}, 1\ns_lshl_b32 s3, s3, 6\ns_add_u32 s{t2}, s{t2}, s3\n"
                 f"v_lshrrev_b32 {v(P)}, 2, {v(L)}\nv_and_b32 {v(P-1)}, 3, {v(L)}\nv_lshlrev_b32 {v(P-1)}, 4, {v(P-1)}\nv_lshl_add_u32 {v(P)}, {v(P)}, 10, {v(P-1)}\n"
                 f"s_lshr_b32 s3, s{sW12}, 1\ns_add_u32 m0, s3, {XSL}", None),
                (f"buffer_load_dwordx4 {v(P)}, {s(rX,4)}, s{t2} offen {NT('y')}lds", "xs"),
                (f"s_add_u32 s{t2}, s{t2}, {16384 - 1024}\nbuffer_load_dwordx4 {v(P)}, {s(rX,4)}, s{t2} offen offset:1024 lds", "xs")]

    def mish_ops(t):
        ops = []
        TA, TB = MI, MI + 8
        for e in range(2):
            R = ACC + 16 * t + 8 * e
            one = lambda f: [(f(i), None) for i in range(8)]
            two = lambda f: [(f(i), None) for i in range(0, 8, 2)]
            ops += two(lambda i: f"v_pk_mul_f32 {v(TA+i,2)}, {v(R+i,2)}, {v(C1,2)} op_sel_hi:[1,0]")
            ops += one(lambda i: f"v_exp_f32 {v(TB+i)}, {v(TA+i)}")
            ops += two(lambda i: f"v_pk_fma_f32 {v(R+i,2)}, {v(TB+i,2)}, 0.5, 1.0 op_sel_hi:[1,0,0]")
            ops += two(lambda i: f"v_pk_fma_f32 {v(TB+i,2)}, {v(TB+i,2)}, {v(R+i,2)}, 1.0 op_sel_hi:[1,1,0]")
            ops += one(lambda i: f"v_rcp_f32 {v(TB+i)}, {v(TB+i)}")
            ops += two(lambda i: f"v_pk_fma_f32 {v(TA+i,2)}, {v(TA+i,2)}, {v(TB+i,2)}, {v(TA+i,2)} neg_lo:[1,0,0] neg_hi:[1,0,0]")
            ops += two(lambda i: f"v_cvt_pk_bf16_f32 {v(R+i//2)}, {v(TA+i)}, {v(TA+i+1)}")
            pre = f"s_add_u32 s{sA0}, s{sA0}, 4096\n" if t == 2 and e == 0 else ""
            ops.append((pre + f"buffer_store_dwordx4 {v(R,4)}, {v(L16)}, {s(rWS,4)}, s{sA0} offen offset:{(2*(t&1)+e)*1024} {st}", f"act{t}"))
        return ops

    PA, PV = BI, BI + 1

    def flag_publish(base, tag):
        k(f"s_lshl_b32 s{sQ}, s{sC}, 4\ns_add_u32 s{sQ}, s{sQ}, s{sG if base == FLC else sF}\ns_lshl_b32 s{sQ}, s{sQ}, 2\ns_add_u32 s{sQ}, s{sQ}, s{sW}\ns_lshl_b32 s{sQ}, s{sQ}, 7\ns_add_u32 s{sQ}, s{sQ}, {base}")
        k(f"v_mov_b32 {v(MF)}, s{sTAG}")
        k.wait(vm=tag)
        k("s_mov_b64 exec, 1")
        text = f"buffer_store_dword {v(MF)}, off, {s(rWS,4)}, s{sQ}"
        if mode == "global":
            k(text + " sc1", "flag")
        else:
            far, done = k.label("far"), k.label("flagged")
            k(f"s_cmp_eq_u32 s{sLOC}, 0\ns_cbranch_scc1 {far}")
            k(text, "flag")
            k(f"s_branch {done}\n{far}:")
            untracked(f"buffer_wbl2 sc1\ns_waitcnt vmcnt(0)\n{text} sc1")
            k(done + ":")
        k("s_mov_b64 exec, -1")

    def poll_load(tag):
        return [(f"buffer_load_dword {v(PV)}, {v(PA)}, {s(rWS,4)}, s{t3} offen sc1", tag)]

    def poll_base(base):
        return f"s_lshl_b32 s3, s{sC}, 5\ns_lshr_b32 s{t3}, s{sG}, 3\ns_add_u32 s3, s3, s{t3}\ns_lshl_b32 s3, s3, 8\ns_add_u32 s{t3}, s3, {base}"

    def poll_ops(first, base, tag):
        top = 15 if base == FLC else 13
        return [(f"{first}\nv_bfe_u32 {v(PA)}, {v(L)}, 1, 2\nv_add_u32 {v(PA)}, s3, {v(PA)}\nv_min_u32 {v(PA)}, {top}, {v(PA)}\nv_and_b32 {v(PV)}, 1, {v(L)}\n"
                 f"v_lshl_add_u32 {v(PA)}, {v(PA)}, 2, {v(PV)}\nv_lshlrev_b32 {v(PA)}, 7, {v(PA)}\n" + poll_base(base), None)] + poll_load(tag)

    poll1_ops = lambda: poll_ops(f"s_mov_b32 s3, s{sGE}", FLB if one else FLA, "poll1")
    poll2_ops = lambda: poll_ops(f"s_mov_b32 s3, s{sGL}", FLB, "poll2")
    poll3_ops = lambda: poll_ops(f"s_lshl_b32 s3, s{sW}, 2", FLC, "poll3")
    poll_check = lambda tag: spin_check(tag, tag, f"v_cmp_ne_u32 vcc, s{sTAG}, {v(PV)}", poll_load(tag))

    def carry_write():
        Y0, Y1 = TM + 12, TM + 13
        mis = (f"v_xor_b32 {v(Y0)}, {v(E0+1)}, {v(EX0)}\nv_xor_b32 {v(Y1)}, {v(E0+3)}, {v(EX0)}\nv_or_b32 {v(Y0)}, {v(Y0)}, {v(Y1)}\n"
               f"v_xor_b32 {v(Y1)}, {v(E0+5)}, {v(EX1)}\nv_or_b32 {v(Y0)}, {v(Y0)}, {v(Y1)}\nv_xor_b32 {v(Y1)}, {v(E0+7)}, {v(EX1)}\nv_or_b32 {v(Y0)}, {v(Y0)}, {v(Y1)}\n"
               f"v_cmp_ne_u32 vcc, 0, {v(Y0)}")
        spin_check("e", "eg", mis, e_loads())
        k(f"v_fmac_f32 {v(E0)}, {v(L2R)}, {v(E0+4)}\nv_fmac_f32 {v(E0+2)}, {v(L2R)}, {v(E0+6)}")
        k(f"v_fma_f32 {v(E0)}, -{v(L2I)}, {v(E0+6)}, {v(E0)}\nv_fmac_f32 {v(E0+2)}, {v(L2I)}, {v(E0+4)}")
        k(f"v_mul_f32 {v(Y0)}, {v(SCRR)}, {v(E0)}\nv_mul_f32 {v(Y1)}, {v(SCRR)}, {v(E0+2)}")
        k(f"v_fma_f32 {v(Y0)}, -{v(SCI)}, {v(E0+2)}, {v(Y0)}\nv_fmac_f32 {v(Y1)}, {v(SCI)}, {v(E0)}")
        k(f"ds_write_b64 {v(XW)}, {v(Y0,2)} offset:{SCR_CX - SCR_EX}", "cxw")
        k.wait(lg="all")
        k("s_barrier")
        for q in range(8):
            k(f"ds_read_b64 {v(TM+2*q,2)}, {v(XQ)} offset:{SCR_CX - SCR_EX + q*256}", "cxr")

    def fix_ops():
        o = []
        e = lambda text, tag=None: o.extend(ops_of(text, tag))
        o.append(W(lg="cxr"))
        for step in (8, 4, 2):
            for q in range(0, step, 2):
                e(f"v_pk_add_f32 {v(TM+q,2)}, {v(TM+q,2)}, {v(TM+q+step,2)}")
        NS = TM + 16
        e(f"v_fmac_f32 {v(PR)}, {v(PWR)}, {v(TM)}\nv_fmac_f32 {v(PI)}, {v(PWR)}, {v(TM+1)}")
        e(f"v_fma_f32 {v(NS)}, -{v(PWI)}, {v(TM+1)}, {v(PR)}\nv_fma_f32 {v(NS+1)}, -{v(PWI)}, {v(TM)}, -{v(PI)}")
        for qq in range(4):
            comp, half = qq >> 1, qq & 1
            for r in range(8 * half, 8 * half + 8, 2):
                d = SS + 16 * comp + r
                e(f"v_pk_fma_f32 {v(d,2)}, {v(T+r,2)}, {v(NS,2)}, {v(d,2)} op_sel:[0,{comp},0] op_sel_hi:[1,{comp},1]")
                if comp == 0:
                    e(f"v_pk_fma_f32 {v(d,2)}, {v(T+16+r,2)}, {v(NS,2)}, {v(d,2)} op_sel:[0,1,0] op_sel_hi:[1,1,1]")
                else:
                    e(f"v_pk_fma_f32 {v(d,2)}, {v(T+16+r,2)}, {v(NS,2)}, {v(d,2)} op_sel:[0,0,0] op_sel_hi:[1,0,1] neg_lo:[0,1,0] neg_hi:[0,1,0]")
            for q in range(4):
                e(f"v_cvt_pk_bf16_f32 {v(TM+4*qq+q)}, {v(SS+8*qq+2*q)}, {v(SS+8*qq+2*q+1)}")
            e(f"ds_write_b128 {v(HA)}, {v(TM+4*qq,4)} offset:{comp*2048 + half*16}", f"htw{comp}")
            if half:
                for f in (2 * comp, 2 * comp + 1):
                    for rd in range(2):
                        e(f"ds_read_b64_tr_b16 {v(SS+16*comp+4*(f&1)+2*rd,2)}, {v(HB)} offset:{f*1024 + rd*256}", f"htr{f}")
        for f in range(4):
            o.append(W(lg=f"htr{f}"))
            pre = f"s_add_u32 s{sKW}, s{sKW}, 8192\n" if f == 2 else ""
            o.append((pre + f"buffer_store_dwordx4 {v(SS+16*(f>>1)+4*(f&1),4)}, {v(L16)}, {s(rWS,4)}, s{sKW} offen offset:{(f&1)*1024} {st}", "hst"))
        return o

    def a_ops(b):
        if b < 7:
            src, add = (sAE, b) if b < 3 else (sAX, 0) if b == 3 else (sAL, b - 4)
            head = f"s_mov_b32 s3, s{src}" if b == 3 else turn(add, 13) + f"\ns_add_u32 s3, s{src}, s3"
            if one:
                head = f"s_add_u32 s3, s{sAE}, {b*4096}"
        elif brot:
            head = f"s_xor_b32 s3, s{sN}, {b-7}\ns_and_b32 s3, s3, 3\ns_lshl_b32 s{t1}, s{sW}, 2\ns_add_u32 s3, s3, s{t1}\ns_lshl_b32 s3, s3, 12\ns_add_u32 s3, s3, {112*1024}"
        else:
            head = f"s_lshl_b32 s3, s{sW}, 14\ns_add_u32 s3, s3, {(112 + 4*(b-7))*1024}"
        ops = [(head + f"\ns_add_u32 s{t1}, s{sP0}, s3\ns_add_u32 s{t2}, s{sP1}, s3", None)]
        for j in range(4):
            for m in range(2):
                pre = f"s_xor_b32 s3, s{sROT2}, {j}\ns_lshl_b32 s3, s3, 10\nv_add_u32 {v(AL)}, s3, {v(L16)}\n" if krot and m == 0 else ""
                ops.append((pre + f"buffer_load_dwordx4 {a(32*(b%NA)+8*j+4*m,4)}, {v(AL)}, {s(rWS,4)}, s{t2 if m else t1} offen offset:{0 if krot else j*1024} sc1 {NT('a')}", f"ab{b}_{j}"))
        return ops

    def finish(full):
        carry_write()
        if early_a != 0:
            poll_check("poll1")
        stamp("poll" if full else "Lpoll")
        fx = fix_ops()
        if full:
            fx[f12_at:f12_at] = [lambda: probe("f12a"), lambda: flag_publish(FLB, "act3"), lambda: probe("f12b")]
        na = dist if early_a is None else early_a
        blocks = [a_ops(0), a_ops(1) + (poll2_ops() if p2_mid else [])] + ([a_ops(2)] if dist == 3 else [])
        r7 = ring_ops(7) if nres == 5 else []
        if nres == 5:
            fx = fx[:-8] + stage_reads(4) + fx[-8:]
        if one and order in ("c", "d"):
            fx = fix_ops()
            if full:
                flag_publish(FLB, "act3")
                probe("f12b")
            weave(ring_ops(7) + ring_ops(8), fx[:-8])
            probe("fxend")
            run(poll1_ops())
            if order == "d":
                run(fx[-8:])
            poll_check("poll1")
            probe("p1ok")
            if order == "c":
                weave(a_ops(0), fx[-8:])
            run(sum((a_ops(b) for b in range(order == "c", a_first)), []))
            return
        if one and order == "b":
            weave(r7, fx[:-8])
            probe("fxend")
            run(poll1_ops())
            run(fx[-8:-4])
            poll_check("poll1")
            probe("p1ok")
            weave(a_ops(0), fx[-4:])
            run(sum((a_ops(b) for b in range(1, a_first)), []))
            return
        if one:
            blocks = [a_ops(b) for b in range(a_first)]
            weave(r7, fx[:-8])
            probe("fxend")
            if poll_pos == "pre":
                run(poll1_ops())
            run(fx[-8:])
            if poll_pos == "post":
                run(poll1_ops())
        elif na or r7:
            weave(r7 + sum(blocks[:na], []), fx[:-8])
            run(fx[-8:])
        else:
            run(fx)
        if nres == 5:
            k.wait(lg="sr4")
            run(ring_ops(8))
        if not na:
            probe("p1in")
            poll_check("poll1")
            probe("p1ok")
        run(sum(blocks[na:], []))

    def bar(**kw):
        def f():
            k.wait(**kw)
            k("s_barrier")
        return f

    k(f"s_cmp_eq_u32 s{sN}, {lite}\ns_cbranch_scc1 L_light")
    snap0 = k.snapshot()
    run(stage_ops(0, True)); par_loads()
    weave(stage_ops(1, True), early_setup() + row_stats())
    if pre3:
        weave(stage_ops(2, True), late_setup(True)[:n_before])
    gemm1(True, "")
    stamp("gemm")
    gran_check(True)
    stamp("gran")
    m = [mish_ops(t) for t in range(4)]
    h = len(m[0]) // 2
    if "stores" in ablate:
        m = [[op if op[1] is None else (op[0].replace("offen", "offen").replace(v(L16), v(TM + 19)), op[1]) for op in mt] for mt in m]
        k(f"v_mov_b32 {v(TM+19)}, 0x7fffffff")
    for t in range(4):
        m[t].insert(0, (lambda tt: (lambda: probe(f"m{tt}")))(t))
    if "f1" in ablate:
        k(f"v_mov_b32 {v(MF)}, 0")
    r2 = ring_ops(2) if look == 2 else []
    if "scan" in ablate:
        drop = lambda ops: [op for op in ops if callable(op) or not op[0].startswith(("v_fmac", "v_pk_mul", "v_cmp", "v_cnd", "v_fma"))]
        so, co = scan_ops, chain_ops
        scan_ops, chain_ops = (lambda: drop(so())), (lambda: drop(co()))
    if "mish" in ablate:
        m = [[op for op in mt if callable(op) or op[1] is not None] for mt in m]
        h = 2
    if order == "m" and n_pre is not None:
        k("s_barrier")
        rings = [ring_ops(b) for b in range(2, 6)]
        pre = stage_reads(0) + stage_reads(1)
        weave(sum(rings[:n_pre], []) or [("s_nop 0", "none")], pre[:17] + m[0] + pre[17:] + m[1] + m[2] + m[3])
        stamp("mish")
        rest = sum(rings[n_pre:], [])
        cutp = len(rest) // 3
        while cutp and rest[cutp - 1][1] is None:
            cutp += 1
        run(rsv_reads())
        if flag_first:
            run(scan_ops())
            flag_publish(FLB, "act3")
            cutp = 0
        else:
            weave(rest[:cutp], scan_ops())
            probe("scan")
            if f12_late is None:
                flag_publish(FLB, "act3")
            probe("f12")
        bar(lg="all")()
        ch = chain_ops()
        if f12_late is not None:
            ch.insert(min(f12_late, len(ch)), lambda: flag_publish(FLB, "act3"))
        weave(rest[cutp:], ch + [lambda: stamp("epub")] + coef_ops() + stage_reads(2) + [W(lg="sr2")])
        weave(ring_ops(6), stage_reads(3) + [W(lg="sr3")])
        weave(ring_ops(7), stage_reads(4) + [W(lg="sr4")])
    elif order == "m":
        k("s_barrier")
        weave(ring_ops(2), stage_reads(0) + m[0])
        weave(ring_ops(3) + [W(lg="sr0")] + ring_ops(4), stage_reads(1) + m[1] + stage_reads(2))
        weave([W(lg="sr2")] + ring_ops(5), m[2])
        weave(ring_ops(6) if m_r6 else [("s_nop 0", "none")], m[3])
        stamp("mish")
        run(rsv_reads() + stage_reads(3) + scan_ops())
        flag_publish(FLB, "act3")
        bar(lg="all")()
        weave(([] if m_r6 else ring_ops(6)) + ring_ops(7), chain_ops())
        stamp("epub")
        run(stage_reads(4) + coef_ops() + [W(lg="sr4")])
    else:
      run(scan_ops())
      run(m[0][:h])
      bar(lg="all")()
      weave(r2 + ring_ops(3), chain_ops() + stage_reads(0) + m[0][h:] + [W(lg="sr0")])
      stamp("epub")
    if order == "m":
        pass
    elif order in ("c", "d"):
        hh = len(m[1]) // 2
        weave(ring_ops(4), stage_reads(1) + m[1][:hh] + [W(lg="sr1")])
        weave(ring_ops(5), stage_reads(2) + m[1][hh:] + [W(lg="sr2")])
        weave(ring_ops(6), m[2] + stage_reads(3))
        run(e_loads())
        run(m[3] + stage_reads(4) + coef_ops())
        stamp("mish")
        finish(True)
    else:
      weave(ring_ops(4), stage_reads(1) + m[1] + [W(lg="sr1")])
      weave(ring_ops(5), stage_reads(2) + m[2] + ([] if one else [lambda: flag_publish(FLA, "act1")]) + [W(lg="sr2")])
      run(e_loads())
      weave(ring_ops(6), (stage_reads(3) if nres == 5 else []) + m[3] + coef_ops())
      if not one:
          run(poll1_ops())
      stamp("mish")
      finish(True)
    k.wait(lg="all")
    k("s_branch L_join")
    snap_join = k.snapshot()

    k("L_light:")
    k.restore(snap0)
    k(f"s_lshl_b32 s{sQ}, s{sC}, 1\ns_lshr_b32 s3, s{sG}, 3\ns_add_u32 s{sQ}, s{sQ}, s3")
    k(f"s_cmp_lt_u32 s{sQ}, 16\ns_cselect_b32 s{rE}, s{pBR}, s{pBI}\ns_cselect_b32 s{rE+1}, s{pBR+1}, s{pBI+1}\ns_mov_b32 s{rE+2}, 0x80000\ns_mov_b32 s{rE+3}, 0x20000")
    k(f"s_and_b32 s{t0}, s{sQ}, 15\ns_lshl_b32 s{t0}, s{t0}, 15\ns_add_u32 s{t0}, s{t0}, s{sW13}")
    if "z" in nt:
        k(f"v_add_u32 {v(TM+18)}, s{t0}, {v(L16)}\ns_lshl_b32 s3, s{sQ}, 15\nv_add_u32 {v(TM+18)}, s3, {v(TM+18)}\nv_and_b32 {v(TM+18)}, 0x1fcfff, {v(TM+18)}")
        for i in range(8):
            k(f"global_load_dwordx4 a[0:3], {v(TM+18)}, s[34:35] offset:{(i&3)*1024} nt", "dummy")
            if i == 3:
                k(f"v_xor_b32 {v(TM+18)}, 0x1000, {v(TM+18)}")
    for i in range(8):
        if i == 4:
            k(f"s_add_u32 s{t0}, s{t0}, 4096")
        k(f"buffer_load_dwordx4 {v(SS+4*i,4)}, {v(L16)}, {s(rE,4)}, s{t0} offen offset:{(i&3)*1024} {NT('l') or NT('m') or (NT('h') if i < 2 else '') or (NT('k') if i < 4 else '')}", "lb")
    k(f"s_min_u32 s{t0}, s{sQ}, 27\ns_lshl_b32 s{t0}, s{t0}, 7\ns_mul_i32 s3, s{sW}, {128*3584}\ns_add_u32 s{t0}, s{t0}, s3")
    k(f"v_lshrrev_b32 {v(TM+16)}, 3, {v(L)}\nv_mul_u32_u24 {v(TM+16)}, 3584, {v(TM+16)}\nv_and_b32 {v(TM+17)}, 7, {v(L)}\nv_lshl_add_u32 {v(TM+16)}, {v(TM+17)}, 4, {v(TM+16)}")
    for i in range(16):
        k(f"buffer_load_dwordx4 {v(ACC+4*i,4)}, {v(TM+16)}, {s(rW1,4)}, s{t0} offen {NT('l') or NT('n') or (NT('q') if i < 6 else '')}", f"lw{i}")
        k(f"s_add_u32 s{t0}, s{t0}, {8*3584}")
    par_loads()
    run(early_setup()); run(row_stats())
    CA, EL = TM, TM + 8

    def fold8(R):
        for j in range(0, 8, 2):
            k(f"v_permlane32_swap_b32 {v(R+j)}, {v(R+j+1)}")
        for j in range(0, 8, 2):
            k(f"v_add_f32 {v(R+j)}, {v(R+j)}, {v(R+j+1)}")
        k(f"v_permlane16_swap_b32 {v(R)}, {v(R+2)}\nv_permlane16_swap_b32 {v(R+4)}, {v(R+6)}")
        k(f"v_add_f32 {v(R)}, {v(R)}, {v(R+2)}\nv_add_f32 {v(R+4)}, {v(R+4)}, {v(R+6)}")

    def split_publish(R, addr, soff):
        k(f"v_cvt_pk_bf16_f32 {v(R+1)}, {v(R)}, {v(R)}\nv_and_b32 {v(R+1)}, 0xffff0000, {v(R+1)}\nv_sub_f32 {v(R+1)}, {v(R)}, {v(R+1)}")
        k(f"v_cvt_pk_bf16_f32 {v(R)}, {v(R)}, {v(R+1)}\nv_mov_b32 {v(R+1)}, s{sTAG}")
        k(f"buffer_store_dwordx2 {v(R,2)}, {v(addr)}, {s(rWS,4)}, s{soff} offen sc1", "cspub")

    k(f"s_mov_b32 s{t0}, 0x3f803f80")
    for j in range(8):
        k(f"v_mov_b32 {v(CA+j)}, 0")
    k(f"v_bfe_u32 {v(EL)}, {v(L)}, 4, 1\nv_lshl_add_u32 {v(EL)}, {v(EL)}, 1, {v(HF)}")
    k.wait(vm="lb")
    for j in range(4):
        for i in range(8):
            k(f"v_dot2c_f32_bf16 {v(CA+i)}, s{t0}, {v(SS+4*i+j)}")
    fold8(CA)
    for r in (8, 4, 2, 1):
        k(f"v_add_f32_dpp {v(CA)}, {v(CA)}, {v(CA)} row_ror:{r} row_mask:0xf bank_mask:0xf")
        k(f"v_add_f32_dpp {v(CA+4)}, {v(CA+4)}, {v(CA+4)} row_ror:{r} row_mask:0xf bank_mask:0xf")
    k(f"v_and_b32 {v(EL+1)}, 1, {v(L)}\nv_cmp_eq_u32 vcc, 1, {v(EL+1)}\nv_lshl_add_u32 {v(EL+1)}, {v(EL+1)}, 2, {v(EL)}\nv_lshlrev_b32 {v(EL+1)}, 3, {v(EL+1)}")
    k(f"v_cndmask_b32 {v(CA)}, {v(CA)}, {v(CA+4)}, vcc")
    k(f"s_lshl_b32 s{t2}, s{sQ}, 8\ns_lshl_b32 s3, s{sW}, 6\ns_add_u32 s{t2}, s{t2}, s3\ns_add_u32 s{t2}, s{t2}, {CS + 1792*8}")
    split_publish(CA, EL + 1, t2)
    stamp("Lbsum")
    run(stage_ops(0, False))
    k(f"s_mov_b32 s{t2}, 0x00003f80\ns_mov_b32 s{t3}, 0x3f800000")
    for j in range(8):
        k(f"v_mov_b32 {v(CA+j)}, 0")
    for i in range(16):
        k.wait(vm=f"lw{i}")
        for j in range(4):
            k(f"v_dot2c_f32_bf16 {v(CA+2*j)}, s{t2}, {v(ACC+4*i+j)}\nv_dot2c_f32_bf16 {v(CA+2*j+1)}, s{t3}, {v(ACC+4*i+j)}")
    for j in range(8):
        k(f"v_add_f32_dpp {v(CA+j)}, {v(CA+j)}, {v(CA+j)} row_ror:8 row_mask:0xf bank_mask:0xf")
    fold8(CA)
    k(f"v_and_b32 {v(EL+1)}, 7, {v(L)}\nv_lshl_add_u32 {v(EL+1)}, {v(EL+1)}, 3, {v(EL)}\nv_lshlrev_b32 {v(EL+1)}, 2, {v(EL+1)}")
    k(f"s_lshl_b32 s3, s{sW}, 8\ns_add_u32 s3, s3, 16384\nv_add_u32 {v(EL+1)}, s3, {v(EL+1)}")
    k(f"ds_write2_b32 {v(EL+1)}, {v(CA)}, {v(CA+4)} offset0:0 offset1:4", "cw")
    k(f"v_lshlrev_b32 {v(EL+1)}, 2, {v(L)}\nv_add_u32 {v(EL+1)}, 16384, {v(EL+1)}")
    k.wait(lg="all")
    k("s_barrier")
    for j in range(4):
        k(f"ds_read_b32 {v(CA+j)}, {v(EL+1)} offset:{j*256}", "cr")
    k(f"s_min_u32 s{t2}, s{sQ}, 27\ns_lshl_b32 s{t2}, s{t2}, 9\ns_add_u32 s{t2}, s{t2}, {CS}\nv_lshlrev_b32 {v(EL+2)}, 3, {v(L)}")
    k.wait(lg="all")
    k(f"v_add_f32 {v(CA)}, {v(CA)}, {v(CA+1)}\nv_add_f32 {v(CA+2)}, {v(CA+2)}, {v(CA+3)}\nv_add_f32 {v(CA)}, {v(CA)}, {v(CA+2)}")
    split_publish(CA, EL + 2, t2)
    stamp("Lwsum")
    run(stage_ops(1, False))
    if pre3:
        weave(stage_ops(2, False), late_setup(False)[:n_before])
    gemm1(False, "L")
    stamp("Lgemm")
    gran_check(False)
    run(scan_ops())
    bar(lg="all")()
    weave(r2 + ring_ops(3), chain_ops() + stage_reads(0) + stage_reads(1) + [W(lg="all")])
    stamp("Lepub")
    weave(ring_ops(4), stage_reads(2) + [W(lg="all")])
    weave(ring_ops(5) + ring_ops(6), coef_ops() + (stage_reads(3) if nres == 5 else []) + (stage_reads(4) if order in ("c", "d") else []))
    if order == "m":
        run(stage_reads(4) + [W(lg="all")] + ring_ops(7))
    else:
        run(e_loads())
        if not one:
            run(poll1_ops())
        finish(False)
    k.wait(lg="all")
    snap_light = k.snapshot()

    k("L_join:")
    if order == "m":
        k.merge(snap_join, snap_light, ("rb5", "rb6", "rb7"))
        probe("join")
        r8 = ring_ops(8)
        at = {"pre": 0, "mid": 5, "post": len(r8)}[ep_pos]
        run(r8[:at] + poll1_ops() + e_loads() + r8[at:])
        blocks = [a_ops(b) for b in range(a_first)]
        if a_lead:
            probe("r8")
            poll_check("poll1")
            probe("p1")
            run(blocks.pop(0))
            probe("a0")
            carry_write()
        else:
            carry_write()
            poll_check("poll1")
        stamp("poll")
        fx = fix_ops()
        weave(sum(blocks, []), fx[:-8])
        run(fx[-8:])
    else:
      k.merge(snap_join, snap_light, tuple(f"rb{b}" for b in range(nres, nres + (3 if order == "b" else 4))) + ("hst",) + (("poll2",) if p2_mid else ()) + tuple(f"ab{b}_{j}" for b in range(a_first if one else dist) for j in range(4)))
    stamp("stored")

    def b_reads(n):
        b, j = divmod(n, 4)
        hi = RING[b] >= HIGH
        off = RING[b] - (HIGH if hi else 0)
        if b < nres:
            return []
        if b < 7:
            return [(f"ds_read_b64_tr_b16 {a(FR+8*j+4*c+2*rd,2)}, {v(W2R+2*hi+c)} offset:{off + j*2048 + rd*1024}", f"f{n}")
                    for c in range(2) for rd in range(2)]
        return [(f"ds_read_b128 {a(FR+8*j+4*c,4)}, {v(CR+4*hi+j)} offset:{off + c*4096}", f"f{n}") for c in range(2)]

    if p2_at == 1 and not p2_mid and not one:
        run(poll2_ops())

    def addend_ops():
        o = [(f"s_lshr_b32 s3, s{sG}, 3\ns_lshl_b32 s3, s3, 1\ns_lshr_b32 s{sCNT}, s{sW}, 1\ns_add_u32 s3, s3, s{sCNT}\ns_lshl_b32 s3, s3, 7\ns_add_u32 s3, s3, {SCR}\n"
              f"v_lshlrev_b32 {v(TM+1)}, 6, {v(HF)}\nv_add_u32 {v(TM+1)}, s3, {v(TM+1)}", None)]
        for q in range(4):
            o += ops_of(f"ds_read_b128 {v(T+4*q,4)}, {v(TM+1)} offset:{q*16}\nds_read_b128 {v(T+16+4*q,4)}, {v(TM+1)} offset:{512+q*16}", "ast")
        P = TM + 2
        o.append((f"s_lshr_b32 s3, s{sW12}, 1\ns_add_u32 s3, s3, {XSL}\nv_bfe_u32 {v(P)}, {v(L)}, 2, 2\nv_lshl_add_u32 {v(P)}, {v(HF)}, 4, {v(P)}\nv_lshlrev_b32 {v(P)}, 6, {v(P)}\n"
                  f"v_bfe_u32 {v(P+1)}, {v(L)}, 4, 1\nv_lshl_add_u32 {v(P)}, {v(P+1)}, 5, {v(P)}\nv_and_b32 {v(P+1)}, 3, {v(L)}\nv_lshl_add_u32 {v(P)}, {v(P+1)}, 3, {v(P)}\nv_add_u32 {v(P)}, s3, {v(P)}", None))
        o.append(W(vm="xs"))
        for q in range(4):
            o += ops_of(f"ds_read_b64_tr_b16 {v(XS+16+2*q,2)}, {v(P)} offset:{q*256}", "ast")
        o.append(W(lg="ast"))
        for r in range(16):
            unpack = f"v_and_b32 {v(XS+r)}, 0xffff0000, {v(XS+16+r//2)}" if r & 1 else f"v_lshlrev_b32 {v(XS+r)}, 16, {v(XS+16+r//2)}"
            o += ops_of(f"{unpack}\nv_sub_f32 {v(T+16+r)}, {v(XS+r)}, {v(T+16+r)}\n"
                        f"v_mul_f32 {v(T+16+r)}, {v(T+16+r)}, {v(T+r)}\nv_fmac_f32 {v(XS+r)}, {v(T+16+r)}, {v(DSK)}")
        return o

    a_next = a_first if one else dist
    for b in range(11):
        nxt = []
        if b == f3_at and not f3_step:
            flag_publish(FLC, "hst")
            stamp("flag")
        if b == p2_at and not one:
            poll_check("poll2")
            stamp("poll2")
        if b == p3_at:
            poll_check("poll3")
            stamp("poll3")
        while a_next <= min(b + dist, 10) and b >= (0 if a_next < (7 if one else 3) else p2_at if a_next < 7 else p3_at):
            nxt += a_ops(a_next); a_next += 1
        if b == p2_at - 2 and not p2_mid and not one:
            nxt += poll2_ops()
        if b == (p3_at - 2 if p3_issue is None else p3_issue):
            nxt = nxt + poll3_ops() if p3_issue is None else poll3_ops() + nxt
        if nres == 5:
            if b in (6, 7):
                nxt = ring_ops(b + 3) + nxt
            if order == "b" and b == 2:
                nxt += ring_ops(8)
        elif 7 <= b + dist < (9 if "rb" in ablate else 11):
            nxt += ring_ops(b + dist)
        if b == xs_at:
            nxt += xs_ops()
        if "xchg" in ablate and b == 6:
            nxt += [(f"s_lshl_b32 s3, s2, 2\ns_add_u32 s3, s3, s{sW}\ns_lshl_b32 s{sKW}, s3, 12\ns_add_u32 s{sKW}, s{sKW}, {32 << 20}", None)]
            nxt += [(f"buffer_store_dwordx4 {v(MI,4)}, {v(L16)}, {s(rWS,4)}, s{sKW} offen offset:{q*1024} sc1", "xst") for q in range(4)]
        if "xchg" in ablate and b == 9:
            nxt += [(f"s_xor_b32 s{sKW}, s{sKW}, {2 << 14}", None)]
            nxt += [(f"buffer_load_dwordx4 {v(MI+4*q,4)}, {v(L16)}, {s(rWS,4)}, s{sKW} offen offset:{q*1024} sc1", "xld") for q in range(4)]
        val = spread(addend_ops(), 32)[16 * (b - xs_at - 2):16 * (b - xs_at - 1)] if 2 <= b - xs_at <= 3 else [[]] * 16
        mm = spread_mem(nxt, 16) if nxt else [[]] * 16
        if b == 10 and tail_major:
            break
        for j in range(4):
            n = 4 * b + j
            rd = [[]] * 4
            if 4 * nres <= n + 1 < 44:
                if j == 3 and not ("rb" in ablate and b >= 8):
                    k.wait(vm=f"rb{b+1}")
                rd = spread(b_reads(n + 1), 4)
            if b == f3_at and f3_step and j == f3_step:
                flag_publish(FLC, "hst")
            k.wait(vm=f"ab{b}_{j}", lg=f"f{n}" if b >= nres else None)
            if j == 0 and b in (0, 8):
                stamp(f"blk{b}")
            for m in range(2):
                for c in range(2):
                    bop = (RESB[b] if b < nres else FR) + 8 * j + 4 * c
                    mfma(ACC + 32 * m + 16 * c, a(32 * (b % NA) + 8 * j + 4 * m, 4), a(bop, 4), "0" if n == 0 else None)
                    run(rd[2 * m + c]); run(mm[4 * j + 2 * m + c]); run(val[4 * j + 2 * m + c])
            probe(f"b{b}_{j}")
    GA = TM
    pre = ops_of(f"v_add_u32 {v(GA)}, s{sW13}, {v(L16)}")
    for u in (1, 2, 3):
        pre += ops_of(f"v_xor_b32 {v(GA+u)}, {u << 13}, {v(GA)}")
    pre.append((f"s_lshl_b32 s{t2}, s{sM}, 1\ns_lshr_b32 s3, s{sW}, 1\ns_add_u32 s{t2}, s{t2}, s3\ns_lshl_b32 s{t2}, s{t2}, 16\n"
                f"s_lshl_b32 s3, s{sN}, 8\ns_add_u32 s{t2}, s{t2}, s3\ns_and_b32 s3, s{sW}, 1\ns_lshl_b32 s3, s3, 7\ns_add_u32 s{t2}, s{t2}, s3", None))
    pre += ops_of(f"v_lshlrev_b32 {v(TM+4)}, 15, {v(HF)}\nv_lshl_add_u32 {v(TM+4)}, {v(LR)}, 2, {v(TM+4)}")
    wr = lambda u: [(f"ds_write_b128 {v(GA)}, {v(ACC+16*u+4*q,4)} offset:{(u>>1)*SLOT + (u&1)*4096 + q*1024}", "fw") for q in range(4)]
    if tail_major:
        for j in (1, 2, 3):
            run(b_reads(40 + j))
        run(pre)
        for u in (3, 2, 1, 0):
            for j in range(4):
                k.wait(vm=f"ab10_{j}", lg=f"f{40+j}")
                mfma(ACC + 16 * u, a(32 * (10 % NA) + 8 * j + 4 * (u >> 1), 4), a(FR + 8 * j + 4 * (u & 1), 4))
                late = {(2, 3): wr(3)[:1], (1, 0): wr(3)[1:2], (1, 1): wr(3)[2:3], (1, 2): wr(3)[3:], (1, 3): wr(2)[:1], (0, 0): wr(2)[1:2], (0, 1): wr(2)[2:3], (0, 2): wr(2)[3:],
                        (0, 3): wr(1)}
                run(late.get((u, j), []))
        stamp("p2done")
    else:
        stamp("p2done")
        run(pre)
        for u in (1, 2, 3):
            run(wr(u))
    k(f"s_mov_b32 s{t0}, 0x3f317218")
    k.wait(lg="all")
    k("s_barrier")
    for q in range(4):
        for u in (1, 2, 3):
            k(f"ds_read_b128 {v(ACC+16*u+4*q,4)}, {v(GA+u)} offset:{(u>>1)*SLOT + (u&1)*4096 + q*1024}", f"fr{q}")
    for q in range(4):
        k.wait(lg=f"fr{q}")
        for i in (0, 2):
            r = 4 * q + i
            k(f"v_pk_add_f32 {v(ACC+r,2)}, {v(ACC+r,2)}, {v(ACC+16+r,2)}\nv_pk_add_f32 {v(ACC+32+r,2)}, {v(ACC+32+r,2)}, {v(ACC+48+r,2)}")
        for i in (0, 2):
            r = 4 * q + i
            k(f"v_pk_add_f32 {v(ACC+r,2)}, {v(ACC+r,2)}, {v(ACC+32+r,2)}\nv_pk_fma_f32 {v(ACC+r,2)}, {v(ACC+r,2)}, {s(t0,2)}, {v(XS+r,2)} op_sel_hi:[1,0,1]")
        for i in range(4):
            r = 4 * q + i
            k(f"buffer_store_dword {v(ACC+r)}, {v(TM+4)}, {s(rOUT,4)}, s{t2} offen offset:{(r&1)*2048} {out_flags}", "out")
            if r & 1:
                k(f"s_add_u32 s{t2}, s{t2}, 4096")
    k(f"s_cmp_lg_u32 s{sC}, 15\ns_cbranch_scc1 L_fin\ns_or_b32 s3, s{sG}, s{sW}\ns_cmp_lg_u32 s3, 0\ns_cbranch_scc1 L_fin")
    k(f"v_mov_b32 {v(TM+5)}, s{sTAG}\ns_mov_b64 exec, 1")
    k(f"buffer_store_dword {v(TM+5)}, off, {s(rWS,4)}, 0 sc1\ns_mov_b64 exec, -1")
    k("L_fin:")
    if diag:
        k("s_waitcnt vmcnt(0)")
        stamp("end")
        for i in range(len(seen)):
            k(f"v_writelane_b32 {v(DG)}, s{FINE[i]}, {16+i}")
        k(f"s_lshl_b32 s3, s2, 2\ns_add_u32 s3, s3, s{sW}\ns_lshl_b32 s3, s3, 8\ns_add_u32 s3, s3, {DIAG}\nv_lshlrev_b32 {v(TM)}, 2, {v(L)}")
        k(f"buffer_store_dword {v(DG)}, {v(TM)}, {s(rWS,4)}, s3 offen sc1")
        if amplify == "skew":
            k(f"s_cmp_lg_u32 s2, {amp_wg}\ns_cbranch_scc1 L_end\nv_readlane_b32 s14, {v(DG)}, {len(stamps)-1}\ns_nop 3")
            k("L_w:\ns_memrealtime s[34:35]\ns_waitcnt lgkmcnt(0)\ns_sub_u32 s3, s34, s14\ns_cmp_lt_u32 s3, 500\ns_cbranch_scc1 L_w")
            k(f"v_lshlrev_b32 {v(TM)}, 10, {v(L)}\ns_mov_b32 s3, {DIAG}")
            for q in range(4):
                k(f"buffer_load_dword {v(TM+4+q)}, {v(TM)}, {s(rWS,4)}, s3 offen sc1\ns_add_u32 s3, s3, 65536")
            k(f"s_waitcnt vmcnt(0)\nv_min_u32 {v(TM+1)}, {v(TM+4)}, {v(TM+5)}\nv_min3_u32 {v(TM+1)}, {v(TM+1)}, {v(TM+6)}, {v(TM+7)}")
            k(f"v_max_u32 {v(TM+2)}, {v(TM+4)}, {v(TM+5)}\nv_max3_u32 {v(TM+2)}, {v(TM+2)}, {v(TM+6)}, {v(TM+7)}")
            for r in (8, 4, 2, 1):
                k(f"v_min_u32_dpp {v(TM+1)}, {v(TM+1)}, {v(TM+1)} row_ror:{r} row_mask:0xf bank_mask:0xf\nv_max_u32_dpp {v(TM+2)}, {v(TM+2)}, {v(TM+2)} row_ror:{r} row_mask:0xf bank_mask:0xf")
            k(f"s_nop 1\nv_readlane_b32 s12, {v(TM+1)}, 0\nv_readlane_b32 s13, {v(TM+2)}, 0\ns_nop 3\ns_sub_u32 s13, s13, s12\ns_min_u32 s13, s13, 1000\ns_lshl_b32 s13, s13, 2\ns_add_u32 s13, s13, 600")
            k("L_amp:\ns_memrealtime s[34:35]\ns_waitcnt lgkmcnt(0)\ns_sub_u32 s3, s34, s14\ns_cmp_lt_u32 s3, s13\ns_cbranch_scc1 L_amp")
        elif amplify:
            k(f"s_cmp_lg_u32 s2, {amp_wg}\ns_cbranch_scc1 L_end")
            k(f"v_readlane_b32 s12, {v(DG)}, 0\nv_readlane_b32 s13, {v(DG)}, {stamps.index(amplify)}\nv_readlane_b32 s14, {v(DG)}, {len(stamps)-1}\ns_nop 3")
            k("s_sub_u32 s13, s13, s12\ns_min_u32 s13, s13, 5000\ns_lshl_b32 s13, s13, 2")
            k("L_amp:\ns_memrealtime s[34:35]\ns_waitcnt lgkmcnt(0)\ns_sub_u32 s3, s34, s14\ns_cmp_lt_u32 s3, s13\ns_cbranch_scc1 L_amp")
    k("L_end:")
    k("s_endpgm")
    for text in cold:
        k(text)

    body, nops = pad(k.lines)
    hdr = open("parallel_sum__ssm_conv_s5__dense_activation_mish__prompt.s.ref").read().split("; Override")[0]
    hdr += """;
; One launch, 256 workgroups of 4 waves (one per CU, all resident). Workgroup (c, g): rows 128c..128c+127,
; scan channels 32g..32g+31 and, unless g & 7 == 3, 128 FFN columns. Raw x is the matrix operand; the
; LayerNorm mean and the bias are one extra k-step, the row scale is applied to the accumulators. The scan is
; exact: 16-step segments in registers, segment and tile end states combined with powers of lambda. Mish
; activations and states go to d_ws as bf16 matrix operands; each workgroup then finishes a 64 x 64 output tile.
; Hand-offs use write-through stores and tags derived from a generation word in d_ws that each launch advances.
"""
    text = hdr + "; @launch grid=(256,1,1) block=(256,1,1) lds=163840\n"
    text += f'.amdgcn_target "amdgcn-amd-amdhsa--gfx950"\n.text\n.globl {KNAME}\n.p2align 8\n.type {KNAME},@function\n{KNAME}:\n'
    text += "\n".join(body) + "\n"
    text += f""".section .rodata,"a"
.p2align 6
.amdhsa_kernel {KNAME}
  .amdhsa_next_free_vgpr 512
  .amdhsa_next_free_sgpr 102
  .amdhsa_accum_offset 256
  .amdhsa_group_segment_fixed_size 0
  .amdhsa_kernarg_size 128
  .amdhsa_user_sgpr_count 2
  .amdhsa_user_sgpr_kernarg_segment_ptr 1
  .amdhsa_system_sgpr_workgroup_id_x 1
.end_amdhsa_kernel
"""
    return text, dict(nops=nops, vgprs=V.next, stamps=stamps, seen=seen, lines=len(body), regs=V.names)


if __name__ == "__main__":
    import json
    kw = json.loads(sys.argv[2]) if len(sys.argv) > 2 else {}
    text, info = gen(**kw)
    open(sys.argv[1], "w").write(text)
    print({q: info[q] for q in ("nops", "vgprs", "lines")})
```

```python
import sys
from emit import K, Alloc, rng, pad

KNAME = "parallel_sum__ssm_conv_s5__dense_activation_mish__prompt_kernel"
EPOCH, STATS, XID, CS, EG, FLA, FLB, FLC, AF = 0, 0x10000, 0x20000, 0x30000, 0x40000, 0x80000, 0xA0000, 0xC0000, 0x100000
DIAG = 200 << 20
MT = 176 * 1024
SLOT = 40960
HIGH = 2 * SLOT
SCR = 32768
SCR_EX, SCR_CX = SCR + 1024, SCR + 4096
SCR_HT = SLOT + 32768
RING = {b: SLOT * q for b, q in enumerate((0, 1, 2, 3, 0, 1, 2, 3, 0, 1, 2))}
RES = 160
LOG2E = 0x3fb8aa3b
SPIN = 1 << 16


def weight(op):
    if callable(op):
        return 0.2
    w = 0.0
    for l in op[0].split("\n"):
        mn = l.split()[0]
        w += 2 if mn in ("v_exp_f32", "v_rcp_f32", "v_sin_f32", "v_cos_f32") else 0.3 if mn.startswith("s_") else 1
    return w


def cost(op):
    if callable(op):
        return 3
    c = 0.0
    for l in op[0].split("\n"):
        mn = l.split()[0]
        c += (8.3 if mn in ("v_exp_f32", "v_rcp_f32", "v_sin_f32", "v_cos_f32") else 13 if mn.startswith("buffer_") else
              1 if mn.startswith("s_") else 4.3)
    return c


def spread(ops, n):
    total = sum(map(weight, ops)) or 1
    out = [[] for _ in range(n)]
    acc = 0.0
    for op in ops:
        out[min(n - 1, int(acc / total * n + 1e-9))].append(op)
        acc += weight(op)
    return out


def spread_mem(ops, n):
    groups, cur = [], []
    for op in ops:
        cur.append(op)
        if not callable(op) and op[1] is not None:
            groups.append(cur); cur = []
    if cur:
        groups[-1] += cur
    out = [[] for _ in range(n)]
    for i, g in enumerate(groups):
        out[i * n // len(groups)] += g
    return out


def gen(mode="global", mapping="x4g8", diag=False, rot="none", amplify=None, amp_wg=0, out_flags="sc1", ablate=(), l2pf=False,
        pf_at=4, gran_at=6, look=2, fine=(), p2_at=2, p3_at=5, dist=2, xs_at=4, tail_major=True, far_at=1, mt_pad=0, lite=3, trickle=True, budget=33, pre3=True, f3_at=1, p2_mid=False, backoff=0, early_a=0, trk_w2=None, code_pf=True, krot=False, brot=False, trk_c=None, nres=5, one=True, poll_pos="pre", a_first=2, af_mb=1, order="m", f12_at=0, m_r6=True, n_pre=2, flag_first=False, ep_pos="pre", a_lead=True, f12_late=40, f3_step=2, p3_issue=4, n_before=110, nt="sl", far2_at=None, cc_at=None, far_spread=False, mid_at=None, mid="xw", nt_st=1):
    NT = lambda c: "nt " if c in nt else ""
    AF = af_mb << 20
    assert nres == 3 or dist == 2
    RESB = {0: 160, 1: 192, 2: 224} if nres == 3 else {0: 128, 1: 160, 2: 192, 3: 224, 4: 96}
    NA = 4 if nres == 3 else 3
    MT = 176 * 1024 + mt_pad
    npre = 2
    k = K()
    V = Alloc("v", 1, 256)
    v = lambda r, n=1: rng("v", r, n)
    a = lambda r, n=1: rng("a", r, n)
    s = lambda r, n=1: rng("s", r, n)
    st = "sc1" if mode == "global" else ""
    xid = mode != "global"

    sC, sG, sW, sROT, sM, sN, sTAG, sLOC = 4, 5, 6, 7, 8, 9, 10, 11
    t0, t1, t2, t3 = 12, 13, 14, 15
    pX, pLR, pLI, pBR, pBI, pCR, pCI, pDT, pDS, pW1, pB1, pW2, pOUT, pWS = 16, 18, 20, 22, 24, 26, 28, 30, 32, 36, 38, 40, 42, 46
    rX, rW1, rB, rE, rW2, rCR, rCI, rWS, rOUT = 48, 52, 56, 60, 64, 68, 72, 76, 80
    sXB, sBB, sWB, sA0, sP1, sKW, sCNT, sAF, sQ, sW12, sW13 = 84, 85, 86, 87, 88, 89, 90, 91, 92, 93, 94
    sHI, sXCC, sF, sP0, sROT2, sR3 = 98, 100, 97, 96, 17, 16
    sBE, sBX, sBL, sAE, sAX, sAL, sGE, sGL, sJ, sXD = 18, 19, 20, 21, 22, 23, 24, 25, 95, 101
    sD = 34

    L, LR, HF, L16, TAU = V("l"), V("lr"), V("hf"), V("l16"), V("tau")
    XD, CD, WD, W2D = V("xd", 4), V("cd", 4), V("wd", 4), V("w2d", 4)
    XR, WR, BQ, CR, W2R = V("xr", 4), V("wr", 4), V("bq", 4), V("cr", 8), V("w2r", 4)
    LAR, LAI, NLAI, L16R, L16I, NL16I, PWR, PWI, L2R, L2I, SCRR, SCI, CFR, NCFR, NCFI = [V(x) for x in
        "lar lai nlai l16r l16i nl16i pwr pwi l2r l2i scr sci cfr ncfr ncfi".split()]
    PR, PI, MF = V("pr"), V("pi"), V("mf")
    ACC, SS, T = V("acc", 64, 4), V("ss", 32, 4), V("t", 32, 4)
    XA, XB, WE = V("xa", 4, 4), V("xb", 4, 4), V("we", 12, 4)
    MI = V("mish", 16, 4)
    TM = V("tmp", 20, 4)
    C1, RS = V("c1", 1, 2), V("rs")
    DSK = V("dsk")
    BI = V("bias", 2)
    DG = V("diag")
    AL = V("al") if krot else L16
    FR = 128
    RSV, EK, XS = MI, TM, SS

    stamps = []
    def stamp(name):
        probe(name)
        if diag and (not fine or name == "end"):
            stamps.append(name)
            k(f"s_memrealtime s[{sD}:{sD+1}]\ns_memtime s[44:45]\ns_waitcnt lgkmcnt(0)")
            k.lg_done = len(k.lg)
            k(f"v_writelane_b32 {v(DG)}, s{sD}, {len(stamps)-1}\nv_writelane_b32 {v(DG)}, s44, {len(stamps)+31}")

    FINE = (26, 28, 30, 32, 36, 38, 40, 42)
    seen = []
    def probe(key):
        if key in fine and key not in seen:
            k(f"s_memtime s[{FINE[len(seen)]}:{FINE[len(seen)]+1}]")
            seen.append(key)

    def srd(d, p, nbytes):
        return f"s_mov_b32 s{d}, s{p}\ns_mov_b32 s{d+1}, s{p+1}\ns_mov_b32 s{d+2}, {nbytes:#x}\ns_mov_b32 s{d+3}, 0x20000"

    def mfma(d, x, y, c=None):
        k(f"v_mfma_f32_32x32x16_bf16 {v(d,16)}, {x}, {y}, {v(d,16) if c is None else c}")

    def untracked(text):
        n = len(k.vm)
        k(text)
        del k.vm[n:]

    def run(ops):
        for op in ops:
            if callable(op):
                op()
            else:
                k(*op)

    def ops_of(text, tag=None):
        return [(l, tag) for l in text.split("\n")]

    W = lambda **kw: (lambda: k.wait(**kw))

    note = lambda text: k("; ---- " + text)
    k("s_cmp_ge_u32 s2, 256\ns_cbranch_scc1 L_end")
    k("s_load_dwordx16 s[16:31], s[0:1], 0\ns_load_dwordx16 s[32:47], s[0:1], 64")
    if diag:
        k("s_memrealtime s[12:13]\ns_memtime s[10:11]")
    A_, B_, C_, D_ = TM, TM + 1, TM + 2, TM + 3
    k(f"v_and_b32 {v(L)}, 63, v0\nv_lshrrev_b32 {v(A_)}, 6, v0\nv_and_b32 {v(LR)}, 31, v0")
    k(f"v_readfirstlane_b32 s{sW}, {v(A_)}")
    k(f"v_lshrrev_b32 {v(HF)}, 5, {v(L)}\nv_lshlrev_b32 {v(L16)}, 4, {v(L)}")
    k(f"s_and_b32 s14, s2, 7\ns_lshr_b32 s15, s2, 3\ns_mov_b32 s{sXD}, s14\ns_mov_b32 s{sJ}, s15")
    if code_pf:
        k(f"s_getpc_b64 s[96:97]\nL_pc:\ns_sub_u32 s96, s96, L_pc-{KNAME}\ns_subb_u32 s97, s97, 0")
        k(f"s_lshl_b32 s3, s{sW}, 5\ns_add_u32 s3, s3, s15\ns_lshl_b32 s3, s3, 8\nv_lshl_add_u32 {v(TM+19)}, {v(L)}, 2, s3\nv_min_u32 {v(TM+19)}, L_end-{KNAME}, {v(TM+19)}")
        k(f"global_load_dword a255, {v(TM+19)}, s[96:97] {NT('c')}", "pf")
    if mapping == "rows":
        k(f"s_and_b32 s3, s15, 1\ns_lshl_b32 s{sC}, s14, 1\ns_or_b32 s{sC}, s{sC}, s3\ns_lshr_b32 s{sG}, s15, 1")
    elif mapping == "x8g4":
        k(f"s_lshr_b32 s3, s14, 2\ns_lshl_b32 s3, s3, 3\ns_and_b32 s{sC}, s15, 7\ns_or_b32 s{sC}, s{sC}, s3")
        k(f"s_and_b32 s3, s14, 3\ns_lshl_b32 s3, s3, 2\ns_lshr_b32 s{sG}, s15, 3\ns_or_b32 s{sG}, s{sG}, s3")
    elif mapping == "x4g8":
        k(f"s_lshr_b32 s3, s14, 1\ns_lshl_b32 s3, s3, 2\ns_and_b32 s{sC}, s15, 3\ns_or_b32 s{sC}, s{sC}, s3")
        k(f"s_and_b32 s3, s14, 1\ns_lshl_b32 s3, s3, 3\ns_lshr_b32 s{sG}, s15, 2\ns_or_b32 s{sG}, s{sG}, s3")
    k({"cg": f"s_add_u32 s{sROT}, s{sC}, s{sG}\ns_and_b32 s{sROT}, s{sROT}, 7", "none": f"s_mov_b32 s{sROT}, 0",
       "c": f"s_and_b32 s{sROT}, s{sC}, 7", "g": f"s_and_b32 s{sROT}, s{sG}, 7"}[rot])
    k(f"s_cmp_gt_u32 s{sG}, {lite}\ns_subb_u32 s{sF}, s{sG}, 0\ns_cmp_gt_u32 s{sG}, {lite + 8}\ns_subb_u32 s{sF}, s{sF}, 0")
    k(f"s_lshl_b32 s{sW12}, s{sW}, 12\ns_lshl_b32 s{sW13}, s{sW}, 13")
    k(f"v_lshrrev_b32 {v(A_)}, 3, {v(L)}")
    k(f"v_and_b32 {v(B_)}, 7, {v(L)}\nv_lshrrev_b32 {v(C_)}, 4, {v(L)}")
    k(f"v_xor_b32 {v(B_)}, {v(B_)}, {v(C_)}\nv_lshlrev_b32 {v(B_)}, 4, {v(B_)}")
    k(f"v_and_b32 {v(C_)}, 3, {v(A_)}\nv_lshl_add_u32 {v(C_)}, {v(HF)}, 4, {v(C_)}")
    k(f"v_lshl_add_u32 {v(XD)}, {v(C_)}, 10, {v(B_)}")
    k(f"v_xor_b32 {v(XD+1)}, 64, {v(XD)}\nv_add_u32 {v(XD+2)}, 6144, {v(XD)}")
    k(f"v_add_u32 {v(XD+3)}, 9216, {v(XD+1)}\nv_add_u32 {v(XD+1)}, 3072, {v(XD+1)}")
    k(f"v_lshl_add_u32 {v(CD)}, {v(A_)}, 10, {v(B_)}")
    k(f"v_xor_b32 {v(CD+1)}, 64, {v(CD)}\nv_add_u32 {v(CD+2)}, {2*7168}, {v(CD)}\nv_add_u32 {v(CD+3)}, {3*7168}, {v(CD+1)}\nv_add_u32 {v(CD+1)}, 7168, {v(CD+1)}")
    k(f"v_lshlrev_b32 {v(A_)}, 10, {v(HF)}\nv_lshl_add_u32 {v(A_)}, {v(LR)}, 4, {v(A_)}")
    k(f"s_lshl_b32 s{sXB}, s{sC}, 17\ns_lshl_b32 s3, s{sW}, 15\ns_add_u32 s{sXB}, s{sXB}, s3")
    k(f"s_and_b32 s3, s{sW}, 1\ns_lshl_b32 s3, s3, 14\ns_lshl_b32 s{sBB}, s{sG}, 15\ns_add_u32 s{sBB}, s{sBB}, s3")
    k(f"v_lshrrev_b32 {v(C_)}, 4, {v(L)}\nv_and_b32 {v(D_)}, 15, {v(L)}\nv_lshlrev_b32 {v(B_)}, 2, {v(C_)}")
    k(f"v_xor_b32 {v(D_)}, {v(D_)}, {v(B_)}\nv_lshlrev_b32 {v(D_)}, 4, {v(D_)}\nv_mul_u32_u24 {v(C_)}, 3584, {v(C_)}\nv_add_u32 {v(WD)}, {v(C_)}, {v(D_)}")
    for i in (1, 2, 3):
        k(f"v_add_u32 {v(WD+i)}, {i*13312}, {v(WD)}")
    k(f"s_mul_i32 s{sWB}, s{sW}, {16*3584}\ns_lshl_b32 s3, s{sF}, 8\ns_add_u32 s{sWB}, s{sWB}, s3")
    k(f"s_lshl_b32 s3, s{sC}, 4\ns_add_u32 s3, s3, s{sG}\ns_lshl_b32 s3, s3, 2\ns_add_u32 s3, s3, s{sW}\ns_lshl_b32 s{t2}, s3, 11")
    k(f"s_lshl_b32 s3, s{sG}, 5\nv_add_lshl_u32 {v(B_)}, {v(LR)}, s3, 1")
    k(f"s_lshl_b32 s3, s{sF}, 7\nv_add_lshl_u32 {v(C_)}, {v(L)}, s3, 1\nv_min_u32 {v(C_)}, 3454, {v(C_)}")
    k(f"s_and_b32 s{sN}, s{sG}, 7\ns_lshl_b32 s3, s{sN}, 1\ns_and_b32 s{t3}, s{sW}, 1\ns_or_b32 s3, s3, s{t3}\ns_lshl_b32 s3, s3, 5\nv_add_lshl_u32 {v(D_)}, {v(LR)}, s3, 1")
    k("s_waitcnt lgkmcnt(0)")
    if diag:
        k(f"v_writelane_b32 {v(DG)}, s12, 0\nv_writelane_b32 {v(DG)}, s10, 32"); stamps.append("start")
    k(srd(rX, pX, 2 << 20))
    SR = TM + 4
    PL = MI
    k(f"global_load_ushort {v(PL)}, {v(B_)}, {s(pLR,2)} {NT('p')}\nglobal_load_ushort {v(PL+1)}, {v(B_)}, {s(pLI,2)} {NT('p')}\nglobal_load_ushort {v(PL+2)}, {v(B_)}, {s(pDT,2)} {NT('p')}", "par")
    k(f"buffer_load_dwordx4 {v(SR,4)}, {v(A_)}, {s(rX,4)}, s{t2} offen {NT('s') or NT('u')}", "srow")
    k(f"buffer_load_dwordx4 {v(SR+4,4)}, {v(A_)}, {s(rX,4)}, s{t2} offen offset:512 {NT('s') or NT('v')}", "srow")
    k(f"s_load_dword s{sTAG}, s[{pWS}:{pWS+1}], {EPOCH}")
    k(srd(rW1, pW1, 512 * 3584))
    k(f"s_cmp_lt_u32 s{sW}, 2\ns_cselect_b32 s{rB}, s{pBR}, s{pBI}\ns_cselect_b32 s{rB+1}, s{pBR+1}, s{pBI+1}\ns_mov_b32 s{rB+2}, 0x80000\ns_mov_b32 s{rB+3}, 0x20000")

    def stage_ops(stage, full):
        slot = (stage % 4) * SLOT
        tag = f"st{stage}"
        ops = [(f"s_xor_b32 s3, s{sROT}, {stage}\ns_mul_i32 s{sKW}, s3, {64*3584}\ns_lshl_b32 s3, s3, 7\ns_add_u32 s{t1}, s3, s{sBB}\ns_add_u32 s{t0}, s3, s{sXB}\n"
                f"s_add_u32 s{sKW}, s{sKW}, s{sWB}\ns_add_u32 m0, s{sW12}, {slot}", None)]
        ops += [(f"buffer_load_dwordx4 {v(XD+i)}, {s(rX,4)}, s{t0} offen offset:{i*1024} {NT('x') or (NT('X') if stage < nt_st else '')}lds", tag) for i in range(4)]
        ops += [(f"s_lshr_b32 s3, s{sW12}, 1\ns_add_u32 m0, s3, {slot + 32768}", None)]
        ops += [(f"buffer_load_dwordx4 {v(CD+i)}, {s(rB,4)}, s{t1} offen offset:{i*1024} {NT('b') or (NT('B') if stage < nt_st else '')}lds", tag) for i in range(2)]
        if full:
            ops += [(f"s_add_u32 m0, s{sW12}, {slot + 16384}", None)]
            ops += [(f"buffer_load_dwordx4 {v(WD+i)}, {s(rW1,4)}, s{sKW} offen offset:{i*1024} {NT('w') or (NT('V') if stage < nt_st else '')}lds", tag) for i in range(4)]
        return ops

    def turn(i, shift):
        if not brot:
            return f"s_mov_b32 s3, {i << shift}"
        return f"s_add_u32 s3, s{sR3}, {i}\ns_cmp_ge_u32 s3, 3\ns_cselect_b32 s{sCNT}, 3, 0\ns_sub_u32 s3, s3, s{sCNT}\ns_lshl_b32 s3, s3, {shift}"

    def ring_ops(b):
        if "pair" in ablate and b >= 6:
            return [(f"buffer_load_dword a254, {v(L16)}, {s(rW2,4)}, 0 offen", f"rb{b}")]
        tag = f"rb{b}"
        if b < 7:
            src, add = (sBE, b) if b < 3 else (sBX, 0) if b == 3 else (sBL, b - 4)
            head = f"s_mov_b32 s{t0}, s{src}" if b == 3 else turn(add, 17) + f"\ns_add_u32 s{t0}, s{src}, s3"
            if one:
                head = f"s_add_u32 s{t0}, s{sBE}, {b*65536}"
            step = f"s_xor_b32 s{t0}, s{t0}, 32768"
            r, D = rW2, W2D
        else:
            head = (f"s_lshl_b32 s{t0}, s{sN}, 1\ns_and_b32 s3, s{sW}, 1\ns_or_b32 s{t0}, s{t0}, s3\ns_lshl_b32 s{t0}, s{t0}, 15\n"
                    f"s_lshl_b32 s3, s{sW}, 8\ns_add_u32 s{t0}, s{t0}, s3")
            step = f"s_xor_b32 s{t0}, s{t0}, 32768"
            if brot:
                head += (f"\ns_xor_b32 s3, s{sN}, {b-7}\ns_bitcmp1_b32 s3, 1\ns_cselect_b32 s{rB}, s{rCI}, s{rCR}\ns_cselect_b32 s{rB+1}, s{rCI+1}, s{rCR+1}"
                         f"\ns_and_b32 s3, s3, 1\ns_lshl_b32 s3, s3, 7\ns_add_u32 s{t0}, s{t0}, s3")
                r, D = rB, CD
            else:
                if (b - 7) & 1:
                    head += f"\ns_add_u32 s{t0}, s{t0}, 128"
                r, D = (rCI if b >= 9 else rCR), CD
        ops = [(head + f"\ns_add_u32 m0, s{sW13}, {RING[b]}", None)]
        for i in range(8):
            flat = krot and b < 7
            if i == 4:
                ops.append((f"s_add_u32 m0, m0, {1024 if flat else 4096}\n{step}", None))
            elif i and flat:
                ops.append(("s_add_u32 m0, m0, 1024", None))
            ops.append((f"buffer_load_dwordx4 {v(D+(i&3))}, {s(r,4)}, s{t0} offen offset:{0 if flat else (i&3)*1024} {NT('r')}lds", tag))
        return ops

    def par_loads():
        k(f"global_load_ushort {v(BI)}, {v(C_)}, {s(pB1,2)}\nglobal_load_ushort {v(BI+1)}, {v(C_)}, {s(pB1,2)} offset:128", "par2")
        k(f"global_load_ushort {v(DSK)}, {v(D_)}, {s(pDS,2)}", "par2")

    def early_setup():
        o = [(srd(rWS, pWS, 1 << 28), None), (f"s_mov_b32 s{sHI}, 0\ns_mov_b32 s{sHI+1}, -1" + (f"\ns_getreg_b32 s{sXCC}, hwreg(HW_REG_XCC_ID)\ns_and_b32 s{sXCC}, s{sXCC}, 15" if xid else ""), None)]
        P0, P1, P2 = TM + 12, TM + 13, TM + 14
        e = lambda text: o.extend(ops_of(text))
        e(f"v_bfe_u32 {v(P0)}, {v(LR)}, 1, 3\nv_xor_b32 {v(P0)}, {v(P0)}, {v(HF)}\nv_lshlrev_b32 {v(P0)}, 4, {v(P0)}\nv_lshl_add_u32 {v(P0)}, {v(LR)}, 7, {v(P0)}")
        e(f"v_add_u32 {v(XR)}, s{sW12}, {v(P0)}\nv_add_u32 {v(BQ)}, 32768, {v(P0)}\nv_add_u32 {v(CR)}, s{sW13}, {v(P0)}")
        for j in (1, 2, 3):
            e(f"v_xor_b32 {v(XR+j)}, {j << 5}, {v(XR)}\nv_xor_b32 {v(BQ+j)}, {j << 5}, {v(BQ)}")
        e(f"v_bfe_u32 {v(P0)}, {v(L)}, 2, 2\nv_and_b32 {v(P1)}, 3, {v(L)}\nv_lshlrev_b32 {v(P1)}, 3, {v(P1)}\nv_bfe_u32 {v(P2)}, {v(L)}, 4, 1\nv_lshl_add_u32 {v(P1)}, {v(P2)}, 5, {v(P1)}")
        e(f"v_lshl_add_u32 {v(P2)}, {v(HF)}, 3, {v(P0)}\nv_lshl_add_u32 {v(P2)}, {v(P2)}, 8, {v(P1)}\nv_lshl_add_u32 {v(P2)}, {v(P0)}, 6, {v(P2)}\nv_add_u32 {v(WR)}, 16384, {v(P2)}")
        for t in (1, 2, 3):
            e(f"v_xor_b32 {v(WR+t)}, {t << 6}, {v(WR)}")
        e(f"v_lshrrev_b32 {v(P2)}, 1, {v(P0)}\nv_lshl_add_u32 {v(P1)}, {v(P2)}, 6, {v(P1)}\nv_lshl_add_u32 {v(P2)}, {v(HF)}, 2, {v(P0)}\nv_lshl_add_u32 {v(P2)}, {v(P2)}, 7, {v(P1)}\nv_add_u32 {v(W2R)}, s{sW13}, {v(P2)}")
        g = lambda text: o.append((text, None))
        g(srd(rW2, pW2, 1792 * 1024)); g(srd(rCR, pCR, 1 << 19)); g(srd(rCI, pCI, 1 << 19)); g(srd(rOUT, pOUT, 4 << 20))
        g(f"s_lshl_b32 s3, s{sG}, 13\ns_add_u32 s{rE}, s{pWS}, s3\ns_addc_u32 s{rE+1}, s{pWS+1}, 0\ns_add_u32 s{rE}, s{rE}, {EG}\ns_addc_u32 s{rE+1}, s{rE+1}, 0\n"
          f"s_mov_b32 s{rE+2}, 8192\ns_mov_b32 s{rE+3}, 0x20000")
        g(f"s_lshr_b32 s3, s{sG}, 3\ns_lshl_b32 s{sM}, s{sC}, 1\ns_or_b32 s{sM}, s{sM}, s3")
        g(f"s_and_b32 s{sR3}, s{sN}, 3\ns_cmp_eq_u32 s{sR3}, 3\ns_cselect_b32 s{sR3}, 0, s{sR3}")
        g(f"s_cmp_eq_u32 s{sW}, 3\ns_cselect_b32 s3, 1, 0\ns_lshl_b32 s{sGE}, s{sW}, 2\ns_sub_u32 s{sGE}, s{sGE}, s3\ns_mul_i32 s{sGL}, s{sW}, 3\ns_add_u32 s{sGL}, s{sGL}, s3")
        g(f"s_lshl_b32 s{sAE}, s{sGE}, 13\ns_lshl_b32 s{sAL}, s{sGL}, 13\ns_add_u32 s{sAL}, s{sAL}, 4096\ns_add_u32 s{sAX}, s{sAE}, {6*4096}\ns_add_u32 s3, s{sAL}, 8192\n"
          f"s_cmp_lt_u32 s{sW}, 2\ns_cselect_b32 s{sAX}, s{sAX}, s{sAL}\ns_cselect_b32 s{sAL}, s{sAL}, s3")
        if one:
            g(f"s_mul_i32 s{sAE}, s{sW}, {7*4096}\ns_mul_i32 s{sGE}, s{sW}, 7\ns_lshr_b32 s{sGE}, s{sGE}, 1")
        g(f"s_lshl_b32 s3, s{sN}, 7\ns_lshl_b32 s{sBE}, s{sAE}, 4\ns_lshl_b32 s{sBX}, s{sAX}, 4\ns_lshl_b32 s{sBL}, s{sAL}, 4\n"
          f"s_add_u32 s{sBE}, s{sBE}, s3\ns_add_u32 s{sBX}, s{sBX}, s3\ns_add_u32 s{sBL}, s{sBL}, s3")
        g(f"s_lshl_b32 s3, s{sC}, 2\ns_add_u32 s3, s3, s{sW}\ns_mul_i32 s{sAF}, s3, {MT}\ns_add_u32 s{sAF}, s{sAF}, {AF}")
        return o

    def row_stats():
        o = []
        def k2(text, tag=None, atomic=False):
            o.extend([(text, tag)] if atomic or tag else ops_of(text))
        S1, S2, U1, U2 = TM, TM + 1, TM + 2, TM + 3
        k2(f"v_mov_b32 {v(S1)}, 0\nv_mov_b32 {v(S2)}, 0\ns_mov_b32 s{t3}, 0x3f803f80")
        o.append(W(vm="srow"))
        for i in range(8):
            k2(f"v_dot2c_f32_bf16 {v(S1)}, s{t3}, {v(SR+i)}\nv_dot2c_f32_bf16 {v(S2)}, {v(SR+i)}, {v(SR+i)}")
        for r in (8, 4, 2, 1):
            k2(f"v_add_f32_dpp {v(S1)}, {v(S1)}, {v(S1)} row_ror:{r} row_mask:0xf bank_mask:0xf")
            k2(f"v_add_f32_dpp {v(S2)}, {v(S2)}, {v(S2)} row_ror:{r} row_mask:0xf bank_mask:0xf")
        k2(f"v_mov_b32 {v(U1)}, {v(S1)}\nv_mov_b32 {v(U2)}, {v(S2)}")
        k2(f"v_permlane16_swap_b32 {v(S1)}, {v(U1)}\nv_permlane16_swap_b32 {v(S2)}, {v(U2)}")
        k2(f"v_add_f32 {v(S1)}, {v(S1)}, {v(U1)}\nv_add_f32 {v(S2)}, {v(S2)}, {v(U2)}")
        k2(f"v_mul_f32 {v(S1)}, 0x3b000000, {v(S1)}\nv_mul_f32 {v(S2)}, 0x3b000000, {v(S2)}")
        k2(f"v_fma_f32 {v(S2)}, -{v(S1)}, {v(S1)}, {v(S2)}\nv_max_f32 {v(S2)}, 0, {v(S2)}")
        k2(f"v_cvt_pk_bf16_f32 {v(S2)}, {v(S2)}, {v(S2)}\nv_and_b32 {v(S2)}, 0xffff0000, {v(S2)}\nv_add_f32 {v(S2)}, 0x3727c5ac, {v(S2)}")
        k2(f"v_cvt_pk_bf16_f32 {v(S2)}, {v(S2)}, {v(S2)}\nv_and_b32 {v(S2)}, 0xffff0000, {v(S2)}\nv_sqrt_f32 {v(S2)}, {v(S2)}")
        k2(f"v_cvt_pk_bf16_f32 {v(SR)}, {v(S1)}, {v(S2)}")
        k2("s_waitcnt lgkmcnt(0)")
        k2(f"s_mul_i32 s{sTAG}, s{sTAG}, 0x9e3779b1\ns_add_u32 s{sTAG}, s{sTAG}, 0x7f4a7c15")
        k2(f"v_mov_b32 {v(SR+1)}, s{sTAG}\nv_lshlrev_b32 {v(U1)}, 3, {v(HF)}")
        if xid:
            k2(f"v_mov_b32 {v(SR+2)}, s{sXCC}\nv_mov_b32 {v(SR+3)}, s{sTAG}")
        k2(f"s_lshr_b32 s{t2}, s{t2}, 7\ns_add_u32 s{t2}, s{t2}, {STATS}")
        if xid:
            k2(f"s_lshl_b32 s{t3}, s{sC}, 4\ns_add_u32 s{t3}, s{t3}, s{sG}\ns_lshl_b32 s{t3}, s{t3}, 3\ns_add_u32 s{t3}, s{t3}, {XID}")
        def publish():
            k("s_mov_b32 exec_lo, 1\ns_mov_b32 exec_hi, 1")
            k(f"buffer_store_dwordx2 {v(SR,2)}, {v(U1)}, {s(rWS,4)}, s{t2} offen sc1", "pub0")
            if xid:
                k(f"buffer_store_dwordx2 {v(SR+2,2)}, off, {s(rWS,4)}, s{t3} sc1", "pub0")
            k("s_mov_b64 exec, -1")
            stamp("stats")
        o.append(publish)
        return o

    def late_setup(full):
        o = []
        e = lambda text: o.extend(ops_of(text))
        g = lambda text: o.append((text, None))
        P0, P1, P2 = TM + 12, TM + 13, TM + 14
        if krot:
            g(f"s_add_u32 s{sROT2}, s{sC}, s{sN}\ns_and_b32 s{sROT2}, s{sROT2}, 3\ns_lshl_b32 s3, s{sROT2}, 5\nv_xor_b32 {v(CR)}, s3, {v(CR)}")
        for j in (1, 2, 3):
            e(f"v_xor_b32 {v(CR+j)}, {j << 5}, {v(CR)}")
        for j in range(4):
            e(f"v_add_u32 {v(CR+4+j)}, {HIGH}, {v(CR+j)}")
        e(f"v_xor_b32 {v(W2R+1)}, 64, {v(W2R)}\nv_add_u32 {v(W2R+2)}, {HIGH}, {v(W2R)}\nv_add_u32 {v(W2R+3)}, {HIGH}, {v(W2R+1)}")
        e(f"v_lshrrev_b32 {v(P0)}, 3, {v(L)}\nv_and_b32 {v(P1)}, 7, {v(L)}\nv_bfe_u32 {v(P2)}, {v(L)}, 4, 1\nv_lshlrev_b32 {v(P2)}, 2, {v(P2)}")
        e(f"v_xor_b32 {v(P1)}, {v(P1)}, {v(P2)}\nv_lshlrev_b32 {v(P1)}, 4, {v(P1)}")
        g(f"s_and_b32 s3, s{sW}, 1\ns_lshl_b32 s3, s3, 6\nv_xor_b32 {v(P1)}, s3, {v(P1)}")
        e(f"v_lshl_add_u32 {v(W2D)}, {v(P0)}, 10, {v(P1)}")
        if krot:
            g(f"s_and_b32 s3, s{sROT2}, 1\ns_lshl_b32 s3, s3, 14\nv_xor_b32 {v(W2D)}, s3, {v(W2D)}")
            e(f"v_xor_b32 {v(W2D+2)}, 0x4000, {v(W2D)}\nv_add_u32 {v(W2D+1)}, 8192, {v(W2D)}\nv_add_u32 {v(W2D+3)}, 8192, {v(W2D+2)}")
            g(f"s_lshr_b32 s3, s{sROT2}, 1\ns_lshl_b32 s3, s3, 15\ns_add_u32 s{sBE}, s{sBE}, s3\ns_add_u32 s{sBX}, s{sBX}, s3\ns_add_u32 s{sBL}, s{sBL}, s3")
        else:
            for i in (1, 2, 3):
                e(f"v_add_u32 {v(W2D+i)}, {i*7168}, {v(W2D)}")
        e(f"v_bfe_u32 {v(P0)}, {v(LR)}, 2, 1\nv_lshrrev_b32 {v(P1)}, 3, {v(LR)}\nv_and_b32 {v(P2)}, 3, {v(LR)}")
        e(f"v_lshl_add_u32 {v(P2)}, {v(P1)}, 2, {v(P2)}\nv_lshl_add_u32 {v(TAU)}, {v(P0)}, 4, {v(P2)}")
        for z in (XA + 2, XA + 3, XB + 2, XB + 3, WE + 2, WE + 3, WE + 6, WE + 7, WE + 10, WE + 11):
            e(f"v_mov_b32 {v(z)}, 0")
        LRE, LIM, DT, A2, BRV, X0, X1, X2 = range(PL, PL + 8)
        o.append(W(vm="par2"))
        e(f"v_lshlrev_b32 {v(LRE)}, 16, {v(LRE)}\nv_lshlrev_b32 {v(LIM)}, 16, {v(LIM)}\nv_lshlrev_b32 {v(DT)}, 16, {v(DT)}\nv_lshlrev_b32 {v(DSK)}, 16, {v(DSK)}")
        e(f"v_mul_f32 {v(DT)}, {LOG2E:#x}, {v(DT)}\nv_exp_f32 {v(DT)}, {v(DT)}\nv_cvt_pk_bf16_f32 {v(DT)}, {v(DT)}, {v(DT)}\nv_and_b32 {v(DT)}, 0xffff0000, {v(DT)}")
        e(f"v_mul_f32 {v(A2)}, {v(DT)}, {v(LRE)}\nv_mul_f32 {v(BRV)}, {v(DT)}, {v(LIM)}\nv_mul_f32 {v(A2)}, {LOG2E:#x}, {v(A2)}\nv_mul_f32 {v(BRV)}, 0.15915494, {v(BRV)}")
        def cpow(n, dr, di):
            e(f"v_mul_f32 {v(X0)}, {n}, {v(A2)}\nv_mul_f32 {v(X1)}, {n}, {v(BRV)}\nv_exp_f32 {v(X0)}, {v(X0)}\nv_fract_f32 {v(X1)}, {v(X1)}")
            e(f"v_cos_f32 {v(dr)}, {v(X1)}\nv_sin_f32 {v(di)}, {v(X1)}\nv_mul_f32 {v(dr)}, {v(dr)}, {v(X0)}\nv_mul_f32 {v(di)}, {v(di)}, {v(X0)}")
        cpow("1.0", LAR, LAI); cpow("0x41800000", L16R, L16I); cpow("0x43800000", L2R, L2I)
        g(f"s_lshl_b32 s3, s{sW}, 1\nv_add_u32 {v(X2)}, s3, {v(HF)}")
        e(f"v_lshlrev_b32 {v(X2)}, 4, {v(X2)}\nv_cvt_f32_u32 {v(X2)}, {v(X2)}")
        cpow(v(X2), PWR, PWI)
        g(f"s_lshl_b32 s3, s{sW}, 2\nv_add_u32 {v(X2)}, s3, {v(HF)}")
        e(f"v_lshlrev_b32 {v(X2)}, 7, {v(X2)}\nv_cvt_f32_u32 {v(X2)}, {v(X2)}")
        cpow(v(X2), SCRR, SCI)
        e(f"v_sub_f32 {v(NLAI)}, 0, {v(LAI)}\nv_sub_f32 {v(NL16I)}, 0, {v(L16I)}")
        e(f"v_mul_f32 {v(X0)}, {v(LRE)}, {v(LRE)}\nv_fmac_f32 {v(X0)}, {v(LIM)}, {v(LIM)}\nv_rcp_f32 {v(X0)}, {v(X0)}\nv_subrev_f32 {v(X1)}, 1.0, {v(LAR)}")
        e(f"v_mul_f32 {v(CFR)}, {v(X1)}, {v(LRE)}\nv_mul_f32 {v(NCFI)}, {v(X1)}, {v(LIM)}\nv_mul_f32 {v(X0)}, 0x4038aa3b, {v(X0)}")
        e(f"v_fmac_f32 {v(CFR)}, {v(LAI)}, {v(LIM)}\nv_fmac_f32 {v(NCFI)}, {v(NLAI)}, {v(LRE)}")
        e(f"v_mul_f32 {v(CFR)}, {v(CFR)}, {v(X0)}\nv_mul_f32 {v(NCFI)}, {v(NCFI)}, {v(X0)}\nv_sub_f32 {v(NCFR)}, 0, {v(CFR)}")
        e(f"v_mul_f32 {v(T)}, {v(CFR)}, {v(LAR)}\nv_mul_f32 {v(T+16)}, {v(CFR)}, {v(LAI)}\nv_fmac_f32 {v(T)}, {v(NCFI)}, {v(LAI)}\nv_fma_f32 {v(T+16)}, -{v(NCFI)}, {v(LAR)}, {v(T+16)}")
        for i in range(1, 16):
            e(f"v_mul_f32 {v(T+i)}, {v(T+i-1)}, {v(LAR)}\nv_mul_f32 {v(T+16+i)}, {v(T+15+i)}, {v(LAR)}")
            e(f"v_fmac_f32 {v(T+i)}, {v(T+15+i)}, {v(NLAI)}\nv_fmac_f32 {v(T+16+i)}, {v(T+i-1)}, {v(LAI)}")
        return o

    GS, GX, GA = TM, TM + 2, TM + 16

    def gran_loads(full):
        ops = [(f"s_lshr_b32 s{t2}, s{sXB}, 7\ns_add_u32 s{t2}, s{t2}, {STATS}\nv_lshlrev_b32 {v(GA)}, 3, {v(TAU)}", None),
               (f"buffer_load_dwordx2 {v(GS,2)}, {v(GA)}, {s(rWS,4)}, s{t2} offen sc1", "gran"),
               (f"s_lshl_b32 s{t2}, s{sC}, 7\ns_add_u32 s{t2}, s{t2}, {XID}\nv_and_b32 {v(GA)}, 15, {v(L)}\nv_lshlrev_b32 {v(GA)}, 3, {v(GA)}", None),
               (f"buffer_load_dwordx2 {v(GX,2)}, {v(GA)}, {s(rWS,4)}, s{t2} offen sc1", "gran"),
               (f"s_lshl_b32 s{t2}, s{sG}, 8\ns_add_u32 s{t2}, s{t2}, {CS + 1792*8}\nv_lshlrev_b32 {v(GA)}, 12, {v(HF)}\nv_lshl_add_u32 {v(GA)}, {v(LR)}, 3, {v(GA)}", None),
               (f"buffer_load_dwordx2 {v(WE+8,2)}, {v(GA)}, {s(rWS,4)}, s{t2} offen sc1", "gran")]
        if not xid:
            del ops[2:4]
        if full:
            ops += [(f"s_lshl_b32 s{t2}, s{sF}, 10\ns_add_u32 s{t2}, s{t2}, {CS}\nv_lshlrev_b32 {v(GA)}, 3, {v(L)}", None),
                    (f"buffer_load_dwordx2 {v(WE,2)}, {v(GA)}, {s(rWS,4)}, s{t2} offen sc1", "gran"),
                    (f"buffer_load_dwordx2 {v(WE+4,2)}, {v(GA)}, {s(rWS,4)}, s{t2} offen offset:512 sc1", "gran")]
        return ops

    cold = []
    def spin_check(name, tag, mismatch, reload):
        again, ok = k.label(name + "_again"), k.label(name + "_ok")
        k.wait(vm=tag)
        k(mismatch)
        k(f"s_mov_b32 s{sCNT}, 0\ns_nop 0\ns_cbranch_vccnz {again}")
        k(ok + ":")
        loads = "\n".join(op[0] for op in reload)
        if backoff:
            loads = f"s_sleep {backoff}\n" + loads
        cold.append(f"{again}:\n{loads}\ns_waitcnt vmcnt(0)\n{mismatch}\ns_add_u32 s{sCNT}, s{sCNT}, 1\ns_cmp_gt_u32 s{sCNT}, {SPIN}\n"
                    f"s_cbranch_scc1 {ok}\ns_cbranch_vccnz {again}\ns_branch {ok}")

    def tags_differ(regs, tmp):
        t = f"v_xor_b32 {v(tmp)}, s{sTAG}, {v(regs[0])}\n"
        for r in regs[1:]:
            t += f"v_xor_b32 {v(tmp+1)}, s{sTAG}, {v(r)}\nv_or_b32 {v(tmp)}, {v(tmp)}, {v(tmp+1)}\n"
        return t + f"v_cmp_ne_u32 vcc, 0, {v(tmp)}"

    rsv_reads = lambda: [(f"ds_read_b128 {v(RSV+4*q,4)}, {v(GA+2)} offset:{q*16}", "rsv") for q in range(4)]

    def gran_check(full):
        spin_check("gran", "gran", tags_differ([GS + 1, WE + 9] + ([GX + 1] if xid else []) + ([WE + 1, WE + 5] if full else []), GA), gran_loads(full))
        if xid:
            k(f"v_cmp_ne_u32 vcc, s{sXCC}, {v(GX)}")
        k(f"v_and_b32 {v(GA)}, 0xffff, {v(GS)}\nv_and_b32 {v(GA+1)}, 0xffff0000, {v(GS)}\nv_lshlrev_b32 {v(MF)}, 16, {v(GS)}")
        if xid:
            k(f"s_cmp_eq_u64 vcc, 0\ns_cselect_b32 s{sLOC}, 1, 0")
        k(f"v_rcp_f32 {v(RS)}, {v(GA+1)}\nv_xor_b32 {v(GA)}, 0x8000, {v(GA)}\nv_lshrrev_b32 {v(GA+1)}, 16, {v(GS)}\nv_lshl_or_b32 {v(GA)}, {v(GA)}, 16, {v(GA)}")
        k(f"v_cndmask_b32 {v(XA)}, {v(GA)}, 0, {s(sHI,2)}\nv_cndmask_b32 {v(XA+1)}, {v(GA+1)}, 0, {s(sHI,2)}")
        k(f"v_cndmask_b32 {v(XB)}, 0, {v(GA)}, {s(sHI,2)}\nv_cndmask_b32 {v(XB+1)}, 0, {v(GA+1)}, {s(sHI,2)}\nv_mov_b32 {v(WE+9)}, 0")
        k(f"s_lshr_b32 s3, s{sW12}, 5\ns_add_u32 s3, s3, {SCR}\nv_lshlrev_b32 {v(GA)}, 9, {v(HF)}\nv_lshl_add_u32 {v(GA)}, {v(TAU)}, 2, {v(GA)}\nv_add_u32 {v(GA)}, s3, {v(GA)}")
        k(f"v_lshlrev_b32 {v(GA+2)}, 6, {v(HF)}\nv_add_u32 {v(GA+2)}, s3, {v(GA+2)}")
        mfma(SS, v(XA, 4), v(WE + 8, 4)); mfma(SS + 16, v(XB, 4), v(WE + 8, 4))
        k(f"v_cndmask_b32 {v(GA+1)}, {v(RS)}, {v(MF)}, {s(sHI,2)}\nv_mul_f32 {v(C1)}, {LOG2E:#x}, {v(RS)}")
        k(f"ds_write_b32 {v(GA)}, {v(GA+1)}", "stw")
        if not (full and order == "m"):
            run(rsv_reads())
        if full:
            k(f"v_mov_b32 {v(WE+1)}, {v(BI)}\nv_mov_b32 {v(WE+5)}, {v(BI+1)}\ns_lshl_b32 s3, s{sF}, 13\ns_add_u32 s{sA0}, s{sAF}, s3")
            for t in range(4):
                mfma(ACC + 16 * t, v(WE + 4 * (t >> 1), 4), v(XB if t & 1 else XA, 4))

    def pf_ops(force=False):
        if not l2pf and not force:
            return [("s_nop 0", "none")]
        P, Q = TM + 18, TM + 19
        rows = mapping != "x8g4"
        o = []
        for h in range(2 if rows else 1):
            col = f"s_mov_b32 s3, {h*4}" if rows else f"s_and_b32 s3, s{sXD}, 1\ns_lshl_b32 s3, s3, 2"
            skip = f"v_cmp_eq_u32 vcc, {lite}, {v(Q)}\nv_lshrrev_b32 {v(P)}, 2, {v(L)}\nv_min_u32 {v(P)}, 13, {v(P)}\nv_subbrev_co_u32 {v(Q)}, vcc, 0, {v(Q)}, vcc\n" if trickle else \
                   f"v_lshrrev_b32 {v(P)}, 2, {v(L)}\nv_min_u32 {v(P)}, 13, {v(P)}\n"
            o += [(f"{col}\nv_and_b32 {v(Q)}, 3, {v(L)}\nv_add_u32 {v(Q)}, s3, {v(Q)}\n{skip}v_lshlrev_b32 {v(Q)}, 7, {v(Q)}\nv_lshl_add_u32 {v(P)}, {v(P)}, 10, {v(Q)}\n"
                   f"s_lshl_b32 s{t2}, s{sJ}, 2\ns_add_u32 s{t2}, s{t2}, s{sW}\ns_mul_i32 s{t2}, s{t2}, {14*1024}", None),
                  (f"buffer_load_dword a255, {v(P)}, {s(rW2,4)}, s{t2} offen", "pf2")]
        half = "" if rows else f"s_and_b32 s3, s{sXD}, 1\ns_lshl_b32 s3, s3, 18\ns_add_u32 s{t2}, s{t2}, s3\n"
        o += [(f"s_lshl_b32 s{t2}, s{sJ}, 2\ns_add_u32 s{t2}, s{t2}, s{sW}\ns_lshl_b32 s{t2}, s{t2}, {12 if rows else 11}\n{half}"
               f"v_and_b32 {v(P)}, {31 if rows else 15}, {v(L)}\nv_lshlrev_b32 {v(P)}, 7, {v(P)}", None),
              (f"buffer_load_dword a255, {v(P)}, {s(rCR,4)}, s{t2} offen", "pf2"),
              (f"buffer_load_dword a255, {v(P)}, {s(rCI,4)}, s{t2} offen", "pf2")]
        return o

    def mid_ops():
        P, Q = TM + 18, TM + 19
        o = [(f"s_lshl_b32 s{t2}, s2, 2\ns_add_u32 s{t2}, s{t2}, s{sW}\nv_bfe_u32 {v(P)}, {v(L)}, 2, 3\nv_min_u32 {v(P)}, 4, {v(P)}\nv_lshlrev_b32 {v(P)}, 7, {v(P)}", None)]
        if "x" in mid:
            o.append((f"s_lshl_b32 s3, s{t2}, 11\nv_lshl_add_u32 {v(Q)}, {v(HF)}, 10, {v(P)}\nbuffer_load_dword a255, {v(Q)}, {s(rX,4)}, s3 offen offset:384", "mid"))
        if "w" in mid:
            o.append((f"s_mul_i32 s3, s{t2}, 1152\ns_add_u32 s3, s3, {192*3584}\nv_lshrrev_b32 {v(Q)}, 2, {v(L)}\nv_min_u32 {v(Q)}, 8, {v(Q)}\nv_lshlrev_b32 {v(Q)}, 7, {v(Q)}\n"
                      f"buffer_load_dword a255, {v(Q)}, {s(rW1,4)}, s3 offen", "mid"))
        if "b" in mid:
            o.append((f"s_lshl_b32 s3, s2, 1\ns_and_b32 s{t2}, s{sW}, 1\ns_or_b32 s3, s3, s{t2}\ns_lshl_b32 s3, s3, 10\nbuffer_load_dword a255, {v(P)}, {s(rB,4)}, s3 offen offset:384", "mid"))
        return o

    def far_ops(flip=0):
        if far_at is None:
            return []
        P, Q = TM + 18, TM + 19
        return [(f"s_xor_b32 s{t2}, s2, {flip}\ns_lshl_b32 s{t2}, s{t2}, 2\ns_add_u32 s{t2}, s{t2}, s{sW}\ns_mul_i32 s3, s{t2}, {14*128}\nv_lshrrev_b32 {v(P)}, 2, {v(L)}\nv_min_u32 {v(Q)}, 13, {v(P)}\nv_lshlrev_b32 {v(Q)}, 7, {v(Q)}\n"
                 f"buffer_load_dword a255, {v(Q)}, {s(rW2,4)}, s3 offen", "far"),
                (f"s_lshl_b32 s{t2}, s{t2}, 9\nv_and_b32 {v(P)}, 3, {v(P)}\nv_lshlrev_b32 {v(P)}, 7, {v(P)}\nbuffer_load_dword a255, {v(P)}, {s(rCR,4)}, s{t2} offen", "far"),
                (f"buffer_load_dword a255, {v(P)}, {s(rCI,4)}, s{t2} offen", "far")]

    def weave(mem, val):
        n = sum(1 for op in mem if not callable(op) and op[1] is not None)
        for m, c in zip(spread_mem(mem, n), spread(val, n)):
            run(m); run(c)

    def stage_reads(b):
        hi = RING[b] >= HIGH
        return [W(vm=f"rb{b}")] + [(f"ds_read_b64_tr_b16 {a(RESB[b]+8*j+4*c+2*rd,2)}, {v(W2R+2*hi+c)} offset:{RING[b] - hi*HIGH + j*2048 + rd*1024}", f"sr{b}")
                                   for j in range(4) for c in range(2) for rd in range(2)]

    EA, EB, EX0, EX1, E0 = XD, XD + 1, XD + 2, XD + 3, TM
    HA, HB, XW, XQ = WD, WD + 1, WD + 2, WD + 3
    def e_loads():
        return [(f"buffer_load_dwordx4 {v(E0,4)}, {v(EA)}, {s(rE,4)}, 0 offen sc1", "eg"),
                (f"buffer_load_dwordx4 {v(E0+4,4)}, {v(EB)}, {s(rE,4)}, 0 offen sc1", "eg")]

    def epi_addr():
        o = []
        e = lambda text: o.extend(ops_of(text))
        P = TM + 12
        o.append((f"s_lshl_b32 s3, s{sW}, 2\ns_sub_u32 s3, s{sC}, s3\ns_sub_u32 s3, s3, 1\nv_sub_u32 {v(EA)}, s3, {v(HF)}", None))
        e(f"v_subrev_u32 {v(EB)}, 2, {v(EA)}\nv_ashrrev_i32 {v(EX0)}, 31, {v(EA)}\nv_ashrrev_i32 {v(EX1)}, 31, {v(EB)}\n"
          f"v_bfi_b32 {v(EX0)}, {v(EX0)}, 0, s{sTAG}\nv_bfi_b32 {v(EX1)}, {v(EX1)}, 0, s{sTAG}\nv_lshlrev_b32 {v(P)}, 4, {v(LR)}\n"
          f"v_lshl_add_u32 {v(EA)}, {v(EA)}, 9, {v(P)}\nv_lshl_add_u32 {v(EB)}, {v(EB)}, 9, {v(P)}")
        o.append((f"s_lshr_b32 s3, s{sW12}, 3\ns_add_u32 s3, s3, {SCR_EX}\nv_lshl_add_u32 {v(XW)}, {v(L)}, 3, s3", None))
        e(f"v_lshlrev_b32 {v(XQ)}, 3, {v(LR)}\nv_add_u32 {v(XQ)}, {SCR_EX}, {v(XQ)}")
        o.append((f"s_lshr_b32 s3, s{sW}, 1\ns_mul_i32 s3, s3, {SLOT - 8192}\ns_add_u32 s3, s3, s{sW12}\ns_add_u32 s{sKW}, s3, {SCR_HT}", None))
        e(f"v_lshlrev_b32 {v(HA)}, 5, {v(HF)}\nv_lshl_add_u32 {v(HA)}, {v(LR)}, 6, {v(HA)}\nv_add_u32 {v(HA)}, s{sKW}, {v(HA)}")
        e(f"v_bfe_u32 {v(HB)}, {v(L)}, 2, 2\nv_lshl_add_u32 {v(HB)}, {v(HF)}, 3, {v(HB)}\nv_lshlrev_b32 {v(HB)}, 6, {v(HB)}")
        e(f"v_and_b32 {v(P)}, 1, {v(L)}\nv_lshl_add_u32 {v(HB)}, {v(P)}, 5, {v(HB)}\nv_bfe_u32 {v(P)}, {v(L)}, 1, 1\nv_lshl_add_u32 {v(HB)}, {v(P)}, 3, {v(HB)}")
        e(f"v_bfe_u32 {v(P)}, {v(L)}, 4, 1\nv_lshl_add_u32 {v(HB)}, {v(P)}, 4, {v(HB)}\nv_add_u32 {v(HB)}, s{sKW}, {v(HB)}")
        o.append((f"s_lshr_b32 s3, s{sG}, 2\ns_lshl_b32 s3, s3, 3\ns_and_b32 s{sKW}, s{sG}, 3\ns_add_u32 s3, s3, s{sKW}\ns_lshl_b32 s3, s3, 11\ns_add_u32 s{sKW}, s{sAF}, s3\ns_add_u32 s{sKW}, s{sKW}, {112*1024}", None))
        o.append((f"s_lshl_b32 s3, s{sM}, 1\ns_lshr_b32 s{sP0}, s{sW}, 1\ns_add_u32 s{sP0}, s3, s{sP0}\ns_xor_b32 s{sP1}, s{sP0}, 1\n"
                  f"s_mul_i32 s{sP0}, s{sP0}, {MT}\ns_mul_i32 s{sP1}, s{sP1}, {MT}\ns_add_u32 s{sP0}, s{sP0}, {AF}\ns_add_u32 s{sP1}, s{sP1}, {AF}", None))
        return o

    def gemm1(full, pfx):
        nm = 6 if full else 2
        base_of = lambda stg: ((stg % 4) // 2) * HIGH
        def reads(n):
            stg, j = divmod(n, 4)
            off = (stg % 4) * SLOT - base_of(stg)
            f = FR + 28 * (n & 1)
            d = base_of(stg) - base_of(stg - 1) if stg else 0
            adj = lambda r, on=True: f"v_add_u32 {v(r)}, {d & 0xffffffff:#x}, {v(r)}\n" if d and on else ""
            o = [(adj(XR + j) + f"ds_read_b128 {a(f,4)}, {v(XR+j)} offset:{off}", f"ra{n}")]
            o += [(adj(BQ + j, c == 0) + f"ds_read_b128 {a(f+4+4*c,4)}, {v(BQ+j)} offset:{off + c*4096}", f"ra{n}") for c in range(2)]
            if full:
                o += [(adj(WR + t, j == 0 and rd == 0) + f"ds_read_b64_tr_b16 {a(f+12+4*t+2*rd,2)}, {v(WR+t)} offset:{off + j*4096 + rd*1024}", f"ra{n}" if t == 0 else f"rb_{n}")
                      for t in range(4) for rd in range(2)]
            return o
        if look == 2:
            mem = {sg: stage_ops(sg + 2, full) for sg in range(6)}
            if pre3:
                mem[0] = []
            mem.update({6: ring_ops(0), 7: ring_ops(1)})
        else:
            ramp = spread_mem(sum((stage_ops(sg, full) for sg in range(2, 6)), []), 3)
            mem = {0: ramp[0], 1: ramp[1], 2: ramp[2], 3: stage_ops(6, full), 4: stage_ops(7, full), 5: ring_ops(0), 6: ring_ops(1), 7: ring_ops(2)}
        mem[pf_at] = pf_ops() + mem[pf_at]
        if far_at is not None:
            if far_spread:
                fo = far_ops()
                fo[1] = (f"s_lshl_b32 s{t2}, s2, 2\ns_add_u32 s{t2}, s{t2}, s{sW}\n" + fo[1][0], fo[1][1])
                fo[2] = (f"s_lshl_b32 s{t2}, s2, 2\ns_add_u32 s{t2}, s{t2}, s{sW}\ns_lshl_b32 s{t2}, s{t2}, 9\n" + fo[2][0], fo[2][1])
                mem[far_at] = mem[far_at] + fo[:1]
                mem[far_at + 1] = mem[far_at + 1] + fo[1:]
            else:
                mem[far_at] = mem[far_at] + far_ops()
        if mid_at is not None and mid_at >= 0:
            mem[mid_at] = mid_ops() + mem[mid_at]
        if far2_at is not None:
            mem[far2_at] = mem[far2_at] + far_ops(2)
        if cc_at is not None:
            mem[cc_at] = mem[cc_at] + pf_ops(True)[-3:]
        mem[gran_at] = gran_loads(full) + mem[gran_at]
        if trk_w2 is not None and mapping == "x8g4":
            P, Q = TM + 18, TM + 19
            for q in range(4):
                head = (f"s_and_b32 s3, s{sXD}, 1\ns_lshl_b32 s3, s3, 2\nv_bfe_u32 {v(Q)}, {v(L)}, 2, 2\nv_add_u32 {v(Q)}, s3, {v(Q)}\nv_cmp_eq_u32 vcc, {lite}, {v(Q)}\n"
                        f"v_lshrrev_b32 {v(P)}, 4, {v(L)}\nv_lshlrev_b32 {v(P)}, 10, {v(P)}\nv_subbrev_co_u32 {v(Q)}, vcc, 0, {v(Q)}, vcc\nv_lshl_add_u32 {v(P)}, {v(Q)}, 7, {v(P)}\n"
                        f"s_lshl_b32 s{sJ}, s{sJ}, 2\ns_add_u32 s{sJ}, s{sJ}, s{sW}\ns_mul_i32 s{sJ}, s{sJ}, {14*1024}\n") if q == 0 else f"s_add_u32 s{sJ}, s{sJ}, {4096 if q < 3 else 2048}\n"
                mem[trk_w2 + q] = mem[trk_w2 + q] + [(head + f"buffer_load_dword a255, {v(P)}, {s(rW2,4)}, s{sJ} offen", "trk")]
        if trk_c is not None:
            P = TM + 19
            nrow = 2 if mapping == "x8g4" else 4
            half = f"s_and_b32 s3, s{sXD}, 1\ns_lshl_b32 s3, s3, 18\ns_add_u32 s{t2}, s{t2}, s3\n" if mapping == "x8g4" else ""
            mem[trk_c] = mem[trk_c] + [
                (f"s_lshl_b32 s{t2}, s{sJ}, 2\ns_add_u32 s{t2}, s{t2}, s{sW}\ns_mul_i32 s{t2}, s{t2}, {nrow*1024}\n{half}v_bfe_u32 {v(P)}, {v(L)}, 4, {nrow//2}\nv_lshlrev_b32 {v(P)}, 10, {v(P)}\n"
                 f"buffer_load_dword a255, {v(P)}, {s(rCR,4)}, s{t2} offen offset:384", "trk"),
                (f"buffer_load_dword a255, {v(P)}, {s(rCI,4)}, s{t2} offen offset:384", "trk")]
        if trickle and not full:
            for sg in range(7):
                P = TM + 15
                rows = mapping != "x8g4"
                who = {"rows": f"s_and_b32 s3, s{sC}, 1\ns_lshl_b32 s3, s3, 1\ns_lshr_b32 s{sQ}, s{sG}, 3\ns_add_u32 s3, s3, s{sQ}",
                       "x4g8": f"s_and_b32 s3, s{sC}, 3", "x8g4": f"s_and_b32 s3, s{sC}, 7"}[mapping]
                head = (f"{who}\ns_lshl_b32 s3, s3, 2\ns_add_u32 s3, s3, s{sW}\ns_mul_i32 s{sQ}, s3, {(112 if rows else 56)*1024}\ns_add_u32 s{sQ}, s{sQ}, {lite*128}\n"
                        f"v_lshrrev_b32 {v(P)}, {2 if rows else 3}, {v(L)}\nv_lshlrev_b32 {v(P)}, 10, {v(P)}\n") if sg == 0 else f"s_add_u32 s{sQ}, s{sQ}, {16384 if rows else 8192}\n"
                mem[sg] = mem[sg] + [(head + f"buffer_load_dword a255, {v(P)}, {s(rW2,4)}, s{sQ} offen {NT('t')}", "trk")]
        val = late_setup(full)[n_before:] if pre3 else late_setup(full)
        for stg in range(8):
            k.wait(vm=f"st{stg}", lg="all" if look == 3 else None)
            k("s_barrier")
            if stg in (0, 4):
                stamp(f"{pfx}st{stg}")
            steps = ([4 * stg - 1] if stg else []) + [4 * stg, 4 * stg + 1, 4 * stg + 2] + ([31] if stg == 7 else [])
            if stg == 0:
                run(reads(0))
            mm = spread_mem(mem[stg], nm * min(4, len(steps))) if mem[stg] else []
            if stg == 6:
                assert look == 2 or not val
                val = val + epi_addr()
            gi = 0
            for n in steps:
                f = FR + 28 * (n & 1)
                last = n % 4 == 2 and look == 3
                rd = spread(reads(n + 1), nm - 2 if last and full else nm) + [[]] * 2 if n < 31 else [[]] * nm
                for i in range(nm):
                    if i == 0:
                        k.wait(lg=f"ra{n}")
                    if i == 3:
                        k.wait(lg=f"rb_{n}")
                    c0 = "0" if n == 0 else None
                    if i < 2:
                        mfma(SS + 16 * i, a(f, 4), a(f + 4 + 4 * i, 4), c0)
                    else:
                        mfma(ACC + 16 * (i - 2), a(f + 12 + 4 * (i - 2), 4), a(f, 4), c0)
                    here = rd[i] + (mm[gi] if gi < len(mm) else [])
                    run(here)
                    used = 8 + sum(map(cost, here)) + (6 if i in (2, nm - 1) else 0)
                    while val and (used + cost(val[0]) <= budget or (not full and used < 60)):
                        used += cost(val[0])
                        run([val.pop(0)])
                    gi += 1
                probe(f"g{n}")
        run(val)

    def scan_ops():
        o = [W(lg="rsv")]
        for r in range(0, 16, 2):
            o += ops_of(f"v_pk_mul_f32 {v(SS+r,2)}, {v(SS+r,2)}, {v(RSV+r,2)}\nv_pk_mul_f32 {v(SS+16+r,2)}, {v(SS+16+r,2)}, {v(RSV+r,2)}")
        for r in range(1, 16):
            o += ops_of(f"v_fmac_f32 {v(SS+r)}, {v(LAR)}, {v(SS+r-1)}\nv_fmac_f32 {v(SS+16+r)}, {v(LAR)}, {v(SS+15+r)}\n"
                        f"v_fmac_f32 {v(SS+r)}, {v(NLAI)}, {v(SS+15+r)}\nv_fmac_f32 {v(SS+16+r)}, {v(LAI)}, {v(SS+r-1)}")
        o.append((f"ds_write2_b32 {v(XW)}, {v(SS+15)}, {v(SS+31)} offset0:0 offset1:1", "exw"))
        return o

    def chain_ops():
        o = [(f"ds_read_b64 {v(EK+2*q,2)}, {v(XQ)} offset:{q*256}", f"ek{q}") for q in range(8)]
        SG = TM + 17
        o.append((f"s_lshl_b32 s3, s{sW}, 1\nv_add_u32 {v(SG)}, s3, {v(HF)}", None))
        o += ops_of(f"v_mov_b32 {v(PR)}, 0\nv_mov_b32 {v(PI)}, 0\nv_mov_b32 {v(XA+1)}, s{sTAG}\nv_mov_b32 {v(XA+3)}, s{sTAG}")
        o.append(W(lg="ek3"))
        for q in range(1, 8):
            r, i = EK + 2 * q, EK + 2 * q + 1
            dr, di = (XA, XA + 2) if q == 7 else (r, i)
            if q == 4:
                o.append(W(lg="ek7"))
            o += ops_of(f"v_cmp_eq_u32 vcc, {q}, {v(SG)}\nv_fmac_f32 {v(r)}, {v(L16R)}, {v(r-2)}\nv_fmac_f32 {v(i)}, {v(L16R)}, {v(i-2)}\n"
                        f"v_cndmask_b32 {v(PR)}, {v(PR)}, {v(r-2)}, vcc\nv_cndmask_b32 {v(PI)}, {v(PI)}, {v(i-2)}, vcc\n"
                        f"v_fma_f32 {v(dr)}, {v(NL16I)}, {v(i-2)}, {v(r)}\nv_fma_f32 {v(di)}, {v(L16I)}, {v(r-2)}, {v(i)}")
        o.append((f"s_cmp_eq_u32 s{sW}, 3\ns_cselect_b32 s3, 0, 0x10000\nv_lshlrev_b32 {v(SG)}, 13, {v(HF)}\nv_add3_u32 {v(SG)}, {v(SG)}, {v(L16)}, s3\ns_lshl_b32 s3, s{sC}, 9\n"
                  f"buffer_store_dwordx4 {v(XA,4)}, {v(SG)}, {s(rE,4)}, s3 offen sc1", "epub"))
        return o

    def coef_ops():
        o = []
        for r in range(0, 16, 2):
            tt = XB + (r & 2)
            o += ops_of(f"v_pk_mul_f32 {v(tt,2)}, {v(SS+r,2)}, {v(NCFI,2)} op_sel_hi:[1,0]\nv_pk_mul_f32 {v(SS+r,2)}, {v(SS+r,2)}, {v(CFR,2)} op_sel_hi:[1,0]\n"
                        f"v_pk_fma_f32 {v(SS+r,2)}, {v(SS+16+r,2)}, {v(NCFI,2)}, {v(SS+r,2)} op_sel_hi:[1,0,1]\n"
                        f"v_pk_fma_f32 {v(SS+16+r,2)}, {v(SS+16+r,2)}, {v(CFR,2)}, {v(tt,2)} op_sel:[0,1,0] op_sel_hi:[1,1,1]")
        return o

    XSL = 3 * SLOT + 32768
    def xs_ops():
        P = TM + 19
        return [(f"s_lshl_b32 s{t2}, s{sM}, 1\ns_lshr_b32 s3, s{sW}, 1\ns_add_u32 s{t2}, s{t2}, s3\ns_lshl_b32 s{t2}, s{t2}, 15\n"
                 f"s_lshl_b32 s3, s{sN}, 7\ns_add_u32 s{t2}, s{t2}, s3\ns_and_b32 s3, s{sW}, 1\ns_lshl_b32 s3, s3, 6\ns_add_u32 s{t2}, s{t2}, s3\n"
                 f"v_lshrrev_b32 {v(P)}, 2, {v(L)}\nv_and_b32 {v(P-1)}, 3, {v(L)}\nv_lshlrev_b32 {v(P-1)}, 4, {v(P-1)}\nv_lshl_add_u32 {v(P)}, {v(P)}, 10, {v(P-1)}\n"
                 f"s_lshr_b32 s3, s{sW12}, 1\ns_add_u32 m0, s3, {XSL}", None),
                (f"buffer_load_dwordx4 {v(P)}, {s(rX,4)}, s{t2} offen {NT('y')}lds", "xs"),
                (f"s_add_u32 s{t2}, s{t2}, {16384 - 1024}\nbuffer_load_dwordx4 {v(P)}, {s(rX,4)}, s{t2} offen offset:1024 lds", "xs")]

    def mish_ops(t):
        ops = []
        TA, TB = MI, MI + 8
        for e in range(2):
            R = ACC + 16 * t + 8 * e
            one = lambda f: [(f(i), None) for i in range(8)]
            two = lambda f: [(f(i), None) for i in range(0, 8, 2)]
            ops += two(lambda i: f"v_pk_mul_f32 {v(TA+i,2)}, {v(R+i,2)}, {v(C1,2)} op_sel_hi:[1,0]")
            ops += one(lambda i: f"v_exp_f32 {v(TB+i)}, {v(TA+i)}")
            ops += two(lambda i: f"v_pk_fma_f32 {v(R+i,2)}, {v(TB+i,2)}, 0.5, 1.0 op_sel_hi:[1,0,0]")
            ops += two(lambda i: f"v_pk_fma_f32 {v(TB+i,2)}, {v(TB+i,2)}, {v(R+i,2)}, 1.0 op_sel_hi:[1,1,0]")
            ops += one(lambda i: f"v_rcp_f32 {v(TB+i)}, {v(TB+i)}")
            ops += two(lambda i: f"v_pk_fma_f32 {v(TA+i,2)}, {v(TA+i,2)}, {v(TB+i,2)}, {v(TA+i,2)} neg_lo:[1,0,0] neg_hi:[1,0,0]")
            ops += two(lambda i: f"v_cvt_pk_bf16_f32 {v(R+i//2)}, {v(TA+i)}, {v(TA+i+1)}")
            pre = f"s_add_u32 s{sA0}, s{sA0}, 4096\n" if t == 2 and e == 0 else ""
            ops.append((pre + f"buffer_store_dwordx4 {v(R,4)}, {v(L16)}, {s(rWS,4)}, s{sA0} offen offset:{(2*(t&1)+e)*1024} {st}", f"act{t}"))
        return ops

    PA, PV = BI, BI + 1

    def flag_publish(base, tag):
        k(f"s_lshl_b32 s{sQ}, s{sC}, 4\ns_add_u32 s{sQ}, s{sQ}, s{sG if base == FLC else sF}\ns_lshl_b32 s{sQ}, s{sQ}, 2\ns_add_u32 s{sQ}, s{sQ}, s{sW}\ns_lshl_b32 s{sQ}, s{sQ}, 7\ns_add_u32 s{sQ}, s{sQ}, {base}")
        k(f"v_mov_b32 {v(MF)}, s{sTAG}")
        k.wait(vm=tag)
        k("s_mov_b64 exec, 1")
        text = f"buffer_store_dword {v(MF)}, off, {s(rWS,4)}, s{sQ}"
        if mode == "global":
            k(text + " sc1", "flag")
        else:
            far, done = k.label("far"), k.label("flagged")
            k(f"s_cmp_eq_u32 s{sLOC}, 0\ns_cbranch_scc1 {far}")
            k(text, "flag")
            k(f"s_branch {done}\n{far}:")
            untracked(f"buffer_wbl2 sc1\ns_waitcnt vmcnt(0)\n{text} sc1")
            k(done + ":")
        k("s_mov_b64 exec, -1")

    def poll_load(tag):
        return [(f"buffer_load_dword {v(PV)}, {v(PA)}, {s(rWS,4)}, s{t3} offen sc1", tag)]

    def poll_base(base):
        return f"s_lshl_b32 s3, s{sC}, 5\ns_lshr_b32 s{t3}, s{sG}, 3\ns_add_u32 s3, s3, s{t3}\ns_lshl_b32 s3, s3, 8\ns_add_u32 s{t3}, s3, {base}"

    def poll_ops(first, base, tag):
        top = 15 if base == FLC else 13
        return [(f"{first}\nv_bfe_u32 {v(PA)}, {v(L)}, 1, 2\nv_add_u32 {v(PA)}, s3, {v(PA)}\nv_min_u32 {v(PA)}, {top}, {v(PA)}\nv_and_b32 {v(PV)}, 1, {v(L)}\n"
                 f"v_lshl_add_u32 {v(PA)}, {v(PA)}, 2, {v(PV)}\nv_lshlrev_b32 {v(PA)}, 7, {v(PA)}\n" + poll_base(base), None)] + poll_load(tag)

    poll1_ops = lambda: poll_ops(f"s_mov_b32 s3, s{sGE}", FLB if one else FLA, "poll1")
    poll2_ops = lambda: poll_ops(f"s_mov_b32 s3, s{sGL}", FLB, "poll2")
    poll3_ops = lambda: poll_ops(f"s_lshl_b32 s3, s{sW}, 2", FLC, "poll3")
    poll_check = lambda tag: spin_check(tag, tag, f"v_cmp_ne_u32 vcc, s{sTAG}, {v(PV)}", poll_load(tag))

    def carry_write():
        Y0, Y1 = TM + 12, TM + 13
        mis = (f"v_xor_b32 {v(Y0)}, {v(E0+1)}, {v(EX0)}\nv_xor_b32 {v(Y1)}, {v(E0+3)}, {v(EX0)}\nv_or_b32 {v(Y0)}, {v(Y0)}, {v(Y1)}\n"
               f"v_xor_b32 {v(Y1)}, {v(E0+5)}, {v(EX1)}\nv_or_b32 {v(Y0)}, {v(Y0)}, {v(Y1)}\nv_xor_b32 {v(Y1)}, {v(E0+7)}, {v(EX1)}\nv_or_b32 {v(Y0)}, {v(Y0)}, {v(Y1)}\n"
               f"v_cmp_ne_u32 vcc, 0, {v(Y0)}")
        spin_check("e", "eg", mis, e_loads())
        k(f"v_fmac_f32 {v(E0)}, {v(L2R)}, {v(E0+4)}\nv_fmac_f32 {v(E0+2)}, {v(L2R)}, {v(E0+6)}")
        k(f"v_fma_f32 {v(E0)}, -{v(L2I)}, {v(E0+6)}, {v(E0)}\nv_fmac_f32 {v(E0+2)}, {v(L2I)}, {v(E0+4)}")
        k(f"v_mul_f32 {v(Y0)}, {v(SCRR)}, {v(E0)}\nv_mul_f32 {v(Y1)}, {v(SCRR)}, {v(E0+2)}")
        k(f"v_fma_f32 {v(Y0)}, -{v(SCI)}, {v(E0+2)}, {v(Y0)}\nv_fmac_f32 {v(Y1)}, {v(SCI)}, {v(E0)}")
        k(f"ds_write_b64 {v(XW)}, {v(Y0,2)} offset:{SCR_CX - SCR_EX}", "cxw")
        k.wait(lg="all")
        k("s_barrier")
        for q in range(8):
            k(f"ds_read_b64 {v(TM+2*q,2)}, {v(XQ)} offset:{SCR_CX - SCR_EX + q*256}", "cxr")

    def fix_ops():
        o = []
        e = lambda text, tag=None: o.extend(ops_of(text, tag))
        o.append(W(lg="cxr"))
        for step in (8, 4, 2):
            for q in range(0, step, 2):
                e(f"v_pk_add_f32 {v(TM+q,2)}, {v(TM+q,2)}, {v(TM+q+step,2)}")
        NS = TM + 16
        e(f"v_fmac_f32 {v(PR)}, {v(PWR)}, {v(TM)}\nv_fmac_f32 {v(PI)}, {v(PWR)}, {v(TM+1)}")
        e(f"v_fma_f32 {v(NS)}, -{v(PWI)}, {v(TM+1)}, {v(PR)}\nv_fma_f32 {v(NS+1)}, -{v(PWI)}, {v(TM)}, -{v(PI)}")
        for qq in range(4):
            comp, half = qq >> 1, qq & 1
            for r in range(8 * half, 8 * half + 8, 2):
                d = SS + 16 * comp + r
                e(f"v_pk_fma_f32 {v(d,2)}, {v(T+r,2)}, {v(NS,2)}, {v(d,2)} op_sel:[0,{comp},0] op_sel_hi:[1,{comp},1]")
                if comp == 0:
                    e(f"v_pk_fma_f32 {v(d,2)}, {v(T+16+r,2)}, {v(NS,2)}, {v(d,2)} op_sel:[0,1,0] op_sel_hi:[1,1,1]")
                else:
                    e(f"v_pk_fma_f32 {v(d,2)}, {v(T+16+r,2)}, {v(NS,2)}, {v(d,2)} op_sel:[0,0,0] op_sel_hi:[1,0,1] neg_lo:[0,1,0] neg_hi:[0,1,0]")
            for q in range(4):
                e(f"v_cvt_pk_bf16_f32 {v(TM+4*qq+q)}, {v(SS+8*qq+2*q)}, {v(SS+8*qq+2*q+1)}")
            e(f"ds_write_b128 {v(HA)}, {v(TM+4*qq,4)} offset:{comp*2048 + half*16}", f"htw{comp}")
            if half:
                for f in (2 * comp, 2 * comp + 1):
                    for rd in range(2):
                        e(f"ds_read_b64_tr_b16 {v(SS+16*comp+4*(f&1)+2*rd,2)}, {v(HB)} offset:{f*1024 + rd*256}", f"htr{f}")
        for f in range(4):
            o.append(W(lg=f"htr{f}"))
            pre = f"s_add_u32 s{sKW}, s{sKW}, 8192\n" if f == 2 else ""
            o.append((pre + f"buffer_store_dwordx4 {v(SS+16*(f>>1)+4*(f&1),4)}, {v(L16)}, {s(rWS,4)}, s{sKW} offen offset:{(f&1)*1024} {st}", "hst"))
        return o

    def a_ops(b):
        if b < 7:
            src, add = (sAE, b) if b < 3 else (sAX, 0) if b == 3 else (sAL, b - 4)
            head = f"s_mov_b32 s3, s{src}" if b == 3 else turn(add, 13) + f"\ns_add_u32 s3, s{src}, s3"
            if one:
                head = f"s_add_u32 s3, s{sAE}, {b*4096}"
        elif brot:
            head = f"s_xor_b32 s3, s{sN}, {b-7}\ns_and_b32 s3, s3, 3\ns_lshl_b32 s{t1}, s{sW}, 2\ns_add_u32 s3, s3, s{t1}\ns_lshl_b32 s3, s3, 12\ns_add_u32 s3, s3, {112*1024}"
        else:
            head = f"s_lshl_b32 s3, s{sW}, 14\ns_add_u32 s3, s3, {(112 + 4*(b-7))*1024}"
        ops = [(head + f"\ns_add_u32 s{t1}, s{sP0}, s3\ns_add_u32 s{t2}, s{sP1}, s3", None)]
        for j in range(4):
            for m in range(2):
                pre = f"s_xor_b32 s3, s{sROT2}, {j}\ns_lshl_b32 s3, s3, 10\nv_add_u32 {v(AL)}, s3, {v(L16)}\n" if krot and m == 0 else ""
                ops.append((pre + f"buffer_load_dwordx4 {a(32*(b%NA)+8*j+4*m,4)}, {v(AL)}, {s(rWS,4)}, s{t2 if m else t1} offen offset:{0 if krot else j*1024} sc1 {NT('a')}", f"ab{b}_{j}"))
        return ops

    def finish(full):
        carry_write()
        if early_a != 0:
            poll_check("poll1")
        stamp("poll" if full else "Lpoll")
        fx = fix_ops()
        if full:
            fx[f12_at:f12_at] = [lambda: probe("f12a"), lambda: flag_publish(FLB, "act3"), lambda: probe("f12b")]
        na = dist if early_a is None else early_a
        blocks = [a_ops(0), a_ops(1) + (poll2_ops() if p2_mid else [])] + ([a_ops(2)] if dist == 3 else [])
        r7 = ring_ops(7) if nres == 5 else []
        if nres == 5:
            fx = fx[:-8] + stage_reads(4) + fx[-8:]
        if one and order in ("c", "d"):
            fx = fix_ops()
            if full:
                flag_publish(FLB, "act3")
                probe("f12b")
            weave(ring_ops(7) + ring_ops(8), fx[:-8])
            probe("fxend")
            run(poll1_ops())
            if order == "d":
                run(fx[-8:])
            poll_check("poll1")
            probe("p1ok")
            if order == "c":
                weave(a_ops(0), fx[-8:])
            run(sum((a_ops(b) for b in range(order == "c", a_first)), []))
            return
        if one and order == "b":
            weave(r7, fx[:-8])
            probe("fxend")
            run(poll1_ops())
            run(fx[-8:-4])
            poll_check("poll1")
            probe("p1ok")
            weave(a_ops(0), fx[-4:])
            run(sum((a_ops(b) for b in range(1, a_first)), []))
            return
        if one:
            blocks = [a_ops(b) for b in range(a_first)]
            weave(r7, fx[:-8])
            probe("fxend")
            if poll_pos == "pre":
                run(poll1_ops())
            run(fx[-8:])
            if poll_pos == "post":
                run(poll1_ops())
        elif na or r7:
            weave(r7 + sum(blocks[:na], []), fx[:-8])
            run(fx[-8:])
        else:
            run(fx)
        if nres == 5:
            k.wait(lg="sr4")
            run(ring_ops(8))
        if not na:
            probe("p1in")
            poll_check("poll1")
            probe("p1ok")
        run(sum(blocks[na:], []))

    def bar(**kw):
        def f():
            k.wait(**kw)
            k("s_barrier")
        return f

    k(f"s_cmp_eq_u32 s{sN}, {lite}\ns_cbranch_scc1 L_light")
    snap0 = k.snapshot()
    run(stage_ops(0, True)); par_loads()
    weave(stage_ops(1, True), early_setup() + row_stats())
    if pre3:
        weave((mid_ops() if mid_at == -2 else []) + stage_ops(2, True) + (mid_ops() if mid_at == -1 else []), late_setup(True)[:n_before])
    gemm1(True, "")
    stamp("gemm")
    gran_check(True)
    stamp("gran")
    m = [mish_ops(t) for t in range(4)]
    h = len(m[0]) // 2
    if "stores" in ablate:
        m = [[op if op[1] is None else (op[0].replace("offen", "offen").replace(v(L16), v(TM + 19)), op[1]) for op in mt] for mt in m]
        k(f"v_mov_b32 {v(TM+19)}, 0x7fffffff")
    for t in range(4):
        m[t].insert(0, (lambda tt: (lambda: probe(f"m{tt}")))(t))
    if "f1" in ablate:
        k(f"v_mov_b32 {v(MF)}, 0")
    r2 = ring_ops(2) if look == 2 else []
    if "scan" in ablate:
        drop = lambda ops: [op for op in ops if callable(op) or not op[0].startswith(("v_fmac", "v_pk_mul", "v_cmp", "v_cnd", "v_fma"))]
        so, co = scan_ops, chain_ops
        scan_ops, chain_ops = (lambda: drop(so())), (lambda: drop(co()))
    if "mish" in ablate:
        m = [[op for op in mt if callable(op) or op[1] is not None] for mt in m]
        h = 2
    if order == "m" and n_pre is not None:
        k("s_barrier")
        rings = [ring_ops(b) for b in range(2, 6)]
        pre = stage_reads(0) + stage_reads(1)
        weave(sum(rings[:n_pre], []) or [("s_nop 0", "none")], pre[:17] + m[0] + pre[17:] + m[1] + m[2] + m[3])
        stamp("mish")
        rest = sum(rings[n_pre:], [])
        cutp = len(rest) // 3
        while cutp and rest[cutp - 1][1] is None:
            cutp += 1
        run(rsv_reads())
        if flag_first:
            run(scan_ops())
            flag_publish(FLB, "act3")
            cutp = 0
        else:
            weave(rest[:cutp], scan_ops())
            probe("scan")
            if f12_late is None:
                flag_publish(FLB, "act3")
            probe("f12")
        bar(lg="all")()
        ch = chain_ops()
        if f12_late is not None:
            ch.insert(min(f12_late, len(ch)), lambda: flag_publish(FLB, "act3"))
        weave(rest[cutp:], ch + [lambda: stamp("epub")] + coef_ops() + stage_reads(2) + [W(lg="sr2")])
        weave(ring_ops(6), stage_reads(3) + [W(lg="sr3")])
        weave(ring_ops(7), stage_reads(4) + [W(lg="sr4")])
    elif order == "m":
        k("s_barrier")
        weave(ring_ops(2), stage_reads(0) + m[0])
        weave(ring_ops(3) + [W(lg="sr0")] + ring_ops(4), stage_reads(1) + m[1] + stage_reads(2))
        weave([W(lg="sr2")] + ring_ops(5), m[2])
        weave(ring_ops(6) if m_r6 else [("s_nop 0", "none")], m[3])
        stamp("mish")
        run(rsv_reads() + stage_reads(3) + scan_ops())
        flag_publish(FLB, "act3")
        bar(lg="all")()
        weave(([] if m_r6 else ring_ops(6)) + ring_ops(7), chain_ops())
        stamp("epub")
        run(stage_reads(4) + coef_ops() + [W(lg="sr4")])
    else:
      run(scan_ops())
      run(m[0][:h])
      bar(lg="all")()
      weave(r2 + ring_ops(3), chain_ops() + stage_reads(0) + m[0][h:] + [W(lg="sr0")])
      stamp("epub")
    if order == "m":
        pass
    elif order in ("c", "d"):
        hh = len(m[1]) // 2
        weave(ring_ops(4), stage_reads(1) + m[1][:hh] + [W(lg="sr1")])
        weave(ring_ops(5), stage_reads(2) + m[1][hh:] + [W(lg="sr2")])
        weave(ring_ops(6), m[2] + stage_reads(3))
        run(e_loads())
        run(m[3] + stage_reads(4) + coef_ops())
        stamp("mish")
        finish(True)
    else:
      weave(ring_ops(4), stage_reads(1) + m[1] + [W(lg="sr1")])
      weave(ring_ops(5), stage_reads(2) + m[2] + ([] if one else [lambda: flag_publish(FLA, "act1")]) + [W(lg="sr2")])
      run(e_loads())
      weave(ring_ops(6), (stage_reads(3) if nres == 5 else []) + m[3] + coef_ops())
      if not one:
          run(poll1_ops())
      stamp("mish")
      finish(True)
    k.wait(lg="all")
    k("s_branch L_join")
    snap_join = k.snapshot()

    k("L_light:")
    k.restore(snap0)
    k(f"s_lshl_b32 s{sQ}, s{sC}, 1\ns_lshr_b32 s3, s{sG}, 3\ns_add_u32 s{sQ}, s{sQ}, s3")
    k(f"s_cmp_lt_u32 s{sQ}, 16\ns_cselect_b32 s{rE}, s{pBR}, s{pBI}\ns_cselect_b32 s{rE+1}, s{pBR+1}, s{pBI+1}\ns_mov_b32 s{rE+2}, 0x80000\ns_mov_b32 s{rE+3}, 0x20000")
    k(f"s_and_b32 s{t0}, s{sQ}, 15\ns_lshl_b32 s{t0}, s{t0}, 15\ns_add_u32 s{t0}, s{t0}, s{sW13}")
    if "z" in nt:
        k(f"v_add_u32 {v(TM+18)}, s{t0}, {v(L16)}\ns_lshl_b32 s3, s{sQ}, 15\nv_add_u32 {v(TM+18)}, s3, {v(TM+18)}\nv_and_b32 {v(TM+18)}, 0x1fcfff, {v(TM+18)}")
        for i in range(8):
            k(f"global_load_dwordx4 a[0:3], {v(TM+18)}, s[34:35] offset:{(i&3)*1024} nt", "dummy")
            if i == 3:
                k(f"v_xor_b32 {v(TM+18)}, 0x1000, {v(TM+18)}")
    for i in range(8):
        if i == 4:
            k(f"s_add_u32 s{t0}, s{t0}, 4096")
        k(f"buffer_load_dwordx4 {v(SS+4*i,4)}, {v(L16)}, {s(rE,4)}, s{t0} offen offset:{(i&3)*1024} {NT('l') or NT('m') or (NT('h') if i < 2 else '') or (NT('k') if i < 4 else '')}", "lb")
    k(f"s_min_u32 s{t0}, s{sQ}, 27\ns_lshl_b32 s{t0}, s{t0}, 7\ns_mul_i32 s3, s{sW}, {128*3584}\ns_add_u32 s{t0}, s{t0}, s3")
    k(f"v_lshrrev_b32 {v(TM+16)}, 3, {v(L)}\nv_mul_u32_u24 {v(TM+16)}, 3584, {v(TM+16)}\nv_and_b32 {v(TM+17)}, 7, {v(L)}\nv_lshl_add_u32 {v(TM+16)}, {v(TM+17)}, 4, {v(TM+16)}")
    if "W" in nt:
        k(f"s_cmp_lt_u32 s{sW}, 2\ns_cbranch_scc1 L_lw_keep")
        for i in range(16):
            untracked(f"buffer_load_dwordx4 {v(ACC+4*i,4)}, {v(TM+16)}, {s(rW1,4)}, s{t0} offen nt\ns_add_u32 s{t0}, s{t0}, {8*3584}")
        k("s_branch L_lw_done\nL_lw_keep:")
    for i in range(16):
        k(f"buffer_load_dwordx4 {v(ACC+4*i,4)}, {v(TM+16)}, {s(rW1,4)}, s{t0} offen {NT('l') or NT('n') or (NT('q') if i < 6 else '')}", f"lw{i}")
        k(f"s_add_u32 s{t0}, s{t0}, {8*3584}")
    if "W" in nt:
        k("L_lw_done:")
    par_loads()
    run(early_setup()); run(row_stats())
    CA, EL = TM, TM + 8

    def fold8(R):
        for j in range(0, 8, 2):
            k(f"v_permlane32_swap_b32 {v(R+j)}, {v(R+j+1)}")
        for j in range(0, 8, 2):
            k(f"v_add_f32 {v(R+j)}, {v(R+j)}, {v(R+j+1)}")
        k(f"v_permlane16_swap_b32 {v(R)}, {v(R+2)}\nv_permlane16_swap_b32 {v(R+4)}, {v(R+6)}")
        k(f"v_add_f32 {v(R)}, {v(R)}, {v(R+2)}\nv_add_f32 {v(R+4)}, {v(R+4)}, {v(R+6)}")

    def split_publish(R, addr, soff):
        k(f"v_cvt_pk_bf16_f32 {v(R+1)}, {v(R)}, {v(R)}\nv_and_b32 {v(R+1)}, 0xffff0000, {v(R+1)}\nv_sub_f32 {v(R+1)}, {v(R)}, {v(R+1)}")
        k(f"v_cvt_pk_bf16_f32 {v(R)}, {v(R)}, {v(R+1)}\nv_mov_b32 {v(R+1)}, s{sTAG}")
        k(f"buffer_store_dwordx2 {v(R,2)}, {v(addr)}, {s(rWS,4)}, s{soff} offen sc1", "cspub")

    k(f"s_mov_b32 s{t0}, 0x3f803f80")
    for j in range(8):
        k(f"v_mov_b32 {v(CA+j)}, 0")
    k(f"v_bfe_u32 {v(EL)}, {v(L)}, 4, 1\nv_lshl_add_u32 {v(EL)}, {v(EL)}, 1, {v(HF)}")
    k.wait(vm="lb")
    for j in range(4):
        for i in range(8):
            k(f"v_dot2c_f32_bf16 {v(CA+i)}, s{t0}, {v(SS+4*i+j)}")
    fold8(CA)
    for r in (8, 4, 2, 1):
        k(f"v_add_f32_dpp {v(CA)}, {v(CA)}, {v(CA)} row_ror:{r} row_mask:0xf bank_mask:0xf")
        k(f"v_add_f32_dpp {v(CA+4)}, {v(CA+4)}, {v(CA+4)} row_ror:{r} row_mask:0xf bank_mask:0xf")
    k(f"v_and_b32 {v(EL+1)}, 1, {v(L)}\nv_cmp_eq_u32 vcc, 1, {v(EL+1)}\nv_lshl_add_u32 {v(EL+1)}, {v(EL+1)}, 2, {v(EL)}\nv_lshlrev_b32 {v(EL+1)}, 3, {v(EL+1)}")
    k(f"v_cndmask_b32 {v(CA)}, {v(CA)}, {v(CA+4)}, vcc")
    k(f"s_lshl_b32 s{t2}, s{sQ}, 8\ns_lshl_b32 s3, s{sW}, 6\ns_add_u32 s{t2}, s{t2}, s3\ns_add_u32 s{t2}, s{t2}, {CS + 1792*8}")
    split_publish(CA, EL + 1, t2)
    stamp("Lbsum")
    if mid_at is not None and mid_at < 0:
        run(mid_ops())
    run(stage_ops(0, False))
    k(f"s_mov_b32 s{t2}, 0x00003f80\ns_mov_b32 s{t3}, 0x3f800000")
    for j in range(8):
        k(f"v_mov_b32 {v(CA+j)}, 0")
    for i in range(16):
        k.wait(vm=f"lw{i}")
        for j in range(4):
            k(f"v_dot2c_f32_bf16 {v(CA+2*j)}, s{t2}, {v(ACC+4*i+j)}\nv_dot2c_f32_bf16 {v(CA+2*j+1)}, s{t3}, {v(ACC+4*i+j)}")
    for j in range(8):
        k(f"v_add_f32_dpp {v(CA+j)}, {v(CA+j)}, {v(CA+j)} row_ror:8 row_mask:0xf bank_mask:0xf")
    fold8(CA)
    k(f"v_and_b32 {v(EL+1)}, 7, {v(L)}\nv_lshl_add_u32 {v(EL+1)}, {v(EL+1)}, 3, {v(EL)}\nv_lshlrev_b32 {v(EL+1)}, 2, {v(EL+1)}")
    k(f"s_lshl_b32 s3, s{sW}, 8\ns_add_u32 s3, s3, 16384\nv_add_u32 {v(EL+1)}, s3, {v(EL+1)}")
    k(f"ds_write2_b32 {v(EL+1)}, {v(CA)}, {v(CA+4)} offset0:0 offset1:4", "cw")
    k(f"v_lshlrev_b32 {v(EL+1)}, 2, {v(L)}\nv_add_u32 {v(EL+1)}, 16384, {v(EL+1)}")
    k.wait(lg="all")
    k("s_barrier")
    for j in range(4):
        k(f"ds_read_b32 {v(CA+j)}, {v(EL+1)} offset:{j*256}", "cr")
    k(f"s_min_u32 s{t2}, s{sQ}, 27\ns_lshl_b32 s{t2}, s{t2}, 9\ns_add_u32 s{t2}, s{t2}, {CS}\nv_lshlrev_b32 {v(EL+2)}, 3, {v(L)}")
    k.wait(lg="all")
    k(f"v_add_f32 {v(CA)}, {v(CA)}, {v(CA+1)}\nv_add_f32 {v(CA+2)}, {v(CA+2)}, {v(CA+3)}\nv_add_f32 {v(CA)}, {v(CA)}, {v(CA+2)}")
    split_publish(CA, EL + 2, t2)
    stamp("Lwsum")
    run(stage_ops(1, False))
    if pre3:
        weave(stage_ops(2, False), late_setup(False)[:n_before])
    gemm1(False, "L")
    stamp("Lgemm")
    gran_check(False)
    run(scan_ops())
    bar(lg="all")()
    weave(r2 + ring_ops(3), chain_ops() + stage_reads(0) + stage_reads(1) + [W(lg="all")])
    stamp("Lepub")
    weave(ring_ops(4), stage_reads(2) + [W(lg="all")])
    weave(ring_ops(5) + ring_ops(6), coef_ops() + (stage_reads(3) if nres == 5 else []) + (stage_reads(4) if order in ("c", "d") else []))
    if order == "m":
        run(stage_reads(4) + [W(lg="all")] + ring_ops(7))
    else:
        run(e_loads())
        if not one:
            run(poll1_ops())
        finish(False)
    k.wait(lg="all")
    snap_light = k.snapshot()

    k("L_join:")
    if order == "m":
        k.merge(snap_join, snap_light, ("rb5", "rb6", "rb7"))
        probe("join")
        r8 = ring_ops(8)
        at = {"pre": 0, "mid": 5, "post": len(r8)}[ep_pos]
        run(r8[:at] + poll1_ops() + e_loads() + r8[at:])
        blocks = [a_ops(b) for b in range(a_first)]
        if a_lead:
            probe("r8")
            poll_check("poll1")
            probe("p1")
            run(blocks.pop(0))
            probe("a0")
            carry_write()
        else:
            carry_write()
            poll_check("poll1")
        stamp("poll")
        fx = fix_ops()
        weave(sum(blocks, []), fx[:-8])
        run(fx[-8:])
    else:
      k.merge(snap_join, snap_light, tuple(f"rb{b}" for b in range(nres, nres + (3 if order == "b" else 4))) + ("hst",) + (("poll2",) if p2_mid else ()) + tuple(f"ab{b}_{j}" for b in range(a_first if one else dist) for j in range(4)))
    stamp("stored")

    def b_reads(n):
        b, j = divmod(n, 4)
        hi = RING[b] >= HIGH
        off = RING[b] - (HIGH if hi else 0)
        if b < nres:
            return []
        if b < 7:
            return [(f"ds_read_b64_tr_b16 {a(FR+8*j+4*c+2*rd,2)}, {v(W2R+2*hi+c)} offset:{off + j*2048 + rd*1024}", f"f{n}")
                    for c in range(2) for rd in range(2)]
        return [(f"ds_read_b128 {a(FR+8*j+4*c,4)}, {v(CR+4*hi+j)} offset:{off + c*4096}", f"f{n}") for c in range(2)]

    if p2_at == 1 and not p2_mid and not one:
        run(poll2_ops())

    def addend_ops():
        o = [(f"s_lshr_b32 s3, s{sG}, 3\ns_lshl_b32 s3, s3, 1\ns_lshr_b32 s{sCNT}, s{sW}, 1\ns_add_u32 s3, s3, s{sCNT}\ns_lshl_b32 s3, s3, 7\ns_add_u32 s3, s3, {SCR}\n"
              f"v_lshlrev_b32 {v(TM+1)}, 6, {v(HF)}\nv_add_u32 {v(TM+1)}, s3, {v(TM+1)}", None)]
        for q in range(4):
            o += ops_of(f"ds_read_b128 {v(T+4*q,4)}, {v(TM+1)} offset:{q*16}\nds_read_b128 {v(T+16+4*q,4)}, {v(TM+1)} offset:{512+q*16}", "ast")
        P = TM + 2
        o.append((f"s_lshr_b32 s3, s{sW12}, 1\ns_add_u32 s3, s3, {XSL}\nv_bfe_u32 {v(P)}, {v(L)}, 2, 2\nv_lshl_add_u32 {v(P)}, {v(HF)}, 4, {v(P)}\nv_lshlrev_b32 {v(P)}, 6, {v(P)}\n"
                  f"v_bfe_u32 {v(P+1)}, {v(L)}, 4, 1\nv_lshl_add_u32 {v(P)}, {v(P+1)}, 5, {v(P)}\nv_and_b32 {v(P+1)}, 3, {v(L)}\nv_lshl_add_u32 {v(P)}, {v(P+1)}, 3, {v(P)}\nv_add_u32 {v(P)}, s3, {v(P)}", None))
        o.append(W(vm="xs"))
        for q in range(4):
            o += ops_of(f"ds_read_b64_tr_b16 {v(XS+16+2*q,2)}, {v(P)} offset:{q*256}", "ast")
        o.append(W(lg="ast"))
        for r in range(16):
            unpack = f"v_and_b32 {v(XS+r)}, 0xffff0000, {v(XS+16+r//2)}" if r & 1 else f"v_lshlrev_b32 {v(XS+r)}, 16, {v(XS+16+r//2)}"
            o += ops_of(f"{unpack}\nv_sub_f32 {v(T+16+r)}, {v(XS+r)}, {v(T+16+r)}\n"
                        f"v_mul_f32 {v(T+16+r)}, {v(T+16+r)}, {v(T+r)}\nv_fmac_f32 {v(XS+r)}, {v(T+16+r)}, {v(DSK)}")
        return o

    a_next = a_first if one else dist
    for b in range(11):
        nxt = []
        if b == f3_at and not f3_step:
            flag_publish(FLC, "hst")
            stamp("flag")
        if b == p2_at and not one:
            poll_check("poll2")
            stamp("poll2")
        if b == p3_at:
            poll_check("poll3")
            stamp("poll3")
        while a_next <= min(b + dist, 10) and b >= (0 if a_next < (7 if one else 3) else p2_at if a_next < 7 else p3_at):
            nxt += a_ops(a_next); a_next += 1
        if b == p2_at - 2 and not p2_mid and not one:
            nxt += poll2_ops()
        if b == (p3_at - 2 if p3_issue is None else p3_issue):
            nxt = nxt + poll3_ops() if p3_issue is None else poll3_ops() + nxt
        if nres == 5:
            if b in (6, 7):
                nxt = ring_ops(b + 3) + nxt
            if order == "b" and b == 2:
                nxt += ring_ops(8)
        elif 7 <= b + dist < (9 if "rb" in ablate else 11):
            nxt += ring_ops(b + dist)
        if b == xs_at:
            nxt += xs_ops()
        if "xchg" in ablate and b == 6:
            nxt += [(f"s_lshl_b32 s3, s2, 2\ns_add_u32 s3, s3, s{sW}\ns_lshl_b32 s{sKW}, s3, 12\ns_add_u32 s{sKW}, s{sKW}, {32 << 20}", None)]
            nxt += [(f"buffer_store_dwordx4 {v(MI,4)}, {v(L16)}, {s(rWS,4)}, s{sKW} offen offset:{q*1024} sc1", "xst") for q in range(4)]
        if "xchg" in ablate and b == 9:
            nxt += [(f"s_xor_b32 s{sKW}, s{sKW}, {2 << 14}", None)]
            nxt += [(f"buffer_load_dwordx4 {v(MI+4*q,4)}, {v(L16)}, {s(rWS,4)}, s{sKW} offen offset:{q*1024} sc1", "xld") for q in range(4)]
        val = spread(addend_ops(), 32)[16 * (b - xs_at - 2):16 * (b - xs_at - 1)] if 2 <= b - xs_at <= 3 else [[]] * 16
        mm = spread_mem(nxt, 16) if nxt else [[]] * 16
        if b == 10 and tail_major:
            break
        for j in range(4):
            n = 4 * b + j
            rd = [[]] * 4
            if 4 * nres <= n + 1 < 44:
                if j == 3 and not ("rb" in ablate and b >= 8):
                    k.wait(vm=f"rb{b+1}")
                rd = spread(b_reads(n + 1), 4)
            if b == f3_at and f3_step and j == f3_step:
                flag_publish(FLC, "hst")
            k.wait(vm=f"ab{b}_{j}", lg=f"f{n}" if b >= nres else None)
            if j == 0 and b in (0, 8):
                stamp(f"blk{b}")
            for m in range(2):
                for c in range(2):
                    bop = (RESB[b] if b < nres else FR) + 8 * j + 4 * c
                    mfma(ACC + 32 * m + 16 * c, a(32 * (b % NA) + 8 * j + 4 * m, 4), a(bop, 4), "0" if n == 0 else None)
                    run(rd[2 * m + c]); run(mm[4 * j + 2 * m + c]); run(val[4 * j + 2 * m + c])
            probe(f"b{b}_{j}")
    GA = TM
    pre = ops_of(f"v_add_u32 {v(GA)}, s{sW13}, {v(L16)}")
    for u in (1, 2, 3):
        pre += ops_of(f"v_xor_b32 {v(GA+u)}, {u << 13}, {v(GA)}")
    pre.append((f"s_lshl_b32 s{t2}, s{sM}, 1\ns_lshr_b32 s3, s{sW}, 1\ns_add_u32 s{t2}, s{t2}, s3\ns_lshl_b32 s{t2}, s{t2}, 16\n"
                f"s_lshl_b32 s3, s{sN}, 8\ns_add_u32 s{t2}, s{t2}, s3\ns_and_b32 s3, s{sW}, 1\ns_lshl_b32 s3, s3, 7\ns_add_u32 s{t2}, s{t2}, s3", None))
    pre += ops_of(f"v_lshlrev_b32 {v(TM+4)}, 15, {v(HF)}\nv_lshl_add_u32 {v(TM+4)}, {v(LR)}, 2, {v(TM+4)}")
    wr = lambda u: [(f"ds_write_b128 {v(GA)}, {v(ACC+16*u+4*q,4)} offset:{(u>>1)*SLOT + (u&1)*4096 + q*1024}", "fw") for q in range(4)]
    if tail_major:
        for j in (1, 2, 3):
            run(b_reads(40 + j))
        run(pre)
        for u in (3, 2, 1, 0):
            for j in range(4):
                k.wait(vm=f"ab10_{j}", lg=f"f{40+j}")
                mfma(ACC + 16 * u, a(32 * (10 % NA) + 8 * j + 4 * (u >> 1), 4), a(FR + 8 * j + 4 * (u & 1), 4))
                late = {(2, 3): wr(3)[:1], (1, 0): wr(3)[1:2], (1, 1): wr(3)[2:3], (1, 2): wr(3)[3:], (1, 3): wr(2)[:1], (0, 0): wr(2)[1:2], (0, 1): wr(2)[2:3], (0, 2): wr(2)[3:],
                        (0, 3): wr(1)}
                run(late.get((u, j), []))
        stamp("p2done")
    else:
        stamp("p2done")
        run(pre)
        for u in (1, 2, 3):
            run(wr(u))
    k(f"s_mov_b32 s{t0}, 0x3f317218")
    k.wait(lg="all")
    k("s_barrier")
    for q in range(4):
        for u in (1, 2, 3):
            k(f"ds_read_b128 {v(ACC+16*u+4*q,4)}, {v(GA+u)} offset:{(u>>1)*SLOT + (u&1)*4096 + q*1024}", f"fr{q}")
    for q in range(4):
        k.wait(lg=f"fr{q}")
        for i in (0, 2):
            r = 4 * q + i
            k(f"v_pk_add_f32 {v(ACC+r,2)}, {v(ACC+r,2)}, {v(ACC+16+r,2)}\nv_pk_add_f32 {v(ACC+32+r,2)}, {v(ACC+32+r,2)}, {v(ACC+48+r,2)}")
        for i in (0, 2):
            r = 4 * q + i
            k(f"v_pk_add_f32 {v(ACC+r,2)}, {v(ACC+r,2)}, {v(ACC+32+r,2)}\nv_pk_fma_f32 {v(ACC+r,2)}, {v(ACC+r,2)}, {s(t0,2)}, {v(XS+r,2)} op_sel_hi:[1,0,1]")
        for i in range(4):
            r = 4 * q + i
            k(f"buffer_store_dword {v(ACC+r)}, {v(TM+4)}, {s(rOUT,4)}, s{t2} offen offset:{(r&1)*2048} {out_flags}", "out")
            if r & 1:
                k(f"s_add_u32 s{t2}, s{t2}, 4096")
    k(f"s_cmp_lg_u32 s{sC}, 15\ns_cbranch_scc1 L_fin\ns_or_b32 s3, s{sG}, s{sW}\ns_cmp_lg_u32 s3, 0\ns_cbranch_scc1 L_fin")
    k(f"v_mov_b32 {v(TM+5)}, s{sTAG}\ns_mov_b64 exec, 1")
    k(f"buffer_store_dword {v(TM+5)}, off, {s(rWS,4)}, 0 sc1\ns_mov_b64 exec, -1")
    k("L_fin:")
    if diag:
        k("s_waitcnt vmcnt(0)")
        stamp("end")
        for i in range(len(seen)):
            k(f"v_writelane_b32 {v(DG)}, s{FINE[i]}, {16+i}")
        k(f"s_lshl_b32 s3, s2, 2\ns_add_u32 s3, s3, s{sW}\ns_lshl_b32 s3, s3, 8\ns_add_u32 s3, s3, {DIAG}\nv_lshlrev_b32 {v(TM)}, 2, {v(L)}")
        k(f"buffer_store_dword {v(DG)}, {v(TM)}, {s(rWS,4)}, s3 offen sc1")
        if amplify == "skew":
            k(f"s_cmp_lg_u32 s2, {amp_wg}\ns_cbranch_scc1 L_end\nv_readlane_b32 s14, {v(DG)}, {len(stamps)-1}\ns_nop 3")
            k("L_w:\ns_memrealtime s[34:35]\ns_waitcnt lgkmcnt(0)\ns_sub_u32 s3, s34, s14\ns_cmp_lt_u32 s3, 500\ns_cbranch_scc1 L_w")
            k(f"v_lshlrev_b32 {v(TM)}, 10, {v(L)}\ns_mov_b32 s3, {DIAG}")
            for q in range(4):
                k(f"buffer_load_dword {v(TM+4+q)}, {v(TM)}, {s(rWS,4)}, s3 offen sc1\ns_add_u32 s3, s3, 65536")
            k(f"s_waitcnt vmcnt(0)\nv_min_u32 {v(TM+1)}, {v(TM+4)}, {v(TM+5)}\nv_min3_u32 {v(TM+1)}, {v(TM+1)}, {v(TM+6)}, {v(TM+7)}")
            k(f"v_max_u32 {v(TM+2)}, {v(TM+4)}, {v(TM+5)}\nv_max3_u32 {v(TM+2)}, {v(TM+2)}, {v(TM+6)}, {v(TM+7)}")
            for r in (8, 4, 2, 1):
                k(f"v_min_u32_dpp {v(TM+1)}, {v(TM+1)}, {v(TM+1)} row_ror:{r} row_mask:0xf bank_mask:0xf\nv_max_u32_dpp {v(TM+2)}, {v(TM+2)}, {v(TM+2)} row_ror:{r} row_mask:0xf bank_mask:0xf")
            k(f"s_nop 1\nv_readlane_b32 s12, {v(TM+1)}, 0\nv_readlane_b32 s13, {v(TM+2)}, 0\ns_nop 3\ns_sub_u32 s13, s13, s12\ns_min_u32 s13, s13, 1000\ns_lshl_b32 s13, s13, 2\ns_add_u32 s13, s13, 600")
            k("L_amp:\ns_memrealtime s[34:35]\ns_waitcnt lgkmcnt(0)\ns_sub_u32 s3, s34, s14\ns_cmp_lt_u32 s3, s13\ns_cbranch_scc1 L_amp")
        elif amplify:
            k(f"s_cmp_lg_u32 s2, {amp_wg}\ns_cbranch_scc1 L_end")
            k(f"v_readlane_b32 s12, {v(DG)}, 0\nv_readlane_b32 s13, {v(DG)}, {stamps.index(amplify)}\nv_readlane_b32 s14, {v(DG)}, {len(stamps)-1}\ns_nop 3")
            k("s_sub_u32 s13, s13, s12\ns_min_u32 s13, s13, 5000\ns_lshl_b32 s13, s13, 2")
            k("L_amp:\ns_memrealtime s[34:35]\ns_waitcnt lgkmcnt(0)\ns_sub_u32 s3, s34, s14\ns_cmp_lt_u32 s3, s13\ns_cbranch_scc1 L_amp")
    k("L_end:")
    k("s_endpgm")
    for text in cold:
        k(text)

    body, nops = pad(k.lines)
    hdr = open("parallel_sum__ssm_conv_s5__dense_activation_mish__prompt.s.ref").read().split("; Override")[0]
    hdr += """;
; One launch, 256 workgroups of 4 waves (one per CU, all resident). Workgroup (c, g): rows 128c..128c+127,
; scan channels 32g..32g+31 and, unless g & 7 == 3, 128 FFN columns. Raw x is the matrix operand; the
; LayerNorm mean and the bias are one extra k-step, the row scale is applied to the accumulators. The scan is
; exact: 16-step segments in registers, segment and tile end states combined with powers of lambda. Mish
; activations and states go to d_ws as bf16 matrix operands; each workgroup then finishes a 64 x 64 output tile.
; Hand-offs use write-through stores and tags derived from a generation word in d_ws that each launch advances.
"""
    text = hdr + "; @launch grid=(256,1,1) block=(256,1,1) lds=163840\n"
    text += f'.amdgcn_target "amdgcn-amd-amdhsa--gfx950"\n.text\n.globl {KNAME}\n.p2align 8\n.type {KNAME},@function\n{KNAME}:\n'
    text += "\n".join(body) + "\n"
    text += f""".section .rodata,"a"
.p2align 6
.amdhsa_kernel {KNAME}
  .amdhsa_next_free_vgpr 512
  .amdhsa_next_free_sgpr 102
  .amdhsa_accum_offset 256
  .amdhsa_group_segment_fixed_size 0
  .amdhsa_kernarg_size 128
  .amdhsa_user_sgpr_count 2
  .amdhsa_user_sgpr_kernarg_segment_ptr 1
  .amdhsa_system_sgpr_workgroup_id_x 1
.end_amdhsa_kernel
"""
    return text, dict(nops=nops, vgprs=V.next, stamps=stamps, seen=seen, lines=len(body), regs=V.names)


if __name__ == "__main__":
    import json
    kw = json.loads(sys.argv[2]) if len(sys.argv) > 2 else {}
    text, info = gen(**kw)
    open(sys.argv[1], "w").write(text)
    print({q: info[q] for q in ("nops", "vgprs", "lines")})
```

```python
import sys
from emit import K, Alloc, rng, pad

KNAME = "parallel_sum__ssm_conv_s5__dense_activation_mish__prompt_kernel"
EPOCH, STATS, XID, CS, EG, FLA, FLB, FLC, AF = 0, 0x10000, 0x20000, 0x30000, 0x40000, 0x80000, 0xA0000, 0xC0000, 0x100000
DIAG = 200 << 20
MT = 176 * 1024
SLOT = 40960
HIGH = 2 * SLOT
SCR = 32768
SCR_EX, SCR_CX = SCR + 1024, SCR + 4096
SCR_HT = SLOT + 32768
RING = {b: SLOT * q for b, q in enumerate((0, 1, 2, 3, 0, 1, 2, 3, 0, 1, 2))}
RES = 160
LOG2E = 0x3fb8aa3b
SPIN = 1 << 16


def weight(op):
    if callable(op):
        return 0.2
    w = 0.0
    for l in op[0].split("\n"):
        mn = l.split()[0]
        w += 2 if mn in ("v_exp_f32", "v_rcp_f32", "v_sin_f32", "v_cos_f32") else 0.3 if mn.startswith("s_") else 1
    return w


def cost(op):
    if callable(op):
        return 3
    c = 0.0
    for l in op[0].split("\n"):
        mn = l.split()[0]
        c += (8.3 if mn in ("v_exp_f32", "v_rcp_f32", "v_sin_f32", "v_cos_f32") else 13 if mn.startswith("buffer_") else
              1 if mn.startswith("s_") else 4.3)
    return c


def spread(ops, n):
    total = sum(map(weight, ops)) or 1
    out = [[] for _ in range(n)]
    acc = 0.0
    for op in ops:
        out[min(n - 1, int(acc / total * n + 1e-9))].append(op)
        acc += weight(op)
    return out


def spread_mem(ops, n):
    groups, cur = [], []
    for op in ops:
        cur.append(op)
        if not callable(op) and op[1] is not None:
            groups.append(cur); cur = []
    if cur:
        groups[-1] += cur
    out = [[] for _ in range(n)]
    for i, g in enumerate(groups):
        out[i * n // len(groups)] += g
    return out


def gen(mode="global", mapping="x4g8", diag=False, rot="none", amplify=None, amp_wg=0, out_flags="sc1", ablate=(), l2pf=False,
        pf_at=4, gran_at=6, look=2, fine=(), p2_at=2, p3_at=5, dist=2, xs_at=4, tail_major=True, far_at=1, mt_pad=0, lite=3, trickle=True, budget=33, pre3=True, f3_at=1, p2_mid=False, backoff=0, early_a=0, trk_w2=None, code_pf=True, krot=False, brot=False, trk_c=None, nres=5, one=True, poll_pos="pre", a_first=2, af_mb=1, order="m", f12_at=0, m_r6=True, n_pre=2, flag_first=False, ep_pos="pre", a_lead=True, f12_late=40, f3_step=2, p3_issue=4, n_before=999, nt="sl", far2_at=None, cc_at=None, far_spread=False, mid_at=None, mid="xw", nt_st=1, stats_at=0, stats_nt="", cs_late=True, cs_nt="l", cs_pos=2):
    NT = lambda c: "nt " if c in nt else ""
    AF = af_mb << 20
    assert nres == 3 or dist == 2
    RESB = {0: 160, 1: 192, 2: 224} if nres == 3 else {0: 128, 1: 160, 2: 192, 3: 224, 4: 96}
    NA = 4 if nres == 3 else 3
    MT = 176 * 1024 + mt_pad
    npre = 2
    k = K()
    V = Alloc("v", 1, 256)
    v = lambda r, n=1: rng("v", r, n)
    a = lambda r, n=1: rng("a", r, n)
    s = lambda r, n=1: rng("s", r, n)
    st = "sc1" if mode == "global" else ""
    xid = mode != "global"

    sC, sG, sW, sROT, sM, sN, sTAG, sLOC = 4, 5, 6, 7, 8, 9, 10, 11
    t0, t1, t2, t3 = 12, 13, 14, 15
    pX, pLR, pLI, pBR, pBI, pCR, pCI, pDT, pDS, pW1, pB1, pW2, pOUT, pWS = 16, 18, 20, 22, 24, 26, 28, 30, 32, 36, 38, 40, 42, 46
    rX, rW1, rB, rE, rW2, rCR, rCI, rWS, rOUT = 48, 52, 56, 60, 64, 68, 72, 76, 80
    sXB, sBB, sWB, sA0, sP1, sKW, sCNT, sAF, sQ, sW12, sW13 = 84, 85, 86, 87, 88, 89, 90, 91, 92, 93, 94
    sHI, sXCC, sF, sP0, sROT2, sR3, sRB = 98, 100, 97, 96, 17, 16, 11
    sBE, sBX, sBL, sAE, sAX, sAL, sGE, sGL, sJ, sXD = 18, 19, 20, 21, 22, 23, 24, 25, 95, 101
    sD = 34

    L, LR, HF, L16, TAU = V("l"), V("lr"), V("hf"), V("l16"), V("tau")
    XD, CD, WD, W2D = V("xd", 4), V("cd", 4), V("wd", 4), V("w2d", 4)
    XR, WR, BQ, CR, W2R = V("xr", 4), V("wr", 4), V("bq", 4), V("cr", 8), V("w2r", 4)
    LAR, LAI, NLAI, L16R, L16I, NL16I, PWR, PWI, L2R, L2I, SCRR, SCI, CFR, NCFR, NCFI = [V(x) for x in
        "lar lai nlai l16r l16i nl16i pwr pwi l2r l2i scr sci cfr ncfr ncfi".split()]
    PR, PI, MF = V("pr"), V("pi"), V("mf")
    ACC, SS, T = V("acc", 64, 4), V("ss", 32, 4), V("t", 32, 4)
    XA, XB, WE = V("xa", 4, 4), V("xb", 4, 4), V("we", 12, 4)
    MI = V("mish", 16, 4)
    TM = V("tmp", 20, 4)
    C1, RS = V("c1", 1, 2), V("rs")
    DSK = V("dsk")
    BI = V("bias", 2)
    DG = V("diag")
    AL = V("al") if krot else L16
    FR = 128
    RSV, EK, XS = MI, TM, SS

    stamps = []
    def stamp(name):
        probe(name)
        if diag and (not fine or name == "end"):
            stamps.append(name)
            k(f"s_memrealtime s[{sD}:{sD+1}]\ns_memtime s[44:45]\ns_waitcnt lgkmcnt(0)")
            k.lg_done = len(k.lg)
            k(f"v_writelane_b32 {v(DG)}, s{sD}, {len(stamps)-1}\nv_writelane_b32 {v(DG)}, s44, {len(stamps)+31}")

    FINE = (26, 28, 30, 32, 36, 38, 40, 42)
    seen = []
    def probe(key):
        if key in fine and key not in seen:
            k(f"s_memtime s[{FINE[len(seen)]}:{FINE[len(seen)]+1}]")
            seen.append(key)

    def srd(d, p, nbytes):
        return f"s_mov_b32 s{d}, s{p}\ns_mov_b32 s{d+1}, s{p+1}\ns_mov_b32 s{d+2}, {nbytes:#x}\ns_mov_b32 s{d+3}, 0x20000"

    def mfma(d, x, y, c=None):
        k(f"v_mfma_f32_32x32x16_bf16 {v(d,16)}, {x}, {y}, {v(d,16) if c is None else c}")

    def untracked(text):
        n = len(k.vm)
        k(text)
        del k.vm[n:]

    def run(ops):
        for op in ops:
            if callable(op):
                op()
            else:
                k(*op)

    def ops_of(text, tag=None):
        return [(l, tag) for l in text.split("\n")]

    W = lambda **kw: (lambda: k.wait(**kw))

    note = lambda text: k("; ---- " + text)
    k("s_cmp_ge_u32 s2, 256\ns_cbranch_scc1 L_end")
    k("s_load_dwordx16 s[16:31], s[0:1], 0\ns_load_dwordx16 s[32:47], s[0:1], 64")
    if diag:
        k("s_memrealtime s[12:13]\ns_memtime s[10:11]")
    A_, B_, C_, D_ = TM, TM + 1, TM + 2, TM + 3
    k(f"v_and_b32 {v(L)}, 63, v0\nv_lshrrev_b32 {v(A_)}, 6, v0\nv_and_b32 {v(LR)}, 31, v0")
    k(f"v_readfirstlane_b32 s{sW}, {v(A_)}")
    k(f"v_lshrrev_b32 {v(HF)}, 5, {v(L)}\nv_lshlrev_b32 {v(L16)}, 4, {v(L)}")
    k(f"s_and_b32 s14, s2, 7\ns_lshr_b32 s15, s2, 3\ns_mov_b32 s{sXD}, s14\ns_mov_b32 s{sJ}, s15")
    if code_pf:
        k(f"s_getpc_b64 s[96:97]\nL_pc:\ns_sub_u32 s96, s96, L_pc-{KNAME}\ns_subb_u32 s97, s97, 0")
        k(f"s_lshl_b32 s3, s{sW}, 5\ns_add_u32 s3, s3, s15\ns_lshl_b32 s3, s3, 8\nv_lshl_add_u32 {v(TM+19)}, {v(L)}, 2, s3\nv_min_u32 {v(TM+19)}, L_end-{KNAME}, {v(TM+19)}")
        k(f"global_load_dword a255, {v(TM+19)}, s[96:97] {NT('c')}", "pf")
    if mapping == "rows":
        k(f"s_and_b32 s3, s15, 1\ns_lshl_b32 s{sC}, s14, 1\ns_or_b32 s{sC}, s{sC}, s3\ns_lshr_b32 s{sG}, s15, 1")
    elif mapping == "x8g4":
        k(f"s_lshr_b32 s3, s14, 2\ns_lshl_b32 s3, s3, 3\ns_and_b32 s{sC}, s15, 7\ns_or_b32 s{sC}, s{sC}, s3")
        k(f"s_and_b32 s3, s14, 3\ns_lshl_b32 s3, s3, 2\ns_lshr_b32 s{sG}, s15, 3\ns_or_b32 s{sG}, s{sG}, s3")
    elif mapping == "x4g8":
        k(f"s_lshr_b32 s3, s14, 1\ns_lshl_b32 s3, s3, 2\ns_and_b32 s{sC}, s15, 3\ns_or_b32 s{sC}, s{sC}, s3")
        k(f"s_and_b32 s3, s14, 1\ns_lshl_b32 s3, s3, 3\ns_lshr_b32 s{sG}, s15, 2\ns_or_b32 s{sG}, s{sG}, s3")
    k({"cg": f"s_add_u32 s{sROT}, s{sC}, s{sG}\ns_and_b32 s{sROT}, s{sROT}, 7", "none": f"s_mov_b32 s{sROT}, 0",
       "c": f"s_and_b32 s{sROT}, s{sC}, 7", "g": f"s_and_b32 s{sROT}, s{sG}, 7"}[rot])
    k(f"s_cmp_gt_u32 s{sG}, {lite}\ns_subb_u32 s{sF}, s{sG}, 0\ns_cmp_gt_u32 s{sG}, {lite + 8}\ns_subb_u32 s{sF}, s{sF}, 0")
    k(f"s_lshl_b32 s{sW12}, s{sW}, 12\ns_lshl_b32 s{sW13}, s{sW}, 13")
    k(f"v_lshrrev_b32 {v(A_)}, 3, {v(L)}")
    k(f"v_and_b32 {v(B_)}, 7, {v(L)}\nv_lshrrev_b32 {v(C_)}, 4, {v(L)}")
    k(f"v_xor_b32 {v(B_)}, {v(B_)}, {v(C_)}\nv_lshlrev_b32 {v(B_)}, 4, {v(B_)}")
    k(f"v_and_b32 {v(C_)}, 3, {v(A_)}\nv_lshl_add_u32 {v(C_)}, {v(HF)}, 4, {v(C_)}")
    k(f"v_lshl_add_u32 {v(XD)}, {v(C_)}, 10, {v(B_)}")
    k(f"v_xor_b32 {v(XD+1)}, 64, {v(XD)}\nv_add_u32 {v(XD+2)}, 6144, {v(XD)}")
    k(f"v_add_u32 {v(XD+3)}, 9216, {v(XD+1)}\nv_add_u32 {v(XD+1)}, 3072, {v(XD+1)}")
    k(f"v_lshl_add_u32 {v(CD)}, {v(A_)}, 10, {v(B_)}")
    k(f"v_xor_b32 {v(CD+1)}, 64, {v(CD)}\nv_add_u32 {v(CD+2)}, {2*7168}, {v(CD)}\nv_add_u32 {v(CD+3)}, {3*7168}, {v(CD+1)}\nv_add_u32 {v(CD+1)}, 7168, {v(CD+1)}")
    k(f"v_lshlrev_b32 {v(A_)}, 10, {v(HF)}\nv_lshl_add_u32 {v(A_)}, {v(LR)}, 4, {v(A_)}")
    k(f"s_lshl_b32 s{sXB}, s{sC}, 17\ns_lshl_b32 s3, s{sW}, 15\ns_add_u32 s{sXB}, s{sXB}, s3")
    k(f"s_and_b32 s3, s{sW}, 1\ns_lshl_b32 s3, s3, 14\ns_lshl_b32 s{sBB}, s{sG}, 15\ns_add_u32 s{sBB}, s{sBB}, s3")
    k(f"v_lshrrev_b32 {v(C_)}, 4, {v(L)}\nv_and_b32 {v(D_)}, 15, {v(L)}\nv_lshlrev_b32 {v(B_)}, 2, {v(C_)}")
    k(f"v_xor_b32 {v(D_)}, {v(D_)}, {v(B_)}\nv_lshlrev_b32 {v(D_)}, 4, {v(D_)}\nv_mul_u32_u24 {v(C_)}, 3584, {v(C_)}\nv_add_u32 {v(WD)}, {v(C_)}, {v(D_)}")
    for i in (1, 2, 3):
        k(f"v_add_u32 {v(WD+i)}, {i*13312}, {v(WD)}")
    k(f"s_mul_i32 s{sWB}, s{sW}, {16*3584}\ns_lshl_b32 s3, s{sF}, 8\ns_add_u32 s{sWB}, s{sWB}, s3")
    k(f"s_lshl_b32 s3, s{sC}, 4\ns_add_u32 s3, s3, s{sG}\ns_lshl_b32 s3, s3, 2\ns_add_u32 s3, s3, s{sW}\ns_lshl_b32 s{t2}, s3, 11")
    k(f"s_lshl_b32 s3, s{sG}, 5\nv_add_lshl_u32 {v(B_)}, {v(LR)}, s3, 1")
    k(f"s_lshl_b32 s3, s{sF}, 7\nv_add_lshl_u32 {v(C_)}, {v(L)}, s3, 1\nv_min_u32 {v(C_)}, 3454, {v(C_)}")
    k(f"s_and_b32 s{sN}, s{sG}, 7\ns_lshl_b32 s3, s{sN}, 1\ns_and_b32 s{t3}, s{sW}, 1\ns_or_b32 s3, s3, s{t3}\ns_lshl_b32 s3, s3, 5\nv_add_lshl_u32 {v(D_)}, {v(LR)}, s3, 1")
    k("s_waitcnt lgkmcnt(0)")
    if diag:
        k(f"v_writelane_b32 {v(DG)}, s12, 0\nv_writelane_b32 {v(DG)}, s10, 32"); stamps.append("start")
    k(srd(rX, pX, 2 << 20))
    SR = TM + 4
    PL = MI
    k(f"global_load_ushort {v(PL)}, {v(B_)}, {s(pLR,2)} {NT('p')}\nglobal_load_ushort {v(PL+1)}, {v(B_)}, {s(pLI,2)} {NT('p')}\nglobal_load_ushort {v(PL+2)}, {v(B_)}, {s(pDT,2)} {NT('p')}", "par")
    def srow_ops(late):
        A, fl = (TM + 15, stats_nt) if late else (A_, None)
        f0, f1 = (fl, fl) if late else (NT('s') or NT('u'), NT('s') or NT('v'))
        pre = f"v_lshlrev_b32 {v(A)}, 10, {v(HF)}\nv_lshl_add_u32 {v(A)}, {v(LR)}, 4, {v(A)}\n" if late else ""
        return [(pre + f"buffer_load_dwordx4 {v(SR,4)}, {v(A)}, {s(rX,4)}, s{sRB} offen {f0}", "srow"),
                (f"buffer_load_dwordx4 {v(SR+4,4)}, {v(A)}, {s(rX,4)}, s{sRB} offen offset:512 {f1}", "srow")]

    k(f"s_mov_b32 s{sRB}, s{t2}")
    if stats_at is None:
        run(srow_ops(False))
    k(f"s_load_dword s{sTAG}, s[{pWS}:{pWS+1}], {EPOCH}")
    k(srd(rW1, pW1, 512 * 3584))
    k(f"s_cmp_lt_u32 s{sW}, 2\ns_cselect_b32 s{rB}, s{pBR}, s{pBI}\ns_cselect_b32 s{rB+1}, s{pBR+1}, s{pBI+1}\ns_mov_b32 s{rB+2}, 0x80000\ns_mov_b32 s{rB+3}, 0x20000")

    def stage_ops(stage, full):
        slot = (stage % 4) * SLOT
        tag = f"st{stage}"
        ops = [(f"s_xor_b32 s3, s{sROT}, {stage}\ns_mul_i32 s{sKW}, s3, {64*3584}\ns_lshl_b32 s3, s3, 7\ns_add_u32 s{t1}, s3, s{sBB}\ns_add_u32 s{t0}, s3, s{sXB}\n"
                f"s_add_u32 s{sKW}, s{sKW}, s{sWB}\ns_add_u32 m0, s{sW12}, {slot}", None)]
        ops += [(f"buffer_load_dwordx4 {v(XD+i)}, {s(rX,4)}, s{t0} offen offset:{i*1024} {NT('x') or (NT('X') if stage < nt_st else '')}lds", tag) for i in range(4)]
        ops += [(f"s_lshr_b32 s3, s{sW12}, 1\ns_add_u32 m0, s3, {slot + 32768}", None)]
        ops += [(f"buffer_load_dwordx4 {v(CD+i)}, {s(rB,4)}, s{t1} offen offset:{i*1024} {NT('b') or (NT('B') if stage < nt_st else '')}lds", tag) for i in range(2)]
        if full:
            ops += [(f"s_add_u32 m0, s{sW12}, {slot + 16384}", None)]
            ops += [(f"buffer_load_dwordx4 {v(WD+i)}, {s(rW1,4)}, s{sKW} offen offset:{i*1024} {NT('w') or (NT('V') if stage < nt_st else '')}lds", tag) for i in range(4)]
        return ops

    def turn(i, shift):
        if not brot:
            return f"s_mov_b32 s3, {i << shift}"
        return f"s_add_u32 s3, s{sR3}, {i}\ns_cmp_ge_u32 s3, 3\ns_cselect_b32 s{sCNT}, 3, 0\ns_sub_u32 s3, s3, s{sCNT}\ns_lshl_b32 s3, s3, {shift}"

    def ring_ops(b):
        if "pair" in ablate and b >= 6:
            return [(f"buffer_load_dword a254, {v(L16)}, {s(rW2,4)}, 0 offen", f"rb{b}")]
        tag = f"rb{b}"
        if b < 7:
            src, add = (sBE, b) if b < 3 else (sBX, 0) if b == 3 else (sBL, b - 4)
            head = f"s_mov_b32 s{t0}, s{src}" if b == 3 else turn(add, 17) + f"\ns_add_u32 s{t0}, s{src}, s3"
            if one:
                head = f"s_add_u32 s{t0}, s{sBE}, {b*65536}"
            step = f"s_xor_b32 s{t0}, s{t0}, 32768"
            r, D = rW2, W2D
        else:
            head = (f"s_lshl_b32 s{t0}, s{sN}, 1\ns_and_b32 s3, s{sW}, 1\ns_or_b32 s{t0}, s{t0}, s3\ns_lshl_b32 s{t0}, s{t0}, 15\n"
                    f"s_lshl_b32 s3, s{sW}, 8\ns_add_u32 s{t0}, s{t0}, s3")
            step = f"s_xor_b32 s{t0}, s{t0}, 32768"
            if brot:
                head += (f"\ns_xor_b32 s3, s{sN}, {b-7}\ns_bitcmp1_b32 s3, 1\ns_cselect_b32 s{rB}, s{rCI}, s{rCR}\ns_cselect_b32 s{rB+1}, s{rCI+1}, s{rCR+1}"
                         f"\ns_and_b32 s3, s3, 1\ns_lshl_b32 s3, s3, 7\ns_add_u32 s{t0}, s{t0}, s3")
                r, D = rB, CD
            else:
                if (b - 7) & 1:
                    head += f"\ns_add_u32 s{t0}, s{t0}, 128"
                r, D = (rCI if b >= 9 else rCR), CD
        ops = [(head + f"\ns_add_u32 m0, s{sW13}, {RING[b]}", None)]
        for i in range(8):
            flat = krot and b < 7
            if i == 4:
                ops.append((f"s_add_u32 m0, m0, {1024 if flat else 4096}\n{step}", None))
            elif i and flat:
                ops.append(("s_add_u32 m0, m0, 1024", None))
            ops.append((f"buffer_load_dwordx4 {v(D+(i&3))}, {s(r,4)}, s{t0} offen offset:{0 if flat else (i&3)*1024} {NT('r')}lds", tag))
        return ops

    def par_loads():
        k(f"global_load_ushort {v(BI)}, {v(C_)}, {s(pB1,2)}\nglobal_load_ushort {v(BI+1)}, {v(C_)}, {s(pB1,2)} offset:128", "par2")
        k(f"global_load_ushort {v(DSK)}, {v(D_)}, {s(pDS,2)}", "par2")

    def early_setup():
        o = [(srd(rWS, pWS, 1 << 28), None), (f"s_mov_b32 s{sHI}, 0\ns_mov_b32 s{sHI+1}, -1" + (f"\ns_getreg_b32 s{sXCC}, hwreg(HW_REG_XCC_ID)\ns_and_b32 s{sXCC}, s{sXCC}, 15" if xid else ""), None)]
        P0, P1, P2 = TM + 12, TM + 13, TM + 14
        e = lambda text: o.extend(ops_of(text))
        e(f"v_bfe_u32 {v(P0)}, {v(LR)}, 1, 3\nv_xor_b32 {v(P0)}, {v(P0)}, {v(HF)}\nv_lshlrev_b32 {v(P0)}, 4, {v(P0)}\nv_lshl_add_u32 {v(P0)}, {v(LR)}, 7, {v(P0)}")
        e(f"v_add_u32 {v(XR)}, s{sW12}, {v(P0)}\nv_add_u32 {v(BQ)}, 32768, {v(P0)}\nv_add_u32 {v(CR)}, s{sW13}, {v(P0)}")
        for j in (1, 2, 3):
            e(f"v_xor_b32 {v(XR+j)}, {j << 5}, {v(XR)}\nv_xor_b32 {v(BQ+j)}, {j << 5}, {v(BQ)}")
        e(f"v_bfe_u32 {v(P0)}, {v(L)}, 2, 2\nv_and_b32 {v(P1)}, 3, {v(L)}\nv_lshlrev_b32 {v(P1)}, 3, {v(P1)}\nv_bfe_u32 {v(P2)}, {v(L)}, 4, 1\nv_lshl_add_u32 {v(P1)}, {v(P2)}, 5, {v(P1)}")
        e(f"v_lshl_add_u32 {v(P2)}, {v(HF)}, 3, {v(P0)}\nv_lshl_add_u32 {v(P2)}, {v(P2)}, 8, {v(P1)}\nv_lshl_add_u32 {v(P2)}, {v(P0)}, 6, {v(P2)}\nv_add_u32 {v(WR)}, 16384, {v(P2)}")
        for t in (1, 2, 3):
            e(f"v_xor_b32 {v(WR+t)}, {t << 6}, {v(WR)}")
        e(f"v_lshrrev_b32 {v(P2)}, 1, {v(P0)}\nv_lshl_add_u32 {v(P1)}, {v(P2)}, 6, {v(P1)}\nv_lshl_add_u32 {v(P2)}, {v(HF)}, 2, {v(P0)}\nv_lshl_add_u32 {v(P2)}, {v(P2)}, 7, {v(P1)}\nv_add_u32 {v(W2R)}, s{sW13}, {v(P2)}")
        g = lambda text: o.append((text, None))
        g(srd(rW2, pW2, 1792 * 1024)); g(srd(rCR, pCR, 1 << 19)); g(srd(rCI, pCI, 1 << 19)); g(srd(rOUT, pOUT, 4 << 20))
        g(f"s_lshl_b32 s3, s{sG}, 13\ns_add_u32 s{rE}, s{pWS}, s3\ns_addc_u32 s{rE+1}, s{pWS+1}, 0\ns_add_u32 s{rE}, s{rE}, {EG}\ns_addc_u32 s{rE+1}, s{rE+1}, 0\n"
          f"s_mov_b32 s{rE+2}, 8192\ns_mov_b32 s{rE+3}, 0x20000")
        g(f"s_lshr_b32 s3, s{sG}, 3\ns_lshl_b32 s{sM}, s{sC}, 1\ns_or_b32 s{sM}, s{sM}, s3")
        g(f"s_and_b32 s{sR3}, s{sN}, 3\ns_cmp_eq_u32 s{sR3}, 3\ns_cselect_b32 s{sR3}, 0, s{sR3}")
        g(f"s_cmp_eq_u32 s{sW}, 3\ns_cselect_b32 s3, 1, 0\ns_lshl_b32 s{sGE}, s{sW}, 2\ns_sub_u32 s{sGE}, s{sGE}, s3\ns_mul_i32 s{sGL}, s{sW}, 3\ns_add_u32 s{sGL}, s{sGL}, s3")
        g(f"s_lshl_b32 s{sAE}, s{sGE}, 13\ns_lshl_b32 s{sAL}, s{sGL}, 13\ns_add_u32 s{sAL}, s{sAL}, 4096\ns_add_u32 s{sAX}, s{sAE}, {6*4096}\ns_add_u32 s3, s{sAL}, 8192\n"
          f"s_cmp_lt_u32 s{sW}, 2\ns_cselect_b32 s{sAX}, s{sAX}, s{sAL}\ns_cselect_b32 s{sAL}, s{sAL}, s3")
        if one:
            g(f"s_mul_i32 s{sAE}, s{sW}, {7*4096}\ns_mul_i32 s{sGE}, s{sW}, 7\ns_lshr_b32 s{sGE}, s{sGE}, 1")
        g(f"s_lshl_b32 s3, s{sN}, 7\ns_lshl_b32 s{sBE}, s{sAE}, 4\ns_lshl_b32 s{sBX}, s{sAX}, 4\ns_lshl_b32 s{sBL}, s{sAL}, 4\n"
          f"s_add_u32 s{sBE}, s{sBE}, s3\ns_add_u32 s{sBX}, s{sBX}, s3\ns_add_u32 s{sBL}, s{sBL}, s3")
        g(f"s_lshl_b32 s3, s{sC}, 2\ns_add_u32 s3, s3, s{sW}\ns_mul_i32 s{sAF}, s3, {MT}\ns_add_u32 s{sAF}, s{sAF}, {AF}")
        return o

    tag_ops = lambda: ops_of(f"s_waitcnt lgkmcnt(0)\ns_mul_i32 s{sTAG}, s{sTAG}, 0x9e3779b1\ns_add_u32 s{sTAG}, s{sTAG}, 0x7f4a7c15")

    def row_stats(plain=False):
        o = []
        def k2(text, tag=None, atomic=False):
            o.extend([(text, tag)] if atomic or tag else ops_of(text))
        S1, S2, U1, U2 = TM, TM + 1, TM + 2, TM + 3
        k2(f"v_mov_b32 {v(S1)}, 0\nv_mov_b32 {v(S2)}, 0\ns_mov_b32 s{t3}, 0x3f803f80")
        o.append(W(vm="srow"))
        for i in range(8):
            if plain:
                k2(f"v_lshlrev_b32 {v(U1)}, 16, {v(SR+i)}\nv_and_b32 {v(U2)}, 0xffff0000, {v(SR+i)}\nv_add_f32 {v(S1)}, {v(S1)}, {v(U1)}\n"
                   f"v_fmac_f32 {v(S2)}, {v(U1)}, {v(U1)}\nv_add_f32 {v(S1)}, {v(S1)}, {v(U2)}\nv_fmac_f32 {v(S2)}, {v(U2)}, {v(U2)}")
            else:
                k2(f"v_dot2c_f32_bf16 {v(S1)}, s{t3}, {v(SR+i)}\nv_dot2c_f32_bf16 {v(S2)}, {v(SR+i)}, {v(SR+i)}")
        for r in (8, 4, 2, 1):
            k2(f"v_add_f32_dpp {v(S1)}, {v(S1)}, {v(S1)} row_ror:{r} row_mask:0xf bank_mask:0xf")
            k2(f"v_add_f32_dpp {v(S2)}, {v(S2)}, {v(S2)} row_ror:{r} row_mask:0xf bank_mask:0xf")
        k2(f"v_mov_b32 {v(U1)}, {v(S1)}\nv_mov_b32 {v(U2)}, {v(S2)}")
        k2(f"v_permlane16_swap_b32 {v(S1)}, {v(U1)}\nv_permlane16_swap_b32 {v(S2)}, {v(U2)}")
        k2(f"v_add_f32 {v(S1)}, {v(S1)}, {v(U1)}\nv_add_f32 {v(S2)}, {v(S2)}, {v(U2)}")
        k2(f"v_mul_f32 {v(S1)}, 0x3b000000, {v(S1)}\nv_mul_f32 {v(S2)}, 0x3b000000, {v(S2)}")
        k2(f"v_fma_f32 {v(S2)}, -{v(S1)}, {v(S1)}, {v(S2)}\nv_max_f32 {v(S2)}, 0, {v(S2)}")
        k2(f"v_cvt_pk_bf16_f32 {v(S2)}, {v(S2)}, {v(S2)}\nv_and_b32 {v(S2)}, 0xffff0000, {v(S2)}\nv_add_f32 {v(S2)}, 0x3727c5ac, {v(S2)}")
        k2(f"v_cvt_pk_bf16_f32 {v(S2)}, {v(S2)}, {v(S2)}\nv_and_b32 {v(S2)}, 0xffff0000, {v(S2)}\nv_sqrt_f32 {v(S2)}, {v(S2)}")
        k2(f"v_cvt_pk_bf16_f32 {v(SR)}, {v(S1)}, {v(S2)}")
        if not plain:
            o.extend(tag_ops())
        k2(f"v_mov_b32 {v(SR+1)}, s{sTAG}\nv_lshlrev_b32 {v(U1)}, 3, {v(HF)}")
        if xid:
            k2(f"v_mov_b32 {v(SR+2)}, s{sXCC}\nv_mov_b32 {v(SR+3)}, s{sTAG}")
        k2(f"s_lshr_b32 s{sRB}, s{sRB}, 7\ns_add_u32 s{sRB}, s{sRB}, {STATS}")
        if xid:
            k2(f"s_lshl_b32 s{t3}, s{sC}, 4\ns_add_u32 s{t3}, s{t3}, s{sG}\ns_lshl_b32 s{t3}, s{t3}, 3\ns_add_u32 s{t3}, s{t3}, {XID}")
        def publish():
            k("s_mov_b32 exec_lo, 1\ns_mov_b32 exec_hi, 1")
            k(f"buffer_store_dwordx2 {v(SR,2)}, {v(U1)}, {s(rWS,4)}, s{sRB} offen sc1", "pub0")
            if xid:
                k(f"buffer_store_dwordx2 {v(SR+2,2)}, off, {s(rWS,4)}, s{t3} sc1", "pub0")
            k("s_mov_b64 exec, -1")
            if not plain:
                stamp("stats")
        o.append(publish)
        return o

    def late_setup(full):
        o = []
        e = lambda text: o.extend(ops_of(text))
        g = lambda text: o.append((text, None))
        P0, P1, P2 = TM + 12, TM + 13, TM + 14
        if krot:
            g(f"s_add_u32 s{sROT2}, s{sC}, s{sN}\ns_and_b32 s{sROT2}, s{sROT2}, 3\ns_lshl_b32 s3, s{sROT2}, 5\nv_xor_b32 {v(CR)}, s3, {v(CR)}")
        for j in (1, 2, 3):
            e(f"v_xor_b32 {v(CR+j)}, {j << 5}, {v(CR)}")
        for j in range(4):
            e(f"v_add_u32 {v(CR+4+j)}, {HIGH}, {v(CR+j)}")
        e(f"v_xor_b32 {v(W2R+1)}, 64, {v(W2R)}\nv_add_u32 {v(W2R+2)}, {HIGH}, {v(W2R)}\nv_add_u32 {v(W2R+3)}, {HIGH}, {v(W2R+1)}")
        e(f"v_lshrrev_b32 {v(P0)}, 3, {v(L)}\nv_and_b32 {v(P1)}, 7, {v(L)}\nv_bfe_u32 {v(P2)}, {v(L)}, 4, 1\nv_lshlrev_b32 {v(P2)}, 2, {v(P2)}")
        e(f"v_xor_b32 {v(P1)}, {v(P1)}, {v(P2)}\nv_lshlrev_b32 {v(P1)}, 4, {v(P1)}")
        g(f"s_and_b32 s3, s{sW}, 1\ns_lshl_b32 s3, s3, 6\nv_xor_b32 {v(P1)}, s3, {v(P1)}")
        e(f"v_lshl_add_u32 {v(W2D)}, {v(P0)}, 10, {v(P1)}")
        if krot:
            g(f"s_and_b32 s3, s{sROT2}, 1\ns_lshl_b32 s3, s3, 14\nv_xor_b32 {v(W2D)}, s3, {v(W2D)}")
            e(f"v_xor_b32 {v(W2D+2)}, 0x4000, {v(W2D)}\nv_add_u32 {v(W2D+1)}, 8192, {v(W2D)}\nv_add_u32 {v(W2D+3)}, 8192, {v(W2D+2)}")
            g(f"s_lshr_b32 s3, s{sROT2}, 1\ns_lshl_b32 s3, s3, 15\ns_add_u32 s{sBE}, s{sBE}, s3\ns_add_u32 s{sBX}, s{sBX}, s3\ns_add_u32 s{sBL}, s{sBL}, s3")
        else:
            for i in (1, 2, 3):
                e(f"v_add_u32 {v(W2D+i)}, {i*7168}, {v(W2D)}")
        e(f"v_bfe_u32 {v(P0)}, {v(LR)}, 2, 1\nv_lshrrev_b32 {v(P1)}, 3, {v(LR)}\nv_and_b32 {v(P2)}, 3, {v(LR)}")
        e(f"v_lshl_add_u32 {v(P2)}, {v(P1)}, 2, {v(P2)}\nv_lshl_add_u32 {v(TAU)}, {v(P0)}, 4, {v(P2)}")
        for z in (XA + 2, XA + 3, XB + 2, XB + 3, WE + 2, WE + 3, WE + 6, WE + 7, WE + 10, WE + 11):
            e(f"v_mov_b32 {v(z)}, 0")
        LRE, LIM, DT, A2, BRV, X0, X1, X2 = range(PL, PL + 8)
        o.append(W(vm="par2"))
        e(f"v_lshlrev_b32 {v(LRE)}, 16, {v(LRE)}\nv_lshlrev_b32 {v(LIM)}, 16, {v(LIM)}\nv_lshlrev_b32 {v(DT)}, 16, {v(DT)}\nv_lshlrev_b32 {v(DSK)}, 16, {v(DSK)}")
        e(f"v_mul_f32 {v(DT)}, {LOG2E:#x}, {v(DT)}\nv_exp_f32 {v(DT)}, {v(DT)}\nv_cvt_pk_bf16_f32 {v(DT)}, {v(DT)}, {v(DT)}\nv_and_b32 {v(DT)}, 0xffff0000, {v(DT)}")
        e(f"v_mul_f32 {v(A2)}, {v(DT)}, {v(LRE)}\nv_mul_f32 {v(BRV)}, {v(DT)}, {v(LIM)}\nv_mul_f32 {v(A2)}, {LOG2E:#x}, {v(A2)}\nv_mul_f32 {v(BRV)}, 0.15915494, {v(BRV)}")
        def cpow(n, dr, di):
            e(f"v_mul_f32 {v(X0)}, {n}, {v(A2)}\nv_mul_f32 {v(X1)}, {n}, {v(BRV)}\nv_exp_f32 {v(X0)}, {v(X0)}\nv_fract_f32 {v(X1)}, {v(X1)}")
            e(f"v_cos_f32 {v(dr)}, {v(X1)}\nv_sin_f32 {v(di)}, {v(X1)}\nv_mul_f32 {v(dr)}, {v(dr)}, {v(X0)}\nv_mul_f32 {v(di)}, {v(di)}, {v(X0)}")
        cpow("1.0", LAR, LAI); cpow("0x41800000", L16R, L16I); cpow("0x43800000", L2R, L2I)
        g(f"s_lshl_b32 s3, s{sW}, 1\nv_add_u32 {v(X2)}, s3, {v(HF)}")
        e(f"v_lshlrev_b32 {v(X2)}, 4, {v(X2)}\nv_cvt_f32_u32 {v(X2)}, {v(X2)}")
        cpow(v(X2), PWR, PWI)
        g(f"s_lshl_b32 s3, s{sW}, 2\nv_add_u32 {v(X2)}, s3, {v(HF)}")
        e(f"v_lshlrev_b32 {v(X2)}, 7, {v(X2)}\nv_cvt_f32_u32 {v(X2)}, {v(X2)}")
        cpow(v(X2), SCRR, SCI)
        e(f"v_sub_f32 {v(NLAI)}, 0, {v(LAI)}\nv_sub_f32 {v(NL16I)}, 0, {v(L16I)}")
        e(f"v_mul_f32 {v(X0)}, {v(LRE)}, {v(LRE)}\nv_fmac_f32 {v(X0)}, {v(LIM)}, {v(LIM)}\nv_rcp_f32 {v(X0)}, {v(X0)}\nv_subrev_f32 {v(X1)}, 1.0, {v(LAR)}")
        e(f"v_mul_f32 {v(CFR)}, {v(X1)}, {v(LRE)}\nv_mul_f32 {v(NCFI)}, {v(X1)}, {v(LIM)}\nv_mul_f32 {v(X0)}, 0x4038aa3b, {v(X0)}")
        e(f"v_fmac_f32 {v(CFR)}, {v(LAI)}, {v(LIM)}\nv_fmac_f32 {v(NCFI)}, {v(NLAI)}, {v(LRE)}")
        e(f"v_mul_f32 {v(CFR)}, {v(CFR)}, {v(X0)}\nv_mul_f32 {v(NCFI)}, {v(NCFI)}, {v(X0)}\nv_sub_f32 {v(NCFR)}, 0, {v(CFR)}")
        e(f"v_mul_f32 {v(T)}, {v(CFR)}, {v(LAR)}\nv_mul_f32 {v(T+16)}, {v(CFR)}, {v(LAI)}\nv_fmac_f32 {v(T)}, {v(NCFI)}, {v(LAI)}\nv_fma_f32 {v(T+16)}, -{v(NCFI)}, {v(LAR)}, {v(T+16)}")
        for i in range(1, 16):
            e(f"v_mul_f32 {v(T+i)}, {v(T+i-1)}, {v(LAR)}\nv_mul_f32 {v(T+16+i)}, {v(T+15+i)}, {v(LAR)}")
            e(f"v_fmac_f32 {v(T+i)}, {v(T+15+i)}, {v(NLAI)}\nv_fmac_f32 {v(T+16+i)}, {v(T+i-1)}, {v(LAI)}")
        return o

    GS, GX, GA = TM, TM + 2, TM + 16

    def gran_loads(full):
        ops = [(f"s_lshr_b32 s{t2}, s{sXB}, 7\ns_add_u32 s{t2}, s{t2}, {STATS}\nv_lshlrev_b32 {v(GA)}, 3, {v(TAU)}", None),
               (f"buffer_load_dwordx2 {v(GS,2)}, {v(GA)}, {s(rWS,4)}, s{t2} offen sc1", "gran"),
               (f"s_lshl_b32 s{t2}, s{sC}, 7\ns_add_u32 s{t2}, s{t2}, {XID}\nv_and_b32 {v(GA)}, 15, {v(L)}\nv_lshlrev_b32 {v(GA)}, 3, {v(GA)}", None),
               (f"buffer_load_dwordx2 {v(GX,2)}, {v(GA)}, {s(rWS,4)}, s{t2} offen sc1", "gran"),
               (f"s_lshl_b32 s{t2}, s{sG}, 8\ns_add_u32 s{t2}, s{t2}, {CS + 1792*8}\nv_lshlrev_b32 {v(GA)}, 12, {v(HF)}\nv_lshl_add_u32 {v(GA)}, {v(LR)}, 3, {v(GA)}", None),
               (f"buffer_load_dwordx2 {v(WE+8,2)}, {v(GA)}, {s(rWS,4)}, s{t2} offen sc1", "gran")]
        if not xid:
            del ops[2:4]
        if full:
            ops += [(f"s_lshl_b32 s{t2}, s{sF}, 10\ns_add_u32 s{t2}, s{t2}, {CS}\nv_lshlrev_b32 {v(GA)}, 3, {v(L)}", None),
                    (f"buffer_load_dwordx2 {v(WE,2)}, {v(GA)}, {s(rWS,4)}, s{t2} offen sc1", "gran"),
                    (f"buffer_load_dwordx2 {v(WE+4,2)}, {v(GA)}, {s(rWS,4)}, s{t2} offen offset:512 sc1", "gran")]
        return ops

    cold = []
    def spin_check(name, tag, mismatch, reload):
        again, ok = k.label(name + "_again"), k.label(name + "_ok")
        k.wait(vm=tag)
        k(mismatch)
        k(f"s_mov_b32 s{sCNT}, 0\ns_nop 0\ns_cbranch_vccnz {again}")
        k(ok + ":")
        loads = "\n".join(op[0] for op in reload)
        if backoff:
            loads = f"s_sleep {backoff}\n" + loads
        cold.append(f"{again}:\n{loads}\ns_waitcnt vmcnt(0)\n{mismatch}\ns_add_u32 s{sCNT}, s{sCNT}, 1\ns_cmp_gt_u32 s{sCNT}, {SPIN}\n"
                    f"s_cbranch_scc1 {ok}\ns_cbranch_vccnz {again}\ns_branch {ok}")

    def tags_differ(regs, tmp):
        t = f"v_xor_b32 {v(tmp)}, s{sTAG}, {v(regs[0])}\n"
        for r in regs[1:]:
            t += f"v_xor_b32 {v(tmp+1)}, s{sTAG}, {v(r)}\nv_or_b32 {v(tmp)}, {v(tmp)}, {v(tmp+1)}\n"
        return t + f"v_cmp_ne_u32 vcc, 0, {v(tmp)}"

    rsv_reads = lambda: [(f"ds_read_b128 {v(RSV+4*q,4)}, {v(GA+2)} offset:{q*16}", "rsv") for q in range(4)]

    def gran_check(full):
        spin_check("gran", "gran", tags_differ([GS + 1, WE + 9] + ([GX + 1] if xid else []) + ([WE + 1, WE + 5] if full else []), GA), gran_loads(full))
        if xid:
            k(f"v_cmp_ne_u32 vcc, s{sXCC}, {v(GX)}")
        k(f"v_and_b32 {v(GA)}, 0xffff, {v(GS)}\nv_and_b32 {v(GA+1)}, 0xffff0000, {v(GS)}\nv_lshlrev_b32 {v(MF)}, 16, {v(GS)}")
        if xid:
            k(f"s_cmp_eq_u64 vcc, 0\ns_cselect_b32 s{sLOC}, 1, 0")
        k(f"v_rcp_f32 {v(RS)}, {v(GA+1)}\nv_xor_b32 {v(GA)}, 0x8000, {v(GA)}\nv_lshrrev_b32 {v(GA+1)}, 16, {v(GS)}\nv_lshl_or_b32 {v(GA)}, {v(GA)}, 16, {v(GA)}")
        k(f"v_cndmask_b32 {v(XA)}, {v(GA)}, 0, {s(sHI,2)}\nv_cndmask_b32 {v(XA+1)}, {v(GA+1)}, 0, {s(sHI,2)}")
        k(f"v_cndmask_b32 {v(XB)}, 0, {v(GA)}, {s(sHI,2)}\nv_cndmask_b32 {v(XB+1)}, 0, {v(GA+1)}, {s(sHI,2)}\nv_mov_b32 {v(WE+9)}, 0")
        k(f"s_lshr_b32 s3, s{sW12}, 5\ns_add_u32 s3, s3, {SCR}\nv_lshlrev_b32 {v(GA)}, 9, {v(HF)}\nv_lshl_add_u32 {v(GA)}, {v(TAU)}, 2, {v(GA)}\nv_add_u32 {v(GA)}, s3, {v(GA)}")
        k(f"v_lshlrev_b32 {v(GA+2)}, 6, {v(HF)}\nv_add_u32 {v(GA+2)}, s3, {v(GA+2)}")
        mfma(SS, v(XA, 4), v(WE + 8, 4)); mfma(SS + 16, v(XB, 4), v(WE + 8, 4))
        k(f"v_cndmask_b32 {v(GA+1)}, {v(RS)}, {v(MF)}, {s(sHI,2)}\nv_mul_f32 {v(C1)}, {LOG2E:#x}, {v(RS)}")
        k(f"ds_write_b32 {v(GA)}, {v(GA+1)}", "stw")
        if not (full and order == "m"):
            run(rsv_reads())
        if full:
            k(f"v_mov_b32 {v(WE+1)}, {v(BI)}\nv_mov_b32 {v(WE+5)}, {v(BI+1)}\ns_lshl_b32 s3, s{sF}, 13\ns_add_u32 s{sA0}, s{sAF}, s3")
            for t in range(4):
                mfma(ACC + 16 * t, v(WE + 4 * (t >> 1), 4), v(XB if t & 1 else XA, 4))

    def pf_ops(force=False):
        if not l2pf and not force:
            return [("s_nop 0", "none")]
        P, Q = TM + 18, TM + 19
        rows = mapping != "x8g4"
        o = []
        for h in range(2 if rows else 1):
            col = f"s_mov_b32 s3, {h*4}" if rows else f"s_and_b32 s3, s{sXD}, 1\ns_lshl_b32 s3, s3, 2"
            skip = f"v_cmp_eq_u32 vcc, {lite}, {v(Q)}\nv_lshrrev_b32 {v(P)}, 2, {v(L)}\nv_min_u32 {v(P)}, 13, {v(P)}\nv_subbrev_co_u32 {v(Q)}, vcc, 0, {v(Q)}, vcc\n" if trickle else \
                   f"v_lshrrev_b32 {v(P)}, 2, {v(L)}\nv_min_u32 {v(P)}, 13, {v(P)}\n"
            o += [(f"{col}\nv_and_b32 {v(Q)}, 3, {v(L)}\nv_add_u32 {v(Q)}, s3, {v(Q)}\n{skip}v_lshlrev_b32 {v(Q)}, 7, {v(Q)}\nv_lshl_add_u32 {v(P)}, {v(P)}, 10, {v(Q)}\n"
                   f"s_lshl_b32 s{t2}, s{sJ}, 2\ns_add_u32 s{t2}, s{t2}, s{sW}\ns_mul_i32 s{t2}, s{t2}, {14*1024}", None),
                  (f"buffer_load_dword a255, {v(P)}, {s(rW2,4)}, s{t2} offen", "pf2")]
        half = "" if rows else f"s_and_b32 s3, s{sXD}, 1\ns_lshl_b32 s3, s3, 18\ns_add_u32 s{t2}, s{t2}, s3\n"
        o += [(f"s_lshl_b32 s{t2}, s{sJ}, 2\ns_add_u32 s{t2}, s{t2}, s{sW}\ns_lshl_b32 s{t2}, s{t2}, {12 if rows else 11}\n{half}"
               f"v_and_b32 {v(P)}, {31 if rows else 15}, {v(L)}\nv_lshlrev_b32 {v(P)}, 7, {v(P)}", None),
              (f"buffer_load_dword a255, {v(P)}, {s(rCR,4)}, s{t2} offen", "pf2"),
              (f"buffer_load_dword a255, {v(P)}, {s(rCI,4)}, s{t2} offen", "pf2")]
        return o

    def mid_ops():
        P, Q = TM + 18, TM + 19
        o = [(f"s_lshl_b32 s{t2}, s2, 2\ns_add_u32 s{t2}, s{t2}, s{sW}\nv_bfe_u32 {v(P)}, {v(L)}, 2, 3\nv_min_u32 {v(P)}, 4, {v(P)}\nv_lshlrev_b32 {v(P)}, 7, {v(P)}", None)]
        if "x" in mid:
            o.append((f"s_lshl_b32 s3, s{t2}, 11\nv_lshl_add_u32 {v(Q)}, {v(HF)}, 10, {v(P)}\nbuffer_load_dword a255, {v(Q)}, {s(rX,4)}, s3 offen offset:384", "mid"))
        if "w" in mid:
            o.append((f"s_mul_i32 s3, s{t2}, 1152\ns_add_u32 s3, s3, {192*3584}\nv_lshrrev_b32 {v(Q)}, 2, {v(L)}\nv_min_u32 {v(Q)}, 8, {v(Q)}\nv_lshlrev_b32 {v(Q)}, 7, {v(Q)}\n"
                      f"buffer_load_dword a255, {v(Q)}, {s(rW1,4)}, s3 offen", "mid"))
        if "b" in mid:
            o.append((f"s_lshl_b32 s3, s2, 1\ns_and_b32 s{t2}, s{sW}, 1\ns_or_b32 s3, s3, s{t2}\ns_lshl_b32 s3, s3, 10\nbuffer_load_dword a255, {v(P)}, {s(rB,4)}, s3 offen offset:384", "mid"))
        return o

    def far_ops(flip=0):
        if far_at is None:
            return []
        P, Q = TM + 18, TM + 19
        return [(f"s_xor_b32 s{t2}, s2, {flip}\ns_lshl_b32 s{t2}, s{t2}, 2\ns_add_u32 s{t2}, s{t2}, s{sW}\ns_mul_i32 s3, s{t2}, {14*128}\nv_lshrrev_b32 {v(P)}, 2, {v(L)}\nv_min_u32 {v(Q)}, 13, {v(P)}\nv_lshlrev_b32 {v(Q)}, 7, {v(Q)}\n"
                 f"buffer_load_dword a255, {v(Q)}, {s(rW2,4)}, s3 offen", "far"),
                (f"s_lshl_b32 s{t2}, s{t2}, 9\nv_and_b32 {v(P)}, 3, {v(P)}\nv_lshlrev_b32 {v(P)}, 7, {v(P)}\nbuffer_load_dword a255, {v(P)}, {s(rCR,4)}, s{t2} offen", "far"),
                (f"buffer_load_dword a255, {v(P)}, {s(rCI,4)}, s{t2} offen", "far")]

    def weave(mem, val):
        n = sum(1 for op in mem if not callable(op) and op[1] is not None)
        for m, c in zip(spread_mem(mem, n), spread(val, n)):
            run(m); run(c)

    def stage_reads(b):
        hi = RING[b] >= HIGH
        return [W(vm=f"rb{b}")] + [(f"ds_read_b64_tr_b16 {a(RESB[b]+8*j+4*c+2*rd,2)}, {v(W2R+2*hi+c)} offset:{RING[b] - hi*HIGH + j*2048 + rd*1024}", f"sr{b}")
                                   for j in range(4) for c in range(2) for rd in range(2)]

    EA, EB, EX0, EX1, E0 = XD, XD + 1, XD + 2, XD + 3, TM
    HA, HB, XW, XQ = WD, WD + 1, WD + 2, WD + 3
    def e_loads():
        return [(f"buffer_load_dwordx4 {v(E0,4)}, {v(EA)}, {s(rE,4)}, 0 offen sc1", "eg"),
                (f"buffer_load_dwordx4 {v(E0+4,4)}, {v(EB)}, {s(rE,4)}, 0 offen sc1", "eg")]

    def epi_addr():
        o = []
        e = lambda text: o.extend(ops_of(text))
        P = TM + 12
        o.append((f"s_lshl_b32 s3, s{sW}, 2\ns_sub_u32 s3, s{sC}, s3\ns_sub_u32 s3, s3, 1\nv_sub_u32 {v(EA)}, s3, {v(HF)}", None))
        e(f"v_subrev_u32 {v(EB)}, 2, {v(EA)}\nv_ashrrev_i32 {v(EX0)}, 31, {v(EA)}\nv_ashrrev_i32 {v(EX1)}, 31, {v(EB)}\n"
          f"v_bfi_b32 {v(EX0)}, {v(EX0)}, 0, s{sTAG}\nv_bfi_b32 {v(EX1)}, {v(EX1)}, 0, s{sTAG}\nv_lshlrev_b32 {v(P)}, 4, {v(LR)}\n"
          f"v_lshl_add_u32 {v(EA)}, {v(EA)}, 9, {v(P)}\nv_lshl_add_u32 {v(EB)}, {v(EB)}, 9, {v(P)}")
        o.append((f"s_lshr_b32 s3, s{sW12}, 3\ns_add_u32 s3, s3, {SCR_EX}\nv_lshl_add_u32 {v(XW)}, {v(L)}, 3, s3", None))
        e(f"v_lshlrev_b32 {v(XQ)}, 3, {v(LR)}\nv_add_u32 {v(XQ)}, {SCR_EX}, {v(XQ)}")
        o.append((f"s_lshr_b32 s3, s{sW}, 1\ns_mul_i32 s3, s3, {SLOT - 8192}\ns_add_u32 s3, s3, s{sW12}\ns_add_u32 s{sKW}, s3, {SCR_HT}", None))
        e(f"v_lshlrev_b32 {v(HA)}, 5, {v(HF)}\nv_lshl_add_u32 {v(HA)}, {v(LR)}, 6, {v(HA)}\nv_add_u32 {v(HA)}, s{sKW}, {v(HA)}")
        e(f"v_bfe_u32 {v(HB)}, {v(L)}, 2, 2\nv_lshl_add_u32 {v(HB)}, {v(HF)}, 3, {v(HB)}\nv_lshlrev_b32 {v(HB)}, 6, {v(HB)}")
        e(f"v_and_b32 {v(P)}, 1, {v(L)}\nv_lshl_add_u32 {v(HB)}, {v(P)}, 5, {v(HB)}\nv_bfe_u32 {v(P)}, {v(L)}, 1, 1\nv_lshl_add_u32 {v(HB)}, {v(P)}, 3, {v(HB)}")
        e(f"v_bfe_u32 {v(P)}, {v(L)}, 4, 1\nv_lshl_add_u32 {v(HB)}, {v(P)}, 4, {v(HB)}\nv_add_u32 {v(HB)}, s{sKW}, {v(HB)}")
        o.append((f"s_lshr_b32 s3, s{sG}, 2\ns_lshl_b32 s3, s3, 3\ns_and_b32 s{sKW}, s{sG}, 3\ns_add_u32 s3, s3, s{sKW}\ns_lshl_b32 s3, s3, 11\ns_add_u32 s{sKW}, s{sAF}, s3\ns_add_u32 s{sKW}, s{sKW}, {112*1024}", None))
        o.append((f"s_lshl_b32 s3, s{sM}, 1\ns_lshr_b32 s{sP0}, s{sW}, 1\ns_add_u32 s{sP0}, s3, s{sP0}\ns_xor_b32 s{sP1}, s{sP0}, 1\n"
                  f"s_mul_i32 s{sP0}, s{sP0}, {MT}\ns_mul_i32 s{sP1}, s{sP1}, {MT}\ns_add_u32 s{sP0}, s{sP0}, {AF}\ns_add_u32 s{sP1}, s{sP1}, {AF}", None))
        return o

    def gemm1(full, pfx):
        nm = 6 if full else 2
        base_of = lambda stg: ((stg % 4) // 2) * HIGH
        def reads(n):
            stg, j = divmod(n, 4)
            off = (stg % 4) * SLOT - base_of(stg)
            f = FR + 28 * (n & 1)
            d = base_of(stg) - base_of(stg - 1) if stg else 0
            adj = lambda r, on=True: f"v_add_u32 {v(r)}, {d & 0xffffffff:#x}, {v(r)}\n" if d and on else ""
            o = [(adj(XR + j) + f"ds_read_b128 {a(f,4)}, {v(XR+j)} offset:{off}", f"ra{n}")]
            o += [(adj(BQ + j, c == 0) + f"ds_read_b128 {a(f+4+4*c,4)}, {v(BQ+j)} offset:{off + c*4096}", f"ra{n}") for c in range(2)]
            if full:
                o += [(adj(WR + t, j == 0 and rd == 0) + f"ds_read_b64_tr_b16 {a(f+12+4*t+2*rd,2)}, {v(WR+t)} offset:{off + j*4096 + rd*1024}", f"ra{n}" if t == 0 else f"rb_{n}")
                      for t in range(4) for rd in range(2)]
            return o
        if look == 2:
            mem = {sg: stage_ops(sg + 2, full) for sg in range(6)}
            if pre3:
                mem[0] = []
            mem.update({6: ring_ops(0), 7: ring_ops(1)})
        else:
            ramp = spread_mem(sum((stage_ops(sg, full) for sg in range(2, 6)), []), 3)
            mem = {0: ramp[0], 1: ramp[1], 2: ramp[2], 3: stage_ops(6, full), 4: stage_ops(7, full), 5: ring_ops(0), 6: ring_ops(1), 7: ring_ops(2)}
        mem[pf_at] = pf_ops() + mem[pf_at]
        if far_at is not None:
            if far_spread:
                fo = far_ops()
                fo[1] = (f"s_lshl_b32 s{t2}, s2, 2\ns_add_u32 s{t2}, s{t2}, s{sW}\n" + fo[1][0], fo[1][1])
                fo[2] = (f"s_lshl_b32 s{t2}, s2, 2\ns_add_u32 s{t2}, s{t2}, s{sW}\ns_lshl_b32 s{t2}, s{t2}, 9\n" + fo[2][0], fo[2][1])
                mem[far_at] = mem[far_at] + fo[:1]
                mem[far_at + 1] = mem[far_at + 1] + fo[1:]
            else:
                mem[far_at] = mem[far_at] + far_ops()
        if mid_at is not None and mid_at >= 0:
            mem[mid_at] = mid_ops() + mem[mid_at]
        if stats_at is not None and full:
            mem[stats_at] = srow_ops(True) + mem[stats_at]
        if far2_at is not None:
            mem[far2_at] = mem[far2_at] + far_ops(2)
        if cc_at is not None:
            mem[cc_at] = mem[cc_at] + pf_ops(True)[-3:]
        mem[gran_at] = gran_loads(full) + mem[gran_at]
        if trk_w2 is not None and mapping == "x8g4":
            P, Q = TM + 18, TM + 19
            for q in range(4):
                head = (f"s_and_b32 s3, s{sXD}, 1\ns_lshl_b32 s3, s3, 2\nv_bfe_u32 {v(Q)}, {v(L)}, 2, 2\nv_add_u32 {v(Q)}, s3, {v(Q)}\nv_cmp_eq_u32 vcc, {lite}, {v(Q)}\n"
                        f"v_lshrrev_b32 {v(P)}, 4, {v(L)}\nv_lshlrev_b32 {v(P)}, 10, {v(P)}\nv_subbrev_co_u32 {v(Q)}, vcc, 0, {v(Q)}, vcc\nv_lshl_add_u32 {v(P)}, {v(Q)}, 7, {v(P)}\n"
                        f"s_lshl_b32 s{sJ}, s{sJ}, 2\ns_add_u32 s{sJ}, s{sJ}, s{sW}\ns_mul_i32 s{sJ}, s{sJ}, {14*1024}\n") if q == 0 else f"s_add_u32 s{sJ}, s{sJ}, {4096 if q < 3 else 2048}\n"
                mem[trk_w2 + q] = mem[trk_w2 + q] + [(head + f"buffer_load_dword a255, {v(P)}, {s(rW2,4)}, s{sJ} offen", "trk")]
        if trk_c is not None:
            P = TM + 19
            nrow = 2 if mapping == "x8g4" else 4
            half = f"s_and_b32 s3, s{sXD}, 1\ns_lshl_b32 s3, s3, 18\ns_add_u32 s{t2}, s{t2}, s3\n" if mapping == "x8g4" else ""
            mem[trk_c] = mem[trk_c] + [
                (f"s_lshl_b32 s{t2}, s{sJ}, 2\ns_add_u32 s{t2}, s{t2}, s{sW}\ns_mul_i32 s{t2}, s{t2}, {nrow*1024}\n{half}v_bfe_u32 {v(P)}, {v(L)}, 4, {nrow//2}\nv_lshlrev_b32 {v(P)}, 10, {v(P)}\n"
                 f"buffer_load_dword a255, {v(P)}, {s(rCR,4)}, s{t2} offen offset:384", "trk"),
                (f"buffer_load_dword a255, {v(P)}, {s(rCI,4)}, s{t2} offen offset:384", "trk")]
        if trickle and not full:
            for sg in range(7):
                P = TM + 15
                rows = mapping != "x8g4"
                who = {"rows": f"s_and_b32 s3, s{sC}, 1\ns_lshl_b32 s3, s3, 1\ns_lshr_b32 s{sQ}, s{sG}, 3\ns_add_u32 s3, s3, s{sQ}",
                       "x4g8": f"s_and_b32 s3, s{sC}, 3", "x8g4": f"s_and_b32 s3, s{sC}, 7"}[mapping]
                head = (f"{who}\ns_lshl_b32 s3, s3, 2\ns_add_u32 s3, s3, s{sW}\ns_mul_i32 s{sQ}, s3, {(112 if rows else 56)*1024}\ns_add_u32 s{sQ}, s{sQ}, {lite*128}\n"
                        f"v_lshrrev_b32 {v(P)}, {2 if rows else 3}, {v(L)}\nv_lshlrev_b32 {v(P)}, 10, {v(P)}\n") if sg == 0 else f"s_add_u32 s{sQ}, s{sQ}, {16384 if rows else 8192}\n"
                mem[sg] = mem[sg] + [(head + f"buffer_load_dword a255, {v(P)}, {s(rW2,4)}, s{sQ} offen {NT('t')}", "trk")]
        val = late_setup(full)[n_before:] if pre3 else late_setup(full)
        if cs_late and not full:
            val = []
        for stg in range(8):
            k.wait(vm=f"st{stg}", lg="all" if look == 3 else None)
            k("s_barrier")
            if stg in (0, 4):
                stamp(f"{pfx}st{stg}")
            steps = ([4 * stg - 1] if stg else []) + [4 * stg, 4 * stg + 1, 4 * stg + 2] + ([31] if stg == 7 else [])
            if stg == 0:
                run(reads(0))
            mm = spread_mem(mem[stg], nm * min(4, len(steps))) if mem[stg] else []
            if full and stats_at is not None and stg == stats_at + 2:
                val = row_stats(True) + val
            if stg == 6:
                assert stats_at is None or not val
                assert look == 2 or not val
                val = val + epi_addr()
            gi = 0
            for n in steps:
                f = FR + 28 * (n & 1)
                last = n % 4 == 2 and look == 3
                rd = spread(reads(n + 1), nm - 2 if last and full else nm) + [[]] * 2 if n < 31 else [[]] * nm
                for i in range(nm):
                    if i == 0:
                        k.wait(lg=f"ra{n}")
                    if i == 3:
                        k.wait(lg=f"rb_{n}")
                    c0 = "0" if n == 0 else None
                    if i < 2:
                        mfma(SS + 16 * i, a(f, 4), a(f + 4 + 4 * i, 4), c0)
                    else:
                        mfma(ACC + 16 * (i - 2), a(f + 12 + 4 * (i - 2), 4), a(f, 4), c0)
                    here = rd[i] + (mm[gi] if gi < len(mm) else [])
                    run(here)
                    used = 8 + sum(map(cost, here)) + (6 if i in (2, nm - 1) else 0)
                    while val and (used + cost(val[0]) <= budget or (not full and used < 60)):
                        used += cost(val[0])
                        run([val.pop(0)])
                    gi += 1
                probe(f"g{n}")
        run(val)

    def scan_ops():
        o = [W(lg="rsv")]
        for r in range(0, 16, 2):
            o += ops_of(f"v_pk_mul_f32 {v(SS+r,2)}, {v(SS+r,2)}, {v(RSV+r,2)}\nv_pk_mul_f32 {v(SS+16+r,2)}, {v(SS+16+r,2)}, {v(RSV+r,2)}")
        for r in range(1, 16):
            o += ops_of(f"v_fmac_f32 {v(SS+r)}, {v(LAR)}, {v(SS+r-1)}\nv_fmac_f32 {v(SS+16+r)}, {v(LAR)}, {v(SS+15+r)}\n"
                        f"v_fmac_f32 {v(SS+r)}, {v(NLAI)}, {v(SS+15+r)}\nv_fmac_f32 {v(SS+16+r)}, {v(LAI)}, {v(SS+r-1)}")
        o.append((f"ds_write2_b32 {v(XW)}, {v(SS+15)}, {v(SS+31)} offset0:0 offset1:1", "exw"))
        return o

    def chain_ops():
        o = [(f"ds_read_b64 {v(EK+2*q,2)}, {v(XQ)} offset:{q*256}", f"ek{q}") for q in range(8)]
        SG = TM + 17
        o.append((f"s_lshl_b32 s3, s{sW}, 1\nv_add_u32 {v(SG)}, s3, {v(HF)}", None))
        o += ops_of(f"v_mov_b32 {v(PR)}, 0\nv_mov_b32 {v(PI)}, 0\nv_mov_b32 {v(XA+1)}, s{sTAG}\nv_mov_b32 {v(XA+3)}, s{sTAG}")
        o.append(W(lg="ek3"))
        for q in range(1, 8):
            r, i = EK + 2 * q, EK + 2 * q + 1
            dr, di = (XA, XA + 2) if q == 7 else (r, i)
            if q == 4:
                o.append(W(lg="ek7"))
            o += ops_of(f"v_cmp_eq_u32 vcc, {q}, {v(SG)}\nv_fmac_f32 {v(r)}, {v(L16R)}, {v(r-2)}\nv_fmac_f32 {v(i)}, {v(L16R)}, {v(i-2)}\n"
                        f"v_cndmask_b32 {v(PR)}, {v(PR)}, {v(r-2)}, vcc\nv_cndmask_b32 {v(PI)}, {v(PI)}, {v(i-2)}, vcc\n"
                        f"v_fma_f32 {v(dr)}, {v(NL16I)}, {v(i-2)}, {v(r)}\nv_fma_f32 {v(di)}, {v(L16I)}, {v(r-2)}, {v(i)}")
        o.append((f"s_cmp_eq_u32 s{sW}, 3\ns_cselect_b32 s3, 0, 0x10000\nv_lshlrev_b32 {v(SG)}, 13, {v(HF)}\nv_add3_u32 {v(SG)}, {v(SG)}, {v(L16)}, s3\ns_lshl_b32 s3, s{sC}, 9\n"
                  f"buffer_store_dwordx4 {v(XA,4)}, {v(SG)}, {s(rE,4)}, s3 offen sc1", "epub"))
        return o

    def coef_ops():
        o = []
        for r in range(0, 16, 2):
            tt = XB + (r & 2)
            o += ops_of(f"v_pk_mul_f32 {v(tt,2)}, {v(SS+r,2)}, {v(NCFI,2)} op_sel_hi:[1,0]\nv_pk_mul_f32 {v(SS+r,2)}, {v(SS+r,2)}, {v(CFR,2)} op_sel_hi:[1,0]\n"
                        f"v_pk_fma_f32 {v(SS+r,2)}, {v(SS+16+r,2)}, {v(NCFI,2)}, {v(SS+r,2)} op_sel_hi:[1,0,1]\n"
                        f"v_pk_fma_f32 {v(SS+16+r,2)}, {v(SS+16+r,2)}, {v(CFR,2)}, {v(tt,2)} op_sel:[0,1,0] op_sel_hi:[1,1,1]")
        return o

    XSL = 3 * SLOT + 32768
    def xs_ops():
        P = TM + 19
        return [(f"s_lshl_b32 s{t2}, s{sM}, 1\ns_lshr_b32 s3, s{sW}, 1\ns_add_u32 s{t2}, s{t2}, s3\ns_lshl_b32 s{t2}, s{t2}, 15\n"
                 f"s_lshl_b32 s3, s{sN}, 7\ns_add_u32 s{t2}, s{t2}, s3\ns_and_b32 s3, s{sW}, 1\ns_lshl_b32 s3, s3, 6\ns_add_u32 s{t2}, s{t2}, s3\n"
                 f"v_lshrrev_b32 {v(P)}, 2, {v(L)}\nv_and_b32 {v(P-1)}, 3, {v(L)}\nv_lshlrev_b32 {v(P-1)}, 4, {v(P-1)}\nv_lshl_add_u32 {v(P)}, {v(P)}, 10, {v(P-1)}\n"
                 f"s_lshr_b32 s3, s{sW12}, 1\ns_add_u32 m0, s3, {XSL}", None),
                (f"buffer_load_dwordx4 {v(P)}, {s(rX,4)}, s{t2} offen {NT('y')}lds", "xs"),
                (f"s_add_u32 s{t2}, s{t2}, {16384 - 1024}\nbuffer_load_dwordx4 {v(P)}, {s(rX,4)}, s{t2} offen offset:1024 lds", "xs")]

    def mish_ops(t):
        ops = []
        TA, TB = MI, MI + 8
        for e in range(2):
            R = ACC + 16 * t + 8 * e
            one = lambda f: [(f(i), None) for i in range(8)]
            two = lambda f: [(f(i), None) for i in range(0, 8, 2)]
            ops += two(lambda i: f"v_pk_mul_f32 {v(TA+i,2)}, {v(R+i,2)}, {v(C1,2)} op_sel_hi:[1,0]")
            ops += one(lambda i: f"v_exp_f32 {v(TB+i)}, {v(TA+i)}")
            ops += two(lambda i: f"v_pk_fma_f32 {v(R+i,2)}, {v(TB+i,2)}, 0.5, 1.0 op_sel_hi:[1,0,0]")
            ops += two(lambda i: f"v_pk_fma_f32 {v(TB+i,2)}, {v(TB+i,2)}, {v(R+i,2)}, 1.0 op_sel_hi:[1,1,0]")
            ops += one(lambda i: f"v_rcp_f32 {v(TB+i)}, {v(TB+i)}")
            ops += two(lambda i: f"v_pk_fma_f32 {v(TA+i,2)}, {v(TA+i,2)}, {v(TB+i,2)}, {v(TA+i,2)} neg_lo:[1,0,0] neg_hi:[1,0,0]")
            ops += two(lambda i: f"v_cvt_pk_bf16_f32 {v(R+i//2)}, {v(TA+i)}, {v(TA+i+1)}")
            pre = f"s_add_u32 s{sA0}, s{sA0}, 4096\n" if t == 2 and e == 0 else ""
            ops.append((pre + f"buffer_store_dwordx4 {v(R,4)}, {v(L16)}, {s(rWS,4)}, s{sA0} offen offset:{(2*(t&1)+e)*1024} {st}", f"act{t}"))
        return ops

    PA, PV = BI, BI + 1

    def flag_publish(base, tag):
        k(f"s_lshl_b32 s{sQ}, s{sC}, 4\ns_add_u32 s{sQ}, s{sQ}, s{sG if base == FLC else sF}\ns_lshl_b32 s{sQ}, s{sQ}, 2\ns_add_u32 s{sQ}, s{sQ}, s{sW}\ns_lshl_b32 s{sQ}, s{sQ}, 7\ns_add_u32 s{sQ}, s{sQ}, {base}")
        k(f"v_mov_b32 {v(MF)}, s{sTAG}")
        k.wait(vm=tag)
        k("s_mov_b64 exec, 1")
        text = f"buffer_store_dword {v(MF)}, off, {s(rWS,4)}, s{sQ}"
        if mode == "global":
            k(text + " sc1", "flag")
        else:
            far, done = k.label("far"), k.label("flagged")
            k(f"s_cmp_eq_u32 s{sLOC}, 0\ns_cbranch_scc1 {far}")
            k(text, "flag")
            k(f"s_branch {done}\n{far}:")
            untracked(f"buffer_wbl2 sc1\ns_waitcnt vmcnt(0)\n{text} sc1")
            k(done + ":")
        k("s_mov_b64 exec, -1")

    def poll_load(tag):
        return [(f"buffer_load_dword {v(PV)}, {v(PA)}, {s(rWS,4)}, s{t3} offen sc1", tag)]

    def poll_base(base):
        return f"s_lshl_b32 s3, s{sC}, 5\ns_lshr_b32 s{t3}, s{sG}, 3\ns_add_u32 s3, s3, s{t3}\ns_lshl_b32 s3, s3, 8\ns_add_u32 s{t3}, s3, {base}"

    def poll_ops(first, base, tag):
        top = 15 if base == FLC else 13
        return [(f"{first}\nv_bfe_u32 {v(PA)}, {v(L)}, 1, 2\nv_add_u32 {v(PA)}, s3, {v(PA)}\nv_min_u32 {v(PA)}, {top}, {v(PA)}\nv_and_b32 {v(PV)}, 1, {v(L)}\n"
                 f"v_lshl_add_u32 {v(PA)}, {v(PA)}, 2, {v(PV)}\nv_lshlrev_b32 {v(PA)}, 7, {v(PA)}\n" + poll_base(base), None)] + poll_load(tag)

    poll1_ops = lambda: poll_ops(f"s_mov_b32 s3, s{sGE}", FLB if one else FLA, "poll1")
    poll2_ops = lambda: poll_ops(f"s_mov_b32 s3, s{sGL}", FLB, "poll2")
    poll3_ops = lambda: poll_ops(f"s_lshl_b32 s3, s{sW}, 2", FLC, "poll3")
    poll_check = lambda tag: spin_check(tag, tag, f"v_cmp_ne_u32 vcc, s{sTAG}, {v(PV)}", poll_load(tag))

    def carry_write():
        Y0, Y1 = TM + 12, TM + 13
        mis = (f"v_xor_b32 {v(Y0)}, {v(E0+1)}, {v(EX0)}\nv_xor_b32 {v(Y1)}, {v(E0+3)}, {v(EX0)}\nv_or_b32 {v(Y0)}, {v(Y0)}, {v(Y1)}\n"
               f"v_xor_b32 {v(Y1)}, {v(E0+5)}, {v(EX1)}\nv_or_b32 {v(Y0)}, {v(Y0)}, {v(Y1)}\nv_xor_b32 {v(Y1)}, {v(E0+7)}, {v(EX1)}\nv_or_b32 {v(Y0)}, {v(Y0)}, {v(Y1)}\n"
               f"v_cmp_ne_u32 vcc, 0, {v(Y0)}")
        spin_check("e", "eg", mis, e_loads())
        k(f"v_fmac_f32 {v(E0)}, {v(L2R)}, {v(E0+4)}\nv_fmac_f32 {v(E0+2)}, {v(L2R)}, {v(E0+6)}")
        k(f"v_fma_f32 {v(E0)}, -{v(L2I)}, {v(E0+6)}, {v(E0)}\nv_fmac_f32 {v(E0+2)}, {v(L2I)}, {v(E0+4)}")
        k(f"v_mul_f32 {v(Y0)}, {v(SCRR)}, {v(E0)}\nv_mul_f32 {v(Y1)}, {v(SCRR)}, {v(E0+2)}")
        k(f"v_fma_f32 {v(Y0)}, -{v(SCI)}, {v(E0+2)}, {v(Y0)}\nv_fmac_f32 {v(Y1)}, {v(SCI)}, {v(E0)}")
        k(f"ds_write_b64 {v(XW)}, {v(Y0,2)} offset:{SCR_CX - SCR_EX}", "cxw")
        k.wait(lg="all")
        k("s_barrier")
        for q in range(8):
            k(f"ds_read_b64 {v(TM+2*q,2)}, {v(XQ)} offset:{SCR_CX - SCR_EX + q*256}", "cxr")

    def fix_ops():
        o = []
        e = lambda text, tag=None: o.extend(ops_of(text, tag))
        o.append(W(lg="cxr"))
        for step in (8, 4, 2):
            for q in range(0, step, 2):
                e(f"v_pk_add_f32 {v(TM+q,2)}, {v(TM+q,2)}, {v(TM+q+step,2)}")
        NS = TM + 16
        e(f"v_fmac_f32 {v(PR)}, {v(PWR)}, {v(TM)}\nv_fmac_f32 {v(PI)}, {v(PWR)}, {v(TM+1)}")
        e(f"v_fma_f32 {v(NS)}, -{v(PWI)}, {v(TM+1)}, {v(PR)}\nv_fma_f32 {v(NS+1)}, -{v(PWI)}, {v(TM)}, -{v(PI)}")
        for qq in range(4):
            comp, half = qq >> 1, qq & 1
            for r in range(8 * half, 8 * half + 8, 2):
                d = SS + 16 * comp + r
                e(f"v_pk_fma_f32 {v(d,2)}, {v(T+r,2)}, {v(NS,2)}, {v(d,2)} op_sel:[0,{comp},0] op_sel_hi:[1,{comp},1]")
                if comp == 0:
                    e(f"v_pk_fma_f32 {v(d,2)}, {v(T+16+r,2)}, {v(NS,2)}, {v(d,2)} op_sel:[0,1,0] op_sel_hi:[1,1,1]")
                else:
                    e(f"v_pk_fma_f32 {v(d,2)}, {v(T+16+r,2)}, {v(NS,2)}, {v(d,2)} op_sel:[0,0,0] op_sel_hi:[1,0,1] neg_lo:[0,1,0] neg_hi:[0,1,0]")
            for q in range(4):
                e(f"v_cvt_pk_bf16_f32 {v(TM+4*qq+q)}, {v(SS+8*qq+2*q)}, {v(SS+8*qq+2*q+1)}")
            e(f"ds_write_b128 {v(HA)}, {v(TM+4*qq,4)} offset:{comp*2048 + half*16}", f"htw{comp}")
            if half:
                for f in (2 * comp, 2 * comp + 1):
                    for rd in range(2):
                        e(f"ds_read_b64_tr_b16 {v(SS+16*comp+4*(f&1)+2*rd,2)}, {v(HB)} offset:{f*1024 + rd*256}", f"htr{f}")
        for f in range(4):
            o.append(W(lg=f"htr{f}"))
            pre = f"s_add_u32 s{sKW}, s{sKW}, 8192\n" if f == 2 else ""
            o.append((pre + f"buffer_store_dwordx4 {v(SS+16*(f>>1)+4*(f&1),4)}, {v(L16)}, {s(rWS,4)}, s{sKW} offen offset:{(f&1)*1024} {st}", "hst"))
        return o

    def a_ops(b):
        if b < 7:
            src, add = (sAE, b) if b < 3 else (sAX, 0) if b == 3 else (sAL, b - 4)
            head = f"s_mov_b32 s3, s{src}" if b == 3 else turn(add, 13) + f"\ns_add_u32 s3, s{src}, s3"
            if one:
                head = f"s_add_u32 s3, s{sAE}, {b*4096}"
        elif brot:
            head = f"s_xor_b32 s3, s{sN}, {b-7}\ns_and_b32 s3, s3, 3\ns_lshl_b32 s{t1}, s{sW}, 2\ns_add_u32 s3, s3, s{t1}\ns_lshl_b32 s3, s3, 12\ns_add_u32 s3, s3, {112*1024}"
        else:
            head = f"s_lshl_b32 s3, s{sW}, 14\ns_add_u32 s3, s3, {(112 + 4*(b-7))*1024}"
        ops = [(head + f"\ns_add_u32 s{t1}, s{sP0}, s3\ns_add_u32 s{t2}, s{sP1}, s3", None)]
        for j in range(4):
            for m in range(2):
                pre = f"s_xor_b32 s3, s{sROT2}, {j}\ns_lshl_b32 s3, s3, 10\nv_add_u32 {v(AL)}, s3, {v(L16)}\n" if krot and m == 0 else ""
                ops.append((pre + f"buffer_load_dwordx4 {a(32*(b%NA)+8*j+4*m,4)}, {v(AL)}, {s(rWS,4)}, s{t2 if m else t1} offen offset:{0 if krot else j*1024} sc1 {NT('a')}", f"ab{b}_{j}"))
        return ops

    def finish(full):
        carry_write()
        if early_a != 0:
            poll_check("poll1")
        stamp("poll" if full else "Lpoll")
        fx = fix_ops()
        if full:
            fx[f12_at:f12_at] = [lambda: probe("f12a"), lambda: flag_publish(FLB, "act3"), lambda: probe("f12b")]
        na = dist if early_a is None else early_a
        blocks = [a_ops(0), a_ops(1) + (poll2_ops() if p2_mid else [])] + ([a_ops(2)] if dist == 3 else [])
        r7 = ring_ops(7) if nres == 5 else []
        if nres == 5:
            fx = fx[:-8] + stage_reads(4) + fx[-8:]
        if one and order in ("c", "d"):
            fx = fix_ops()
            if full:
                flag_publish(FLB, "act3")
                probe("f12b")
            weave(ring_ops(7) + ring_ops(8), fx[:-8])
            probe("fxend")
            run(poll1_ops())
            if order == "d":
                run(fx[-8:])
            poll_check("poll1")
            probe("p1ok")
            if order == "c":
                weave(a_ops(0), fx[-8:])
            run(sum((a_ops(b) for b in range(order == "c", a_first)), []))
            return
        if one and order == "b":
            weave(r7, fx[:-8])
            probe("fxend")
            run(poll1_ops())
            run(fx[-8:-4])
            poll_check("poll1")
            probe("p1ok")
            weave(a_ops(0), fx[-4:])
            run(sum((a_ops(b) for b in range(1, a_first)), []))
            return
        if one:
            blocks = [a_ops(b) for b in range(a_first)]
            weave(r7, fx[:-8])
            probe("fxend")
            if poll_pos == "pre":
                run(poll1_ops())
            run(fx[-8:])
            if poll_pos == "post":
                run(poll1_ops())
        elif na or r7:
            weave(r7 + sum(blocks[:na], []), fx[:-8])
            run(fx[-8:])
        else:
            run(fx)
        if nres == 5:
            k.wait(lg="sr4")
            run(ring_ops(8))
        if not na:
            probe("p1in")
            poll_check("poll1")
            probe("p1ok")
        run(sum(blocks[na:], []))

    def bar(**kw):
        def f():
            k.wait(**kw)
            k("s_barrier")
        return f

    k(f"s_cmp_eq_u32 s{sN}, {lite}\ns_cbranch_scc1 L_light")
    snap0 = k.snapshot()
    run(stage_ops(0, True)); par_loads()
    weave(stage_ops(1, True), early_setup() + (row_stats() if stats_at is None else tag_ops()))
    if pre3:
        weave((mid_ops() if mid_at == -2 else []) + stage_ops(2, True) + (mid_ops() if mid_at == -1 else []), late_setup(True)[:n_before])
    gemm1(True, "")
    stamp("gemm")
    gran_check(True)
    stamp("gran")
    m = [mish_ops(t) for t in range(4)]
    h = len(m[0]) // 2
    if "stores" in ablate:
        m = [[op if op[1] is None else (op[0].replace("offen", "offen").replace(v(L16), v(TM + 19)), op[1]) for op in mt] for mt in m]
        k(f"v_mov_b32 {v(TM+19)}, 0x7fffffff")
    for t in range(4):
        m[t].insert(0, (lambda tt: (lambda: probe(f"m{tt}")))(t))
    if "f1" in ablate:
        k(f"v_mov_b32 {v(MF)}, 0")
    r2 = ring_ops(2) if look == 2 else []
    if "scan" in ablate:
        drop = lambda ops: [op for op in ops if callable(op) or not op[0].startswith(("v_fmac", "v_pk_mul", "v_cmp", "v_cnd", "v_fma"))]
        so, co = scan_ops, chain_ops
        scan_ops, chain_ops = (lambda: drop(so())), (lambda: drop(co()))
    if "mish" in ablate:
        m = [[op for op in mt if callable(op) or op[1] is not None] for mt in m]
        h = 2
    if order == "m" and n_pre is not None:
        k("s_barrier")
        rings = [ring_ops(b) for b in range(2, 6)]
        pre = stage_reads(0) + stage_reads(1)
        weave(sum(rings[:n_pre], []) or [("s_nop 0", "none")], pre[:17] + m[0] + pre[17:] + m[1] + m[2] + m[3])
        stamp("mish")
        rest = sum(rings[n_pre:], [])
        cutp = len(rest) // 3
        while cutp and rest[cutp - 1][1] is None:
            cutp += 1
        run(rsv_reads())
        if flag_first:
            run(scan_ops())
            flag_publish(FLB, "act3")
            cutp = 0
        else:
            weave(rest[:cutp], scan_ops())
            probe("scan")
            if f12_late is None:
                flag_publish(FLB, "act3")
            probe("f12")
        bar(lg="all")()
        ch = chain_ops()
        if f12_late is not None:
            ch.insert(min(f12_late, len(ch)), lambda: flag_publish(FLB, "act3"))
        weave(rest[cutp:], ch + [lambda: stamp("epub")] + coef_ops() + stage_reads(2) + [W(lg="sr2")])
        weave(ring_ops(6), stage_reads(3) + [W(lg="sr3")])
        weave(ring_ops(7), stage_reads(4) + [W(lg="sr4")])
    elif order == "m":
        k("s_barrier")
        weave(ring_ops(2), stage_reads(0) + m[0])
        weave(ring_ops(3) + [W(lg="sr0")] + ring_ops(4), stage_reads(1) + m[1] + stage_reads(2))
        weave([W(lg="sr2")] + ring_ops(5), m[2])
        weave(ring_ops(6) if m_r6 else [("s_nop 0", "none")], m[3])
        stamp("mish")
        run(rsv_reads() + stage_reads(3) + scan_ops())
        flag_publish(FLB, "act3")
        bar(lg="all")()
        weave(([] if m_r6 else ring_ops(6)) + ring_ops(7), chain_ops())
        stamp("epub")
        run(stage_reads(4) + coef_ops() + [W(lg="sr4")])
    else:
      run(scan_ops())
      run(m[0][:h])
      bar(lg="all")()
      weave(r2 + ring_ops(3), chain_ops() + stage_reads(0) + m[0][h:] + [W(lg="sr0")])
      stamp("epub")
    if order == "m":
        pass
    elif order in ("c", "d"):
        hh = len(m[1]) // 2
        weave(ring_ops(4), stage_reads(1) + m[1][:hh] + [W(lg="sr1")])
        weave(ring_ops(5), stage_reads(2) + m[1][hh:] + [W(lg="sr2")])
        weave(ring_ops(6), m[2] + stage_reads(3))
        run(e_loads())
        run(m[3] + stage_reads(4) + coef_ops())
        stamp("mish")
        finish(True)
    else:
      weave(ring_ops(4), stage_reads(1) + m[1] + [W(lg="sr1")])
      weave(ring_ops(5), stage_reads(2) + m[2] + ([] if one else [lambda: flag_publish(FLA, "act1")]) + [W(lg="sr2")])
      run(e_loads())
      weave(ring_ops(6), (stage_reads(3) if nres == 5 else []) + m[3] + coef_ops())
      if not one:
          run(poll1_ops())
      stamp("mish")
      finish(True)
    k.wait(lg="all")
    k("s_branch L_join")
    snap_join = k.snapshot()

    k("L_light:")
    k.restore(snap0)
    k(f"s_lshl_b32 s{sQ}, s{sC}, 1\ns_lshr_b32 s3, s{sG}, 3\ns_add_u32 s{sQ}, s{sQ}, s3")
    rL = 36 if cs_late else rE
    if cs_late:
        nt = cs_nt
        par_loads()
    k(f"s_cmp_lt_u32 s{sQ}, 16\ns_cselect_b32 s{rL}, s{pBR}, s{pBI}\ns_cselect_b32 s{rL+1}, s{pBR+1}, s{pBI+1}\ns_mov_b32 s{rL+2}, 0x80000\ns_mov_b32 s{rL+3}, 0x20000")
    if cs_late:
        run(stage_ops(0, False))
        weave(stage_ops(1, False), early_setup() + tag_ops())
        if cs_pos == 2:
            weave(stage_ops(2, False), late_setup(False))
        run(srow_ops(True))
    k(f"s_and_b32 s{t0}, s{sQ}, 15\ns_lshl_b32 s{t0}, s{t0}, 15\ns_add_u32 s{t0}, s{t0}, s{sW13}")
    if "z" in nt:
        k(f"v_add_u32 {v(TM+18)}, s{t0}, {v(L16)}\ns_lshl_b32 s3, s{sQ}, 15\nv_add_u32 {v(TM+18)}, s3, {v(TM+18)}\nv_and_b32 {v(TM+18)}, 0x1fcfff, {v(TM+18)}")
        for i in range(8):
            k(f"global_load_dwordx4 a[0:3], {v(TM+18)}, s[34:35] offset:{(i&3)*1024} nt", "dummy")
            if i == 3:
                k(f"v_xor_b32 {v(TM+18)}, 0x1000, {v(TM+18)}")
    for i in range(8):
        if i == 4:
            k(f"s_add_u32 s{t0}, s{t0}, 4096")
        k(f"buffer_load_dwordx4 {v(SS+4*i,4)}, {v(L16)}, {s(rL,4)}, s{t0} offen offset:{(i&3)*1024} {NT('l') or NT('m') or (NT('h') if i < 2 else '') or (NT('k') if i < 4 else '')}", "lb")
    k(f"s_min_u32 s{t0}, s{sQ}, 27\ns_lshl_b32 s{t0}, s{t0}, 7\ns_mul_i32 s3, s{sW}, {128*3584}\ns_add_u32 s{t0}, s{t0}, s3")
    k(f"v_lshrrev_b32 {v(TM+16)}, 3, {v(L)}\nv_mul_u32_u24 {v(TM+16)}, 3584, {v(TM+16)}\nv_and_b32 {v(TM+17)}, 7, {v(L)}\nv_lshl_add_u32 {v(TM+16)}, {v(TM+17)}, 4, {v(TM+16)}")
    if "W" in nt:
        k(f"s_cmp_lt_u32 s{sW}, 2\ns_cbranch_scc1 L_lw_keep")
        for i in range(16):
            untracked(f"buffer_load_dwordx4 {v(ACC+4*i,4)}, {v(TM+16)}, {s(rW1,4)}, s{t0} offen nt\ns_add_u32 s{t0}, s{t0}, {8*3584}")
        k("s_branch L_lw_done\nL_lw_keep:")
    for i in range(16):
        k(f"buffer_load_dwordx4 {v(ACC+4*i,4)}, {v(TM+16)}, {s(rW1,4)}, s{t0} offen {NT('l') or NT('n') or (NT('q') if i < 6 else '')}", f"lw{i}")
        k(f"s_add_u32 s{t0}, s{t0}, {8*3584}")
    if "W" in nt:
        k("L_lw_done:")
    if cs_late:
        if cs_pos == 1:
            weave(stage_ops(2, False), late_setup(False))
        run(row_stats(True))
    else:
        par_loads()
        if stats_at is not None:
            run(srow_ops(False))
        run(early_setup()); run(row_stats())
    CA, EL = TM, TM + 8

    def fold8(R):
        for j in range(0, 8, 2):
            k(f"v_permlane32_swap_b32 {v(R+j)}, {v(R+j+1)}")
        for j in range(0, 8, 2):
            k(f"v_add_f32 {v(R+j)}, {v(R+j)}, {v(R+j+1)}")
        k(f"v_permlane16_swap_b32 {v(R)}, {v(R+2)}\nv_permlane16_swap_b32 {v(R+4)}, {v(R+6)}")
        k(f"v_add_f32 {v(R)}, {v(R)}, {v(R+2)}\nv_add_f32 {v(R+4)}, {v(R+4)}, {v(R+6)}")

    def split_publish(R, addr, soff):
        k(f"v_cvt_pk_bf16_f32 {v(R+1)}, {v(R)}, {v(R)}\nv_and_b32 {v(R+1)}, 0xffff0000, {v(R+1)}\nv_sub_f32 {v(R+1)}, {v(R)}, {v(R+1)}")
        k(f"v_cvt_pk_bf16_f32 {v(R)}, {v(R)}, {v(R+1)}\nv_mov_b32 {v(R+1)}, s{sTAG}")
        k(f"buffer_store_dwordx2 {v(R,2)}, {v(addr)}, {s(rWS,4)}, s{soff} offen sc1", "cspub")

    k(f"s_mov_b32 s{t0}, 0x3f803f80")
    for j in range(8):
        k(f"v_mov_b32 {v(CA+j)}, 0")
    k(f"v_bfe_u32 {v(EL)}, {v(L)}, 4, 1\nv_lshl_add_u32 {v(EL)}, {v(EL)}, 1, {v(HF)}")
    k.wait(vm="lb")
    for j in range(4):
        for i in range(8):
            k(f"v_dot2c_f32_bf16 {v(CA+i)}, s{t0}, {v(SS+4*i+j)}")
    fold8(CA)
    for r in (8, 4, 2, 1):
        k(f"v_add_f32_dpp {v(CA)}, {v(CA)}, {v(CA)} row_ror:{r} row_mask:0xf bank_mask:0xf")
        k(f"v_add_f32_dpp {v(CA+4)}, {v(CA+4)}, {v(CA+4)} row_ror:{r} row_mask:0xf bank_mask:0xf")
    k(f"v_and_b32 {v(EL+1)}, 1, {v(L)}\nv_cmp_eq_u32 vcc, 1, {v(EL+1)}\nv_lshl_add_u32 {v(EL+1)}, {v(EL+1)}, 2, {v(EL)}\nv_lshlrev_b32 {v(EL+1)}, 3, {v(EL+1)}")
    k(f"v_cndmask_b32 {v(CA)}, {v(CA)}, {v(CA+4)}, vcc")
    k(f"s_lshl_b32 s{t2}, s{sQ}, 8\ns_lshl_b32 s3, s{sW}, 6\ns_add_u32 s{t2}, s{t2}, s3\ns_add_u32 s{t2}, s{t2}, {CS + 1792*8}")
    split_publish(CA, EL + 1, t2)
    stamp("Lbsum")
    if mid_at is not None and mid_at < 0:
        run(mid_ops())
    if not cs_late:
        run(stage_ops(0, False))
    k(f"s_mov_b32 s{t2}, 0x00003f80\ns_mov_b32 s{t3}, 0x3f800000")
    for j in range(8):
        k(f"v_mov_b32 {v(CA+j)}, 0")
    for i in range(16):
        k.wait(vm=f"lw{i}")
        for j in range(4):
            k(f"v_dot2c_f32_bf16 {v(CA+2*j)}, s{t2}, {v(ACC+4*i+j)}\nv_dot2c_f32_bf16 {v(CA+2*j+1)}, s{t3}, {v(ACC+4*i+j)}")
    for j in range(8):
        k(f"v_add_f32_dpp {v(CA+j)}, {v(CA+j)}, {v(CA+j)} row_ror:8 row_mask:0xf bank_mask:0xf")
    fold8(CA)
    k(f"v_and_b32 {v(EL+1)}, 7, {v(L)}\nv_lshl_add_u32 {v(EL+1)}, {v(EL+1)}, 3, {v(EL)}\nv_lshlrev_b32 {v(EL+1)}, 2, {v(EL+1)}")
    k(f"s_lshl_b32 s3, s{sW}, 8\ns_add_u32 s3, s3, 16384\nv_add_u32 {v(EL+1)}, s3, {v(EL+1)}")
    k(f"ds_write2_b32 {v(EL+1)}, {v(CA)}, {v(CA+4)} offset0:0 offset1:4", "cw")
    k(f"v_lshlrev_b32 {v(EL+1)}, 2, {v(L)}\nv_add_u32 {v(EL+1)}, 16384, {v(EL+1)}")
    k.wait(lg="all")
    k("s_barrier")
    for j in range(4):
        k(f"ds_read_b32 {v(CA+j)}, {v(EL+1)} offset:{j*256}", "cr")
    k(f"s_min_u32 s{t2}, s{sQ}, 27\ns_lshl_b32 s{t2}, s{t2}, 9\ns_add_u32 s{t2}, s{t2}, {CS}\nv_lshlrev_b32 {v(EL+2)}, 3, {v(L)}")
    k.wait(lg="all")
    k(f"v_add_f32 {v(CA)}, {v(CA)}, {v(CA+1)}\nv_add_f32 {v(CA+2)}, {v(CA+2)}, {v(CA+3)}\nv_add_f32 {v(CA)}, {v(CA)}, {v(CA+2)}")
    split_publish(CA, EL + 2, t2)
    stamp("Lwsum")
    if not cs_late:
        run(stage_ops(1, False))
    if pre3 and not cs_late:
        weave(stage_ops(2, False), late_setup(False)[:n_before])
    gemm1(False, "L")
    stamp("Lgemm")
    gran_check(False)
    run(scan_ops())
    bar(lg="all")()
    weave(r2 + ring_ops(3), chain_ops() + stage_reads(0) + stage_reads(1) + [W(lg="all")])
    stamp("Lepub")
    weave(ring_ops(4), stage_reads(2) + [W(lg="all")])
    weave(ring_ops(5) + ring_ops(6), coef_ops() + (stage_reads(3) if nres == 5 else []) + (stage_reads(4) if order in ("c", "d") else []))
    if order == "m":
        run(stage_reads(4) + [W(lg="all")] + ring_ops(7))
    else:
        run(e_loads())
        if not one:
            run(poll1_ops())
        finish(False)
    k.wait(lg="all")
    snap_light = k.snapshot()

    k("L_join:")
    if order == "m":
        k.merge(snap_join, snap_light, ("rb5", "rb6", "rb7"))
        probe("join")
        r8 = ring_ops(8)
        at = {"pre": 0, "mid": 5, "post": len(r8)}[ep_pos]
        run(r8[:at] + poll1_ops() + e_loads() + r8[at:])
        blocks = [a_ops(b) for b in range(a_first)]
        if a_lead:
            probe("r8")
            poll_check("poll1")
            probe("p1")
            run(blocks.pop(0))
            probe("a0")
            carry_write()
        else:
            carry_write()
            poll_check("poll1")
        stamp("poll")
        fx = fix_ops()
        weave(sum(blocks, []), fx[:-8])
        run(fx[-8:])
    else:
      k.merge(snap_join, snap_light, tuple(f"rb{b}" for b in range(nres, nres + (3 if order == "b" else 4))) + ("hst",) + (("poll2",) if p2_mid else ()) + tuple(f"ab{b}_{j}" for b in range(a_first if one else dist) for j in range(4)))
    stamp("stored")

    def b_reads(n):
        b, j = divmod(n, 4)
        hi = RING[b] >= HIGH
        off = RING[b] - (HIGH if hi else 0)
        if b < nres:
            return []
        if b < 7:
            return [(f"ds_read_b64_tr_b16 {a(FR+8*j+4*c+2*rd,2)}, {v(W2R+2*hi+c)} offset:{off + j*2048 + rd*1024}", f"f{n}")
                    for c in range(2) for rd in range(2)]
        return [(f"ds_read_b128 {a(FR+8*j+4*c,4)}, {v(CR+4*hi+j)} offset:{off + c*4096}", f"f{n}") for c in range(2)]

    if p2_at == 1 and not p2_mid and not one:
        run(poll2_ops())

    def addend_ops():
        o = [(f"s_lshr_b32 s3, s{sG}, 3\ns_lshl_b32 s3, s3, 1\ns_lshr_b32 s{sCNT}, s{sW}, 1\ns_add_u32 s3, s3, s{sCNT}\ns_lshl_b32 s3, s3, 7\ns_add_u32 s3, s3, {SCR}\n"
              f"v_lshlrev_b32 {v(TM+1)}, 6, {v(HF)}\nv_add_u32 {v(TM+1)}, s3, {v(TM+1)}", None)]
        for q in range(4):
            o += ops_of(f"ds_read_b128 {v(T+4*q,4)}, {v(TM+1)} offset:{q*16}\nds_read_b128 {v(T+16+4*q,4)}, {v(TM+1)} offset:{512+q*16}", "ast")
        P = TM + 2
        o.append((f"s_lshr_b32 s3, s{sW12}, 1\ns_add_u32 s3, s3, {XSL}\nv_bfe_u32 {v(P)}, {v(L)}, 2, 2\nv_lshl_add_u32 {v(P)}, {v(HF)}, 4, {v(P)}\nv_lshlrev_b32 {v(P)}, 6, {v(P)}\n"
                  f"v_bfe_u32 {v(P+1)}, {v(L)}, 4, 1\nv_lshl_add_u32 {v(P)}, {v(P+1)}, 5, {v(P)}\nv_and_b32 {v(P+1)}, 3, {v(L)}\nv_lshl_add_u32 {v(P)}, {v(P+1)}, 3, {v(P)}\nv_add_u32 {v(P)}, s3, {v(P)}", None))
        o.append(W(vm="xs"))
        for q in range(4):
            o += ops_of(f"ds_read_b64_tr_b16 {v(XS+16+2*q,2)}, {v(P)} offset:{q*256}", "ast")
        o.append(W(lg="ast"))
        for r in range(16):
            unpack = f"v_and_b32 {v(XS+r)}, 0xffff0000, {v(XS+16+r//2)}" if r & 1 else f"v_lshlrev_b32 {v(XS+r)}, 16, {v(XS+16+r//2)}"
            o += ops_of(f"{unpack}\nv_sub_f32 {v(T+16+r)}, {v(XS+r)}, {v(T+16+r)}\n"
                        f"v_mul_f32 {v(T+16+r)}, {v(T+16+r)}, {v(T+r)}\nv_fmac_f32 {v(XS+r)}, {v(T+16+r)}, {v(DSK)}")
        return o

    a_next = a_first if one else dist
    for b in range(11):
        nxt = []
        if b == f3_at and not f3_step:
            flag_publish(FLC, "hst")
            stamp("flag")
        if b == p2_at and not one:
            poll_check("poll2")
            stamp("poll2")
        if b == p3_at:
            poll_check("poll3")
            stamp("poll3")
        while a_next <= min(b + dist, 10) and b >= (0 if a_next < (7 if one else 3) else p2_at if a_next < 7 else p3_at):
            nxt += a_ops(a_next); a_next += 1
        if b == p2_at - 2 and not p2_mid and not one:
            nxt += poll2_ops()
        if b == (p3_at - 2 if p3_issue is None else p3_issue):
            nxt = nxt + poll3_ops() if p3_issue is None else poll3_ops() + nxt
        if nres == 5:
            if b in (6, 7):
                nxt = ring_ops(b + 3) + nxt
            if order == "b" and b == 2:
                nxt += ring_ops(8)
        elif 7 <= b + dist < (9 if "rb" in ablate else 11):
            nxt += ring_ops(b + dist)
        if b == xs_at:
            nxt += xs_ops()
        if "xchg" in ablate and b == 6:
            nxt += [(f"s_lshl_b32 s3, s2, 2\ns_add_u32 s3, s3, s{sW}\ns_lshl_b32 s{sKW}, s3, 12\ns_add_u32 s{sKW}, s{sKW}, {32 << 20}", None)]
            nxt += [(f"buffer_store_dwordx4 {v(MI,4)}, {v(L16)}, {s(rWS,4)}, s{sKW} offen offset:{q*1024} sc1", "xst") for q in range(4)]
        if "xchg" in ablate and b == 9:
            nxt += [(f"s_xor_b32 s{sKW}, s{sKW}, {2 << 14}", None)]
            nxt += [(f"buffer_load_dwordx4 {v(MI+4*q,4)}, {v(L16)}, {s(rWS,4)}, s{sKW} offen offset:{q*1024} sc1", "xld") for q in range(4)]
        val = spread(addend_ops(), 32)[16 * (b - xs_at - 2):16 * (b - xs_at - 1)] if 2 <= b - xs_at <= 3 else [[]] * 16
        mm = spread_mem(nxt, 16) if nxt else [[]] * 16
        if b == 10 and tail_major:
            break
        for j in range(4):
            n = 4 * b + j
            rd = [[]] * 4
            if 4 * nres <= n + 1 < 44:
                if j == 3 and not ("rb" in ablate and b >= 8):
                    k.wait(vm=f"rb{b+1}")
                rd = spread(b_reads(n + 1), 4)
            if b == f3_at and f3_step and j == f3_step:
                flag_publish(FLC, "hst")
            k.wait(vm=f"ab{b}_{j}", lg=f"f{n}" if b >= nres else None)
            if j == 0 and b in (0, 8):
                stamp(f"blk{b}")
            for m in range(2):
                for c in range(2):
                    bop = (RESB[b] if b < nres else FR) + 8 * j + 4 * c
                    mfma(ACC + 32 * m + 16 * c, a(32 * (b % NA) + 8 * j + 4 * m, 4), a(bop, 4), "0" if n == 0 else None)
                    run(rd[2 * m + c]); run(mm[4 * j + 2 * m + c]); run(val[4 * j + 2 * m + c])
            probe(f"b{b}_{j}")
    GA = TM
    pre = ops_of(f"v_add_u32 {v(GA)}, s{sW13}, {v(L16)}")
    for u in (1, 2, 3):
        pre += ops_of(f"v_xor_b32 {v(GA+u)}, {u << 13}, {v(GA)}")
    pre.append((f"s_lshl_b32 s{t2}, s{sM}, 1\ns_lshr_b32 s3, s{sW}, 1\ns_add_u32 s{t2}, s{t2}, s3\ns_lshl_b32 s{t2}, s{t2}, 16\n"
                f"s_lshl_b32 s3, s{sN}, 8\ns_add_u32 s{t2}, s{t2}, s3\ns_and_b32 s3, s{sW}, 1\ns_lshl_b32 s3, s3, 7\ns_add_u32 s{t2}, s{t2}, s3", None))
    pre += ops_of(f"v_lshlrev_b32 {v(TM+4)}, 15, {v(HF)}\nv_lshl_add_u32 {v(TM+4)}, {v(LR)}, 2, {v(TM+4)}")
    wr = lambda u: [(f"ds_write_b128 {v(GA)}, {v(ACC+16*u+4*q,4)} offset:{(u>>1)*SLOT + (u&1)*4096 + q*1024}", "fw") for q in range(4)]
    if tail_major:
        for j in (1, 2, 3):
            run(b_reads(40 + j))
        run(pre)
        for u in (3, 2, 1, 0):
            for j in range(4):
                k.wait(vm=f"ab10_{j}", lg=f"f{40+j}")
                mfma(ACC + 16 * u, a(32 * (10 % NA) + 8 * j + 4 * (u >> 1), 4), a(FR + 8 * j + 4 * (u & 1), 4))
                late = {(2, 3): wr(3)[:1], (1, 0): wr(3)[1:2], (1, 1): wr(3)[2:3], (1, 2): wr(3)[3:], (1, 3): wr(2)[:1], (0, 0): wr(2)[1:2], (0, 1): wr(2)[2:3], (0, 2): wr(2)[3:],
                        (0, 3): wr(1)}
                run(late.get((u, j), []))
        stamp("p2done")
    else:
        stamp("p2done")
        run(pre)
        for u in (1, 2, 3):
            run(wr(u))
    k(f"s_mov_b32 s{t0}, 0x3f317218")
    k.wait(lg="all")
    k("s_barrier")
    for q in range(4):
        for u in (1, 2, 3):
            k(f"ds_read_b128 {v(ACC+16*u+4*q,4)}, {v(GA+u)} offset:{(u>>1)*SLOT + (u&1)*4096 + q*1024}", f"fr{q}")
    for q in range(4):
        k.wait(lg=f"fr{q}")
        for i in (0, 2):
            r = 4 * q + i
            k(f"v_pk_add_f32 {v(ACC+r,2)}, {v(ACC+r,2)}, {v(ACC+16+r,2)}\nv_pk_add_f32 {v(ACC+32+r,2)}, {v(ACC+32+r,2)}, {v(ACC+48+r,2)}")
        for i in (0, 2):
            r = 4 * q + i
            k(f"v_pk_add_f32 {v(ACC+r,2)}, {v(ACC+r,2)}, {v(ACC+32+r,2)}\nv_pk_fma_f32 {v(ACC+r,2)}, {v(ACC+r,2)}, {s(t0,2)}, {v(XS+r,2)} op_sel_hi:[1,0,1]")
        for i in range(4):
            r = 4 * q + i
            k(f"buffer_store_dword {v(ACC+r)}, {v(TM+4)}, {s(rOUT,4)}, s{t2} offen offset:{(r&1)*2048} {out_flags}", "out")
            if r & 1:
                k(f"s_add_u32 s{t2}, s{t2}, 4096")
    k(f"s_cmp_lg_u32 s{sC}, 15\ns_cbranch_scc1 L_fin\ns_or_b32 s3, s{sG}, s{sW}\ns_cmp_lg_u32 s3, 0\ns_cbranch_scc1 L_fin")
    k(f"v_mov_b32 {v(TM+5)}, s{sTAG}\ns_mov_b64 exec, 1")
    k(f"buffer_store_dword {v(TM+5)}, off, {s(rWS,4)}, 0 sc1\ns_mov_b64 exec, -1")
    k("L_fin:")
    if diag:
        k("s_waitcnt vmcnt(0)")
        stamp("end")
        for i in range(len(seen)):
            k(f"v_writelane_b32 {v(DG)}, s{FINE[i]}, {16+i}")
        k(f"s_lshl_b32 s3, s2, 2\ns_add_u32 s3, s3, s{sW}\ns_lshl_b32 s3, s3, 8\ns_add_u32 s3, s3, {DIAG}\nv_lshlrev_b32 {v(TM)}, 2, {v(L)}")
        k(f"buffer_store_dword {v(DG)}, {v(TM)}, {s(rWS,4)}, s3 offen sc1")
        if amplify == "skew":
            k(f"s_cmp_lg_u32 s2, {amp_wg}\ns_cbranch_scc1 L_end\nv_readlane_b32 s14, {v(DG)}, {len(stamps)-1}\ns_nop 3")
            k("L_w:\ns_memrealtime s[34:35]\ns_waitcnt lgkmcnt(0)\ns_sub_u32 s3, s34, s14\ns_cmp_lt_u32 s3, 500\ns_cbranch_scc1 L_w")
            k(f"v_lshlrev_b32 {v(TM)}, 10, {v(L)}\ns_mov_b32 s3, {DIAG}")
            for q in range(4):
                k(f"buffer_load_dword {v(TM+4+q)}, {v(TM)}, {s(rWS,4)}, s3 offen sc1\ns_add_u32 s3, s3, 65536")
            k(f"s_waitcnt vmcnt(0)\nv_min_u32 {v(TM+1)}, {v(TM+4)}, {v(TM+5)}\nv_min3_u32 {v(TM+1)}, {v(TM+1)}, {v(TM+6)}, {v(TM+7)}")
            k(f"v_max_u32 {v(TM+2)}, {v(TM+4)}, {v(TM+5)}\nv_max3_u32 {v(TM+2)}, {v(TM+2)}, {v(TM+6)}, {v(TM+7)}")
            for r in (8, 4, 2, 1):
                k(f"v_min_u32_dpp {v(TM+1)}, {v(TM+1)}, {v(TM+1)} row_ror:{r} row_mask:0xf bank_mask:0xf\nv_max_u32_dpp {v(TM+2)}, {v(TM+2)}, {v(TM+2)} row_ror:{r} row_mask:0xf bank_mask:0xf")
            k(f"s_nop 1\nv_readlane_b32 s12, {v(TM+1)}, 0\nv_readlane_b32 s13, {v(TM+2)}, 0\ns_nop 3\ns_sub_u32 s13, s13, s12\ns_min_u32 s13, s13, 1000\ns_lshl_b32 s13, s13, 2\ns_add_u32 s13, s13, 600")
            k("L_amp:\ns_memrealtime s[34:35]\ns_waitcnt lgkmcnt(0)\ns_sub_u32 s3, s34, s14\ns_cmp_lt_u32 s3, s13\ns_cbranch_scc1 L_amp")
        elif amplify:
            k(f"s_cmp_lg_u32 s2, {amp_wg}\ns_cbranch_scc1 L_end")
            k(f"v_readlane_b32 s12, {v(DG)}, 0\nv_readlane_b32 s13, {v(DG)}, {stamps.index(amplify)}\nv_readlane_b32 s14, {v(DG)}, {len(stamps)-1}\ns_nop 3")
            k("s_sub_u32 s13, s13, s12\ns_min_u32 s13, s13, 5000\ns_lshl_b32 s13, s13, 2")
            k("L_amp:\ns_memrealtime s[34:35]\ns_waitcnt lgkmcnt(0)\ns_sub_u32 s3, s34, s14\ns_cmp_lt_u32 s3, s13\ns_cbranch_scc1 L_amp")
    k("L_end:")
    k("s_endpgm")
    for text in cold:
        k(text)

    body, nops = pad(k.lines)
    hdr = open("parallel_sum__ssm_conv_s5__dense_activation_mish__prompt.s.ref").read().split("; Override")[0]
    hdr += """;
; One launch, 256 workgroups of 4 waves (one per CU, all resident). Workgroup (c, g): rows 128c..128c+127,
; scan channels 32g..32g+31 and, unless g & 7 == 3, 128 FFN columns. Raw x is the matrix operand; the
; LayerNorm mean and the bias are one extra k-step, the row scale is applied to the accumulators. The scan is
; exact: 16-step segments in registers, segment and tile end states combined with powers of lambda. Mish
; activations and states go to d_ws as bf16 matrix operands; each workgroup then finishes a 64 x 64 output tile.
; Hand-offs use write-through stores and tags derived from a generation word in d_ws that each launch advances.
"""
    text = hdr + "; @launch grid=(256,1,1) block=(256,1,1) lds=163840\n"
    text += f'.amdgcn_target "amdgcn-amd-amdhsa--gfx950"\n.text\n.globl {KNAME}\n.p2align 8\n.type {KNAME},@function\n{KNAME}:\n'
    text += "\n".join(body) + "\n"
    text += f""".section .rodata,"a"
.p2align 6
.amdhsa_kernel {KNAME}
  .amdhsa_next_free_vgpr 512
  .amdhsa_next_free_sgpr 102
  .amdhsa_accum_offset 256
  .amdhsa_group_segment_fixed_size 0
  .amdhsa_kernarg_size 128
  .amdhsa_user_sgpr_count 2
  .amdhsa_user_sgpr_kernarg_segment_ptr 1
  .amdhsa_system_sgpr_workgroup_id_x 1
.end_amdhsa_kernel
"""
    return text, dict(nops=nops, vgprs=V.next, stamps=stamps, seen=seen, lines=len(body), regs=V.names)


if __name__ == "__main__":
    import json
    kw = json.loads(sys.argv[2]) if len(sys.argv) > 2 else {}
    text, info = gen(**kw)
    open(sys.argv[1], "w").write(text)
    print({q: info[q] for q in ("nops", "vgprs", "lines")})
```

```python
import sys
from emit import K, Alloc, rng, pad

KNAME = "parallel_sum__ssm_conv_s5__dense_activation_mish__prompt_kernel"
EPOCH, STATS, XID, CS, EG, FLA, FLB, FLC, AF = 0, 0x10000, 0x20000, 0x30000, 0x40000, 0x80000, 0xA0000, 0xC0000, 0x100000
DIAG = 200 << 20
MT = 176 * 1024
SLOT = 40960
HIGH = 2 * SLOT
SCR = 32768
SCR_EX, SCR_CX = SCR + 1024, SCR + 4096
SCR_HT = SLOT + 32768
RING = {b: SLOT * q for b, q in enumerate((0, 1, 2, 3, 0, 1, 2, 3, 0, 1, 2))}
RES = 160
LOG2E = 0x3fb8aa3b
SPIN = 1 << 16


def weight(op):
    if callable(op):
        return 0.2
    w = 0.0
    for l in op[0].split("\n"):
        mn = l.split()[0]
        w += 2 if mn in ("v_exp_f32", "v_rcp_f32", "v_sin_f32", "v_cos_f32") else 0.3 if mn.startswith("s_") else 1
    return w


def cost(op):
    if callable(op):
        return 3
    c = 0.0
    for l in op[0].split("\n"):
        mn = l.split()[0]
        c += (8.3 if mn in ("v_exp_f32", "v_rcp_f32", "v_sin_f32", "v_cos_f32") else 13 if mn.startswith("buffer_") else
              1 if mn.startswith("s_") else 4.3)
    return c


def spread(ops, n):
    total = sum(map(weight, ops)) or 1
    out = [[] for _ in range(n)]
    acc = 0.0
    for op in ops:
        out[min(n - 1, int(acc / total * n + 1e-9))].append(op)
        acc += weight(op)
    return out


def spread_mem(ops, n):
    groups, cur = [], []
    for op in ops:
        cur.append(op)
        if not callable(op) and op[1] is not None:
            groups.append(cur); cur = []
    if cur:
        groups[-1] += cur
    out = [[] for _ in range(n)]
    for i, g in enumerate(groups):
        out[i * n // len(groups)] += g
    return out


def gen(mode="global", mapping="x4g8", diag=False, rot="none", amplify=None, amp_wg=0, out_flags="sc1", ablate=(), l2pf=False,
        pf_at=4, gran_at=7, look=2, fine=(), p2_at=2, p3_at=5, dist=2, xs_at=4, tail_major=True, far_at=2, mt_pad=0, lite=3, trickle=True, budget=33, pre3=True, f3_at=1, p2_mid=False, backoff=0, early_a=0, trk_w2=None, code_pf=True, krot=False, brot=False, trk_c=None, nres=5, one=True, poll_pos="pre", a_first=2, af_mb=1, order="m", f12_at=0, m_r6=True, n_pre=2, flag_first=False, ep_pos="pre", a_lead=True, f12_late=40, f3_step=2, p3_issue=4, n_before=999, nt="sl", far2_at=None, cc_at=None, far_spread=True, far_plan=None, mid_at=None, mid="xw", nt_st=1, stats_at=1, stats_nt="", cs_late=True, cs_nt="l", cs_pos=2, trk_pre=0, pre4=False, par_late=True, pre2=False):
    NT = lambda c: "nt " if c in nt else ""
    AF = af_mb << 20
    assert nres == 3 or dist == 2
    RESB = {0: 160, 1: 192, 2: 224} if nres == 3 else {0: 128, 1: 160, 2: 192, 3: 224, 4: 96}
    NA = 4 if nres == 3 else 3
    MT = 176 * 1024 + mt_pad
    npre = 2
    k = K()
    V = Alloc("v", 1, 256)
    v = lambda r, n=1: rng("v", r, n)
    a = lambda r, n=1: rng("a", r, n)
    s = lambda r, n=1: rng("s", r, n)
    st = "sc1" if mode == "global" else ""
    xid = mode != "global"

    sC, sG, sW, sROT, sM, sN, sTAG, sLOC = 4, 5, 6, 7, 8, 9, 10, 11
    t0, t1, t2, t3 = 12, 13, 14, 15
    pX, pLR, pLI, pBR, pBI, pCR, pCI, pDT, pDS, pW1, pB1, pW2, pOUT, pWS = 16, 18, 20, 22, 24, 26, 28, 30, 32, 36, 38, 40, 42, 46
    rX, rW1, rB, rE, rW2, rCR, rCI, rWS, rOUT = 48, 52, 56, 60, 64, 68, 72, 76, 80
    sXB, sBB, sWB, sA0, sP1, sKW, sCNT, sAF, sQ, sW12, sW13 = 84, 85, 86, 87, 88, 89, 90, 91, 92, 93, 94
    sHI, sXCC, sF, sP0, sROT2, sR3, sRB = 98, 100, 97, 96, 17, 16, 11
    sBE, sBX, sBL, sAE, sAX, sAL, sGE, sGL, sJ, sXD = 18, 19, 20, 21, 22, 23, 24, 25, 95, 101
    sD = 34

    L, LR, HF, L16, TAU = V("l"), V("lr"), V("hf"), V("l16"), V("tau")
    XD, CD, WD, W2D = V("xd", 4), V("cd", 4), V("wd", 4), V("w2d", 4)
    XR, WR, BQ, CR, W2R = V("xr", 4), V("wr", 4), V("bq", 4), V("cr", 8), V("w2r", 4)
    LAR, LAI, NLAI, L16R, L16I, NL16I, PWR, PWI, L2R, L2I, SCRR, SCI, CFR, NCFR, NCFI = [V(x) for x in
        "lar lai nlai l16r l16i nl16i pwr pwi l2r l2i scr sci cfr ncfr ncfi".split()]
    PR, PI, MF = V("pr"), V("pi"), V("mf")
    ACC, SS, T = V("acc", 64, 4), V("ss", 32, 4), V("t", 32, 4)
    XA, XB, WE = V("xa", 4, 4), V("xb", 4, 4), V("we", 12, 4)
    MI = V("mish", 16, 4)
    TM = V("tmp", 20, 4)
    C1, RS = V("c1", 1, 2), V("rs")
    DSK = V("dsk")
    BI = V("bias", 2)
    DG = V("diag")
    AL = V("al") if krot else L16
    FR = 128
    RSV, EK, XS = MI, TM, SS

    stamps = []
    def stamp(name):
        probe(name)
        if diag and (not fine or name == "end"):
            stamps.append(name)
            k(f"s_memrealtime s[{sD}:{sD+1}]\ns_memtime s[44:45]\ns_waitcnt lgkmcnt(0)")
            k.lg_done = len(k.lg)
            k(f"v_writelane_b32 {v(DG)}, s{sD}, {len(stamps)-1}\nv_writelane_b32 {v(DG)}, s44, {len(stamps)+31}")

    FINE = (26, 28, 30, 32, 36, 38, 40, 42)
    seen = []
    def probe(key):
        if key in fine and key not in seen:
            k(f"s_memtime s[{FINE[len(seen)]}:{FINE[len(seen)]+1}]")
            seen.append(key)

    def srd(d, p, nbytes):
        return f"s_mov_b32 s{d}, s{p}\ns_mov_b32 s{d+1}, s{p+1}\ns_mov_b32 s{d+2}, {nbytes:#x}\ns_mov_b32 s{d+3}, 0x20000"

    def mfma(d, x, y, c=None):
        k(f"v_mfma_f32_32x32x16_bf16 {v(d,16)}, {x}, {y}, {v(d,16) if c is None else c}")

    def untracked(text):
        n = len(k.vm)
        k(text)
        del k.vm[n:]

    def run(ops):
        for op in ops:
            if callable(op):
                op()
            else:
                k(*op)

    def ops_of(text, tag=None):
        return [(l, tag) for l in text.split("\n")]

    W = lambda **kw: (lambda: k.wait(**kw))

    note = lambda text: k("; ---- " + text)
    k("s_cmp_ge_u32 s2, 256\ns_cbranch_scc1 L_end")
    k("s_load_dwordx16 s[16:31], s[0:1], 0\ns_load_dwordx16 s[32:47], s[0:1], 64")
    if diag:
        k("s_memrealtime s[12:13]\ns_memtime s[10:11]")
    A_, B_, C_, D_ = TM, TM + 1, TM + 2, TM + 3
    k(f"v_and_b32 {v(L)}, 63, v0\nv_lshrrev_b32 {v(A_)}, 6, v0\nv_and_b32 {v(LR)}, 31, v0")
    k(f"v_readfirstlane_b32 s{sW}, {v(A_)}")
    k(f"v_lshrrev_b32 {v(HF)}, 5, {v(L)}\nv_lshlrev_b32 {v(L16)}, 4, {v(L)}")
    k(f"s_and_b32 s14, s2, 7\ns_lshr_b32 s15, s2, 3\ns_mov_b32 s{sXD}, s14\ns_mov_b32 s{sJ}, s15")
    if code_pf:
        k(f"s_getpc_b64 s[96:97]\nL_pc:\ns_sub_u32 s96, s96, L_pc-{KNAME}\ns_subb_u32 s97, s97, 0")
        k(f"s_lshl_b32 s3, s{sW}, 5\ns_add_u32 s3, s3, s15\ns_lshl_b32 s3, s3, 8\nv_lshl_add_u32 {v(TM+19)}, {v(L)}, 2, s3\nv_min_u32 {v(TM+19)}, L_end-{KNAME}, {v(TM+19)}")
        k(f"global_load_dword a255, {v(TM+19)}, s[96:97] {NT('c')}", "pf")
    if mapping == "rows":
        k(f"s_and_b32 s3, s15, 1\ns_lshl_b32 s{sC}, s14, 1\ns_or_b32 s{sC}, s{sC}, s3\ns_lshr_b32 s{sG}, s15, 1")
    elif mapping == "x8g4":
        k(f"s_lshr_b32 s3, s14, 2\ns_lshl_b32 s3, s3, 3\ns_and_b32 s{sC}, s15, 7\ns_or_b32 s{sC}, s{sC}, s3")
        k(f"s_and_b32 s3, s14, 3\ns_lshl_b32 s3, s3, 2\ns_lshr_b32 s{sG}, s15, 3\ns_or_b32 s{sG}, s{sG}, s3")
    elif mapping == "x4g8":
        k(f"s_lshr_b32 s3, s14, 1\ns_lshl_b32 s3, s3, 2\ns_and_b32 s{sC}, s15, 3\ns_or_b32 s{sC}, s{sC}, s3")
        k(f"s_and_b32 s3, s14, 1\ns_lshl_b32 s3, s3, 3\ns_lshr_b32 s{sG}, s15, 2\ns_or_b32 s{sG}, s{sG}, s3")
    k({"cg": f"s_add_u32 s{sROT}, s{sC}, s{sG}\ns_and_b32 s{sROT}, s{sROT}, 7", "none": f"s_mov_b32 s{sROT}, 0",
       "c": f"s_and_b32 s{sROT}, s{sC}, 7", "g": f"s_and_b32 s{sROT}, s{sG}, 7"}[rot])
    k(f"s_cmp_gt_u32 s{sG}, {lite}\ns_subb_u32 s{sF}, s{sG}, 0\ns_cmp_gt_u32 s{sG}, {lite + 8}\ns_subb_u32 s{sF}, s{sF}, 0")
    k(f"s_lshl_b32 s{sW12}, s{sW}, 12\ns_lshl_b32 s{sW13}, s{sW}, 13")
    k(f"v_lshrrev_b32 {v(A_)}, 3, {v(L)}")
    k(f"v_and_b32 {v(B_)}, 7, {v(L)}\nv_lshrrev_b32 {v(C_)}, 4, {v(L)}")
    k(f"v_xor_b32 {v(B_)}, {v(B_)}, {v(C_)}\nv_lshlrev_b32 {v(B_)}, 4, {v(B_)}")
    k(f"v_and_b32 {v(C_)}, 3, {v(A_)}\nv_lshl_add_u32 {v(C_)}, {v(HF)}, 4, {v(C_)}")
    k(f"v_lshl_add_u32 {v(XD)}, {v(C_)}, 10, {v(B_)}")
    k(f"v_xor_b32 {v(XD+1)}, 64, {v(XD)}\nv_add_u32 {v(XD+2)}, 6144, {v(XD)}")
    k(f"v_add_u32 {v(XD+3)}, 9216, {v(XD+1)}\nv_add_u32 {v(XD+1)}, 3072, {v(XD+1)}")
    k(f"v_lshl_add_u32 {v(CD)}, {v(A_)}, 10, {v(B_)}")
    k(f"v_xor_b32 {v(CD+1)}, 64, {v(CD)}\nv_add_u32 {v(CD+2)}, {2*7168}, {v(CD)}\nv_add_u32 {v(CD+3)}, {3*7168}, {v(CD+1)}\nv_add_u32 {v(CD+1)}, 7168, {v(CD+1)}")
    k(f"v_lshlrev_b32 {v(A_)}, 10, {v(HF)}\nv_lshl_add_u32 {v(A_)}, {v(LR)}, 4, {v(A_)}")
    k(f"s_lshl_b32 s{sXB}, s{sC}, 17\ns_lshl_b32 s3, s{sW}, 15\ns_add_u32 s{sXB}, s{sXB}, s3")
    k(f"s_and_b32 s3, s{sW}, 1\ns_lshl_b32 s3, s3, 14\ns_lshl_b32 s{sBB}, s{sG}, 15\ns_add_u32 s{sBB}, s{sBB}, s3")
    k(f"v_lshrrev_b32 {v(C_)}, 4, {v(L)}\nv_and_b32 {v(D_)}, 15, {v(L)}\nv_lshlrev_b32 {v(B_)}, 2, {v(C_)}")
    k(f"v_xor_b32 {v(D_)}, {v(D_)}, {v(B_)}\nv_lshlrev_b32 {v(D_)}, 4, {v(D_)}\nv_mul_u32_u24 {v(C_)}, 3584, {v(C_)}\nv_add_u32 {v(WD)}, {v(C_)}, {v(D_)}")
    for i in (1, 2, 3):
        k(f"v_add_u32 {v(WD+i)}, {i*13312}, {v(WD)}")
    k(f"s_mul_i32 s{sWB}, s{sW}, {16*3584}\ns_lshl_b32 s3, s{sF}, 8\ns_add_u32 s{sWB}, s{sWB}, s3")
    k(f"s_lshl_b32 s3, s{sC}, 4\ns_add_u32 s3, s3, s{sG}\ns_lshl_b32 s3, s3, 2\ns_add_u32 s3, s3, s{sW}\ns_lshl_b32 s{t2}, s3, 11")
    k(f"s_lshl_b32 s3, s{sG}, 5\nv_add_lshl_u32 {v(B_)}, {v(LR)}, s3, 1")
    k(f"s_lshl_b32 s3, s{sF}, 7\nv_add_lshl_u32 {v(C_)}, {v(L)}, s3, 1\nv_min_u32 {v(C_)}, 3454, {v(C_)}")
    k(f"s_and_b32 s{sN}, s{sG}, 7\ns_lshl_b32 s3, s{sN}, 1\ns_and_b32 s{t3}, s{sW}, 1\ns_or_b32 s3, s3, s{t3}\ns_lshl_b32 s3, s3, 5\nv_add_lshl_u32 {v(D_)}, {v(LR)}, s3, 1")
    k("s_waitcnt lgkmcnt(0)")
    if diag:
        k(f"v_writelane_b32 {v(DG)}, s12, 0\nv_writelane_b32 {v(DG)}, s10, 32"); stamps.append("start")
    k(srd(rX, pX, 2 << 20))
    SR = TM + 4
    PL = MI
    if not par_late:
        k(f"global_load_ushort {v(PL)}, {v(B_)}, {s(pLR,2)} {NT('p')}\nglobal_load_ushort {v(PL+1)}, {v(B_)}, {s(pLI,2)} {NT('p')}\nglobal_load_ushort {v(PL+2)}, {v(B_)}, {s(pDT,2)} {NT('p')}", "par")
    def srow_ops(late):
        A, fl = (TM + 14, stats_nt) if late else (A_, None)
        f0, f1 = (fl, fl) if late else (NT('s') or NT('u'), NT('s') or NT('v'))
        pre = f"v_lshlrev_b32 {v(A)}, 10, {v(HF)}\nv_lshl_add_u32 {v(A)}, {v(LR)}, 4, {v(A)}\n" if late else ""
        return [(pre + f"buffer_load_dwordx4 {v(SR,4)}, {v(A)}, {s(rX,4)}, s{sRB} offen {f0}", "srow"),
                (f"buffer_load_dwordx4 {v(SR+4,4)}, {v(A)}, {s(rX,4)}, s{sRB} offen offset:512 {f1}", "srow")]

    k(f"s_mov_b32 s{sRB}, s{t2}")
    if stats_at is None:
        run(srow_ops(False))
    k(f"s_load_dword s{sTAG}, s[{pWS}:{pWS+1}], {EPOCH}")
    k(srd(rW1, pW1, 512 * 3584))
    k(f"s_cmp_lt_u32 s{sW}, 2\ns_cselect_b32 s{rB}, s{pBR}, s{pBI}\ns_cselect_b32 s{rB+1}, s{pBR+1}, s{pBI+1}\ns_mov_b32 s{rB+2}, 0x80000\ns_mov_b32 s{rB+3}, 0x20000")

    def stage_ops(stage, full):
        slot = (stage % 4) * SLOT
        tag = f"st{stage}"
        ops = [(f"s_xor_b32 s3, s{sROT}, {stage}\ns_mul_i32 s{sKW}, s3, {64*3584}\ns_lshl_b32 s3, s3, 7\ns_add_u32 s{t1}, s3, s{sBB}\ns_add_u32 s{t0}, s3, s{sXB}\n"
                f"s_add_u32 s{sKW}, s{sKW}, s{sWB}\ns_add_u32 m0, s{sW12}, {slot}", None)]
        ops += [(f"buffer_load_dwordx4 {v(XD+i)}, {s(rX,4)}, s{t0} offen offset:{i*1024} {NT('x') or (NT('X') if stage < nt_st else '')}lds", tag) for i in range(4)]
        ops += [(f"s_lshr_b32 s3, s{sW12}, 1\ns_add_u32 m0, s3, {slot + 32768}", None)]
        ops += [(f"buffer_load_dwordx4 {v(CD+i)}, {s(rB,4)}, s{t1} offen offset:{i*1024} {NT('b') or (NT('B') if stage < nt_st else '')}lds", tag) for i in range(2)]
        if full:
            ops += [(f"s_add_u32 m0, s{sW12}, {slot + 16384}", None)]
            ops += [(f"buffer_load_dwordx4 {v(WD+i)}, {s(rW1,4)}, s{sKW} offen offset:{i*1024} {NT('w') or (NT('V') if stage < nt_st else '')}lds", tag) for i in range(4)]
        return ops

    def turn(i, shift):
        if not brot:
            return f"s_mov_b32 s3, {i << shift}"
        return f"s_add_u32 s3, s{sR3}, {i}\ns_cmp_ge_u32 s3, 3\ns_cselect_b32 s{sCNT}, 3, 0\ns_sub_u32 s3, s3, s{sCNT}\ns_lshl_b32 s3, s3, {shift}"

    def ring_ops(b):
        if "pair" in ablate and b >= 6:
            return [(f"buffer_load_dword a254, {v(L16)}, {s(rW2,4)}, 0 offen", f"rb{b}")]
        tag = f"rb{b}"
        if b < 7:
            src, add = (sBE, b) if b < 3 else (sBX, 0) if b == 3 else (sBL, b - 4)
            head = f"s_mov_b32 s{t0}, s{src}" if b == 3 else turn(add, 17) + f"\ns_add_u32 s{t0}, s{src}, s3"
            if one:
                head = f"s_add_u32 s{t0}, s{sBE}, {b*65536}"
            step = f"s_xor_b32 s{t0}, s{t0}, 32768"
            r, D = rW2, W2D
        else:
            head = (f"s_lshl_b32 s{t0}, s{sN}, 1\ns_and_b32 s3, s{sW}, 1\ns_or_b32 s{t0}, s{t0}, s3\ns_lshl_b32 s{t0}, s{t0}, 15\n"
                    f"s_lshl_b32 s3, s{sW}, 8\ns_add_u32 s{t0}, s{t0}, s3")
            step = f"s_xor_b32 s{t0}, s{t0}, 32768"
            if brot:
                head += (f"\ns_xor_b32 s3, s{sN}, {b-7}\ns_bitcmp1_b32 s3, 1\ns_cselect_b32 s{rB}, s{rCI}, s{rCR}\ns_cselect_b32 s{rB+1}, s{rCI+1}, s{rCR+1}"
                         f"\ns_and_b32 s3, s3, 1\ns_lshl_b32 s3, s3, 7\ns_add_u32 s{t0}, s{t0}, s3")
                r, D = rB, CD
            else:
                if (b - 7) & 1:
                    head += f"\ns_add_u32 s{t0}, s{t0}, 128"
                r, D = (rCI if b >= 9 else rCR), CD
        ops = [(head + f"\ns_add_u32 m0, s{sW13}, {RING[b]}", None)]
        for i in range(8):
            flat = krot and b < 7
            if i == 4:
                ops.append((f"s_add_u32 m0, m0, {1024 if flat else 4096}\n{step}", None))
            elif i and flat:
                ops.append(("s_add_u32 m0, m0, 1024", None))
            ops.append((f"buffer_load_dwordx4 {v(D+(i&3))}, {s(r,4)}, s{t0} offen offset:{0 if flat else (i&3)*1024} {NT('r')}lds", tag))
        return ops

    def par_loads():
        if par_late:
            k(f"global_load_ushort {v(PL)}, {v(B_)}, {s(pLR,2)} {NT('p')}\nglobal_load_ushort {v(PL+1)}, {v(B_)}, {s(pLI,2)} {NT('p')}\nglobal_load_ushort {v(PL+2)}, {v(B_)}, {s(pDT,2)} {NT('p')}", "par")
        k(f"global_load_ushort {v(BI)}, {v(C_)}, {s(pB1,2)}\nglobal_load_ushort {v(BI+1)}, {v(C_)}, {s(pB1,2)} offset:128", "par2")
        k(f"global_load_ushort {v(DSK)}, {v(D_)}, {s(pDS,2)}", "par2")

    def early_setup():
        o = [(srd(rWS, pWS, 1 << 28), None), (f"s_mov_b32 s{sHI}, 0\ns_mov_b32 s{sHI+1}, -1" + (f"\ns_getreg_b32 s{sXCC}, hwreg(HW_REG_XCC_ID)\ns_and_b32 s{sXCC}, s{sXCC}, 15" if xid else ""), None)]
        P0, P1, P2 = TM + 12, TM + 13, TM + 14
        e = lambda text: o.extend(ops_of(text))
        e(f"v_bfe_u32 {v(P0)}, {v(LR)}, 1, 3\nv_xor_b32 {v(P0)}, {v(P0)}, {v(HF)}\nv_lshlrev_b32 {v(P0)}, 4, {v(P0)}\nv_lshl_add_u32 {v(P0)}, {v(LR)}, 7, {v(P0)}")
        e(f"v_add_u32 {v(XR)}, s{sW12}, {v(P0)}\nv_add_u32 {v(BQ)}, 32768, {v(P0)}\nv_add_u32 {v(CR)}, s{sW13}, {v(P0)}")
        for j in (1, 2, 3):
            e(f"v_xor_b32 {v(XR+j)}, {j << 5}, {v(XR)}\nv_xor_b32 {v(BQ+j)}, {j << 5}, {v(BQ)}")
        e(f"v_bfe_u32 {v(P0)}, {v(L)}, 2, 2\nv_and_b32 {v(P1)}, 3, {v(L)}\nv_lshlrev_b32 {v(P1)}, 3, {v(P1)}\nv_bfe_u32 {v(P2)}, {v(L)}, 4, 1\nv_lshl_add_u32 {v(P1)}, {v(P2)}, 5, {v(P1)}")
        e(f"v_lshl_add_u32 {v(P2)}, {v(HF)}, 3, {v(P0)}\nv_lshl_add_u32 {v(P2)}, {v(P2)}, 8, {v(P1)}\nv_lshl_add_u32 {v(P2)}, {v(P0)}, 6, {v(P2)}\nv_add_u32 {v(WR)}, 16384, {v(P2)}")
        for t in (1, 2, 3):
            e(f"v_xor_b32 {v(WR+t)}, {t << 6}, {v(WR)}")
        e(f"v_lshrrev_b32 {v(P2)}, 1, {v(P0)}\nv_lshl_add_u32 {v(P1)}, {v(P2)}, 6, {v(P1)}\nv_lshl_add_u32 {v(P2)}, {v(HF)}, 2, {v(P0)}\nv_lshl_add_u32 {v(P2)}, {v(P2)}, 7, {v(P1)}\nv_add_u32 {v(W2R)}, s{sW13}, {v(P2)}")
        g = lambda text: o.append((text, None))
        g(srd(rW2, pW2, 1792 * 1024)); g(srd(rCR, pCR, 1 << 19)); g(srd(rCI, pCI, 1 << 19)); g(srd(rOUT, pOUT, 4 << 20))
        g(f"s_lshl_b32 s3, s{sG}, 13\ns_add_u32 s{rE}, s{pWS}, s3\ns_addc_u32 s{rE+1}, s{pWS+1}, 0\ns_add_u32 s{rE}, s{rE}, {EG}\ns_addc_u32 s{rE+1}, s{rE+1}, 0\n"
          f"s_mov_b32 s{rE+2}, 8192\ns_mov_b32 s{rE+3}, 0x20000")
        g(f"s_lshr_b32 s3, s{sG}, 3\ns_lshl_b32 s{sM}, s{sC}, 1\ns_or_b32 s{sM}, s{sM}, s3")
        g(f"s_and_b32 s{sR3}, s{sN}, 3\ns_cmp_eq_u32 s{sR3}, 3\ns_cselect_b32 s{sR3}, 0, s{sR3}")
        g(f"s_cmp_eq_u32 s{sW}, 3\ns_cselect_b32 s3, 1, 0\ns_lshl_b32 s{sGE}, s{sW}, 2\ns_sub_u32 s{sGE}, s{sGE}, s3\ns_mul_i32 s{sGL}, s{sW}, 3\ns_add_u32 s{sGL}, s{sGL}, s3")
        g(f"s_lshl_b32 s{sAE}, s{sGE}, 13\ns_lshl_b32 s{sAL}, s{sGL}, 13\ns_add_u32 s{sAL}, s{sAL}, 4096\ns_add_u32 s{sAX}, s{sAE}, {6*4096}\ns_add_u32 s3, s{sAL}, 8192\n"
          f"s_cmp_lt_u32 s{sW}, 2\ns_cselect_b32 s{sAX}, s{sAX}, s{sAL}\ns_cselect_b32 s{sAL}, s{sAL}, s3")
        if one:
            g(f"s_mul_i32 s{sAE}, s{sW}, {7*4096}\ns_mul_i32 s{sGE}, s{sW}, 7\ns_lshr_b32 s{sGE}, s{sGE}, 1")
        g(f"s_lshl_b32 s3, s{sN}, 7\ns_lshl_b32 s{sBE}, s{sAE}, 4\ns_lshl_b32 s{sBX}, s{sAX}, 4\ns_lshl_b32 s{sBL}, s{sAL}, 4\n"
          f"s_add_u32 s{sBE}, s{sBE}, s3\ns_add_u32 s{sBX}, s{sBX}, s3\ns_add_u32 s{sBL}, s{sBL}, s3")
        g(f"s_lshl_b32 s3, s{sC}, 2\ns_add_u32 s3, s3, s{sW}\ns_mul_i32 s{sAF}, s3, {MT}\ns_add_u32 s{sAF}, s{sAF}, {AF}")
        return o

    tag_ops = lambda: ops_of(f"s_waitcnt lgkmcnt(0)\ns_mul_i32 s{sTAG}, s{sTAG}, 0x9e3779b1\ns_add_u32 s{sTAG}, s{sTAG}, 0x7f4a7c15")

    def row_stats(plain=False):
        o = []
        def k2(text, tag=None, atomic=False):
            o.extend([(text, tag)] if atomic or tag else ops_of(text))
        S1, S2, U1, U2 = TM, TM + 1, TM + 2, TM + 3
        k2(f"v_mov_b32 {v(S1)}, 0\nv_mov_b32 {v(S2)}, 0\ns_mov_b32 s{t3}, 0x3f803f80")
        o.append(W(vm="srow"))
        for i in range(8):
            if plain:
                k2(f"v_lshlrev_b32 {v(U1)}, 16, {v(SR+i)}\nv_and_b32 {v(U2)}, 0xffff0000, {v(SR+i)}\nv_add_f32 {v(S1)}, {v(S1)}, {v(U1)}\n"
                   f"v_fmac_f32 {v(S2)}, {v(U1)}, {v(U1)}\nv_add_f32 {v(S1)}, {v(S1)}, {v(U2)}\nv_fmac_f32 {v(S2)}, {v(U2)}, {v(U2)}")
            else:
                k2(f"v_dot2c_f32_bf16 {v(S1)}, s{t3}, {v(SR+i)}\nv_dot2c_f32_bf16 {v(S2)}, {v(SR+i)}, {v(SR+i)}")
        for r in (8, 4, 2, 1):
            k2(f"v_add_f32_dpp {v(S1)}, {v(S1)}, {v(S1)} row_ror:{r} row_mask:0xf bank_mask:0xf")
            k2(f"v_add_f32_dpp {v(S2)}, {v(S2)}, {v(S2)} row_ror:{r} row_mask:0xf bank_mask:0xf")
        k2(f"v_mov_b32 {v(U1)}, {v(S1)}\nv_mov_b32 {v(U2)}, {v(S2)}")
        k2(f"v_permlane16_swap_b32 {v(S1)}, {v(U1)}\nv_permlane16_swap_b32 {v(S2)}, {v(U2)}")
        k2(f"v_add_f32 {v(S1)}, {v(S1)}, {v(U1)}\nv_add_f32 {v(S2)}, {v(S2)}, {v(U2)}")
        k2(f"v_mul_f32 {v(S1)}, 0x3b000000, {v(S1)}\nv_mul_f32 {v(S2)}, 0x3b000000, {v(S2)}")
        k2(f"v_fma_f32 {v(S2)}, -{v(S1)}, {v(S1)}, {v(S2)}\nv_max_f32 {v(S2)}, 0, {v(S2)}")
        k2(f"v_cvt_pk_bf16_f32 {v(S2)}, {v(S2)}, {v(S2)}\nv_and_b32 {v(S2)}, 0xffff0000, {v(S2)}\nv_add_f32 {v(S2)}, 0x3727c5ac, {v(S2)}")
        k2(f"v_cvt_pk_bf16_f32 {v(S2)}, {v(S2)}, {v(S2)}\nv_and_b32 {v(S2)}, 0xffff0000, {v(S2)}\nv_sqrt_f32 {v(S2)}, {v(S2)}")
        k2(f"v_cvt_pk_bf16_f32 {v(SR)}, {v(S1)}, {v(S2)}")
        if not plain:
            o.extend(tag_ops())
        k2(f"v_mov_b32 {v(SR+1)}, s{sTAG}\nv_lshlrev_b32 {v(U1)}, 3, {v(HF)}")
        if xid:
            k2(f"v_mov_b32 {v(SR+2)}, s{sXCC}\nv_mov_b32 {v(SR+3)}, s{sTAG}")
        k2(f"s_lshr_b32 s{sRB}, s{sRB}, 7\ns_add_u32 s{sRB}, s{sRB}, {STATS}")
        if xid:
            k2(f"s_lshl_b32 s{t3}, s{sC}, 4\ns_add_u32 s{t3}, s{t3}, s{sG}\ns_lshl_b32 s{t3}, s{t3}, 3\ns_add_u32 s{t3}, s{t3}, {XID}")
        def publish():
            k("s_mov_b32 exec_lo, 1\ns_mov_b32 exec_hi, 1")
            k(f"buffer_store_dwordx2 {v(SR,2)}, {v(U1)}, {s(rWS,4)}, s{sRB} offen sc1", "pub0")
            if xid:
                k(f"buffer_store_dwordx2 {v(SR+2,2)}, off, {s(rWS,4)}, s{t3} sc1", "pub0")
            k("s_mov_b64 exec, -1")
            if not plain:
                stamp("stats")
        o.append(publish)
        return o

    def late_setup(full):
        o = []
        e = lambda text: o.extend(ops_of(text))
        g = lambda text: o.append((text, None))
        P0, P1, P2 = TM + 12, TM + 13, TM + 14
        if krot:
            g(f"s_add_u32 s{sROT2}, s{sC}, s{sN}\ns_and_b32 s{sROT2}, s{sROT2}, 3\ns_lshl_b32 s3, s{sROT2}, 5\nv_xor_b32 {v(CR)}, s3, {v(CR)}")
        for j in (1, 2, 3):
            e(f"v_xor_b32 {v(CR+j)}, {j << 5}, {v(CR)}")
        for j in range(4):
            e(f"v_add_u32 {v(CR+4+j)}, {HIGH}, {v(CR+j)}")
        e(f"v_xor_b32 {v(W2R+1)}, 64, {v(W2R)}\nv_add_u32 {v(W2R+2)}, {HIGH}, {v(W2R)}\nv_add_u32 {v(W2R+3)}, {HIGH}, {v(W2R+1)}")
        e(f"v_lshrrev_b32 {v(P0)}, 3, {v(L)}\nv_and_b32 {v(P1)}, 7, {v(L)}\nv_bfe_u32 {v(P2)}, {v(L)}, 4, 1\nv_lshlrev_b32 {v(P2)}, 2, {v(P2)}")
        e(f"v_xor_b32 {v(P1)}, {v(P1)}, {v(P2)}\nv_lshlrev_b32 {v(P1)}, 4, {v(P1)}")
        g(f"s_and_b32 s3, s{sW}, 1\ns_lshl_b32 s3, s3, 6\nv_xor_b32 {v(P1)}, s3, {v(P1)}")
        e(f"v_lshl_add_u32 {v(W2D)}, {v(P0)}, 10, {v(P1)}")
        if krot:
            g(f"s_and_b32 s3, s{sROT2}, 1\ns_lshl_b32 s3, s3, 14\nv_xor_b32 {v(W2D)}, s3, {v(W2D)}")
            e(f"v_xor_b32 {v(W2D+2)}, 0x4000, {v(W2D)}\nv_add_u32 {v(W2D+1)}, 8192, {v(W2D)}\nv_add_u32 {v(W2D+3)}, 8192, {v(W2D+2)}")
            g(f"s_lshr_b32 s3, s{sROT2}, 1\ns_lshl_b32 s3, s3, 15\ns_add_u32 s{sBE}, s{sBE}, s3\ns_add_u32 s{sBX}, s{sBX}, s3\ns_add_u32 s{sBL}, s{sBL}, s3")
        else:
            for i in (1, 2, 3):
                e(f"v_add_u32 {v(W2D+i)}, {i*7168}, {v(W2D)}")
        e(f"v_bfe_u32 {v(P0)}, {v(LR)}, 2, 1\nv_lshrrev_b32 {v(P1)}, 3, {v(LR)}\nv_and_b32 {v(P2)}, 3, {v(LR)}")
        e(f"v_lshl_add_u32 {v(P2)}, {v(P1)}, 2, {v(P2)}\nv_lshl_add_u32 {v(TAU)}, {v(P0)}, 4, {v(P2)}")
        for z in (XA + 2, XA + 3, XB + 2, XB + 3, WE + 2, WE + 3, WE + 6, WE + 7, WE + 10, WE + 11):
            e(f"v_mov_b32 {v(z)}, 0")
        LRE, LIM, DT, A2, BRV, X0, X1, X2 = range(PL, PL + 8)
        o.append(W(vm="par2"))
        e(f"v_lshlrev_b32 {v(LRE)}, 16, {v(LRE)}\nv_lshlrev_b32 {v(LIM)}, 16, {v(LIM)}\nv_lshlrev_b32 {v(DT)}, 16, {v(DT)}\nv_lshlrev_b32 {v(DSK)}, 16, {v(DSK)}")
        e(f"v_mul_f32 {v(DT)}, {LOG2E:#x}, {v(DT)}\nv_exp_f32 {v(DT)}, {v(DT)}\nv_cvt_pk_bf16_f32 {v(DT)}, {v(DT)}, {v(DT)}\nv_and_b32 {v(DT)}, 0xffff0000, {v(DT)}")
        e(f"v_mul_f32 {v(A2)}, {v(DT)}, {v(LRE)}\nv_mul_f32 {v(BRV)}, {v(DT)}, {v(LIM)}\nv_mul_f32 {v(A2)}, {LOG2E:#x}, {v(A2)}\nv_mul_f32 {v(BRV)}, 0.15915494, {v(BRV)}")
        def cpow(n, dr, di):
            e(f"v_mul_f32 {v(X0)}, {n}, {v(A2)}\nv_mul_f32 {v(X1)}, {n}, {v(BRV)}\nv_exp_f32 {v(X0)}, {v(X0)}\nv_fract_f32 {v(X1)}, {v(X1)}")
            e(f"v_cos_f32 {v(dr)}, {v(X1)}\nv_sin_f32 {v(di)}, {v(X1)}\nv_mul_f32 {v(dr)}, {v(dr)}, {v(X0)}\nv_mul_f32 {v(di)}, {v(di)}, {v(X0)}")
        cpow("1.0", LAR, LAI); cpow("0x41800000", L16R, L16I); cpow("0x43800000", L2R, L2I)
        g(f"s_lshl_b32 s3, s{sW}, 1\nv_add_u32 {v(X2)}, s3, {v(HF)}")
        e(f"v_lshlrev_b32 {v(X2)}, 4, {v(X2)}\nv_cvt_f32_u32 {v(X2)}, {v(X2)}")
        cpow(v(X2), PWR, PWI)
        g(f"s_lshl_b32 s3, s{sW}, 2\nv_add_u32 {v(X2)}, s3, {v(HF)}")
        e(f"v_lshlrev_b32 {v(X2)}, 7, {v(X2)}\nv_cvt_f32_u32 {v(X2)}, {v(X2)}")
        cpow(v(X2), SCRR, SCI)
        e(f"v_sub_f32 {v(NLAI)}, 0, {v(LAI)}\nv_sub_f32 {v(NL16I)}, 0, {v(L16I)}")
        e(f"v_mul_f32 {v(X0)}, {v(LRE)}, {v(LRE)}\nv_fmac_f32 {v(X0)}, {v(LIM)}, {v(LIM)}\nv_rcp_f32 {v(X0)}, {v(X0)}\nv_subrev_f32 {v(X1)}, 1.0, {v(LAR)}")
        e(f"v_mul_f32 {v(CFR)}, {v(X1)}, {v(LRE)}\nv_mul_f32 {v(NCFI)}, {v(X1)}, {v(LIM)}\nv_mul_f32 {v(X0)}, 0x4038aa3b, {v(X0)}")
        e(f"v_fmac_f32 {v(CFR)}, {v(LAI)}, {v(LIM)}\nv_fmac_f32 {v(NCFI)}, {v(NLAI)}, {v(LRE)}")
        e(f"v_mul_f32 {v(CFR)}, {v(CFR)}, {v(X0)}\nv_mul_f32 {v(NCFI)}, {v(NCFI)}, {v(X0)}\nv_sub_f32 {v(NCFR)}, 0, {v(CFR)}")
        e(f"v_mul_f32 {v(T)}, {v(CFR)}, {v(LAR)}\nv_mul_f32 {v(T+16)}, {v(CFR)}, {v(LAI)}\nv_fmac_f32 {v(T)}, {v(NCFI)}, {v(LAI)}\nv_fma_f32 {v(T+16)}, -{v(NCFI)}, {v(LAR)}, {v(T+16)}")
        for i in range(1, 16):
            e(f"v_mul_f32 {v(T+i)}, {v(T+i-1)}, {v(LAR)}\nv_mul_f32 {v(T+16+i)}, {v(T+15+i)}, {v(LAR)}")
            e(f"v_fmac_f32 {v(T+i)}, {v(T+15+i)}, {v(NLAI)}\nv_fmac_f32 {v(T+16+i)}, {v(T+i-1)}, {v(LAI)}")
        return o

    GS, GX, GA = TM, TM + 2, TM + 16

    def gran_loads(full):
        ops = [(f"s_lshr_b32 s{t2}, s{sXB}, 7\ns_add_u32 s{t2}, s{t2}, {STATS}\nv_lshlrev_b32 {v(GA)}, 3, {v(TAU)}", None),
               (f"buffer_load_dwordx2 {v(GS,2)}, {v(GA)}, {s(rWS,4)}, s{t2} offen sc1", "gran"),
               (f"s_lshl_b32 s{t2}, s{sC}, 7\ns_add_u32 s{t2}, s{t2}, {XID}\nv_and_b32 {v(GA)}, 15, {v(L)}\nv_lshlrev_b32 {v(GA)}, 3, {v(GA)}", None),
               (f"buffer_load_dwordx2 {v(GX,2)}, {v(GA)}, {s(rWS,4)}, s{t2} offen sc1", "gran"),
               (f"s_lshl_b32 s{t2}, s{sG}, 8\ns_add_u32 s{t2}, s{t2}, {CS + 1792*8}\nv_lshlrev_b32 {v(GA)}, 12, {v(HF)}\nv_lshl_add_u32 {v(GA)}, {v(LR)}, 3, {v(GA)}", None),
               (f"buffer_load_dwordx2 {v(WE+8,2)}, {v(GA)}, {s(rWS,4)}, s{t2} offen sc1", "gran")]
        if not xid:
            del ops[2:4]
        if full:
            ops += [(f"s_lshl_b32 s{t2}, s{sF}, 10\ns_add_u32 s{t2}, s{t2}, {CS}\nv_lshlrev_b32 {v(GA)}, 3, {v(L)}", None),
                    (f"buffer_load_dwordx2 {v(WE,2)}, {v(GA)}, {s(rWS,4)}, s{t2} offen sc1", "gran"),
                    (f"buffer_load_dwordx2 {v(WE+4,2)}, {v(GA)}, {s(rWS,4)}, s{t2} offen offset:512 sc1", "gran")]
        return ops

    cold = []
    def spin_check(name, tag, mismatch, reload):
        again, ok = k.label(name + "_again"), k.label(name + "_ok")
        k.wait(vm=tag)
        k(mismatch)
        k(f"s_mov_b32 s{sCNT}, 0\ns_nop 0\ns_cbranch_vccnz {again}")
        k(ok + ":")
        loads = "\n".join(op[0] for op in reload)
        if backoff:
            loads = f"s_sleep {backoff}\n" + loads
        cold.append(f"{again}:\n{loads}\ns_waitcnt vmcnt(0)\n{mismatch}\ns_add_u32 s{sCNT}, s{sCNT}, 1\ns_cmp_gt_u32 s{sCNT}, {SPIN}\n"
                    f"s_cbranch_scc1 {ok}\ns_cbranch_vccnz {again}\ns_branch {ok}")

    def tags_differ(regs, tmp):
        t = f"v_xor_b32 {v(tmp)}, s{sTAG}, {v(regs[0])}\n"
        for r in regs[1:]:
            t += f"v_xor_b32 {v(tmp+1)}, s{sTAG}, {v(r)}\nv_or_b32 {v(tmp)}, {v(tmp)}, {v(tmp+1)}\n"
        return t + f"v_cmp_ne_u32 vcc, 0, {v(tmp)}"

    rsv_reads = lambda: [(f"ds_read_b128 {v(RSV+4*q,4)}, {v(GA+2)} offset:{q*16}", "rsv") for q in range(4)]

    def gran_check(full):
        spin_check("gran", "gran", tags_differ([GS + 1, WE + 9] + ([GX + 1] if xid else []) + ([WE + 1, WE + 5] if full else []), GA), gran_loads(full))
        if xid:
            k(f"v_cmp_ne_u32 vcc, s{sXCC}, {v(GX)}")
        k(f"v_and_b32 {v(GA)}, 0xffff, {v(GS)}\nv_and_b32 {v(GA+1)}, 0xffff0000, {v(GS)}\nv_lshlrev_b32 {v(MF)}, 16, {v(GS)}")
        if xid:
            k(f"s_cmp_eq_u64 vcc, 0\ns_cselect_b32 s{sLOC}, 1, 0")
        k(f"v_rcp_f32 {v(RS)}, {v(GA+1)}\nv_xor_b32 {v(GA)}, 0x8000, {v(GA)}\nv_lshrrev_b32 {v(GA+1)}, 16, {v(GS)}\nv_lshl_or_b32 {v(GA)}, {v(GA)}, 16, {v(GA)}")
        k(f"v_cndmask_b32 {v(XA)}, {v(GA)}, 0, {s(sHI,2)}\nv_cndmask_b32 {v(XA+1)}, {v(GA+1)}, 0, {s(sHI,2)}")
        k(f"v_cndmask_b32 {v(XB)}, 0, {v(GA)}, {s(sHI,2)}\nv_cndmask_b32 {v(XB+1)}, 0, {v(GA+1)}, {s(sHI,2)}\nv_mov_b32 {v(WE+9)}, 0")
        k(f"s_lshr_b32 s3, s{sW12}, 5\ns_add_u32 s3, s3, {SCR}\nv_lshlrev_b32 {v(GA)}, 9, {v(HF)}\nv_lshl_add_u32 {v(GA)}, {v(TAU)}, 2, {v(GA)}\nv_add_u32 {v(GA)}, s3, {v(GA)}")
        k(f"v_lshlrev_b32 {v(GA+2)}, 6, {v(HF)}\nv_add_u32 {v(GA+2)}, s3, {v(GA+2)}")
        mfma(SS, v(XA, 4), v(WE + 8, 4)); mfma(SS + 16, v(XB, 4), v(WE + 8, 4))
        k(f"v_cndmask_b32 {v(GA+1)}, {v(RS)}, {v(MF)}, {s(sHI,2)}\nv_mul_f32 {v(C1)}, {LOG2E:#x}, {v(RS)}")
        k(f"ds_write_b32 {v(GA)}, {v(GA+1)}", "stw")
        if not (full and order == "m"):
            run(rsv_reads())
        if full:
            k(f"v_mov_b32 {v(WE+1)}, {v(BI)}\nv_mov_b32 {v(WE+5)}, {v(BI+1)}\ns_lshl_b32 s3, s{sF}, 13\ns_add_u32 s{sA0}, s{sAF}, s3")
            for t in range(4):
                mfma(ACC + 16 * t, v(WE + 4 * (t >> 1), 4), v(XB if t & 1 else XA, 4))

    def pf_ops(force=False):
        if not l2pf and not force:
            return [("s_nop 0", "none")]
        P, Q = TM + 18, TM + 19
        rows = mapping != "x8g4"
        o = []
        for h in range(2 if rows else 1):
            col = f"s_mov_b32 s3, {h*4}" if rows else f"s_and_b32 s3, s{sXD}, 1\ns_lshl_b32 s3, s3, 2"
            skip = f"v_cmp_eq_u32 vcc, {lite}, {v(Q)}\nv_lshrrev_b32 {v(P)}, 2, {v(L)}\nv_min_u32 {v(P)}, 13, {v(P)}\nv_subbrev_co_u32 {v(Q)}, vcc, 0, {v(Q)}, vcc\n" if trickle else \
                   f"v_lshrrev_b32 {v(P)}, 2, {v(L)}\nv_min_u32 {v(P)}, 13, {v(P)}\n"
            o += [(f"{col}\nv_and_b32 {v(Q)}, 3, {v(L)}\nv_add_u32 {v(Q)}, s3, {v(Q)}\n{skip}v_lshlrev_b32 {v(Q)}, 7, {v(Q)}\nv_lshl_add_u32 {v(P)}, {v(P)}, 10, {v(Q)}\n"
                   f"s_lshl_b32 s{t2}, s{sJ}, 2\ns_add_u32 s{t2}, s{t2}, s{sW}\ns_mul_i32 s{t2}, s{t2}, {14*1024}", None),
                  (f"buffer_load_dword a255, {v(P)}, {s(rW2,4)}, s{t2} offen", "pf2")]
        half = "" if rows else f"s_and_b32 s3, s{sXD}, 1\ns_lshl_b32 s3, s3, 18\ns_add_u32 s{t2}, s{t2}, s3\n"
        o += [(f"s_lshl_b32 s{t2}, s{sJ}, 2\ns_add_u32 s{t2}, s{t2}, s{sW}\ns_lshl_b32 s{t2}, s{t2}, {12 if rows else 11}\n{half}"
               f"v_and_b32 {v(P)}, {31 if rows else 15}, {v(L)}\nv_lshlrev_b32 {v(P)}, 7, {v(P)}", None),
              (f"buffer_load_dword a255, {v(P)}, {s(rCR,4)}, s{t2} offen", "pf2"),
              (f"buffer_load_dword a255, {v(P)}, {s(rCI,4)}, s{t2} offen", "pf2")]
        return o

    def mid_ops():
        P, Q = TM + 18, TM + 19
        o = [(f"s_lshl_b32 s{t2}, s2, 2\ns_add_u32 s{t2}, s{t2}, s{sW}\nv_bfe_u32 {v(P)}, {v(L)}, 2, 3\nv_min_u32 {v(P)}, 4, {v(P)}\nv_lshlrev_b32 {v(P)}, 7, {v(P)}", None)]
        if "x" in mid:
            o.append((f"s_lshl_b32 s3, s{t2}, 11\nv_lshl_add_u32 {v(Q)}, {v(HF)}, 10, {v(P)}\nbuffer_load_dword a255, {v(Q)}, {s(rX,4)}, s3 offen offset:384", "mid"))
        if "w" in mid:
            o.append((f"s_mul_i32 s3, s{t2}, 1152\ns_add_u32 s3, s3, {192*3584}\nv_lshrrev_b32 {v(Q)}, 2, {v(L)}\nv_min_u32 {v(Q)}, 8, {v(Q)}\nv_lshlrev_b32 {v(Q)}, 7, {v(Q)}\n"
                      f"buffer_load_dword a255, {v(Q)}, {s(rW1,4)}, s3 offen", "mid"))
        if "b" in mid:
            o.append((f"s_lshl_b32 s3, s2, 1\ns_and_b32 s{t2}, s{sW}, 1\ns_or_b32 s3, s3, s{t2}\ns_lshl_b32 s3, s3, 10\nbuffer_load_dword a255, {v(P)}, {s(rB,4)}, s3 offen offset:384", "mid"))
        return o

    def far_ops(flip=0):
        if far_at is None:
            return []
        P, Q = TM + 18, TM + 19
        return [(f"s_xor_b32 s{t2}, s2, {flip}\ns_lshl_b32 s{t2}, s{t2}, 2\ns_add_u32 s{t2}, s{t2}, s{sW}\ns_mul_i32 s3, s{t2}, {14*128}\nv_lshrrev_b32 {v(P)}, 2, {v(L)}\nv_min_u32 {v(Q)}, 13, {v(P)}\nv_lshlrev_b32 {v(Q)}, 7, {v(Q)}\n"
                 f"buffer_load_dword a255, {v(Q)}, {s(rW2,4)}, s3 offen", "far"),
                (f"s_lshl_b32 s{t2}, s{t2}, 9\nv_and_b32 {v(P)}, 3, {v(P)}\nv_lshlrev_b32 {v(P)}, 7, {v(P)}\nbuffer_load_dword a255, {v(P)}, {s(rCR,4)}, s{t2} offen", "far"),
                (f"buffer_load_dword a255, {v(P)}, {s(rCI,4)}, s{t2} offen", "far")]

    def weave(mem, val):
        n = sum(1 for op in mem if not callable(op) and op[1] is not None)
        for m, c in zip(spread_mem(mem, n), spread(val, n)):
            run(m); run(c)

    def stage_reads(b):
        hi = RING[b] >= HIGH
        return [W(vm=f"rb{b}")] + [(f"ds_read_b64_tr_b16 {a(RESB[b]+8*j+4*c+2*rd,2)}, {v(W2R+2*hi+c)} offset:{RING[b] - hi*HIGH + j*2048 + rd*1024}", f"sr{b}")
                                   for j in range(4) for c in range(2) for rd in range(2)]

    EA, EB, EX0, EX1, E0 = XD, XD + 1, XD + 2, XD + 3, TM
    HA, HB, XW, XQ = WD, WD + 1, WD + 2, WD + 3
    def e_loads():
        return [(f"buffer_load_dwordx4 {v(E0,4)}, {v(EA)}, {s(rE,4)}, 0 offen sc1", "eg"),
                (f"buffer_load_dwordx4 {v(E0+4,4)}, {v(EB)}, {s(rE,4)}, 0 offen sc1", "eg")]

    def epi_addr():
        o = []
        e = lambda text: o.extend(ops_of(text))
        P = TM + 12
        o.append((f"s_lshl_b32 s3, s{sW}, 2\ns_sub_u32 s3, s{sC}, s3\ns_sub_u32 s3, s3, 1\nv_sub_u32 {v(EA)}, s3, {v(HF)}", None))
        e(f"v_subrev_u32 {v(EB)}, 2, {v(EA)}\nv_ashrrev_i32 {v(EX0)}, 31, {v(EA)}\nv_ashrrev_i32 {v(EX1)}, 31, {v(EB)}\n"
          f"v_bfi_b32 {v(EX0)}, {v(EX0)}, 0, s{sTAG}\nv_bfi_b32 {v(EX1)}, {v(EX1)}, 0, s{sTAG}\nv_lshlrev_b32 {v(P)}, 4, {v(LR)}\n"
          f"v_lshl_add_u32 {v(EA)}, {v(EA)}, 9, {v(P)}\nv_lshl_add_u32 {v(EB)}, {v(EB)}, 9, {v(P)}")
        o.append((f"s_lshr_b32 s3, s{sW12}, 3\ns_add_u32 s3, s3, {SCR_EX}\nv_lshl_add_u32 {v(XW)}, {v(L)}, 3, s3", None))
        e(f"v_lshlrev_b32 {v(XQ)}, 3, {v(LR)}\nv_add_u32 {v(XQ)}, {SCR_EX}, {v(XQ)}")
        o.append((f"s_lshr_b32 s3, s{sW}, 1\ns_mul_i32 s3, s3, {SLOT - 8192}\ns_add_u32 s3, s3, s{sW12}\ns_add_u32 s{sKW}, s3, {SCR_HT}", None))
        e(f"v_lshlrev_b32 {v(HA)}, 5, {v(HF)}\nv_lshl_add_u32 {v(HA)}, {v(LR)}, 6, {v(HA)}\nv_add_u32 {v(HA)}, s{sKW}, {v(HA)}")
        e(f"v_bfe_u32 {v(HB)}, {v(L)}, 2, 2\nv_lshl_add_u32 {v(HB)}, {v(HF)}, 3, {v(HB)}\nv_lshlrev_b32 {v(HB)}, 6, {v(HB)}")
        e(f"v_and_b32 {v(P)}, 1, {v(L)}\nv_lshl_add_u32 {v(HB)}, {v(P)}, 5, {v(HB)}\nv_bfe_u32 {v(P)}, {v(L)}, 1, 1\nv_lshl_add_u32 {v(HB)}, {v(P)}, 3, {v(HB)}")
        e(f"v_bfe_u32 {v(P)}, {v(L)}, 4, 1\nv_lshl_add_u32 {v(HB)}, {v(P)}, 4, {v(HB)}\nv_add_u32 {v(HB)}, s{sKW}, {v(HB)}")
        o.append((f"s_lshr_b32 s3, s{sG}, 2\ns_lshl_b32 s3, s3, 3\ns_and_b32 s{sKW}, s{sG}, 3\ns_add_u32 s3, s3, s{sKW}\ns_lshl_b32 s3, s3, 11\ns_add_u32 s{sKW}, s{sAF}, s3\ns_add_u32 s{sKW}, s{sKW}, {112*1024}", None))
        o.append((f"s_lshl_b32 s3, s{sM}, 1\ns_lshr_b32 s{sP0}, s{sW}, 1\ns_add_u32 s{sP0}, s3, s{sP0}\ns_xor_b32 s{sP1}, s{sP0}, 1\n"
                  f"s_mul_i32 s{sP0}, s{sP0}, {MT}\ns_mul_i32 s{sP1}, s{sP1}, {MT}\ns_add_u32 s{sP0}, s{sP0}, {AF}\ns_add_u32 s{sP1}, s{sP1}, {AF}", None))
        return o

    def trickle_ops():
        out = []
        for sg in range(7):
            P = TM + 15
            rows = mapping != "x8g4"
            who = {"rows": f"s_and_b32 s3, s{sC}, 1\ns_lshl_b32 s3, s3, 1\ns_lshr_b32 s{sA0}, s{sG}, 3\ns_add_u32 s3, s3, s{sA0}",
                   "x4g8": f"s_and_b32 s3, s{sC}, 3", "x8g4": f"s_and_b32 s3, s{sC}, 7"}[mapping]
            head = (f"{who}\ns_lshl_b32 s3, s3, 2\ns_add_u32 s3, s3, s{sW}\ns_mul_i32 s{sA0}, s3, {(112 if rows else 56)*1024}\ns_add_u32 s{sA0}, s{sA0}, {lite*128}\n"
                    f"v_lshrrev_b32 {v(P)}, {2 if rows else 3}, {v(L)}\nv_lshlrev_b32 {v(P)}, 10, {v(P)}\n") if sg == 0 else f"s_add_u32 s{sA0}, s{sA0}, {16384 if rows else 8192}\n"
            out.append((head + f"buffer_load_dword a255, {v(P)}, {s(rW2,4)}, s{sA0} offen {NT('t')}", "trk"))
        return out

    def gemm1(full, pfx):
        nm = 6 if full else 2
        base_of = lambda stg: ((stg % 4) // 2) * HIGH
        def reads(n):
            stg, j = divmod(n, 4)
            off = (stg % 4) * SLOT - base_of(stg)
            f = FR + 28 * (n & 1)
            d = base_of(stg) - base_of(stg - 1) if stg else 0
            adj = lambda r, on=True: f"v_add_u32 {v(r)}, {d & 0xffffffff:#x}, {v(r)}\n" if d and on else ""
            o = [(adj(XR + j) + f"ds_read_b128 {a(f,4)}, {v(XR+j)} offset:{off}", f"ra{n}")]
            o += [(adj(BQ + j, c == 0) + f"ds_read_b128 {a(f+4+4*c,4)}, {v(BQ+j)} offset:{off + c*4096}", f"ra{n}") for c in range(2)]
            if full:
                o += [(adj(WR + t, j == 0 and rd == 0) + f"ds_read_b64_tr_b16 {a(f+12+4*t+2*rd,2)}, {v(WR+t)} offset:{off + j*4096 + rd*1024}", f"ra{n}" if t == 0 else f"rb_{n}")
                      for t in range(4) for rd in range(2)]
            return o
        if look == 2:
            mem = {sg: stage_ops(sg + 2, full) for sg in range(6)}
            if pre3 and not (pre2 and full):
                mem[0] = []
            if pre4:
                mem[0], mem[1] = mem[1], []
            mem.update({6: ring_ops(0), 7: ring_ops(1)})
        else:
            ramp = spread_mem(sum((stage_ops(sg, full) for sg in range(2, 6)), []), 3)
            if pre3:
                ramp = [stage_ops(sg, full) for sg in (3, 4, 5)]
            mem = {0: ramp[0], 1: ramp[1], 2: ramp[2], 3: stage_ops(6, full), 4: stage_ops(7, full), 5: ring_ops(0), 6: ring_ops(1), 7: ring_ops(2)}
        mem[pf_at] = pf_ops() + mem[pf_at]
        if far_plan is not None:
            P = TM + 18
            who = f"s_lshl_b32 s{t2}, s2, 2\ns_add_u32 s{t2}, s{t2}, s{sW}\n"
            for part, sg in enumerate(far_plan):
                if part < 2:
                    op = (who + f"s_mul_i32 s{t2}, s{t2}, {14*128}\nv_lshrrev_b32 {v(P)}, 3, {v(L)}\nv_min_u32 {v(P)}, 6, {v(P)}\nv_lshlrev_b32 {v(P)}, 7, {v(P)}\n"
                          f"buffer_load_dword a255, {v(P)}, {s(rW2,4)}, s{t2} offen offset:{part*896}", "far")
                else:
                    op = (who + f"s_lshl_b32 s{t2}, s{t2}, 9\nv_lshrrev_b32 {v(P)}, 4, {v(L)}\nv_lshlrev_b32 {v(P)}, 7, {v(P)}\n"
                          f"buffer_load_dword a255, {v(P)}, {s(rCI if part == 3 else rCR,4)}, s{t2} offen", "far")
                mem[sg] = mem[sg] + [op]
        elif far_at is not None:
            if far_spread:
                fo = far_ops()
                fo[1] = (f"s_lshl_b32 s{t2}, s2, 2\ns_add_u32 s{t2}, s{t2}, s{sW}\n" + fo[1][0], fo[1][1])
                fo[2] = (f"s_lshl_b32 s{t2}, s2, 2\ns_add_u32 s{t2}, s{t2}, s{sW}\ns_lshl_b32 s{t2}, s{t2}, 9\n" + fo[2][0], fo[2][1])
                mem[far_at] = mem[far_at] + fo[:1]
                mem[far_at + 1] = mem[far_at + 1] + fo[1:]
            else:
                mem[far_at] = mem[far_at] + far_ops()
        if mid_at is not None and mid_at >= 0:
            mem[mid_at] = mid_ops() + mem[mid_at]
        if stats_at is not None and full:
            mem[stats_at] = srow_ops(True) + mem[stats_at]
        if far2_at is not None:
            mem[far2_at] = mem[far2_at] + far_ops(2)
        if cc_at is not None:
            mem[cc_at] = mem[cc_at] + pf_ops(True)[-3:]
        mem[gran_at] = gran_loads(full) + mem[gran_at]
        if trk_w2 is not None and mapping == "x8g4":
            P, Q = TM + 18, TM + 19
            for q in range(4):
                head = (f"s_and_b32 s3, s{sXD}, 1\ns_lshl_b32 s3, s3, 2\nv_bfe_u32 {v(Q)}, {v(L)}, 2, 2\nv_add_u32 {v(Q)}, s3, {v(Q)}\nv_cmp_eq_u32 vcc, {lite}, {v(Q)}\n"
                        f"v_lshrrev_b32 {v(P)}, 4, {v(L)}\nv_lshlrev_b32 {v(P)}, 10, {v(P)}\nv_subbrev_co_u32 {v(Q)}, vcc, 0, {v(Q)}, vcc\nv_lshl_add_u32 {v(P)}, {v(Q)}, 7, {v(P)}\n"
                        f"s_lshl_b32 s{sJ}, s{sJ}, 2\ns_add_u32 s{sJ}, s{sJ}, s{sW}\ns_mul_i32 s{sJ}, s{sJ}, {14*1024}\n") if q == 0 else f"s_add_u32 s{sJ}, s{sJ}, {4096 if q < 3 else 2048}\n"
                mem[trk_w2 + q] = mem[trk_w2 + q] + [(head + f"buffer_load_dword a255, {v(P)}, {s(rW2,4)}, s{sJ} offen", "trk")]
        if trk_c is not None:
            P = TM + 19
            nrow = 2 if mapping == "x8g4" else 4
            half = f"s_and_b32 s3, s{sXD}, 1\ns_lshl_b32 s3, s3, 18\ns_add_u32 s{t2}, s{t2}, s3\n" if mapping == "x8g4" else ""
            mem[trk_c] = mem[trk_c] + [
                (f"s_lshl_b32 s{t2}, s{sJ}, 2\ns_add_u32 s{t2}, s{t2}, s{sW}\ns_mul_i32 s{t2}, s{t2}, {nrow*1024}\n{half}v_bfe_u32 {v(P)}, {v(L)}, 4, {nrow//2}\nv_lshlrev_b32 {v(P)}, 10, {v(P)}\n"
                 f"buffer_load_dword a255, {v(P)}, {s(rCR,4)}, s{t2} offen offset:384", "trk"),
                (f"buffer_load_dword a255, {v(P)}, {s(rCI,4)}, s{t2} offen offset:384", "trk")]
        if trickle and not full:
            for sg, op in enumerate(trickle_ops()[trk_pre:]):
                mem[sg] = mem[sg] + [op]
        val = late_setup(full)[n_before:] if pre3 else late_setup(full)
        if cs_late and not full:
            val = []
        for stg in range(8):
            k.wait(vm=f"st{stg}", lg="all" if look == 3 else None)
            k("s_barrier")
            if stg in (0, 4):
                stamp(f"{pfx}st{stg}")
            steps = ([4 * stg - 1] if stg else []) + [4 * stg, 4 * stg + 1, 4 * stg + 2] + ([31] if stg == 7 else [])
            if stg == 0:
                run(reads(0))
            mm = spread_mem(mem[stg], nm * min(4, len(steps))) if mem[stg] else []
            if full and stats_at is not None and stg == stats_at + 2:
                val = row_stats(True) + val
            if stg == 6:
                assert stats_at is None or not val
                assert look == 2 or not val
                val = val + epi_addr()
            gi = 0
            for n in steps:
                f = FR + 28 * (n & 1)
                last = n % 4 == 2 and look == 3
                rd = spread(reads(n + 1), nm - 2 if last and full else nm) + [[]] * 2 if n < 31 else [[]] * nm
                for i in range(nm):
                    if i == 0:
                        k.wait(lg=f"ra{n}")
                    if i == 3:
                        k.wait(lg=f"rb_{n}")
                    c0 = "0" if n == 0 else None
                    if i < 2:
                        mfma(SS + 16 * i, a(f, 4), a(f + 4 + 4 * i, 4), c0)
                    else:
                        mfma(ACC + 16 * (i - 2), a(f + 12 + 4 * (i - 2), 4), a(f, 4), c0)
                    here = rd[i] + (mm[gi] if gi < len(mm) else [])
                    run(here)
                    used = 8 + sum(map(cost, here)) + (6 if i in (2, nm - 1) else 0)
                    while val and (used + cost(val[0]) <= budget or (not full and used < 60)):
                        used += cost(val[0])
                        run([val.pop(0)])
                    gi += 1
                probe(f"g{n}")
        run(val)

    def scan_ops():
        o = [W(lg="rsv")]
        for r in range(0, 16, 2):
            o += ops_of(f"v_pk_mul_f32 {v(SS+r,2)}, {v(SS+r,2)}, {v(RSV+r,2)}\nv_pk_mul_f32 {v(SS+16+r,2)}, {v(SS+16+r,2)}, {v(RSV+r,2)}")
        for r in range(1, 16):
            o += ops_of(f"v_fmac_f32 {v(SS+r)}, {v(LAR)}, {v(SS+r-1)}\nv_fmac_f32 {v(SS+16+r)}, {v(LAR)}, {v(SS+15+r)}\n"
                        f"v_fmac_f32 {v(SS+r)}, {v(NLAI)}, {v(SS+15+r)}\nv_fmac_f32 {v(SS+16+r)}, {v(LAI)}, {v(SS+r-1)}")
        o.append((f"ds_write2_b32 {v(XW)}, {v(SS+15)}, {v(SS+31)} offset0:0 offset1:1", "exw"))
        return o

    def chain_ops():
        o = [(f"ds_read_b64 {v(EK+2*q,2)}, {v(XQ)} offset:{q*256}", f"ek{q}") for q in range(8)]
        SG = TM + 17
        o.append((f"s_lshl_b32 s3, s{sW}, 1\nv_add_u32 {v(SG)}, s3, {v(HF)}", None))
        o += ops_of(f"v_mov_b32 {v(PR)}, 0\nv_mov_b32 {v(PI)}, 0\nv_mov_b32 {v(XA+1)}, s{sTAG}\nv_mov_b32 {v(XA+3)}, s{sTAG}")
        o.append(W(lg="ek3"))
        for q in range(1, 8):
            r, i = EK + 2 * q, EK + 2 * q + 1
            dr, di = (XA, XA + 2) if q == 7 else (r, i)
            if q == 4:
                o.append(W(lg="ek7"))
            o += ops_of(f"v_cmp_eq_u32 vcc, {q}, {v(SG)}\nv_fmac_f32 {v(r)}, {v(L16R)}, {v(r-2)}\nv_fmac_f32 {v(i)}, {v(L16R)}, {v(i-2)}\n"
                        f"v_cndmask_b32 {v(PR)}, {v(PR)}, {v(r-2)}, vcc\nv_cndmask_b32 {v(PI)}, {v(PI)}, {v(i-2)}, vcc\n"
                        f"v_fma_f32 {v(dr)}, {v(NL16I)}, {v(i-2)}, {v(r)}\nv_fma_f32 {v(di)}, {v(L16I)}, {v(r-2)}, {v(i)}")
        o.append((f"s_cmp_eq_u32 s{sW}, 3\ns_cselect_b32 s3, 0, 0x10000\nv_lshlrev_b32 {v(SG)}, 13, {v(HF)}\nv_add3_u32 {v(SG)}, {v(SG)}, {v(L16)}, s3\ns_lshl_b32 s3, s{sC}, 9\n"
                  f"buffer_store_dwordx4 {v(XA,4)}, {v(SG)}, {s(rE,4)}, s3 offen sc1", "epub"))
        return o

    def coef_ops():
        o = []
        for r in range(0, 16, 2):
            tt = XB + (r & 2)
            o += ops_of(f"v_pk_mul_f32 {v(tt,2)}, {v(SS+r,2)}, {v(NCFI,2)} op_sel_hi:[1,0]\nv_pk_mul_f32 {v(SS+r,2)}, {v(SS+r,2)}, {v(CFR,2)} op_sel_hi:[1,0]\n"
                        f"v_pk_fma_f32 {v(SS+r,2)}, {v(SS+16+r,2)}, {v(NCFI,2)}, {v(SS+r,2)} op_sel_hi:[1,0,1]\n"
                        f"v_pk_fma_f32 {v(SS+16+r,2)}, {v(SS+16+r,2)}, {v(CFR,2)}, {v(tt,2)} op_sel:[0,1,0] op_sel_hi:[1,1,1]")
        return o

    XSL = 3 * SLOT + 32768
    def xs_ops():
        P = TM + 19
        return [(f"s_lshl_b32 s{t2}, s{sM}, 1\ns_lshr_b32 s3, s{sW}, 1\ns_add_u32 s{t2}, s{t2}, s3\ns_lshl_b32 s{t2}, s{t2}, 15\n"
                 f"s_lshl_b32 s3, s{sN}, 7\ns_add_u32 s{t2}, s{t2}, s3\ns_and_b32 s3, s{sW}, 1\ns_lshl_b32 s3, s3, 6\ns_add_u32 s{t2}, s{t2}, s3\n"
                 f"v_lshrrev_b32 {v(P)}, 2, {v(L)}\nv_and_b32 {v(P-1)}, 3, {v(L)}\nv_lshlrev_b32 {v(P-1)}, 4, {v(P-1)}\nv_lshl_add_u32 {v(P)}, {v(P)}, 10, {v(P-1)}\n"
                 f"s_lshr_b32 s3, s{sW12}, 1\ns_add_u32 m0, s3, {XSL}", None),
                (f"buffer_load_dwordx4 {v(P)}, {s(rX,4)}, s{t2} offen {NT('y')}lds", "xs"),
                (f"s_add_u32 s{t2}, s{t2}, {16384 - 1024}\nbuffer_load_dwordx4 {v(P)}, {s(rX,4)}, s{t2} offen offset:1024 lds", "xs")]

    def mish_ops(t):
        ops = []
        TA, TB = MI, MI + 8
        for e in range(2):
            R = ACC + 16 * t + 8 * e
            one = lambda f: [(f(i), None) for i in range(8)]
            two = lambda f: [(f(i), None) for i in range(0, 8, 2)]
            ops += two(lambda i: f"v_pk_mul_f32 {v(TA+i,2)}, {v(R+i,2)}, {v(C1,2)} op_sel_hi:[1,0]")
            ops += one(lambda i: f"v_exp_f32 {v(TB+i)}, {v(TA+i)}")
            ops += two(lambda i: f"v_pk_fma_f32 {v(R+i,2)}, {v(TB+i,2)}, 0.5, 1.0 op_sel_hi:[1,0,0]")
            ops += two(lambda i: f"v_pk_fma_f32 {v(TB+i,2)}, {v(TB+i,2)}, {v(R+i,2)}, 1.0 op_sel_hi:[1,1,0]")
            ops += one(lambda i: f"v_rcp_f32 {v(TB+i)}, {v(TB+i)}")
            ops += two(lambda i: f"v_pk_fma_f32 {v(TA+i,2)}, {v(TA+i,2)}, {v(TB+i,2)}, {v(TA+i,2)} neg_lo:[1,0,0] neg_hi:[1,0,0]")
            ops += two(lambda i: f"v_cvt_pk_bf16_f32 {v(R+i//2)}, {v(TA+i)}, {v(TA+i+1)}")
            pre = f"s_add_u32 s{sA0}, s{sA0}, 4096\n" if t == 2 and e == 0 else ""
            ops.append((pre + f"buffer_store_dwordx4 {v(R,4)}, {v(L16)}, {s(rWS,4)}, s{sA0} offen offset:{(2*(t&1)+e)*1024} {st}", f"act{t}"))
        return ops

    PA, PV = BI, BI + 1

    def flag_publish(base, tag):
        k(f"s_lshl_b32 s{sQ}, s{sC}, 4\ns_add_u32 s{sQ}, s{sQ}, s{sG if base == FLC else sF}\ns_lshl_b32 s{sQ}, s{sQ}, 2\ns_add_u32 s{sQ}, s{sQ}, s{sW}\ns_lshl_b32 s{sQ}, s{sQ}, 7\ns_add_u32 s{sQ}, s{sQ}, {base}")
        k(f"v_mov_b32 {v(MF)}, s{sTAG}")
        k.wait(vm=tag)
        k("s_mov_b64 exec, 1")
        text = f"buffer_store_dword {v(MF)}, off, {s(rWS,4)}, s{sQ}"
        if mode == "global":
            k(text + " sc1", "flag")
        else:
            far, done = k.label("far"), k.label("flagged")
            k(f"s_cmp_eq_u32 s{sLOC}, 0\ns_cbranch_scc1 {far}")
            k(text, "flag")
            k(f"s_branch {done}\n{far}:")
            untracked(f"buffer_wbl2 sc1\ns_waitcnt vmcnt(0)\n{text} sc1")
            k(done + ":")
        k("s_mov_b64 exec, -1")

    def poll_load(tag):
        return [(f"buffer_load_dword {v(PV)}, {v(PA)}, {s(rWS,4)}, s{t3} offen sc1", tag)]

    def poll_base(base):
        return f"s_lshl_b32 s3, s{sC}, 5\ns_lshr_b32 s{t3}, s{sG}, 3\ns_add_u32 s3, s3, s{t3}\ns_lshl_b32 s3, s3, 8\ns_add_u32 s{t3}, s3, {base}"

    def poll_ops(first, base, tag):
        top = 15 if base == FLC else 13
        return [(f"{first}\nv_bfe_u32 {v(PA)}, {v(L)}, 1, 2\nv_add_u32 {v(PA)}, s3, {v(PA)}\nv_min_u32 {v(PA)}, {top}, {v(PA)}\nv_and_b32 {v(PV)}, 1, {v(L)}\n"
                 f"v_lshl_add_u32 {v(PA)}, {v(PA)}, 2, {v(PV)}\nv_lshlrev_b32 {v(PA)}, 7, {v(PA)}\n" + poll_base(base), None)] + poll_load(tag)

    poll1_ops = lambda: poll_ops(f"s_mov_b32 s3, s{sGE}", FLB if one else FLA, "poll1")
    poll2_ops = lambda: poll_ops(f"s_mov_b32 s3, s{sGL}", FLB, "poll2")
    poll3_ops = lambda: poll_ops(f"s_lshl_b32 s3, s{sW}, 2", FLC, "poll3")
    poll_check = lambda tag: spin_check(tag, tag, f"v_cmp_ne_u32 vcc, s{sTAG}, {v(PV)}", poll_load(tag))

    def carry_write():
        Y0, Y1 = TM + 12, TM + 13
        mis = (f"v_xor_b32 {v(Y0)}, {v(E0+1)}, {v(EX0)}\nv_xor_b32 {v(Y1)}, {v(E0+3)}, {v(EX0)}\nv_or_b32 {v(Y0)}, {v(Y0)}, {v(Y1)}\n"
               f"v_xor_b32 {v(Y1)}, {v(E0+5)}, {v(EX1)}\nv_or_b32 {v(Y0)}, {v(Y0)}, {v(Y1)}\nv_xor_b32 {v(Y1)}, {v(E0+7)}, {v(EX1)}\nv_or_b32 {v(Y0)}, {v(Y0)}, {v(Y1)}\n"
               f"v_cmp_ne_u32 vcc, 0, {v(Y0)}")
        spin_check("e", "eg", mis, e_loads())
        k(f"v_fmac_f32 {v(E0)}, {v(L2R)}, {v(E0+4)}\nv_fmac_f32 {v(E0+2)}, {v(L2R)}, {v(E0+6)}")
        k(f"v_fma_f32 {v(E0)}, -{v(L2I)}, {v(E0+6)}, {v(E0)}\nv_fmac_f32 {v(E0+2)}, {v(L2I)}, {v(E0+4)}")
        k(f"v_mul_f32 {v(Y0)}, {v(SCRR)}, {v(E0)}\nv_mul_f32 {v(Y1)}, {v(SCRR)}, {v(E0+2)}")
        k(f"v_fma_f32 {v(Y0)}, -{v(SCI)}, {v(E0+2)}, {v(Y0)}\nv_fmac_f32 {v(Y1)}, {v(SCI)}, {v(E0)}")
        k(f"ds_write_b64 {v(XW)}, {v(Y0,2)} offset:{SCR_CX - SCR_EX}", "cxw")
        k.wait(lg="all")
        k("s_barrier")
        for q in range(8):
            k(f"ds_read_b64 {v(TM+2*q,2)}, {v(XQ)} offset:{SCR_CX - SCR_EX + q*256}", "cxr")

    def fix_ops():
        o = []
        e = lambda text, tag=None: o.extend(ops_of(text, tag))
        o.append(W(lg="cxr"))
        for step in (8, 4, 2):
            for q in range(0, step, 2):
                e(f"v_pk_add_f32 {v(TM+q,2)}, {v(TM+q,2)}, {v(TM+q+step,2)}")
        NS = TM + 16
        e(f"v_fmac_f32 {v(PR)}, {v(PWR)}, {v(TM)}\nv_fmac_f32 {v(PI)}, {v(PWR)}, {v(TM+1)}")
        e(f"v_fma_f32 {v(NS)}, -{v(PWI)}, {v(TM+1)}, {v(PR)}\nv_fma_f32 {v(NS+1)}, -{v(PWI)}, {v(TM)}, -{v(PI)}")
        for qq in range(4):
            comp, half = qq >> 1, qq & 1
            for r in range(8 * half, 8 * half + 8, 2):
                d = SS + 16 * comp + r
                e(f"v_pk_fma_f32 {v(d,2)}, {v(T+r,2)}, {v(NS,2)}, {v(d,2)} op_sel:[0,{comp},0] op_sel_hi:[1,{comp},1]")
                if comp == 0:
                    e(f"v_pk_fma_f32 {v(d,2)}, {v(T+16+r,2)}, {v(NS,2)}, {v(d,2)} op_sel:[0,1,0] op_sel_hi:[1,1,1]")
                else:
                    e(f"v_pk_fma_f32 {v(d,2)}, {v(T+16+r,2)}, {v(NS,2)}, {v(d,2)} op_sel:[0,0,0] op_sel_hi:[1,0,1] neg_lo:[0,1,0] neg_hi:[0,1,0]")
            for q in range(4):
                e(f"v_cvt_pk_bf16_f32 {v(TM+4*qq+q)}, {v(SS+8*qq+2*q)}, {v(SS+8*qq+2*q+1)}")
            e(f"ds_write_b128 {v(HA)}, {v(TM+4*qq,4)} offset:{comp*2048 + half*16}", f"htw{comp}")
            if half:
                for f in (2 * comp, 2 * comp + 1):
                    for rd in range(2):
                        e(f"ds_read_b64_tr_b16 {v(SS+16*comp+4*(f&1)+2*rd,2)}, {v(HB)} offset:{f*1024 + rd*256}", f"htr{f}")
        for f in range(4):
            o.append(W(lg=f"htr{f}"))
            pre = f"s_add_u32 s{sKW}, s{sKW}, 8192\n" if f == 2 else ""
            o.append((pre + f"buffer_store_dwordx4 {v(SS+16*(f>>1)+4*(f&1),4)}, {v(L16)}, {s(rWS,4)}, s{sKW} offen offset:{(f&1)*1024} {st}", "hst"))
        return o

    def a_ops(b):
        if b < 7:
            src, add = (sAE, b) if b < 3 else (sAX, 0) if b == 3 else (sAL, b - 4)
            head = f"s_mov_b32 s3, s{src}" if b == 3 else turn(add, 13) + f"\ns_add_u32 s3, s{src}, s3"
            if one:
                head = f"s_add_u32 s3, s{sAE}, {b*4096}"
        elif brot:
            head = f"s_xor_b32 s3, s{sN}, {b-7}\ns_and_b32 s3, s3, 3\ns_lshl_b32 s{t1}, s{sW}, 2\ns_add_u32 s3, s3, s{t1}\ns_lshl_b32 s3, s3, 12\ns_add_u32 s3, s3, {112*1024}"
        else:
            head = f"s_lshl_b32 s3, s{sW}, 14\ns_add_u32 s3, s3, {(112 + 4*(b-7))*1024}"
        ops = [(head + f"\ns_add_u32 s{t1}, s{sP0}, s3\ns_add_u32 s{t2}, s{sP1}, s3", None)]
        for j in range(4):
            for m in range(2):
                pre = f"s_xor_b32 s3, s{sROT2}, {j}\ns_lshl_b32 s3, s3, 10\nv_add_u32 {v(AL)}, s3, {v(L16)}\n" if krot and m == 0 else ""
                ops.append((pre + f"buffer_load_dwordx4 {a(32*(b%NA)+8*j+4*m,4)}, {v(AL)}, {s(rWS,4)}, s{t2 if m else t1} offen offset:{0 if krot else j*1024} sc1 {NT('a')}", f"ab{b}_{j}"))
        return ops

    def finish(full):
        carry_write()
        if early_a != 0:
            poll_check("poll1")
        stamp("poll" if full else "Lpoll")
        fx = fix_ops()
        if full:
            fx[f12_at:f12_at] = [lambda: probe("f12a"), lambda: flag_publish(FLB, "act3"), lambda: probe("f12b")]
        na = dist if early_a is None else early_a
        blocks = [a_ops(0), a_ops(1) + (poll2_ops() if p2_mid else [])] + ([a_ops(2)] if dist == 3 else [])
        r7 = ring_ops(7) if nres == 5 else []
        if nres == 5:
            fx = fx[:-8] + stage_reads(4) + fx[-8:]
        if one and order in ("c", "d"):
            fx = fix_ops()
            if full:
                flag_publish(FLB, "act3")
                probe("f12b")
            weave(ring_ops(7) + ring_ops(8), fx[:-8])
            probe("fxend")
            run(poll1_ops())
            if order == "d":
                run(fx[-8:])
            poll_check("poll1")
            probe("p1ok")
            if order == "c":
                weave(a_ops(0), fx[-8:])
            run(sum((a_ops(b) for b in range(order == "c", a_first)), []))
            return
        if one and order == "b":
            weave(r7, fx[:-8])
            probe("fxend")
            run(poll1_ops())
            run(fx[-8:-4])
            poll_check("poll1")
            probe("p1ok")
            weave(a_ops(0), fx[-4:])
            run(sum((a_ops(b) for b in range(1, a_first)), []))
            return
        if one:
            blocks = [a_ops(b) for b in range(a_first)]
            weave(r7, fx[:-8])
            probe("fxend")
            if poll_pos == "pre":
                run(poll1_ops())
            run(fx[-8:])
            if poll_pos == "post":
                run(poll1_ops())
        elif na or r7:
            weave(r7 + sum(blocks[:na], []), fx[:-8])
            run(fx[-8:])
        else:
            run(fx)
        if nres == 5:
            k.wait(lg="sr4")
            run(ring_ops(8))
        if not na:
            probe("p1in")
            poll_check("poll1")
            probe("p1ok")
        run(sum(blocks[na:], []))

    def bar(**kw):
        def f():
            k.wait(**kw)
            k("s_barrier")
        return f

    k(f"s_cmp_eq_u32 s{sN}, {lite}\ns_cbranch_scc1 L_light")
    snap0 = k.snapshot()
    run(stage_ops(0, True)); par_loads()
    weave(stage_ops(1, True), early_setup() + (row_stats() if stats_at is None else tag_ops()))
    if pre3:
      if pre2:
        run(late_setup(True)[:n_before])
      else:
        weave((mid_ops() if mid_at == -2 else []) + stage_ops(2, True) + (mid_ops() if mid_at == -1 else []), late_setup(True)[:n_before])
    gemm1(True, "")
    stamp("gemm")
    gran_check(True)
    stamp("gran")
    m = [mish_ops(t) for t in range(4)]
    h = len(m[0]) // 2
    if "stores" in ablate:
        m = [[op if op[1] is None else (op[0].replace("offen", "offen").replace(v(L16), v(TM + 19)), op[1]) for op in mt] for mt in m]
        k(f"v_mov_b32 {v(TM+19)}, 0x7fffffff")
    for t in range(4):
        m[t].insert(0, (lambda tt: (lambda: probe(f"m{tt}")))(t))
    if "f1" in ablate:
        k(f"v_mov_b32 {v(MF)}, 0")
    r2 = ring_ops(2) if look == 2 else []
    if "scan" in ablate:
        drop = lambda ops: [op for op in ops if callable(op) or not op[0].startswith(("v_fmac", "v_pk_mul", "v_cmp", "v_cnd", "v_fma"))]
        so, co = scan_ops, chain_ops
        scan_ops, chain_ops = (lambda: drop(so())), (lambda: drop(co()))
    if "mish" in ablate:
        m = [[op for op in mt if callable(op) or op[1] is not None] for mt in m]
        h = 2
    if order == "m" and n_pre is not None:
        k("s_barrier")
        rings = [ring_ops(b) for b in range(2 if look == 2 else 3, 6)]
        pre = stage_reads(0) + stage_reads(1)
        weave(sum(rings[:n_pre], []) or [("s_nop 0", "none")], pre[:17] + m[0] + pre[17:] + m[1] + m[2] + m[3])
        stamp("mish")
        rest = sum(rings[n_pre:], [])
        cutp = len(rest) // 3
        while cutp and rest[cutp - 1][1] is None:
            cutp += 1
        run(rsv_reads())
        if flag_first:
            run(scan_ops())
            flag_publish(FLB, "act3")
            cutp = 0
        else:
            weave(rest[:cutp], scan_ops())
            probe("scan")
            if f12_late is None:
                flag_publish(FLB, "act3")
            probe("f12")
        bar(lg="all")()
        ch = chain_ops()
        if f12_late is not None:
            ch.insert(min(f12_late, len(ch)), lambda: flag_publish(FLB, "act3"))
        weave(rest[cutp:], ch + [lambda: stamp("epub")] + coef_ops() + stage_reads(2) + [W(lg="sr2")])
        weave(ring_ops(6), stage_reads(3) + [W(lg="sr3")])
        weave(ring_ops(7), stage_reads(4) + [W(lg="sr4")])
    elif order == "m":
        k("s_barrier")
        weave(ring_ops(2), stage_reads(0) + m[0])
        weave(ring_ops(3) + [W(lg="sr0")] + ring_ops(4), stage_reads(1) + m[1] + stage_reads(2))
        weave([W(lg="sr2")] + ring_ops(5), m[2])
        weave(ring_ops(6) if m_r6 else [("s_nop 0", "none")], m[3])
        stamp("mish")
        run(rsv_reads() + stage_reads(3) + scan_ops())
        flag_publish(FLB, "act3")
        bar(lg="all")()
        weave(([] if m_r6 else ring_ops(6)) + ring_ops(7), chain_ops())
        stamp("epub")
        run(stage_reads(4) + coef_ops() + [W(lg="sr4")])
    else:
      run(scan_ops())
      run(m[0][:h])
      bar(lg="all")()
      weave(r2 + ring_ops(3), chain_ops() + stage_reads(0) + m[0][h:] + [W(lg="sr0")])
      stamp("epub")
    if order == "m":
        pass
    elif order in ("c", "d"):
        hh = len(m[1]) // 2
        weave(ring_ops(4), stage_reads(1) + m[1][:hh] + [W(lg="sr1")])
        weave(ring_ops(5), stage_reads(2) + m[1][hh:] + [W(lg="sr2")])
        weave(ring_ops(6), m[2] + stage_reads(3))
        run(e_loads())
        run(m[3] + stage_reads(4) + coef_ops())
        stamp("mish")
        finish(True)
    else:
      weave(ring_ops(4), stage_reads(1) + m[1] + [W(lg="sr1")])
      weave(ring_ops(5), stage_reads(2) + m[2] + ([] if one else [lambda: flag_publish(FLA, "act1")]) + [W(lg="sr2")])
      run(e_loads())
      weave(ring_ops(6), (stage_reads(3) if nres == 5 else []) + m[3] + coef_ops())
      if not one:
          run(poll1_ops())
      stamp("mish")
      finish(True)
    k.wait(lg="all")
    k("s_branch L_join")
    snap_join = k.snapshot()

    k("L_light:")
    k.restore(snap0)
    k(f"s_lshl_b32 s{sQ}, s{sC}, 1\ns_lshr_b32 s3, s{sG}, 3\ns_add_u32 s{sQ}, s{sQ}, s3")
    rL = 36 if cs_late else rE
    if cs_late:
        nt = cs_nt
        run(stage_ops(0, False))
        par_loads()
    k(f"s_cmp_lt_u32 s{sQ}, 16\ns_cselect_b32 s{rL}, s{pBR}, s{pBI}\ns_cselect_b32 s{rL+1}, s{pBR+1}, s{pBI+1}\ns_mov_b32 s{rL+2}, 0x80000\ns_mov_b32 s{rL+3}, 0x20000")
    if cs_late:
        weave(stage_ops(1, False), early_setup() + tag_ops())
        if cs_pos == 2:
            weave(stage_ops(2, False), late_setup(False))
        run(srow_ops(True))
    k(f"s_and_b32 s{t0}, s{sQ}, 15\ns_lshl_b32 s{t0}, s{t0}, 15\ns_add_u32 s{t0}, s{t0}, s{sW13}")
    if "z" in nt:
        k(f"v_add_u32 {v(TM+18)}, s{t0}, {v(L16)}\ns_lshl_b32 s3, s{sQ}, 15\nv_add_u32 {v(TM+18)}, s3, {v(TM+18)}\nv_and_b32 {v(TM+18)}, 0x1fcfff, {v(TM+18)}")
        for i in range(8):
            k(f"global_load_dwordx4 a[0:3], {v(TM+18)}, s[34:35] offset:{(i&3)*1024} nt", "dummy")
            if i == 3:
                k(f"v_xor_b32 {v(TM+18)}, 0x1000, {v(TM+18)}")
    for i in range(8):
        if i == 4:
            k(f"s_add_u32 s{t0}, s{t0}, 4096")
        k(f"buffer_load_dwordx4 {v(SS+4*i,4)}, {v(L16)}, {s(rL,4)}, s{t0} offen offset:{(i&3)*1024} {NT('l') or NT('m') or (NT('h') if i < 2 else '') or (NT('k') if i < 4 else '')}", "lb")
    k(f"s_min_u32 s{t0}, s{sQ}, 27\ns_lshl_b32 s{t0}, s{t0}, 7\ns_mul_i32 s3, s{sW}, {128*3584}\ns_add_u32 s{t0}, s{t0}, s3")
    k(f"v_lshrrev_b32 {v(TM+16)}, 3, {v(L)}\nv_mul_u32_u24 {v(TM+16)}, 3584, {v(TM+16)}\nv_and_b32 {v(TM+17)}, 7, {v(L)}\nv_lshl_add_u32 {v(TM+16)}, {v(TM+17)}, 4, {v(TM+16)}")
    if "W" in nt:
        k(f"s_cmp_lt_u32 s{sW}, 2\ns_cbranch_scc1 L_lw_keep")
        for i in range(16):
            untracked(f"buffer_load_dwordx4 {v(ACC+4*i,4)}, {v(TM+16)}, {s(rW1,4)}, s{t0} offen nt\ns_add_u32 s{t0}, s{t0}, {8*3584}")
        k("s_branch L_lw_done\nL_lw_keep:")
    for i in range(16):
        k(f"buffer_load_dwordx4 {v(ACC+4*i,4)}, {v(TM+16)}, {s(rW1,4)}, s{t0} offen {NT('l') or NT('n') or (NT('q') if i < 6 else '')}", f"lw{i}")
        k(f"s_add_u32 s{t0}, s{t0}, {8*3584}")
    if "W" in nt:
        k("L_lw_done:")
    if cs_late:
        run(trickle_ops()[:trk_pre])
        if cs_pos == 1:
            weave(stage_ops(2, False), late_setup(False))
        run(row_stats(True))
    else:
        par_loads()
        if stats_at is not None:
            run(srow_ops(False))
        run(early_setup()); run(row_stats())
    CA, EL = TM, TM + 8

    def fold8(R):
        for j in range(0, 8, 2):
            k(f"v_permlane32_swap_b32 {v(R+j)}, {v(R+j+1)}")
        for j in range(0, 8, 2):
            k(f"v_add_f32 {v(R+j)}, {v(R+j)}, {v(R+j+1)}")
        k(f"v_permlane16_swap_b32 {v(R)}, {v(R+2)}\nv_permlane16_swap_b32 {v(R+4)}, {v(R+6)}")
        k(f"v_add_f32 {v(R)}, {v(R)}, {v(R+2)}\nv_add_f32 {v(R+4)}, {v(R+4)}, {v(R+6)}")

    def split_publish(R, addr, soff):
        k(f"v_cvt_pk_bf16_f32 {v(R+1)}, {v(R)}, {v(R)}\nv_and_b32 {v(R+1)}, 0xffff0000, {v(R+1)}\nv_sub_f32 {v(R+1)}, {v(R)}, {v(R+1)}")
        k(f"v_cvt_pk_bf16_f32 {v(R)}, {v(R)}, {v(R+1)}\nv_mov_b32 {v(R+1)}, s{sTAG}")
        k(f"buffer_store_dwordx2 {v(R,2)}, {v(addr)}, {s(rWS,4)}, s{soff} offen sc1", "cspub")

    k(f"s_mov_b32 s{t0}, 0x3f803f80")
    for j in range(8):
        k(f"v_mov_b32 {v(CA+j)}, 0")
    k(f"v_bfe_u32 {v(EL)}, {v(L)}, 4, 1\nv_lshl_add_u32 {v(EL)}, {v(EL)}, 1, {v(HF)}")
    k.wait(vm="lb")
    for j in range(4):
        for i in range(8):
            k(f"v_dot2c_f32_bf16 {v(CA+i)}, s{t0}, {v(SS+4*i+j)}")
    fold8(CA)
    for r in (8, 4, 2, 1):
        k(f"v_add_f32_dpp {v(CA)}, {v(CA)}, {v(CA)} row_ror:{r} row_mask:0xf bank_mask:0xf")
        k(f"v_add_f32_dpp {v(CA+4)}, {v(CA+4)}, {v(CA+4)} row_ror:{r} row_mask:0xf bank_mask:0xf")
    k(f"v_and_b32 {v(EL+1)}, 1, {v(L)}\nv_cmp_eq_u32 vcc, 1, {v(EL+1)}\nv_lshl_add_u32 {v(EL+1)}, {v(EL+1)}, 2, {v(EL)}\nv_lshlrev_b32 {v(EL+1)}, 3, {v(EL+1)}")
    k(f"v_cndmask_b32 {v(CA)}, {v(CA)}, {v(CA+4)}, vcc")
    k(f"s_lshl_b32 s{t2}, s{sQ}, 8\ns_lshl_b32 s3, s{sW}, 6\ns_add_u32 s{t2}, s{t2}, s3\ns_add_u32 s{t2}, s{t2}, {CS + 1792*8}")
    split_publish(CA, EL + 1, t2)
    stamp("Lbsum")
    if mid_at is not None and mid_at < 0:
        run(mid_ops())
    if not cs_late:
        run(stage_ops(0, False))
    k(f"s_mov_b32 s{t2}, 0x00003f80\ns_mov_b32 s{t3}, 0x3f800000")
    for j in range(8):
        k(f"v_mov_b32 {v(CA+j)}, 0")
    for i in range(16):
        k.wait(vm=f"lw{i}")
        for j in range(4):
            k(f"v_dot2c_f32_bf16 {v(CA+2*j)}, s{t2}, {v(ACC+4*i+j)}\nv_dot2c_f32_bf16 {v(CA+2*j+1)}, s{t3}, {v(ACC+4*i+j)}")
    for j in range(8):
        k(f"v_add_f32_dpp {v(CA+j)}, {v(CA+j)}, {v(CA+j)} row_ror:8 row_mask:0xf bank_mask:0xf")
    fold8(CA)
    k(f"v_and_b32 {v(EL+1)}, 7, {v(L)}\nv_lshl_add_u32 {v(EL+1)}, {v(EL+1)}, 3, {v(EL)}\nv_lshlrev_b32 {v(EL+1)}, 2, {v(EL+1)}")
    k(f"s_lshl_b32 s3, s{sW}, 8\ns_add_u32 s3, s3, 16384\nv_add_u32 {v(EL+1)}, s3, {v(EL+1)}")
    k(f"ds_write2_b32 {v(EL+1)}, {v(CA)}, {v(CA+4)} offset0:0 offset1:4", "cw")
    k(f"v_lshlrev_b32 {v(EL+1)}, 2, {v(L)}\nv_add_u32 {v(EL+1)}, 16384, {v(EL+1)}")
    k.wait(lg="all")
    k("s_barrier")
    for j in range(4):
        k(f"ds_read_b32 {v(CA+j)}, {v(EL+1)} offset:{j*256}", "cr")
    k(f"s_min_u32 s{t2}, s{sQ}, 27\ns_lshl_b32 s{t2}, s{t2}, 9\ns_add_u32 s{t2}, s{t2}, {CS}\nv_lshlrev_b32 {v(EL+2)}, 3, {v(L)}")
    k.wait(lg="all")
    k(f"v_add_f32 {v(CA)}, {v(CA)}, {v(CA+1)}\nv_add_f32 {v(CA+2)}, {v(CA+2)}, {v(CA+3)}\nv_add_f32 {v(CA)}, {v(CA)}, {v(CA+2)}")
    split_publish(CA, EL + 2, t2)
    stamp("Lwsum")
    if not cs_late:
        run(stage_ops(1, False))
    if pre3 and not cs_late:
        weave(stage_ops(2, False), late_setup(False)[:n_before])
    gemm1(False, "L")
    stamp("Lgemm")
    gran_check(False)
    run(scan_ops())
    bar(lg="all")()
    weave(r2 + ring_ops(3), chain_ops() + stage_reads(0) + stage_reads(1) + [W(lg="all")])
    stamp("Lepub")
    weave(ring_ops(4), stage_reads(2) + [W(lg="all")])
    weave(ring_ops(5) + ring_ops(6), coef_ops() + (stage_reads(3) if nres == 5 else []) + (stage_reads(4) if order in ("c", "d") else []))
    if order == "m":
        run(stage_reads(4) + [W(lg="all")] + ring_ops(7))
    else:
        run(e_loads())
        if not one:
            run(poll1_ops())
        finish(False)
    k.wait(lg="all")
    snap_light = k.snapshot()

    k("L_join:")
    if order == "m":
        k.merge(snap_join, snap_light, ("rb5", "rb6", "rb7"))
        probe("join")
        r8 = ring_ops(8)
        at = {"pre": 0, "mid": 5, "post": len(r8)}[ep_pos]
        run(r8[:at] + poll1_ops() + e_loads() + r8[at:])
        blocks = [a_ops(b) for b in range(a_first)]
        if a_lead:
            probe("r8")
            poll_check("poll1")
            probe("p1")
            run(blocks.pop(0))
            probe("a0")
            carry_write()
        else:
            carry_write()
            poll_check("poll1")
        stamp("poll")
        fx = fix_ops()
        weave(sum(blocks, []), fx[:-8])
        run(fx[-8:])
    else:
      k.merge(snap_join, snap_light, tuple(f"rb{b}" for b in range(nres, nres + (3 if order == "b" else 4))) + ("hst",) + (("poll2",) if p2_mid else ()) + tuple(f"ab{b}_{j}" for b in range(a_first if one else dist) for j in range(4)))
    stamp("stored")

    def b_reads(n):
        b, j = divmod(n, 4)
        hi = RING[b] >= HIGH
        off = RING[b] - (HIGH if hi else 0)
        if b < nres:
            return []
        if b < 7:
            return [(f"ds_read_b64_tr_b16 {a(FR+8*j+4*c+2*rd,2)}, {v(W2R+2*hi+c)} offset:{off + j*2048 + rd*1024}", f"f{n}")
                    for c in range(2) for rd in range(2)]
        return [(f"ds_read_b128 {a(FR+8*j+4*c,4)}, {v(CR+4*hi+j)} offset:{off + c*4096}", f"f{n}") for c in range(2)]

    if p2_at == 1 and not p2_mid and not one:
        run(poll2_ops())

    def addend_ops():
        o = [(f"s_lshr_b32 s3, s{sG}, 3\ns_lshl_b32 s3, s3, 1\ns_lshr_b32 s{sCNT}, s{sW}, 1\ns_add_u32 s3, s3, s{sCNT}\ns_lshl_b32 s3, s3, 7\ns_add_u32 s3, s3, {SCR}\n"
              f"v_lshlrev_b32 {v(TM+1)}, 6, {v(HF)}\nv_add_u32 {v(TM+1)}, s3, {v(TM+1)}", None)]
        for q in range(4):
            o += ops_of(f"ds_read_b128 {v(T+4*q,4)}, {v(TM+1)} offset:{q*16}\nds_read_b128 {v(T+16+4*q,4)}, {v(TM+1)} offset:{512+q*16}", "ast")
        P = TM + 2
        o.append((f"s_lshr_b32 s3, s{sW12}, 1\ns_add_u32 s3, s3, {XSL}\nv_bfe_u32 {v(P)}, {v(L)}, 2, 2\nv_lshl_add_u32 {v(P)}, {v(HF)}, 4, {v(P)}\nv_lshlrev_b32 {v(P)}, 6, {v(P)}\n"
                  f"v_bfe_u32 {v(P+1)}, {v(L)}, 4, 1\nv_lshl_add_u32 {v(P)}, {v(P+1)}, 5, {v(P)}\nv_and_b32 {v(P+1)}, 3, {v(L)}\nv_lshl_add_u32 {v(P)}, {v(P+1)}, 3, {v(P)}\nv_add_u32 {v(P)}, s3, {v(P)}", None))
        o.append(W(vm="xs"))
        for q in range(4):
            o += ops_of(f"ds_read_b64_tr_b16 {v(XS+16+2*q,2)}, {v(P)} offset:{q*256}", "ast")
        o.append(W(lg="ast"))
        for r in range(16):
            unpack = f"v_and_b32 {v(XS+r)}, 0xffff0000, {v(XS+16+r//2)}" if r & 1 else f"v_lshlrev_b32 {v(XS+r)}, 16, {v(XS+16+r//2)}"
            o += ops_of(f"{unpack}\nv_sub_f32 {v(T+16+r)}, {v(XS+r)}, {v(T+16+r)}\n"
                        f"v_mul_f32 {v(T+16+r)}, {v(T+16+r)}, {v(T+r)}\nv_fmac_f32 {v(XS+r)}, {v(T+16+r)}, {v(DSK)}")
        return o

    a_next = a_first if one else dist
    for b in range(11):
        nxt = []
        if b == f3_at and not f3_step:
            flag_publish(FLC, "hst")
            stamp("flag")
        if b == p2_at and not one:
            poll_check("poll2")
            stamp("poll2")
        if b == p3_at:
            poll_check("poll3")
            stamp("poll3")
        while a_next <= min(b + dist, 10) and b >= (0 if a_next < (7 if one else 3) else p2_at if a_next < 7 else p3_at):
            nxt += a_ops(a_next); a_next += 1
        if b == p2_at - 2 and not p2_mid and not one:
            nxt += poll2_ops()
        if b == (p3_at - 2 if p3_issue is None else p3_issue):
            nxt = nxt + poll3_ops() if p3_issue is None else poll3_ops() + nxt
        if nres == 5:
            if b in (6, 7):
                nxt = ring_ops(b + 3) + nxt
            if order == "b" and b == 2:
                nxt += ring_ops(8)
        elif 7 <= b + dist < (9 if "rb" in ablate else 11):
            nxt += ring_ops(b + dist)
        if b == xs_at:
            nxt += xs_ops()
        if "xchg" in ablate and b == 6:
            nxt += [(f"s_lshl_b32 s3, s2, 2\ns_add_u32 s3, s3, s{sW}\ns_lshl_b32 s{sKW}, s3, 12\ns_add_u32 s{sKW}, s{sKW}, {32 << 20}", None)]
            nxt += [(f"buffer_store_dwordx4 {v(MI,4)}, {v(L16)}, {s(rWS,4)}, s{sKW} offen offset:{q*1024} sc1", "xst") for q in range(4)]
        if "xchg" in ablate and b == 9:
            nxt += [(f"s_xor_b32 s{sKW}, s{sKW}, {2 << 14}", None)]
            nxt += [(f"buffer_load_dwordx4 {v(MI+4*q,4)}, {v(L16)}, {s(rWS,4)}, s{sKW} offen offset:{q*1024} sc1", "xld") for q in range(4)]
        val = spread(addend_ops(), 32)[16 * (b - xs_at - 2):16 * (b - xs_at - 1)] if 2 <= b - xs_at <= 3 else [[]] * 16
        mm = spread_mem(nxt, 16) if nxt else [[]] * 16
        if b == 10 and tail_major:
            break
        for j in range(4):
            n = 4 * b + j
            rd = [[]] * 4
            if 4 * nres <= n + 1 < 44:
                if j == 3 and not ("rb" in ablate and b >= 8):
                    k.wait(vm=f"rb{b+1}")
                rd = spread(b_reads(n + 1), 4)
            if b == f3_at and f3_step and j == f3_step:
                flag_publish(FLC, "hst")
            k.wait(vm=f"ab{b}_{j}", lg=f"f{n}" if b >= nres else None)
            if j == 0 and b in (0, 8):
                stamp(f"blk{b}")
            for m in range(2):
                for c in range(2):
                    bop = (RESB[b] if b < nres else FR) + 8 * j + 4 * c
                    mfma(ACC + 32 * m + 16 * c, a(32 * (b % NA) + 8 * j + 4 * m, 4), a(bop, 4), "0" if n == 0 else None)
                    run(rd[2 * m + c]); run(mm[4 * j + 2 * m + c]); run(val[4 * j + 2 * m + c])
            probe(f"b{b}_{j}")
    GA = TM
    pre = ops_of(f"v_add_u32 {v(GA)}, s{sW13}, {v(L16)}")
    for u in (1, 2, 3):
        pre += ops_of(f"v_xor_b32 {v(GA+u)}, {u << 13}, {v(GA)}")
    pre.append((f"s_lshl_b32 s{t2}, s{sM}, 1\ns_lshr_b32 s3, s{sW}, 1\ns_add_u32 s{t2}, s{t2}, s3\ns_lshl_b32 s{t2}, s{t2}, 16\n"
                f"s_lshl_b32 s3, s{sN}, 8\ns_add_u32 s{t2}, s{t2}, s3\ns_and_b32 s3, s{sW}, 1\ns_lshl_b32 s3, s3, 7\ns_add_u32 s{t2}, s{t2}, s3", None))
    pre += ops_of(f"v_lshlrev_b32 {v(TM+4)}, 15, {v(HF)}\nv_lshl_add_u32 {v(TM+4)}, {v(LR)}, 2, {v(TM+4)}")
    wr = lambda u: [(f"ds_write_b128 {v(GA)}, {v(ACC+16*u+4*q,4)} offset:{(u>>1)*SLOT + (u&1)*4096 + q*1024}", "fw") for q in range(4)]
    if tail_major:
        for j in (1, 2, 3):
            run(b_reads(40 + j))
        run(pre)
        for u in (3, 2, 1, 0):
            for j in range(4):
                k.wait(vm=f"ab10_{j}", lg=f"f{40+j}")
                mfma(ACC + 16 * u, a(32 * (10 % NA) + 8 * j + 4 * (u >> 1), 4), a(FR + 8 * j + 4 * (u & 1), 4))
                late = {(2, 3): wr(3)[:1], (1, 0): wr(3)[1:2], (1, 1): wr(3)[2:3], (1, 2): wr(3)[3:], (1, 3): wr(2)[:1], (0, 0): wr(2)[1:2], (0, 1): wr(2)[2:3], (0, 2): wr(2)[3:],
                        (0, 3): wr(1)}
                run(late.get((u, j), []))
        stamp("p2done")
    else:
        stamp("p2done")
        run(pre)
        for u in (1, 2, 3):
            run(wr(u))
    k(f"s_mov_b32 s{t0}, 0x3f317218")
    k.wait(lg="all")
    k("s_barrier")
    for q in range(4):
        for u in (1, 2, 3):
            k(f"ds_read_b128 {v(ACC+16*u+4*q,4)}, {v(GA+u)} offset:{(u>>1)*SLOT + (u&1)*4096 + q*1024}", f"fr{q}")
    for q in range(4):
        k.wait(lg=f"fr{q}")
        for i in (0, 2):
            r = 4 * q + i
            k(f"v_pk_add_f32 {v(ACC+r,2)}, {v(ACC+r,2)}, {v(ACC+16+r,2)}\nv_pk_add_f32 {v(ACC+32+r,2)}, {v(ACC+32+r,2)}, {v(ACC+48+r,2)}")
        for i in (0, 2):
            r = 4 * q + i
            k(f"v_pk_add_f32 {v(ACC+r,2)}, {v(ACC+r,2)}, {v(ACC+32+r,2)}\nv_pk_fma_f32 {v(ACC+r,2)}, {v(ACC+r,2)}, {s(t0,2)}, {v(XS+r,2)} op_sel_hi:[1,0,1]")
        for i in range(4):
            r = 4 * q + i
            k(f"buffer_store_dword {v(ACC+r)}, {v(TM+4)}, {s(rOUT,4)}, s{t2} offen offset:{(r&1)*2048} {out_flags}", "out")
            if r & 1:
                k(f"s_add_u32 s{t2}, s{t2}, 4096")
    k(f"s_cmp_lg_u32 s{sC}, 15\ns_cbranch_scc1 L_fin\ns_or_b32 s3, s{sG}, s{sW}\ns_cmp_lg_u32 s3, 0\ns_cbranch_scc1 L_fin")
    k(f"v_mov_b32 {v(TM+5)}, s{sTAG}\ns_mov_b64 exec, 1")
    k(f"buffer_store_dword {v(TM+5)}, off, {s(rWS,4)}, 0 sc1\ns_mov_b64 exec, -1")
    k("L_fin:")
    if diag:
        k("s_waitcnt vmcnt(0)")
        stamp("end")
        for i in range(len(seen)):
            k(f"v_writelane_b32 {v(DG)}, s{FINE[i]}, {16+i}")
        k(f"s_lshl_b32 s3, s2, 2\ns_add_u32 s3, s3, s{sW}\ns_lshl_b32 s3, s3, 8\ns_add_u32 s3, s3, {DIAG}\nv_lshlrev_b32 {v(TM)}, 2, {v(L)}")
        k(f"buffer_store_dword {v(DG)}, {v(TM)}, {s(rWS,4)}, s3 offen sc1")
        if amplify == "skew":
            k(f"s_cmp_lg_u32 s2, {amp_wg}\ns_cbranch_scc1 L_end\nv_readlane_b32 s14, {v(DG)}, {len(stamps)-1}\ns_nop 3")
            k("L_w:\ns_memrealtime s[34:35]\ns_waitcnt lgkmcnt(0)\ns_sub_u32 s3, s34, s14\ns_cmp_lt_u32 s3, 500\ns_cbranch_scc1 L_w")
            k(f"v_lshlrev_b32 {v(TM)}, 10, {v(L)}\ns_mov_b32 s3, {DIAG}")
            for q in range(4):
                k(f"buffer_load_dword {v(TM+4+q)}, {v(TM)}, {s(rWS,4)}, s3 offen sc1\ns_add_u32 s3, s3, 65536")
            k(f"s_waitcnt vmcnt(0)\nv_min_u32 {v(TM+1)}, {v(TM+4)}, {v(TM+5)}\nv_min3_u32 {v(TM+1)}, {v(TM+1)}, {v(TM+6)}, {v(TM+7)}")
            k(f"v_max_u32 {v(TM+2)}, {v(TM+4)}, {v(TM+5)}\nv_max3_u32 {v(TM+2)}, {v(TM+2)}, {v(TM+6)}, {v(TM+7)}")
            for r in (8, 4, 2, 1):
                k(f"v_min_u32_dpp {v(TM+1)}, {v(TM+1)}, {v(TM+1)} row_ror:{r} row_mask:0xf bank_mask:0xf\nv_max_u32_dpp {v(TM+2)}, {v(TM+2)}, {v(TM+2)} row_ror:{r} row_mask:0xf bank_mask:0xf")
            k(f"s_nop 1\nv_readlane_b32 s12, {v(TM+1)}, 0\nv_readlane_b32 s13, {v(TM+2)}, 0\ns_nop 3\ns_sub_u32 s13, s13, s12\ns_min_u32 s13, s13, 1000\ns_lshl_b32 s13, s13, 2\ns_add_u32 s13, s13, 600")
            k("L_amp:\ns_memrealtime s[34:35]\ns_waitcnt lgkmcnt(0)\ns_sub_u32 s3, s34, s14\ns_cmp_lt_u32 s3, s13\ns_cbranch_scc1 L_amp")
        elif amplify:
            k(f"s_cmp_lg_u32 s2, {amp_wg}\ns_cbranch_scc1 L_end")
            k(f"v_readlane_b32 s12, {v(DG)}, 0\nv_readlane_b32 s13, {v(DG)}, {stamps.index(amplify)}\nv_readlane_b32 s14, {v(DG)}, {len(stamps)-1}\ns_nop 3")
            k("s_sub_u32 s13, s13, s12\ns_min_u32 s13, s13, 5000\ns_lshl_b32 s13, s13, 2")
            k("L_amp:\ns_memrealtime s[34:35]\ns_waitcnt lgkmcnt(0)\ns_sub_u32 s3, s34, s14\ns_cmp_lt_u32 s3, s13\ns_cbranch_scc1 L_amp")
    k("L_end:")
    k("s_endpgm")
    for text in cold:
        k(text)

    body, nops = pad(k.lines)
    hdr = open("parallel_sum__ssm_conv_s5__dense_activation_mish__prompt.s.ref").read().split("; Override")[0]
    hdr += """;
; One launch, 256 workgroups of 4 waves (one per CU, all resident). Workgroup (c, g): rows 128c..128c+127,
; scan channels 32g..32g+31 and, unless g & 7 == 3, 128 FFN columns. Raw x is the matrix operand; the
; LayerNorm mean and the bias are one extra k-step, the row scale is applied to the accumulators. The scan is
; exact: 16-step segments in registers, segment and tile end states combined with powers of lambda. Mish
; activations and states go to d_ws as bf16 matrix operands; each workgroup then finishes a 64 x 64 output tile.
; Hand-offs use write-through stores and tags derived from a generation word in d_ws that each launch advances.
"""
    text = hdr + "; @launch grid=(256,1,1) block=(256,1,1) lds=163840\n"
    text += f'.amdgcn_target "amdgcn-amd-amdhsa--gfx950"\n.text\n.globl {KNAME}\n.p2align 8\n.type {KNAME},@function\n{KNAME}:\n'
    text += "\n".join(body) + "\n"
    text += f""".section .rodata,"a"
.p2align 6
.amdhsa_kernel {KNAME}
  .amdhsa_next_free_vgpr 512
  .amdhsa_next_free_sgpr 102
  .amdhsa_accum_offset 256
  .amdhsa_group_segment_fixed_size 0
  .amdhsa_kernarg_size 128
  .amdhsa_user_sgpr_count 2
  .amdhsa_user_sgpr_kernarg_segment_ptr 1
  .amdhsa_system_sgpr_workgroup_id_x 1
.end_amdhsa_kernel
"""
    return text, dict(nops=nops, vgprs=V.next, stamps=stamps, seen=seen, lines=len(body), regs=V.names)


if __name__ == "__main__":
    import json
    kw = json.loads(sys.argv[2]) if len(sys.argv) > 2 else {}
    text, info = gen(**kw)
    open(sys.argv[1], "w").write(text)
    print({q: info[q] for q in ("nops", "vgprs", "lines")})
```

```python
import sys
from emit import K, Alloc, rng, pad

KNAME = "parallel_sum__ssm_conv_s5__dense_activation_mish__prompt_kernel"
EPOCH, STATS, XID, CS, EG, FLA, FLB, FLC, AF = 0, 0x10000, 0x20000, 0x30000, 0x40000, 0x80000, 0xA0000, 0xC0000, 0x100000
DIAG = 200 << 20
MT = 176 * 1024
SLOT = 40960
HIGH = 2 * SLOT
SCR = 32768
SCR_EX, SCR_CX = SCR + 1024, SCR + 4096
SCR_HT = SLOT + 32768
RING = {b: SLOT * q for b, q in enumerate((0, 1, 2, 3, 0, 1, 2, 3, 0, 1, 2))}
RES = 160
LOG2E = 0x3fb8aa3b
SPIN = 1 << 16


def weight(op):
    if callable(op):
        return 0.2
    w = 0.0
    for l in op[0].split("\n"):
        mn = l.split()[0]
        w += 2 if mn in ("v_exp_f32", "v_rcp_f32", "v_sin_f32", "v_cos_f32") else 0.3 if mn.startswith("s_") else 1
    return w


def cost(op):
    if callable(op):
        return 3
    c = 0.0
    for l in op[0].split("\n"):
        mn = l.split()[0]
        c += (8.3 if mn in ("v_exp_f32", "v_rcp_f32", "v_sin_f32", "v_cos_f32") else 13 if mn.startswith("buffer_") else
              1 if mn.startswith("s_") else 4.3)
    return c


def spread(ops, n):
    total = sum(map(weight, ops)) or 1
    out = [[] for _ in range(n)]
    acc = 0.0
    for op in ops:
        out[min(n - 1, int(acc / total * n + 1e-9))].append(op)
        acc += weight(op)
    return out


def spread_mem(ops, n):
    groups, cur = [], []
    for op in ops:
        cur.append(op)
        if not callable(op) and op[1] is not None:
            groups.append(cur); cur = []
    if cur:
        groups[-1] += cur
    out = [[] for _ in range(n)]
    for i, g in enumerate(groups):
        out[i * n // len(groups)] += g
    return out


def gen(mode="global", mapping="x4g8", diag=False, rot="none", amplify=None, amp_wg=0, out_flags="sc1", ablate=(), l2pf=False,
        pf_at=4, gran_at=7, look=2, fine=(), p2_at=2, p3_at=5, dist=2, xs_at=4, tail_major=True, far_at=2, mt_pad=0, lite=3, trickle=True, budget=33, pre3=True, f3_at=1, p2_mid=False, backoff=0, early_a=0, trk_w2=None, code_pf=True, krot=False, brot=False, trk_c=None, nres=5, one=True, poll_pos="pre", a_first=2, af_mb=1, order="m", f12_at=0, m_r6=True, n_pre=2, flag_first=False, ep_pos="pre", a_lead=True, f12_late=40, f3_step=2, p3_issue=4, n_before=999, nt="sl", far2_at=None, cc_at=None, far_spread=True, far_plan=None, mid_at=None, mid="xw", nt_st=1, stats_at=1, stats_nt="", cs_late=True, cs_nt="l", cs_pos=2, trk_pre=0, pre4=False, par_late=True, pre2=False, far_light=None, c_light=None):
    NT = lambda c: "nt " if c in nt else ""
    AF = af_mb << 20
    assert nres == 3 or dist == 2
    RESB = {0: 160, 1: 192, 2: 224} if nres == 3 else {0: 128, 1: 160, 2: 192, 3: 224, 4: 96}
    NA = 4 if nres == 3 else 3
    MT = 176 * 1024 + mt_pad
    npre = 2
    k = K()
    V = Alloc("v", 1, 256)
    v = lambda r, n=1: rng("v", r, n)
    a = lambda r, n=1: rng("a", r, n)
    s = lambda r, n=1: rng("s", r, n)
    st = "sc1" if mode == "global" else ""
    xid = mode != "global"

    sC, sG, sW, sROT, sM, sN, sTAG, sLOC = 4, 5, 6, 7, 8, 9, 10, 11
    t0, t1, t2, t3 = 12, 13, 14, 15
    pX, pLR, pLI, pBR, pBI, pCR, pCI, pDT, pDS, pW1, pB1, pW2, pOUT, pWS = 16, 18, 20, 22, 24, 26, 28, 30, 32, 36, 38, 40, 42, 46
    rX, rW1, rB, rE, rW2, rCR, rCI, rWS, rOUT = 48, 52, 56, 60, 64, 68, 72, 76, 80
    sXB, sBB, sWB, sA0, sP1, sKW, sCNT, sAF, sQ, sW12, sW13 = 84, 85, 86, 87, 88, 89, 90, 91, 92, 93, 94
    sHI, sXCC, sF, sP0, sROT2, sR3, sRB = 98, 100, 97, 96, 17, 16, 11
    sBE, sBX, sBL, sAE, sAX, sAL, sGE, sGL, sJ, sXD = 18, 19, 20, 21, 22, 23, 24, 25, 95, 101
    sD = 34

    L, LR, HF, L16, TAU = V("l"), V("lr"), V("hf"), V("l16"), V("tau")
    XD, CD, WD, W2D = V("xd", 4), V("cd", 4), V("wd", 4), V("w2d", 4)
    XR, WR, BQ, CR, W2R = V("xr", 4), V("wr", 4), V("bq", 4), V("cr", 8), V("w2r", 4)
    LAR, LAI, NLAI, L16R, L16I, NL16I, PWR, PWI, L2R, L2I, SCRR, SCI, CFR, NCFR, NCFI = [V(x) for x in
        "lar lai nlai l16r l16i nl16i pwr pwi l2r l2i scr sci cfr ncfr ncfi".split()]
    PR, PI, MF = V("pr"), V("pi"), V("mf")
    ACC, SS, T = V("acc", 64, 4), V("ss", 32, 4), V("t", 32, 4)
    XA, XB, WE = V("xa", 4, 4), V("xb", 4, 4), V("we", 12, 4)
    MI = V("mish", 16, 4)
    TM = V("tmp", 20, 4)
    C1, RS = V("c1", 1, 2), V("rs")
    DSK = V("dsk")
    BI = V("bias", 2)
    DG = V("diag")
    AL = V("al") if krot else L16
    FR = 128
    RSV, EK, XS = MI, TM, SS

    stamps = []
    def stamp(name):
        probe(name)
        if diag and (not fine or name == "end"):
            stamps.append(name)
            k(f"s_memrealtime s[{sD}:{sD+1}]\ns_memtime s[44:45]\ns_waitcnt lgkmcnt(0)")
            k.lg_done = len(k.lg)
            k(f"v_writelane_b32 {v(DG)}, s{sD}, {len(stamps)-1}\nv_writelane_b32 {v(DG)}, s44, {len(stamps)+31}")

    FINE = (26, 28, 30, 32, 36, 38, 40, 42)
    seen = []
    def probe(key):
        if key in fine and key not in seen:
            k(f"s_memtime s[{FINE[len(seen)]}:{FINE[len(seen)]+1}]")
            seen.append(key)

    def srd(d, p, nbytes):
        return f"s_mov_b32 s{d}, s{p}\ns_mov_b32 s{d+1}, s{p+1}\ns_mov_b32 s{d+2}, {nbytes:#x}\ns_mov_b32 s{d+3}, 0x20000"

    small = [False]
    flip = [0]
    def mfma(d, x, y, c=None):
        if small[0]:
            flip[0] ^= 8
            for q in (0, 4):
                dd = d + flip[0] + q
                k(f"v_mfma_f32_16x16x32_bf16 {v(dd,4)}, {x}, {y}, {v(dd,4) if c is None else c}")
            return
        k(f"v_mfma_f32_32x32x16_bf16 {v(d,16)}, {x}, {y}, {v(d,16) if c is None else c}")

    def untracked(text):
        n = len(k.vm)
        k(text)
        del k.vm[n:]

    def run(ops):
        for op in ops:
            if callable(op):
                op()
            else:
                k(*op)

    def ops_of(text, tag=None):
        return [(l, tag) for l in text.split("\n")]

    W = lambda **kw: (lambda: k.wait(**kw))

    note = lambda text: k("; ---- " + text)
    k("s_cmp_ge_u32 s2, 256\ns_cbranch_scc1 L_end")
    k("s_load_dwordx16 s[16:31], s[0:1], 0\ns_load_dwordx16 s[32:47], s[0:1], 64")
    if diag:
        k("s_memrealtime s[12:13]\ns_memtime s[10:11]")
    A_, B_, C_, D_ = TM, TM + 1, TM + 2, TM + 3
    k(f"v_and_b32 {v(L)}, 63, v0\nv_lshrrev_b32 {v(A_)}, 6, v0\nv_and_b32 {v(LR)}, 31, v0")
    k(f"v_readfirstlane_b32 s{sW}, {v(A_)}")
    k(f"v_lshrrev_b32 {v(HF)}, 5, {v(L)}\nv_lshlrev_b32 {v(L16)}, 4, {v(L)}")
    k(f"s_and_b32 s14, s2, 7\ns_lshr_b32 s15, s2, 3\ns_mov_b32 s{sXD}, s14\ns_mov_b32 s{sJ}, s15")
    if code_pf:
        note("each wave pulls 256 bytes of this kernel's code into the die's L2")
        k(f"s_getpc_b64 s[96:97]\nL_pc:\ns_sub_u32 s96, s96, L_pc-{KNAME}\ns_subb_u32 s97, s97, 0")
        k(f"s_lshl_b32 s3, s{sW}, 5\ns_add_u32 s3, s3, s15\ns_lshl_b32 s3, s3, 8\nv_lshl_add_u32 {v(TM+19)}, {v(L)}, 2, s3\nv_min_u32 {v(TM+19)}, L_end-{KNAME}, {v(TM+19)}")
        k(f"global_load_dword a255, {v(TM+19)}, s[96:97] {NT('c')}", "pf")
    if mapping == "rows":
        k(f"s_and_b32 s3, s15, 1\ns_lshl_b32 s{sC}, s14, 1\ns_or_b32 s{sC}, s{sC}, s3\ns_lshr_b32 s{sG}, s15, 1")
    elif mapping == "x8g4":
        k(f"s_lshr_b32 s3, s14, 2\ns_lshl_b32 s3, s3, 3\ns_and_b32 s{sC}, s15, 7\ns_or_b32 s{sC}, s{sC}, s3")
        k(f"s_and_b32 s3, s14, 3\ns_lshl_b32 s3, s3, 2\ns_lshr_b32 s{sG}, s15, 3\ns_or_b32 s{sG}, s{sG}, s3")
    elif mapping == "x4g8":
        k(f"s_lshr_b32 s3, s14, 1\ns_lshl_b32 s3, s3, 2\ns_and_b32 s{sC}, s15, 3\ns_or_b32 s{sC}, s{sC}, s3")
        k(f"s_and_b32 s3, s14, 1\ns_lshl_b32 s3, s3, 3\ns_lshr_b32 s{sG}, s15, 2\ns_or_b32 s{sG}, s{sG}, s3")
    k({"cg": f"s_add_u32 s{sROT}, s{sC}, s{sG}\ns_and_b32 s{sROT}, s{sROT}, 7", "none": f"s_mov_b32 s{sROT}, 0",
       "c": f"s_and_b32 s{sROT}, s{sC}, 7", "g": f"s_and_b32 s{sROT}, s{sG}, 7"}[rot])
    k(f"s_cmp_gt_u32 s{sG}, {lite}\ns_subb_u32 s{sF}, s{sG}, 0\ns_cmp_gt_u32 s{sG}, {lite + 8}\ns_subb_u32 s{sF}, s{sF}, 0")
    k(f"s_lshl_b32 s{sW12}, s{sW}, 12\ns_lshl_b32 s{sW13}, s{sW}, 13")
    k(f"v_lshrrev_b32 {v(A_)}, 3, {v(L)}")
    k(f"v_and_b32 {v(B_)}, 7, {v(L)}\nv_lshrrev_b32 {v(C_)}, 4, {v(L)}")
    k(f"v_xor_b32 {v(B_)}, {v(B_)}, {v(C_)}\nv_lshlrev_b32 {v(B_)}, 4, {v(B_)}")
    k(f"v_and_b32 {v(C_)}, 3, {v(A_)}\nv_lshl_add_u32 {v(C_)}, {v(HF)}, 4, {v(C_)}")
    k(f"v_lshl_add_u32 {v(XD)}, {v(C_)}, 10, {v(B_)}")
    k(f"v_xor_b32 {v(XD+1)}, 64, {v(XD)}\nv_add_u32 {v(XD+2)}, 6144, {v(XD)}")
    k(f"v_add_u32 {v(XD+3)}, 9216, {v(XD+1)}\nv_add_u32 {v(XD+1)}, 3072, {v(XD+1)}")
    k(f"v_lshl_add_u32 {v(CD)}, {v(A_)}, 10, {v(B_)}")
    k(f"v_xor_b32 {v(CD+1)}, 64, {v(CD)}\nv_add_u32 {v(CD+2)}, {2*7168}, {v(CD)}\nv_add_u32 {v(CD+3)}, {3*7168}, {v(CD+1)}\nv_add_u32 {v(CD+1)}, 7168, {v(CD+1)}")
    k(f"v_lshlrev_b32 {v(A_)}, 10, {v(HF)}\nv_lshl_add_u32 {v(A_)}, {v(LR)}, 4, {v(A_)}")
    k(f"s_lshl_b32 s{sXB}, s{sC}, 17\ns_lshl_b32 s3, s{sW}, 15\ns_add_u32 s{sXB}, s{sXB}, s3")
    k(f"s_and_b32 s3, s{sW}, 1\ns_lshl_b32 s3, s3, 14\ns_lshl_b32 s{sBB}, s{sG}, 15\ns_add_u32 s{sBB}, s{sBB}, s3")
    k(f"v_lshrrev_b32 {v(C_)}, 4, {v(L)}\nv_and_b32 {v(D_)}, 15, {v(L)}\nv_lshlrev_b32 {v(B_)}, 2, {v(C_)}")
    k(f"v_xor_b32 {v(D_)}, {v(D_)}, {v(B_)}\nv_lshlrev_b32 {v(D_)}, 4, {v(D_)}\nv_mul_u32_u24 {v(C_)}, 3584, {v(C_)}\nv_add_u32 {v(WD)}, {v(C_)}, {v(D_)}")
    for i in (1, 2, 3):
        k(f"v_add_u32 {v(WD+i)}, {i*13312}, {v(WD)}")
    k(f"s_mul_i32 s{sWB}, s{sW}, {16*3584}\ns_lshl_b32 s3, s{sF}, 8\ns_add_u32 s{sWB}, s{sWB}, s3")
    k(f"s_lshl_b32 s3, s{sC}, 4\ns_add_u32 s3, s3, s{sG}\ns_lshl_b32 s3, s3, 2\ns_add_u32 s3, s3, s{sW}\ns_lshl_b32 s{t2}, s3, 11")
    k(f"s_lshl_b32 s3, s{sG}, 5\nv_add_lshl_u32 {v(B_)}, {v(LR)}, s3, 1")
    k(f"s_lshl_b32 s3, s{sF}, 7\nv_add_lshl_u32 {v(C_)}, {v(L)}, s3, 1\nv_min_u32 {v(C_)}, 3454, {v(C_)}")
    k(f"s_and_b32 s{sN}, s{sG}, 7\ns_lshl_b32 s3, s{sN}, 1\ns_and_b32 s{t3}, s{sW}, 1\ns_or_b32 s3, s3, s{t3}\ns_lshl_b32 s3, s3, 5\nv_add_lshl_u32 {v(D_)}, {v(LR)}, s3, 1")
    k("s_waitcnt lgkmcnt(0)")
    if diag:
        k(f"v_writelane_b32 {v(DG)}, s12, 0\nv_writelane_b32 {v(DG)}, s10, 32"); stamps.append("start")
    k(srd(rX, pX, 2 << 20))
    SR = TM + 4
    PL = MI
    if not par_late:
        k(f"global_load_ushort {v(PL)}, {v(B_)}, {s(pLR,2)} {NT('p')}\nglobal_load_ushort {v(PL+1)}, {v(B_)}, {s(pLI,2)} {NT('p')}\nglobal_load_ushort {v(PL+2)}, {v(B_)}, {s(pDT,2)} {NT('p')}", "par")
    def srow_ops(late):
        A, fl = (TM + 14, stats_nt) if late else (A_, None)
        f0, f1 = (fl, fl) if late else (NT('s') or NT('u'), NT('s') or NT('v'))
        pre = f"v_lshlrev_b32 {v(A)}, 10, {v(HF)}\nv_lshl_add_u32 {v(A)}, {v(LR)}, 4, {v(A)}\n" if late else ""
        return [(pre + f"buffer_load_dwordx4 {v(SR,4)}, {v(A)}, {s(rX,4)}, s{sRB} offen {f0}", "srow"),
                (f"buffer_load_dwordx4 {v(SR+4,4)}, {v(A)}, {s(rX,4)}, s{sRB} offen offset:512 {f1}", "srow")]

    k(f"s_mov_b32 s{sRB}, s{t2}")
    if stats_at is None:
        run(srow_ops(False))
    k(f"s_load_dword s{sTAG}, s[{pWS}:{pWS+1}], {EPOCH}")
    k(srd(rW1, pW1, 512 * 3584))
    k(f"s_cmp_lt_u32 s{sW}, 2\ns_cselect_b32 s{rB}, s{pBR}, s{pBI}\ns_cselect_b32 s{rB+1}, s{pBR+1}, s{pBI+1}\ns_mov_b32 s{rB+2}, 0x80000\ns_mov_b32 s{rB+3}, 0x20000")

    def stage_ops(stage, full):
        slot = (stage % 4) * SLOT
        tag = f"st{stage}"
        ops = [(f"s_xor_b32 s3, s{sROT}, {stage}\ns_mul_i32 s{sKW}, s3, {64*3584}\ns_lshl_b32 s3, s3, 7\ns_add_u32 s{t1}, s3, s{sBB}\ns_add_u32 s{t0}, s3, s{sXB}\n"
                f"s_add_u32 s{sKW}, s{sKW}, s{sWB}\ns_add_u32 m0, s{sW12}, {slot}", None)]
        ops += [(f"buffer_load_dwordx4 {v(XD+i)}, {s(rX,4)}, s{t0} offen offset:{i*1024} {NT('x') or (NT('X') if stage < nt_st else '')}lds", tag) for i in range(4)]
        ops += [(f"s_lshr_b32 s3, s{sW12}, 1\ns_add_u32 m0, s3, {slot + 32768}", None)]
        ops += [(f"buffer_load_dwordx4 {v(CD+i)}, {s(rB,4)}, s{t1} offen offset:{i*1024} {NT('b') or (NT('B') if stage < nt_st else '')}lds", tag) for i in range(2)]
        if full:
            ops += [(f"s_add_u32 m0, s{sW12}, {slot + 16384}", None)]
            ops += [(f"buffer_load_dwordx4 {v(WD+i)}, {s(rW1,4)}, s{sKW} offen offset:{i*1024} {NT('w') or (NT('V') if stage < nt_st else '')}lds", tag) for i in range(4)]
        return ops

    def turn(i, shift):
        if not brot:
            return f"s_mov_b32 s3, {i << shift}"
        return f"s_add_u32 s3, s{sR3}, {i}\ns_cmp_ge_u32 s3, 3\ns_cselect_b32 s{sCNT}, 3, 0\ns_sub_u32 s3, s3, s{sCNT}\ns_lshl_b32 s3, s3, {shift}"

    def ring_ops(b):
        if "pair" in ablate and b >= 6:
            return [(f"buffer_load_dword a254, {v(L16)}, {s(rW2,4)}, 0 offen", f"rb{b}")]
        tag = f"rb{b}"
        if b < 7:
            src, add = (sBE, b) if b < 3 else (sBX, 0) if b == 3 else (sBL, b - 4)
            head = f"s_mov_b32 s{t0}, s{src}" if b == 3 else turn(add, 17) + f"\ns_add_u32 s{t0}, s{src}, s3"
            if one:
                head = f"s_add_u32 s{t0}, s{sBE}, {b*65536}"
            step = f"s_xor_b32 s{t0}, s{t0}, 32768"
            r, D = rW2, W2D
        else:
            head = (f"s_lshl_b32 s{t0}, s{sN}, 1\ns_and_b32 s3, s{sW}, 1\ns_or_b32 s{t0}, s{t0}, s3\ns_lshl_b32 s{t0}, s{t0}, 15\n"
                    f"s_lshl_b32 s3, s{sW}, 8\ns_add_u32 s{t0}, s{t0}, s3")
            step = f"s_xor_b32 s{t0}, s{t0}, 32768"
            if brot:
                head += (f"\ns_xor_b32 s3, s{sN}, {b-7}\ns_bitcmp1_b32 s3, 1\ns_cselect_b32 s{rB}, s{rCI}, s{rCR}\ns_cselect_b32 s{rB+1}, s{rCI+1}, s{rCR+1}"
                         f"\ns_and_b32 s3, s3, 1\ns_lshl_b32 s3, s3, 7\ns_add_u32 s{t0}, s{t0}, s3")
                r, D = rB, CD
            else:
                if (b - 7) & 1:
                    head += f"\ns_add_u32 s{t0}, s{t0}, 128"
                r, D = (rCI if b >= 9 else rCR), CD
        ops = [(head + f"\ns_add_u32 m0, s{sW13}, {RING[b]}", None)]
        for i in range(8):
            flat = krot and b < 7
            if i == 4:
                ops.append((f"s_add_u32 m0, m0, {1024 if flat else 4096}\n{step}", None))
            elif i and flat:
                ops.append(("s_add_u32 m0, m0, 1024", None))
            ops.append((f"buffer_load_dwordx4 {v(D+(i&3))}, {s(r,4)}, s{t0} offen offset:{0 if flat else (i&3)*1024} {NT('r')}lds", tag))
        return ops

    def par_loads():
        if par_late:
            k(f"global_load_ushort {v(PL)}, {v(B_)}, {s(pLR,2)} {NT('p')}\nglobal_load_ushort {v(PL+1)}, {v(B_)}, {s(pLI,2)} {NT('p')}\nglobal_load_ushort {v(PL+2)}, {v(B_)}, {s(pDT,2)} {NT('p')}", "par")
        k(f"global_load_ushort {v(BI)}, {v(C_)}, {s(pB1,2)}\nglobal_load_ushort {v(BI+1)}, {v(C_)}, {s(pB1,2)} offset:128", "par2")
        k(f"global_load_ushort {v(DSK)}, {v(D_)}, {s(pDS,2)}", "par2")

    def early_setup():
        o = [(srd(rWS, pWS, 1 << 28), None), (f"s_mov_b32 s{sHI}, 0\ns_mov_b32 s{sHI+1}, -1" + (f"\ns_getreg_b32 s{sXCC}, hwreg(HW_REG_XCC_ID)\ns_and_b32 s{sXCC}, s{sXCC}, 15" if xid else ""), None)]
        P0, P1, P2 = TM + 12, TM + 13, TM + 14
        e = lambda text: o.extend(ops_of(text))
        e(f"v_bfe_u32 {v(P0)}, {v(LR)}, 1, 3\nv_xor_b32 {v(P0)}, {v(P0)}, {v(HF)}\nv_lshlrev_b32 {v(P0)}, 4, {v(P0)}\nv_lshl_add_u32 {v(P0)}, {v(LR)}, 7, {v(P0)}")
        e(f"v_add_u32 {v(XR)}, s{sW12}, {v(P0)}\nv_add_u32 {v(BQ)}, 32768, {v(P0)}\nv_add_u32 {v(CR)}, s{sW13}, {v(P0)}")
        for j in (1, 2, 3):
            e(f"v_xor_b32 {v(XR+j)}, {j << 5}, {v(XR)}\nv_xor_b32 {v(BQ+j)}, {j << 5}, {v(BQ)}")
        e(f"v_bfe_u32 {v(P0)}, {v(L)}, 2, 2\nv_and_b32 {v(P1)}, 3, {v(L)}\nv_lshlrev_b32 {v(P1)}, 3, {v(P1)}\nv_bfe_u32 {v(P2)}, {v(L)}, 4, 1\nv_lshl_add_u32 {v(P1)}, {v(P2)}, 5, {v(P1)}")
        e(f"v_lshl_add_u32 {v(P2)}, {v(HF)}, 3, {v(P0)}\nv_lshl_add_u32 {v(P2)}, {v(P2)}, 8, {v(P1)}\nv_lshl_add_u32 {v(P2)}, {v(P0)}, 6, {v(P2)}\nv_add_u32 {v(WR)}, 16384, {v(P2)}")
        for t in (1, 2, 3):
            e(f"v_xor_b32 {v(WR+t)}, {t << 6}, {v(WR)}")
        e(f"v_lshrrev_b32 {v(P2)}, 1, {v(P0)}\nv_lshl_add_u32 {v(P1)}, {v(P2)}, 6, {v(P1)}\nv_lshl_add_u32 {v(P2)}, {v(HF)}, 2, {v(P0)}\nv_lshl_add_u32 {v(P2)}, {v(P2)}, 7, {v(P1)}\nv_add_u32 {v(W2R)}, s{sW13}, {v(P2)}")
        g = lambda text: o.append((text, None))
        g(srd(rW2, pW2, 1792 * 1024)); g(srd(rCR, pCR, 1 << 19)); g(srd(rCI, pCI, 1 << 19)); g(srd(rOUT, pOUT, 4 << 20))
        g(f"s_lshl_b32 s3, s{sG}, 13\ns_add_u32 s{rE}, s{pWS}, s3\ns_addc_u32 s{rE+1}, s{pWS+1}, 0\ns_add_u32 s{rE}, s{rE}, {EG}\ns_addc_u32 s{rE+1}, s{rE+1}, 0\n"
          f"s_mov_b32 s{rE+2}, 8192\ns_mov_b32 s{rE+3}, 0x20000")
        g(f"s_lshr_b32 s3, s{sG}, 3\ns_lshl_b32 s{sM}, s{sC}, 1\ns_or_b32 s{sM}, s{sM}, s3")
        g(f"s_and_b32 s{sR3}, s{sN}, 3\ns_cmp_eq_u32 s{sR3}, 3\ns_cselect_b32 s{sR3}, 0, s{sR3}")
        g(f"s_cmp_eq_u32 s{sW}, 3\ns_cselect_b32 s3, 1, 0\ns_lshl_b32 s{sGE}, s{sW}, 2\ns_sub_u32 s{sGE}, s{sGE}, s3\ns_mul_i32 s{sGL}, s{sW}, 3\ns_add_u32 s{sGL}, s{sGL}, s3")
        g(f"s_lshl_b32 s{sAE}, s{sGE}, 13\ns_lshl_b32 s{sAL}, s{sGL}, 13\ns_add_u32 s{sAL}, s{sAL}, 4096\ns_add_u32 s{sAX}, s{sAE}, {6*4096}\ns_add_u32 s3, s{sAL}, 8192\n"
          f"s_cmp_lt_u32 s{sW}, 2\ns_cselect_b32 s{sAX}, s{sAX}, s{sAL}\ns_cselect_b32 s{sAL}, s{sAL}, s3")
        if one:
            g(f"s_mul_i32 s{sAE}, s{sW}, {7*4096}\ns_mul_i32 s{sGE}, s{sW}, 7\ns_lshr_b32 s{sGE}, s{sGE}, 1")
        g(f"s_lshl_b32 s3, s{sN}, 7\ns_lshl_b32 s{sBE}, s{sAE}, 4\ns_lshl_b32 s{sBX}, s{sAX}, 4\ns_lshl_b32 s{sBL}, s{sAL}, 4\n"
          f"s_add_u32 s{sBE}, s{sBE}, s3\ns_add_u32 s{sBX}, s{sBX}, s3\ns_add_u32 s{sBL}, s{sBL}, s3")
        g(f"s_lshl_b32 s3, s{sC}, 2\ns_add_u32 s3, s3, s{sW}\ns_mul_i32 s{sAF}, s3, {MT}\ns_add_u32 s{sAF}, s{sAF}, {AF}")
        return o

    tag_ops = lambda: ops_of(f"s_waitcnt lgkmcnt(0)\ns_mul_i32 s{sTAG}, s{sTAG}, 0x9e3779b1\ns_add_u32 s{sTAG}, s{sTAG}, 0x7f4a7c15")

    def row_stats(plain=False):
        o = []
        def k2(text, tag=None, atomic=False):
            o.extend([(text, tag)] if atomic or tag else ops_of(text))
        S1, S2, U1, U2 = TM, TM + 1, TM + 2, TM + 3
        k2(f"v_mov_b32 {v(S1)}, 0\nv_mov_b32 {v(S2)}, 0\ns_mov_b32 s{t3}, 0x3f803f80")
        o.append(W(vm="srow"))
        for i in range(8):
            if plain:
                k2(f"v_lshlrev_b32 {v(U1)}, 16, {v(SR+i)}\nv_and_b32 {v(U2)}, 0xffff0000, {v(SR+i)}\nv_add_f32 {v(S1)}, {v(S1)}, {v(U1)}\n"
                   f"v_fmac_f32 {v(S2)}, {v(U1)}, {v(U1)}\nv_add_f32 {v(S1)}, {v(S1)}, {v(U2)}\nv_fmac_f32 {v(S2)}, {v(U2)}, {v(U2)}")
            else:
                k2(f"v_dot2c_f32_bf16 {v(S1)}, s{t3}, {v(SR+i)}\nv_dot2c_f32_bf16 {v(S2)}, {v(SR+i)}, {v(SR+i)}")
        for r in (8, 4, 2, 1):
            k2(f"v_add_f32_dpp {v(S1)}, {v(S1)}, {v(S1)} row_ror:{r} row_mask:0xf bank_mask:0xf")
            k2(f"v_add_f32_dpp {v(S2)}, {v(S2)}, {v(S2)} row_ror:{r} row_mask:0xf bank_mask:0xf")
        k2(f"v_mov_b32 {v(U1)}, {v(S1)}\nv_mov_b32 {v(U2)}, {v(S2)}")
        k2(f"v_permlane16_swap_b32 {v(S1)}, {v(U1)}\nv_permlane16_swap_b32 {v(S2)}, {v(U2)}")
        k2(f"v_add_f32 {v(S1)}, {v(S1)}, {v(U1)}\nv_add_f32 {v(S2)}, {v(S2)}, {v(U2)}")
        k2(f"v_mul_f32 {v(S1)}, 0x3b000000, {v(S1)}\nv_mul_f32 {v(S2)}, 0x3b000000, {v(S2)}")
        k2(f"v_fma_f32 {v(S2)}, -{v(S1)}, {v(S1)}, {v(S2)}\nv_max_f32 {v(S2)}, 0, {v(S2)}")
        k2(f"v_cvt_pk_bf16_f32 {v(S2)}, {v(S2)}, {v(S2)}\nv_and_b32 {v(S2)}, 0xffff0000, {v(S2)}\nv_add_f32 {v(S2)}, 0x3727c5ac, {v(S2)}")
        k2(f"v_cvt_pk_bf16_f32 {v(S2)}, {v(S2)}, {v(S2)}\nv_and_b32 {v(S2)}, 0xffff0000, {v(S2)}\nv_sqrt_f32 {v(S2)}, {v(S2)}")
        k2(f"v_cvt_pk_bf16_f32 {v(SR)}, {v(S1)}, {v(S2)}")
        if not plain:
            o.extend(tag_ops())
        k2(f"v_mov_b32 {v(SR+1)}, s{sTAG}\nv_lshlrev_b32 {v(U1)}, 3, {v(HF)}")
        if xid:
            k2(f"v_mov_b32 {v(SR+2)}, s{sXCC}\nv_mov_b32 {v(SR+3)}, s{sTAG}")
        k2(f"s_lshr_b32 s{sRB}, s{sRB}, 7\ns_add_u32 s{sRB}, s{sRB}, {STATS}")
        if xid:
            k2(f"s_lshl_b32 s{t3}, s{sC}, 4\ns_add_u32 s{t3}, s{t3}, s{sG}\ns_lshl_b32 s{t3}, s{t3}, 3\ns_add_u32 s{t3}, s{t3}, {XID}")
        def publish():
            k("s_mov_b32 exec_lo, 1\ns_mov_b32 exec_hi, 1")
            k(f"buffer_store_dwordx2 {v(SR,2)}, {v(U1)}, {s(rWS,4)}, s{sRB} offen sc1", "pub0")
            if xid:
                k(f"buffer_store_dwordx2 {v(SR+2,2)}, off, {s(rWS,4)}, s{t3} sc1", "pub0")
            k("s_mov_b64 exec, -1")
            if not plain:
                stamp("stats")
        o.append(publish)
        return o

    def late_setup(full):
        o = []
        e = lambda text: o.extend(ops_of(text))
        g = lambda text: o.append((text, None))
        P0, P1, P2 = TM + 12, TM + 13, TM + 14
        if krot:
            g(f"s_add_u32 s{sROT2}, s{sC}, s{sN}\ns_and_b32 s{sROT2}, s{sROT2}, 3\ns_lshl_b32 s3, s{sROT2}, 5\nv_xor_b32 {v(CR)}, s3, {v(CR)}")
        for j in (1, 2, 3):
            e(f"v_xor_b32 {v(CR+j)}, {j << 5}, {v(CR)}")
        for j in range(4):
            e(f"v_add_u32 {v(CR+4+j)}, {HIGH}, {v(CR+j)}")
        e(f"v_xor_b32 {v(W2R+1)}, 64, {v(W2R)}\nv_add_u32 {v(W2R+2)}, {HIGH}, {v(W2R)}\nv_add_u32 {v(W2R+3)}, {HIGH}, {v(W2R+1)}")
        e(f"v_lshrrev_b32 {v(P0)}, 3, {v(L)}\nv_and_b32 {v(P1)}, 7, {v(L)}\nv_bfe_u32 {v(P2)}, {v(L)}, 4, 1\nv_lshlrev_b32 {v(P2)}, 2, {v(P2)}")
        e(f"v_xor_b32 {v(P1)}, {v(P1)}, {v(P2)}\nv_lshlrev_b32 {v(P1)}, 4, {v(P1)}")
        g(f"s_and_b32 s3, s{sW}, 1\ns_lshl_b32 s3, s3, 6\nv_xor_b32 {v(P1)}, s3, {v(P1)}")
        e(f"v_lshl_add_u32 {v(W2D)}, {v(P0)}, 10, {v(P1)}")
        if krot:
            g(f"s_and_b32 s3, s{sROT2}, 1\ns_lshl_b32 s3, s3, 14\nv_xor_b32 {v(W2D)}, s3, {v(W2D)}")
            e(f"v_xor_b32 {v(W2D+2)}, 0x4000, {v(W2D)}\nv_add_u32 {v(W2D+1)}, 8192, {v(W2D)}\nv_add_u32 {v(W2D+3)}, 8192, {v(W2D+2)}")
            g(f"s_lshr_b32 s3, s{sROT2}, 1\ns_lshl_b32 s3, s3, 15\ns_add_u32 s{sBE}, s{sBE}, s3\ns_add_u32 s{sBX}, s{sBX}, s3\ns_add_u32 s{sBL}, s{sBL}, s3")
        else:
            for i in (1, 2, 3):
                e(f"v_add_u32 {v(W2D+i)}, {i*7168}, {v(W2D)}")
        e(f"v_bfe_u32 {v(P0)}, {v(LR)}, 2, 1\nv_lshrrev_b32 {v(P1)}, 3, {v(LR)}\nv_and_b32 {v(P2)}, 3, {v(LR)}")
        e(f"v_lshl_add_u32 {v(P2)}, {v(P1)}, 2, {v(P2)}\nv_lshl_add_u32 {v(TAU)}, {v(P0)}, 4, {v(P2)}")
        for z in (XA + 2, XA + 3, XB + 2, XB + 3, WE + 2, WE + 3, WE + 6, WE + 7, WE + 10, WE + 11):
            e(f"v_mov_b32 {v(z)}, 0")
        LRE, LIM, DT, A2, BRV, X0, X1, X2 = range(PL, PL + 8)
        o.append(W(vm="par2"))
        e(f"v_lshlrev_b32 {v(LRE)}, 16, {v(LRE)}\nv_lshlrev_b32 {v(LIM)}, 16, {v(LIM)}\nv_lshlrev_b32 {v(DT)}, 16, {v(DT)}\nv_lshlrev_b32 {v(DSK)}, 16, {v(DSK)}")
        e(f"v_mul_f32 {v(DT)}, {LOG2E:#x}, {v(DT)}\nv_exp_f32 {v(DT)}, {v(DT)}\nv_cvt_pk_bf16_f32 {v(DT)}, {v(DT)}, {v(DT)}\nv_and_b32 {v(DT)}, 0xffff0000, {v(DT)}")
        e(f"v_mul_f32 {v(A2)}, {v(DT)}, {v(LRE)}\nv_mul_f32 {v(BRV)}, {v(DT)}, {v(LIM)}\nv_mul_f32 {v(A2)}, {LOG2E:#x}, {v(A2)}\nv_mul_f32 {v(BRV)}, 0.15915494, {v(BRV)}")
        def cpow(n, dr, di):
            e(f"v_mul_f32 {v(X0)}, {n}, {v(A2)}\nv_mul_f32 {v(X1)}, {n}, {v(BRV)}\nv_exp_f32 {v(X0)}, {v(X0)}\nv_fract_f32 {v(X1)}, {v(X1)}")
            e(f"v_cos_f32 {v(dr)}, {v(X1)}\nv_sin_f32 {v(di)}, {v(X1)}\nv_mul_f32 {v(dr)}, {v(dr)}, {v(X0)}\nv_mul_f32 {v(di)}, {v(di)}, {v(X0)}")
        cpow("1.0", LAR, LAI); cpow("0x41800000", L16R, L16I); cpow("0x43800000", L2R, L2I)
        g(f"s_lshl_b32 s3, s{sW}, 1\nv_add_u32 {v(X2)}, s3, {v(HF)}")
        e(f"v_lshlrev_b32 {v(X2)}, 4, {v(X2)}\nv_cvt_f32_u32 {v(X2)}, {v(X2)}")
        cpow(v(X2), PWR, PWI)
        g(f"s_lshl_b32 s3, s{sW}, 2\nv_add_u32 {v(X2)}, s3, {v(HF)}")
        e(f"v_lshlrev_b32 {v(X2)}, 7, {v(X2)}\nv_cvt_f32_u32 {v(X2)}, {v(X2)}")
        cpow(v(X2), SCRR, SCI)
        e(f"v_sub_f32 {v(NLAI)}, 0, {v(LAI)}\nv_sub_f32 {v(NL16I)}, 0, {v(L16I)}")
        e(f"v_mul_f32 {v(X0)}, {v(LRE)}, {v(LRE)}\nv_fmac_f32 {v(X0)}, {v(LIM)}, {v(LIM)}\nv_rcp_f32 {v(X0)}, {v(X0)}\nv_subrev_f32 {v(X1)}, 1.0, {v(LAR)}")
        e(f"v_mul_f32 {v(CFR)}, {v(X1)}, {v(LRE)}\nv_mul_f32 {v(NCFI)}, {v(X1)}, {v(LIM)}\nv_mul_f32 {v(X0)}, 0x4038aa3b, {v(X0)}")
        e(f"v_fmac_f32 {v(CFR)}, {v(LAI)}, {v(LIM)}\nv_fmac_f32 {v(NCFI)}, {v(NLAI)}, {v(LRE)}")
        e(f"v_mul_f32 {v(CFR)}, {v(CFR)}, {v(X0)}\nv_mul_f32 {v(NCFI)}, {v(NCFI)}, {v(X0)}\nv_sub_f32 {v(NCFR)}, 0, {v(CFR)}")
        e(f"v_mul_f32 {v(T)}, {v(CFR)}, {v(LAR)}\nv_mul_f32 {v(T+16)}, {v(CFR)}, {v(LAI)}\nv_fmac_f32 {v(T)}, {v(NCFI)}, {v(LAI)}\nv_fma_f32 {v(T+16)}, -{v(NCFI)}, {v(LAR)}, {v(T+16)}")
        for i in range(1, 16):
            e(f"v_mul_f32 {v(T+i)}, {v(T+i-1)}, {v(LAR)}\nv_mul_f32 {v(T+16+i)}, {v(T+15+i)}, {v(LAR)}")
            e(f"v_fmac_f32 {v(T+i)}, {v(T+15+i)}, {v(NLAI)}\nv_fmac_f32 {v(T+16+i)}, {v(T+i-1)}, {v(LAI)}")
        return o

    GS, GX, GA = TM, TM + 2, TM + 16

    def gran_loads(full):
        ops = [(f"s_lshr_b32 s{t2}, s{sXB}, 7\ns_add_u32 s{t2}, s{t2}, {STATS}\nv_lshlrev_b32 {v(GA)}, 3, {v(TAU)}", None),
               (f"buffer_load_dwordx2 {v(GS,2)}, {v(GA)}, {s(rWS,4)}, s{t2} offen sc1", "gran"),
               (f"s_lshl_b32 s{t2}, s{sC}, 7\ns_add_u32 s{t2}, s{t2}, {XID}\nv_and_b32 {v(GA)}, 15, {v(L)}\nv_lshlrev_b32 {v(GA)}, 3, {v(GA)}", None),
               (f"buffer_load_dwordx2 {v(GX,2)}, {v(GA)}, {s(rWS,4)}, s{t2} offen sc1", "gran"),
               (f"s_lshl_b32 s{t2}, s{sG}, 8\ns_add_u32 s{t2}, s{t2}, {CS + 1792*8}\nv_lshlrev_b32 {v(GA)}, 12, {v(HF)}\nv_lshl_add_u32 {v(GA)}, {v(LR)}, 3, {v(GA)}", None),
               (f"buffer_load_dwordx2 {v(WE+8,2)}, {v(GA)}, {s(rWS,4)}, s{t2} offen sc1", "gran")]
        if not xid:
            del ops[2:4]
        if full:
            ops += [(f"s_lshl_b32 s{t2}, s{sF}, 10\ns_add_u32 s{t2}, s{t2}, {CS}\nv_lshlrev_b32 {v(GA)}, 3, {v(L)}", None),
                    (f"buffer_load_dwordx2 {v(WE,2)}, {v(GA)}, {s(rWS,4)}, s{t2} offen sc1", "gran"),
                    (f"buffer_load_dwordx2 {v(WE+4,2)}, {v(GA)}, {s(rWS,4)}, s{t2} offen offset:512 sc1", "gran")]
        return ops

    cold = []
    def spin_check(name, tag, mismatch, reload):
        again, ok = k.label(name + "_again"), k.label(name + "_ok")
        k.wait(vm=tag)
        k(mismatch)
        k(f"s_mov_b32 s{sCNT}, 0\ns_nop 0\ns_cbranch_vccnz {again}")
        k(ok + ":")
        loads = "\n".join(op[0] for op in reload)
        if backoff:
            loads = f"s_sleep {backoff}\n" + loads
        cold.append(f"{again}:\n{loads}\ns_waitcnt vmcnt(0)\n{mismatch}\ns_add_u32 s{sCNT}, s{sCNT}, 1\ns_cmp_gt_u32 s{sCNT}, {SPIN}\n"
                    f"s_cbranch_scc1 {ok}\ns_cbranch_vccnz {again}\ns_branch {ok}")

    def tags_differ(regs, tmp):
        t = f"v_xor_b32 {v(tmp)}, s{sTAG}, {v(regs[0])}\n"
        for r in regs[1:]:
            t += f"v_xor_b32 {v(tmp+1)}, s{sTAG}, {v(r)}\nv_or_b32 {v(tmp)}, {v(tmp)}, {v(tmp+1)}\n"
        return t + f"v_cmp_ne_u32 vcc, 0, {v(tmp)}"

    rsv_reads = lambda: [(f"ds_read_b128 {v(RSV+4*q,4)}, {v(GA+2)} offset:{q*16}", "rsv") for q in range(4)]

    def gran_check(full):
        spin_check("gran", "gran", tags_differ([GS + 1, WE + 9] + ([GX + 1] if xid else []) + ([WE + 1, WE + 5] if full else []), GA), gran_loads(full))
        if xid:
            k(f"v_cmp_ne_u32 vcc, s{sXCC}, {v(GX)}")
        k(f"v_and_b32 {v(GA)}, 0xffff, {v(GS)}\nv_and_b32 {v(GA+1)}, 0xffff0000, {v(GS)}\nv_lshlrev_b32 {v(MF)}, 16, {v(GS)}")
        if xid:
            k(f"s_cmp_eq_u64 vcc, 0\ns_cselect_b32 s{sLOC}, 1, 0")
        k(f"v_rcp_f32 {v(RS)}, {v(GA+1)}\nv_xor_b32 {v(GA)}, 0x8000, {v(GA)}\nv_lshrrev_b32 {v(GA+1)}, 16, {v(GS)}\nv_lshl_or_b32 {v(GA)}, {v(GA)}, 16, {v(GA)}")
        k(f"v_cndmask_b32 {v(XA)}, {v(GA)}, 0, {s(sHI,2)}\nv_cndmask_b32 {v(XA+1)}, {v(GA+1)}, 0, {s(sHI,2)}")
        k(f"v_cndmask_b32 {v(XB)}, 0, {v(GA)}, {s(sHI,2)}\nv_cndmask_b32 {v(XB+1)}, 0, {v(GA+1)}, {s(sHI,2)}\nv_mov_b32 {v(WE+9)}, 0")
        k(f"s_lshr_b32 s3, s{sW12}, 5\ns_add_u32 s3, s3, {SCR}\nv_lshlrev_b32 {v(GA)}, 9, {v(HF)}\nv_lshl_add_u32 {v(GA)}, {v(TAU)}, 2, {v(GA)}\nv_add_u32 {v(GA)}, s3, {v(GA)}")
        k(f"v_lshlrev_b32 {v(GA+2)}, 6, {v(HF)}\nv_add_u32 {v(GA+2)}, s3, {v(GA+2)}")
        mfma(SS, v(XA, 4), v(WE + 8, 4)); mfma(SS + 16, v(XB, 4), v(WE + 8, 4))
        k(f"v_cndmask_b32 {v(GA+1)}, {v(RS)}, {v(MF)}, {s(sHI,2)}\nv_mul_f32 {v(C1)}, {LOG2E:#x}, {v(RS)}")
        k(f"ds_write_b32 {v(GA)}, {v(GA+1)}", "stw")
        if not (full and order == "m"):
            run(rsv_reads())
        if full:
            k(f"v_mov_b32 {v(WE+1)}, {v(BI)}\nv_mov_b32 {v(WE+5)}, {v(BI+1)}\ns_lshl_b32 s3, s{sF}, 13\ns_add_u32 s{sA0}, s{sAF}, s3")
            for t in range(4):
                mfma(ACC + 16 * t, v(WE + 4 * (t >> 1), 4), v(XB if t & 1 else XA, 4))

    def pf_ops(force=False):
        if not l2pf and not force:
            return [("s_nop 0", "none")]
        P, Q = TM + 18, TM + 19
        rows = mapping != "x8g4"
        o = []
        for h in range(2 if rows else 1):
            col = f"s_mov_b32 s3, {h*4}" if rows else f"s_and_b32 s3, s{sXD}, 1\ns_lshl_b32 s3, s3, 2"
            skip = f"v_cmp_eq_u32 vcc, {lite}, {v(Q)}\nv_lshrrev_b32 {v(P)}, 2, {v(L)}\nv_min_u32 {v(P)}, 13, {v(P)}\nv_subbrev_co_u32 {v(Q)}, vcc, 0, {v(Q)}, vcc\n" if trickle else \
                   f"v_lshrrev_b32 {v(P)}, 2, {v(L)}\nv_min_u32 {v(P)}, 13, {v(P)}\n"
            o += [(f"{col}\nv_and_b32 {v(Q)}, 3, {v(L)}\nv_add_u32 {v(Q)}, s3, {v(Q)}\n{skip}v_lshlrev_b32 {v(Q)}, 7, {v(Q)}\nv_lshl_add_u32 {v(P)}, {v(P)}, 10, {v(Q)}\n"
                   f"s_lshl_b32 s{t2}, s{sJ}, 2\ns_add_u32 s{t2}, s{t2}, s{sW}\ns_mul_i32 s{t2}, s{t2}, {14*1024}", None),
                  (f"buffer_load_dword a255, {v(P)}, {s(rW2,4)}, s{t2} offen", "pf2")]
        half = "" if rows else f"s_and_b32 s3, s{sXD}, 1\ns_lshl_b32 s3, s3, 18\ns_add_u32 s{t2}, s{t2}, s3\n"
        o += [(f"s_lshl_b32 s{t2}, s{sJ}, 2\ns_add_u32 s{t2}, s{t2}, s{sW}\ns_lshl_b32 s{t2}, s{t2}, {12 if rows else 11}\n{half}"
               f"v_and_b32 {v(P)}, {31 if rows else 15}, {v(L)}\nv_lshlrev_b32 {v(P)}, 7, {v(P)}", None),
              (f"buffer_load_dword a255, {v(P)}, {s(rCR,4)}, s{t2} offen", "pf2"),
              (f"buffer_load_dword a255, {v(P)}, {s(rCI,4)}, s{t2} offen", "pf2")]
        return o

    def far_light_ops():
        P = TM + 18
        return [(f"s_lshl_b32 s{t1}, s{sQ}, 2\ns_add_u32 s{t1}, s{t1}, s{sW}\ns_mul_i32 s3, s{t1}, {112*128}\nv_min_u32 {v(P)}, 55, {v(L)}\nv_lshlrev_b32 {v(P)}, 7, {v(P)}\n"
                 f"buffer_load_dword a255, {v(P)}, {s(rW2,4)}, s3 offen", "far"),
                (f"s_mul_i32 s3, s{t1}, {112*128}\ns_add_u32 s3, s3, {56*128}\nbuffer_load_dword a255, {v(P)}, {s(rW2,4)}, s3 offen", "far"),
                (f"s_lshl_b32 s{t1}, s{t1}, 12\nv_lshlrev_b32 {v(P)}, 7, {v(LR)}\nbuffer_load_dword a255, {v(P)}, {s(rCR,4)}, s{t1} offen", "far"),
                (f"buffer_load_dword a255, {v(P)}, {s(rCI,4)}, s{t1} offen", "far")]

    def c_light_ops():
        o = far_light_ops()[2:]
        return [(f"s_lshl_b32 s{t2}, s{sQ}, 2\ns_add_u32 s{t2}, s{t2}, s{sW}\n" + o[0][0].replace(f"s{t1}", f"s{t2}"), "far"), (o[1][0].replace(f"s{t1}", f"s{t2}"), "far")]

    def mid_ops():
        P, Q = TM + 18, TM + 19
        o = [(f"s_lshl_b32 s{t2}, s2, 2\ns_add_u32 s{t2}, s{t2}, s{sW}\nv_bfe_u32 {v(P)}, {v(L)}, 2, 3\nv_min_u32 {v(P)}, 4, {v(P)}\nv_lshlrev_b32 {v(P)}, 7, {v(P)}", None)]
        if "x" in mid:
            o.append((f"s_lshl_b32 s3, s{t2}, 11\nv_lshl_add_u32 {v(Q)}, {v(HF)}, 10, {v(P)}\nbuffer_load_dword a255, {v(Q)}, {s(rX,4)}, s3 offen offset:384", "mid"))
        if "w" in mid:
            o.append((f"s_mul_i32 s3, s{t2}, 1152\ns_add_u32 s3, s3, {192*3584}\nv_lshrrev_b32 {v(Q)}, 2, {v(L)}\nv_min_u32 {v(Q)}, 8, {v(Q)}\nv_lshlrev_b32 {v(Q)}, 7, {v(Q)}\n"
                      f"buffer_load_dword a255, {v(Q)}, {s(rW1,4)}, s3 offen", "mid"))
        if "b" in mid:
            o.append((f"s_lshl_b32 s3, s2, 1\ns_and_b32 s{t2}, s{sW}, 1\ns_or_b32 s3, s3, s{t2}\ns_lshl_b32 s3, s3, 10\nbuffer_load_dword a255, {v(P)}, {s(rB,4)}, s3 offen offset:384", "mid"))
        return o

    def far_ops(flip=0):
        if far_at is None:
            return []
        P, Q = TM + 18, TM + 19
        return [(f"s_xor_b32 s{t2}, s2, {flip}\ns_lshl_b32 s{t2}, s{t2}, 2\ns_add_u32 s{t2}, s{t2}, s{sW}\ns_mul_i32 s3, s{t2}, {14*128}\nv_lshrrev_b32 {v(P)}, 2, {v(L)}\nv_min_u32 {v(Q)}, 13, {v(P)}\nv_lshlrev_b32 {v(Q)}, 7, {v(Q)}\n"
                 f"buffer_load_dword a255, {v(Q)}, {s(rW2,4)}, s3 offen", "far"),
                (f"s_lshl_b32 s{t2}, s{t2}, 9\nv_and_b32 {v(P)}, 3, {v(P)}\nv_lshlrev_b32 {v(P)}, 7, {v(P)}\nbuffer_load_dword a255, {v(P)}, {s(rCR,4)}, s{t2} offen", "far"),
                (f"buffer_load_dword a255, {v(P)}, {s(rCI,4)}, s{t2} offen", "far")]

    def weave(mem, val):
        n = sum(1 for op in mem if not callable(op) and op[1] is not None)
        for m, c in zip(spread_mem(mem, n), spread(val, n)):
            run(m); run(c)

    def stage_reads(b):
        hi = RING[b] >= HIGH
        return [W(vm=f"rb{b}")] + [(f"ds_read_b64_tr_b16 {a(RESB[b]+8*j+4*c+2*rd,2)}, {v(W2R+2*hi+c)} offset:{RING[b] - hi*HIGH + j*2048 + rd*1024}", f"sr{b}")
                                   for j in range(4) for c in range(2) for rd in range(2)]

    EA, EB, EX0, EX1, E0 = XD, XD + 1, XD + 2, XD + 3, TM
    HA, HB, XW, XQ = WD, WD + 1, WD + 2, WD + 3
    def e_loads():
        return [(f"buffer_load_dwordx4 {v(E0,4)}, {v(EA)}, {s(rE,4)}, 0 offen sc1", "eg"),
                (f"buffer_load_dwordx4 {v(E0+4,4)}, {v(EB)}, {s(rE,4)}, 0 offen sc1", "eg")]

    def epi_addr():
        o = []
        e = lambda text: o.extend(ops_of(text))
        P = TM + 12
        o.append((f"s_lshl_b32 s3, s{sW}, 2\ns_sub_u32 s3, s{sC}, s3\ns_sub_u32 s3, s3, 1\nv_sub_u32 {v(EA)}, s3, {v(HF)}", None))
        e(f"v_subrev_u32 {v(EB)}, 2, {v(EA)}\nv_ashrrev_i32 {v(EX0)}, 31, {v(EA)}\nv_ashrrev_i32 {v(EX1)}, 31, {v(EB)}\n"
          f"v_bfi_b32 {v(EX0)}, {v(EX0)}, 0, s{sTAG}\nv_bfi_b32 {v(EX1)}, {v(EX1)}, 0, s{sTAG}\nv_lshlrev_b32 {v(P)}, 4, {v(LR)}\n"
          f"v_lshl_add_u32 {v(EA)}, {v(EA)}, 9, {v(P)}\nv_lshl_add_u32 {v(EB)}, {v(EB)}, 9, {v(P)}")
        o.append((f"s_lshr_b32 s3, s{sW12}, 3\ns_add_u32 s3, s3, {SCR_EX}\nv_lshl_add_u32 {v(XW)}, {v(L)}, 3, s3", None))
        e(f"v_lshlrev_b32 {v(XQ)}, 3, {v(LR)}\nv_add_u32 {v(XQ)}, {SCR_EX}, {v(XQ)}")
        o.append((f"s_lshr_b32 s3, s{sW}, 1\ns_mul_i32 s3, s3, {SLOT - 8192}\ns_add_u32 s3, s3, s{sW12}\ns_add_u32 s{sKW}, s3, {SCR_HT}", None))
        e(f"v_lshlrev_b32 {v(HA)}, 5, {v(HF)}\nv_lshl_add_u32 {v(HA)}, {v(LR)}, 6, {v(HA)}\nv_add_u32 {v(HA)}, s{sKW}, {v(HA)}")
        e(f"v_bfe_u32 {v(HB)}, {v(L)}, 2, 2\nv_lshl_add_u32 {v(HB)}, {v(HF)}, 3, {v(HB)}\nv_lshlrev_b32 {v(HB)}, 6, {v(HB)}")
        e(f"v_and_b32 {v(P)}, 1, {v(L)}\nv_lshl_add_u32 {v(HB)}, {v(P)}, 5, {v(HB)}\nv_bfe_u32 {v(P)}, {v(L)}, 1, 1\nv_lshl_add_u32 {v(HB)}, {v(P)}, 3, {v(HB)}")
        e(f"v_bfe_u32 {v(P)}, {v(L)}, 4, 1\nv_lshl_add_u32 {v(HB)}, {v(P)}, 4, {v(HB)}\nv_add_u32 {v(HB)}, s{sKW}, {v(HB)}")
        o.append((f"s_lshr_b32 s3, s{sG}, 2\ns_lshl_b32 s3, s3, 3\ns_and_b32 s{sKW}, s{sG}, 3\ns_add_u32 s3, s3, s{sKW}\ns_lshl_b32 s3, s3, 11\ns_add_u32 s{sKW}, s{sAF}, s3\ns_add_u32 s{sKW}, s{sKW}, {112*1024}", None))
        o.append((f"s_lshl_b32 s3, s{sM}, 1\ns_lshr_b32 s{sP0}, s{sW}, 1\ns_add_u32 s{sP0}, s3, s{sP0}\ns_xor_b32 s{sP1}, s{sP0}, 1\n"
                  f"s_mul_i32 s{sP0}, s{sP0}, {MT}\ns_mul_i32 s{sP1}, s{sP1}, {MT}\ns_add_u32 s{sP0}, s{sP0}, {AF}\ns_add_u32 s{sP1}, s{sP1}, {AF}", None))
        return o

    def trickle_ops():
        out = []
        for sg in range(7):
            P = TM + 15
            rows = mapping != "x8g4"
            who = {"rows": f"s_and_b32 s3, s{sC}, 1\ns_lshl_b32 s3, s3, 1\ns_lshr_b32 s{sA0}, s{sG}, 3\ns_add_u32 s3, s3, s{sA0}",
                   "x4g8": f"s_and_b32 s3, s{sC}, 3", "x8g4": f"s_and_b32 s3, s{sC}, 7"}[mapping]
            head = (f"{who}\ns_lshl_b32 s3, s3, 2\ns_add_u32 s3, s3, s{sW}\ns_mul_i32 s{sA0}, s3, {(112 if rows else 56)*1024}\ns_add_u32 s{sA0}, s{sA0}, {lite*128}\n"
                    f"v_lshrrev_b32 {v(P)}, {2 if rows else 3}, {v(L)}\nv_lshlrev_b32 {v(P)}, 10, {v(P)}\n") if sg == 0 else f"s_add_u32 s{sA0}, s{sA0}, {16384 if rows else 8192}\n"
            out.append((head + f"buffer_load_dword a255, {v(P)}, {s(rW2,4)}, s{sA0} offen {NT('t')}", "trk"))
        return out

    def gemm1(full, pfx):
        nm = 6 if full else 2
        base_of = lambda stg: ((stg % 4) // 2) * HIGH
        def reads(n):
            stg, j = divmod(n, 4)
            off = (stg % 4) * SLOT - base_of(stg)
            f = FR + 28 * (n & 1)
            d = base_of(stg) - base_of(stg - 1) if stg else 0
            adj = lambda r, on=True: f"v_add_u32 {v(r)}, {d & 0xffffffff:#x}, {v(r)}\n" if d and on else ""
            o = [(adj(XR + j) + f"ds_read_b128 {a(f,4)}, {v(XR+j)} offset:{off}", f"ra{n}")]
            o += [(adj(BQ + j, c == 0) + f"ds_read_b128 {a(f+4+4*c,4)}, {v(BQ+j)} offset:{off + c*4096}", f"ra{n}") for c in range(2)]
            if full:
                o += [(adj(WR + t, j == 0 and rd == 0) + f"ds_read_b64_tr_b16 {a(f+12+4*t+2*rd,2)}, {v(WR+t)} offset:{off + j*4096 + rd*1024}", f"ra{n}" if t == 0 else f"rb_{n}")
                      for t in range(4) for rd in range(2)]
            return o
        if look == 2:
            mem = {sg: stage_ops(sg + 2, full) for sg in range(6)}
            if pre3 and not (pre2 and full):
                mem[0] = []
            if pre4:
                mem[0], mem[1] = mem[1], []
            mem.update({6: ring_ops(0), 7: ring_ops(1)})
        else:
            ramp = spread_mem(sum((stage_ops(sg, full) for sg in range(2, 6)), []), 3)
            if pre3:
                ramp = [stage_ops(sg, full) for sg in (3, 4, 5)]
            mem = {0: ramp[0], 1: ramp[1], 2: ramp[2], 3: stage_ops(6, full), 4: stage_ops(7, full), 5: ring_ops(0), 6: ring_ops(1), 7: ring_ops(2)}
        mem[pf_at] = pf_ops() + mem[pf_at]
        if far_light is not None:
            pass
        elif far_plan is not None:
            P = TM + 18
            who = f"s_lshl_b32 s{t2}, s2, 2\ns_add_u32 s{t2}, s{t2}, s{sW}\n"
            for part, sg in enumerate(far_plan):
                if part < 2:
                    op = (who + f"s_mul_i32 s{t2}, s{t2}, {14*128}\nv_lshrrev_b32 {v(P)}, 3, {v(L)}\nv_min_u32 {v(P)}, 6, {v(P)}\nv_lshlrev_b32 {v(P)}, 7, {v(P)}\n"
                          f"buffer_load_dword a255, {v(P)}, {s(rW2,4)}, s{t2} offen offset:{part*896}", "far")
                else:
                    op = (who + f"s_lshl_b32 s{t2}, s{t2}, 9\nv_lshrrev_b32 {v(P)}, 4, {v(L)}\nv_lshlrev_b32 {v(P)}, 7, {v(P)}\n"
                          f"buffer_load_dword a255, {v(P)}, {s(rCI if part == 3 else rCR,4)}, s{t2} offen", "far")
                mem[sg] = mem[sg] + [op]
        elif far_at is not None:
            if far_spread:
                fo = far_ops()
                fo[1] = (f"s_lshl_b32 s{t2}, s2, 2\ns_add_u32 s{t2}, s{t2}, s{sW}\n" + fo[1][0], fo[1][1])
                fo[2] = (f"s_lshl_b32 s{t2}, s2, 2\ns_add_u32 s{t2}, s{t2}, s{sW}\ns_lshl_b32 s{t2}, s{t2}, 9\n" + fo[2][0], fo[2][1])
                mem[far_at] = mem[far_at] + fo[:1]
                if c_light is None:
                    mem[far_at + 1] = mem[far_at + 1] + fo[1:]
                elif not full and c_light >= 3:
                    mem[c_light] = mem[c_light] + c_light_ops()
            else:
                mem[far_at] = mem[far_at] + far_ops()
        if mid_at is not None and mid_at >= 0:
            mem[mid_at] = mid_ops() + mem[mid_at]
        if stats_at is not None and full:
            mem[stats_at] = srow_ops(True) + mem[stats_at]
        if far2_at is not None:
            mem[far2_at] = mem[far2_at] + far_ops(2)
        if cc_at is not None:
            mem[cc_at] = mem[cc_at] + pf_ops(True)[-3:]
        mem[gran_at] = gran_loads(full) + mem[gran_at]
        if trk_w2 is not None and mapping == "x8g4":
            P, Q = TM + 18, TM + 19
            for q in range(4):
                head = (f"s_and_b32 s3, s{sXD}, 1\ns_lshl_b32 s3, s3, 2\nv_bfe_u32 {v(Q)}, {v(L)}, 2, 2\nv_add_u32 {v(Q)}, s3, {v(Q)}\nv_cmp_eq_u32 vcc, {lite}, {v(Q)}\n"
                        f"v_lshrrev_b32 {v(P)}, 4, {v(L)}\nv_lshlrev_b32 {v(P)}, 10, {v(P)}\nv_subbrev_co_u32 {v(Q)}, vcc, 0, {v(Q)}, vcc\nv_lshl_add_u32 {v(P)}, {v(Q)}, 7, {v(P)}\n"
                        f"s_lshl_b32 s{sJ}, s{sJ}, 2\ns_add_u32 s{sJ}, s{sJ}, s{sW}\ns_mul_i32 s{sJ}, s{sJ}, {14*1024}\n") if q == 0 else f"s_add_u32 s{sJ}, s{sJ}, {4096 if q < 3 else 2048}\n"
                mem[trk_w2 + q] = mem[trk_w2 + q] + [(head + f"buffer_load_dword a255, {v(P)}, {s(rW2,4)}, s{sJ} offen", "trk")]
        if trk_c is not None:
            P = TM + 19
            nrow = 2 if mapping == "x8g4" else 4
            half = f"s_and_b32 s3, s{sXD}, 1\ns_lshl_b32 s3, s3, 18\ns_add_u32 s{t2}, s{t2}, s3\n" if mapping == "x8g4" else ""
            mem[trk_c] = mem[trk_c] + [
                (f"s_lshl_b32 s{t2}, s{sJ}, 2\ns_add_u32 s{t2}, s{t2}, s{sW}\ns_mul_i32 s{t2}, s{t2}, {nrow*1024}\n{half}v_bfe_u32 {v(P)}, {v(L)}, 4, {nrow//2}\nv_lshlrev_b32 {v(P)}, 10, {v(P)}\n"
                 f"buffer_load_dword a255, {v(P)}, {s(rCR,4)}, s{t2} offen offset:384", "trk"),
                (f"buffer_load_dword a255, {v(P)}, {s(rCI,4)}, s{t2} offen offset:384", "trk")]
        if trickle and not full:
            for sg, op in enumerate(trickle_ops()[trk_pre:]):
                mem[sg] = mem[sg] + [op]
        val = late_setup(full)[n_before:] if pre3 else late_setup(full)
        if cs_late and not full:
            val = []
        for stg in range(8):
            k.wait(vm=f"st{stg}", lg="all" if look == 3 else None)
            k("s_barrier")
            if stg in (0, 4):
                stamp(f"{pfx}st{stg}")
            steps = ([4 * stg - 1] if stg else []) + [4 * stg, 4 * stg + 1, 4 * stg + 2] + ([31] if stg == 7 else [])
            if stg == 0:
                run(reads(0))
            mm = spread_mem(mem[stg], nm * min(4, len(steps))) if mem[stg] else []
            if full and stats_at is not None and stg == stats_at + 2:
                val = row_stats(True) + val
            if stg == 6:
                assert stats_at is None or not val
                assert look == 2 or not val
                val = val + epi_addr()
            gi = 0
            for n in steps:
                f = FR + 28 * (n & 1)
                last = n % 4 == 2 and look == 3
                rd = spread(reads(n + 1), nm - 2 if last and full else nm) + [[]] * 2 if n < 31 else [[]] * nm
                for i in range(nm):
                    if i == 0:
                        k.wait(lg=f"ra{n}")
                    if i == 3:
                        k.wait(lg=f"rb_{n}")
                    c0 = "0" if n == 0 else None
                    if i < 2:
                        mfma(SS + 16 * i, a(f, 4), a(f + 4 + 4 * i, 4), c0)
                    else:
                        mfma(ACC + 16 * (i - 2), a(f + 12 + 4 * (i - 2), 4), a(f, 4), c0)
                    here = rd[i] + (mm[gi] if gi < len(mm) else [])
                    run(here)
                    used = 8 + sum(map(cost, here)) + (6 if i in (2, nm - 1) else 0)
                    while val and (used + cost(val[0]) <= budget or (not full and used < 60)):
                        used += cost(val[0])
                        run([val.pop(0)])
                    gi += 1
                probe(f"g{n}")
        run(val)

    def scan_ops():
        o = [W(lg="rsv")]
        for r in range(0, 16, 2):
            o += ops_of(f"v_pk_mul_f32 {v(SS+r,2)}, {v(SS+r,2)}, {v(RSV+r,2)}\nv_pk_mul_f32 {v(SS+16+r,2)}, {v(SS+16+r,2)}, {v(RSV+r,2)}")
        for r in range(1, 16):
            o += ops_of(f"v_fmac_f32 {v(SS+r)}, {v(LAR)}, {v(SS+r-1)}\nv_fmac_f32 {v(SS+16+r)}, {v(LAR)}, {v(SS+15+r)}\n"
                        f"v_fmac_f32 {v(SS+r)}, {v(NLAI)}, {v(SS+15+r)}\nv_fmac_f32 {v(SS+16+r)}, {v(LAI)}, {v(SS+r-1)}")
        o.append((f"ds_write2_b32 {v(XW)}, {v(SS+15)}, {v(SS+31)} offset0:0 offset1:1", "exw"))
        return o

    def chain_ops():
        o = [(f"ds_read_b64 {v(EK+2*q,2)}, {v(XQ)} offset:{q*256}", f"ek{q}") for q in range(8)]
        SG = TM + 17
        o.append((f"s_lshl_b32 s3, s{sW}, 1\nv_add_u32 {v(SG)}, s3, {v(HF)}", None))
        o += ops_of(f"v_mov_b32 {v(PR)}, 0\nv_mov_b32 {v(PI)}, 0\nv_mov_b32 {v(XA+1)}, s{sTAG}\nv_mov_b32 {v(XA+3)}, s{sTAG}")
        o.append(W(lg="ek3"))
        for q in range(1, 8):
            r, i = EK + 2 * q, EK + 2 * q + 1
            dr, di = (XA, XA + 2) if q == 7 else (r, i)
            if q == 4:
                o.append(W(lg="ek7"))
            o += ops_of(f"v_cmp_eq_u32 vcc, {q}, {v(SG)}\nv_fmac_f32 {v(r)}, {v(L16R)}, {v(r-2)}\nv_fmac_f32 {v(i)}, {v(L16R)}, {v(i-2)}\n"
                        f"v_cndmask_b32 {v(PR)}, {v(PR)}, {v(r-2)}, vcc\nv_cndmask_b32 {v(PI)}, {v(PI)}, {v(i-2)}, vcc\n"
                        f"v_fma_f32 {v(dr)}, {v(NL16I)}, {v(i-2)}, {v(r)}\nv_fma_f32 {v(di)}, {v(L16I)}, {v(r-2)}, {v(i)}")
        o.append((f"s_cmp_eq_u32 s{sW}, 3\ns_cselect_b32 s3, 0, 0x10000\nv_lshlrev_b32 {v(SG)}, 13, {v(HF)}\nv_add3_u32 {v(SG)}, {v(SG)}, {v(L16)}, s3\ns_lshl_b32 s3, s{sC}, 9\n"
                  f"buffer_store_dwordx4 {v(XA,4)}, {v(SG)}, {s(rE,4)}, s3 offen sc1", "epub"))
        return o

    def coef_ops():
        o = []
        for r in range(0, 16, 2):
            tt = XB + (r & 2)
            o += ops_of(f"v_pk_mul_f32 {v(tt,2)}, {v(SS+r,2)}, {v(NCFI,2)} op_sel_hi:[1,0]\nv_pk_mul_f32 {v(SS+r,2)}, {v(SS+r,2)}, {v(CFR,2)} op_sel_hi:[1,0]\n"
                        f"v_pk_fma_f32 {v(SS+r,2)}, {v(SS+16+r,2)}, {v(NCFI,2)}, {v(SS+r,2)} op_sel_hi:[1,0,1]\n"
                        f"v_pk_fma_f32 {v(SS+16+r,2)}, {v(SS+16+r,2)}, {v(CFR,2)}, {v(tt,2)} op_sel:[0,1,0] op_sel_hi:[1,1,1]")
        return o

    XSL = 3 * SLOT + 32768
    def xs_ops():
        P = TM + 19
        return [(f"s_lshl_b32 s{t2}, s{sM}, 1\ns_lshr_b32 s3, s{sW}, 1\ns_add_u32 s{t2}, s{t2}, s3\ns_lshl_b32 s{t2}, s{t2}, 15\n"
                 f"s_lshl_b32 s3, s{sN}, 7\ns_add_u32 s{t2}, s{t2}, s3\ns_and_b32 s3, s{sW}, 1\ns_lshl_b32 s3, s3, 6\ns_add_u32 s{t2}, s{t2}, s3\n"
                 f"v_lshrrev_b32 {v(P)}, 2, {v(L)}\nv_and_b32 {v(P-1)}, 3, {v(L)}\nv_lshlrev_b32 {v(P-1)}, 4, {v(P-1)}\nv_lshl_add_u32 {v(P)}, {v(P)}, 10, {v(P-1)}\n"
                 f"s_lshr_b32 s3, s{sW12}, 1\ns_add_u32 m0, s3, {XSL}", None),
                (f"buffer_load_dwordx4 {v(P)}, {s(rX,4)}, s{t2} offen {NT('y')}lds", "xs"),
                (f"s_add_u32 s{t2}, s{t2}, {16384 - 1024}\nbuffer_load_dwordx4 {v(P)}, {s(rX,4)}, s{t2} offen offset:1024 lds", "xs")]

    def mish_ops(t):
        ops = []
        TA, TB = MI, MI + 8
        for e in range(2):
            R = ACC + 16 * t + 8 * e
            one = lambda f: [(f(i), None) for i in range(8)]
            two = lambda f: [(f(i), None) for i in range(0, 8, 2)]
            ops += two(lambda i: f"v_pk_mul_f32 {v(TA+i,2)}, {v(R+i,2)}, {v(C1,2)} op_sel_hi:[1,0]")
            ops += one(lambda i: f"v_exp_f32 {v(TB+i)}, {v(TA+i)}")
            ops += two(lambda i: f"v_pk_fma_f32 {v(R+i,2)}, {v(TB+i,2)}, 0.5, 1.0 op_sel_hi:[1,0,0]")
            ops += two(lambda i: f"v_pk_fma_f32 {v(TB+i,2)}, {v(TB+i,2)}, {v(R+i,2)}, 1.0 op_sel_hi:[1,1,0]")
            ops += one(lambda i: f"v_rcp_f32 {v(TB+i)}, {v(TB+i)}")
            ops += two(lambda i: f"v_pk_fma_f32 {v(TA+i,2)}, {v(TA+i,2)}, {v(TB+i,2)}, {v(TA+i,2)} neg_lo:[1,0,0] neg_hi:[1,0,0]")
            ops += two(lambda i: f"v_cvt_pk_bf16_f32 {v(R+i//2)}, {v(TA+i)}, {v(TA+i+1)}")
            pre = f"s_add_u32 s{sA0}, s{sA0}, 4096\n" if t == 2 and e == 0 else ""
            ops.append((pre + f"buffer_store_dwordx4 {v(R,4)}, {v(L16)}, {s(rWS,4)}, s{sA0} offen offset:{(2*(t&1)+e)*1024} {st}", f"act{t}"))
        return ops

    PA, PV = BI, BI + 1

    def flag_publish(base, tag):
        k(f"s_lshl_b32 s{sQ}, s{sC}, 4\ns_add_u32 s{sQ}, s{sQ}, s{sG if base == FLC else sF}\ns_lshl_b32 s{sQ}, s{sQ}, 2\ns_add_u32 s{sQ}, s{sQ}, s{sW}\ns_lshl_b32 s{sQ}, s{sQ}, 7\ns_add_u32 s{sQ}, s{sQ}, {base}")
        k(f"v_mov_b32 {v(MF)}, s{sTAG}")
        k.wait(vm=tag)
        k("s_mov_b64 exec, 1")
        text = f"buffer_store_dword {v(MF)}, off, {s(rWS,4)}, s{sQ}"
        if mode == "global":
            k(text + " sc1", "flag")
        else:
            far, done = k.label("far"), k.label("flagged")
            k(f"s_cmp_eq_u32 s{sLOC}, 0\ns_cbranch_scc1 {far}")
            k(text, "flag")
            k(f"s_branch {done}\n{far}:")
            untracked(f"buffer_wbl2 sc1\ns_waitcnt vmcnt(0)\n{text} sc1")
            k(done + ":")
        k("s_mov_b64 exec, -1")

    def poll_load(tag):
        return [(f"buffer_load_dword {v(PV)}, {v(PA)}, {s(rWS,4)}, s{t3} offen sc1", tag)]

    def poll_base(base):
        return f"s_lshl_b32 s3, s{sC}, 5\ns_lshr_b32 s{t3}, s{sG}, 3\ns_add_u32 s3, s3, s{t3}\ns_lshl_b32 s3, s3, 8\ns_add_u32 s{t3}, s3, {base}"

    def poll_ops(first, base, tag):
        top = 15 if base == FLC else 13
        return [(f"{first}\nv_bfe_u32 {v(PA)}, {v(L)}, 1, 2\nv_add_u32 {v(PA)}, s3, {v(PA)}\nv_min_u32 {v(PA)}, {top}, {v(PA)}\nv_and_b32 {v(PV)}, 1, {v(L)}\n"
                 f"v_lshl_add_u32 {v(PA)}, {v(PA)}, 2, {v(PV)}\nv_lshlrev_b32 {v(PA)}, 7, {v(PA)}\n" + poll_base(base), None)] + poll_load(tag)

    poll1_ops = lambda: poll_ops(f"s_mov_b32 s3, s{sGE}", FLB if one else FLA, "poll1")
    poll2_ops = lambda: poll_ops(f"s_mov_b32 s3, s{sGL}", FLB, "poll2")
    poll3_ops = lambda: poll_ops(f"s_lshl_b32 s3, s{sW}, 2", FLC, "poll3")
    poll_check = lambda tag: spin_check(tag, tag, f"v_cmp_ne_u32 vcc, s{sTAG}, {v(PV)}", poll_load(tag))

    def carry_write():
        Y0, Y1 = TM + 12, TM + 13
        mis = (f"v_xor_b32 {v(Y0)}, {v(E0+1)}, {v(EX0)}\nv_xor_b32 {v(Y1)}, {v(E0+3)}, {v(EX0)}\nv_or_b32 {v(Y0)}, {v(Y0)}, {v(Y1)}\n"
               f"v_xor_b32 {v(Y1)}, {v(E0+5)}, {v(EX1)}\nv_or_b32 {v(Y0)}, {v(Y0)}, {v(Y1)}\nv_xor_b32 {v(Y1)}, {v(E0+7)}, {v(EX1)}\nv_or_b32 {v(Y0)}, {v(Y0)}, {v(Y1)}\n"
               f"v_cmp_ne_u32 vcc, 0, {v(Y0)}")
        spin_check("e", "eg", mis, e_loads())
        k(f"v_fmac_f32 {v(E0)}, {v(L2R)}, {v(E0+4)}\nv_fmac_f32 {v(E0+2)}, {v(L2R)}, {v(E0+6)}")
        k(f"v_fma_f32 {v(E0)}, -{v(L2I)}, {v(E0+6)}, {v(E0)}\nv_fmac_f32 {v(E0+2)}, {v(L2I)}, {v(E0+4)}")
        k(f"v_mul_f32 {v(Y0)}, {v(SCRR)}, {v(E0)}\nv_mul_f32 {v(Y1)}, {v(SCRR)}, {v(E0+2)}")
        k(f"v_fma_f32 {v(Y0)}, -{v(SCI)}, {v(E0+2)}, {v(Y0)}\nv_fmac_f32 {v(Y1)}, {v(SCI)}, {v(E0)}")
        k(f"ds_write_b64 {v(XW)}, {v(Y0,2)} offset:{SCR_CX - SCR_EX}", "cxw")
        k.wait(lg="all")
        k("s_barrier")
        for q in range(8):
            k(f"ds_read_b64 {v(TM+2*q,2)}, {v(XQ)} offset:{SCR_CX - SCR_EX + q*256}", "cxr")

    def fix_ops():
        o = []
        e = lambda text, tag=None: o.extend(ops_of(text, tag))
        o.append(W(lg="cxr"))
        for step in (8, 4, 2):
            for q in range(0, step, 2):
                e(f"v_pk_add_f32 {v(TM+q,2)}, {v(TM+q,2)}, {v(TM+q+step,2)}")
        NS = TM + 16
        e(f"v_fmac_f32 {v(PR)}, {v(PWR)}, {v(TM)}\nv_fmac_f32 {v(PI)}, {v(PWR)}, {v(TM+1)}")
        e(f"v_fma_f32 {v(NS)}, -{v(PWI)}, {v(TM+1)}, {v(PR)}\nv_fma_f32 {v(NS+1)}, -{v(PWI)}, {v(TM)}, -{v(PI)}")
        for qq in range(4):
            comp, half = qq >> 1, qq & 1
            for r in range(8 * half, 8 * half + 8, 2):
                d = SS + 16 * comp + r
                e(f"v_pk_fma_f32 {v(d,2)}, {v(T+r,2)}, {v(NS,2)}, {v(d,2)} op_sel:[0,{comp},0] op_sel_hi:[1,{comp},1]")
                if comp == 0:
                    e(f"v_pk_fma_f32 {v(d,2)}, {v(T+16+r,2)}, {v(NS,2)}, {v(d,2)} op_sel:[0,1,0] op_sel_hi:[1,1,1]")
                else:
                    e(f"v_pk_fma_f32 {v(d,2)}, {v(T+16+r,2)}, {v(NS,2)}, {v(d,2)} op_sel:[0,0,0] op_sel_hi:[1,0,1] neg_lo:[0,1,0] neg_hi:[0,1,0]")
            for q in range(4):
                e(f"v_cvt_pk_bf16_f32 {v(TM+4*qq+q)}, {v(SS+8*qq+2*q)}, {v(SS+8*qq+2*q+1)}")
            e(f"ds_write_b128 {v(HA)}, {v(TM+4*qq,4)} offset:{comp*2048 + half*16}", f"htw{comp}")
            if half:
                for f in (2 * comp, 2 * comp + 1):
                    for rd in range(2):
                        e(f"ds_read_b64_tr_b16 {v(SS+16*comp+4*(f&1)+2*rd,2)}, {v(HB)} offset:{f*1024 + rd*256}", f"htr{f}")
        for f in range(4):
            o.append(W(lg=f"htr{f}"))
            pre = f"s_add_u32 s{sKW}, s{sKW}, 8192\n" if f == 2 else ""
            o.append((pre + f"buffer_store_dwordx4 {v(SS+16*(f>>1)+4*(f&1),4)}, {v(L16)}, {s(rWS,4)}, s{sKW} offen offset:{(f&1)*1024} {st}", "hst"))
        return o

    def a_ops(b):
        if b < 7:
            src, add = (sAE, b) if b < 3 else (sAX, 0) if b == 3 else (sAL, b - 4)
            head = f"s_mov_b32 s3, s{src}" if b == 3 else turn(add, 13) + f"\ns_add_u32 s3, s{src}, s3"
            if one:
                head = f"s_add_u32 s3, s{sAE}, {b*4096}"
        elif brot:
            head = f"s_xor_b32 s3, s{sN}, {b-7}\ns_and_b32 s3, s3, 3\ns_lshl_b32 s{t1}, s{sW}, 2\ns_add_u32 s3, s3, s{t1}\ns_lshl_b32 s3, s3, 12\ns_add_u32 s3, s3, {112*1024}"
        else:
            head = f"s_lshl_b32 s3, s{sW}, 14\ns_add_u32 s3, s3, {(112 + 4*(b-7))*1024}"
        ops = [(head + f"\ns_add_u32 s{t1}, s{sP0}, s3\ns_add_u32 s{t2}, s{sP1}, s3", None)]
        for j in range(4):
            for m in range(2):
                pre = f"s_xor_b32 s3, s{sROT2}, {j}\ns_lshl_b32 s3, s3, 10\nv_add_u32 {v(AL)}, s3, {v(L16)}\n" if krot and m == 0 else ""
                ops.append((pre + f"buffer_load_dwordx4 {a(32*(b%NA)+8*j+4*m,4)}, {v(AL)}, {s(rWS,4)}, s{t2 if m else t1} offen offset:{0 if krot else j*1024} sc1 {NT('a')}", f"ab{b}_{j}"))
        return ops

    def finish(full):
        carry_write()
        if early_a != 0:
            poll_check("poll1")
        stamp("poll" if full else "Lpoll")
        fx = fix_ops()
        if full:
            fx[f12_at:f12_at] = [lambda: probe("f12a"), lambda: flag_publish(FLB, "act3"), lambda: probe("f12b")]
        na = dist if early_a is None else early_a
        blocks = [a_ops(0), a_ops(1) + (poll2_ops() if p2_mid else [])] + ([a_ops(2)] if dist == 3 else [])
        r7 = ring_ops(7) if nres == 5 else []
        if nres == 5:
            fx = fx[:-8] + stage_reads(4) + fx[-8:]
        if one and order in ("c", "d"):
            fx = fix_ops()
            if full:
                flag_publish(FLB, "act3")
                probe("f12b")
            weave(ring_ops(7) + ring_ops(8), fx[:-8])
            probe("fxend")
            run(poll1_ops())
            if order == "d":
                run(fx[-8:])
            poll_check("poll1")
            probe("p1ok")
            if order == "c":
                weave(a_ops(0), fx[-8:])
            run(sum((a_ops(b) for b in range(order == "c", a_first)), []))
            return
        if one and order == "b":
            weave(r7, fx[:-8])
            probe("fxend")
            run(poll1_ops())
            run(fx[-8:-4])
            poll_check("poll1")
            probe("p1ok")
            weave(a_ops(0), fx[-4:])
            run(sum((a_ops(b) for b in range(1, a_first)), []))
            return
        if one:
            blocks = [a_ops(b) for b in range(a_first)]
            weave(r7, fx[:-8])
            probe("fxend")
            if poll_pos == "pre":
                run(poll1_ops())
            run(fx[-8:])
            if poll_pos == "post":
                run(poll1_ops())
        elif na or r7:
            weave(r7 + sum(blocks[:na], []), fx[:-8])
            run(fx[-8:])
        else:
            run(fx)
        if nres == 5:
            k.wait(lg="sr4")
            run(ring_ops(8))
        if not na:
            probe("p1in")
            poll_check("poll1")
            probe("p1ok")
        run(sum(blocks[na:], []))

    def bar(**kw):
        def f():
            k.wait(**kw)
            k("s_barrier")
        return f

    k(f"s_cmp_eq_u32 s{sN}, {lite}\ns_cbranch_scc1 L_light")
    snap0 = k.snapshot()
    run(stage_ops(0, True)); par_loads()
    weave(stage_ops(1, True), early_setup() + (row_stats() if stats_at is None else tag_ops()))
    if pre3:
      if pre2:
        run(late_setup(True)[:n_before])
      else:
        weave((mid_ops() if mid_at == -2 else []) + stage_ops(2, True) + (mid_ops() if mid_at == -1 else []), late_setup(True)[:n_before])
    small[0] = "s1" in ablate
    gemm1(True, "")
    small[0] = False
    stamp("gemm")
    gran_check(True)
    stamp("gran")
    m = [mish_ops(t) for t in range(4)]
    h = len(m[0]) // 2
    if "stores" in ablate:
        m = [[op if op[1] is None else (op[0].replace("offen", "offen").replace(v(L16), v(TM + 19)), op[1]) for op in mt] for mt in m]
        k(f"v_mov_b32 {v(TM+19)}, 0x7fffffff")
    for t in range(4):
        m[t].insert(0, (lambda tt: (lambda: probe(f"m{tt}")))(t))
    if "f1" in ablate:
        k(f"v_mov_b32 {v(MF)}, 0")
    r2 = ring_ops(2) if look == 2 else []
    if "scan" in ablate:
        drop = lambda ops: [op for op in ops if callable(op) or not op[0].startswith(("v_fmac", "v_pk_mul", "v_cmp", "v_cnd", "v_fma"))]
        so, co = scan_ops, chain_ops
        scan_ops, chain_ops = (lambda: drop(so())), (lambda: drop(co()))
    if "mish" in ablate:
        m = [[op for op in mt if callable(op) or op[1] is not None] for mt in m]
        h = 2
    if order == "m" and n_pre is not None:
        k("s_barrier")
        rings = [ring_ops(b) for b in range(2 if look == 2 else 3, 6)]
        pre = stage_reads(0) + stage_reads(1)
        weave(sum(rings[:n_pre], []) or [("s_nop 0", "none")], pre[:17] + m[0] + pre[17:] + m[1] + m[2] + m[3])
        stamp("mish")
        rest = sum(rings[n_pre:], [])
        cutp = len(rest) // 3
        while cutp and rest[cutp - 1][1] is None:
            cutp += 1
        run(rsv_reads())
        if flag_first:
            run(scan_ops())
            flag_publish(FLB, "act3")
            cutp = 0
        else:
            weave(rest[:cutp], scan_ops())
            probe("scan")
            if f12_late is None:
                flag_publish(FLB, "act3")
            probe("f12")
        bar(lg="all")()
        ch = chain_ops()
        if f12_late is not None:
            ch.insert(min(f12_late, len(ch)), lambda: flag_publish(FLB, "act3"))
        weave(rest[cutp:], ch + [lambda: stamp("epub")] + coef_ops() + stage_reads(2) + [W(lg="sr2")])
        weave(ring_ops(6), stage_reads(3) + [W(lg="sr3")])
        weave(ring_ops(7), stage_reads(4) + [W(lg="sr4")])
    elif order == "m":
        k("s_barrier")
        weave(ring_ops(2), stage_reads(0) + m[0])
        weave(ring_ops(3) + [W(lg="sr0")] + ring_ops(4), stage_reads(1) + m[1] + stage_reads(2))
        weave([W(lg="sr2")] + ring_ops(5), m[2])
        weave(ring_ops(6) if m_r6 else [("s_nop 0", "none")], m[3])
        stamp("mish")
        run(rsv_reads() + stage_reads(3) + scan_ops())
        flag_publish(FLB, "act3")
        bar(lg="all")()
        weave(([] if m_r6 else ring_ops(6)) + ring_ops(7), chain_ops())
        stamp("epub")
        run(stage_reads(4) + coef_ops() + [W(lg="sr4")])
    else:
      run(scan_ops())
      run(m[0][:h])
      bar(lg="all")()
      weave(r2 + ring_ops(3), chain_ops() + stage_reads(0) + m[0][h:] + [W(lg="sr0")])
      stamp("epub")
    if order == "m":
        pass
    elif order in ("c", "d"):
        hh = len(m[1]) // 2
        weave(ring_ops(4), stage_reads(1) + m[1][:hh] + [W(lg="sr1")])
        weave(ring_ops(5), stage_reads(2) + m[1][hh:] + [W(lg="sr2")])
        weave(ring_ops(6), m[2] + stage_reads(3))
        run(e_loads())
        run(m[3] + stage_reads(4) + coef_ops())
        stamp("mish")
        finish(True)
    else:
      weave(ring_ops(4), stage_reads(1) + m[1] + [W(lg="sr1")])
      weave(ring_ops(5), stage_reads(2) + m[2] + ([] if one else [lambda: flag_publish(FLA, "act1")]) + [W(lg="sr2")])
      run(e_loads())
      weave(ring_ops(6), (stage_reads(3) if nres == 5 else []) + m[3] + coef_ops())
      if not one:
          run(poll1_ops())
      stamp("mish")
      finish(True)
    k.wait(lg="all")
    k("s_branch L_join")
    snap_join = k.snapshot()

    k("L_light:")
    k.restore(snap0)
    k(f"s_lshl_b32 s{sQ}, s{sC}, 1\ns_lshr_b32 s3, s{sG}, 3\ns_add_u32 s{sQ}, s{sQ}, s3")
    rL = 36 if cs_late else rE
    if cs_late:
        nt = cs_nt
        run(stage_ops(0, False))
        par_loads()
    k(f"s_cmp_lt_u32 s{sQ}, 16\ns_cselect_b32 s{rL}, s{pBR}, s{pBI}\ns_cselect_b32 s{rL+1}, s{pBR+1}, s{pBI+1}\ns_mov_b32 s{rL+2}, 0x80000\ns_mov_b32 s{rL+3}, 0x20000")
    if cs_late:
        weave(stage_ops(1, False), early_setup() + tag_ops())
        if cs_pos == 2:
            weave(stage_ops(2, False), late_setup(False))
        run(srow_ops(True))
    k(f"s_and_b32 s{t0}, s{sQ}, 15\ns_lshl_b32 s{t0}, s{t0}, 15\ns_add_u32 s{t0}, s{t0}, s{sW13}")
    if "z" in nt:
        k(f"v_add_u32 {v(TM+18)}, s{t0}, {v(L16)}\ns_lshl_b32 s3, s{sQ}, 15\nv_add_u32 {v(TM+18)}, s3, {v(TM+18)}\nv_and_b32 {v(TM+18)}, 0x1fcfff, {v(TM+18)}")
        for i in range(8):
            k(f"global_load_dwordx4 a[0:3], {v(TM+18)}, s[34:35] offset:{(i&3)*1024} nt", "dummy")
            if i == 3:
                k(f"v_xor_b32 {v(TM+18)}, 0x1000, {v(TM+18)}")
    for i in range(8):
        if i == 4:
            k(f"s_add_u32 s{t0}, s{t0}, 4096")
        k(f"buffer_load_dwordx4 {v(SS+4*i,4)}, {v(L16)}, {s(rL,4)}, s{t0} offen offset:{(i&3)*1024} {NT('l') or NT('m') or (NT('h') if i < 2 else '') or (NT('k') if i < 4 else '')}", "lb")
    k(f"s_min_u32 s{t0}, s{sQ}, 27\ns_lshl_b32 s{t0}, s{t0}, 7\ns_mul_i32 s3, s{sW}, {128*3584}\ns_add_u32 s{t0}, s{t0}, s3")
    k(f"v_lshrrev_b32 {v(TM+16)}, 3, {v(L)}\nv_mul_u32_u24 {v(TM+16)}, 3584, {v(TM+16)}\nv_and_b32 {v(TM+17)}, 7, {v(L)}\nv_lshl_add_u32 {v(TM+16)}, {v(TM+17)}, 4, {v(TM+16)}")
    if "W" in nt:
        k(f"s_cmp_lt_u32 s{sW}, 2\ns_cbranch_scc1 L_lw_keep")
        for i in range(16):
            untracked(f"buffer_load_dwordx4 {v(ACC+4*i,4)}, {v(TM+16)}, {s(rW1,4)}, s{t0} offen nt\ns_add_u32 s{t0}, s{t0}, {8*3584}")
        k("s_branch L_lw_done\nL_lw_keep:")
    for i in range(16):
        k(f"buffer_load_dwordx4 {v(ACC+4*i,4)}, {v(TM+16)}, {s(rW1,4)}, s{t0} offen {NT('l') or NT('n') or (NT('q') if i < 6 else '')}", f"lw{i}")
        k(f"s_add_u32 s{t0}, s{t0}, {8*3584}")
    if "W" in nt:
        k("L_lw_done:")
    if cs_late:
        run(trickle_ops()[:trk_pre])
        if far_light == 0:
            run(far_light_ops())
        if cs_pos == 1:
            weave(stage_ops(2, False), late_setup(False))
        run(row_stats(True))
    else:
        par_loads()
        if stats_at is not None:
            run(srow_ops(False))
        run(early_setup()); run(row_stats())
    CA, EL = TM, TM + 8

    def fold8(R):
        for j in range(0, 8, 2):
            k(f"v_permlane32_swap_b32 {v(R+j)}, {v(R+j+1)}")
        for j in range(0, 8, 2):
            k(f"v_add_f32 {v(R+j)}, {v(R+j)}, {v(R+j+1)}")
        k(f"v_permlane16_swap_b32 {v(R)}, {v(R+2)}\nv_permlane16_swap_b32 {v(R+4)}, {v(R+6)}")
        k(f"v_add_f32 {v(R)}, {v(R)}, {v(R+2)}\nv_add_f32 {v(R+4)}, {v(R+4)}, {v(R+6)}")

    def split_publish(R, addr, soff):
        k(f"v_cvt_pk_bf16_f32 {v(R+1)}, {v(R)}, {v(R)}\nv_and_b32 {v(R+1)}, 0xffff0000, {v(R+1)}\nv_sub_f32 {v(R+1)}, {v(R)}, {v(R+1)}")
        k(f"v_cvt_pk_bf16_f32 {v(R)}, {v(R)}, {v(R+1)}\nv_mov_b32 {v(R+1)}, s{sTAG}")
        k(f"buffer_store_dwordx2 {v(R,2)}, {v(addr)}, {s(rWS,4)}, s{soff} offen sc1", "cspub")

    k(f"s_mov_b32 s{t0}, 0x3f803f80")
    for j in range(8):
        k(f"v_mov_b32 {v(CA+j)}, 0")
    k(f"v_bfe_u32 {v(EL)}, {v(L)}, 4, 1\nv_lshl_add_u32 {v(EL)}, {v(EL)}, 1, {v(HF)}")
    k.wait(vm="lb")
    for j in range(4):
        for i in range(8):
            k(f"v_dot2c_f32_bf16 {v(CA+i)}, s{t0}, {v(SS+4*i+j)}")
    fold8(CA)
    for r in (8, 4, 2, 1):
        k(f"v_add_f32_dpp {v(CA)}, {v(CA)}, {v(CA)} row_ror:{r} row_mask:0xf bank_mask:0xf")
        k(f"v_add_f32_dpp {v(CA+4)}, {v(CA+4)}, {v(CA+4)} row_ror:{r} row_mask:0xf bank_mask:0xf")
    k(f"v_and_b32 {v(EL+1)}, 1, {v(L)}\nv_cmp_eq_u32 vcc, 1, {v(EL+1)}\nv_lshl_add_u32 {v(EL+1)}, {v(EL+1)}, 2, {v(EL)}\nv_lshlrev_b32 {v(EL+1)}, 3, {v(EL+1)}")
    k(f"v_cndmask_b32 {v(CA)}, {v(CA)}, {v(CA+4)}, vcc")
    k(f"s_lshl_b32 s{t2}, s{sQ}, 8\ns_lshl_b32 s3, s{sW}, 6\ns_add_u32 s{t2}, s{t2}, s3\ns_add_u32 s{t2}, s{t2}, {CS + 1792*8}")
    split_publish(CA, EL + 1, t2)
    stamp("Lbsum")
    if far_light == 1:
        run(far_light_ops())
    if c_light == 1:
        run(c_light_ops())
    if mid_at is not None and mid_at < 0:
        run(mid_ops())
    if not cs_late:
        run(stage_ops(0, False))
    k(f"s_mov_b32 s{t2}, 0x00003f80\ns_mov_b32 s{t3}, 0x3f800000")
    for j in range(8):
        k(f"v_mov_b32 {v(CA+j)}, 0")
    for i in range(16):
        k.wait(vm=f"lw{i}")
        for j in range(4):
            k(f"v_dot2c_f32_bf16 {v(CA+2*j)}, s{t2}, {v(ACC+4*i+j)}\nv_dot2c_f32_bf16 {v(CA+2*j+1)}, s{t3}, {v(ACC+4*i+j)}")
    for j in range(8):
        k(f"v_add_f32_dpp {v(CA+j)}, {v(CA+j)}, {v(CA+j)} row_ror:8 row_mask:0xf bank_mask:0xf")
    fold8(CA)
    k(f"v_and_b32 {v(EL+1)}, 7, {v(L)}\nv_lshl_add_u32 {v(EL+1)}, {v(EL+1)}, 3, {v(EL)}\nv_lshlrev_b32 {v(EL+1)}, 2, {v(EL+1)}")
    k(f"s_lshl_b32 s3, s{sW}, 8\ns_add_u32 s3, s3, 16384\nv_add_u32 {v(EL+1)}, s3, {v(EL+1)}")
    k(f"ds_write2_b32 {v(EL+1)}, {v(CA)}, {v(CA+4)} offset0:0 offset1:4", "cw")
    k(f"v_lshlrev_b32 {v(EL+1)}, 2, {v(L)}\nv_add_u32 {v(EL+1)}, 16384, {v(EL+1)}")
    k.wait(lg="all")
    k("s_barrier")
    for j in range(4):
        k(f"ds_read_b32 {v(CA+j)}, {v(EL+1)} offset:{j*256}", "cr")
    k(f"s_min_u32 s{t2}, s{sQ}, 27\ns_lshl_b32 s{t2}, s{t2}, 9\ns_add_u32 s{t2}, s{t2}, {CS}\nv_lshlrev_b32 {v(EL+2)}, 3, {v(L)}")
    k.wait(lg="all")
    k(f"v_add_f32 {v(CA)}, {v(CA)}, {v(CA+1)}\nv_add_f32 {v(CA+2)}, {v(CA+2)}, {v(CA+3)}\nv_add_f32 {v(CA)}, {v(CA)}, {v(CA+2)}")
    split_publish(CA, EL + 2, t2)
    stamp("Lwsum")
    if far_light == 2:
        run(far_light_ops())
    if c_light == 2:
        run(c_light_ops())
    if not cs_late:
        run(stage_ops(1, False))
    if pre3 and not cs_late:
        weave(stage_ops(2, False), late_setup(False)[:n_before])
    gemm1(False, "L")
    stamp("Lgemm")
    gran_check(False)
    run(scan_ops())
    bar(lg="all")()
    weave(r2 + ring_ops(3), chain_ops() + stage_reads(0) + stage_reads(1) + [W(lg="all")])
    stamp("Lepub")
    weave(ring_ops(4), stage_reads(2) + [W(lg="all")])
    weave(ring_ops(5) + ring_ops(6), coef_ops() + (stage_reads(3) if nres == 5 else []) + (stage_reads(4) if order in ("c", "d") else []))
    if order == "m":
        run(stage_reads(4) + [W(lg="all")] + ring_ops(7))
    else:
        run(e_loads())
        if not one:
            run(poll1_ops())
        finish(False)
    k.wait(lg="all")
    snap_light = k.snapshot()

    k("L_join:")
    if order == "m":
        k.merge(snap_join, snap_light, ("rb5", "rb6", "rb7"))
        probe("join")
        r8 = ring_ops(8)
        at = {"pre": 0, "mid": 5, "post": len(r8)}[ep_pos]
        run(r8[:at] + poll1_ops() + e_loads() + r8[at:])
        blocks = [a_ops(b) for b in range(a_first)]
        if a_lead:
            probe("r8")
            poll_check("poll1")
            probe("p1")
            run(blocks.pop(0))
            probe("a0")
            carry_write()
        else:
            carry_write()
            poll_check("poll1")
        stamp("poll")
        fx = fix_ops()
        weave(sum(blocks, []), fx[:-8])
        run(fx[-8:])
    else:
      k.merge(snap_join, snap_light, tuple(f"rb{b}" for b in range(nres, nres + (3 if order == "b" else 4))) + ("hst",) + (("poll2",) if p2_mid else ()) + tuple(f"ab{b}_{j}" for b in range(a_first if one else dist) for j in range(4)))
    stamp("stored")

    def b_reads(n):
        b, j = divmod(n, 4)
        hi = RING[b] >= HIGH
        off = RING[b] - (HIGH if hi else 0)
        if b < nres:
            return []
        if b < 7:
            return [(f"ds_read_b64_tr_b16 {a(FR+8*j+4*c+2*rd,2)}, {v(W2R+2*hi+c)} offset:{off + j*2048 + rd*1024}", f"f{n}")
                    for c in range(2) for rd in range(2)]
        return [(f"ds_read_b128 {a(FR+8*j+4*c,4)}, {v(CR+4*hi+j)} offset:{off + c*4096}", f"f{n}") for c in range(2)]

    if p2_at == 1 and not p2_mid and not one:
        run(poll2_ops())

    def addend_ops():
        o = [(f"s_lshr_b32 s3, s{sG}, 3\ns_lshl_b32 s3, s3, 1\ns_lshr_b32 s{sCNT}, s{sW}, 1\ns_add_u32 s3, s3, s{sCNT}\ns_lshl_b32 s3, s3, 7\ns_add_u32 s3, s3, {SCR}\n"
              f"v_lshlrev_b32 {v(TM+1)}, 6, {v(HF)}\nv_add_u32 {v(TM+1)}, s3, {v(TM+1)}", None)]
        for q in range(4):
            o += ops_of(f"ds_read_b128 {v(T+4*q,4)}, {v(TM+1)} offset:{q*16}\nds_read_b128 {v(T+16+4*q,4)}, {v(TM+1)} offset:{512+q*16}", "ast")
        P = TM + 2
        o.append((f"s_lshr_b32 s3, s{sW12}, 1\ns_add_u32 s3, s3, {XSL}\nv_bfe_u32 {v(P)}, {v(L)}, 2, 2\nv_lshl_add_u32 {v(P)}, {v(HF)}, 4, {v(P)}\nv_lshlrev_b32 {v(P)}, 6, {v(P)}\n"
                  f"v_bfe_u32 {v(P+1)}, {v(L)}, 4, 1\nv_lshl_add_u32 {v(P)}, {v(P+1)}, 5, {v(P)}\nv_and_b32 {v(P+1)}, 3, {v(L)}\nv_lshl_add_u32 {v(P)}, {v(P+1)}, 3, {v(P)}\nv_add_u32 {v(P)}, s3, {v(P)}", None))
        o.append(W(vm="xs"))
        for q in range(4):
            o += ops_of(f"ds_read_b64_tr_b16 {v(XS+16+2*q,2)}, {v(P)} offset:{q*256}", "ast")
        o.append(W(lg="ast"))
        for r in range(16):
            unpack = f"v_and_b32 {v(XS+r)}, 0xffff0000, {v(XS+16+r//2)}" if r & 1 else f"v_lshlrev_b32 {v(XS+r)}, 16, {v(XS+16+r//2)}"
            o += ops_of(f"{unpack}\nv_sub_f32 {v(T+16+r)}, {v(XS+r)}, {v(T+16+r)}\n"
                        f"v_mul_f32 {v(T+16+r)}, {v(T+16+r)}, {v(T+r)}\nv_fmac_f32 {v(XS+r)}, {v(T+16+r)}, {v(DSK)}")
        return o

    small[0] = "s2" in ablate
    a_next = a_first if one else dist
    for b in range(11):
        nxt = []
        if b == f3_at and not f3_step:
            flag_publish(FLC, "hst")
            stamp("flag")
        if b == p2_at and not one:
            poll_check("poll2")
            stamp("poll2")
        if b == p3_at:
            poll_check("poll3")
            stamp("poll3")
        while a_next <= min(b + dist, 10) and b >= (0 if a_next < (7 if one else 3) else p2_at if a_next < 7 else p3_at):
            nxt += a_ops(a_next); a_next += 1
        if b == p2_at - 2 and not p2_mid and not one:
            nxt += poll2_ops()
        if b == (p3_at - 2 if p3_issue is None else p3_issue):
            nxt = nxt + poll3_ops() if p3_issue is None else poll3_ops() + nxt
        if nres == 5:
            if b in (6, 7):
                nxt = ring_ops(b + 3) + nxt
            if order == "b" and b == 2:
                nxt += ring_ops(8)
        elif 7 <= b + dist < (9 if "rb" in ablate else 11):
            nxt += ring_ops(b + dist)
        if b == xs_at:
            nxt += xs_ops()
        if "xchg" in ablate and b == 6:
            nxt += [(f"s_lshl_b32 s3, s2, 2\ns_add_u32 s3, s3, s{sW}\ns_lshl_b32 s{sKW}, s3, 12\ns_add_u32 s{sKW}, s{sKW}, {32 << 20}", None)]
            nxt += [(f"buffer_store_dwordx4 {v(MI,4)}, {v(L16)}, {s(rWS,4)}, s{sKW} offen offset:{q*1024} sc1", "xst") for q in range(4)]
        if "xchg" in ablate and b == 9:
            nxt += [(f"s_xor_b32 s{sKW}, s{sKW}, {2 << 14}", None)]
            nxt += [(f"buffer_load_dwordx4 {v(MI+4*q,4)}, {v(L16)}, {s(rWS,4)}, s{sKW} offen offset:{q*1024} sc1", "xld") for q in range(4)]
        val = spread(addend_ops(), 32)[16 * (b - xs_at - 2):16 * (b - xs_at - 1)] if 2 <= b - xs_at <= 3 else [[]] * 16
        mm = spread_mem(nxt, 16) if nxt else [[]] * 16
        if b == 10 and tail_major:
            break
        for j in range(4):
            n = 4 * b + j
            rd = [[]] * 4
            if 4 * nres <= n + 1 < 44:
                if j == 3 and not ("rb" in ablate and b >= 8):
                    k.wait(vm=f"rb{b+1}")
                rd = spread(b_reads(n + 1), 4)
            if b == f3_at and f3_step and j == f3_step:
                flag_publish(FLC, "hst")
            k.wait(vm=f"ab{b}_{j}", lg=f"f{n}" if b >= nres else None)
            if j == 0 and b in (0, 8):
                stamp(f"blk{b}")
            for m in range(2):
                for c in range(2):
                    bop = (RESB[b] if b < nres else FR) + 8 * j + 4 * c
                    mfma(ACC + 32 * m + 16 * c, a(32 * (b % NA) + 8 * j + 4 * m, 4), a(bop, 4), "0" if n == 0 else None)
                    run(rd[2 * m + c]); run(mm[4 * j + 2 * m + c]); run(val[4 * j + 2 * m + c])
            probe(f"b{b}_{j}")
    GA = TM
    pre = ops_of(f"v_add_u32 {v(GA)}, s{sW13}, {v(L16)}")
    for u in (1, 2, 3):
        pre += ops_of(f"v_xor_b32 {v(GA+u)}, {u << 13}, {v(GA)}")
    pre.append((f"s_lshl_b32 s{t2}, s{sM}, 1\ns_lshr_b32 s3, s{sW}, 1\ns_add_u32 s{t2}, s{t2}, s3\ns_lshl_b32 s{t2}, s{t2}, 16\n"
                f"s_lshl_b32 s3, s{sN}, 8\ns_add_u32 s{t2}, s{t2}, s3\ns_and_b32 s3, s{sW}, 1\ns_lshl_b32 s3, s3, 7\ns_add_u32 s{t2}, s{t2}, s3", None))
    pre += ops_of(f"v_lshlrev_b32 {v(TM+4)}, 15, {v(HF)}\nv_lshl_add_u32 {v(TM+4)}, {v(LR)}, 2, {v(TM+4)}")
    wr = lambda u: [(f"ds_write_b128 {v(GA)}, {v(ACC+16*u+4*q,4)} offset:{(u>>1)*SLOT + (u&1)*4096 + q*1024}", "fw") for q in range(4)]
    if tail_major:
        for j in (1, 2, 3):
            run(b_reads(40 + j))
        run(pre)
        for u in (3, 2, 1, 0):
            for j in range(4):
                k.wait(vm=f"ab10_{j}", lg=f"f{40+j}")
                mfma(ACC + 16 * u, a(32 * (10 % NA) + 8 * j + 4 * (u >> 1), 4), a(FR + 8 * j + 4 * (u & 1), 4))
                late = {(2, 3): wr(3)[:1], (1, 0): wr(3)[1:2], (1, 1): wr(3)[2:3], (1, 2): wr(3)[3:], (1, 3): wr(2)[:1], (0, 0): wr(2)[1:2], (0, 1): wr(2)[2:3], (0, 2): wr(2)[3:],
                        (0, 3): wr(1)}
                run(late.get((u, j), []))
        stamp("p2done")
    else:
        stamp("p2done")
        run(pre)
        for u in (1, 2, 3):
            run(wr(u))
    k(f"s_mov_b32 s{t0}, 0x3f317218")
    k.wait(lg="all")
    k("s_barrier")
    for q in range(4):
        for u in (1, 2, 3):
            k(f"ds_read_b128 {v(ACC+16*u+4*q,4)}, {v(GA+u)} offset:{(u>>1)*SLOT + (u&1)*4096 + q*1024}", f"fr{q}")
    for q in range(4):
        k.wait(lg=f"fr{q}")
        for i in (0, 2):
            r = 4 * q + i
            k(f"v_pk_add_f32 {v(ACC+r,2)}, {v(ACC+r,2)}, {v(ACC+16+r,2)}\nv_pk_add_f32 {v(ACC+32+r,2)}, {v(ACC+32+r,2)}, {v(ACC+48+r,2)}")
        for i in (0, 2):
            r = 4 * q + i
            k(f"v_pk_add_f32 {v(ACC+r,2)}, {v(ACC+r,2)}, {v(ACC+32+r,2)}\nv_pk_fma_f32 {v(ACC+r,2)}, {v(ACC+r,2)}, {s(t0,2)}, {v(XS+r,2)} op_sel_hi:[1,0,1]")
        for i in range(4):
            r = 4 * q + i
            k(f"buffer_store_dword {v(ACC+r)}, {v(TM+4)}, {s(rOUT,4)}, s{t2} offen offset:{(r&1)*2048} {out_flags}", "out")
            if r & 1:
                k(f"s_add_u32 s{t2}, s{t2}, 4096")
    k(f"s_cmp_lg_u32 s{sC}, 15\ns_cbranch_scc1 L_fin\ns_or_b32 s3, s{sG}, s{sW}\ns_cmp_lg_u32 s3, 0\ns_cbranch_scc1 L_fin")
    k(f"v_mov_b32 {v(TM+5)}, s{sTAG}\ns_mov_b64 exec, 1")
    k(f"buffer_store_dword {v(TM+5)}, off, {s(rWS,4)}, 0 sc1\ns_mov_b64 exec, -1")
    k("L_fin:")
    if diag:
        k("s_waitcnt vmcnt(0)")
        stamp("end")
        for i in range(len(seen)):
            k(f"v_writelane_b32 {v(DG)}, s{FINE[i]}, {16+i}")
        k(f"s_lshl_b32 s3, s2, 2\ns_add_u32 s3, s3, s{sW}\ns_lshl_b32 s3, s3, 8\ns_add_u32 s3, s3, {DIAG}\nv_lshlrev_b32 {v(TM)}, 2, {v(L)}")
        k(f"buffer_store_dword {v(DG)}, {v(TM)}, {s(rWS,4)}, s3 offen sc1")
        if amplify == "skew":
            k(f"s_cmp_lg_u32 s2, {amp_wg}\ns_cbranch_scc1 L_end\nv_readlane_b32 s14, {v(DG)}, {len(stamps)-1}\ns_nop 3")
            k("L_w:\ns_memrealtime s[34:35]\ns_waitcnt lgkmcnt(0)\ns_sub_u32 s3, s34, s14\ns_cmp_lt_u32 s3, 500\ns_cbranch_scc1 L_w")
            k(f"v_lshlrev_b32 {v(TM)}, 10, {v(L)}\ns_mov_b32 s3, {DIAG}")
            for q in range(4):
                k(f"buffer_load_dword {v(TM+4+q)}, {v(TM)}, {s(rWS,4)}, s3 offen sc1\ns_add_u32 s3, s3, 65536")
            k(f"s_waitcnt vmcnt(0)\nv_min_u32 {v(TM+1)}, {v(TM+4)}, {v(TM+5)}\nv_min3_u32 {v(TM+1)}, {v(TM+1)}, {v(TM+6)}, {v(TM+7)}")
            k(f"v_max_u32 {v(TM+2)}, {v(TM+4)}, {v(TM+5)}\nv_max3_u32 {v(TM+2)}, {v(TM+2)}, {v(TM+6)}, {v(TM+7)}")
            for r in (8, 4, 2, 1):
                k(f"v_min_u32_dpp {v(TM+1)}, {v(TM+1)}, {v(TM+1)} row_ror:{r} row_mask:0xf bank_mask:0xf\nv_max_u32_dpp {v(TM+2)}, {v(TM+2)}, {v(TM+2)} row_ror:{r} row_mask:0xf bank_mask:0xf")
            k(f"s_nop 1\nv_readlane_b32 s12, {v(TM+1)}, 0\nv_readlane_b32 s13, {v(TM+2)}, 0\ns_nop 3\ns_sub_u32 s13, s13, s12\ns_min_u32 s13, s13, 1000\ns_lshl_b32 s13, s13, 2\ns_add_u32 s13, s13, 600")
            k("L_amp:\ns_memrealtime s[34:35]\ns_waitcnt lgkmcnt(0)\ns_sub_u32 s3, s34, s14\ns_cmp_lt_u32 s3, s13\ns_cbranch_scc1 L_amp")
        elif amplify:
            k(f"s_cmp_lg_u32 s2, {amp_wg}\ns_cbranch_scc1 L_end")
            k(f"v_readlane_b32 s12, {v(DG)}, 0\nv_readlane_b32 s13, {v(DG)}, {stamps.index(amplify)}\nv_readlane_b32 s14, {v(DG)}, {len(stamps)-1}\ns_nop 3")
            k("s_sub_u32 s13, s13, s12\ns_min_u32 s13, s13, 5000\ns_lshl_b32 s13, s13, 2")
            k("L_amp:\ns_memrealtime s[34:35]\ns_waitcnt lgkmcnt(0)\ns_sub_u32 s3, s34, s14\ns_cmp_lt_u32 s3, s13\ns_cbranch_scc1 L_amp")
    k("L_end:")
    k("s_endpgm")
    for text in cold:
        k(text)

    body, nops = pad(k.lines)
    hdr = open("parallel_sum__ssm_conv_s5__dense_activation_mish__prompt.s.ref").read().split("; Override")[0]
    hdr += """;
; One launch, 256 workgroups of 4 waves (one per CU, all resident). Workgroup (c, g): rows 128c..128c+127,
; scan channels 32g..32g+31 and, unless g & 7 == 3, 128 FFN columns. Raw x is the matrix operand; the
; LayerNorm mean and the bias are one extra k-step, the row scale is applied to the accumulators. The scan is
; exact: 16-step segments in registers, segment and tile end states combined with powers of lambda. Mish
; activations and states go to d_ws as bf16 matrix operands; each workgroup then finishes a 64 x 64 output tile.
; Hand-offs use write-through stores and tags derived from a generation word in d_ws that each launch advances.
"""
    text = hdr + "; @launch grid=(256,1,1) block=(256,1,1) lds=163840\n"
    text += f'.amdgcn_target "amdgcn-amd-amdhsa--gfx950"\n.text\n.globl {KNAME}\n.p2align 8\n.type {KNAME},@function\n{KNAME}:\n'
    text += "\n".join(body) + "\n"
    text += f""".section .rodata,"a"
.p2align 6
.amdhsa_kernel {KNAME}
  .amdhsa_next_free_vgpr 512
  .amdhsa_next_free_sgpr 102
  .amdhsa_accum_offset 256
  .amdhsa_group_segment_fixed_size 0
  .amdhsa_kernarg_size 128
  .amdhsa_user_sgpr_count 2
  .amdhsa_user_sgpr_kernarg_segment_ptr 1
  .amdhsa_system_sgpr_workgroup_id_x 1
.end_amdhsa_kernel
"""
    return text, dict(nops=nops, vgprs=V.next, stamps=stamps, seen=seen, lines=len(body), regs=V.names)


if __name__ == "__main__":
    import json
    kw = json.loads(sys.argv[2]) if len(sys.argv) > 2 else {}
    text, info = gen(**kw)
    open(sys.argv[1], "w").write(text)
    print({q: info[q] for q in ("nops", "vgprs", "lines")})
```
